```python
import torch

def _softmax(x, axis=-1):
    return torch.softmax(x, dim=axis)
def _gelu(x):
    return torch.nn.functional.gelu(x, approximate="tanh")
def _silu(x):
    return torch.nn.functional.silu(x)
def _sigmoid(x):
    return torch.sigmoid(x)
def _layernorm(x, axis=-1, eps=1e-5):
    m = x.mean(dim=axis, keepdim=True)
    v = x.var(dim=axis, keepdim=True, unbiased=False)
    return (x - m) / torch.sqrt(v + eps)
def _scatter_add(tgt, idx, src, axis=0):
    return tgt.clone().index_add_(axis, idx, src)
def _segment_sum(src, seg, n):
    out = torch.zeros((n,) + src.shape[1:], dtype=src.dtype)
    return out.index_add_(0, seg, src)
def _pad(x, pw):
    flat = tuple(v for pair in reversed(pw) for v in pair)
    return torch.nn.functional.pad(x, flat)

kernel_name = 'gated_mix__ssm_conv_s5__dense_activation_squared_relu__prompt'

def setup_inputs():

    _w = (lambda a: (lambda t: t.to(torch.bfloat16) if t.is_floating_point() else t)(torch.as_tensor(a)))
    def _A_setup():
        B, S, D = 1, 2048, 640
        P = D
        Lambda_re = -0.5 * (lambda _x: torch.exp(torch.as_tensor(_x)))((lambda *s: torch.randn(*s, dtype=torch.bfloat16) * 0.4)(P))
        Lambda_im = (lambda *s: torch.randn(*s, dtype=torch.bfloat16) * 0.8)(P) * 1.0
        B_re = (lambda *s: torch.randn(*s, dtype=torch.bfloat16) * 0.4)(P, D) * (D ** -0.5)
        B_im = (lambda *s: torch.randn(*s, dtype=torch.bfloat16) * 0.8)(P, D) * (D ** -0.5)
        C_re = (lambda *s: torch.randn(*s, dtype=torch.bfloat16) * 0.4)(D, P) * (P ** -0.5)
        C_im = (lambda *s: torch.randn(*s, dtype=torch.bfloat16) * 0.4)(D, P) * (P ** -0.5)
        log_dt = (lambda *s: torch.randn(*s, dtype=torch.bfloat16) * 0.4)(P) * 0.3 - 2.0
        Dskip = (lambda *s: torch.randn(*s, dtype=torch.bfloat16) * 0.1)(D)
        return {
            "x": _w((lambda *s: torch.randn(*s, dtype=torch.bfloat16) * 0.05)(B, S, D)),
            "Lambda_re": _w(Lambda_re),
            "Lambda_im": _w(Lambda_im),
            "B_re": _w(B_re),
            "B_im": _w(B_im),
            "C_re": _w(C_re),
            "C_im": _w(C_im),
            "log_dt": _w(log_dt),
            "Dskip": _w(Dskip),
        }
    _A_in = _A_setup()

    def _B_setup():
        B, S, D, F = 1, 2048, 640, 1728
        return {
            "x": _w((lambda *s: torch.randn(*s, dtype=torch.bfloat16) * 0.05)(B, S, D)),
            "w1": _w((lambda *s: torch.randn(*s, dtype=torch.bfloat16) * 0.05)(D, F)),
            "b1": _w((lambda *s: torch.randn(*s, dtype=torch.bfloat16) * 0.05)(F)),
            "w2": _w((lambda *s: torch.randn(*s, dtype=torch.bfloat16) * 0.05)(F, D)),
            "b2": _w((lambda *s: torch.randn(*s, dtype=torch.bfloat16) * 0.05)(D)),
        }
    _B_in = _B_setup()

    return {
        "A_x": _A_in["x"],
        "A_Lambda_re": _A_in["Lambda_re"],
        "A_Lambda_im": _A_in["Lambda_im"],
        "A_B_re": _A_in["B_re"],
        "A_B_im": _A_in["B_im"],
        "A_C_re": _A_in["C_re"],
        "A_C_im": _A_in["C_im"],
        "A_log_dt": _A_in["log_dt"],
        "A_Dskip": _A_in["Dskip"],
        "B_x": _B_in["x"],
        "B_w1": _B_in["w1"],
        "B_b1": _B_in["b1"],
        "B_w2": _B_in["w2"],
        "B_b2": _B_in["b2"],
        "gate_w": _w((lambda *s: torch.randn(*s, dtype=torch.bfloat16) * 0.05)(640) * 16.0),
    }

def reference(A_x, A_Lambda_re, A_Lambda_im, A_B_re, A_B_im, A_C_re, A_C_im, A_log_dt, A_Dskip, B_x, B_w1, B_b1, B_w2, B_b2, gate_w):
    def _A_ref(x, Lambda_re, Lambda_im, B_re, B_im, C_re, C_im, log_dt, Dskip):
        Bsz, L, H = x.shape
        Lam = Lambda_re + 1j * Lambda_im
        Bmat = B_re + 1j * B_im
        Cmat = C_re + 1j * C_im
        dt = torch.exp(log_dt)
        Lam_bar = torch.exp(dt * Lam)
        B_bar = ((Lam_bar - 1.0) / Lam)[:, None] * Bmat
        Bu = torch.einsum("bld,pd->blp", x + 0j, B_bar)
        h = torch.zeros_like(Bu[:, 0, :])
        hs = []
        for t in range(L):
            h = Lam_bar[None, :] * h + Bu[:, t, :]
            hs.append(h)
        hseq = torch.stack(hs, 1)
        y = 2.0 * torch.einsum("blp,dp->bld", hseq, Cmat).real + x * Dskip[None, None, :]
        return y

    def _B_ref(x, w1, b1, w2, b2):
        h = torch.einsum("bsd,df->bsf", x, w1) + b1
        zero = torch.zeros_like(h)
        r = torch.where(h > zero, h, zero)
        h = r * r
        out = torch.einsum("bsf,fd->bsd", h, w2) + b2
        return out

    x = A_x
    g = _sigmoid((x * gate_w).sum(-1, keepdims=True))
    a = _A_ref(x, A_Lambda_re, A_Lambda_im, A_B_re, A_B_im, A_C_re, A_C_im, A_log_dt, A_Dskip)
    b = _B_ref(x, B_w1, B_b1, B_w2, B_b2)
    return g * a + (1 - g) * b
```

```python
import re

REG_RE = re.compile(r'^(-?\|?)([vsa])(\d+)\|?$')
RNG_RE = re.compile(r'^(-?\|?)([vsa])\[(\d+):(\d+)\]\|?$')

def regs_of(tok):
    tok = tok.strip()
    m = RNG_RE.match(tok)
    if m:
        return {(m.group(2), i) for i in range(int(m.group(3)), int(m.group(4)) + 1)}
    m = REG_RE.match(tok)
    if m:
        return {(m.group(2), int(m.group(3)))}
    if tok == 'vcc': return {('s', 106), ('s', 107)}
    if tok == 'vcc_lo': return {('s', 106)}
    if tok == 'vcc_hi': return {('s', 107)}
    if tok == 'exec': return {('s', 126), ('s', 127)}
    if tok == 'm0': return {('s', 124)}
    return set()

TRANS = ('v_exp_f32', 'v_log_f32', 'v_rcp_f32', 'v_rsq_f32', 'v_sqrt_f32', 'v_sin_f32', 'v_cos_f32', 'v_rcp_iflag_f32')

class Ins:
    __slots__ = ('text', 'mn', 'kind', 'w', 'r', 'states', 'dpp', 'mfma_c', 'mfma_ab', 'store_data', 'lds_dma', 'passes')
    def __init__(self, text):
        self.text = text
        t = text.split(';')[0].strip()
        parts = t.split(None, 1)
        mn = parts[0]
        self.mn = mn
        rest = parts[1] if len(parts) > 1 else ''
        ops = []
        cur = ''; depth = 0
        for ch in rest:
            if ch == '[': depth += 1
            if ch == ']': depth -= 1
            if ch == ',' and depth == 0:
                ops.append(cur.strip()); cur = ''
            else:
                cur += ch
        if cur.strip(): ops.append(cur.strip())
        mods = ''
        if ops:
            sp = ops[-1].split(None, 1)
            ops[-1] = sp[0]
            if len(sp) > 1: mods = sp[1]
        self.w = set(); self.r = set()
        self.states = 1
        self.dpp = ('row_' in mods) or ('quad_perm' in mods) or mn.endswith('_dpp')
        self.mfma_c = set(); self.mfma_ab = set(); self.store_data = set(); self.lds_dma = False
        self.passes = 0
        R = regs_of
        if mn == 's_nop':
            self.kind = 'nop'; self.states = int(ops[0], 0) + 1
        elif mn.startswith('v_mfma'):
            self.kind = 'mfma'
            self.w = R(ops[0]); self.mfma_ab = R(ops[1]) | R(ops[2]); self.mfma_c = R(ops[3])
            self.r = self.mfma_ab | self.mfma_c
            self.passes = 8 if '32x32x16' in mn else 4
        elif mn.startswith('v_'):
            self.kind = 'valu'
            if mn.startswith('v_cmp'):
                self.w = R(ops[0])
                for o in ops[1:]: self.r |= R(o)
            elif mn.startswith(('v_add_co', 'v_sub_co', 'v_addc_co', 'v_subb_co', 'v_subrev_co')):
                self.w = R(ops[0]) | R(ops[1])
                for o in ops[2:]: self.r |= R(o)
            elif mn.startswith('v_permlane') and 'swap' in mn:
                self.w = R(ops[0]) | R(ops[1]); self.r = set(self.w)
            else:
                self.w = R(ops[0])
                for o in ops[1:]: self.r |= R(o)
                if mn.startswith(('v_fmac', 'v_dot2c', 'v_pk_fmac', 'v_writelane')) or self.dpp:
                    self.r |= R(ops[0])
        elif mn.startswith(('buffer_', 'global_')):
            self.kind = 'vmem'
            if mn.startswith(('buffer_inv', 'buffer_wbl2')):
                pass
            elif 'lds' in mods.split() :
                self.lds_dma = True
                for o in ops: self.r |= R(o)
                self.r |= R('m0')
            elif '_load' in mn:
                self.w = R(ops[0])
                for o in ops[1:]: self.r |= R(o)
            elif '_store' in mn:
                if mn.startswith('buffer_'):
                    data = R(ops[0])
                else:
                    data = R(ops[1])
                for o in ops: self.r |= R(o)
                if 'x4' in mn or 'x3' in mn: self.store_data = data
            else:
                for o in ops: self.r |= R(o)
                if 'sc0' in mods: self.w = R(ops[0])
        elif mn.startswith('ds_'):
            self.kind = 'ds'
            if mn.startswith(('ds_read', 'ds_bpermute', 'ds_permute', 'ds_swizzle')) or '_rtn' in mn:
                self.w = R(ops[0])
                for o in ops[1:]: self.r |= R(o)
            else:
                for o in ops: self.r |= R(o)
        elif mn.startswith('s_'):
            self.kind = 'salu'
            if mn.startswith(('s_cmp', 's_bitcmp', 's_cbranch', 's_branch', 's_waitcnt', 's_barrier', 's_sleep', 's_setprio', 's_endpgm')):
                for o in ops: self.r |= R(o)
            else:
                if ops: self.w = R(ops[0])
                for o in ops[1:]: self.r |= R(o)
                if 'saveexec' in mn: self.w |= R('exec'); self.r |= R('exec')
        else:
            raise ValueError("unknown instr: " + text)

def vg(s): return {x for x in s if x[0] in 'va'}
def sg(s): return {x for x in s if x[0] == 's'}

def need(p, c):
    n = 0
    if p.kind == 'valu':
        pv = vg(p.w); ps = sg(p.w)
        if c.kind == 'mfma' and pv & c.r: n = max(n, 2)
        if c.kind == 'valu':
            if ps & c.r:
                n = max(n, 4 if c.mn.startswith(('v_readlane', 'v_writelane')) else 2)
            if pv & c.r and c.mn.startswith(('v_readlane', 'v_readfirstlane')): n = max(n, 1)
            if pv & c.r and p.mn.replace('_e32', '').replace('_e64', '') in TRANS and c.mn.replace('_e32', '').replace('_e64','') not in TRANS: n = max(n, 1)
            if pv & c.r and (c.dpp or c.mn.startswith('v_permlane')): n = max(n, 2)
            if p.mn.startswith('v_pk_') and (pv & vg(c.w)): n = max(n, 5)
        if c.kind == 'vmem' and ps & c.r: n = max(n, 5)
        if c.kind == 'salu' and ps & c.r: n = max(n, 1)
    if p.kind == 'mfma':
        D = p.w
        big = {4: 8, 8: 12}[p.passes]
        if c.kind == 'mfma':
            if D & c.mfma_ab: n = max(n, big)
            if D & c.mfma_c and D != c.mfma_c: n = max(n, big - 2)
            if D & c.w and D != c.mfma_c: n = max(n, big - 2)
        elif c.kind in ('valu', 'vmem', 'ds'):
            if D & (c.r | c.w): n = max(n, big)
        if c.kind == 'valu' and p.mfma_c & c.w: n = max(n, {4: 3, 8: 7}[p.passes])
    if p.kind == 'salu':
        if ('s', 124) in p.w and c.kind == 'vmem' and c.lds_dma: n = max(n, 1)
    if p.kind == 'vmem' and p.store_data:
        if p.store_data & c.w: n = max(n, 2 if c.kind == 'valu' else 1)
    return n

class Emitter:
    def __init__(self):
        self.out = []
        self.hist = []
        self.npad = 0
    def raw(self, s):
        self.out.append(s)
    def label(self, name):
        self.out.append(name + ':')
    def __call__(self, s):
        for line in s.split('\n'):
            t = line.split(';')[0].strip()
            if not t:
                if line.strip(): self.out.append('  ' + line.strip())
                continue
            if t.endswith(':'):
                self.label(t[:-1]); continue
            if t.startswith('.'):
                self.out.append(line); continue
            ins = Ins(t)
            pad = 0; dist = 0
            for p in reversed(self.hist):
                nd = need(p, ins)
                if nd > dist: pad = max(pad, nd - dist)
                dist += p.states
                if dist >= 12: break
            if pad > 0:
                self.npad += 1
                k = pad
                while k > 0:
                    m = min(k, 16)
                    nop = Ins(f's_nop {m-1}')
                    self.out.append(f'  s_nop {m-1}')
                    self.hist.append(nop); k -= m
            self.out.append('  ' + line.strip())
            self.hist.append(ins)
            if len(self.hist) > 40: self.hist = self.hist[-24:]
    def text(self):
        return '\n'.join(self.out) + '\n'
```

```python
import sys
from emit import Emitter

NAME = "gated_mix__ssm_conv_s5__dense_activation_squared_relu__prompt_kernel"

ACT_OFF   = 0
WF_OFF    = 0xC00000
G_OFF     = 0x1000000
AG_OFF    = 0x1010000
WFLAG_OFF = 0x1040000
TFLAG_OFF = 0x1050000
STAMP_OFF = 0x1100000
SLOT = 40960
LDS_PREP = 122880
LDS_TAB  = 143360
LDS_LX   = LDS_TAB + 8448
LDS_FLAG = LDS_LX + 768
LDS_F    = 0
LDS_Y    = 81920
LDS_SIZE = 163840

SX, SWA, SWB, SWS, STA, STB, SOUT = 4, 8, 12, 16, 20, 24, 28
P_AX, P_LRE, P_LIM, P_BRE, P_BIM, P_CRE, P_CIM, P_LDT, P_DSK, P_BX, P_W1, P_B1, P_W2, P_B2, P_GW, P_OUT, P_DBG, P_WS = [36 + 2 * i for i in range(18)]
sWAVE, sRB, sCOL, sJ, sRB2, sCB, sNONCE, sISU = 72, 73, 74, 75, 76, 77, 78, 79

class Opt:
    phase2 = True
    stamps = False
    spin_limit = 200000
opt = Opt()

def srd(e, s, ptr, size):
    e(f"s_mov_b32 s{s}, s{ptr}\ns_mov_b32 s{s+1}, s{ptr+1}\ns_mov_b32 s{s+2}, {size}\ns_mov_b32 s{s+3}, 0x20000")

def R(b, n=4):
    return f"v[{b}:{b+n-1}]"

_stamp_id = [0]
def stamp(e, idx, tmpv=14):
    if not opt.stamps: return
    e(f"""s_memrealtime s[100:101]
s_lshl_b32 s98, s2, 3
s_add_u32 s98, s98, s{sWAVE}
s_lshl_b32 s98, s98, 6
s_add_u32 s98, s98, {STAMP_OFF + 4*idx}
s_waitcnt lgkmcnt(0)
v_mov_b32 v{tmpv}, s100
v_mov_b32 v{tmpv+1}, 0
s_mov_b64 s[96:97], exec
s_mov_b64 exec, 1
buffer_store_dword v{tmpv}, v{tmpv+1}, s[{SWS}:{SWS+3}], s98 offen
s_mov_b64 exec, s[96:97]""")

def interleave(e, A, B, lead=1):
    bi = 0
    for i, a in enumerate(A):
        e(a)
        if i >= lead - 1 and bi < len(B):
            e(B[bi]); bi += 1
    while bi < len(B):
        e(B[bi]); bi += 1

def spin_nonce(e, tag, vtmp):
    srd(e, STA, P_DBG, 256)
    e(f"""v_mov_b32 v{vtmp+1}, 0
s_mov_b32 s80, 0
L_nonce_{tag}:
buffer_load_dword v{vtmp}, v{vtmp+1}, s[{STA}:{STA+3}], 0 offen sc1
s_add_u32 s80, s80, 1
s_waitcnt vmcnt(0)
v_readfirstlane_b32 s{sNONCE}, v{vtmp}
s_cmp_ge_u32 s80, {opt.spin_limit}
s_cbranch_scc1 L_nonce_done_{tag}
s_cmp_eq_u32 s{sNONCE}, 0
s_cbranch_scc0 L_nonce_done_{tag}
s_sleep 1
s_branch L_nonce_{tag}
L_nonce_done_{tag}:""")

def poll_flags(e, tag, vaddr, vtmp, soff_sgpr, nlanes_mask_lo, mask_hi=0):
    e(f"""s_mov_b32 s80, 0
s_mov_b32 s82, {nlanes_mask_lo}
s_mov_b32 s83, {mask_hi}
L_poll_{tag}:
buffer_load_dword v{vtmp}, v{vaddr}, s[{SWS}:{SWS+3}], s{soff_sgpr} offen sc1
s_add_u32 s80, s80, 1
s_waitcnt vmcnt(0)
v_cmp_ne_u32 vcc, s{sNONCE}, v{vtmp}
s_cmp_ge_u32 s80, {opt.spin_limit}
s_cbranch_scc1 L_poll_done_{tag}
s_and_b64 vcc, vcc, s[82:83]
s_cbranch_scc0 L_poll_done_{tag}
s_sleep 1
s_branch L_poll_{tag}
L_poll_done_{tag}:""")

def gen_entry(e):
    e(f"""s_cmp_ge_u32 s2, 256
s_cbranch_scc1 L_END
s_load_dwordx16 s[36:51], s[0:1], 0
s_load_dwordx16 s[52:67], s[0:1], 64
s_load_dwordx4 s[68:71], s[0:1], 128
v_lshrrev_b32 v1, 6, v0
v_and_b32 v0, 63, v0
v_readfirstlane_b32 s{sWAVE}, v1
s_and_b32 s80, s2, 7
s_lshr_b32 s81, s2, 3
s_and_b32 s82, s80, 1
s_lshl_b32 s82, s82, 3
s_and_b32 s83, s81, 7
s_add_u32 s{sRB}, s82, s83
s_lshr_b32 s82, s80, 1
s_lshl_b32 s82, s82, 2
s_lshr_b32 s83, s81, 3
s_add_u32 s{sCOL}, s82, s83
s_lshl_b32 s82, s80, 2
s_and_b32 s83, s81, 3
s_add_u32 s{sRB2}, s82, s83
s_lshr_b32 s{sCB}, s81, 2
s_sub_u32 s82, s{sCOL}, 9
s_cmp_ge_u32 s{sCOL}, 9
s_cselect_b32 s{sISU}, 1, 0
s_cselect_b32 s{sJ}, s82, s{sCOL}
s_waitcnt lgkmcnt(0)""")
    srd(e, SWS, P_WS, 0x10000000)
    srd(e, SX, P_AX, 2621440)
    e(f"""s_cmp_eq_u32 s2, 0
s_cbranch_scc0 L_no_nonce
s_cmp_eq_u32 s{sWAVE}, 4
s_cbranch_scc0 L_no_nonce
s_memrealtime s[80:81]""")
    srd(e, STA, P_DBG, 256)
    e(f"""s_waitcnt lgkmcnt(0)
s_or_b32 s80, s80, 1
v_mov_b32 v2, s80
v_mov_b32 v3, 0
s_mov_b64 exec, 1
buffer_store_dword v2, v3, s[{STA}:{STA+3}], 0 offen sc0 sc1
s_mov_b64 exec, -1
L_no_nonce:
s_cmp_ge_u32 s{sWAVE}, 4
s_cbranch_scc1 L_LOADER""")

def cmul(e, d, a, b, t):
    e(f"""v_mul_f32 v{d}, v{a}, v{b}
v_mul_f32 v{d+1}, v{a}, v{b+1}
v_fma_f32 v{d}, -v{a+1}, v{b+1}, v{d}
v_fma_f32 v{d+1}, v{a+1}, v{b}, v{d+1}""")

def csq(e, d, a):
    cmul(e, d, a, a, None)

def cfma(e, d, a, b, c):
    e(f"""v_fma_f32 v{d}, v{a}, v{b}, v{c}
v_fma_f32 v{d+1}, v{a}, v{b+1}, v{c+1}
v_fma_f32 v{d}, -v{a+1}, v{b+1}, v{d}
v_fma_f32 v{d+1}, v{a+1}, v{b}, v{d+1}""")

def gen_loader(e):
    e("L_LOADER:")
    e(f"s_sub_u32 s84, s{sWAVE}, 4")
    vXo = 2; vWo = 4
    sXo = 86
    sWo = 90
    sLX, sLW, sWinc = 32, 33, 34
    e(f"""v_lshrrev_b32 v10, 3, v0
v_and_b32 v11, 7, v0
v_xor_b32 v11, v11, v10
v_lshlrev_b32 v11, 4, v11
s_lshl_b32 s{sLX}, s84, 12
s_mul_i32 s{sLW}, s84, 6144
s_add_u32 s{sLW}, s{sLW}, 16384
s_lshl_b32 s85, s{sRB}, 7
s_cmp_eq_u32 s{sISU}, 1
s_cbranch_scc1 L_LD_U""")
    e(f"""v_mul_u32_u24 v{vXo}, 1280, v10
v_add_u32 v{vXo}, v{vXo}, v11
s_lshl_b32 s80, s84, 5
s_add_u32 s80, s80, s85""")
    for m in range(4):
        e(f"s_add_u32 s81, s80, {16*(m&1) + 8*(m>>1)}\ns_mul_i32 s{sXo+m}, s81, 1280")
    for m in range(6):
        e(f"""v_add_u32 v12, {64*m}, v0
v_mul_u32_u24 v13, 2731, v12
v_lshrrev_b32 v13, 16, v13
v_mul_u32_u24 v14, 24, v13
v_sub_u32 v14, v12, v14
v_bfe_u32 v15, v13, 1, 1
v_lshlrev_b32 v15, 1, v15
v_bfe_u32 v16, v13, 3, 1
v_lshlrev_b32 v16, 2, v16
v_or_b32 v15, v15, v16
v_xor_b32 v14, v14, v15
v_lshlrev_b32 v14, 4, v14
v_mul_u32_u24 v13, 3456, v13
v_add_u32 v{vWo+m}, v13, v14""")
    e(f"""s_mul_i32 s80, s84, {16*3456}
s_mul_i32 s81, s{sJ}, 384
s_add_u32 s80, s80, s81""")
    for m in range(6):
        e(f"s_mov_b32 s{sWo+m}, s80")
    e(f"s_mov_b32 s{sWinc}, {64*3456}")
    srd(e, SWA, P_W1, 2211840)
    srd(e, SWB, P_W1, 2211840)
    e("s_branch L_LD_GO")
    e("L_LD_U:")
    e(f"""v_lshrrev_b32 v12, 5, v0
v_lshlrev_b32 v12, 4, v12
v_bfe_u32 v13, v0, 3, 1
v_lshlrev_b32 v13, 3, v13
v_add_u32 v12, v12, v13
v_bfe_u32 v13, v0, 4, 1
v_add_u32 v12, v12, v13
v_mul_u32_u24 v{vXo}, 1280, v12
v_add_u32 v{vXo}, v{vXo}, v11
v_mul_u32_u24 v12, 1280, v10
v_add_u32 v12, v12, v11""")
    for m in range(6):
        e(f"v_mov_b32 v{vWo+m}, v12")
    e(f"""s_lshr_b32 s80, s84, 1
s_lshl_b32 s80, s80, 6
s_and_b32 s81, s84, 1
s_lshl_b32 s82, s81, 2
s_add_u32 s80, s80, s82
s_add_u32 s80, s80, s85""")
    for m in range(4):
        e(f"s_add_u32 s82, s80, {32*(m&1) + 2*(m>>1)}\ns_mul_i32 s{sXo+m}, s82, 1280")
    e(f"""s_mul_i32 s80, s{sJ}, 96
s_lshr_b32 s82, s84, 1
s_mul_i32 s82, s82, 48
s_add_u32 s80, s80, s82
s_mul_i32 s83, s81, 3""")
    for m in range(6):
        e(f"""s_add_u32 s82, s83, {m>>1}
s_lshr_b32 s82, s82, 1
s_lshl_b32 s82, s82, 4
s_add_u32 s82, s82, s80
s_add_u32 s82, s82, {8*(m&1)}
s_min_u32 s82, s82, 632
s_mul_i32 s{sWo+m}, s82, 1280""")
    e(f"s_mov_b32 s{sWinc}, 128")
    e(f"""s_cmp_eq_u32 s81, 0
s_cselect_b32 s{SWA}, s{P_BRE}, s{P_BIM}
s_cselect_b32 s{SWA+1}, s{P_BRE+1}, s{P_BIM+1}
s_cselect_b32 s{SWB}, s{P_BIM}, s{P_BRE}
s_cselect_b32 s{SWB+1}, s{P_BIM+1}, s{P_BRE+1}
s_mov_b32 s{SWA+2}, 819200
s_mov_b32 s{SWA+3}, 0x20000
s_mov_b32 s{SWB+2}, 819200
s_mov_b32 s{SWB+3}, 0x20000""")
    e("L_LD_GO:")
    def issue(s):
        slot = (s % 3) * SLOT
        for m in range(4):
            e(f"s_add_u32 m0, s{sLX}, {slot + m*1024}")
            e(f"buffer_load_dwordx4 v{vXo}, s[{SX}:{SX+3}], s{sXo+m} offen lds")
            e(f"s_add_u32 s{sXo+m}, s{sXo+m}, 128")
        for m in range(6):
            S = SWB if (m >> 1) == 1 else SWA
            e(f"s_add_u32 m0, s{sLW}, {slot + m*1024}")
            e(f"buffer_load_dwordx4 v{vWo+m}, s[{S}:{S+3}], s{sWo+m} offen lds")
            e(f"s_add_u32 s{sWo+m}, s{sWo+m}, s{sWinc}")
    issue(0); issue(1); issue(2)
    e(f"""s_mul_i32 s80, s{sJ}, 96
s_lshl_b32 s81, s84, 5
s_add_u32 s80, s80, s81
v_and_b32 v12, 31, v0
v_add_u32 v12, s80, v12
v_min_u32 v12, 639, v12
v_lshlrev_b32 v12, 1, v12""")
    srd(e, STA, P_LRE, 1280)
    e(f"buffer_load_ushort v20, v12, s[{STA}:{STA+3}], 0 offen")
    srd(e, STB, P_LIM, 1280)
    e(f"buffer_load_ushort v21, v12, s[{STB}:{STB+3}], 0 offen")
    srd(e, STA, P_LDT, 1280)
    e(f"buffer_load_ushort v22, v12, s[{STA}:{STA+3}], 0 offen")
    P = 3
    for s in range(10):
        if s == 0: n = 20 + P
        elif s in (1, 2): n = 10 + P
        elif s <= 8: n = 10
        else: n = 0
        e(f"s_waitcnt vmcnt({n})")
        e("s_barrier")
        if 1 <= s <= 7:
            issue(s + 2)
        if s == 3:
            gen_lambda_table(e)
    stamp(e, 1, 14)

def gen_lambda_table(e):
    e(f"""s_cmp_eq_u32 s{sISU}, 1
s_cbranch_scc0 L_TAB_done
s_cmp_ge_u32 s84, 3
s_cbranch_scc1 L_TAB_done
v_lshlrev_b32 v20, 16, v20
v_lshlrev_b32 v21, 16, v21
v_lshlrev_b32 v22, 16, v22
v_mul_f32 v23, 0x3fb8aa3b, v22
v_exp_f32 v23, v23
v_cvt_pk_bf16_f32 v23, v23, v23
v_and_b32 v23, 0xffff0000, v23
v_mul_f32 v24, v23, v20
v_mul_f32 v25, v23, v21
v_mul_f32 v24, 0x3fb8aa3b, v24
v_exp_f32 v24, v24
v_mul_f32 v25, 0.15915494, v25
v_fract_f32 v25, v25
v_sin_f32 v26, v25
v_cos_f32 v27, v25
v_mul_f32 v31, v24, v26
v_mul_f32 v30, v24, v27""")
    L1, L2, L4, L8, L16, L32, L48, L64, L128, L256, L512, L1024, C2 = 30, 32, 34, 36, 38, 40, 42, 44, 46, 48, 50, 52, 54
    csq(e, L2, L1); csq(e, L4, L2); csq(e, L8, L4); csq(e, L16, L8); csq(e, L32, L16)
    cmul(e, L48, L32, L16, None)
    csq(e, L64, L32); csq(e, L128, L64); csq(e, L256, L128); csq(e, L512, L256); csq(e, L1024, L512)
    e(f"""v_add_f32 v56, -1.0, v30
v_mul_f32 v57, v20, v20
v_fma_f32 v57, v21, v21, v57
v_rcp_f32 v57, v57
v_mul_f32 v58, v56, v20
v_fma_f32 v58, v31, v21, v58
v_mul_f32 v59, v31, v20
v_fma_f32 v59, -v56, v21, v59
v_add_f32 v57, v57, v57
v_mul_f32 v{C2}, v58, v57
v_mul_f32 v{C2+1}, v59, v57
v_mov_b32 v60, 1.0
v_mov_b32 v61, 0
v_and_b32 v62, 31, v0
s_lshl_b32 s80, s84, 5
v_add_u32 v62, s80, v62
v_lshlrev_b32 v62, 3, v62
v_add_u32 v62, {LDS_TAB}, v62""")
    ents = [L1, L8, 60, L16, L32, L48, L64, L128, L512, L1024, C2]
    for i, r in enumerate(ents):
        e(f"ds_write_b64 v62, v[{r}:{r+1}] offset:{i*768}")
    e("s_waitcnt lgkmcnt(0)")
    e("L_TAB_done:")

ACC = 64
SETA, SETB = 160, 200
def acc_ffn(ft, tt): return ACC + (ft * 4 + tt) * 4
def acc_u(i, tp): return ACC + (i * 6 + tp) * 4

def reads(kind, st, ks):
    L = []
    vX = 2 + ks
    if kind == 'F':
        xs = [f"ds_read_b128 {R(st + 4*t)}, v{vX} offset:{t*2048}" for t in range(4)]
        ws = []
        for ft in range(6):
            for h in range(2):
                ws.append(f"ds_read_b64_tr_b16 v[{st+16+4*ft+2*h}:{st+16+4*ft+2*h+1}], v{4+ft} offset:{ks*12288 + h*1536}")
        L = ws[:2] + xs + ws[2:]
    else:
        vW = 4 + ks
        xs = [f"ds_read_b128 {R(st + 4*t)}, v{vX} offset:{t*2048}" for t in range(4)]
        ws = [f"ds_read_b128 {R(st + 16 + 4*t)}, v{vW} offset:{t*2048}" for t in range(6)]
        L = [ws[0]] + xs + ws[1:]
    return L

def mfmas(kind, st, first=False):
    L = []
    for n in range(6):
        for t in range(4):
            if kind == 'F':
                d = acc_ffn(n, t)
                c = R(16 + 20 + 4*n) if first else R(d)
                L.append(f"v_mfma_f32_16x16x32_bf16 {R(d)}, {R(st+16+4*n)}, {R(st+4*t)}, {c}")
            else:
                d = acc_u(t, n)
                c = "0" if first else R(d)
                L.append(f"v_mfma_f32_16x16x32_bf16 {R(d)}, {R(st+4*t)}, {R(st+16+4*n)}, {c}")
    return L

def gen_prep_issue(e):
    e(f"""s_lshl_b32 s84, s2, 2
s_add_u32 s84, s84, s{sWAVE}
s_and_b32 s85, s84, 7
s_lshr_b32 s84, s84, 3
s_cmp_ge_u32 s84, 94
s_cbranch_scc1 L_PREP_issued
s_cmp_ge_u32 s84, 54
s_cbranch_scc1 L_PREP_C""")
    srd(e, STA, P_W2, 2211840)
    e(f"""s_mul_i32 s80, s84, {32*1280}
s_mul_i32 s81, s85, 160
s_add_u32 s80, s80, s81
s_mul_i32 s81, s{sWAVE}, 5120
s_add_u32 s81, s81, {LDS_PREP}""")
    for n in range(5):
        e(f"""v_add_u32 v10, {64*n}, v0
v_mul_u32_u24 v11, 205, v10
v_lshrrev_b32 v11, 11, v11
v_mul_u32_u24 v12, 10, v11
v_sub_u32 v12, v10, v12
v_mul_u32_u24 v11, 1280, v11
v_lshlrev_b32 v12, 4, v12
v_add_u32 v11, v11, v12
s_add_u32 m0, s81, {n*1024}
buffer_load_dwordx4 v11, s[{STA}:{STA+3}], s80 offen lds""")
    e("s_branch L_PREP_issued")
    e("L_PREP_C:")
    srd(e, STA, P_CRE, 819200)
    srd(e, STB, P_CIM, 819200)
    e(f"""v_and_b32 v10, 15, v0
v_mul_u32_u24 v10, 1280, v10
v_lshrrev_b32 v11, 4, v0
v_lshlrev_b32 v11, 3, v11
v_add_u32 v10, v10, v11
s_sub_u32 s80, s84, 54
s_lshl_b32 s80, s80, 5
s_mul_i32 s81, s85, {80*1280}
s_add_u32 s80, s80, s81""")
    for dt in range(5):
        e(f"buffer_load_dwordx2 v[{16+4*dt}:{17+4*dt}], v10, s[{STA}:{STA+3}], s80 offen")
        e(f"buffer_load_dwordx2 v[{18+4*dt}:{19+4*dt}], v10, s[{STB}:{STB+3}], s80 offen")
        if dt < 4: e(f"s_add_u32 s80, s80, {16*1280}")
    e("L_PREP_issued:")

def gen_prep_finish(e, tag):
    e(f"""s_cmp_ge_u32 s84, 94
s_cbranch_scc1 L_PF_done_{tag}
s_waitcnt vmcnt(0)
s_cmp_ge_u32 s84, 54
s_cbranch_scc1 L_PF_store_{tag}
v_lshrrev_b32 v10, 4, v0
v_lshlrev_b32 v10, 2, v10
v_bfe_u32 v11, v0, 2, 2
v_add_u32 v10, v10, v11
v_mul_u32_u24 v10, 160, v10
v_and_b32 v11, 3, v0
v_lshlrev_b32 v11, 3, v11
v_add_u32 v10, v10, v11
s_mul_i32 s81, s{sWAVE}, 5120
s_add_u32 s81, s81, {LDS_PREP}
v_add_u32 v10, s81, v10""")
    for dt in range(5):
        for h in range(2):
            e(f"ds_read_b64_tr_b16 v[{16+4*dt+2*h}:{17+4*dt+2*h}], v10 offset:{dt*32 + h*16*160}")
    e("s_waitcnt lgkmcnt(0)")
    e(f"L_PF_store_{tag}:")
    e(f"""s_mul_i32 s80, s85, 94
s_add_u32 s80, s80, s84
s_mul_i32 s80, s80, 5120
s_add_u32 s80, s80, {WF_OFF}
v_lshlrev_b32 v10, 4, v0""")
    for dt in range(5):
        if dt < 4:
            e(f"buffer_store_dwordx4 {R(16+4*dt)}, v10, s[{SWS}:{SWS+3}], s80 offen offset:{dt*1024} sc1")
        else:
            e(f"s_add_u32 s80, s80, 4096")
            e(f"buffer_store_dwordx4 {R(16+4*dt)}, v10, s[{SWS}:{SWS+3}], s80 offen sc1")
    e(f"L_PF_done_{tag}:")

def gen_prep_flag(e, tag):
    e(f"""s_waitcnt vmcnt(0)""")
    spin_nonce(e, tag, 10)
    e(f"""s_cmp_ge_u32 s84, 94
s_cbranch_scc1 L_PFL_done_{tag}
s_lshl_b32 s80, s85, 9
s_lshl_b32 s81, s84, 2
s_add_u32 s80, s80, s81
s_add_u32 s80, s80, {WFLAG_OFF}
v_mov_b32 v10, s{sNONCE}
v_mov_b32 v11, 0
s_mov_b64 exec, 1
buffer_store_dword v10, v11, s[{SWS}:{SWS+3}], s80 offen sc0 sc1
s_mov_b64 exec, -1
L_PFL_done_{tag}:""")

def gen_main_loop(e, kind):
    tag = kind
    naddr = [2, 3] + ([4, 5, 6, 7, 8, 9] if kind == 'F' else [4, 5])
    sIT, sDELTA, sSLOT = 86, 87, 88
    e(f"s_mov_b32 s{sIT}, 1\ns_mov_b32 s{sSLOT}, 0\ns_mov_b32 s89, {SLOT}\ns_mov_b32 s90, {-2*SLOT & 0xffffffff}")
    e("s_waitcnt lgkmcnt(0)\ns_barrier")
    for r in reads(kind, SETA, 0): e(r)
    e("s_waitcnt lgkmcnt(0)")
    interleave(e, mfmas(kind, SETA, first=True), reads(kind, SETB, 1))
    def adv():
        e(f"""s_add_u32 s{sSLOT}, s{sSLOT}, 1
s_cmp_eq_u32 s{sSLOT}, 3
s_cselect_b32 s{sDELTA}, s90, s89
s_cselect_b32 s{sSLOT}, 0, s{sSLOT}""")
        for v in naddr:
            e(f"v_add_u32 v{v}, s{sDELTA}, v{v}")
    adv()
    e("s_waitcnt lgkmcnt(0)")
    e(f"L_ML_{tag}:")
    e("s_barrier")
    interleave(e, mfmas(kind, SETB), reads(kind, SETA, 0))
    e("s_waitcnt lgkmcnt(0)")
    interleave(e, mfmas(kind, SETA), reads(kind, SETB, 1))
    e(f"""s_cmp_eq_u32 s{sIT}, 3
s_cbranch_scc0 L_ML_h1_{tag}""")
    gen_prep_finish(e, tag)
    e(f"""L_ML_h1_{tag}:
s_cmp_eq_u32 s{sIT}, 7
s_cbranch_scc0 L_ML_h2_{tag}""")
    gen_prep_flag(e, tag)
    e(f"L_ML_h2_{tag}:")
    adv()
    e(f"""s_waitcnt lgkmcnt(0)
s_add_u32 s{sIT}, s{sIT}, 1
s_cmp_lt_u32 s{sIT}, 10
s_cbranch_scc1 L_ML_{tag}""")
    for m in mfmas(kind, SETB): e(m)

def tile_flag(e, tag):
    e(f"""s_waitcnt vmcnt(0)
s_lshr_b32 s80, s{sWAVE}, 1
s_lshl_b32 s81, s{sRB}, 1
s_add_u32 s80, s80, s81
s_lshl_b32 s80, s80, 9
s_lshl_b32 s81, s{sCOL}, 1
s_and_b32 s82, s{sWAVE}, 1
s_add_u32 s81, s81, s82
s_and_b32 s82, s81, 3
s_lshl_b32 s82, s82, 7
s_lshr_b32 s81, s81, 2
s_lshl_b32 s81, s81, 2
s_add_u32 s80, s80, s81
s_add_u32 s80, s80, s82
s_add_u32 s80, s80, {TFLAG_OFF}
v_mov_b32 v10, s{sNONCE}
v_mov_b32 v11, 0
s_mov_b64 exec, 1
buffer_store_dword v10, v11, s[{SWS}:{SWS+3}], s80 offen sc0 sc1
s_mov_b64 exec, -1""")

def x_addr_setup(e):
    e(f"""s_lshr_b32 s80, s{sWAVE}, 1
s_lshl_b32 s80, s80, 13
v_and_b32 v10, 15, v0
v_lshlrev_b32 v10, 7, v10
v_lshrrev_b32 v11, 4, v0
v_and_b32 v12, 7, v0
v_xor_b32 v11, v11, v12
v_lshlrev_b32 v11, 4, v11
v_add_u32 v10, v10, v11
v_add_u32 v2, s80, v10
v_xor_b32 v3, 64, v2""")

def gen_consumer_ffn(e):
    e("L_CONS_F:")
    srd(e, STB, P_B1, 3456)
    e(f"""s_mul_i32 s80, s{sJ}, 384
s_and_b32 s81, s{sWAVE}, 1
s_mul_i32 s81, s81, 192
s_add_u32 s80, s80, s81
v_lshrrev_b32 v10, 4, v0
v_lshlrev_b32 v10, 3, v10""")
    for ft in range(6):
        e(f"buffer_load_dwordx2 v[{240+2*ft}:{241+2*ft}], v10, s[{STB}:{STB+3}], s80 offen offset:{32*ft}")
    gen_prep_issue_call(e)
    x_addr_setup(e)
    e(f"""v_lshrrev_b32 v10, 4, v0
v_bfe_u32 v11, v0, 2, 2
v_lshlrev_b32 v12, 3, v10
v_add_u32 v12, v12, v11
v_mul_u32_u24 v12, 384, v12
v_bfe_u32 v13, v0, 3, 1
v_lshlrev_b32 v13, 1, v13
v_and_b32 v14, 1, v10
v_lshlrev_b32 v14, 2, v14
v_or_b32 v13, v13, v14
v_bfe_u32 v14, v0, 1, 1
s_and_b32 s81, s{sWAVE}, 1
s_mul_i32 s81, s81, 12
v_add_u32 v14, s81, v14
v_and_b32 v15, 1, v0
v_lshlrev_b32 v15, 3, v15
v_add_u32 v12, v12, v15
v_add_u32 v12, 16384, v12""")
    for ft in range(6):
        e(f"""v_add_u32 v10, {2*ft}, v14
v_xor_b32 v10, v10, v13
v_lshlrev_b32 v10, 4, v10
v_add_u32 v{4+ft}, v12, v10""")
    e("s_waitcnt vmcnt(10)")
    e(f"""s_cmp_ge_u32 s84, 54
s_cbranch_scc1 L_BIAS_ok
s_waitcnt vmcnt(5)
s_cmp_ge_u32 s84, 94
L_BIAS_ok:
s_cmp_ge_u32 s84, 94
s_cbranch_scc0 L_BIAS_ok2
s_waitcnt vmcnt(0)
L_BIAS_ok2:""")
    for ft in range(6):
        b = 36 + 4 * ft
        e(f"""v_lshlrev_b32 v{b}, 16, v{240+2*ft}
v_and_b32 v{b+1}, 0xffff0000, v{240+2*ft}
v_lshlrev_b32 v{b+2}, 16, v{241+2*ft}
v_and_b32 v{b+3}, 0xffff0000, v{241+2*ft}""")
    stamp(e, 0, 14)
    gen_main_loop(e, 'F')
    stamp(e, 1, 14)
    e(f"""s_lshr_b32 s80, s{sWAVE}, 1
s_lshl_b32 s81, s{sRB}, 1
s_add_u32 s80, s80, s81
s_mul_i32 s80, s80, 94
s_mul_i32 s81, s{sJ}, 6
s_add_u32 s80, s80, s81
s_and_b32 s81, s{sWAVE}, 1
s_mul_i32 s81, s81, 3
s_add_u32 s80, s80, s81
s_lshl_b32 s80, s80, 12
v_lshlrev_b32 v10, 4, v0""")
    k = 0
    for u in range(3):
        for tt in range(4):
            o = SETA + 4 * k; k += 1
            vals = [acc_ffn(2*u, tt), acc_ffn(2*u+1, tt)]
            tmp = 16
            for h, a in enumerate(vals):
                for r in range(4):
                    e(f"v_max_f32 v{tmp+4*h+r}, 0, v{a+r}")
            for h, a in enumerate(vals):
                for r in range(0, 4, 2):
                    e(f"v_pk_mul_f32 v[{a+r}:{a+r+1}], v[{a+r}:{a+r+1}], v[{tmp+4*h+r}:{tmp+4*h+r+1}]")
            for h, a in enumerate(vals):
                for r in range(0, 4, 2):
                    e(f"v_cvt_pk_bf16_f32 v{o+2*h+(r>>1)}, v{a+r}, v{a+r+1}")
            e(f"buffer_store_dwordx4 {R(o)}, v10, s[{SWS}:{SWS+3}], s80 offen offset:{tt*1024} sc1")
        if u < 2: e("s_add_u32 s80, s80, 4096")
    stamp(e, 2, 14)
    tile_flag(e, 'F')
    stamp(e, 3, 14)
    e("s_branch L_SSM_P2")

_prep_emitted = [False]
def gen_prep_issue_call(e):
    import re
    sub = Emitter()
    gen_prep_issue(sub)
    txt = '\n'.join(l.strip() for l in sub.out if not l.strip().startswith('s_nop'))
    n = e.__dict__.setdefault('_pc', 0); e._pc = n + 1
    txt = txt.replace('L_PREP_', f'L_PREP{n}_')
    e(txt)

def gen_consumer(e):
    e(f"""v_mov_b32 v10, {LDS_FLAG}
v_mov_b32 v12, 0
v_mov_b32 v13, 0
ds_write_b64 v10, v[12:13]
s_cmp_eq_u32 s{sISU}, 1
s_cbranch_scc1 L_CONS_U""")
    gen_consumer_ffn(e)
    gen_consumer_u(e)

def pk(op, d, a, b, c=None, bsel=None, neg=False):
    n = 3 if c is not None else 2
    sel = [0, bsel] + ([0] if c is not None else [])
    selh = [1, bsel] + ([1] if c is not None else [])
    s = f"{op} v[{d}:{d+1}], v[{a}:{a+1}], v[{b}:{b+1}]" + (f", v[{c}:{c+1}]" if c is not None else "")
    s += " op_sel:[" + ",".join(map(str, sel)) + "] op_sel_hi:[" + ",".join(map(str, selh)) + "]"
    if neg:
        ng = [0, 1] + ([0] if c is not None else [])
        s += " neg_lo:[" + ",".join(map(str, ng)) + "] neg_hi:[" + ",".join(map(str, ng)) + "]"
    return s

def gen_consumer_u(e):
    e("L_CONS_U:")
    gen_prep_issue_call(e)
    x_addr_setup(e)
    e(f"""s_and_b32 s81, s{sWAVE}, 1
s_mul_i32 s81, s81, {96*128}
s_add_u32 s81, s81, 16384
v_add_u32 v4, s81, v10
v_xor_b32 v5, 64, v4""")
    stamp(e, 0, 14)
    gen_main_loop(e, 'U')
    stamp(e, 1, 14)
    def K(ct, i): return 160 + 18 * ct + 2 * i
    LAM, L8, L16, L16Q, L64, L128, L512, L1024, C2 = range(9)
    ent = {LAM: 0, L8: 1, L16: 3, L64: 6, L128: 7, L512: 8, L1024: 9, C2: 10}
    e(f"""s_and_b32 s81, s{sWAVE}, 1
s_mul_i32 s81, s81, {48*8}
s_add_u32 s81, s81, {LDS_TAB}
v_and_b32 v10, 15, v0
v_lshlrev_b32 v10, 3, v10
v_add_u32 v10, s81, v10
v_lshrrev_b32 v11, 4, v0
v_mul_u32_u24 v11, 768, v11
v_add_u32 v11, v11, v10""")
    for ct in range(3):
        for k, en in ent.items():
            e(f"ds_read_b64 v[{K(ct,k)}:{K(ct,k)+1}], v10 offset:{en*768 + ct*128}")
        e(f"ds_read_b64 v[{K(ct,L16Q)}:{K(ct,L16Q)+1}], v11 offset:{2*768 + ct*128}")
    e("s_waitcnt lgkmcnt(0)")
    def U(n, ct, part):
        return acc_u(n >> 1, 2 * ct + part) + 2 * (n & 1)
    def Er(ct, s): return 16 + 8 * ct + 4 * s
    def Ei(ct, s): return 18 + 8 * ct + 4 * s
    for n in range(1, 8):
        src = (n - 1) & 1; dst = n & 1
        for ct in range(3):
            pr = U(0, ct, 0) if n == 1 else Er(ct, src)
            pi = U(0, ct, 1) if n == 1 else Ei(ct, src)
            e(pk("v_pk_fma_f32", Er(ct, dst), pr, K(ct, LAM), U(n, ct, 0), 0))
            e(pk("v_pk_fma_f32", Ei(ct, dst), pi, K(ct, LAM), U(n, ct, 1), 0))
        for ct in range(3):
            pr = U(0, ct, 0) if n == 1 else Er(ct, src)
            pi = U(0, ct, 1) if n == 1 else Ei(ct, src)
            e(pk("v_pk_fma_f32", Er(ct, dst), pi, K(ct, LAM), Er(ct, dst), 1, neg=True))
            e(pk("v_pk_fma_f32", Ei(ct, dst), pr, K(ct, LAM), Ei(ct, dst), 1))
    def LL(ct): return 16 + 8 * ct
    for ct in range(3):
        er, ei, l8 = Er(ct, 1), Ei(ct, 1), K(ct, L8)
        e(f"""v_fma_f32 v{LL(ct)}, v{l8}, v{er}, v{er+1}
v_fma_f32 v{LL(ct)+1}, v{l8}, v{ei}, v{ei+1}
v_fma_f32 v{LL(ct)}, -v{l8+1}, v{ei}, v{LL(ct)}
v_fma_f32 v{LL(ct)+1}, v{l8+1}, v{er}, v{LL(ct)+1}""")
    def G(ct, q): return 214 + 8 * ct + 2 * q
    for ct in range(3):
        for c in range(2):
            a, b, a2, b2 = G(ct, 0) + c, G(ct, 1) + c, G(ct, 2) + c, G(ct, 3) + c
            e(f"""v_mov_b32 v{a}, v{LL(ct)+c}
v_mov_b32 v{b}, v{LL(ct)+c}
v_permlane16_swap_b32 v{a}, v{b}
v_mov_b32 v{a2}, v{a}
v_mov_b32 v{b2}, v{b}
v_permlane32_swap_b32 v{a}, v{a2}
v_permlane32_swap_b32 v{b}, v{b2}""")
    for ct in range(3):
        cfma(e, G(ct, 1), K(ct, L16), G(ct, 0), G(ct, 1))
    for ct in range(3):
        cfma(e, G(ct, 2), K(ct, L16), G(ct, 1), G(ct, 2))
    for ct in range(3):
        cfma(e, G(ct, 3), K(ct, L16), G(ct, 2), G(ct, 3))
    e(f"""s_mov_b32 s80, 0xffff0000
s_mov_b32 s81, 0
s_mov_b32 s82, 0
s_mov_b32 s83, 0x0000ffff
s_mov_b32 s90, 0
s_mov_b32 s91, 0xffff0000""")
    for ct in range(3):
        for c in range(2):
            e(f"""v_cndmask_b32 v{LL(ct)+c}, 0, v{G(ct,0)+c}, s[80:81]
v_cndmask_b32 v{LL(ct)+c}, v{LL(ct)+c}, v{G(ct,1)+c}, s[82:83]
v_cndmask_b32 v{LL(ct)+c}, v{LL(ct)+c}, v{G(ct,2)+c}, s[90:91]""")
    e(f"""s_and_b32 s84, s{sWAVE}, 1
s_mul_i32 s85, s84, {48*8}
s_add_u32 s85, s85, {LDS_LX}
v_and_b32 v10, 15, v0
v_lshlrev_b32 v10, 3, v10
v_add_u32 v10, s85, v10
s_lshl_b32 s85, s84, 2
s_add_u32 s85, s85, {LDS_FLAG}
v_mov_b32 v11, s85
s_cmp_ge_u32 s{sWAVE}, 2
s_cbranch_scc1 L_U_wt1""")
    for ct in range(3):
        e(f"ds_write_b64 v10, v[{G(ct,3)}:{G(ct,3)+1}] offset:{ct*128}")
    e(f"""v_mov_b32 v12, 1
s_waitcnt lgkmcnt(0)
ds_write_b32 v11, v12
s_branch L_U_lb
L_U_wt1:
s_mov_b32 s85, 0
L_U_pairwait:
ds_read_b32 v12, v11
s_add_u32 s85, s85, 1
s_waitcnt lgkmcnt(0)
v_readfirstlane_b32 s86, v12
s_cmp_ge_u32 s85, {opt.spin_limit}
s_cbranch_scc1 L_U_pairok
s_cmp_eq_u32 s86, 0
s_cbranch_scc1 L_U_pairwait
L_U_pairok:""")
    for ct in range(3):
        e(f"ds_read_b64 v[{G(ct,0)}:{G(ct,0)+1}], v10 offset:{ct*128}")
    e("s_waitcnt lgkmcnt(0)")
    for ct in range(3):
        cfma(e, G(ct, 1), K(ct, L64), G(ct, 0), G(ct, 3))
    e(f"""s_mov_b32 s80, 0xffff0000
s_mov_b32 s81, 0
s_mov_b32 s82, 0
s_mov_b32 s83, 0x0000ffff
v_cndmask_b32 v240, v{G(0,1)}, v{G(1,1)}, s[80:81]
v_cndmask_b32 v241, v{G(0,1)+1}, v{G(1,1)+1}, s[80:81]
v_cndmask_b32 v240, v240, v{G(2,1)}, s[82:83]
v_cndmask_b32 v241, v241, v{G(2,1)+1}, s[82:83]
v_mov_b32 v242, s{sNONCE}
v_mov_b32 v243, s{sNONCE}
s_mul_i32 s85, s{sJ}, 16
s_add_u32 s85, s85, s{sRB}
s_mul_i32 s85, s85, 96
s_mul_i32 s86, s84, 48
s_add_u32 s85, s85, s86
s_lshl_b32 s85, s85, 4
s_add_u32 s85, s85, {AG_OFF}
v_lshlrev_b32 v12, 4, v0
s_mov_b32 exec_lo, -1
s_mov_b32 exec_hi, 0x0000ffff
buffer_store_dwordx4 v[240:243], v12, s[{SWS}:{SWS+3}], s85 offen sc0 sc1
s_mov_b64 exec, -1
L_U_lb:""")
    stamp(e, 2, 14)
    LB = 112 + 0
    lbregs = [40 + 4 * i for i in range(6)] + [240 + 4 * i for i in range(4)] + [32 + 0, 36]
    lbregs = [40 + 4 * i for i in range(6)] + [240, 244, 248] + [216, 224, 232]
    e(f"""s_mul_i32 s85, s{sJ}, {16*96}
s_mul_i32 s86, s84, 48
s_add_u32 s85, s85, s86
s_lshl_b32 s85, s85, 4
s_add_u32 s85, s85, {AG_OFF}
v_lshrrev_b32 v12, 4, v0
v_lshlrev_b32 v12, 2, v12
v_sub_u32 v12, s{sRB}, v12
v_mov_b32 v9, 0x10000000
v_and_b32 v13, 15, v0""")
    for m in range(4):
        e(f"""v_subrev_u32 v14, {1+m}, v12
v_cmp_le_i32 s[{88+2*m}:{89+2*m}], 0, v14
v_mul_u32_u24 v15, 96, v14
v_add_u32 v15, v15, v13
v_lshlrev_b32 v15, 4, v15
v_cndmask_b32 v{4+m}, v9, v15, s[{88+2*m}:{89+2*m}]""")
    e(f"s_mov_b32 s86, 0\nL_U_lbloop:")
    for m in range(4):
        for ct in range(3):
            r = lbregs[m * 3 + ct]
            e(f"buffer_load_dwordx4 {R(r)}, v{4+m}, s[{SWS}:{SWS+3}], s85 offen offset:{ct*256} sc1")
    e("s_add_u32 s86, s86, 1\ns_mov_b64 s[96:97], 0\ns_waitcnt vmcnt(0)")
    for m in range(4):
        for ct in range(3):
            r = lbregs[m * 3 + ct]
            e(f"""v_cmp_ne_u32 vcc, s{sNONCE}, v{r+2}
s_and_b64 vcc, vcc, s[{88+2*m}:{89+2*m}]
s_or_b64 s[96:97], s[96:97], vcc""")
    e(f"""s_cmp_ge_u32 s86, {opt.spin_limit}
s_cbranch_scc1 L_U_lbok
s_cmp_eq_u64 s[96:97], 0
s_cbranch_scc0 L_U_lbloop
L_U_lbok:""")
    def S(m, ct): return lbregs[m * 3 + ct]
    for ct in range(3):
        cfma(e, S(2, ct), K(ct, L128), S(3, ct), S(2, ct))
    for ct in range(3):
        cfma(e, S(1, ct), K(ct, L128), S(2, ct), S(1, ct))
    for ct in range(3):
        cfma(e, S(0, ct), K(ct, L128), S(1, ct), S(0, ct))
    for ct in range(3):
        z, b, t, u = S(0, ct), S(1, ct), S(2, ct), S(3, ct)
        e(f"""v_mov_b32 v{b}, v{z}
v_mov_b32 v{b+1}, v{z+1}
v_permlane16_swap_b32 v{z}, v{b}
v_permlane16_swap_b32 v{z+1}, v{b+1}""")
        cfma(e, t, K(ct, L512), b, z)
        e(f"""v_mov_b32 v{u}, v{t}
v_mov_b32 v{u+1}, v{t+1}
v_permlane32_swap_b32 v{t}, v{u}
v_permlane32_swap_b32 v{t+1}, v{u+1}""")
        cfma(e, z, K(ct, L1024), u, t)
    e(f"s_cmp_ge_u32 s{sWAVE}, 2\ns_cbranch_scc0 L_U_hw0")
    for ct in range(3):
        cfma(e, S(1, ct), K(ct, L64), S(0, ct), G(ct, 0))
    e("s_branch L_U_hw1\nL_U_hw0:")
    for ct in range(3):
        e(f"v_mov_b32 v{S(1,ct)}, v{S(0,ct)}\nv_mov_b32 v{S(1,ct)+1}, v{S(0,ct)+1}")
    e("L_U_hw1:\ns_nop 1")
    for ct in range(3):
        cfma(e, S(2, ct), K(ct, L16Q), S(1, ct), LL(ct))
    for ct in range(3):
        hl, l8, er, ei = S(2, ct), K(ct, L8), Er(ct, 1), Ei(ct, 1)
        cr, ci = S(3, ct), S(3, ct) + 2
        e(f"""v_mov_b32 v{cr}, v{hl}
v_mov_b32 v{ci}, v{hl+1}
v_fma_f32 v{cr+1}, v{l8}, v{hl}, v{er}
v_fma_f32 v{ci+1}, v{l8}, v{hl+1}, v{ei}
v_fma_f32 v{cr+1}, -v{l8+1}, v{hl+1}, v{cr+1}
v_fma_f32 v{ci+1}, v{l8+1}, v{hl}, v{ci+1}""")
    for n in range(8):
        for ct in range(3):
            pr = S(3, ct) if n == 0 else U(n - 1, ct, 0)
            pi = S(3, ct) + 2 if n == 0 else U(n - 1, ct, 1)
            e(pk("v_pk_fma_f32", U(n, ct, 0), pr, K(ct, LAM), U(n, ct, 0), 0))
            e(pk("v_pk_fma_f32", U(n, ct, 1), pi, K(ct, LAM), U(n, ct, 1), 0))
        for ct in range(3):
            pr = S(3, ct) if n == 0 else U(n - 1, ct, 0)
            pi = S(3, ct) + 2 if n == 0 else U(n - 1, ct, 1)
            e(pk("v_pk_fma_f32", U(n, ct, 0), pi, K(ct, LAM), U(n, ct, 0), 1, neg=True))
            e(pk("v_pk_fma_f32", U(n, ct, 1), pr, K(ct, LAM), U(n, ct, 1), 1))
    stamp(e, 3, 14)
    e(f"""v_and_b32 v10, 15, v0
v_lshrrev_b32 v11, 4, v0
v_lshlrev_b32 v11, 3, v11
v_sub_u32 v10, v10, v11""")
    e("v_mov_b32 v14, 0x3f80\nv_mov_b32 v15, 0x3f800000")
    for b in range(2):
        e(f"v_add_u32 v12, {16*b}, v10")
        for rr in range(4):
            d = 40 + 4 * b + rr
            e(f"""v_cmp_eq_u32 vcc, {2*rr}, v12
v_cndmask_b32 v{d}, 0, v14, vcc
v_cmp_eq_u32 vcc, {2*rr+1}, v12
v_cndmask_b32 v{d}, v{d}, v15, vcc""")
    e(f"""s_lshr_b32 s80, s{sWAVE}, 1
s_lshl_b32 s81, s{sRB}, 1
s_add_u32 s80, s80, s81
s_mul_i32 s80, s80, 94
s_mul_i32 s81, s{sJ}, 6
s_mul_i32 s82, s84, 3
s_add_u32 s81, s81, s82
s_add_u32 s80, s80, s81
s_add_u32 s80, s80, 54
s_lshl_b32 s80, s80, 12
v_lshlrev_b32 v10, 4, v0""")
    for ct in range(3):
        c2 = K(ct, C2)
        for i in range(4):
            t0, t1, t2, t3 = 216, 218, 220, 222
            for s_, (tr, ti) in enumerate(((t0, t2), (t1, t3))):
                n = 2 * i + s_
                hr, hi = U(n, ct, 0), U(n, ct, 1)
                e(pk("v_pk_mul_f32", tr, hr, c2, None, 0))
                e(pk("v_pk_mul_f32", ti, hi, c2, None, 0, neg=True))
                e(pk("v_pk_fma_f32", tr, hi, c2, tr, 1, neg=True))
                e(pk("v_pk_fma_f32", ti, hr, c2, ti, 1, neg=True))
            e(f"""v_cvt_pk_bf16_f32 v{48+i}, v{t0}, v{t1}
v_cvt_pk_bf16_f32 v{52+i}, v{t0+1}, v{t1+1}
v_cvt_pk_bf16_f32 v{56+i}, v{t2}, v{t3}
v_cvt_pk_bf16_f32 v{60+i}, v{t2+1}, v{t3+1}""")
        def D(part, tt): return 224 + 16 * part + 4 * tt
        for part in range(2):
            for a in range(2):
                for b in range(2):
                    A = 48 + 8 * part + 4 * a
                    e(f"v_mfma_f32_16x16x32_bf16 {R(D(part, 2*b+a))}, {R(A)}, {R(40+4*b)}, 0")
        if True:
            e(f"s_add_u32 s82, s81, {ct}\ns_cmp_ge_u32 s82, 40\ns_cbranch_scc1 L_U_skip{ct}")
            for tt in range(4):
                o = acc_u(tt, 2 * ct)
                dr, di = D(0, tt), D(1, tt)
                e(f"""v_cvt_pk_bf16_f32 v{o}, v{dr}, v{dr+1}
v_cvt_pk_bf16_f32 v{o+1}, v{dr+2}, v{dr+3}
v_cvt_pk_bf16_f32 v{o+2}, v{di}, v{di+1}
v_cvt_pk_bf16_f32 v{o+3}, v{di+2}, v{di+3}
buffer_store_dwordx4 {R(o)}, v10, s[{SWS}:{SWS+3}], s80 offen offset:{tt*1024} sc1""")
            e(f"L_U_skip{ct}:\ns_nop 7\ns_add_u32 s80, s80, 4096")
    stamp(e, 4, 14)
    tile_flag(e, 'U')
    stamp(e, 5, 14)
    e("s_branch L_SSM_P2")

ACC2 = 16
WSL = 96
ASL = 196
NW, NA = 5, 3
def acc2(dt, tt): return ACC2 + (dt * 4 + tt) * 4

def gen_p2_stream(e, tag, nsteps, extra_hook=None):
    queue = []
    def ld_w(s):
        b = WSL + 20 * (s % NW)
        for dt in range(5):
            if dt < 4:
                e(f"buffer_load_dwordx4 {R(b+4*dt)}, v1, s[{SWS}:{SWS+3}], s84 offen offset:{dt*1024} sc1")
            else:
                e(f"s_add_u32 s84, s84, 4096")
                e(f"buffer_load_dwordx4 {R(b+4*dt)}, v1, s[{SWS}:{SWS+3}], s84 offen sc1")
                e(f"s_add_u32 s84, s84, 1024")
            queue.append(('w', s))
    def ld_a(s):
        b = ASL + 16 * (s % NA)
        for tt in range(4):
            e(f"buffer_load_dwordx4 {R(b+4*tt)}, v1, s[{SWS}:{SWS+3}], s85 offen offset:{tt*1024} sc1")
            queue.append(('a', s))
        e(f"s_add_u32 s85, s85, 4096")
    return ld_w, ld_a, queue

def p2_role(e, tag, nsteps):
    pass

def emit_stream(e, nsteps, ld_w, ld_a, queue, tail_hook=None):
    for s in range(min(NA, nsteps)): ld_a(s)
    for s in range(nsteps):
        last = max(i for i, q in enumerate(queue) if q in (('w', s), ('a', s))) if any(q in (('w', s), ('a', s)) for q in queue) else -1
        n = len(queue) - 1 - last
        e(f"s_waitcnt vmcnt({n})")
        del queue[:last + 1]
        wb = WSL + 20 * (s % NW); ab = ASL + 16 * (s % NA)
        for dt in range(5):
            for tt in range(4):
                d = acc2(dt, tt)
                c = "0" if s == 0 else R(d)
                e(f"v_mfma_f32_16x16x32_bf16 {R(d)}, {R(wb+4*dt)}, {R(ab+4*tt)}, {c}")
        if s + NA < nsteps: ld_a(s + NA)
        if s + NW < nsteps: ld_w(s + NW)
        if tail_hook and s == nsteps - 2: tail_hook(queue)

def gen_p2(e):
    e("L_FFN_P2:")
    spin_nonce(e, 'L', 10)
    e(f"""s_sub_u32 s86, s{sWAVE}, 4
s_mul_i32 s87, s86, 14
s_cmp_eq_u32 s86, 3
s_cselect_b32 s88, 1, 0
s_sub_u32 s87, s87, s88
v_lshlrev_b32 v1, 4, v0
v_lshlrev_b32 v2, 2, v0
s_lshl_b32 s89, s{sCB}, 9
s_lshl_b32 s90, s87, 2
s_add_u32 s89, s89, s90
s_add_u32 s89, s89, {WFLAG_OFF}""")
    poll_flags(e, 'FW', 2, 10, 89, 0x3fff)
    stamp(e, 2, 14)
    e(f"""s_mul_i32 s84, s{sCB}, 94
s_add_u32 s84, s84, s87
s_mul_i32 s84, s84, 5120
s_add_u32 s84, s84, {WF_OFF}
s_mul_i32 s85, s{sRB2}, 94
s_add_u32 s85, s85, s87
s_lshl_b32 s85, s85, 12""")
    gen_gate_loads(e)
    ld_w, ld_a, queue = gen_p2_stream(e, 'F', 14)
    for s in range(NW): ld_w(s)
    gen_gate(e, queue)
    e(f"""v_and_b32 v2, 3, v0
v_lshlrev_b32 v2, 7, v2
v_lshrrev_b32 v3, 2, v0
v_lshlrev_b32 v3, 2, v3
v_add_u32 v2, v2, v3
s_lshl_b32 s89, s{sRB2}, 9
s_add_u32 s89, s89, {TFLAG_OFF}""")
    stamp(e, 3, 14)
    poll_flags(e, 'FT', 2, 10, 89, 0x3ffff)
    stamp(e, 4, 14)
    del queue[:]
    e(f"s_cmp_ge_u32 s86, 2\ns_cbranch_scc1 L_FFN_13")
    q14 = list(queue)
    emit_stream(e, 14, ld_w, ld_a, queue)
    e("s_branch L_FFN_done")
    e("L_FFN_13:")
    queue[:] = q14
    emit_stream(e, 13, ld_w, ld_a, queue)
    e("L_FFN_done:")
    stamp(e, 5, 14)
    e(f"""s_mul_i32 s80, s86, 20480
v_add_u32 v2, s80, v1""")
    for tt in range(4):
        for dt in range(5):
            e(f"ds_write_b128 v2, {R(acc2(dt,tt))} offset:{LDS_F + (tt*5+dt)*1024}")
    e("s_waitcnt lgkmcnt(0)\ns_barrier")
    stamp(e, 6, 14)
    e("s_branch L_END")
    e("L_SSM_P2:")
    e(f"""s_mul_i32 s87, s{sWAVE}, 10
s_add_u32 s87, s87, 54
v_lshlrev_b32 v1, 4, v0
v_lshlrev_b32 v2, 2, v0
s_lshl_b32 s89, s{sCB}, 9
s_lshl_b32 s90, s87, 2
s_add_u32 s89, s89, s90
s_add_u32 s89, s89, {WFLAG_OFF}""")
    poll_flags(e, 'SW', 2, 10, 89, 0x3ff)
    e(f"""s_mul_i32 s84, s{sCB}, 94
s_add_u32 s84, s84, s87
s_mul_i32 s84, s84, 5120
s_add_u32 s84, s84, {WF_OFF}
s_mul_i32 s85, s{sRB2}, 94
s_add_u32 s85, s85, s87
s_lshl_b32 s85, s85, 12""")
    ld_w, ld_a, queue = gen_p2_stream(e, 'S', 10)
    for s in range(NW): ld_w(s)
    e(f"""v_and_b32 v2, 3, v0
v_lshlrev_b32 v2, 7, v2
v_lshrrev_b32 v3, 2, v0
v_lshlrev_b32 v3, 2, v3
v_add_u32 v2, v2, v3
s_lshl_b32 s89, s{sRB2}, 9
s_add_u32 s89, s89, {TFLAG_OFF}""")
    stamp(e, 6, 14)
    poll_flags(e, 'ST', 2, 10, 89, 0xfffc0000)
    stamp(e, 7, 14)
    del queue[:]
    emit_stream(e, 10, ld_w, ld_a, queue)
    stamp(e, 8, 14)
    XR, DK, B2, GG = 96, 106, 116, 126
    e(f"""s_lshr_b32 s80, s{sWAVE}, 1
s_lshl_b32 s80, s80, 5
s_and_b32 s81, s{sWAVE}, 1
s_lshl_b32 s81, s81, 3
s_add_u32 s80, s80, s81
s_lshl_b32 s81, s{sRB2}, 6
s_add_u32 s80, s80, s81
v_bfe_u32 v2, v0, 3, 1
v_lshlrev_b32 v2, 4, v2
v_and_b32 v3, 7, v0
v_add_u32 v2, v2, v3
v_add_u32 v2, s80, v2
v_lshrrev_b32 v3, 4, v0
v_lshlrev_b32 v4, 3, v3
s_mul_i32 s81, s{sCB}, 160
v_mul_u32_u24 v5, 1280, v2
v_add_u32 v5, v5, v4
v_lshlrev_b32 v6, 3, v2""")
    srd(e, STA, P_AX, 2621440)
    for dt in range(5):
        e(f"buffer_load_dwordx2 v[{XR+2*dt}:{XR+2*dt+1}], v5, s[{STA}:{STA+3}], s81 offen offset:{32*dt}")
    srd(e, STB, P_DSK, 1280)
    for dt in range(5):
        e(f"buffer_load_dwordx2 v[{DK+2*dt}:{DK+2*dt+1}], v4, s[{STB}:{STB+3}], s81 offen offset:{32*dt}")
    srd(e, STA, P_B2, 1280)
    for dt in range(5):
        e(f"buffer_load_dwordx2 v[{B2+2*dt}:{B2+2*dt+1}], v4, s[{STA}:{STA+3}], s81 offen offset:{32*dt}")
    e(f"s_mov_b32 s82, {G_OFF}")
    e(f"buffer_load_dwordx2 v[{GG}:{GG+1}], v6, s[{SWS}:{SWS+3}], s82 offen sc1")
    e(f"""s_mul_i32 s83, s{sWAVE}, 15360
s_add_u32 s83, s83, {LDS_Y}
v_add_u32 v7, s83, v1""")
    OWN = 130
    for w in range(4):
        e(f"s_cmp_eq_u32 s{sWAVE}, {w}\ns_cbranch_scc0 L_YW_{w}")
        sl = 0
        for tt in range(4):
            if tt == w: continue
            for dt in range(5):
                e(f"ds_write_b128 v7, {R(acc2(dt,tt))} offset:{sl * 5120 + dt * 1024}")
            sl += 1
        for dt in range(5):
            for r in range(4):
                e(f"v_mov_b32 v{OWN+4*dt+r}, v{acc2(dt,w)+r}")
        e(f"s_branch L_YW_done\nL_YW_{w}:")
    e("L_YW_done:")
    for k in range(3):
        e(f"""s_cmp_ge_u32 {k}, s{sWAVE}
s_cselect_b32 s80, {k+1}, {k}
s_cselect_b32 s81, 0, 1
s_sub_u32 s81, s{sWAVE}, s81
s_mul_i32 s80, s80, 15360
s_mul_i32 s81, s81, 5120
s_add_u32 s80, s80, s81
s_add_u32 s80, s80, {LDS_Y}
v_add_u32 v{8+k}, s80, v1""")
    e(f"""s_mul_i32 s80, s{sWAVE}, 5120
v_add_u32 v11, s80, v1
v_add_u32 v12, 40960, v11""")
    e("s_waitcnt lgkmcnt(0)\ns_barrier")
    stamp(e, 9, 14)
    YR, FR = 16, 150
    for k in range(3):
        for dt in range(5):
            e(f"ds_read_b128 {R(YR+20*k+4*dt)}, v{8+k} offset:{dt*1024}")
    for w2 in range(4):
        for dt in range(5):
            e(f"ds_read_b128 {R(FR+20*w2+4*dt)}, v{11+(w2>>1)} offset:{(w2&1)*20480 + dt*1024}")
    e(f"""s_waitcnt vmcnt(0)
v_sub_f32 v13, 1.0, v{GG}
v_cvt_pk_bf16_f32 v13, v13, v13
v_and_b32 v13, 0xffff0000, v13""")
    if opt.check_g:
        e(f"""v_cmp_ne_u32 vcc, s{sNONCE}, v{GG+1}
v_mov_b32 v14, 0x7fc00000
v_cndmask_b32 v{GG}, v{GG}, v14, vcc""")
    e("s_waitcnt lgkmcnt(0)")
    for k in range(3):
        for i in range(0, 20, 2):
            e(f"v_pk_add_f32 v[{OWN+i}:{OWN+i+1}], v[{OWN+i}:{OWN+i+1}], v[{YR+20*k+i}:{YR+20*k+i+1}]")
    for k in range(1, 4):
        for i in range(0, 20, 2):
            e(f"v_pk_add_f32 v[{FR+i}:{FR+i+1}], v[{FR+i}:{FR+i+1}], v[{FR+20*k+i}:{FR+20*k+i+1}]")
    srd(e, SOUT, P_OUT, 5242880)
    e(f"""v_mul_u32_u24 v5, 2560, v2
v_lshlrev_b32 v4, 4, v3
v_add_u32 v5, v5, v4
s_mul_i32 s81, s{sCB}, 320""")
    for dt in range(5):
        T = 16 + 12 * dt
        for nm, src in ((0, XR), (4, DK), (8, B2)):
            e(f"""v_lshlrev_b32 v{T+nm}, 16, v{src+2*dt}
v_and_b32 v{T+nm+1}, 0xffff0000, v{src+2*dt}
v_lshlrev_b32 v{T+nm+2}, 16, v{src+2*dt+1}
v_and_b32 v{T+nm+3}, 0xffff0000, v{src+2*dt+1}""")
        y, f = OWN + 4 * dt, FR + 4 * dt
        for r in range(0, 4, 2):
            e(f"v_pk_fma_f32 v[{y+r}:{y+r+1}], v[{T+r}:{T+r+1}], v[{T+4+r}:{T+4+r+1}], v[{y+r}:{y+r+1}]")
            e(f"v_pk_add_f32 v[{f+r}:{f+r+1}], v[{f+r}:{f+r+1}], v[{T+8+r}:{T+8+r+1}]")
        for r in range(4):
            e(f"v_mul_f32 v{y+r}, v{GG}, v{y+r}")
        for r in range(4):
            e(f"v_fma_f32 v{y+r}, v13, v{f+r}, v{y+r}")
        e(f"buffer_store_dwordx4 {R(y)}, v5, s[{SOUT}:{SOUT+3}], s81 offen offset:{dt*64}")
    stamp(e, 10, 14)
    e("s_branch L_END")

def gen_gate_loads(e):
    srd(e, STA, P_GW, 1280)
    srd(e, STB, P_AX, 2621440)
    e(f"""v_lshlrev_b32 v2, 2, v0
s_lshl_b32 s88, s2, 3
s_lshl_b32 s89, s86, 1
s_add_u32 s88, s88, s89
s_mul_i32 s89, s88, 1280
s_add_u32 s90, s89, 1280""")
    for m in range(5):
        e(f"buffer_load_dword v{16+m}, v2, s[{STA}:{STA+3}], 0 offen offset:{256*m}")
    for m in range(5):
        e(f"buffer_load_dword v{21+m}, v2, s[{STB}:{STB+3}], s89 offen offset:{256*m}")
    for m in range(5):
        e(f"buffer_load_dword v{26+m}, v2, s[{STB}:{STB+3}], s90 offen offset:{256*m}")

def gen_gate_compute(e, nyounger):
    e(f"s_waitcnt vmcnt({nyounger})")
    e("v_mov_b32 v40, 0\nv_mov_b32 v41, 0")
    for m in range(5):
        e(f"""v_lshlrev_b32 v31, 16, v{16+m}
v_and_b32 v32, 0xffff0000, v{16+m}""")
        for row in range(2):
            x = 21 + 5 * row + m
            e(f"""v_lshlrev_b32 v33, 16, v{x}
v_and_b32 v34, 0xffff0000, v{x}
v_mul_f32 v33, v33, v31
v_mul_f32 v34, v34, v32
v_cvt_pk_bf16_f32 v33, v33, v34
v_lshlrev_b32 v34, 16, v33
v_and_b32 v33, 0xffff0000, v33
v_add_f32 v{40+row}, v{40+row}, v34
v_add_f32 v{40+row}, v{40+row}, v33""")
    for sh in ("row_shr:1", "row_shr:2", "row_shr:4", "row_shr:8", "row_bcast:15 row_mask:0xa", "row_bcast:31 row_mask:0xc"):
        for row in range(2):
            e(f"v_add_f32 v{40+row}, v{40+row}, v{40+row} {sh}")
    e("""v_readlane_b32 s90, v40, 63
v_readlane_b32 s91, v41, 63""")
    e(f"""v_mov_b32 v42, s90
v_mov_b32 v43, s91
v_cmp_eq_u32 vcc, 1, v0
v_cndmask_b32 v42, v42, v43, vcc
v_cvt_pk_bf16_f32 v42, v42, v42
v_and_b32 v42, 0xffff0000, v42
v_mul_f32 v42, 0xbfb8aa3b, v42
v_exp_f32 v42, v42
v_add_f32 v42, 1.0, v42
v_rcp_f32 v42, v42
v_cvt_pk_bf16_f32 v42, v42, v42
v_and_b32 v42, 0xffff0000, v42
v_mov_b32 v43, s{sNONCE}
v_lshlrev_b32 v44, 3, v0
s_lshl_b32 s88, s88, 3
s_add_u32 s88, s88, {G_OFF}
s_mov_b64 exec, 3
buffer_store_dwordx2 v[42:43], v44, s[{SWS}:{SWS+3}], s88 offen sc0 sc1
s_mov_b64 exec, -1""")

def gen_gate(e, queue):
    gen_gate_compute(e, len(queue))

def generate(path):
    e = Emitter()
    hdr = open("gated_mix__ssm_conv_s5__dense_activation_squared_relu__prompt.s.ref").read().split("\n")
    head = [l for l in hdr if l.startswith(";") and "@launch" not in l and "Override" not in l and "grid=ceil" not in l]
    txt = "\n".join(head) + f"\n; @launch grid=(256,1,1) block=(512,1,1) lds={LDS_SIZE}\n"
    txt += '.amdgcn_target "amdgcn-amd-amdhsa--gfx950"\n.text\n'
    txt += f".globl {NAME}\n.p2align 8\n.type {NAME},@function\n{NAME}:\n"
    gen_entry(e)
    gen_consumer(e)
    gen_loader(e)
    gen_p2(e)
    e("L_END:\ns_endpgm")
    txt += e.text()
    txt += f""".section .rodata,"a"
.p2align 6
.amdhsa_kernel {NAME}
  .amdhsa_next_free_vgpr 256
  .amdhsa_next_free_sgpr 102
  .amdhsa_accum_offset 256
  .amdhsa_group_segment_fixed_size 0
  .amdhsa_kernarg_size 144
  .amdhsa_user_sgpr_count 2
  .amdhsa_user_sgpr_kernarg_segment_ptr 1
  .amdhsa_system_sgpr_workgroup_id_x 1
.end_amdhsa_kernel
"""
    open(path, "w").write(txt)
    print("pads:", e.npad, "lines:", len(e.out))

if __name__ == "__main__":
    opt.check_g = True
    for a in sys.argv[2:]:
        k, v = a.split("=")
        setattr(opt, k, int(v))
    generate(sys.argv[1])
```

```python
import sys
from emit import Emitter

NAME = "gated_mix__ssm_conv_s5__dense_activation_squared_relu__prompt_kernel"

ACT_OFF   = 0
WF_OFF    = 0xC00000
G_OFF     = 0x1000000
AG_OFF    = 0x1010000
WFLAG_OFF = 0x1040000
TFLAG_OFF = 0x1050000
STAMP_OFF = 0x1100000
SLOT = 40960
LDS_PREP = 122880
LDS_TAB  = 143360
LDS_LX   = LDS_TAB + 8448
LDS_FLAG = LDS_LX + 768
LDS_DUMMY = LDS_FLAG + 64
LDS_F    = 0
LDS_Y    = 81920
LDS_SIZE = 163840

SX, SWA, SWB, SWS, STA, STB, SOUT = 4, 8, 12, 16, 20, 24, 28
P_AX, P_LRE, P_LIM, P_BRE, P_BIM, P_CRE, P_CIM, P_LDT, P_DSK, P_BX, P_W1, P_B1, P_W2, P_B2, P_GW, P_OUT, P_DBG, P_WS = [36 + 2 * i for i in range(18)]
sWAVE, sRB, sCOL, sJ, sRB2, sCB, sNONCE, sISU = 72, 73, 74, 75, 76, 77, 78, 79
SG, sGo, sGinc = 28, 83, 85

class Opt:
    phase2 = True
    stamps = False
    spin_limit = 200000
opt = Opt()

def srd(e, s, ptr, size):
    e(f"s_mov_b32 s{s}, s{ptr}\ns_mov_b32 s{s+1}, s{ptr+1}\ns_mov_b32 s{s+2}, {size}\ns_mov_b32 s{s+3}, 0x20000")

def R(b, n=4):
    return f"v[{b}:{b+n-1}]"

_stamp_id = [0]
def stamp(e, idx, tmpv=14):
    if not opt.stamps: return
    e(f"""s_memrealtime s[100:101]
s_lshl_b32 s98, s2, 3
s_add_u32 s98, s98, s{sWAVE}
s_lshl_b32 s98, s98, 6
s_add_u32 s98, s98, {STAMP_OFF + 4*idx}
s_waitcnt lgkmcnt(0)
v_mov_b32 v{tmpv}, s100
v_mov_b32 v{tmpv+1}, 0
s_mov_b64 s[96:97], exec
s_mov_b64 exec, 1
buffer_store_dword v{tmpv}, v{tmpv+1}, s[{SWS}:{SWS+3}], s98 offen
s_mov_b64 exec, s[96:97]""")

def stamp_clk(e, idx, tmpv=14):
    if not opt.stamps: return
    e(f"""s_memtime s[100:101]
s_lshl_b32 s98, s2, 3
s_add_u32 s98, s98, s{sWAVE}
s_lshl_b32 s98, s98, 6
s_add_u32 s98, s98, {STAMP_OFF + 4*idx}
s_waitcnt lgkmcnt(0)
v_mov_b32 v{tmpv}, s100
v_mov_b32 v{tmpv+1}, 0
s_mov_b64 s[96:97], exec
s_mov_b64 exec, 1
buffer_store_dword v{tmpv}, v{tmpv+1}, s[{SWS}:{SWS+3}], s98 offen
s_mov_b64 exec, s[96:97]""")

class Cap:
    def __init__(self): self.l = []
    def __call__(self, s):
        for x in s.split("\n"):
            if x.strip(): self.l.append(x.strip())

def merge(e, main_groups, aux):
    n = len(main_groups); k = 0
    per = -(-len(aux) // n) if n else 0
    for g in main_groups:
        for x in g: e(x)
        for x in aux[k:k + per]: e(x)
        k += per
    for x in aux[k:]: e(x)

def interleave(e, A, B, lead=1):
    bi = 0
    for i, a in enumerate(A):
        e(a)
        if i >= lead - 1 and bi < len(B):
            e(B[bi]); bi += 1
    while bi < len(B):
        e(B[bi]); bi += 1

def spin_nonce(e, tag, vtmp):
    srd(e, STA, P_DBG, 256)
    e(f"""v_mov_b32 v{vtmp+1}, 0
s_mov_b32 s80, 0
L_nonce_{tag}:
buffer_load_dword v{vtmp}, v{vtmp+1}, s[{STA}:{STA+3}], 0 offen sc1
s_add_u32 s80, s80, 1
s_waitcnt vmcnt(0)
v_readfirstlane_b32 s{sNONCE}, v{vtmp}
s_cmp_ge_u32 s80, {opt.spin_limit}
s_cbranch_scc1 L_nonce_done_{tag}
s_cmp_eq_u32 s{sNONCE}, 0
s_cbranch_scc0 L_nonce_done_{tag}
s_sleep 1
s_branch L_nonce_{tag}
L_nonce_done_{tag}:""")

def poll_flags(e, tag, vaddr, vtmp, soff_sgpr, nlanes_mask_lo, mask_hi=0, sleep=1):
    e(f"""s_mov_b32 s80, 0
s_mov_b32 s82, {nlanes_mask_lo}
s_mov_b32 s83, {mask_hi}
L_poll_{tag}:
buffer_load_dword v{vtmp}, v{vaddr}, s[{SWS}:{SWS+3}], s{soff_sgpr} offen sc1
s_add_u32 s80, s80, 1
s_waitcnt vmcnt(0)
v_cmp_ne_u32 vcc, s{sNONCE}, v{vtmp}
s_cmp_ge_u32 s80, {opt.spin_limit}
s_cbranch_scc1 L_poll_done_{tag}
s_and_b64 vcc, vcc, s[82:83]
s_cbranch_scc0 L_poll_done_{tag}
s_sleep {sleep}
s_branch L_poll_{tag}
L_poll_done_{tag}:""")

def gen_entry(e):
    if opt.map2 == 1:
        MAP2 = f"""s_lshr_b32 s82, s80, 1
s_lshl_b32 s82, s82, 3
s_lshr_b32 s83, s81, 2
s_add_u32 s{sRB2}, s82, s83
s_and_b32 s82, s80, 1
s_lshl_b32 s82, s82, 2
s_and_b32 s83, s81, 3
s_add_u32 s{sCB}, s82, s83"""
    else:
        MAP2 = f"""s_lshl_b32 s82, s80, 2
s_and_b32 s83, s81, 3
s_add_u32 s{sRB2}, s82, s83
s_lshr_b32 s{sCB}, s81, 2"""
    e(f"""s_cmp_ge_u32 s2, 256
s_cbranch_scc1 L_END
s_load_dwordx16 s[36:51], s[0:1], 0
s_load_dwordx16 s[52:67], s[0:1], 64
s_load_dwordx4 s[68:71], s[0:1], 128
v_lshrrev_b32 v1, 6, v0
v_and_b32 v0, 63, v0
v_readfirstlane_b32 s{sWAVE}, v1
s_and_b32 s80, s2, 7
s_lshr_b32 s81, s2, 3
s_and_b32 s82, s80, 1
s_lshl_b32 s82, s82, 3
s_and_b32 s83, s81, 7
s_add_u32 s{sRB}, s82, s83
s_lshr_b32 s82, s80, 1
s_lshl_b32 s82, s82, 2
s_lshr_b32 s83, s81, 3
s_add_u32 s{sCOL}, s82, s83
{MAP2}
s_sub_u32 s82, s{sCOL}, 9
s_cmp_ge_u32 s{sCOL}, 9
s_cselect_b32 s{sISU}, 1, 0
s_cselect_b32 s{sJ}, s82, s{sCOL}
s_waitcnt lgkmcnt(0)""")
    srd(e, SWS, P_WS, 0x10000000)
    srd(e, SX, P_AX, 2621440)
    e(f"""s_cmp_eq_u32 s2, 0
s_cbranch_scc0 L_no_nonce
s_cmp_eq_u32 s{sWAVE}, 4
s_cbranch_scc0 L_no_nonce
s_memrealtime s[80:81]""")
    srd(e, STA, P_DBG, 256)
    e(f"""s_waitcnt lgkmcnt(0)
s_or_b32 s80, s80, 1
v_mov_b32 v2, s80
v_mov_b32 v3, 0
s_mov_b64 exec, 1
buffer_store_dword v2, v3, s[{STA}:{STA+3}], 0 offen sc0 sc1
s_mov_b64 exec, -1
L_no_nonce:
s_cmp_ge_u32 s{sWAVE}, 4
s_cbranch_scc1 L_LOADER""")

def cmul(e, d, a, b, t):
    e(f"""v_mul_f32 v{d}, v{a}, v{b}
v_mul_f32 v{d+1}, v{a}, v{b+1}
v_fma_f32 v{d}, -v{a+1}, v{b+1}, v{d}
v_fma_f32 v{d+1}, v{a+1}, v{b}, v{d+1}""")

def csq(e, d, a):
    cmul(e, d, a, a, None)

def cfma(e, d, a, b, c):
    e(f"""v_fma_f32 v{d}, v{a}, v{b}, v{c}
v_fma_f32 v{d+1}, v{a}, v{b+1}, v{c+1}
v_fma_f32 v{d}, -v{a+1}, v{b+1}, v{d}
v_fma_f32 v{d+1}, v{a+1}, v{b}, v{d+1}""")

def gen_loader(e):
    e("L_LOADER:")
    vXo = 2; vWo = 4
    sXo = 86
    sWo = 90
    sLX, sLW, sWinc = 32, 33, 34
    def issue_x(s):
        slot = (s % 3) * SLOT
        for m in range(4):
            e(f"s_add_u32 m0, s{sLX}, {slot + m*1024}")
            e(f"buffer_load_dwordx4 v{vXo}, s[{SX}:{SX+3}], s{sXo+m} offen lds")
            e(f"s_add_u32 s{sXo+m}, s{sXo+m}, 128")
    def issue_w(s):
        slot = (s % 3) * SLOT
        for m in range(6):
            S = SWB if (m >> 1) == 1 else SWA
            e(f"s_add_u32 m0, s{sLW}, {slot + m*1024}")
            e(f"buffer_load_dwordx4 v{vWo+m}, s[{S}:{S+3}], s{sWo+m} offen lds")
            e(f"s_add_u32 s{sWo+m}, s{sWo+m}, s{sWinc}")
    def issue(s):
        issue_x(s); issue_w(s)
    e(f"""s_sub_u32 s84, s{sWAVE}, 4
v_lshrrev_b32 v10, 3, v0
v_and_b32 v11, 7, v0
v_xor_b32 v11, v11, v10
v_lshlrev_b32 v11, 4, v11
s_lshl_b32 s{sLX}, s84, 12
s_mul_i32 s{sLW}, s84, 6144
s_add_u32 s{sLW}, s{sLW}, 16384
s_lshl_b32 s85, s{sRB}, 7""")
    e(f"""s_mul_i32 s80, s{sJ}, 96
s_lshl_b32 s81, s84, 5
s_add_u32 s80, s80, s81
v_and_b32 v12, 31, v0
v_add_u32 v12, s80, v12
v_min_u32 v12, 639, v12
v_lshlrev_b32 v12, 1, v12""")
    srd(e, STA, P_LRE, 1280)
    e(f"buffer_load_ushort v20, v12, s[{STA}:{STA+3}], 0 offen")
    srd(e, STB, P_LIM, 1280)
    e(f"buffer_load_ushort v21, v12, s[{STB}:{STB+3}], 0 offen")
    srd(e, STA, P_LDT, 1280)
    e(f"buffer_load_ushort v22, v12, s[{STA}:{STA+3}], 0 offen")
    e(f"""s_cmp_eq_u32 s{sISU}, 1
s_cbranch_scc1 L_LD_U""")
    e(f"""v_mul_u32_u24 v{vXo}, 1280, v10
v_add_u32 v{vXo}, v{vXo}, v11
s_lshl_b32 s80, s84, 5
s_add_u32 s80, s80, s85""")
    for m in range(4):
        e(f"s_add_u32 s81, s80, {16*(m&1) + 8*(m>>1)}\ns_mul_i32 s{sXo+m}, s81, 1280")
    issue_x(0)
    srd(e, SWA, P_W1, 2211840)
    srd(e, SWB, P_W1, 2211840)
    e(f"""s_mul_i32 s80, s84, {16*3456}
s_mul_i32 s81, s{sJ}, 384
s_add_u32 s80, s80, s81""")
    for m in range(6):
        e(f"s_mov_b32 s{sWo+m}, s80")
    e(f"s_mov_b32 s{sWinc}, {64*3456}")
    for m in range(6):
        e(f"""v_add_u32 v12, {64*m}, v0
v_mul_u32_u24 v13, 2731, v12
v_lshrrev_b32 v13, 16, v13
v_mul_u32_u24 v14, 24, v13
v_sub_u32 v14, v12, v14
v_bfe_u32 v15, v13, 1, 1
v_lshlrev_b32 v15, 1, v15
v_bfe_u32 v16, v13, 3, 1
v_lshlrev_b32 v16, 2, v16
v_or_b32 v15, v15, v16
v_xor_b32 v14, v14, v15
v_lshlrev_b32 v14, 4, v14
v_mul_u32_u24 v13, 3456, v13
v_add_u32 v{vWo+m}, v13, v14""")
    e("s_branch L_LD_GO")
    e("L_LD_U:")
    e(f"""v_lshrrev_b32 v12, 5, v0
v_lshlrev_b32 v12, 4, v12
v_bfe_u32 v13, v0, 3, 1
v_lshlrev_b32 v13, 3, v13
v_add_u32 v12, v12, v13
v_bfe_u32 v13, v0, 4, 1
v_add_u32 v12, v12, v13
v_mul_u32_u24 v{vXo}, 1280, v12
v_add_u32 v{vXo}, v{vXo}, v11
s_lshr_b32 s80, s84, 1
s_lshl_b32 s80, s80, 6
s_and_b32 s81, s84, 1
s_lshl_b32 s82, s81, 2
s_add_u32 s80, s80, s82
s_add_u32 s80, s80, s85""")
    for m in range(4):
        e(f"s_add_u32 s82, s80, {32*(m&1) + 2*(m>>1)}\ns_mul_i32 s{sXo+m}, s82, 1280")
    issue_x(0)
    e(f"""v_mul_u32_u24 v12, 1280, v10
v_add_u32 v12, v12, v11""")
    for m in range(6):
        e(f"v_mov_b32 v{vWo+m}, v12")
    e(f"""s_mul_i32 s80, s{sJ}, 96
s_lshr_b32 s82, s84, 1
s_mul_i32 s82, s82, 48
s_add_u32 s80, s80, s82
s_mul_i32 s83, s81, 3""")
    for m in range(6):
        e(f"""s_add_u32 s82, s83, {m>>1}
s_lshr_b32 s82, s82, 1
s_lshl_b32 s82, s82, 4
s_add_u32 s82, s82, s80
s_add_u32 s82, s82, {8*(m&1)}
s_min_u32 s82, s82, 632
s_mul_i32 s{sWo+m}, s82, 1280""")
    e(f"s_mov_b32 s{sWinc}, 128")
    e(f"""s_cmp_eq_u32 s81, 0
s_cselect_b32 s{SWA}, s{P_BRE}, s{P_BIM}
s_cselect_b32 s{SWA+1}, s{P_BRE+1}, s{P_BIM+1}
s_cselect_b32 s{SWB}, s{P_BIM}, s{P_BRE}
s_cselect_b32 s{SWB+1}, s{P_BIM+1}, s{P_BRE+1}
s_mov_b32 s{SWA+2}, 819200
s_mov_b32 s{SWA+3}, 0x20000
s_mov_b32 s{SWB+2}, 819200
s_mov_b32 s{SWB+3}, 0x20000""")
    e("L_LD_GO:")
    def groups(s_):
        slot = (s_ % 3) * SLOT
        G = []
        for m in range(4):
            G.append([f"s_add_u32 m0, s{sLX}, {slot + m*1024}",
                      f"buffer_load_dwordx4 v{vXo}, s[{SX}:{SX+3}], s{sXo+m} offen lds",
                      f"s_add_u32 s{sXo+m}, s{sXo+m}, 128"])
        for m in range(6):
            S = SWB if (m >> 1) == 1 else SWA
            G.append([f"s_add_u32 m0, s{sLW}, {slot + m*1024}",
                      f"buffer_load_dwordx4 v{vWo+m}, s[{S}:{S+3}], s{sWo+m} offen lds",
                      f"s_add_u32 s{sWo+m}, s{sWo+m}, s{sWinc}"])
        return G
    def gath():
        e(f"buffer_load_dword v18, v17, s[{SG}:{SG+3}], s{sGo} offen\ns_add_u32 s{sGo}, s{sGo}, s{sGinc}")
    issue_w(0)
    gen_gather_setup(e, 84, 'L', 3)
    issue(1)
    e("s_waitcnt vmcnt(10)\ns_barrier")
    issue(2); gath()
    e("s_waitcnt vmcnt(11)\ns_barrier")
    c = Cap(); gen_lambda_table(c, 0)
    merge(e, groups(3), c.l); gath()
    e("s_waitcnt vmcnt(12)\ns_barrier")
    e(f"""v_and_b32 v62, 31, v0
s_lshl_b32 s80, s84, 5
v_add_u32 v62, s80, v62
v_lshlrev_b32 v62, 3, v62
s_mov_b32 s81, {LDS_TAB}
s_cmp_eq_u32 s84, 3
s_cselect_b32 s80, {LDS_DUMMY - 768}, s81
v_add_u32 v62, s80, v62""")
    c = Cap(); gen_lambda_table(c, 1)
    merge(e, groups(4), c.l); gath()
    for it, (st_, g_) in enumerate(((5, 1), (6, 1), (7, 1), (8, 1))):
        e("s_waitcnt vmcnt(12)\ns_barrier")
        issue(st_)
        if g_: gath()
        if it == 1:
            srd(e, STA, P_DBG, 256)
            e(f"v_mov_b32 v12, 0\nbuffer_load_dword v99, v12, s[{STA}:{STA+3}], 0 offen")
    e("s_waitcnt vmcnt(12)\ns_barrier")
    e(f"""v_readfirstlane_b32 s{sNONCE}, v99
s_cmp_eq_u32 s{sNONCE}, 0
s_cbranch_scc0 L_LD_nonce_ok""")
    spin_nonce(e, 'L', 10)
    e("L_LD_nonce_ok:")
    e(f"""s_mul_i32 s85, s84, 14
s_cmp_eq_u32 s84, 3
s_cselect_b32 s80, 1, 0
s_sub_u32 s85, s85, s80
v_lshlrev_b32 v12, 2, v0
s_lshl_b32 s81, s{sCB}, 9
s_lshl_b32 s82, s85, 2
s_add_u32 s81, s81, s82
s_add_u32 s35, s81, {WFLAG_OFF}
v_lshlrev_b32 v1, 4, v0
buffer_load_dword v13, v12, s[{SWS}:{SWS+3}], s35 offen sc1""")
    issue(9)
    e("s_waitcnt vmcnt(10)\ns_barrier")
    e(f"""s_mov_b32 s86, s84
s_mul_i32 s87, s86, 20480
s_mul_i32 s84, s{sCB}, 94
s_add_u32 s84, s84, s85
s_mul_i32 s84, s84, 5120
s_add_u32 s84, s84, {WF_OFF}
s_cmp_ge_u32 s86, 2
s_cselect_b32 s89, 13, 14""")
    rot_setup(e, 89, False)
    ld_w, ld_a, queue = gen_p2_stream(e, 'x', 14)
    e(f"""v_cmp_ne_u32 vcc, s{sNONCE}, v13
s_nop 1
s_and_b32 s80, vcc_lo, 0x3fff
s_cbranch_scc1 L_LD_wlate""")
    ld_w(0); ld_w(1)
    e("s_waitcnt vmcnt(10)\ns_barrier")
    ld_w(2); ld_w(3); ld_w(4)
    e("s_branch L_LD_wdone\nL_LD_wlate:\ns_waitcnt vmcnt(0)\ns_barrier")
    poll_flags(e, 'FW', 12, 13, 35, 0x3fff)
    for s_ in range(NW): ld_w(s_)
    e("L_LD_wdone:")
    stamp(e, 1, 14)
    gen_gate_loads(e, 86)
    lds_wait_ge(e, 'R', 24, 4, 10)
    if opt.wdelay:
        e(f"s_cmp_eq_u32 s{sISU}, 1\ns_cbranch_scc1 L_LD_nodelay")
        lds_wait_ge(e, 'W', 16, 4, 10)
        e("L_LD_nodelay:")
    stamp(e, 7, 14)
    w_lds(e, NLF, 87)
    lds_count(e, 28, 10)
    if opt.sshelp:
        e(f"""s_cmp_eq_u32 s{sISU}, 1
s_cbranch_scc0 L_NOHELP
s_mul_i32 s80, s86, 10
s_add_u32 s80, s80, 54
s_lshl_b32 s80, s80, 2
s_lshl_b32 s81, s{sCB}, 9
s_add_u32 s80, s80, s81
s_add_u32 s88, s80, {WFLAG_OFF}
v_lshlrev_b32 v12, 2, v0""")
        poll_flags(e, 'HW', 12, 13, 88, 0x3ff)
        e(f"""s_mul_i32 s80, s86, 10
s_add_u32 s80, s80, {54 + NW}
s_mul_i32 s81, s{sCB}, 94
s_add_u32 s80, s80, s81
s_mul_i32 s80, s80, 5120
s_add_u32 s80, s80, {WF_OFF}
s_mul_i32 s81, s86, 15360
s_add_u32 s81, s81, {LDS_Y}""")
        for i in range(NLS):
            for dt in range(5):
                e(f"""s_add_u32 m0, s81, {i*5120 + dt*1024}
buffer_load_dwordx4 v1, s[{SWS}:{SWS+3}], s80 offen sc1 lds
s_add_u32 s80, s80, 1024""")
        e("L_NOHELP:")
    stamp(e, 2, 14)

NLF, NLS = 4, 3
def w_prefetch(e, nsteps, NL, lds_base_sgpr, do_lds=True):
    nsh = 8 if opt.map2 == 1 else 4
    per = -(-nsteps * 40 // nsh)
    if opt.gw: l2_prefetch(e, 84, nsteps * 40, nsh, f"s{sRB2}", nsh - 1, -(-per // 64))
    ld_w, ld_a, queue = gen_p2_stream(e, 'x', nsteps)
    for s_ in range(NW): ld_w(s_)
    if do_lds: w_lds(e, NL, lds_base_sgpr)

def w_lds(e, NL, lds_base_sgpr, queue=None):
    for i in range(NL):
        for dt in range(5):
            e(f"""s_add_u32 m0, s{lds_base_sgpr}, {i*5120 + dt*1024}
buffer_load_dwordx4 v1, s[{SWS}:{SWS+3}], s84 offen sc1 lds
s_add_u32 s84, s84, 1024""")
            if queue is not None: queue.append(('l', NW + i))
        wrap_w(e)

def ffn_w_prefetch(e):
    e(f"""s_mov_b32 s86, s84
s_mul_i32 s87, s86, 20480
s_mul_i32 s84, s{sCB}, 94
s_add_u32 s84, s84, s85
s_mul_i32 s84, s84, 5120
s_add_u32 s84, s84, {WF_OFF}
s_cmp_ge_u32 s86, 2
s_cselect_b32 s89, 13, 14""")
    rot_setup(e, 89, False)
    w_prefetch(e, 14, NLF, 87, do_lds=not opt.ldslate)
    if opt.sshelp:
        e(f"""s_cmp_eq_u32 s{sISU}, 1
s_cbranch_scc0 L_NOHELP
s_mul_i32 s80, s86, 10
s_add_u32 s80, s80, 54
s_lshl_b32 s80, s80, 2
s_lshl_b32 s81, s{sCB}, 9
s_add_u32 s80, s80, s81
s_add_u32 s88, s80, {WFLAG_OFF}
v_lshlrev_b32 v12, 2, v0""")
        poll_flags(e, 'HW', 12, 13, 88, 0x3ff)
        e(f"""s_mul_i32 s80, s86, 10
s_add_u32 s80, s80, {54 + NW}
s_mul_i32 s81, s{sCB}, 94
s_add_u32 s80, s80, s81
s_mul_i32 s80, s80, 5120
s_add_u32 s80, s80, {WF_OFF}
s_mul_i32 s81, s86, 15360
s_add_u32 s81, s81, {LDS_Y}""")
        for i in range(NLS):
            for dt in range(5):
                e(f"""s_add_u32 m0, s81, {i*5120 + dt*1024}
buffer_load_dwordx4 v1, s[{SWS}:{SWS+3}], s80 offen sc1 lds
s_add_u32 s80, s80, 1024""")
        e("L_NOHELP:")

def l2_prefetch(e, sbase, nlines, nshare, share_sgpr, share_mask, ninstr, vtmp=12, vdst=15):
    per = -(-nlines // nshare)
    e(f"""s_and_b32 s80, {share_sgpr}, {share_mask}
s_mul_i32 s80, s80, {per*128}
s_add_u32 s80, s80, s{sbase}
v_lshlrev_b32 v{vtmp}, 7, v0""")
    for i in range(ninstr):
        if i * 64 < per and per - i * 64 < 64:
            e(f"v_min_u32 v{vtmp}, {(per - i*64 - 1)*128}, v{vtmp}")
        e(f"buffer_load_dword v{vdst}, v{vtmp}, s[{SWS}:{SWS+3}], s80 offen sc1")
        if i * 64 + 64 < per: e(f"s_add_u32 s80, s80, 8192")

def gen_gather_setup(e, W=84, T='', start=1):
    e(f"""s_lshr_b32 s80, s2, 3
s_and_b32 s81, s80, 7
s_lshr_b32 s80, s80, 3
v_mov_b32 v17, 0x10000000
s_mov_b32 s{sGo}, {128*start}
s_mov_b32 s{sGinc}, 128
s_mov_b32 s{SG}, s{SX}
s_mov_b32 s{SG+1}, s{SX+1}
s_mov_b32 s{SG+2}, 2621440
s_mov_b32 s{SG+3}, 0x20000
s_cmp_eq_u32 s{W}, 0
s_cbranch_scc0 L_GS_1{T}
s_lshl_b32 s80, s80, 5
s_lshl_b32 s82, s{sRB}, 7
s_add_u32 s80, s80, s82
v_add_u32 v16, s80, v0
v_mul_u32_u24 v16, 1280, v16
v_cmp_gt_u32 vcc, 32, v0
v_cndmask_b32 v17, v17, v16, vcc
s_branch L_GS_done{T}
L_GS_1{T}:
s_cmp_ge_u32 s{W}, 3
s_cbranch_scc1 L_GS_done{T}
s_cmp_eq_u32 s{sISU}, 1
s_cbranch_scc1 L_GS_U{T}
s_cmp_eq_u32 s{W}, 1
s_cbranch_scc0 L_GS_done{T}
s_mov_b32 s{SG}, s{P_W1}
s_mov_b32 s{SG+1}, s{P_W1+1}
s_mov_b32 s{SG+2}, 2211840
s_mul_i32 s{sGo}, s{sJ}, 384
s_add_u32 s{sGo}, s{sGo}, {64*3456*start}
s_mov_b32 s{sGinc}, {64*3456}
v_mul_u32_u24 v16, 43, v0
v_lshrrev_b32 v16, 7, v16
v_mul_u32_u24 v15, 3, v16
v_sub_u32 v15, v0, v15
s_lshl_b32 s81, s81, 3
v_add_u32 v16, s81, v16
v_mul_u32_u24 v16, 3456, v16
v_lshlrev_b32 v15, 7, v15
v_add_u32 v16, v16, v15
v_cmp_gt_u32 vcc, 24, v0
v_cndmask_b32 v17, v17, v16, vcc
s_branch L_GS_done{T}
L_GS_U{T}:
s_cmp_eq_u32 s{W}, 1
s_cselect_b32 s{SG}, s{P_BRE}, s{P_BIM}
s_cselect_b32 s{SG+1}, s{P_BRE+1}, s{P_BIM+1}
s_mov_b32 s{SG+2}, 819200
s_mul_i32 s80, s{sJ}, 96
s_mul_i32 s81, s81, 12
s_add_u32 s80, s80, s81
v_add_u32 v16, s80, v0
v_min_u32 v16, 639, v16
v_mul_u32_u24 v16, 1280, v16
v_cmp_gt_u32 vcc, 12, v0
v_cndmask_b32 v17, v17, v16, vcc
L_GS_done{T}:""")
    if not opt.gloop: e("v_mov_b32 v17, 0x10000000")

def gen_unit_ids(e, W):
    e(f"""s_cmp_ge_u32 s2, 108
s_cbranch_scc1 L_UID_C
s_lshr_b32 s3, s2, 1
s_and_b32 s35, s2, 1
s_lshl_b32 s35, s35, 2
s_add_u32 s35, s35, s{W}
s_branch L_UID_done
L_UID_C:
s_sub_u32 s80, s2, 108
s_and_b32 s35, s80, 7
s_lshr_b32 s80, s80, 3
s_lshl_b32 s3, s80, 2
s_add_u32 s3, s3, s{W}
s_add_u32 s3, s3, 54
L_UID_done:""")

def gen_prep_gather(e):
    e("""s_cmp_ge_u32 s2, 108
s_cbranch_scc1 L_UID_C
s_lshr_b32 s3, s2, 1
s_and_b32 s35, s2, 1
s_lshl_b32 s35, s35, 2
s_add_u32 s35, s35, s84
s_branch L_UID_done
L_UID_C:
s_sub_u32 s80, s2, 108
s_and_b32 s35, s80, 7
s_lshr_b32 s80, s80, 3
s_lshl_b32 s3, s80, 2
s_add_u32 s3, s3, s84
s_add_u32 s3, s3, 54
L_UID_done:""")
    e(f"""s_cmp_ge_u32 s3, 54
s_cbranch_scc1 L_PG_C""")
    srd(e, STA, P_W2, 2211840)
    e(f"""v_mul_u32_u24 v10, 52, v0
v_lshrrev_b32 v10, 8, v10
v_mul_u32_u24 v11, 5, v10
v_sub_u32 v11, v0, v11
s_lshl_b32 s80, s84, 3
v_add_u32 v10, s80, v10
v_mul_u32_u24 v10, 1280, v10
v_lshlrev_b32 v11, 7, v11
v_add_u32 v10, v10, v11
v_mov_b32 v11, 0x10000000
v_cmp_gt_u32 vcc, 40, v0
v_cndmask_b32 v10, v11, v10, vcc
s_mul_i32 s80, s3, {32*1280}
s_and_b32 s81, s2, 1
s_mul_i32 s81, s81, 640
s_add_u32 s80, s80, s81
buffer_load_dword v18, v10, s[{STA}:{STA+3}], s80 offen
buffer_load_dword v18, v11, s[{STA}:{STA+3}], s80 offen
s_branch L_PG_done
L_PG_C:""")
    srd(e, STA, P_CRE, 819200)
    srd(e, STB, P_CIM, 819200)
    e(f"""s_mul_i32 s81, s35, 80
s_mul_i32 s80, s84, 20
s_add_u32 s81, s81, s80
v_add_u32 v10, s81, v0
v_mul_u32_u24 v10, 1280, v10
v_mov_b32 v11, 0x10000000
v_cmp_gt_u32 vcc, 20, v0
v_cndmask_b32 v10, v11, v10, vcc
s_sub_u32 s80, s3, 54
s_lshr_b32 s80, s80, 2
s_min_u32 s80, s80, 9
s_lshl_b32 s80, s80, 7
buffer_load_dword v18, v10, s[{STA}:{STA+3}], s80 offen
buffer_load_dword v18, v10, s[{STB}:{STB+3}], s80 offen
L_PG_done:""")

def gen_lambda_table(e, part):
    L1, L2, L4, L8, L16, L32, L48, L64, L128, L256, L512, L1024, C2 = 30, 32, 34, 36, 38, 40, 42, 44, 46, 48, 50, 52, 54
    if part == 0:
        e(f"""v_lshlrev_b32 v20, 16, v20
v_lshlrev_b32 v21, 16, v21
v_lshlrev_b32 v22, 16, v22
v_mul_f32 v23, 0x3fb8aa3b, v22
v_exp_f32 v23, v23
s_nop 0
v_cvt_pk_bf16_f32 v23, v23, v23
v_and_b32 v23, 0xffff0000, v23
v_mul_f32 v24, v23, v20
v_mul_f32 v25, v23, v21
v_mul_f32 v24, 0x3fb8aa3b, v24
v_exp_f32 v24, v24
v_mul_f32 v25, 0.15915494, v25
v_fract_f32 v25, v25
v_sin_f32 v26, v25
v_cos_f32 v27, v25
s_nop 0
v_mul_f32 v31, v24, v26
v_mul_f32 v30, v24, v27""")
        csq(e, L2, L1); csq(e, L4, L2); csq(e, L8, L4); csq(e, L16, L8); csq(e, L32, L16)
        cmul(e, L48, L32, L16, None)
        csq(e, L64, L32); csq(e, L128, L64)
        return
    csq(e, L256, L128); csq(e, L512, L256); csq(e, L1024, L512)
    e(f"""v_add_f32 v56, -1.0, v30
v_mul_f32 v57, v20, v20
v_fma_f32 v57, v21, v21, v57
v_rcp_f32 v57, v57
v_mul_f32 v58, v56, v20
v_fma_f32 v58, v31, v21, v58
v_mul_f32 v59, v31, v20
v_fma_f32 v59, -v56, v21, v59
v_add_f32 v57, v57, v57
v_mul_f32 v{C2}, v58, v57
v_mul_f32 v{C2+1}, v59, v57
v_mov_b32 v60, 1.0
v_mov_b32 v61, 0""")
    ents = [L1, L8, 60, L16, L32, L48, L64, L128, L512, L1024, C2]
    for i, r in enumerate(ents):
        e(f"ds_write_b64 v62, v[{r}:{r+1}] offset:{i*768}")
    e("s_waitcnt lgkmcnt(0)")

ACC = 64
SETA, SETB = 160, 200
def acc_ffn(ft, tt): return ACC + (ft * 4 + tt) * 4
def acc_u(i, tp): return ACC + (i * 6 + tp) * 4

def reads(kind, st, ks):
    L = []
    vX = 2 + ks
    if kind == 'F':
        xs = [f"ds_read_b128 {R(st + 4*t)}, v{vX} offset:{t*2048}" for t in range(4)]
        ws = []
        for ft in range(6):
            for h in range(2):
                ws.append(f"ds_read_b64_tr_b16 v[{st+16+4*ft+2*h}:{st+16+4*ft+2*h+1}], v{4+ft} offset:{ks*12288 + h*1536}")
        L = ws[:2] + xs + ws[2:]
    else:
        vW = 4 + ks
        xs = [f"ds_read_b128 {R(st + 4*t)}, v{vX} offset:{t*2048}" for t in range(4)]
        ws = [f"ds_read_b128 {R(st + 16 + 4*t)}, v{vW} offset:{t*2048}" for t in range(6)]
        L = [ws[0]] + xs + ws[1:]
    return L

def mfmas(kind, st, first=False):
    L = []
    for n in range(6):
        for t in range(4):
            if kind == 'F':
                d = acc_ffn(n, t)
                c = R(16 + 20 + 4*n) if first else R(d)
                L.append(f"v_mfma_f32_16x16x32_bf16 {R(d)}, {R(st+16+4*n)}, {R(st+4*t)}, {c}")
            else:
                d = acc_u(t, n)
                c = "0" if first else R(d)
                L.append(f"v_mfma_f32_16x16x32_bf16 {R(d)}, {R(st+4*t)}, {R(st+16+4*n)}, {c}")
    return L

def gen_prep_issue(e, W=84, D=116):
    e(f"""s_cmp_ge_u32 s3, 54
s_cbranch_scc1 L_PREP_C""")
    srd(e, STA, P_W2, 2211840)
    e(f"""s_mul_i32 s80, s3, {32*1280}
s_mul_i32 s81, s35, 160
s_add_u32 s80, s80, s81
s_mul_i32 s81, s{W}, 5120
s_add_u32 s81, s81, {LDS_PREP}""")
    for n in range(5):
        e(f"""v_add_u32 v10, {64*n}, v0
v_mul_u32_u24 v11, 205, v10
v_lshrrev_b32 v11, 11, v11
v_mul_u32_u24 v12, 10, v11
v_sub_u32 v12, v10, v12
v_mul_u32_u24 v11, 1280, v11
v_lshlrev_b32 v12, 4, v12
v_add_u32 v11, v11, v12
s_add_u32 m0, s81, {n*1024}
buffer_load_dwordx4 v11, s[{STA}:{STA+3}], s80 offen lds""")
    e("v_mov_b32 v11, 0x10000000")
    for n in range(5):
        e(f"buffer_load_dword v{D}, v11, s[{STA}:{STA+3}], s80 offen")
    e("s_branch L_PREP_issued")
    e("L_PREP_C:")
    srd(e, STA, P_CRE, 819200)
    srd(e, STB, P_CIM, 819200)
    e(f"""v_and_b32 v10, 15, v0
v_mul_u32_u24 v10, 1280, v10
v_lshrrev_b32 v11, 4, v0
v_lshlrev_b32 v11, 3, v11
v_add_u32 v10, v10, v11
s_sub_u32 s80, s3, 54
s_min_u32 s80, s80, 39
s_lshl_b32 s80, s80, 5
s_mul_i32 s81, s35, {80*1280}
s_add_u32 s80, s80, s81""")
    for dt in range(5):
        e(f"buffer_load_dwordx2 v[{D+4*dt}:{D+1+4*dt}], v10, s[{STA}:{STA+3}], s80 offen")
        e(f"buffer_load_dwordx2 v[{D+2+4*dt}:{D+3+4*dt}], v10, s[{STB}:{STB+3}], s80 offen")
        if dt < 4: e(f"s_add_u32 s80, s80, {16*1280}")
    e("L_PREP_issued:")

def gen_prep_finish(e, W=84, D=116, T=''):
    e(f"""s_cmp_ge_u32 s3, 54
s_cbranch_scc1 L_PF_store{T}
v_lshrrev_b32 v10, 4, v0
v_lshlrev_b32 v10, 2, v10
v_bfe_u32 v11, v0, 2, 2
v_add_u32 v10, v10, v11
v_mul_u32_u24 v10, 160, v10
v_and_b32 v11, 3, v0
v_lshlrev_b32 v11, 3, v11
v_add_u32 v10, v10, v11
s_mul_i32 s81, s{W}, 5120
s_add_u32 s81, s81, {LDS_PREP}
v_add_u32 v10, s81, v10""")
    for dt in range(5):
        for h in range(2):
            e(f"ds_read_b64_tr_b16 v[{D+4*dt+2*h}:{D+1+4*dt+2*h}], v10 offset:{dt*32 + h*16*160}")
    e("s_waitcnt lgkmcnt(0)")
    e(f"L_PF_store{T}:")
    e(f"""s_mul_i32 s80, s35, 94
s_add_u32 s80, s80, s3
s_mul_i32 s80, s80, 5120
s_add_u32 s80, s80, {WF_OFF}
v_lshlrev_b32 v10, 4, v0
v_mov_b32 v11, 0x10000000
s_cmp_ge_u32 s3, 94
s_cselect_b32 s81, 1, 0
v_mov_b32 v12, s81
v_cmp_eq_u32 vcc, 1, v12
v_cndmask_b32 v10, v10, v11, vcc""")
    for dt in range(5):
        if dt < 4:
            e(f"buffer_store_dwordx4 {R(D+4*dt)}, v10, s[{SWS}:{SWS+3}], s80 offen offset:{dt*1024} sc1")
        else:
            e(f"s_add_u32 s80, s80, 4096")
            e(f"buffer_store_dwordx4 {R(D+4*dt)}, v10, s[{SWS}:{SWS+3}], s80 offen sc1")

def gen_prep_flag(e):
    e(f"""s_lshl_b32 s80, s35, 9
s_lshl_b32 s81, s3, 2
s_add_u32 s80, s80, s81
s_add_u32 s80, s80, {WFLAG_OFF}
v_mov_b32 v10, s{sNONCE}
s_cmp_ge_u32 s3, 94
s_cselect_b32 s81, 0x10000000, 0
v_mov_b32 v11, s81
s_mov_b64 exec, 1
buffer_store_dword v10, v11, s[{SWS}:{SWS+3}], s80 offen sc0 sc1
s_mov_b64 exec, -1""")

def interleave2(e, A, B, per):
    bi = 0
    for i, a in enumerate(A):
        e(a)
        for _ in range(per[i] if i < len(per) else 0):
            if bi < len(B): e(B[bi]); bi += 1
    while bi < len(B):
        e(B[bi]); bi += 1

def gen_main_loop(e, kind):
    tag = kind
    naddr = [2, 3] + ([4, 5, 6, 7, 8, 9] if kind == 'F' else [4, 5])
    sIT, sDELTA, sSLOT = 86, 87, 88
    def adv_list():
        L = [f"s_add_u32 s{sSLOT}, s{sSLOT}, 1", f"s_cmp_eq_u32 s{sSLOT}, 3",
             f"s_cselect_b32 s{sDELTA}, s90, s89", f"s_cselect_b32 s{sSLOT}, 0, s{sSLOT}"]
        L += [f"v_add_u32 v{v}, s{sDELTA}, v{v}" for v in naddr]
        return L
    e(f"s_mov_b32 s{sIT}, 1\ns_mov_b32 s{sSLOT}, 0\ns_mov_b32 s89, {SLOT}\ns_mov_b32 s90, {-2*SLOT & 0xffffffff}")
    if opt.itstamps:
        e(f"s_memtime s[100:101]\ns_waitcnt lgkmcnt(0)\nv_writelane_b32 v250, s100, 10")
    e("s_waitcnt lgkmcnt(0)\ns_barrier")
    if opt.itstamps:
        e(f"s_memtime s[100:101]\ns_waitcnt lgkmcnt(0)\nv_writelane_b32 v250, s100, 0")
    for r in reads(kind, SETA, 0): e(r)
    e("s_waitcnt lgkmcnt(0)")
    rb = reads(kind, SETB, 1)
    items = rb + adv_list()
    nr = len(rb)
    def perlist(nr, nextra):
        per = [1] * 24
        rem = 24 - nr
        per = [1] * nr + [0] * rem
        k = nextra; i = nr
        while k > 0:
            per[i] += 1; k -= 1; i += 1
            if i == 24: i = max(nr, 8)
        return per
    interleave2(e, mfmas(kind, SETA, first=True), items, perlist(nr, len(items) - nr))
    e("s_waitcnt lgkmcnt(0)")
    e(f"L_ML_{tag}:")
    e("s_barrier")
    if opt.itstamps:
        e(f"s_memtime s[100:101]\ns_waitcnt lgkmcnt(0)\ns_mov_b32 m0, s{sIT}\nv_writelane_b32 v250, s100, m0")
    ra = reads(kind, SETA, 0)
    interleave2(e, mfmas(kind, SETB), ra, [1] * 24)
    e(f"""s_cmp_eq_u32 s{sIT}, 1
s_cbranch_scc0 L_ML_h1_{tag}
buffer_load_dword v249, v248, s[{STA}:{STA+3}], 0 offen
L_ML_h1_{tag}:
s_cmp_eq_u32 s{sIT}, 4
s_cbranch_scc0 L_ML_h2_{tag}
s_waitcnt vmcnt(0)
v_readfirstlane_b32 s{sNONCE}, v249
s_cmp_eq_u32 s{sNONCE}, 0
s_cbranch_scc0 L_ML_h2b_{tag}""")
    spin_nonce(e, 'H' + tag, 10)
    e(f"L_ML_h2b_{tag}:")
    gen_prep_flag(e)
    e(f"L_ML_h2_{tag}:")
    e("s_waitcnt lgkmcnt(0)")
    items = rb + adv_list() + [f"s_add_u32 s{sIT}, s{sIT}, 1", f"s_cmp_lt_u32 s{sIT}, 10"]
    interleave2(e, mfmas(kind, SETA), items, perlist(nr, len(items) - nr))
    e(f"""s_waitcnt lgkmcnt(0)
s_cbranch_scc1 L_ML_{tag}""")
    lds_count(e, 24, 10)
    e(f"""s_mul_i32 s87, s{sWAVE}, 10
s_add_u32 s87, s87, 54
s_lshl_b32 s89, s{sCB}, 9
s_lshl_b32 s90, s87, 2
s_add_u32 s89, s89, s90
s_add_u32 s35, s89, {WFLAG_OFF}
v_lshlrev_b32 v8, 2, v0
buffer_load_dword v1, v8, s[{SWS}:{SWS+3}], s35 offen sc1""")
    for m in mfmas(kind, SETB): e(m)
    if opt.itstamps:
        e(f"""s_memtime s[100:101]
s_waitcnt lgkmcnt(0)
v_writelane_b32 v250, s100, 11
s_lshl_b32 s98, s2, 3
s_add_u32 s98, s98, s{sWAVE}
s_lshl_b32 s98, s98, 6
s_add_u32 s98, s98, {STAMP_OFF + 0x40000}
v_lshlrev_b32 v251, 2, v0
s_mov_b64 exec, 0xffff
buffer_store_dword v250, v251, s[{SWS}:{SWS+3}], s98 offen
s_mov_b64 exec, -1""")

def tile_flag(e, tag):
    nyoung = 0
    if opt.wearly:
        ssm_w_setup(e, tag)
        nyoung = SSM_W_OPS()
    e(f"""s_waitcnt vmcnt({nyoung})
s_lshr_b32 s80, s{sWAVE}, 1
s_lshl_b32 s81, s{sRB}, 1
s_add_u32 s80, s80, s81
s_lshl_b32 s80, s80, 9
s_lshl_b32 s81, s{sCOL}, 1
s_and_b32 s82, s{sWAVE}, 1
s_add_u32 s81, s81, s82
s_and_b32 s82, s81, 3
s_lshl_b32 s82, s82, 7
s_lshr_b32 s81, s81, 2
s_lshl_b32 s81, s81, 2
s_add_u32 s80, s80, s81
s_add_u32 s80, s80, s82
s_add_u32 s80, s80, {TFLAG_OFF}
v_mov_b32 v10, s{sNONCE}
v_mov_b32 v11, 0
s_mov_b64 exec, 1
buffer_store_dword v10, v11, s[{SWS}:{SWS+3}], s80 offen sc0 sc1
s_mov_b64 exec, -1""")
    if opt.eprio: e("s_setprio 0")

def SSM_W_OPS():
    nsh = 8 if opt.map2 == 1 else 4
    ng = (-(-(-(-10 * 40 // nsh)) // 64)) if opt.gw else 0
    return NW * 5 + NLS * 5 + ng

def ssm_w_setup(e, tag):
    e(f"""s_waitcnt vmcnt(12)
s_mul_i32 s87, s{sWAVE}, 10
s_add_u32 s87, s87, 54
v_cmp_ne_u32 vcc, s{sNONCE}, v1
v_lshlrev_b32 v1, 4, v0
v_lshlrev_b32 v8, 2, v0
s_and_b32 s80, vcc_lo, 0x3ff
s_cbranch_scc0 L_SSM_wok{tag}""")
    poll_flags(e, 'SW' + tag, 8, 10, 35, 0x3ff)
    e(f"""L_SSM_wok{tag}:
s_mul_i32 s84, s{sCB}, 94
s_add_u32 s84, s84, s87
s_mul_i32 s84, s84, 5120
s_add_u32 s84, s84, {WF_OFF}
s_mul_i32 s85, s{sRB2}, 94
s_add_u32 s85, s85, s87
s_lshl_b32 s85, s85, 12
s_mul_i32 s88, s{sWAVE}, 15360
s_add_u32 s88, s88, {LDS_Y}
v_add_u32 v3, s88, v1""")
    rot_setup(e, 10, True)
    rot_act(e)
    if opt.sorder:
        e(f"s_cmp_eq_u32 s{sISU}, 1\ns_cbranch_scc1 L_SSM_noord{tag}")
        lds_wait_ge(e, 'O' + tag, 28, 4, 10)
        e(f"L_SSM_noord{tag}:")
    if opt.sprio: e(f"s_setprio {opt.sprio}")
    if opt.sshelp:
        w_prefetch(e, 10, NLS, 88, do_lds=False)
        e(f"s_cmp_eq_u32 s{sISU}, 1\ns_cbranch_scc1 L_SSM_skiplds{tag}")
        w_lds(e, NLS, 88)
        e(f"s_branch L_SSM_ldsdone{tag}\nL_SSM_skiplds{tag}:\ns_add_u32 s84, s84, {NLS*5120}\nL_SSM_ldsdone{tag}:")
    else:
        w_prefetch(e, 10, NLS, 88)

def x_addr_setup(e):
    e(f"""s_lshr_b32 s80, s{sWAVE}, 1
s_lshl_b32 s80, s80, 13
v_and_b32 v10, 15, v0
v_lshlrev_b32 v10, 7, v10
v_lshrrev_b32 v11, 4, v0
v_and_b32 v12, 7, v0
v_xor_b32 v11, v11, v12
v_lshlrev_b32 v11, 4, v11
v_add_u32 v10, v10, v11
v_add_u32 v2, s80, v10
v_xor_b32 v3, 64, v2""")

def p1_l2_prefetch(e, kind):
    e(f"""s_lshr_b32 s81, s2, 3
s_lshr_b32 s82, s81, 3
s_lshl_b32 s82, s82, 5
s_lshl_b32 s83, s{sRB}, 7
s_add_u32 s82, s82, s83
v_and_b32 v10, 31, v0
v_add_u32 v10, s82, v10
v_mul_u32_u24 v10, 1280, v10
v_lshrrev_b32 v11, 5, v0
s_lshl_b32 s83, s{sWAVE}, 1
s_add_u32 s83, s83, 2
v_add_u32 v11, s83, v11
v_lshlrev_b32 v11, 7, v11
v_add_u32 v10, v10, v11
buffer_load_dword v247, v10, s[{SX}:{SX+3}], 0 offen
s_and_b32 s81, s81, 7""")
    if kind == 'F':
        srd(e, STA, P_W1, 2211840)
        e(f"""s_lshl_b32 s83, s{sWAVE}, 6
v_add_u32 v10, s83, v0
v_mul_u32_u24 v11, 2731, v10
v_lshrrev_b32 v11, 16, v11
v_mul_u32_u24 v12, 24, v11
v_sub_u32 v12, v10, v12
v_mul_u32_u24 v13, 43, v12
v_lshrrev_b32 v13, 7, v13
v_mul_u32_u24 v10, 3, v13
v_sub_u32 v12, v12, v10
v_lshlrev_b32 v11, 6, v11
v_add_u32 v11, v11, v13
s_lshl_b32 s83, s81, 3
s_add_u32 s83, s83, 128
v_add_u32 v11, s83, v11
v_mul_u32_u24 v11, 3456, v11
v_lshlrev_b32 v12, 7, v12
v_add_u32 v11, v11, v12
s_mul_i32 s83, s{sJ}, 384
buffer_load_dword v247, v11, s[{STA}:{STA+3}], s83 offen""")
    else:
        e(f"""s_cmp_ge_u32 s{sWAVE}, 2
s_cselect_b32 s{STA}, s{P_BIM}, s{P_BRE}
s_cselect_b32 s{STA+1}, s{P_BIM+1}, s{P_BRE+1}
s_mov_b32 s{STA+2}, 819200
s_mov_b32 s{STA+3}, 0x20000
s_and_b32 s83, s{sWAVE}, 1
s_lshl_b32 s83, s83, 6
v_add_u32 v10, s83, v0
v_min_u32 v10, 95, v10
v_mul_u32_u24 v11, 171, v10
v_lshrrev_b32 v11, 11, v11
v_mul_u32_u24 v12, 12, v11
v_sub_u32 v12, v10, v12
s_mul_i32 s83, s{sJ}, 96
s_mul_i32 s82, s81, 12
s_add_u32 s83, s83, s82
v_add_u32 v12, s83, v12
v_min_u32 v12, 639, v12
v_mul_u32_u24 v12, 1280, v12
v_add_u32 v11, 2, v11
v_lshlrev_b32 v11, 7, v11
v_add_u32 v12, v12, v11
buffer_load_dword v247, v12, s[{STA}:{STA+3}], 0 offen""")

def consumer_start_loads(e, nbefore):
    gen_gather_setup(e, sWAVE, 'C', 0)
    for _ in range(3):
        e(f"buffer_load_dword v18, v17, s[{SG}:{SG+3}], s{sGo} offen\ns_add_u32 s{sGo}, s{sGo}, s{sGinc}")
    gen_unit_ids(e, sWAVE)
    gen_prep_issue(e, sWAVE, 16)

def consumer_common_setup(e):
    srd(e, STA, P_DBG, 256)
    e("v_mov_b32 v248, 0")

def gen_consumer_ffn(e):
    e("L_CONS_F:")
    srd(e, STB, P_B1, 3456)
    e(f"""s_mul_i32 s80, s{sJ}, 384
s_and_b32 s81, s{sWAVE}, 1
s_mul_i32 s81, s81, 192
s_add_u32 s80, s80, s81
v_lshrrev_b32 v10, 4, v0
v_lshlrev_b32 v10, 3, v10""")
    for ft in range(6):
        e(f"buffer_load_dwordx2 v[{224+2*ft}:{225+2*ft}], v10, s[{STB}:{STB+3}], s80 offen offset:{32*ft}")

    x_addr_setup(e)
    e(f"""v_lshrrev_b32 v10, 4, v0
v_bfe_u32 v11, v0, 2, 2
v_lshlrev_b32 v12, 3, v10
v_add_u32 v12, v12, v11
v_mul_u32_u24 v12, 384, v12
v_bfe_u32 v13, v0, 3, 1
v_lshlrev_b32 v13, 1, v13
v_and_b32 v14, 1, v10
v_lshlrev_b32 v14, 2, v14
v_or_b32 v13, v13, v14
v_bfe_u32 v14, v0, 1, 1
s_and_b32 s81, s{sWAVE}, 1
s_mul_i32 s81, s81, 12
v_add_u32 v14, s81, v14
v_and_b32 v15, 1, v0
v_lshlrev_b32 v15, 3, v15
v_add_u32 v12, v12, v15
v_add_u32 v12, 16384, v12""")
    for ft in range(6):
        e(f"""v_add_u32 v10, {2*ft}, v14
v_xor_b32 v10, v10, v13
v_lshlrev_b32 v10, 4, v10
v_add_u32 v{4+ft}, v12, v10""")
    e("s_waitcnt vmcnt(0)")
    gen_prep_finish(e, sWAVE, 16, 'F')
    consumer_common_setup(e)
    for ft in range(6):
        b = 36 + 4 * ft
        e(f"""v_lshlrev_b32 v{b}, 16, v{224+2*ft}
v_and_b32 v{b+1}, 0xffff0000, v{224+2*ft}
v_lshlrev_b32 v{b+2}, 16, v{225+2*ft}
v_and_b32 v{b+3}, 0xffff0000, v{225+2*ft}""")
    stamp(e, 0, 14)
    stamp_clk(e, 14, 14)
    gen_main_loop(e, 'F')
    if opt.eprio: e(f"s_setprio {opt.eprio}")
    stamp(e, 1, 14)
    stamp_clk(e, 15, 14)
    e(f"""s_lshr_b32 s80, s{sWAVE}, 1
s_lshl_b32 s81, s{sRB}, 1
s_add_u32 s80, s80, s81
s_mul_i32 s80, s80, 94
s_mul_i32 s81, s{sJ}, 6
s_add_u32 s80, s80, s81
s_and_b32 s81, s{sWAVE}, 1
s_mul_i32 s81, s81, 3
s_add_u32 s80, s80, s81
s_lshl_b32 s80, s80, 12
v_lshlrev_b32 v10, 4, v0""")
    k = 0
    for u in range(3):
        for tt in range(4):
            o = SETA + 4 * k; k += 1
            vals = [acc_ffn(2*u, tt), acc_ffn(2*u+1, tt)]
            tmp = 16
            for h, a in enumerate(vals):
                for r in range(4):
                    e(f"v_max_f32 v{tmp+4*h+r}, 0, v{a+r}")
            for h, a in enumerate(vals):
                for r in range(0, 4, 2):
                    e(f"v_pk_mul_f32 v[{a+r}:{a+r+1}], v[{a+r}:{a+r+1}], v[{tmp+4*h+r}:{tmp+4*h+r+1}]")
            for h, a in enumerate(vals):
                for r in range(0, 4, 2):
                    e(f"v_cvt_pk_bf16_f32 v{o+2*h+(r>>1)}, v{a+r}, v{a+r+1}")
            e(f"buffer_store_dwordx4 {R(o)}, v10, s[{SWS}:{SWS+3}], s80 offen offset:{tt*1024} sc1")
        if u < 2: e("s_add_u32 s80, s80, 4096")
    lds_count(e, 16, 12)
    stamp(e, 2, 14)
    tile_flag(e, 'F')
    stamp(e, 3, 14)
    e("s_branch L_SSM_P2")

def gen_code_prefetch(e):
    e(f"""s_cmp_eq_u32 s{sWAVE}, 3
s_cbranch_scc0 L_CPF_done
s_getpc_b64 s[80:81]
L_CPF_pc:
s_sub_u32 s80, s80, L_CPF_pc-{NAME}
s_subb_u32 s81, s81, 0
s_lshr_b32 s82, s2, 3
s_lshl_b32 s82, s82, 11
v_and_b32 v10, 15, v0
v_lshlrev_b32 v10, 7, v10
v_add_u32 v10, s82, v10
v_min_u32 v10, L_CODE_END-{NAME}-4, v10
s_mov_b64 exec, 0xffff
global_load_dword v19, v10, s[80:81]
s_mov_b64 exec, -1
L_CPF_done:""")

def gen_consumer(e):
    e(f"""v_mov_b32 v10, {LDS_FLAG}
v_mov_b32 v12, 0
v_mov_b32 v13, 0
v_mov_b32 v14, 0
v_mov_b32 v15, 0
ds_write_b128 v10, v[12:15]
ds_write_b128 v10, v[12:15] offset:16""")
    if opt.cpf: gen_code_prefetch(e)
    consumer_start_loads(e, 0)
    e(f"""s_cmp_eq_u32 s{sISU}, 1
s_cbranch_scc1 L_CONS_U""")
    gen_consumer_ffn(e)
    gen_consumer_u(e)

def pk(op, d, a, b, c=None, bsel=None, neg=False):
    assert bsel == 0, "op_sel hi-broadcast is unsafe next to MFMA (measured)"
    n = 3 if c is not None else 2
    sel = [0, bsel] + ([0] if c is not None else [])
    selh = [1, bsel] + ([1] if c is not None else [])
    s = f"{op} v[{d}:{d+1}], v[{a}:{a+1}], v[{b}:{b+1}]" + (f", v[{c}:{c+1}]" if c is not None else "")
    s += " op_sel:[" + ",".join(map(str, sel)) + "] op_sel_hi:[" + ",".join(map(str, selh)) + "]"
    if neg:
        ng = [0, 1] + ([0] if c is not None else [])
        s += " neg_lo:[" + ",".join(map(str, ng)) + "] neg_hi:[" + ",".join(map(str, ng)) + "]"
    return s

def gen_consumer_u(e):
    e("L_CONS_U:")
    x_addr_setup(e)
    e(f"""s_and_b32 s81, s{sWAVE}, 1
s_mul_i32 s81, s81, {96*128}
s_add_u32 s81, s81, 16384
v_add_u32 v4, s81, v10
v_xor_b32 v5, 64, v4""")
    e("s_waitcnt vmcnt(0)")
    gen_prep_finish(e, sWAVE, 16, 'U')
    consumer_common_setup(e)
    stamp(e, 0, 14)
    gen_main_loop(e, 'U')
    if opt.eprio: e(f"s_setprio {opt.eprio}")
    stamp(e, 1, 14)
    def K(ct, i): return 160 + 18 * ct + 2 * i
    LAM, L8, L16, L16Q, L64, L128, L512, L1024, C2 = range(9)
    ent = {LAM: 0, L8: 1, L16: 3, L64: 6, L128: 7, L512: 8, L1024: 9, C2: 10}
    e(f"""s_and_b32 s81, s{sWAVE}, 1
s_mul_i32 s81, s81, {48*8}
s_add_u32 s81, s81, {LDS_TAB}
v_and_b32 v10, 15, v0
v_lshlrev_b32 v10, 3, v10
v_add_u32 v10, s81, v10
v_lshrrev_b32 v11, 4, v0
v_mul_u32_u24 v11, 768, v11
v_add_u32 v11, v11, v10""")
    for ct in range(3):
        for k, en in ent.items():
            e(f"ds_read_b64 v[{K(ct,k)}:{K(ct,k)+1}], v10 offset:{en*768 + ct*128}")
        e(f"ds_read_b64 v[{K(ct,L16Q)}:{K(ct,L16Q)+1}], v11 offset:{2*768 + ct*128}")
    e("s_waitcnt lgkmcnt(0)")
    LI = [2, 252, 254]
    C2I = [16, 18, 20]
    for ct in range(3):
        e(f"v_mov_b32 v{LI[ct]}, v{K(ct, LAM)+1}")
    def U(n, ct, part):
        return acc_u(n >> 1, 2 * ct + part) + 2 * (n & 1)
    def Er(ct, s): return 16 + 8 * ct + 4 * s
    def Ei(ct, s): return 18 + 8 * ct + 4 * s
    for n in range(1, 8):
        src = (n - 1) & 1; dst = n & 1
        for ct in range(3):
            pr = U(0, ct, 0) if n == 1 else Er(ct, src)
            pi = U(0, ct, 1) if n == 1 else Ei(ct, src)
            e(pk("v_pk_fma_f32", Er(ct, dst), pr, K(ct, LAM), U(n, ct, 0), 0))
            e(pk("v_pk_fma_f32", Ei(ct, dst), pi, K(ct, LAM), U(n, ct, 1), 0))
        for ct in range(3):
            pr = U(0, ct, 0) if n == 1 else Er(ct, src)
            pi = U(0, ct, 1) if n == 1 else Ei(ct, src)
            e(pk("v_pk_fma_f32", Er(ct, dst), pi, LI[ct], Er(ct, dst), 0, neg=True))
            e(pk("v_pk_fma_f32", Ei(ct, dst), pr, LI[ct], Ei(ct, dst), 0))
    def LL(ct): return 16 + 8 * ct
    for ct in range(3):
        er, ei, l8 = Er(ct, 1), Ei(ct, 1), K(ct, L8)
        e(f"""v_fma_f32 v{LL(ct)}, v{l8}, v{er}, v{er+1}
v_fma_f32 v{LL(ct)+1}, v{l8}, v{ei}, v{ei+1}
v_fma_f32 v{LL(ct)}, -v{l8+1}, v{ei}, v{LL(ct)}
v_fma_f32 v{LL(ct)+1}, v{l8+1}, v{er}, v{LL(ct)+1}""")
    def G(ct, q): return 214 + 8 * ct + 2 * q
    for ct in range(3):
        for c in range(2):
            a, b, a2, b2 = G(ct, 0) + c, G(ct, 1) + c, G(ct, 2) + c, G(ct, 3) + c
            e(f"""v_mov_b32 v{a}, v{LL(ct)+c}
v_mov_b32 v{b}, v{LL(ct)+c}
v_permlane16_swap_b32 v{a}, v{b}
v_mov_b32 v{a2}, v{a}
v_mov_b32 v{b2}, v{b}
v_permlane32_swap_b32 v{a}, v{a2}
v_permlane32_swap_b32 v{b}, v{b2}""")
    for ct in range(3):
        cfma(e, G(ct, 1), K(ct, L16), G(ct, 0), G(ct, 1))
    for ct in range(3):
        cfma(e, G(ct, 2), K(ct, L16), G(ct, 1), G(ct, 2))
    for ct in range(3):
        cfma(e, G(ct, 3), K(ct, L16), G(ct, 2), G(ct, 3))
    e(f"""s_mov_b32 s80, 0xffff0000
s_mov_b32 s81, 0
s_mov_b32 s82, 0
s_mov_b32 s83, 0x0000ffff
s_mov_b32 s90, 0
s_mov_b32 s91, 0xffff0000""")
    for ct in range(3):
        for c in range(2):
            e(f"""v_cndmask_b32 v{LL(ct)+c}, 0, v{G(ct,0)+c}, s[80:81]
v_cndmask_b32 v{LL(ct)+c}, v{LL(ct)+c}, v{G(ct,1)+c}, s[82:83]
v_cndmask_b32 v{LL(ct)+c}, v{LL(ct)+c}, v{G(ct,2)+c}, s[90:91]""")
    e(f"""s_and_b32 s84, s{sWAVE}, 1
s_mul_i32 s85, s84, {48*8}
s_add_u32 s85, s85, {LDS_LX}
v_and_b32 v10, 15, v0
v_lshlrev_b32 v10, 3, v10
v_add_u32 v10, s85, v10
s_lshl_b32 s85, s84, 2
s_add_u32 s85, s85, {LDS_FLAG}
v_mov_b32 v11, s85
s_cmp_ge_u32 s{sWAVE}, 2
s_cbranch_scc1 L_U_wt1""")
    for ct in range(3):
        e(f"ds_write_b64 v10, v[{G(ct,3)}:{G(ct,3)+1}] offset:{ct*128}")
    e(f"""v_mov_b32 v12, 1
s_waitcnt lgkmcnt(0)
ds_write_b32 v11, v12
s_branch L_U_lb
L_U_wt1:
s_mov_b32 s85, 0
L_U_pairwait:
ds_read_b32 v12, v11
s_add_u32 s85, s85, 1
s_waitcnt lgkmcnt(0)
v_readfirstlane_b32 s86, v12
s_cmp_ge_u32 s85, {opt.spin_limit}
s_cbranch_scc1 L_U_pairok
s_cmp_eq_u32 s86, 0
s_cbranch_scc1 L_U_pairwait
L_U_pairok:""")
    for ct in range(3):
        e(f"ds_read_b64 v[{G(ct,0)}:{G(ct,0)+1}], v10 offset:{ct*128}")
    e("s_waitcnt lgkmcnt(0)")
    for ct in range(3):
        cfma(e, G(ct, 1), K(ct, L64), G(ct, 0), G(ct, 3))
    e(f"""s_mov_b32 s80, 0xffff0000
s_mov_b32 s81, 0
s_mov_b32 s82, 0
s_mov_b32 s83, 0x0000ffff
v_cndmask_b32 v240, v{G(0,1)}, v{G(1,1)}, s[80:81]
v_cndmask_b32 v241, v{G(0,1)+1}, v{G(1,1)+1}, s[80:81]
v_cndmask_b32 v240, v240, v{G(2,1)}, s[82:83]
v_cndmask_b32 v241, v241, v{G(2,1)+1}, s[82:83]
v_mov_b32 v242, s{sNONCE}
v_mov_b32 v243, s{sNONCE}
s_mul_i32 s85, s{sJ}, 16
s_add_u32 s85, s85, s{sRB}
s_mul_i32 s85, s85, 96
s_mul_i32 s86, s84, 48
s_add_u32 s85, s85, s86
s_lshl_b32 s85, s85, 4
s_add_u32 s85, s85, {AG_OFF}
v_lshlrev_b32 v12, 4, v0
s_mov_b32 exec_lo, -1
s_mov_b32 exec_hi, 0x0000ffff
buffer_store_dwordx4 v[240:243], v12, s[{SWS}:{SWS+3}], s85 offen sc0 sc1
s_mov_b64 exec, -1
L_U_lb:""")
    lds_count(e, 16, 12)
    stamp(e, 2, 14)
    LB = 112 + 0
    lbregs = [40 + 4 * i for i in range(6)] + [240 + 4 * i for i in range(4)] + [32 + 0, 36]
    lbregs = [40 + 4 * i for i in range(6)] + [240, 244, 248] + [216, 224, 232]
    e(f"""s_mul_i32 s85, s{sJ}, {16*96}
s_mul_i32 s86, s84, 48
s_add_u32 s85, s85, s86
s_lshl_b32 s85, s85, 4
s_add_u32 s85, s85, {AG_OFF}
v_lshrrev_b32 v12, 4, v0
v_lshlrev_b32 v12, 2, v12
v_sub_u32 v12, s{sRB}, v12
v_mov_b32 v9, 0x10000000
v_and_b32 v13, 15, v0""")
    for m in range(4):
        e(f"""v_subrev_u32 v14, {1+m}, v12
v_cmp_le_i32 s[{88+2*m}:{89+2*m}], 0, v14
v_mul_u32_u24 v15, 96, v14
v_add_u32 v15, v15, v13
v_lshlrev_b32 v15, 4, v15
v_cndmask_b32 v{4+m}, v9, v15, s[{88+2*m}:{89+2*m}]""")
    e(f"""v_sub_u32 v14, s{sRB}, v0
v_subrev_u32 v14, 1, v14
v_cmp_le_i32 vcc, 0, v14
v_cmp_gt_u32 s[96:97], 16, v0
s_and_b64 s[96:97], s[96:97], vcc
v_mul_u32_u24 v15, 96, v14
v_add_u32 v15, 47, v15
v_lshlrev_b32 v15, 4, v15
v_add_u32 v15, 8, v15
v_cndmask_b32 v8, v9, v15, s[96:97]
s_mov_b32 s86, 0
L_U_cp:
buffer_load_dword v14, v8, s[{SWS}:{SWS+3}], s85 offen sc1
s_add_u32 s86, s86, 1
s_waitcnt vmcnt(0)
v_cmp_ne_u32 vcc, s{sNONCE}, v14
s_cmp_ge_u32 s86, {opt.spin_limit}
s_cbranch_scc1 L_U_cpok
s_and_b64 vcc, vcc, s[96:97]
s_cbranch_scc0 L_U_cpok
s_sleep 2
s_branch L_U_cp
L_U_cpok:""")
    stamp(e, 11, 14)
    e(f"s_mov_b32 s86, 0\nL_U_lbloop:")
    for m in range(4):
        for ct in range(3):
            r = lbregs[m * 3 + ct]
            e(f"buffer_load_dwordx4 {R(r)}, v{4+m}, s[{SWS}:{SWS+3}], s85 offen offset:{ct*256} sc1")
    e("s_add_u32 s86, s86, 1\ns_mov_b64 s[96:97], 0\ns_waitcnt vmcnt(0)")
    for m in range(4):
        for ct in range(3):
            r = lbregs[m * 3 + ct]
            e(f"""v_cmp_ne_u32 vcc, s{sNONCE}, v{r+2}
s_and_b64 vcc, vcc, s[{88+2*m}:{89+2*m}]
s_or_b64 s[96:97], s[96:97], vcc""")
    e(f"""s_cmp_ge_u32 s86, {opt.spin_limit}
s_cbranch_scc1 L_U_lbok
s_cmp_eq_u64 s[96:97], 0
s_cbranch_scc0 L_U_lbloop
L_U_lbok:""")
    def S(m, ct): return lbregs[m * 3 + ct]
    for ct in range(3):
        cfma(e, S(2, ct), K(ct, L128), S(3, ct), S(2, ct))
    for ct in range(3):
        cfma(e, S(1, ct), K(ct, L128), S(2, ct), S(1, ct))
    for ct in range(3):
        cfma(e, S(0, ct), K(ct, L128), S(1, ct), S(0, ct))
    for ct in range(3):
        z, b, t, u = S(0, ct), S(1, ct), S(2, ct), S(3, ct)
        e(f"""v_mov_b32 v{b}, v{z}
v_mov_b32 v{b+1}, v{z+1}
v_permlane16_swap_b32 v{z}, v{b}
v_permlane16_swap_b32 v{z+1}, v{b+1}""")
        cfma(e, t, K(ct, L512), b, z)
        e(f"""v_mov_b32 v{u}, v{t}
v_mov_b32 v{u+1}, v{t+1}
v_permlane32_swap_b32 v{t}, v{u}
v_permlane32_swap_b32 v{t+1}, v{u+1}""")
        cfma(e, z, K(ct, L1024), u, t)
    e(f"s_cmp_ge_u32 s{sWAVE}, 2\ns_cbranch_scc0 L_U_hw0")
    for ct in range(3):
        cfma(e, S(1, ct), K(ct, L64), S(0, ct), G(ct, 0))
    e("s_branch L_U_hw1\nL_U_hw0:")
    for ct in range(3):
        e(f"v_mov_b32 v{S(1,ct)}, v{S(0,ct)}\nv_mov_b32 v{S(1,ct)+1}, v{S(0,ct)+1}")
    e("L_U_hw1:\ns_nop 1")
    for ct in range(3):
        cfma(e, S(2, ct), K(ct, L16Q), S(1, ct), LL(ct))
    for ct in range(3):
        hl, l8, er, ei = S(2, ct), K(ct, L8), Er(ct, 1), Ei(ct, 1)
        cr, ci = S(3, ct), S(3, ct) + 2
        e(f"""v_mov_b32 v{cr}, v{hl}
v_mov_b32 v{ci}, v{hl+1}
v_fma_f32 v{cr+1}, v{l8}, v{hl}, v{er}
v_fma_f32 v{ci+1}, v{l8}, v{hl+1}, v{ei}
v_fma_f32 v{cr+1}, -v{l8+1}, v{hl+1}, v{cr+1}
v_fma_f32 v{ci+1}, v{l8+1}, v{hl}, v{ci+1}""")
    for n in range(8):
        for ct in range(3):
            pr = S(3, ct) if n == 0 else U(n - 1, ct, 0)
            pi = S(3, ct) + 2 if n == 0 else U(n - 1, ct, 1)
            e(pk("v_pk_fma_f32", U(n, ct, 0), pr, K(ct, LAM), U(n, ct, 0), 0))
            e(pk("v_pk_fma_f32", U(n, ct, 1), pi, K(ct, LAM), U(n, ct, 1), 0))
        for ct in range(3):
            pr = S(3, ct) if n == 0 else U(n - 1, ct, 0)
            pi = S(3, ct) + 2 if n == 0 else U(n - 1, ct, 1)
            e(pk("v_pk_fma_f32", U(n, ct, 0), pi, LI[ct], U(n, ct, 0), 0, neg=True))
            e(pk("v_pk_fma_f32", U(n, ct, 1), pr, LI[ct], U(n, ct, 1), 0))
    stamp(e, 3, 14)
    e(f"""v_and_b32 v10, 15, v0
v_lshrrev_b32 v11, 4, v0
v_lshlrev_b32 v11, 3, v11
v_sub_u32 v10, v10, v11""")
    for ct in range(3):
        e(f"v_mov_b32 v{C2I[ct]}, v{K(ct, C2)+1}")
    e("v_mov_b32 v14, 0x3f80\nv_mov_b32 v15, 0x3f800000")
    for b in range(2):
        e(f"v_add_u32 v12, {16*b}, v10")
        for rr in range(4):
            d = 40 + 4 * b + rr
            e(f"""v_cmp_eq_u32 vcc, {2*rr}, v12
v_cndmask_b32 v{d}, 0, v14, vcc
v_cmp_eq_u32 vcc, {2*rr+1}, v12
v_cndmask_b32 v{d}, v{d}, v15, vcc""")
    e(f"""s_lshr_b32 s80, s{sWAVE}, 1
s_lshl_b32 s81, s{sRB}, 1
s_add_u32 s80, s80, s81
s_mul_i32 s80, s80, 94
s_mul_i32 s81, s{sJ}, 6
s_mul_i32 s82, s84, 3
s_add_u32 s81, s81, s82
s_add_u32 s80, s80, s81
s_add_u32 s80, s80, 54
s_lshl_b32 s80, s80, 12
v_lshlrev_b32 v10, 4, v0""")
    for ct in range(3):
        c2 = K(ct, C2)
        for i in range(4):
            if i & 1:
                t0, t1, t2, t3 = 216, 218, 220, 222
                m0, m1, m2, m3 = 4, 6, 8, 12
            else:
                t0, t1, t2, t3 = 208 + 6, 24, 26, 28
                t0 = 22
                m0, m1, m2, m3 = 30, 32, 34, 36
            for s_, (tr, ti, mr, mi) in enumerate(((t0, t2, m0, m2), (t1, t3, m1, m3))):
                n = 2 * i + s_
                hr, hi = U(n, ct, 0), U(n, ct, 1)
                e(pk("v_pk_mul_f32", mr, hr, c2, None, 0))
                e(pk("v_pk_mul_f32", mi, hi, c2, None, 0, neg=True))
            for s_, (tr, ti, mr, mi) in enumerate(((t0, t2, m0, m2), (t1, t3, m1, m3))):
                n = 2 * i + s_
                hr, hi = U(n, ct, 0), U(n, ct, 1)
                e(pk("v_pk_fma_f32", tr, hi, C2I[ct], mr, 0, neg=True))
                e(pk("v_pk_fma_f32", ti, hr, C2I[ct], mi, 0, neg=True))
            e(f"""v_cvt_pk_bf16_f32 v{48+i}, v{t0}, v{t1}
v_cvt_pk_bf16_f32 v{52+i}, v{t0+1}, v{t1+1}
v_cvt_pk_bf16_f32 v{56+i}, v{t2}, v{t3}
v_cvt_pk_bf16_f32 v{60+i}, v{t2+1}, v{t3+1}""")
        def D(part, tt): return 224 + 16 * part + 4 * tt
        for part in range(2):
            for a in range(2):
                for b in range(2):
                    A = 48 + 8 * part + 4 * a
                    e(f"v_mfma_f32_16x16x32_bf16 {R(D(part, 2*b+a))}, {R(A)}, {R(40+4*b)}, 0")
        if True:
            e(f"s_add_u32 s82, s81, {ct}\ns_cmp_ge_u32 s82, 40\ns_cbranch_scc1 L_U_skip{ct}")
            for tt in range(4):
                o = acc_u(tt, 2 * ct)
                dr, di = D(0, tt), D(1, tt)
                e(f"""v_cvt_pk_bf16_f32 v{o}, v{dr}, v{dr+1}
v_cvt_pk_bf16_f32 v{o+1}, v{dr+2}, v{dr+3}
v_cvt_pk_bf16_f32 v{o+2}, v{di}, v{di+1}
v_cvt_pk_bf16_f32 v{o+3}, v{di+2}, v{di+3}
buffer_store_dwordx4 {R(o)}, v10, s[{SWS}:{SWS+3}], s80 offen offset:{tt*1024} sc1""")
            e(f"L_U_skip{ct}:\ns_nop 7\ns_add_u32 s80, s80, 4096")
    stamp(e, 4, 14)
    tile_flag(e, 'U')
    stamp(e, 5, 14)
    e("s_branch L_SSM_P2")

ACC2 = 16
WSL = 96
ASL = 196
NW, NA = 5, 3
def acc2(dt, tt): return ACC2 + (dt * 4 + tt) * 4

def wrap_w(e):
    if not opt.rot: return
    e("""s_sub_u32 s91, s91, 1
s_cmp_eq_u32 s91, 0
s_cselect_b32 s95, s93, 0
s_sub_u32 s84, s84, s95""")

def wrap_a(e):
    if not opt.rot: return
    e("""s_sub_u32 s92, s92, 1
s_cmp_eq_u32 s92, 0
s_cselect_b32 s95, s94, 0
s_sub_u32 s85, s85, s95""")

def rot_setup(e, n_sgpr_or_const, is_const):
    if not opt.rot: return
    if opt.map2 == 1:
        e(f"""s_and_b32 s95, s{sCB}, 3
s_lshl_b32 s95, s95, 1
s_add_u32 s95, s95, s{sRB2}
s_and_b32 s95, s95, 7""")
    else:
        e(f"""s_and_b32 s95, s{sRB2}, 3
s_lshl_b32 s95, s95, 1
s_add_u32 s95, s95, s{sCB}
s_and_b32 s95, s95, 7""")
    n = f"{n_sgpr_or_const}" if is_const else f"s{n_sgpr_or_const}"
    e(f"""s_mul_i32 s90, s95, {n}
s_lshr_b32 s90, s90, 3
s_sub_u32 s91, {n}, s90
s_mov_b32 s92, s91
s_mul_i32 s93, {n}, 5120
s_mul_i32 s94, {n}, 4096
s_mul_i32 s95, s90, 5120
s_add_u32 s84, s84, s95""")

def rot_act(e):
    if not opt.rot: return
    e("""s_lshl_b32 s95, s90, 12
s_add_u32 s85, s85, s95""")

def gen_p2_stream(e, tag, nsteps, extra_hook=None):
    queue = []
    def ld_w(s):
        b = WSL + 20 * (s % NW)
        for dt in range(5):
            if dt < 4:
                e(f"buffer_load_dwordx4 {R(b+4*dt)}, v1, s[{SWS}:{SWS+3}], s84 offen offset:{dt*1024} sc1")
            else:
                e(f"s_add_u32 s84, s84, 4096")
                e(f"buffer_load_dwordx4 {R(b+4*dt)}, v1, s[{SWS}:{SWS+3}], s84 offen sc1")
                e(f"s_add_u32 s84, s84, 1024")
            queue.append(('w', s))
        wrap_w(e)
    def ld_a(s):
        b = ASL + 16 * (s % NA)
        for tt in range(4):
            e(f"buffer_load_dwordx4 {R(b+4*tt)}, v1, s[{SWS}:{SWS+3}], s85 offen offset:{tt*1024} sc1")
            queue.append(('a', s))
        e(f"s_add_u32 s85, s85, 4096")
        wrap_a(e)
    return ld_w, ld_a, queue

def p2_role(e, tag, nsteps):
    pass

def emit_stream(e, nsteps, ld_w, ld_a, queue, NL, vL, late_lds=None):
    if opt.ststamps:
        e(f"s_memtime s[100:101]\ns_waitcnt lgkmcnt(0)\nv_writelane_b32 v250, s100, 0")
    for s in range(min(NA, nsteps)): ld_a(s)
    if late_lds is not None: w_lds(e, NL, late_lds, queue)
    for s in range(nsteps):
        idx = [i for i, q in enumerate(queue) if q in (('w', s), ('a', s))]
        inlds = NW <= s < NW + NL
        if idx:
            last = max(idx)
            n = len(queue) - 1 - last
            e(f"s_waitcnt vmcnt({n})" + (" lgkmcnt(0)" if inlds else ""))
            del queue[:last + 1]
        elif inlds:
            e("s_waitcnt lgkmcnt(0)")
        if opt.ststamps:
            e(f"s_memtime s[100:101]\ns_waitcnt lgkmcnt(0)\nv_writelane_b32 v250, s100, {s+1}")
        wb = WSL + 20 * (s % NW); ab = ASL + 16 * (s % NA)
        for dt in range(5):
            for tt in range(4):
                d = acc2(dt, tt)
                c = "0" if s == 0 else R(d)
                e(f"v_mfma_f32_16x16x32_bf16 {R(d)}, {R(wb+4*dt)}, {R(ab+4*tt)}, {c}")
        if s + NA < nsteps: ld_a(s + NA)
        t = s + NW
        if t < nsteps and t >= NW + NL:
            ld_w(t)
        t = s + 2
        if NW <= t < min(NW + NL, nsteps):
            li = [i for i, q in enumerate(queue) if q == ('l', t)]
            if li:
                e(f"s_waitcnt vmcnt({len(queue) - 1 - max(li)})")
                del queue[:max(li) + 1]
            for dt in range(5):
                e(f"ds_read_b128 {R(WSL + 20*(t % NW) + 4*dt)}, v{vL} offset:{(t-NW)*5120 + dt*1024}")

def lds_signal(e, off, vt):
    e(f"""v_mov_b32 v{vt}, {LDS_FLAG + off}
v_mov_b32 v{vt+1}, 1
ds_write_b32 v{vt}, v{vt+1}""")

def lds_count(e, off, vt):
    e(f"""v_mov_b32 v{vt}, {LDS_FLAG + off}
v_mov_b32 v{vt+1}, 1
s_mov_b64 exec, 1
ds_add_u32 v{vt}, v{vt+1}
s_mov_b64 exec, -1""")

def lds_wait_ge(e, tag, off, n, vt):
    e(f"""v_mov_b32 v{vt}, {LDS_FLAG + off}
s_mov_b32 s80, 0
L_lwg_{tag}:
ds_read_b32 v{vt+1}, v{vt}
s_add_u32 s80, s80, 1
s_waitcnt lgkmcnt(0)
v_readfirstlane_b32 s81, v{vt+1}
s_cmp_ge_u32 s80, {opt.spin_limit * 4}
s_cbranch_scc1 L_lwg_done_{tag}
s_cmp_ge_u32 s81, {n}
s_cbranch_scc1 L_lwg_done_{tag}
s_sleep 1
s_branch L_lwg_{tag}
L_lwg_done_{tag}:""")

def lds_wait(e, tag, off, vt):
    e(f"""v_mov_b32 v{vt}, {LDS_FLAG + off}
s_mov_b32 s80, 0
L_lw_{tag}:
ds_read_b32 v{vt+1}, v{vt}
s_add_u32 s80, s80, 1
s_waitcnt lgkmcnt(0)
v_readfirstlane_b32 s81, v{vt+1}
s_cmp_ge_u32 s80, {opt.spin_limit * 4}
s_cbranch_scc1 L_lw_done_{tag}
s_cmp_eq_u32 s81, 0
s_cbranch_scc0 L_lw_done_{tag}
s_sleep 1
s_branch L_lw_{tag}
L_lw_done_{tag}:""")

def gen_p2(e):
    e("L_FFN_P2:")
    e(f"""s_mul_i32 s80, s{sRB2}, 94
s_add_u32 s85, s85, s80
s_lshl_b32 s85, s85, 12
v_add_u32 v3, s87, v1""")
    rot_act(e)
    e(f"""s_mov_b32 s88, s84
s_mov_b32 s84, s86""")
    nsh_ = 8 if opt.map2 == 1 else 4
    ng_ = (-(-(-(-14 * 40 // nsh_)) // 64)) if opt.gw else 0
    e(f"s_waitcnt vmcnt({NLF*5})")
    gen_gate_compute(e)
    e("s_mov_b32 s84, s88")
    ld_w, ld_a, queue = gen_p2_stream(e, 'F', 14)
    stamp(e, 3, 14)
    e(f"s_cmp_eq_u32 s86, 0\ns_cbranch_scc0 L_FFN_lw")
    e(f"""v_and_b32 v2, 3, v0
v_lshlrev_b32 v2, 7, v2
v_lshrrev_b32 v4, 2, v0
v_lshlrev_b32 v4, 2, v4
v_add_u32 v2, v2, v4
s_lshl_b32 s89, s{sRB2}, 9
s_add_u32 s89, s89, {TFLAG_OFF}""")
    poll_flags(e, 'FT', 2, 10, 89, 0x3ffff)
    if opt.sshelp: lds_count(e, 20, 10)
    lds_signal(e, 8, 10)
    e("s_branch L_FFN_go\nL_FFN_lw:\ns_waitcnt vmcnt(0)")
    if opt.sshelp: lds_count(e, 20, 10)
    lds_wait(e, 'F', 8, 10)
    e("L_FFN_go:")
    if opt.prio: e(f"s_setprio {opt.prio}")
    stamp(e, 4, 14)
    if opt.l2pf2: l2_prefetch(e, 85, 14 * 32, 4 if opt.map2 == 1 else 8, f"s{sCB}", 3 if opt.map2 == 1 else 7, 2 if opt.map2 == 1 else 1)
    del queue[:]
    e(f"s_cmp_ge_u32 s86, 2\ns_cbranch_scc1 L_FFN_13")
    emit_stream(e, 14, ld_w, ld_a, queue, NLF, 3, 87 if opt.ldslate else None)
    e("s_branch L_FFN_done")
    e("L_FFN_13:")
    del queue[:]
    emit_stream(e, 13, ld_w, ld_a, queue, NLF, 3, 87 if opt.ldslate else None)
    e("L_FFN_done:")
    if opt.ststamps:
        e(f"""s_memtime s[100:101]
s_waitcnt lgkmcnt(0)
v_writelane_b32 v250, s100, 15
s_lshl_b32 s98, s2, 3
s_add_u32 s98, s98, s{sWAVE}
s_lshl_b32 s98, s98, 6
s_add_u32 s98, s98, {STAMP_OFF + 0x40000}
v_lshlrev_b32 v251, 2, v0
s_mov_b64 exec, 0xffff
buffer_store_dword v250, v251, s[{SWS}:{SWS+3}], s98 offen
s_mov_b64 exec, -1""")
    stamp(e, 5, 14)
    e(f"""s_mul_i32 s80, s86, 20480
v_add_u32 v2, s80, v1""")
    for tt in range(4):
        for dt in range(5):
            e(f"ds_write_b128 v2, {R(acc2(dt,tt))} offset:{LDS_F + (tt*5+dt)*1024}")
    e("s_waitcnt lgkmcnt(0)\ns_barrier")
    stamp(e, 6, 14)
    e("s_branch L_END")
    e("L_SSM_P2:")
    if not opt.wearly: ssm_w_setup(e, 'P')
    ld_w, ld_a, queue = gen_p2_stream(e, 'S', 10)
    stamp(e, 6, 14)
    e(f"s_cmp_eq_u32 s{sWAVE}, 0\ns_cbranch_scc0 L_SSM_lw")
    e(f"""v_and_b32 v2, 3, v0
v_lshlrev_b32 v2, 7, v2
v_lshrrev_b32 v4, 2, v0
v_lshlrev_b32 v4, 2, v4
v_add_u32 v2, v2, v4
s_lshl_b32 s89, s{sRB2}, 9
s_add_u32 s89, s89, {TFLAG_OFF}""")
    poll_flags(e, 'ST', 2, 10, 89, 0xfffc0000, sleep=opt.ssleep)
    lds_signal(e, 12, 10)
    e("s_branch L_SSM_go\nL_SSM_lw:\ns_waitcnt vmcnt(0)")
    lds_wait(e, 'S', 12, 10)
    e("L_SSM_go:")
    if opt.sshelp:
        e(f"s_cmp_eq_u32 s{sISU}, 1\ns_cbranch_scc0 L_SSM_nohw")
        lds_wait_ge(e, 'H', 20, 4, 10)
        e("L_SSM_nohw:")
    stamp(e, 7, 14)
    if opt.l2pf2: l2_prefetch(e, 85, 10 * 32, 4 if opt.map2 == 1 else 8, f"s{sCB}", 3 if opt.map2 == 1 else 7, 2 if opt.map2 == 1 else 1)
    del queue[:]
    emit_stream(e, 10, ld_w, ld_a, queue, NLS, 3)
    if opt.ststamps:
        e(f"""s_memtime s[100:101]
s_waitcnt lgkmcnt(0)
v_writelane_b32 v250, s100, 15
s_lshl_b32 s98, s2, 3
s_add_u32 s98, s98, s{sWAVE}
s_lshl_b32 s98, s98, 6
s_add_u32 s98, s98, {STAMP_OFF + 0x40000}
v_lshlrev_b32 v251, 2, v0
s_mov_b64 exec, 0xffff
buffer_store_dword v250, v251, s[{SWS}:{SWS+3}], s98 offen
s_mov_b64 exec, -1""")
    stamp(e, 8, 14)
    XR, DK, B2, GG = 96, 106, 116, 126
    e(f"""s_lshr_b32 s80, s{sWAVE}, 1
s_lshl_b32 s80, s80, 5
s_and_b32 s81, s{sWAVE}, 1
s_lshl_b32 s81, s81, 3
s_add_u32 s80, s80, s81
s_lshl_b32 s81, s{sRB2}, 6
s_add_u32 s80, s80, s81
v_bfe_u32 v2, v0, 3, 1
v_lshlrev_b32 v2, 4, v2
v_and_b32 v3, 7, v0
v_add_u32 v2, v2, v3
v_add_u32 v2, s80, v2
v_lshrrev_b32 v3, 4, v0
v_lshlrev_b32 v4, 3, v3
s_mul_i32 s81, s{sCB}, 160
v_mul_u32_u24 v5, 1280, v2
v_add_u32 v5, v5, v4
v_lshlrev_b32 v6, 3, v2""")
    srd(e, STA, P_AX, 2621440)
    for dt in range(5):
        e(f"buffer_load_dwordx2 v[{XR+2*dt}:{XR+2*dt+1}], v5, s[{STA}:{STA+3}], s81 offen offset:{32*dt}")
    srd(e, STB, P_DSK, 1280)
    for dt in range(5):
        e(f"buffer_load_dwordx2 v[{DK+2*dt}:{DK+2*dt+1}], v4, s[{STB}:{STB+3}], s81 offen offset:{32*dt}")
    srd(e, STA, P_B2, 1280)
    for dt in range(5):
        e(f"buffer_load_dwordx2 v[{B2+2*dt}:{B2+2*dt+1}], v4, s[{STA}:{STA+3}], s81 offen offset:{32*dt}")
    e(f"s_mov_b32 s82, {G_OFF}")
    e(f"buffer_load_dwordx2 v[{GG}:{GG+1}], v6, s[{SWS}:{SWS+3}], s82 offen sc1")
    e(f"""s_mul_i32 s83, s{sWAVE}, 15360
s_add_u32 s83, s83, {LDS_Y}
v_add_u32 v7, s83, v1""")
    OWN = 130
    for w in range(4):
        e(f"s_cmp_eq_u32 s{sWAVE}, {w}\ns_cbranch_scc0 L_YW_{w}")
        sl = 0
        for tt in range(4):
            if tt == w: continue
            for dt in range(5):
                e(f"ds_write_b128 v7, {R(acc2(dt,tt))} offset:{sl * 5120 + dt * 1024}")
            sl += 1
        for dt in range(5):
            for r in range(4):
                e(f"v_mov_b32 v{OWN+4*dt+r}, v{acc2(dt,w)+r}")
        e(f"s_branch L_YW_done\nL_YW_{w}:")
    e("L_YW_done:")
    for k in range(3):
        e(f"""s_cmp_ge_u32 {k}, s{sWAVE}
s_cselect_b32 s80, {k+1}, {k}
s_cselect_b32 s81, 0, 1
s_sub_u32 s81, s{sWAVE}, s81
s_mul_i32 s80, s80, 15360
s_mul_i32 s81, s81, 5120
s_add_u32 s80, s80, s81
s_add_u32 s80, s80, {LDS_Y}
v_add_u32 v{8+k}, s80, v1""")
    e(f"""s_mul_i32 s80, s{sWAVE}, 5120
v_add_u32 v11, s80, v1
v_add_u32 v12, 40960, v11""")
    e("s_waitcnt lgkmcnt(0)\ns_barrier")
    stamp(e, 9, 14)
    YR, FR = 16, 150
    for k in range(3):
        for dt in range(5):
            e(f"ds_read_b128 {R(YR+20*k+4*dt)}, v{8+k} offset:{dt*1024}")
    for w2 in range(4):
        for dt in range(5):
            e(f"ds_read_b128 {R(FR+20*w2+4*dt)}, v{11+(w2>>1)} offset:{(w2&1)*20480 + dt*1024}")
    e(f"""s_waitcnt vmcnt(0)
v_sub_f32 v13, 1.0, v{GG}
v_cvt_pk_bf16_f32 v13, v13, v13
v_and_b32 v13, 0xffff0000, v13""")
    if opt.check_g:
        e(f"""v_cmp_ne_u32 vcc, s{sNONCE}, v{GG+1}
v_mov_b32 v14, 0x7fc00000
v_cndmask_b32 v{GG}, v{GG}, v14, vcc""")
    e("s_waitcnt lgkmcnt(0)")
    for k in range(3):
        for i in range(0, 20, 2):
            e(f"v_pk_add_f32 v[{OWN+i}:{OWN+i+1}], v[{OWN+i}:{OWN+i+1}], v[{YR+20*k+i}:{YR+20*k+i+1}]")
    for k in range(1, 4):
        for i in range(0, 20, 2):
            e(f"v_pk_add_f32 v[{FR+i}:{FR+i+1}], v[{FR+i}:{FR+i+1}], v[{FR+20*k+i}:{FR+20*k+i+1}]")
    srd(e, SOUT, P_OUT, 5242880)
    e(f"""v_mul_u32_u24 v5, 2560, v2
v_lshlrev_b32 v4, 4, v3
v_add_u32 v5, v5, v4
s_mul_i32 s81, s{sCB}, 320""")
    for dt in range(5):
        T = 16 + 12 * dt
        for nm, src in ((0, XR), (4, DK), (8, B2)):
            e(f"""v_lshlrev_b32 v{T+nm}, 16, v{src+2*dt}
v_and_b32 v{T+nm+1}, 0xffff0000, v{src+2*dt}
v_lshlrev_b32 v{T+nm+2}, 16, v{src+2*dt+1}
v_and_b32 v{T+nm+3}, 0xffff0000, v{src+2*dt+1}""")
        y, f = OWN + 4 * dt, FR + 4 * dt
        for r in range(0, 4, 2):
            e(f"v_pk_fma_f32 v[{y+r}:{y+r+1}], v[{T+r}:{T+r+1}], v[{T+4+r}:{T+4+r+1}], v[{y+r}:{y+r+1}]")
            e(f"v_pk_add_f32 v[{f+r}:{f+r+1}], v[{f+r}:{f+r+1}], v[{T+8+r}:{T+8+r+1}]")
        o_ = 232 + 4 * dt if dt < 5 else 0
        for r in range(4):
            e(f"v_mul_f32 v{T+r}, v{GG}, v{y+r}")
        for r in range(4):
            e(f"v_fma_f32 v{o_+r}, v13, v{f+r}, v{T+r}")
        e(f"buffer_store_dwordx4 {R(o_)}, v5, s[{SOUT}:{SOUT+3}], s81 offen offset:{dt*64}")
    stamp(e, 10, 14)
    e("s_branch L_END")

def gen_gate_loads(e, W=84):
    srd(e, STA, P_GW, 1280)
    srd(e, STB, P_AX, 2621440)
    e(f"""v_lshlrev_b32 v12, 4, v0
v_lshlrev_b32 v13, 2, v0
s_lshl_b32 s80, s2, 3
s_lshl_b32 s81, s{W}, 1
s_add_u32 s80, s80, s81
s_mul_i32 s81, s80, 1280
s_add_u32 s82, s81, 1280
buffer_load_dwordx4 v[16:19], v12, s[{STA}:{STA+3}], 0 offen
buffer_load_dword v20, v13, s[{STA}:{STA+3}], 0 offen offset:1024
buffer_load_dwordx4 v[22:25], v12, s[{STB}:{STB+3}], s81 offen
buffer_load_dword v26, v13, s[{STB}:{STB+3}], s81 offen offset:1024
buffer_load_dwordx4 v[28:31], v12, s[{STB}:{STB+3}], s82 offen
buffer_load_dword v32, v13, s[{STB}:{STB+3}], s82 offen offset:1024""")

def gen_gate_compute(e):
    e("v_mov_b32 v40, 0\nv_mov_b32 v41, 0")
    for m in range(5):
        e(f"""v_lshlrev_b32 v36, 16, v{16+m}
v_and_b32 v37, 0xffff0000, v{16+m}""")
        for row in range(2):
            x = 22 + 6 * row + m
            e(f"""v_lshlrev_b32 v38, 16, v{x}
v_and_b32 v39, 0xffff0000, v{x}
v_mul_f32 v38, v38, v36
v_mul_f32 v39, v39, v37
v_cvt_pk_bf16_f32 v38, v38, v39
v_lshlrev_b32 v39, 16, v38
v_and_b32 v38, 0xffff0000, v38
v_add_f32 v{40+row}, v{40+row}, v39
v_add_f32 v{40+row}, v{40+row}, v38""")
    for sh in ("row_shr:1", "row_shr:2", "row_shr:4", "row_shr:8", "row_bcast:15 row_mask:0xa", "row_bcast:31 row_mask:0xc"):
        for row in range(2):
            e(f"v_add_f32 v{40+row}, v{40+row}, v{40+row} {sh}")
    e("""v_readlane_b32 s80, v40, 63
v_readlane_b32 s81, v41, 63""")
    e(f"""v_mov_b32 v42, s80
v_mov_b32 v43, s81
v_cmp_eq_u32 vcc, 1, v0
v_cndmask_b32 v42, v42, v43, vcc
v_cvt_pk_bf16_f32 v42, v42, v42
v_and_b32 v42, 0xffff0000, v42
v_mul_f32 v42, 0xbfb8aa3b, v42
v_exp_f32 v42, v42
v_add_f32 v42, 1.0, v42
v_rcp_f32 v42, v42
v_cvt_pk_bf16_f32 v42, v42, v42
v_and_b32 v42, 0xffff0000, v42
v_mov_b32 v43, s{sNONCE}
v_lshlrev_b32 v44, 3, v0
s_lshl_b32 s80, s2, 3
s_lshl_b32 s81, s84, 1
s_add_u32 s80, s80, s81
s_lshl_b32 s80, s80, 3
s_add_u32 s80, s80, {G_OFF}
s_mov_b64 exec, 3
buffer_store_dwordx2 v[42:43], v44, s[{SWS}:{SWS+3}], s80 offen sc0 sc1
s_mov_b64 exec, -1""")

def generate(path):
    e = Emitter()
    hdr = open("gated_mix__ssm_conv_s5__dense_activation_squared_relu__prompt.s.ref").read().split("\n")
    head = [l for l in hdr if l.startswith(";") and "@launch" not in l and "Override" not in l and "grid=ceil" not in l]
    txt = "\n".join(head) + f"\n; @launch grid=(256,1,1) block=(512,1,1) lds={LDS_SIZE}\n"
    txt += '.amdgcn_target "amdgcn-amd-amdhsa--gfx950"\n.text\n'
    txt += f".globl {NAME}\n.p2align 8\n.type {NAME},@function\n{NAME}:\n"
    gen_entry(e)
    gen_consumer(e)
    gen_loader(e)
    gen_p2(e)
    e("L_END:\ns_endpgm\nL_CODE_END:")
    txt += e.text()
    txt += f""".section .rodata,"a"
.p2align 6
.amdhsa_kernel {NAME}
  .amdhsa_next_free_vgpr 256
  .amdhsa_next_free_sgpr 102
  .amdhsa_accum_offset 256
  .amdhsa_group_segment_fixed_size 0
  .amdhsa_kernarg_size 144
  .amdhsa_user_sgpr_count 2
  .amdhsa_user_sgpr_kernarg_segment_ptr 1
  .amdhsa_system_sgpr_workgroup_id_x 1
.end_amdhsa_kernel
"""
    open(path, "w").write(txt)
    print("pads:", e.npad, "lines:", len(e.out))

if __name__ == "__main__":
    opt.check_g = True
    opt.nowait = 0
    opt.nodma = 0
    opt.itstamps = 0
    opt.l2pf = 0
    opt.sorder = 1
    opt.sshelp = 1
    opt.ststamps = 0
    opt.rot = 0
    opt.sprio = 2
    opt.eprio = 3
    opt.wearly = 0
    opt.ldslate = 0
    opt.prio = 2
    opt.cpf = 1
    opt.wdelay = 1
    opt.noprep = 0
    opt.nost = 0
    opt.map2 = 1
    opt.gw = 1
    opt.gloop = 1
    opt.ssleep = 8
    opt.l2pf2 = 1
    for a in sys.argv[2:]:
        k, v = a.split("=")
        setattr(opt, k, int(v))
    generate(sys.argv[1])
```

```python
import sys
from emit import Emitter

NAME = "gated_mix__ssm_conv_s5__dense_activation_squared_relu__prompt_kernel"

ACT_OFF   = 0
WF_OFF    = 0xC00000
G_OFF     = 0x1000000
AG_OFF    = 0x1010000
WFLAG_OFF = 0x1040000
TFLAG_OFF = 0x1050000
STAMP_OFF = 0x1100000
SLOT = 40960
LDS_PREP = 122880
LDS_TAB  = 143360
LDS_LX   = LDS_TAB + 8448
LDS_FLAG = LDS_LX + 768
LDS_DUMMY = LDS_FLAG + 64
LDS_F    = 0
LDS_Y    = 81920
LDS_SIZE = 163840

SX, SWA, SWB, SWS, STA, STB, SOUT = 4, 8, 12, 16, 20, 24, 28
P_AX, P_LRE, P_LIM, P_BRE, P_BIM, P_CRE, P_CIM, P_LDT, P_DSK, P_BX, P_W1, P_B1, P_W2, P_B2, P_GW, P_OUT, P_DBG, P_WS = [36 + 2 * i for i in range(18)]
sWAVE, sRB, sCOL, sJ, sRB2, sCB, sNONCE, sISU = 72, 73, 74, 75, 76, 77, 78, 79
SG, sGo, sGinc = 28, 83, 85

class Opt:
    phase2 = True
    stamps = False
    spin_limit = 200000
opt = Opt()

def srd(e, s, ptr, size):
    e(f"s_mov_b32 s{s}, s{ptr}\ns_mov_b32 s{s+1}, s{ptr+1}\ns_mov_b32 s{s+2}, {size}\ns_mov_b32 s{s+3}, 0x20000")

def R(b, n=4):
    return f"v[{b}:{b+n-1}]"

_stamp_id = [0]
def stamp(e, idx, tmpv=14):
    if not opt.stamps: return
    e(f"""s_memrealtime s[100:101]
s_lshl_b32 s98, s2, 3
s_add_u32 s98, s98, s{sWAVE}
s_lshl_b32 s98, s98, 6
s_add_u32 s98, s98, {STAMP_OFF + 4*idx}
s_waitcnt lgkmcnt(0)
v_mov_b32 v{tmpv}, s100
v_mov_b32 v{tmpv+1}, 0
s_mov_b64 s[96:97], exec
s_mov_b64 exec, 1
buffer_store_dword v{tmpv}, v{tmpv+1}, s[{SWS}:{SWS+3}], s98 offen
s_mov_b64 exec, s[96:97]""")

def stamp_clk(e, idx, tmpv=14):
    if not opt.stamps: return
    e(f"""s_memtime s[100:101]
s_lshl_b32 s98, s2, 3
s_add_u32 s98, s98, s{sWAVE}
s_lshl_b32 s98, s98, 6
s_add_u32 s98, s98, {STAMP_OFF + 4*idx}
s_waitcnt lgkmcnt(0)
v_mov_b32 v{tmpv}, s100
v_mov_b32 v{tmpv+1}, 0
s_mov_b64 s[96:97], exec
s_mov_b64 exec, 1
buffer_store_dword v{tmpv}, v{tmpv+1}, s[{SWS}:{SWS+3}], s98 offen
s_mov_b64 exec, s[96:97]""")

class Cap:
    def __init__(self): self.l = []
    def __call__(self, s):
        for x in s.split("\n"):
            if x.strip(): self.l.append(x.strip())

def merge(e, main_groups, aux):
    n = len(main_groups); k = 0
    per = -(-len(aux) // n) if n else 0
    for g in main_groups:
        for x in g: e(x)
        for x in aux[k:k + per]: e(x)
        k += per
    for x in aux[k:]: e(x)

def dbgmax(e, idx, neg=False, tv=14):
    if not opt.dbgtime: return
    e(f"""s_memrealtime s[100:101]
s_mov_b32 s96, s{P_DBG}
s_mov_b32 s97, s{P_DBG+1}
s_mov_b32 s98, 256
s_mov_b32 s99, 0x20000
s_waitcnt lgkmcnt(0)""")
    if neg: e("s_not_b32 s100, s100")
    e(f"""v_mov_b32 v{tv}, s100
v_mov_b32 v{tv+1}, 0
s_mov_b64 exec, 1
buffer_atomic_umax v{tv}, v{tv+1}, s[96:99], 0 offen offset:{4*idx}
s_mov_b64 exec, -1""")

def interleave(e, A, B, lead=1):
    bi = 0
    for i, a in enumerate(A):
        e(a)
        if i >= lead - 1 and bi < len(B):
            e(B[bi]); bi += 1
    while bi < len(B):
        e(B[bi]); bi += 1

def spin_nonce(e, tag, vtmp):
    srd(e, STA, P_DBG, 256)
    e(f"""v_mov_b32 v{vtmp+1}, 0
s_mov_b32 s80, 0
L_nonce_{tag}:
buffer_load_dword v{vtmp}, v{vtmp+1}, s[{STA}:{STA+3}], 0 offen sc1
s_add_u32 s80, s80, 1
s_waitcnt vmcnt(0)
v_readfirstlane_b32 s{sNONCE}, v{vtmp}
s_cmp_ge_u32 s80, {opt.spin_limit}
s_cbranch_scc1 L_nonce_done_{tag}
s_cmp_eq_u32 s{sNONCE}, 0
s_cbranch_scc0 L_nonce_done_{tag}
s_sleep 1
s_branch L_nonce_{tag}
L_nonce_done_{tag}:""")

def poll_flags(e, tag, vaddr, vtmp, soff_sgpr, nlanes_mask_lo, mask_hi=0, sleep=1):
    e(f"""s_mov_b32 s80, 0
s_mov_b32 s82, {nlanes_mask_lo}
s_mov_b32 s83, {mask_hi}
L_poll_{tag}:
buffer_load_dword v{vtmp}, v{vaddr}, s[{SWS}:{SWS+3}], s{soff_sgpr} offen sc1
s_add_u32 s80, s80, 1
s_waitcnt vmcnt(0)
v_cmp_ne_u32 vcc, s{sNONCE}, v{vtmp}
s_cmp_ge_u32 s80, {opt.spin_limit}
s_cbranch_scc1 L_poll_done_{tag}
s_and_b64 vcc, vcc, s[82:83]
s_cbranch_scc0 L_poll_done_{tag}
s_sleep {sleep}
s_branch L_poll_{tag}
L_poll_done_{tag}:""")

def gen_entry(e):
    if opt.map2 == 1:
        MAP2 = f"""s_lshr_b32 s82, s80, 1
s_lshl_b32 s82, s82, 3
s_lshr_b32 s83, s81, 2
s_add_u32 s{sRB2}, s82, s83
s_and_b32 s82, s80, 1
s_lshl_b32 s82, s82, 2
s_and_b32 s83, s81, 3
s_add_u32 s{sCB}, s82, s83"""
    else:
        MAP2 = f"""s_lshl_b32 s82, s80, 2
s_and_b32 s83, s81, 3
s_add_u32 s{sRB2}, s82, s83
s_lshr_b32 s{sCB}, s81, 2"""
    e(f"""s_cmp_ge_u32 s2, 256
s_cbranch_scc1 L_END
s_load_dwordx16 s[36:51], s[0:1], 0
s_load_dwordx16 s[52:67], s[0:1], 64
s_load_dwordx4 s[68:71], s[0:1], 128
v_lshrrev_b32 v1, 6, v0
v_and_b32 v0, 63, v0
v_readfirstlane_b32 s{sWAVE}, v1
s_and_b32 s80, s2, 7
s_lshr_b32 s81, s2, 3
s_and_b32 s82, s80, 1
s_lshl_b32 s82, s82, 3
s_and_b32 s83, s81, 7
s_add_u32 s{sRB}, s82, s83
s_lshr_b32 s82, s80, 1
s_lshl_b32 s82, s82, 2
s_lshr_b32 s83, s81, 3
s_add_u32 s{sCOL}, s82, s83
{MAP2}
s_sub_u32 s82, s{sCOL}, 9
s_cmp_ge_u32 s{sCOL}, 9
s_cselect_b32 s{sISU}, 1, 0
s_cselect_b32 s{sJ}, s82, s{sCOL}
s_waitcnt lgkmcnt(0)""")
    srd(e, SWS, P_WS, 0x10000000)
    srd(e, SX, P_AX, 2621440)
    dbgmax(e, 1, neg=True)
    e(f"""s_cmp_eq_u32 s2, 0
s_cbranch_scc0 L_no_nonce
s_cmp_eq_u32 s{sWAVE}, 4
s_cbranch_scc0 L_no_nonce
s_memrealtime s[80:81]""")
    srd(e, STA, P_DBG, 256)
    e(f"""s_waitcnt lgkmcnt(0)
s_or_b32 s80, s80, 1
v_mov_b32 v2, s80
v_mov_b32 v3, 0
s_mov_b64 exec, 1
buffer_store_dword v2, v3, s[{STA}:{STA+3}], 0 offen sc0 sc1
s_mov_b64 exec, -1
L_no_nonce:
s_cmp_ge_u32 s{sWAVE}, 4
s_cbranch_scc1 L_LOADER""")

def cmul(e, d, a, b, t):
    e(f"""v_mul_f32 v{d}, v{a}, v{b}
v_mul_f32 v{d+1}, v{a}, v{b+1}
v_fma_f32 v{d}, -v{a+1}, v{b+1}, v{d}
v_fma_f32 v{d+1}, v{a+1}, v{b}, v{d+1}""")

def csq(e, d, a):
    cmul(e, d, a, a, None)

def cfma(e, d, a, b, c):
    e(f"""v_fma_f32 v{d}, v{a}, v{b}, v{c}
v_fma_f32 v{d+1}, v{a}, v{b+1}, v{c+1}
v_fma_f32 v{d}, -v{a+1}, v{b+1}, v{d}
v_fma_f32 v{d+1}, v{a+1}, v{b}, v{d+1}""")

def gen_loader(e):
    e("L_LOADER:")
    vXo = 2; vWo = 4
    sXo = 86
    sWo = 90
    sLX, sLW, sWinc = 32, 33, 34
    def issue_x(s):
        slot = (s % 3) * SLOT
        for m in range(4):
            e(f"s_add_u32 m0, s{sLX}, {slot + m*1024}")
            e(f"buffer_load_dwordx4 v{vXo}, s[{SX}:{SX+3}], s{sXo+m} offen lds")
            e(f"s_add_u32 s{sXo+m}, s{sXo+m}, 128")
    def issue_w(s):
        slot = (s % 3) * SLOT
        for m in range(6):
            S = SWB if (m >> 1) == 1 else SWA
            e(f"s_add_u32 m0, s{sLW}, {slot + m*1024}")
            e(f"buffer_load_dwordx4 v{vWo+m}, s[{S}:{S+3}], s{sWo+m} offen lds")
            e(f"s_add_u32 s{sWo+m}, s{sWo+m}, s{sWinc}")
    def issue(s):
        issue_x(s); issue_w(s)
    e(f"""s_sub_u32 s84, s{sWAVE}, 4
v_lshrrev_b32 v10, 3, v0
v_and_b32 v11, 7, v0
v_xor_b32 v11, v11, v10
v_lshlrev_b32 v11, 4, v11
s_lshl_b32 s{sLX}, s84, 12
s_mul_i32 s{sLW}, s84, 6144
s_add_u32 s{sLW}, s{sLW}, 16384
s_lshl_b32 s85, s{sRB}, 7""")
    e(f"""s_mul_i32 s80, s{sJ}, 96
s_lshl_b32 s81, s84, 5
s_add_u32 s80, s80, s81
v_and_b32 v12, 31, v0
v_add_u32 v12, s80, v12
v_min_u32 v12, 639, v12
v_lshlrev_b32 v12, 1, v12""")
    srd(e, STA, P_LRE, 1280)
    e(f"buffer_load_ushort v20, v12, s[{STA}:{STA+3}], 0 offen")
    srd(e, STB, P_LIM, 1280)
    e(f"buffer_load_ushort v21, v12, s[{STB}:{STB+3}], 0 offen")
    srd(e, STA, P_LDT, 1280)
    e(f"buffer_load_ushort v22, v12, s[{STA}:{STA+3}], 0 offen")
    e(f"""s_cmp_eq_u32 s{sISU}, 1
s_cbranch_scc1 L_LD_U""")
    e(f"""v_mul_u32_u24 v{vXo}, 1280, v10
v_add_u32 v{vXo}, v{vXo}, v11
s_lshl_b32 s80, s84, 5
s_add_u32 s80, s80, s85""")
    for m in range(4):
        e(f"s_add_u32 s81, s80, {16*(m&1) + 8*(m>>1)}\ns_mul_i32 s{sXo+m}, s81, 1280")
    issue_x(0)
    srd(e, SWA, P_W1, 2211840)
    srd(e, SWB, P_W1, 2211840)
    e(f"""s_mul_i32 s80, s84, {16*3456}
s_mul_i32 s81, s{sJ}, 384
s_add_u32 s80, s80, s81""")
    for m in range(6):
        e(f"s_mov_b32 s{sWo+m}, s80")
    e(f"s_mov_b32 s{sWinc}, {64*3456}")
    for m in range(6):
        e(f"""v_add_u32 v12, {64*m}, v0
v_mul_u32_u24 v13, 2731, v12
v_lshrrev_b32 v13, 16, v13
v_mul_u32_u24 v14, 24, v13
v_sub_u32 v14, v12, v14
v_bfe_u32 v15, v13, 1, 1
v_lshlrev_b32 v15, 1, v15
v_bfe_u32 v16, v13, 3, 1
v_lshlrev_b32 v16, 2, v16
v_or_b32 v15, v15, v16
v_xor_b32 v14, v14, v15
v_lshlrev_b32 v14, 4, v14
v_mul_u32_u24 v13, 3456, v13
v_add_u32 v{vWo+m}, v13, v14""")
    e("s_branch L_LD_GO")
    e("L_LD_U:")
    e(f"""v_lshrrev_b32 v12, 5, v0
v_lshlrev_b32 v12, 4, v12
v_bfe_u32 v13, v0, 3, 1
v_lshlrev_b32 v13, 3, v13
v_add_u32 v12, v12, v13
v_bfe_u32 v13, v0, 4, 1
v_add_u32 v12, v12, v13
v_mul_u32_u24 v{vXo}, 1280, v12
v_add_u32 v{vXo}, v{vXo}, v11
s_lshr_b32 s80, s84, 1
s_lshl_b32 s80, s80, 6
s_and_b32 s81, s84, 1
s_lshl_b32 s82, s81, 2
s_add_u32 s80, s80, s82
s_add_u32 s80, s80, s85""")
    for m in range(4):
        e(f"s_add_u32 s82, s80, {32*(m&1) + 2*(m>>1)}\ns_mul_i32 s{sXo+m}, s82, 1280")
    issue_x(0)
    e(f"""v_mul_u32_u24 v12, 1280, v10
v_add_u32 v12, v12, v11""")
    for m in range(6):
        e(f"v_mov_b32 v{vWo+m}, v12")
    e(f"""s_mul_i32 s80, s{sJ}, 96
s_lshr_b32 s82, s84, 1
s_mul_i32 s82, s82, 48
s_add_u32 s80, s80, s82
s_mul_i32 s83, s81, 3""")
    for m in range(6):
        e(f"""s_add_u32 s82, s83, {m>>1}
s_lshr_b32 s82, s82, 1
s_lshl_b32 s82, s82, 4
s_add_u32 s82, s82, s80
s_add_u32 s82, s82, {8*(m&1)}
s_min_u32 s82, s82, 632
s_mul_i32 s{sWo+m}, s82, 1280""")
    e(f"s_mov_b32 s{sWinc}, 128")
    e(f"""s_cmp_eq_u32 s81, 0
s_cselect_b32 s{SWA}, s{P_BRE}, s{P_BIM}
s_cselect_b32 s{SWA+1}, s{P_BRE+1}, s{P_BIM+1}
s_cselect_b32 s{SWB}, s{P_BIM}, s{P_BRE}
s_cselect_b32 s{SWB+1}, s{P_BIM+1}, s{P_BRE+1}
s_mov_b32 s{SWA+2}, 819200
s_mov_b32 s{SWA+3}, 0x20000
s_mov_b32 s{SWB+2}, 819200
s_mov_b32 s{SWB+3}, 0x20000""")
    e("L_LD_GO:")
    def groups(s_):
        slot = (s_ % 3) * SLOT
        G = []
        for m in range(4):
            G.append([f"s_add_u32 m0, s{sLX}, {slot + m*1024}",
                      f"buffer_load_dwordx4 v{vXo}, s[{SX}:{SX+3}], s{sXo+m} offen lds",
                      f"s_add_u32 s{sXo+m}, s{sXo+m}, 128"])
        for m in range(6):
            S = SWB if (m >> 1) == 1 else SWA
            G.append([f"s_add_u32 m0, s{sLW}, {slot + m*1024}",
                      f"buffer_load_dwordx4 v{vWo+m}, s[{S}:{S+3}], s{sWo+m} offen lds",
                      f"s_add_u32 s{sWo+m}, s{sWo+m}, s{sWinc}"])
        return G
    def gath():
        e(f"buffer_load_dword v18, v17, s[{SG}:{SG+3}], s{sGo} offen\ns_add_u32 s{sGo}, s{sGo}, s{sGinc}")
    issue_w(0)
    gen_gather_setup(e, 84, 'L', 3)
    issue(1)
    e("s_waitcnt vmcnt(10)\ns_barrier")
    issue(2); gath()
    e("s_waitcnt vmcnt(11)\ns_barrier")
    c = Cap(); gen_lambda_table(c, 0)
    merge(e, groups(3), c.l); gath()
    e("s_waitcnt vmcnt(12)\ns_barrier")
    e(f"""v_and_b32 v62, 31, v0
s_lshl_b32 s80, s84, 5
v_add_u32 v62, s80, v62
v_lshlrev_b32 v62, 3, v62
s_mov_b32 s81, {LDS_TAB}
s_cmp_eq_u32 s84, 3
s_cselect_b32 s80, {LDS_DUMMY - 768}, s81
v_add_u32 v62, s80, v62""")
    c = Cap(); gen_lambda_table(c, 1)
    merge(e, groups(4), c.l); gath()
    for it, (st_, g_) in enumerate(((5, 1), (6, 1), (7, 1), (8, 1))):
        e("s_waitcnt vmcnt(12)\ns_barrier")
        issue(st_)
        if g_: gath()
        if it == 1:
            srd(e, STA, P_DBG, 256)
            e(f"v_mov_b32 v12, 0\nbuffer_load_dword v99, v12, s[{STA}:{STA+3}], 0 offen")
    e("s_waitcnt vmcnt(12)\ns_barrier")
    e(f"""v_readfirstlane_b32 s{sNONCE}, v99
s_cmp_eq_u32 s{sNONCE}, 0
s_cbranch_scc0 L_LD_nonce_ok""")
    spin_nonce(e, 'L', 10)
    e("L_LD_nonce_ok:")
    e(f"""s_mul_i32 s85, s84, 14
s_cmp_eq_u32 s84, 3
s_cselect_b32 s80, 1, 0
s_sub_u32 s85, s85, s80
v_lshlrev_b32 v12, 2, v0
s_lshl_b32 s81, s{sCB}, 9
s_lshl_b32 s82, s85, 2
s_add_u32 s81, s81, s82
s_add_u32 s35, s81, {WFLAG_OFF}
v_lshlrev_b32 v1, 4, v0
buffer_load_dword v13, v12, s[{SWS}:{SWS+3}], s35 offen sc1""")
    issue(9)
    e("s_waitcnt vmcnt(10)\ns_barrier")
    e(f"""s_mov_b32 s86, s84
s_mul_i32 s87, s86, 20480
s_mul_i32 s84, s{sCB}, 94
s_add_u32 s84, s84, s85
s_mul_i32 s84, s84, 5120
s_add_u32 s84, s84, {WF_OFF}
s_cmp_ge_u32 s86, 2
s_cselect_b32 s89, 13, 14""")
    rot_setup(e, 89, False)
    ld_w, ld_a, queue = gen_p2_stream(e, 'x', 14)
    e(f"""v_cmp_ne_u32 vcc, s{sNONCE}, v13
s_nop 1
s_and_b32 s80, vcc_lo, 0x3fff
s_cbranch_scc1 L_LD_wlate""")
    ld_w(0); ld_w(1)
    e("s_waitcnt vmcnt(10)\ns_barrier")
    ld_w(2); ld_w(3); ld_w(4)
    e("s_branch L_LD_wdone\nL_LD_wlate:\ns_waitcnt vmcnt(0)\ns_barrier")
    poll_flags(e, 'FW', 12, 13, 35, 0x3fff)
    for s_ in range(NW): ld_w(s_)
    e("L_LD_wdone:")
    stamp(e, 1, 14)
    gen_gate_loads(e, 86)
    lds_wait_ge(e, 'R', 24, 4, 10)
    if opt.wdelay:
        e(f"s_cmp_eq_u32 s{sISU}, 1\ns_cbranch_scc1 L_LD_nodelay")
        lds_wait_ge(e, 'W', 16, 4, 10)
        e("L_LD_nodelay:")
    stamp(e, 7, 14)
    w_lds(e, NLF, 87)
    lds_count(e, 28, 10)
    if opt.sshelp:
        e(f"""s_cmp_eq_u32 s{sISU}, 1
s_cbranch_scc0 L_NOHELP
s_mul_i32 s80, s86, 10
s_add_u32 s80, s80, 54
s_lshl_b32 s80, s80, 2
s_lshl_b32 s81, s{sCB}, 9
s_add_u32 s80, s80, s81
s_add_u32 s88, s80, {WFLAG_OFF}
v_lshlrev_b32 v12, 2, v0""")
        poll_flags(e, 'HW', 12, 13, 88, 0x3ff)
        e(f"""s_mul_i32 s80, s86, 10
s_add_u32 s80, s80, {54 + NW}
s_mul_i32 s81, s{sCB}, 94
s_add_u32 s80, s80, s81
s_mul_i32 s80, s80, 5120
s_add_u32 s80, s80, {WF_OFF}
s_mul_i32 s81, s86, 15360
s_add_u32 s81, s81, {LDS_Y}""")
        for i in range(NLS):
            for dt in range(5):
                e(f"""s_add_u32 m0, s81, {i*5120 + dt*1024}
buffer_load_dwordx4 v1, s[{SWS}:{SWS+3}], s80 offen sc1 lds
s_add_u32 s80, s80, 1024""")
        e("L_NOHELP:")
    stamp(e, 2, 14)

NLF, NLS = 4, 3
def w_prefetch(e, nsteps, NL, lds_base_sgpr, do_lds=True):
    nsh = 8 if opt.map2 == 1 else 4
    per = -(-nsteps * 40 // nsh)
    if opt.gw: l2_prefetch(e, 84, nsteps * 40, nsh, f"s{sRB2}", nsh - 1, -(-per // 64))
    ld_w, ld_a, queue = gen_p2_stream(e, 'x', nsteps)
    for s_ in range(NW): ld_w(s_)
    if do_lds: w_lds(e, NL, lds_base_sgpr)

def w_lds(e, NL, lds_base_sgpr, queue=None):
    for i in range(NL):
        for dt in range(5):
            e(f"""s_add_u32 m0, s{lds_base_sgpr}, {i*5120 + dt*1024}
buffer_load_dwordx4 v1, s[{SWS}:{SWS+3}], s84 offen sc1 lds
s_add_u32 s84, s84, 1024""")
            if queue is not None: queue.append(('l', NW + i))
        wrap_w(e)

def ffn_w_prefetch(e):
    e(f"""s_mov_b32 s86, s84
s_mul_i32 s87, s86, 20480
s_mul_i32 s84, s{sCB}, 94
s_add_u32 s84, s84, s85
s_mul_i32 s84, s84, 5120
s_add_u32 s84, s84, {WF_OFF}
s_cmp_ge_u32 s86, 2
s_cselect_b32 s89, 13, 14""")
    rot_setup(e, 89, False)
    w_prefetch(e, 14, NLF, 87, do_lds=not opt.ldslate)
    if opt.sshelp:
        e(f"""s_cmp_eq_u32 s{sISU}, 1
s_cbranch_scc0 L_NOHELP
s_mul_i32 s80, s86, 10
s_add_u32 s80, s80, 54
s_lshl_b32 s80, s80, 2
s_lshl_b32 s81, s{sCB}, 9
s_add_u32 s80, s80, s81
s_add_u32 s88, s80, {WFLAG_OFF}
v_lshlrev_b32 v12, 2, v0""")
        poll_flags(e, 'HW', 12, 13, 88, 0x3ff)
        e(f"""s_mul_i32 s80, s86, 10
s_add_u32 s80, s80, {54 + NW}
s_mul_i32 s81, s{sCB}, 94
s_add_u32 s80, s80, s81
s_mul_i32 s80, s80, 5120
s_add_u32 s80, s80, {WF_OFF}
s_mul_i32 s81, s86, 15360
s_add_u32 s81, s81, {LDS_Y}""")
        for i in range(NLS):
            for dt in range(5):
                e(f"""s_add_u32 m0, s81, {i*5120 + dt*1024}
buffer_load_dwordx4 v1, s[{SWS}:{SWS+3}], s80 offen sc1 lds
s_add_u32 s80, s80, 1024""")
        e("L_NOHELP:")

def l2_prefetch(e, sbase, nlines, nshare, share_sgpr, share_mask, ninstr, vtmp=12, vdst=15):
    per = -(-nlines // nshare)
    e(f"""s_and_b32 s80, {share_sgpr}, {share_mask}
s_mul_i32 s80, s80, {per*128}
s_add_u32 s80, s80, s{sbase}
v_lshlrev_b32 v{vtmp}, 7, v0""")
    for i in range(ninstr):
        if i * 64 < per and per - i * 64 < 64:
            e(f"v_min_u32 v{vtmp}, {(per - i*64 - 1)*128}, v{vtmp}")
        e(f"buffer_load_dword v{vdst}, v{vtmp}, s[{SWS}:{SWS+3}], s80 offen sc1")
        if i * 64 + 64 < per: e(f"s_add_u32 s80, s80, 8192")

def gen_gather_setup(e, W=84, T='', start=1):
    e(f"""s_lshr_b32 s80, s2, 3
s_and_b32 s81, s80, 7
s_lshr_b32 s80, s80, 3
v_mov_b32 v17, 0x10000000
s_mov_b32 s{sGo}, {128*start}
s_mov_b32 s{sGinc}, 128
s_mov_b32 s{SG}, s{SX}
s_mov_b32 s{SG+1}, s{SX+1}
s_mov_b32 s{SG+2}, 2621440
s_mov_b32 s{SG+3}, 0x20000
s_cmp_eq_u32 s{W}, 0
s_cbranch_scc0 L_GS_1{T}
s_lshl_b32 s80, s80, 5
s_lshl_b32 s82, s{sRB}, 7
s_add_u32 s80, s80, s82
v_add_u32 v16, s80, v0
v_mul_u32_u24 v16, 1280, v16
v_cmp_gt_u32 vcc, 32, v0
v_cndmask_b32 v17, v17, v16, vcc
s_branch L_GS_done{T}
L_GS_1{T}:
s_cmp_ge_u32 s{W}, 3
s_cbranch_scc1 L_GS_done{T}
s_cmp_eq_u32 s{sISU}, 1
s_cbranch_scc1 L_GS_U{T}
s_cmp_eq_u32 s{W}, 1
s_cbranch_scc0 L_GS_done{T}
s_mov_b32 s{SG}, s{P_W1}
s_mov_b32 s{SG+1}, s{P_W1+1}
s_mov_b32 s{SG+2}, 2211840
s_mul_i32 s{sGo}, s{sJ}, 384
s_add_u32 s{sGo}, s{sGo}, {64*3456*start}
s_mov_b32 s{sGinc}, {64*3456}
v_mul_u32_u24 v16, 43, v0
v_lshrrev_b32 v16, 7, v16
v_mul_u32_u24 v15, 3, v16
v_sub_u32 v15, v0, v15
s_lshl_b32 s81, s81, 3
v_add_u32 v16, s81, v16
v_mul_u32_u24 v16, 3456, v16
v_lshlrev_b32 v15, 7, v15
v_add_u32 v16, v16, v15
v_cmp_gt_u32 vcc, 24, v0
v_cndmask_b32 v17, v17, v16, vcc
s_branch L_GS_done{T}
L_GS_U{T}:
s_cmp_eq_u32 s{W}, 1
s_cselect_b32 s{SG}, s{P_BRE}, s{P_BIM}
s_cselect_b32 s{SG+1}, s{P_BRE+1}, s{P_BIM+1}
s_mov_b32 s{SG+2}, 819200
s_mul_i32 s80, s{sJ}, 96
s_mul_i32 s81, s81, 12
s_add_u32 s80, s80, s81
v_add_u32 v16, s80, v0
v_min_u32 v16, 639, v16
v_mul_u32_u24 v16, 1280, v16
v_cmp_gt_u32 vcc, 12, v0
v_cndmask_b32 v17, v17, v16, vcc
L_GS_done{T}:""")
    if not opt.gloop: e("v_mov_b32 v17, 0x10000000")

def gen_unit_ids(e, W):
    e(f"""s_cmp_ge_u32 s2, 108
s_cbranch_scc1 L_UID_C
s_lshr_b32 s3, s2, 1
s_and_b32 s35, s2, 1
s_lshl_b32 s35, s35, 2
s_add_u32 s35, s35, s{W}
s_branch L_UID_done
L_UID_C:
s_sub_u32 s80, s2, 108
s_and_b32 s35, s80, 7
s_lshr_b32 s80, s80, 3
s_lshl_b32 s3, s80, 2
s_add_u32 s3, s3, s{W}
s_add_u32 s3, s3, 54
L_UID_done:""")

def gen_prep_gather(e):
    e("""s_cmp_ge_u32 s2, 108
s_cbranch_scc1 L_UID_C
s_lshr_b32 s3, s2, 1
s_and_b32 s35, s2, 1
s_lshl_b32 s35, s35, 2
s_add_u32 s35, s35, s84
s_branch L_UID_done
L_UID_C:
s_sub_u32 s80, s2, 108
s_and_b32 s35, s80, 7
s_lshr_b32 s80, s80, 3
s_lshl_b32 s3, s80, 2
s_add_u32 s3, s3, s84
s_add_u32 s3, s3, 54
L_UID_done:""")
    e(f"""s_cmp_ge_u32 s3, 54
s_cbranch_scc1 L_PG_C""")
    srd(e, STA, P_W2, 2211840)
    e(f"""v_mul_u32_u24 v10, 52, v0
v_lshrrev_b32 v10, 8, v10
v_mul_u32_u24 v11, 5, v10
v_sub_u32 v11, v0, v11
s_lshl_b32 s80, s84, 3
v_add_u32 v10, s80, v10
v_mul_u32_u24 v10, 1280, v10
v_lshlrev_b32 v11, 7, v11
v_add_u32 v10, v10, v11
v_mov_b32 v11, 0x10000000
v_cmp_gt_u32 vcc, 40, v0
v_cndmask_b32 v10, v11, v10, vcc
s_mul_i32 s80, s3, {32*1280}
s_and_b32 s81, s2, 1
s_mul_i32 s81, s81, 640
s_add_u32 s80, s80, s81
buffer_load_dword v18, v10, s[{STA}:{STA+3}], s80 offen
buffer_load_dword v18, v11, s[{STA}:{STA+3}], s80 offen
s_branch L_PG_done
L_PG_C:""")
    srd(e, STA, P_CRE, 819200)
    srd(e, STB, P_CIM, 819200)
    e(f"""s_mul_i32 s81, s35, 80
s_mul_i32 s80, s84, 20
s_add_u32 s81, s81, s80
v_add_u32 v10, s81, v0
v_mul_u32_u24 v10, 1280, v10
v_mov_b32 v11, 0x10000000
v_cmp_gt_u32 vcc, 20, v0
v_cndmask_b32 v10, v11, v10, vcc
s_sub_u32 s80, s3, 54
s_lshr_b32 s80, s80, 2
s_min_u32 s80, s80, 9
s_lshl_b32 s80, s80, 7
buffer_load_dword v18, v10, s[{STA}:{STA+3}], s80 offen
buffer_load_dword v18, v10, s[{STB}:{STB+3}], s80 offen
L_PG_done:""")

def gen_lambda_table(e, part):
    L1, L2, L4, L8, L16, L32, L48, L64, L128, L256, L512, L1024, C2 = 30, 32, 34, 36, 38, 40, 42, 44, 46, 48, 50, 52, 54
    if part == 0:
        e(f"""v_lshlrev_b32 v20, 16, v20
v_lshlrev_b32 v21, 16, v21
v_lshlrev_b32 v22, 16, v22
v_mul_f32 v23, 0x3fb8aa3b, v22
v_exp_f32 v23, v23
s_nop 0
v_cvt_pk_bf16_f32 v23, v23, v23
v_and_b32 v23, 0xffff0000, v23
v_mul_f32 v24, v23, v20
v_mul_f32 v25, v23, v21
v_mul_f32 v24, 0x3fb8aa3b, v24
v_exp_f32 v24, v24
v_mul_f32 v25, 0.15915494, v25
v_fract_f32 v25, v25
v_sin_f32 v26, v25
v_cos_f32 v27, v25
s_nop 0
v_mul_f32 v31, v24, v26
v_mul_f32 v30, v24, v27""")
        csq(e, L2, L1); csq(e, L4, L2); csq(e, L8, L4); csq(e, L16, L8); csq(e, L32, L16)
        cmul(e, L48, L32, L16, None)
        csq(e, L64, L32); csq(e, L128, L64)
        return
    csq(e, L256, L128); csq(e, L512, L256); csq(e, L1024, L512)
    e(f"""v_add_f32 v56, -1.0, v30
v_mul_f32 v57, v20, v20
v_fma_f32 v57, v21, v21, v57
v_rcp_f32 v57, v57
v_mul_f32 v58, v56, v20
v_fma_f32 v58, v31, v21, v58
v_mul_f32 v59, v31, v20
v_fma_f32 v59, -v56, v21, v59
v_add_f32 v57, v57, v57
v_mul_f32 v{C2}, v58, v57
v_mul_f32 v{C2+1}, v59, v57
v_mov_b32 v60, 1.0
v_mov_b32 v61, 0""")
    ents = [L1, L8, 60, L16, L32, L48, L64, L128, L512, L1024, C2]
    for i, r in enumerate(ents):
        e(f"ds_write_b64 v62, v[{r}:{r+1}] offset:{i*768}")
    e("s_waitcnt lgkmcnt(0)")

ACC = 64
SETA, SETB = 160, 200
def acc_ffn(ft, tt): return ACC + (ft * 4 + tt) * 4
def acc_u(i, tp): return ACC + (i * 6 + tp) * 4

def reads(kind, st, ks):
    L = []
    vX = 2 + ks
    if kind == 'F':
        xs = [f"ds_read_b128 {R(st + 4*t)}, v{vX} offset:{t*2048}" for t in range(4)]
        ws = []
        for ft in range(6):
            for h in range(2):
                ws.append(f"ds_read_b64_tr_b16 v[{st+16+4*ft+2*h}:{st+16+4*ft+2*h+1}], v{4+ft} offset:{ks*12288 + h*1536}")
        L = ws[:2] + xs + ws[2:]
    else:
        vW = 4 + ks
        xs = [f"ds_read_b128 {R(st + 4*t)}, v{vX} offset:{t*2048}" for t in range(4)]
        ws = [f"ds_read_b128 {R(st + 16 + 4*t)}, v{vW} offset:{t*2048}" for t in range(6)]
        L = [ws[0]] + xs + ws[1:]
    return L

def mfmas(kind, st, first=False):
    L = []
    for n in range(6):
        for t in range(4):
            if kind == 'F':
                d = acc_ffn(n, t)
                c = R(16 + 20 + 4*n) if first else R(d)
                L.append(f"v_mfma_f32_16x16x32_bf16 {R(d)}, {R(st+16+4*n)}, {R(st+4*t)}, {c}")
            else:
                d = acc_u(t, n)
                c = "0" if first else R(d)
                L.append(f"v_mfma_f32_16x16x32_bf16 {R(d)}, {R(st+4*t)}, {R(st+16+4*n)}, {c}")
    return L

def gen_prep_issue(e, W=84, D=116):
    e(f"""s_cmp_ge_u32 s3, 54
s_cbranch_scc1 L_PREP_C""")
    srd(e, STA, P_W2, 2211840)
    e(f"""s_mul_i32 s80, s3, {32*1280}
s_mul_i32 s81, s35, 160
s_add_u32 s80, s80, s81
s_mul_i32 s81, s{W}, 5120
s_add_u32 s81, s81, {LDS_PREP}""")
    for n in range(5):
        e(f"""v_add_u32 v10, {64*n}, v0
v_mul_u32_u24 v11, 205, v10
v_lshrrev_b32 v11, 11, v11
v_mul_u32_u24 v12, 10, v11
v_sub_u32 v12, v10, v12
v_mul_u32_u24 v11, 1280, v11
v_lshlrev_b32 v12, 4, v12
v_add_u32 v11, v11, v12
s_add_u32 m0, s81, {n*1024}
buffer_load_dwordx4 v11, s[{STA}:{STA+3}], s80 offen lds""")
    e("v_mov_b32 v11, 0x10000000")
    for n in range(5):
        e(f"buffer_load_dword v{D}, v11, s[{STA}:{STA+3}], s80 offen")
    e("s_branch L_PREP_issued")
    e("L_PREP_C:")
    srd(e, STA, P_CRE, 819200)
    srd(e, STB, P_CIM, 819200)
    e(f"""v_and_b32 v10, 15, v0
v_mul_u32_u24 v10, 1280, v10
v_lshrrev_b32 v11, 4, v0
v_lshlrev_b32 v11, 3, v11
v_add_u32 v10, v10, v11
s_sub_u32 s80, s3, 54
s_min_u32 s80, s80, 39
s_lshl_b32 s80, s80, 5
s_mul_i32 s81, s35, {80*1280}
s_add_u32 s80, s80, s81""")
    for dt in range(5):
        e(f"buffer_load_dwordx2 v[{D+4*dt}:{D+1+4*dt}], v10, s[{STA}:{STA+3}], s80 offen")
        e(f"buffer_load_dwordx2 v[{D+2+4*dt}:{D+3+4*dt}], v10, s[{STB}:{STB+3}], s80 offen")
        if dt < 4: e(f"s_add_u32 s80, s80, {16*1280}")
    e("L_PREP_issued:")

def gen_prep_finish(e, W=84, D=116, T=''):
    e(f"""s_cmp_ge_u32 s3, 54
s_cbranch_scc1 L_PF_store{T}
v_lshrrev_b32 v10, 4, v0
v_lshlrev_b32 v10, 2, v10
v_bfe_u32 v11, v0, 2, 2
v_add_u32 v10, v10, v11
v_mul_u32_u24 v10, 160, v10
v_and_b32 v11, 3, v0
v_lshlrev_b32 v11, 3, v11
v_add_u32 v10, v10, v11
s_mul_i32 s81, s{W}, 5120
s_add_u32 s81, s81, {LDS_PREP}
v_add_u32 v10, s81, v10""")
    for dt in range(5):
        for h in range(2):
            e(f"ds_read_b64_tr_b16 v[{D+4*dt+2*h}:{D+1+4*dt+2*h}], v10 offset:{dt*32 + h*16*160}")
    e("s_waitcnt lgkmcnt(0)")
    e(f"L_PF_store{T}:")
    e(f"""s_mul_i32 s80, s35, 94
s_add_u32 s80, s80, s3
s_mul_i32 s80, s80, 5120
s_add_u32 s80, s80, {WF_OFF}
v_lshlrev_b32 v10, 4, v0
v_mov_b32 v11, 0x10000000
s_cmp_ge_u32 s3, 94
s_cselect_b32 s81, 1, 0
v_mov_b32 v12, s81
v_cmp_eq_u32 vcc, 1, v12
v_cndmask_b32 v10, v10, v11, vcc""")
    for dt in range(5):
        if dt < 4:
            e(f"buffer_store_dwordx4 {R(D+4*dt)}, v10, s[{SWS}:{SWS+3}], s80 offen offset:{dt*1024} sc1")
        else:
            e(f"s_add_u32 s80, s80, 4096")
            e(f"buffer_store_dwordx4 {R(D+4*dt)}, v10, s[{SWS}:{SWS+3}], s80 offen sc1")

def gen_prep_flag(e):
    e(f"""s_lshl_b32 s80, s35, 9
s_lshl_b32 s81, s3, 2
s_add_u32 s80, s80, s81
s_add_u32 s80, s80, {WFLAG_OFF}
v_mov_b32 v10, s{sNONCE}
s_cmp_ge_u32 s3, 94
s_cselect_b32 s81, 0x10000000, 0
v_mov_b32 v11, s81
s_mov_b64 exec, 1
buffer_store_dword v10, v11, s[{SWS}:{SWS+3}], s80 offen sc0 sc1
s_mov_b64 exec, -1""")

def interleave2(e, A, B, per):
    bi = 0
    for i, a in enumerate(A):
        e(a)
        for _ in range(per[i] if i < len(per) else 0):
            if bi < len(B): e(B[bi]); bi += 1
    while bi < len(B):
        e(B[bi]); bi += 1

def gen_main_loop(e, kind):
    tag = kind
    naddr = [2, 3] + ([4, 5, 6, 7, 8, 9] if kind == 'F' else [4, 5])
    sIT, sDELTA, sSLOT = 86, 87, 88
    def adv_list():
        L = [f"s_add_u32 s{sSLOT}, s{sSLOT}, 1", f"s_cmp_eq_u32 s{sSLOT}, 3",
             f"s_cselect_b32 s{sDELTA}, s90, s89", f"s_cselect_b32 s{sSLOT}, 0, s{sSLOT}"]
        L += [f"v_add_u32 v{v}, s{sDELTA}, v{v}" for v in naddr]
        return L
    e(f"s_mov_b32 s{sIT}, 1\ns_mov_b32 s{sSLOT}, 0\ns_mov_b32 s89, {SLOT}\ns_mov_b32 s90, {-2*SLOT & 0xffffffff}")
    if opt.itstamps:
        e(f"s_memtime s[100:101]\ns_waitcnt lgkmcnt(0)\nv_writelane_b32 v250, s100, 10")
    e("s_waitcnt lgkmcnt(0)\ns_barrier")
    if opt.itstamps:
        e(f"s_memtime s[100:101]\ns_waitcnt lgkmcnt(0)\nv_writelane_b32 v250, s100, 0")
    for r in reads(kind, SETA, 0): e(r)
    e("s_waitcnt lgkmcnt(0)")
    rb = reads(kind, SETB, 1)
    items = rb + adv_list()
    nr = len(rb)
    def perlist(nr, nextra):
        per = [1] * 24
        rem = 24 - nr
        per = [1] * nr + [0] * rem
        k = nextra; i = nr
        while k > 0:
            per[i] += 1; k -= 1; i += 1
            if i == 24: i = max(nr, 8)
        return per
    interleave2(e, mfmas(kind, SETA, first=True), items, perlist(nr, len(items) - nr))
    e("s_waitcnt lgkmcnt(0)")
    e(f"L_ML_{tag}:")
    e("s_barrier")
    if opt.itstamps:
        e(f"s_memtime s[100:101]\ns_waitcnt lgkmcnt(0)\ns_mov_b32 m0, s{sIT}\nv_writelane_b32 v250, s100, m0")
    ra = reads(kind, SETA, 0)
    interleave2(e, mfmas(kind, SETB), ra, [1] * 24)
    e(f"""s_cmp_eq_u32 s{sIT}, 1
s_cbranch_scc0 L_ML_h1_{tag}
buffer_load_dword v249, v248, s[{STA}:{STA+3}], 0 offen
L_ML_h1_{tag}:
s_cmp_eq_u32 s{sIT}, 4
s_cbranch_scc0 L_ML_h2_{tag}
s_waitcnt vmcnt(0)
v_readfirstlane_b32 s{sNONCE}, v249
s_cmp_eq_u32 s{sNONCE}, 0
s_cbranch_scc0 L_ML_h2b_{tag}""")
    spin_nonce(e, 'H' + tag, 10)
    e(f"L_ML_h2b_{tag}:")
    gen_prep_flag(e)
    e(f"L_ML_h2_{tag}:")
    e("s_waitcnt lgkmcnt(0)")
    items = rb + adv_list() + [f"s_add_u32 s{sIT}, s{sIT}, 1", f"s_cmp_lt_u32 s{sIT}, 10"]
    interleave2(e, mfmas(kind, SETA), items, perlist(nr, len(items) - nr))
    e(f"""s_waitcnt lgkmcnt(0)
s_cbranch_scc1 L_ML_{tag}""")
    lds_count(e, 24, 10)
    e(f"""s_mul_i32 s87, s{sWAVE}, 10
s_add_u32 s87, s87, 54
s_lshl_b32 s89, s{sCB}, 9
s_lshl_b32 s90, s87, 2
s_add_u32 s89, s89, s90
s_add_u32 s35, s89, {WFLAG_OFF}
v_lshlrev_b32 v8, 2, v0
buffer_load_dword v1, v8, s[{SWS}:{SWS+3}], s35 offen sc1""")
    for m in mfmas(kind, SETB): e(m)
    if opt.itstamps:
        e(f"""s_memtime s[100:101]
s_waitcnt lgkmcnt(0)
v_writelane_b32 v250, s100, 11
s_lshl_b32 s98, s2, 3
s_add_u32 s98, s98, s{sWAVE}
s_lshl_b32 s98, s98, 6
s_add_u32 s98, s98, {STAMP_OFF + 0x40000}
v_lshlrev_b32 v251, 2, v0
s_mov_b64 exec, 0xffff
buffer_store_dword v250, v251, s[{SWS}:{SWS+3}], s98 offen
s_mov_b64 exec, -1""")

def tile_flag(e, tag):
    nyoung = 0
    if opt.wearly:
        ssm_w_setup(e, tag)
        nyoung = SSM_W_OPS()
    e(f"""s_waitcnt vmcnt({nyoung})
s_lshr_b32 s80, s{sWAVE}, 1
s_lshl_b32 s81, s{sRB}, 1
s_add_u32 s80, s80, s81
s_lshl_b32 s80, s80, 9
s_lshl_b32 s81, s{sCOL}, 1
s_and_b32 s82, s{sWAVE}, 1
s_add_u32 s81, s81, s82
s_and_b32 s82, s81, 3
s_lshl_b32 s82, s82, 7
s_lshr_b32 s81, s81, 2
s_lshl_b32 s81, s81, 2
s_add_u32 s80, s80, s81
s_add_u32 s80, s80, s82
s_add_u32 s80, s80, {TFLAG_OFF}
v_mov_b32 v10, s{sNONCE}
v_mov_b32 v11, 0
s_mov_b64 exec, 1
buffer_store_dword v10, v11, s[{SWS}:{SWS+3}], s80 offen sc0 sc1
s_mov_b64 exec, -1""")
    if opt.eprio: e("s_setprio 0")

def SSM_W_OPS():
    nsh = 8 if opt.map2 == 1 else 4
    ng = (-(-(-(-10 * 40 // nsh)) // 64)) if opt.gw else 0
    return NW * 5 + NLS * 5 + ng

def ssm_w_setup(e, tag):
    e(f"""s_waitcnt vmcnt(12)
s_mul_i32 s87, s{sWAVE}, 10
s_add_u32 s87, s87, 54
v_cmp_ne_u32 vcc, s{sNONCE}, v1
v_lshlrev_b32 v1, 4, v0
v_lshlrev_b32 v8, 2, v0
s_and_b32 s80, vcc_lo, 0x3ff
s_cbranch_scc0 L_SSM_wok{tag}""")
    poll_flags(e, 'SW' + tag, 8, 10, 35, 0x3ff)
    e(f"""L_SSM_wok{tag}:
s_mul_i32 s84, s{sCB}, 94
s_add_u32 s84, s84, s87
s_mul_i32 s84, s84, 5120
s_add_u32 s84, s84, {WF_OFF}
s_mul_i32 s85, s{sRB2}, 94
s_add_u32 s85, s85, s87
s_lshl_b32 s85, s85, 12
s_mul_i32 s88, s{sWAVE}, 15360
s_add_u32 s88, s88, {LDS_Y}
v_add_u32 v3, s88, v1""")
    rot_setup(e, 10, True)
    rot_act(e)
    if opt.sorder:
        e(f"s_cmp_eq_u32 s{sISU}, 1\ns_cbranch_scc1 L_SSM_noord{tag}")
        lds_wait_ge(e, 'O' + tag, 28, 4, 10)
        e(f"L_SSM_noord{tag}:")
    if opt.sprio: e(f"s_setprio {opt.sprio}")
    if opt.sshelp:
        w_prefetch(e, 10, NLS, 88, do_lds=False)
        e(f"s_cmp_eq_u32 s{sISU}, 1\ns_cbranch_scc1 L_SSM_skiplds{tag}")
        w_lds(e, NLS, 88)
        e(f"s_branch L_SSM_ldsdone{tag}\nL_SSM_skiplds{tag}:\ns_add_u32 s84, s84, {NLS*5120}\nL_SSM_ldsdone{tag}:")
    else:
        w_prefetch(e, 10, NLS, 88)

def x_addr_setup(e):
    e(f"""s_lshr_b32 s80, s{sWAVE}, 1
s_lshl_b32 s80, s80, 13
v_and_b32 v10, 15, v0
v_lshlrev_b32 v10, 7, v10
v_lshrrev_b32 v11, 4, v0
v_and_b32 v12, 7, v0
v_xor_b32 v11, v11, v12
v_lshlrev_b32 v11, 4, v11
v_add_u32 v10, v10, v11
v_add_u32 v2, s80, v10
v_xor_b32 v3, 64, v2""")

def p1_l2_prefetch(e, kind):
    e(f"""s_lshr_b32 s81, s2, 3
s_lshr_b32 s82, s81, 3
s_lshl_b32 s82, s82, 5
s_lshl_b32 s83, s{sRB}, 7
s_add_u32 s82, s82, s83
v_and_b32 v10, 31, v0
v_add_u32 v10, s82, v10
v_mul_u32_u24 v10, 1280, v10
v_lshrrev_b32 v11, 5, v0
s_lshl_b32 s83, s{sWAVE}, 1
s_add_u32 s83, s83, 2
v_add_u32 v11, s83, v11
v_lshlrev_b32 v11, 7, v11
v_add_u32 v10, v10, v11
buffer_load_dword v247, v10, s[{SX}:{SX+3}], 0 offen
s_and_b32 s81, s81, 7""")
    if kind == 'F':
        srd(e, STA, P_W1, 2211840)
        e(f"""s_lshl_b32 s83, s{sWAVE}, 6
v_add_u32 v10, s83, v0
v_mul_u32_u24 v11, 2731, v10
v_lshrrev_b32 v11, 16, v11
v_mul_u32_u24 v12, 24, v11
v_sub_u32 v12, v10, v12
v_mul_u32_u24 v13, 43, v12
v_lshrrev_b32 v13, 7, v13
v_mul_u32_u24 v10, 3, v13
v_sub_u32 v12, v12, v10
v_lshlrev_b32 v11, 6, v11
v_add_u32 v11, v11, v13
s_lshl_b32 s83, s81, 3
s_add_u32 s83, s83, 128
v_add_u32 v11, s83, v11
v_mul_u32_u24 v11, 3456, v11
v_lshlrev_b32 v12, 7, v12
v_add_u32 v11, v11, v12
s_mul_i32 s83, s{sJ}, 384
buffer_load_dword v247, v11, s[{STA}:{STA+3}], s83 offen""")
    else:
        e(f"""s_cmp_ge_u32 s{sWAVE}, 2
s_cselect_b32 s{STA}, s{P_BIM}, s{P_BRE}
s_cselect_b32 s{STA+1}, s{P_BIM+1}, s{P_BRE+1}
s_mov_b32 s{STA+2}, 819200
s_mov_b32 s{STA+3}, 0x20000
s_and_b32 s83, s{sWAVE}, 1
s_lshl_b32 s83, s83, 6
v_add_u32 v10, s83, v0
v_min_u32 v10, 95, v10
v_mul_u32_u24 v11, 171, v10
v_lshrrev_b32 v11, 11, v11
v_mul_u32_u24 v12, 12, v11
v_sub_u32 v12, v10, v12
s_mul_i32 s83, s{sJ}, 96
s_mul_i32 s82, s81, 12
s_add_u32 s83, s83, s82
v_add_u32 v12, s83, v12
v_min_u32 v12, 639, v12
v_mul_u32_u24 v12, 1280, v12
v_add_u32 v11, 2, v11
v_lshlrev_b32 v11, 7, v11
v_add_u32 v12, v12, v11
buffer_load_dword v247, v12, s[{STA}:{STA+3}], 0 offen""")

def consumer_start_loads(e, nbefore):
    gen_gather_setup(e, sWAVE, 'C', 0)
    for _ in range(3):
        e(f"buffer_load_dword v18, v17, s[{SG}:{SG+3}], s{sGo} offen\ns_add_u32 s{sGo}, s{sGo}, s{sGinc}")
    gen_unit_ids(e, sWAVE)
    gen_prep_issue(e, sWAVE, 16)

def consumer_common_setup(e):
    srd(e, STA, P_DBG, 256)
    e("v_mov_b32 v248, 0")

def gen_consumer_ffn(e):
    e("L_CONS_F:")
    srd(e, STB, P_B1, 3456)
    e(f"""s_mul_i32 s80, s{sJ}, 384
s_and_b32 s81, s{sWAVE}, 1
s_mul_i32 s81, s81, 192
s_add_u32 s80, s80, s81
v_lshrrev_b32 v10, 4, v0
v_lshlrev_b32 v10, 3, v10""")
    for ft in range(6):
        e(f"buffer_load_dwordx2 v[{224+2*ft}:{225+2*ft}], v10, s[{STB}:{STB+3}], s80 offen offset:{32*ft}")

    x_addr_setup(e)
    e(f"""v_lshrrev_b32 v10, 4, v0
v_bfe_u32 v11, v0, 2, 2
v_lshlrev_b32 v12, 3, v10
v_add_u32 v12, v12, v11
v_mul_u32_u24 v12, 384, v12
v_bfe_u32 v13, v0, 3, 1
v_lshlrev_b32 v13, 1, v13
v_and_b32 v14, 1, v10
v_lshlrev_b32 v14, 2, v14
v_or_b32 v13, v13, v14
v_bfe_u32 v14, v0, 1, 1
s_and_b32 s81, s{sWAVE}, 1
s_mul_i32 s81, s81, 12
v_add_u32 v14, s81, v14
v_and_b32 v15, 1, v0
v_lshlrev_b32 v15, 3, v15
v_add_u32 v12, v12, v15
v_add_u32 v12, 16384, v12""")
    for ft in range(6):
        e(f"""v_add_u32 v10, {2*ft}, v14
v_xor_b32 v10, v10, v13
v_lshlrev_b32 v10, 4, v10
v_add_u32 v{4+ft}, v12, v10""")
    e("s_waitcnt vmcnt(0)")
    gen_prep_finish(e, sWAVE, 16, 'F')
    consumer_common_setup(e)
    for ft in range(6):
        b = 36 + 4 * ft
        e(f"""v_lshlrev_b32 v{b}, 16, v{224+2*ft}
v_and_b32 v{b+1}, 0xffff0000, v{224+2*ft}
v_lshlrev_b32 v{b+2}, 16, v{225+2*ft}
v_and_b32 v{b+3}, 0xffff0000, v{225+2*ft}""")
    stamp(e, 0, 14)
    stamp_clk(e, 14, 14)
    dbgmax(e, 8)
    gen_main_loop(e, 'F')
    dbgmax(e, 2)
    if opt.eprio: e(f"s_setprio {opt.eprio}")
    stamp(e, 1, 14)
    stamp_clk(e, 15, 14)
    e(f"""s_lshr_b32 s80, s{sWAVE}, 1
s_lshl_b32 s81, s{sRB}, 1
s_add_u32 s80, s80, s81
s_mul_i32 s80, s80, 94
s_mul_i32 s81, s{sJ}, 6
s_add_u32 s80, s80, s81
s_and_b32 s81, s{sWAVE}, 1
s_mul_i32 s81, s81, 3
s_add_u32 s80, s80, s81
s_lshl_b32 s80, s80, 12
v_lshlrev_b32 v10, 4, v0""")
    k = 0
    for u in range(3):
        for tt in range(4):
            o = SETA + 4 * k; k += 1
            vals = [acc_ffn(2*u, tt), acc_ffn(2*u+1, tt)]
            tmp = 16
            for h, a in enumerate(vals):
                for r in range(4):
                    e(f"v_max_f32 v{tmp+4*h+r}, 0, v{a+r}")
            for h, a in enumerate(vals):
                for r in range(0, 4, 2):
                    e(f"v_pk_mul_f32 v[{a+r}:{a+r+1}], v[{a+r}:{a+r+1}], v[{tmp+4*h+r}:{tmp+4*h+r+1}]")
            for h, a in enumerate(vals):
                for r in range(0, 4, 2):
                    e(f"v_cvt_pk_bf16_f32 v{o+2*h+(r>>1)}, v{a+r}, v{a+r+1}")
            e(f"buffer_store_dwordx4 {R(o)}, v10, s[{SWS}:{SWS+3}], s80 offen offset:{tt*1024} sc1")
        if u < 2: e("s_add_u32 s80, s80, 4096")
    lds_count(e, 16, 12)
    stamp(e, 2, 14)
    tile_flag(e, 'F')
    dbgmax(e, 3)
    stamp(e, 3, 14)
    e("s_branch L_SSM_P2")

def gen_code_prefetch(e):
    e(f"""s_cmp_eq_u32 s{sWAVE}, 3
s_cbranch_scc0 L_CPF_done
s_getpc_b64 s[80:81]
L_CPF_pc:
s_sub_u32 s80, s80, L_CPF_pc-{NAME}
s_subb_u32 s81, s81, 0
s_lshr_b32 s82, s2, 3
s_lshl_b32 s82, s82, 11
v_and_b32 v10, 15, v0
v_lshlrev_b32 v10, 7, v10
v_add_u32 v10, s82, v10
v_min_u32 v10, L_CODE_END-{NAME}-4, v10
s_mov_b64 exec, 0xffff
global_load_dword v19, v10, s[80:81]
s_mov_b64 exec, -1
L_CPF_done:""")

def gen_consumer(e):
    e(f"""v_mov_b32 v10, {LDS_FLAG}
v_mov_b32 v12, 0
v_mov_b32 v13, 0
v_mov_b32 v14, 0
v_mov_b32 v15, 0
ds_write_b128 v10, v[12:15]
ds_write_b128 v10, v[12:15] offset:16""")
    if opt.cpf: gen_code_prefetch(e)
    consumer_start_loads(e, 0)
    e(f"""s_cmp_eq_u32 s{sISU}, 1
s_cbranch_scc1 L_CONS_U""")
    gen_consumer_ffn(e)
    gen_consumer_u(e)

def pk(op, d, a, b, c=None, bsel=None, neg=False):
    assert bsel == 0, "op_sel hi-broadcast is unsafe next to MFMA (measured)"
    n = 3 if c is not None else 2
    sel = [0, bsel] + ([0] if c is not None else [])
    selh = [1, bsel] + ([1] if c is not None else [])
    s = f"{op} v[{d}:{d+1}], v[{a}:{a+1}], v[{b}:{b+1}]" + (f", v[{c}:{c+1}]" if c is not None else "")
    s += " op_sel:[" + ",".join(map(str, sel)) + "] op_sel_hi:[" + ",".join(map(str, selh)) + "]"
    if neg:
        ng = [0, 1] + ([0] if c is not None else [])
        s += " neg_lo:[" + ",".join(map(str, ng)) + "] neg_hi:[" + ",".join(map(str, ng)) + "]"
    return s

def gen_consumer_u(e):
    e("L_CONS_U:")
    x_addr_setup(e)
    e(f"""s_and_b32 s81, s{sWAVE}, 1
s_mul_i32 s81, s81, {96*128}
s_add_u32 s81, s81, 16384
v_add_u32 v4, s81, v10
v_xor_b32 v5, 64, v4""")
    e("s_waitcnt vmcnt(0)")
    gen_prep_finish(e, sWAVE, 16, 'U')
    consumer_common_setup(e)
    stamp(e, 0, 14)
    gen_main_loop(e, 'U')
    if opt.eprio: e(f"s_setprio {opt.eprio}")
    stamp(e, 1, 14)
    def K(ct, i): return 160 + 18 * ct + 2 * i
    LAM, L8, L16, L16Q, L64, L128, L512, L1024, C2 = range(9)
    ent = {LAM: 0, L8: 1, L16: 3, L64: 6, L128: 7, L512: 8, L1024: 9, C2: 10}
    e(f"""s_and_b32 s81, s{sWAVE}, 1
s_mul_i32 s81, s81, {48*8}
s_add_u32 s81, s81, {LDS_TAB}
v_and_b32 v10, 15, v0
v_lshlrev_b32 v10, 3, v10
v_add_u32 v10, s81, v10
v_lshrrev_b32 v11, 4, v0
v_mul_u32_u24 v11, 768, v11
v_add_u32 v11, v11, v10""")
    for ct in range(3):
        for k, en in ent.items():
            e(f"ds_read_b64 v[{K(ct,k)}:{K(ct,k)+1}], v10 offset:{en*768 + ct*128}")
        e(f"ds_read_b64 v[{K(ct,L16Q)}:{K(ct,L16Q)+1}], v11 offset:{2*768 + ct*128}")
    e("s_waitcnt lgkmcnt(0)")
    LI = [2, 252, 254]
    C2I = [16, 18, 20]
    for ct in range(3):
        e(f"v_mov_b32 v{LI[ct]}, v{K(ct, LAM)+1}")
    def U(n, ct, part):
        return acc_u(n >> 1, 2 * ct + part) + 2 * (n & 1)
    def Er(ct, s): return 16 + 8 * ct + 4 * s
    def Ei(ct, s): return 18 + 8 * ct + 4 * s
    for n in range(1, 8):
        src = (n - 1) & 1; dst = n & 1
        for ct in range(3):
            pr = U(0, ct, 0) if n == 1 else Er(ct, src)
            pi = U(0, ct, 1) if n == 1 else Ei(ct, src)
            e(pk("v_pk_fma_f32", Er(ct, dst), pr, K(ct, LAM), U(n, ct, 0), 0))
            e(pk("v_pk_fma_f32", Ei(ct, dst), pi, K(ct, LAM), U(n, ct, 1), 0))
        for ct in range(3):
            pr = U(0, ct, 0) if n == 1 else Er(ct, src)
            pi = U(0, ct, 1) if n == 1 else Ei(ct, src)
            e(pk("v_pk_fma_f32", Er(ct, dst), pi, LI[ct], Er(ct, dst), 0, neg=True))
            e(pk("v_pk_fma_f32", Ei(ct, dst), pr, LI[ct], Ei(ct, dst), 0))
    def LL(ct): return 16 + 8 * ct
    for ct in range(3):
        er, ei, l8 = Er(ct, 1), Ei(ct, 1), K(ct, L8)
        e(f"""v_fma_f32 v{LL(ct)}, v{l8}, v{er}, v{er+1}
v_fma_f32 v{LL(ct)+1}, v{l8}, v{ei}, v{ei+1}
v_fma_f32 v{LL(ct)}, -v{l8+1}, v{ei}, v{LL(ct)}
v_fma_f32 v{LL(ct)+1}, v{l8+1}, v{er}, v{LL(ct)+1}""")
    def G(ct, q): return 214 + 8 * ct + 2 * q
    for ct in range(3):
        for c in range(2):
            a, b, a2, b2 = G(ct, 0) + c, G(ct, 1) + c, G(ct, 2) + c, G(ct, 3) + c
            e(f"""v_mov_b32 v{a}, v{LL(ct)+c}
v_mov_b32 v{b}, v{LL(ct)+c}
v_permlane16_swap_b32 v{a}, v{b}
v_mov_b32 v{a2}, v{a}
v_mov_b32 v{b2}, v{b}
v_permlane32_swap_b32 v{a}, v{a2}
v_permlane32_swap_b32 v{b}, v{b2}""")
    for ct in range(3):
        cfma(e, G(ct, 1), K(ct, L16), G(ct, 0), G(ct, 1))
    for ct in range(3):
        cfma(e, G(ct, 2), K(ct, L16), G(ct, 1), G(ct, 2))
    for ct in range(3):
        cfma(e, G(ct, 3), K(ct, L16), G(ct, 2), G(ct, 3))
    e(f"""s_mov_b32 s80, 0xffff0000
s_mov_b32 s81, 0
s_mov_b32 s82, 0
s_mov_b32 s83, 0x0000ffff
s_mov_b32 s90, 0
s_mov_b32 s91, 0xffff0000""")
    for ct in range(3):
        for c in range(2):
            e(f"""v_cndmask_b32 v{LL(ct)+c}, 0, v{G(ct,0)+c}, s[80:81]
v_cndmask_b32 v{LL(ct)+c}, v{LL(ct)+c}, v{G(ct,1)+c}, s[82:83]
v_cndmask_b32 v{LL(ct)+c}, v{LL(ct)+c}, v{G(ct,2)+c}, s[90:91]""")
    e(f"""s_and_b32 s84, s{sWAVE}, 1
s_mul_i32 s85, s84, {48*8}
s_add_u32 s85, s85, {LDS_LX}
v_and_b32 v10, 15, v0
v_lshlrev_b32 v10, 3, v10
v_add_u32 v10, s85, v10
s_lshl_b32 s85, s84, 2
s_add_u32 s85, s85, {LDS_FLAG}
v_mov_b32 v11, s85
s_cmp_ge_u32 s{sWAVE}, 2
s_cbranch_scc1 L_U_wt1""")
    for ct in range(3):
        e(f"ds_write_b64 v10, v[{G(ct,3)}:{G(ct,3)+1}] offset:{ct*128}")
    e(f"""v_mov_b32 v12, 1
s_waitcnt lgkmcnt(0)
ds_write_b32 v11, v12
s_branch L_U_lb
L_U_wt1:
s_mov_b32 s85, 0
L_U_pairwait:
ds_read_b32 v12, v11
s_add_u32 s85, s85, 1
s_waitcnt lgkmcnt(0)
v_readfirstlane_b32 s86, v12
s_cmp_ge_u32 s85, {opt.spin_limit}
s_cbranch_scc1 L_U_pairok
s_cmp_eq_u32 s86, 0
s_cbranch_scc1 L_U_pairwait
L_U_pairok:""")
    for ct in range(3):
        e(f"ds_read_b64 v[{G(ct,0)}:{G(ct,0)+1}], v10 offset:{ct*128}")
    e("s_waitcnt lgkmcnt(0)")
    for ct in range(3):
        cfma(e, G(ct, 1), K(ct, L64), G(ct, 0), G(ct, 3))
    e(f"""s_mov_b32 s80, 0xffff0000
s_mov_b32 s81, 0
s_mov_b32 s82, 0
s_mov_b32 s83, 0x0000ffff
v_cndmask_b32 v240, v{G(0,1)}, v{G(1,1)}, s[80:81]
v_cndmask_b32 v241, v{G(0,1)+1}, v{G(1,1)+1}, s[80:81]
v_cndmask_b32 v240, v240, v{G(2,1)}, s[82:83]
v_cndmask_b32 v241, v241, v{G(2,1)+1}, s[82:83]
v_mov_b32 v242, s{sNONCE}
v_mov_b32 v243, s{sNONCE}
s_mul_i32 s85, s{sJ}, 16
s_add_u32 s85, s85, s{sRB}
s_mul_i32 s85, s85, 96
s_mul_i32 s86, s84, 48
s_add_u32 s85, s85, s86
s_lshl_b32 s85, s85, 4
s_add_u32 s85, s85, {AG_OFF}
v_lshlrev_b32 v12, 4, v0
s_mov_b32 exec_lo, -1
s_mov_b32 exec_hi, 0x0000ffff
buffer_store_dwordx4 v[240:243], v12, s[{SWS}:{SWS+3}], s85 offen sc0 sc1
s_mov_b64 exec, -1
L_U_lb:""")
    lds_count(e, 16, 12)
    stamp(e, 2, 14)
    LB = 112 + 0
    lbregs = [40 + 4 * i for i in range(6)] + [240 + 4 * i for i in range(4)] + [32 + 0, 36]
    lbregs = [40 + 4 * i for i in range(6)] + [240, 244, 248] + [216, 224, 232]
    e(f"""s_mul_i32 s85, s{sJ}, {16*96}
s_mul_i32 s86, s84, 48
s_add_u32 s85, s85, s86
s_lshl_b32 s85, s85, 4
s_add_u32 s85, s85, {AG_OFF}
v_lshrrev_b32 v12, 4, v0
v_lshlrev_b32 v12, 2, v12
v_sub_u32 v12, s{sRB}, v12
v_mov_b32 v9, 0x10000000
v_and_b32 v13, 15, v0""")
    for m in range(4):
        e(f"""v_subrev_u32 v14, {1+m}, v12
v_cmp_le_i32 s[{88+2*m}:{89+2*m}], 0, v14
v_mul_u32_u24 v15, 96, v14
v_add_u32 v15, v15, v13
v_lshlrev_b32 v15, 4, v15
v_cndmask_b32 v{4+m}, v9, v15, s[{88+2*m}:{89+2*m}]""")
    e(f"""v_sub_u32 v14, s{sRB}, v0
v_subrev_u32 v14, 1, v14
v_cmp_le_i32 vcc, 0, v14
v_cmp_gt_u32 s[96:97], 16, v0
s_and_b64 s[96:97], s[96:97], vcc
v_mul_u32_u24 v15, 96, v14
v_add_u32 v15, 47, v15
v_lshlrev_b32 v15, 4, v15
v_add_u32 v15, 8, v15
v_cndmask_b32 v8, v9, v15, s[96:97]
s_mov_b32 s86, 0
L_U_cp:
buffer_load_dword v14, v8, s[{SWS}:{SWS+3}], s85 offen sc1
s_add_u32 s86, s86, 1
s_waitcnt vmcnt(0)
v_cmp_ne_u32 vcc, s{sNONCE}, v14
s_cmp_ge_u32 s86, {opt.spin_limit}
s_cbranch_scc1 L_U_cpok
s_and_b64 vcc, vcc, s[96:97]
s_cbranch_scc0 L_U_cpok
s_sleep 2
s_branch L_U_cp
L_U_cpok:""")
    stamp(e, 11, 14)
    e(f"s_mov_b32 s86, 0\nL_U_lbloop:")
    for m in range(4):
        for ct in range(3):
            r = lbregs[m * 3 + ct]
            e(f"buffer_load_dwordx4 {R(r)}, v{4+m}, s[{SWS}:{SWS+3}], s85 offen offset:{ct*256} sc1")
    e("s_add_u32 s86, s86, 1\ns_mov_b64 s[96:97], 0\ns_waitcnt vmcnt(0)")
    for m in range(4):
        for ct in range(3):
            r = lbregs[m * 3 + ct]
            e(f"""v_cmp_ne_u32 vcc, s{sNONCE}, v{r+2}
s_and_b64 vcc, vcc, s[{88+2*m}:{89+2*m}]
s_or_b64 s[96:97], s[96:97], vcc""")
    e(f"""s_cmp_ge_u32 s86, {opt.spin_limit}
s_cbranch_scc1 L_U_lbok
s_cmp_eq_u64 s[96:97], 0
s_cbranch_scc0 L_U_lbloop
L_U_lbok:""")
    def S(m, ct): return lbregs[m * 3 + ct]
    for ct in range(3):
        cfma(e, S(2, ct), K(ct, L128), S(3, ct), S(2, ct))
    for ct in range(3):
        cfma(e, S(1, ct), K(ct, L128), S(2, ct), S(1, ct))
    for ct in range(3):
        cfma(e, S(0, ct), K(ct, L128), S(1, ct), S(0, ct))
    for ct in range(3):
        z, b, t, u = S(0, ct), S(1, ct), S(2, ct), S(3, ct)
        e(f"""v_mov_b32 v{b}, v{z}
v_mov_b32 v{b+1}, v{z+1}
v_permlane16_swap_b32 v{z}, v{b}
v_permlane16_swap_b32 v{z+1}, v{b+1}""")
        cfma(e, t, K(ct, L512), b, z)
        e(f"""v_mov_b32 v{u}, v{t}
v_mov_b32 v{u+1}, v{t+1}
v_permlane32_swap_b32 v{t}, v{u}
v_permlane32_swap_b32 v{t+1}, v{u+1}""")
        cfma(e, z, K(ct, L1024), u, t)
    e(f"s_cmp_ge_u32 s{sWAVE}, 2\ns_cbranch_scc0 L_U_hw0")
    for ct in range(3):
        cfma(e, S(1, ct), K(ct, L64), S(0, ct), G(ct, 0))
    e("s_branch L_U_hw1\nL_U_hw0:")
    for ct in range(3):
        e(f"v_mov_b32 v{S(1,ct)}, v{S(0,ct)}\nv_mov_b32 v{S(1,ct)+1}, v{S(0,ct)+1}")
    e("L_U_hw1:\ns_nop 1")
    for ct in range(3):
        cfma(e, S(2, ct), K(ct, L16Q), S(1, ct), LL(ct))
    for ct in range(3):
        hl, l8, er, ei = S(2, ct), K(ct, L8), Er(ct, 1), Ei(ct, 1)
        cr, ci = S(3, ct), S(3, ct) + 2
        e(f"""v_mov_b32 v{cr}, v{hl}
v_mov_b32 v{ci}, v{hl+1}
v_fma_f32 v{cr+1}, v{l8}, v{hl}, v{er}
v_fma_f32 v{ci+1}, v{l8}, v{hl+1}, v{ei}
v_fma_f32 v{cr+1}, -v{l8+1}, v{hl+1}, v{cr+1}
v_fma_f32 v{ci+1}, v{l8+1}, v{hl}, v{ci+1}""")
    for n in range(8):
        for ct in range(3):
            pr = S(3, ct) if n == 0 else U(n - 1, ct, 0)
            pi = S(3, ct) + 2 if n == 0 else U(n - 1, ct, 1)
            e(pk("v_pk_fma_f32", U(n, ct, 0), pr, K(ct, LAM), U(n, ct, 0), 0))
            e(pk("v_pk_fma_f32", U(n, ct, 1), pi, K(ct, LAM), U(n, ct, 1), 0))
        for ct in range(3):
            pr = S(3, ct) if n == 0 else U(n - 1, ct, 0)
            pi = S(3, ct) + 2 if n == 0 else U(n - 1, ct, 1)
            e(pk("v_pk_fma_f32", U(n, ct, 0), pi, LI[ct], U(n, ct, 0), 0, neg=True))
            e(pk("v_pk_fma_f32", U(n, ct, 1), pr, LI[ct], U(n, ct, 1), 0))
    stamp(e, 3, 14)
    e(f"""v_and_b32 v10, 15, v0
v_lshrrev_b32 v11, 4, v0
v_lshlrev_b32 v11, 3, v11
v_sub_u32 v10, v10, v11""")
    for ct in range(3):
        e(f"v_mov_b32 v{C2I[ct]}, v{K(ct, C2)+1}")
    e("v_mov_b32 v14, 0x3f80\nv_mov_b32 v15, 0x3f800000")
    for b in range(2):
        e(f"v_add_u32 v12, {16*b}, v10")
        for rr in range(4):
            d = 40 + 4 * b + rr
            e(f"""v_cmp_eq_u32 vcc, {2*rr}, v12
v_cndmask_b32 v{d}, 0, v14, vcc
v_cmp_eq_u32 vcc, {2*rr+1}, v12
v_cndmask_b32 v{d}, v{d}, v15, vcc""")
    e(f"""s_lshr_b32 s80, s{sWAVE}, 1
s_lshl_b32 s81, s{sRB}, 1
s_add_u32 s80, s80, s81
s_mul_i32 s80, s80, 94
s_mul_i32 s81, s{sJ}, 6
s_mul_i32 s82, s84, 3
s_add_u32 s81, s81, s82
s_add_u32 s80, s80, s81
s_add_u32 s80, s80, 54
s_lshl_b32 s80, s80, 12
v_lshlrev_b32 v10, 4, v0""")
    for ct in range(3):
        c2 = K(ct, C2)
        for i in range(4):
            if i & 1:
                t0, t1, t2, t3 = 216, 218, 220, 222
                m0, m1, m2, m3 = 4, 6, 8, 12
            else:
                t0, t1, t2, t3 = 208 + 6, 24, 26, 28
                t0 = 22
                m0, m1, m2, m3 = 30, 32, 34, 36
            for s_, (tr, ti, mr, mi) in enumerate(((t0, t2, m0, m2), (t1, t3, m1, m3))):
                n = 2 * i + s_
                hr, hi = U(n, ct, 0), U(n, ct, 1)
                e(pk("v_pk_mul_f32", mr, hr, c2, None, 0))
                e(pk("v_pk_mul_f32", mi, hi, c2, None, 0, neg=True))
            for s_, (tr, ti, mr, mi) in enumerate(((t0, t2, m0, m2), (t1, t3, m1, m3))):
                n = 2 * i + s_
                hr, hi = U(n, ct, 0), U(n, ct, 1)
                e(pk("v_pk_fma_f32", tr, hi, C2I[ct], mr, 0, neg=True))
                e(pk("v_pk_fma_f32", ti, hr, C2I[ct], mi, 0, neg=True))
            e(f"""v_cvt_pk_bf16_f32 v{48+i}, v{t0}, v{t1}
v_cvt_pk_bf16_f32 v{52+i}, v{t0+1}, v{t1+1}
v_cvt_pk_bf16_f32 v{56+i}, v{t2}, v{t3}
v_cvt_pk_bf16_f32 v{60+i}, v{t2+1}, v{t3+1}""")
        def D(part, tt): return 224 + 16 * part + 4 * tt
        for part in range(2):
            for a in range(2):
                for b in range(2):
                    A = 48 + 8 * part + 4 * a
                    e(f"v_mfma_f32_16x16x32_bf16 {R(D(part, 2*b+a))}, {R(A)}, {R(40+4*b)}, 0")
        if True:
            e(f"s_add_u32 s82, s81, {ct}\ns_cmp_ge_u32 s82, 40\ns_cbranch_scc1 L_U_skip{ct}")
            for tt in range(4):
                o = acc_u(tt, 2 * ct)
                dr, di = D(0, tt), D(1, tt)
                e(f"""v_cvt_pk_bf16_f32 v{o}, v{dr}, v{dr+1}
v_cvt_pk_bf16_f32 v{o+1}, v{dr+2}, v{dr+3}
v_cvt_pk_bf16_f32 v{o+2}, v{di}, v{di+1}
v_cvt_pk_bf16_f32 v{o+3}, v{di+2}, v{di+3}
buffer_store_dwordx4 {R(o)}, v10, s[{SWS}:{SWS+3}], s80 offen offset:{tt*1024} sc1""")
            e(f"L_U_skip{ct}:\ns_nop 7\ns_add_u32 s80, s80, 4096")
    stamp(e, 4, 14)
    tile_flag(e, 'U')
    dbgmax(e, 4)
    stamp(e, 5, 14)
    e("s_branch L_SSM_P2")

ACC2 = 16
WSL = 96
ASL = 196
NW, NA = 5, 3
def acc2(dt, tt): return ACC2 + (dt * 4 + tt) * 4

def wrap_w(e):
    if not opt.rot: return
    e("""s_sub_u32 s91, s91, 1
s_cmp_eq_u32 s91, 0
s_cselect_b32 s95, s93, 0
s_sub_u32 s84, s84, s95""")

def wrap_a(e):
    if not opt.rot: return
    e("""s_sub_u32 s92, s92, 1
s_cmp_eq_u32 s92, 0
s_cselect_b32 s95, s94, 0
s_sub_u32 s85, s85, s95""")

def rot_setup(e, n_sgpr_or_const, is_const):
    if not opt.rot: return
    if opt.map2 == 1:
        e(f"""s_and_b32 s95, s{sCB}, 3
s_lshl_b32 s95, s95, 1
s_add_u32 s95, s95, s{sRB2}
s_and_b32 s95, s95, 7""")
    else:
        e(f"""s_and_b32 s95, s{sRB2}, 3
s_lshl_b32 s95, s95, 1
s_add_u32 s95, s95, s{sCB}
s_and_b32 s95, s95, 7""")
    n = f"{n_sgpr_or_const}" if is_const else f"s{n_sgpr_or_const}"
    e(f"""s_mul_i32 s90, s95, {n}
s_lshr_b32 s90, s90, 3
s_sub_u32 s91, {n}, s90
s_mov_b32 s92, s91
s_mul_i32 s93, {n}, 5120
s_mul_i32 s94, {n}, 4096
s_mul_i32 s95, s90, 5120
s_add_u32 s84, s84, s95""")

def rot_act(e):
    if not opt.rot: return
    e("""s_lshl_b32 s95, s90, 12
s_add_u32 s85, s85, s95""")

def gen_p2_stream(e, tag, nsteps, extra_hook=None):
    queue = []
    def ld_w(s):
        b = WSL + 20 * (s % NW)
        for dt in range(5):
            if dt < 4:
                e(f"buffer_load_dwordx4 {R(b+4*dt)}, v1, s[{SWS}:{SWS+3}], s84 offen offset:{dt*1024} sc1")
            else:
                e(f"s_add_u32 s84, s84, 4096")
                e(f"buffer_load_dwordx4 {R(b+4*dt)}, v1, s[{SWS}:{SWS+3}], s84 offen sc1")
                e(f"s_add_u32 s84, s84, 1024")
            queue.append(('w', s))
        wrap_w(e)
    def ld_a(s):
        b = ASL + 16 * (s % NA)
        for tt in range(4):
            e(f"buffer_load_dwordx4 {R(b+4*tt)}, v1, s[{SWS}:{SWS+3}], s85 offen offset:{tt*1024} sc1")
            queue.append(('a', s))
        e(f"s_add_u32 s85, s85, 4096")
        wrap_a(e)
    return ld_w, ld_a, queue

def p2_role(e, tag, nsteps):
    pass

def emit_stream(e, nsteps, ld_w, ld_a, queue, NL, vL, late_lds=None):
    if opt.ststamps:
        e(f"s_memtime s[100:101]\ns_waitcnt lgkmcnt(0)\nv_writelane_b32 v250, s100, 0")
    for s in range(min(NA, nsteps)): ld_a(s)
    if late_lds is not None: w_lds(e, NL, late_lds, queue)
    for s in range(nsteps):
        idx = [i for i, q in enumerate(queue) if q in (('w', s), ('a', s))]
        inlds = NW <= s < NW + NL
        if idx:
            last = max(idx)
            n = len(queue) - 1 - last
            e(f"s_waitcnt vmcnt({n})" + (" lgkmcnt(0)" if inlds else ""))
            del queue[:last + 1]
        elif inlds:
            e("s_waitcnt lgkmcnt(0)")
        if opt.ststamps:
            e(f"s_memtime s[100:101]\ns_waitcnt lgkmcnt(0)\nv_writelane_b32 v250, s100, {s+1}")
        wb = WSL + 20 * (s % NW); ab = ASL + 16 * (s % NA)
        for dt in range(5):
            for tt in range(4):
                d = acc2(dt, tt)
                c = "0" if s == 0 else R(d)
                e(f"v_mfma_f32_16x16x32_bf16 {R(d)}, {R(wb+4*dt)}, {R(ab+4*tt)}, {c}")
        if s + NA < nsteps: ld_a(s + NA)
        t = s + NW
        if t < nsteps and t >= NW + NL:
            ld_w(t)
        t = s + 2
        if NW <= t < min(NW + NL, nsteps):
            li = [i for i, q in enumerate(queue) if q == ('l', t)]
            if li:
                e(f"s_waitcnt vmcnt({len(queue) - 1 - max(li)})")
                del queue[:max(li) + 1]
            for dt in range(5):
                e(f"ds_read_b128 {R(WSL + 20*(t % NW) + 4*dt)}, v{vL} offset:{(t-NW)*5120 + dt*1024}")

def lds_signal(e, off, vt):
    e(f"""v_mov_b32 v{vt}, {LDS_FLAG + off}
v_mov_b32 v{vt+1}, 1
ds_write_b32 v{vt}, v{vt+1}""")

def lds_count(e, off, vt):
    e(f"""v_mov_b32 v{vt}, {LDS_FLAG + off}
v_mov_b32 v{vt+1}, 1
s_mov_b64 exec, 1
ds_add_u32 v{vt}, v{vt+1}
s_mov_b64 exec, -1""")

def lds_wait_ge(e, tag, off, n, vt):
    e(f"""v_mov_b32 v{vt}, {LDS_FLAG + off}
s_mov_b32 s80, 0
L_lwg_{tag}:
ds_read_b32 v{vt+1}, v{vt}
s_add_u32 s80, s80, 1
s_waitcnt lgkmcnt(0)
v_readfirstlane_b32 s81, v{vt+1}
s_cmp_ge_u32 s80, {opt.spin_limit * 4}
s_cbranch_scc1 L_lwg_done_{tag}
s_cmp_ge_u32 s81, {n}
s_cbranch_scc1 L_lwg_done_{tag}
s_sleep 1
s_branch L_lwg_{tag}
L_lwg_done_{tag}:""")

def lds_wait(e, tag, off, vt):
    e(f"""v_mov_b32 v{vt}, {LDS_FLAG + off}
s_mov_b32 s80, 0
L_lw_{tag}:
ds_read_b32 v{vt+1}, v{vt}
s_add_u32 s80, s80, 1
s_waitcnt lgkmcnt(0)
v_readfirstlane_b32 s81, v{vt+1}
s_cmp_ge_u32 s80, {opt.spin_limit * 4}
s_cbranch_scc1 L_lw_done_{tag}
s_cmp_eq_u32 s81, 0
s_cbranch_scc0 L_lw_done_{tag}
s_sleep 1
s_branch L_lw_{tag}
L_lw_done_{tag}:""")

def gen_p2(e):
    e("L_FFN_P2:")
    e(f"""s_mul_i32 s80, s{sRB2}, 94
s_add_u32 s85, s85, s80
s_lshl_b32 s85, s85, 12
v_add_u32 v3, s87, v1""")
    rot_act(e)
    e(f"""s_mov_b32 s88, s84
s_mov_b32 s84, s86""")
    nsh_ = 8 if opt.map2 == 1 else 4
    ng_ = (-(-(-(-14 * 40 // nsh_)) // 64)) if opt.gw else 0
    e(f"s_waitcnt vmcnt({NLF*5})")
    gen_gate_compute(e)
    e("s_mov_b32 s84, s88")
    ld_w, ld_a, queue = gen_p2_stream(e, 'F', 14)
    stamp(e, 3, 14)
    e(f"s_cmp_eq_u32 s86, 0\ns_cbranch_scc0 L_FFN_lw")
    e(f"""v_and_b32 v2, 3, v0
v_lshlrev_b32 v2, 7, v2
v_lshrrev_b32 v4, 2, v0
v_lshlrev_b32 v4, 2, v4
v_add_u32 v2, v2, v4
s_lshl_b32 s89, s{sRB2}, 9
s_add_u32 s89, s89, {TFLAG_OFF}""")
    poll_flags(e, 'FT', 2, 10, 89, 0x3ffff)
    if opt.sshelp: lds_count(e, 20, 10)
    lds_signal(e, 8, 10)
    e("s_branch L_FFN_go\nL_FFN_lw:\ns_waitcnt vmcnt(0)")
    if opt.sshelp: lds_count(e, 20, 10)
    lds_wait(e, 'F', 8, 10)
    e("L_FFN_go:")
    if opt.prio: e(f"s_setprio {opt.prio}")
    stamp(e, 4, 14)
    if opt.l2pf2: l2_prefetch(e, 85, 14 * 32, 4 if opt.map2 == 1 else 8, f"s{sCB}", 3 if opt.map2 == 1 else 7, 2 if opt.map2 == 1 else 1)
    del queue[:]
    e(f"s_cmp_ge_u32 s86, 2\ns_cbranch_scc1 L_FFN_13")
    emit_stream(e, 14, ld_w, ld_a, queue, NLF, 3, 87 if opt.ldslate else None)
    e("s_branch L_FFN_done")
    e("L_FFN_13:")
    del queue[:]
    emit_stream(e, 13, ld_w, ld_a, queue, NLF, 3, 87 if opt.ldslate else None)
    e("L_FFN_done:")
    dbgmax(e, 5)
    if opt.ststamps:
        e(f"""s_memtime s[100:101]
s_waitcnt lgkmcnt(0)
v_writelane_b32 v250, s100, 15
s_lshl_b32 s98, s2, 3
s_add_u32 s98, s98, s{sWAVE}
s_lshl_b32 s98, s98, 6
s_add_u32 s98, s98, {STAMP_OFF + 0x40000}
v_lshlrev_b32 v251, 2, v0
s_mov_b64 exec, 0xffff
buffer_store_dword v250, v251, s[{SWS}:{SWS+3}], s98 offen
s_mov_b64 exec, -1""")
    stamp(e, 5, 14)
    e(f"""s_mul_i32 s80, s86, 20480
v_add_u32 v2, s80, v1""")
    for tt in range(4):
        for dt in range(5):
            e(f"ds_write_b128 v2, {R(acc2(dt,tt))} offset:{LDS_F + (tt*5+dt)*1024}")
    e("s_waitcnt lgkmcnt(0)\ns_barrier")
    stamp(e, 6, 14)
    e("s_branch L_END")
    e("L_SSM_P2:")
    if not opt.wearly: ssm_w_setup(e, 'P')
    ld_w, ld_a, queue = gen_p2_stream(e, 'S', 10)
    stamp(e, 6, 14)
    e(f"s_cmp_eq_u32 s{sWAVE}, 0\ns_cbranch_scc0 L_SSM_lw")
    e(f"""v_and_b32 v2, 3, v0
v_lshlrev_b32 v2, 7, v2
v_lshrrev_b32 v4, 2, v0
v_lshlrev_b32 v4, 2, v4
v_add_u32 v2, v2, v4
s_lshl_b32 s89, s{sRB2}, 9
s_add_u32 s89, s89, {TFLAG_OFF}""")
    poll_flags(e, 'ST', 2, 10, 89, 0xfffc0000, sleep=opt.ssleep)
    lds_signal(e, 12, 10)
    e("s_branch L_SSM_go\nL_SSM_lw:\ns_waitcnt vmcnt(0)")
    lds_wait(e, 'S', 12, 10)
    e("L_SSM_go:")
    if opt.sshelp:
        e(f"s_cmp_eq_u32 s{sISU}, 1\ns_cbranch_scc0 L_SSM_nohw")
        lds_wait_ge(e, 'H', 20, 4, 10)
        e("L_SSM_nohw:")
    stamp(e, 7, 14)
    if opt.l2pf2: l2_prefetch(e, 85, 10 * 32, 4 if opt.map2 == 1 else 8, f"s{sCB}", 3 if opt.map2 == 1 else 7, 2 if opt.map2 == 1 else 1)
    del queue[:]
    emit_stream(e, 10, ld_w, ld_a, queue, NLS, 3)
    if opt.ststamps:
        e(f"""s_memtime s[100:101]
s_waitcnt lgkmcnt(0)
v_writelane_b32 v250, s100, 15
s_lshl_b32 s98, s2, 3
s_add_u32 s98, s98, s{sWAVE}
s_lshl_b32 s98, s98, 6
s_add_u32 s98, s98, {STAMP_OFF + 0x40000}
v_lshlrev_b32 v251, 2, v0
s_mov_b64 exec, 0xffff
buffer_store_dword v250, v251, s[{SWS}:{SWS+3}], s98 offen
s_mov_b64 exec, -1""")
    stamp(e, 8, 14)
    dbgmax(e, 6)
    XR, DK, B2, GG = 96, 106, 116, 126
    e(f"""s_lshr_b32 s80, s{sWAVE}, 1
s_lshl_b32 s80, s80, 5
s_and_b32 s81, s{sWAVE}, 1
s_lshl_b32 s81, s81, 3
s_add_u32 s80, s80, s81
s_lshl_b32 s81, s{sRB2}, 6
s_add_u32 s80, s80, s81
v_bfe_u32 v2, v0, 3, 1
v_lshlrev_b32 v2, 4, v2
v_and_b32 v3, 7, v0
v_add_u32 v2, v2, v3
v_add_u32 v2, s80, v2
v_lshrrev_b32 v3, 4, v0
v_lshlrev_b32 v4, 3, v3
s_mul_i32 s81, s{sCB}, 160
v_mul_u32_u24 v5, 1280, v2
v_add_u32 v5, v5, v4
v_lshlrev_b32 v6, 3, v2""")
    srd(e, STA, P_AX, 2621440)
    for dt in range(5):
        e(f"buffer_load_dwordx2 v[{XR+2*dt}:{XR+2*dt+1}], v5, s[{STA}:{STA+3}], s81 offen offset:{32*dt}")
    srd(e, STB, P_DSK, 1280)
    for dt in range(5):
        e(f"buffer_load_dwordx2 v[{DK+2*dt}:{DK+2*dt+1}], v4, s[{STB}:{STB+3}], s81 offen offset:{32*dt}")
    srd(e, STA, P_B2, 1280)
    for dt in range(5):
        e(f"buffer_load_dwordx2 v[{B2+2*dt}:{B2+2*dt+1}], v4, s[{STA}:{STA+3}], s81 offen offset:{32*dt}")
    e(f"s_mov_b32 s82, {G_OFF}")
    e(f"buffer_load_dwordx2 v[{GG}:{GG+1}], v6, s[{SWS}:{SWS+3}], s82 offen sc1")
    e(f"""s_mul_i32 s83, s{sWAVE}, 15360
s_add_u32 s83, s83, {LDS_Y}
v_add_u32 v7, s83, v1""")
    OWN = 130
    for w in range(4):
        e(f"s_cmp_eq_u32 s{sWAVE}, {w}\ns_cbranch_scc0 L_YW_{w}")
        sl = 0
        for tt in range(4):
            if tt == w: continue
            for dt in range(5):
                e(f"ds_write_b128 v7, {R(acc2(dt,tt))} offset:{sl * 5120 + dt * 1024}")
            sl += 1
        for dt in range(5):
            for r in range(4):
                e(f"v_mov_b32 v{OWN+4*dt+r}, v{acc2(dt,w)+r}")
        e(f"s_branch L_YW_done\nL_YW_{w}:")
    e("L_YW_done:")
    for k in range(3):
        e(f"""s_cmp_ge_u32 {k}, s{sWAVE}
s_cselect_b32 s80, {k+1}, {k}
s_cselect_b32 s81, 0, 1
s_sub_u32 s81, s{sWAVE}, s81
s_mul_i32 s80, s80, 15360
s_mul_i32 s81, s81, 5120
s_add_u32 s80, s80, s81
s_add_u32 s80, s80, {LDS_Y}
v_add_u32 v{8+k}, s80, v1""")
    e(f"""s_mul_i32 s80, s{sWAVE}, 5120
v_add_u32 v11, s80, v1
v_add_u32 v12, 40960, v11""")
    e("s_waitcnt lgkmcnt(0)\ns_barrier")
    stamp(e, 9, 14)
    YR, FR = 16, 150
    for k in range(3):
        for dt in range(5):
            e(f"ds_read_b128 {R(YR+20*k+4*dt)}, v{8+k} offset:{dt*1024}")
    for w2 in range(4):
        for dt in range(5):
            e(f"ds_read_b128 {R(FR+20*w2+4*dt)}, v{11+(w2>>1)} offset:{(w2&1)*20480 + dt*1024}")
    e(f"""s_waitcnt vmcnt(0)
v_sub_f32 v13, 1.0, v{GG}
v_cvt_pk_bf16_f32 v13, v13, v13
v_and_b32 v13, 0xffff0000, v13""")
    if opt.check_g:
        e(f"""v_cmp_ne_u32 vcc, s{sNONCE}, v{GG+1}
v_mov_b32 v14, 0x7fc00000
v_cndmask_b32 v{GG}, v{GG}, v14, vcc""")
    e("s_waitcnt lgkmcnt(0)")
    for k in range(3):
        for i in range(0, 20, 2):
            e(f"v_pk_add_f32 v[{OWN+i}:{OWN+i+1}], v[{OWN+i}:{OWN+i+1}], v[{YR+20*k+i}:{YR+20*k+i+1}]")
    for k in range(1, 4):
        for i in range(0, 20, 2):
            e(f"v_pk_add_f32 v[{FR+i}:{FR+i+1}], v[{FR+i}:{FR+i+1}], v[{FR+20*k+i}:{FR+20*k+i+1}]")
    srd(e, SOUT, P_OUT, 5242880)
    e(f"""v_mul_u32_u24 v5, 2560, v2
v_lshlrev_b32 v4, 4, v3
v_add_u32 v5, v5, v4
s_mul_i32 s81, s{sCB}, 320""")
    for dt in range(5):
        T = 16 + 12 * dt
        for nm, src in ((0, XR), (4, DK), (8, B2)):
            e(f"""v_lshlrev_b32 v{T+nm}, 16, v{src+2*dt}
v_and_b32 v{T+nm+1}, 0xffff0000, v{src+2*dt}
v_lshlrev_b32 v{T+nm+2}, 16, v{src+2*dt+1}
v_and_b32 v{T+nm+3}, 0xffff0000, v{src+2*dt+1}""")
        y, f = OWN + 4 * dt, FR + 4 * dt
        for r in range(0, 4, 2):
            e(f"v_pk_fma_f32 v[{y+r}:{y+r+1}], v[{T+r}:{T+r+1}], v[{T+4+r}:{T+4+r+1}], v[{y+r}:{y+r+1}]")
            e(f"v_pk_add_f32 v[{f+r}:{f+r+1}], v[{f+r}:{f+r+1}], v[{T+8+r}:{T+8+r+1}]")
        o_ = 232 + 4 * dt if dt < 5 else 0
        for r in range(4):
            e(f"v_mul_f32 v{T+r}, v{GG}, v{y+r}")
        for r in range(4):
            e(f"v_fma_f32 v{o_+r}, v13, v{f+r}, v{T+r}")
        e(f"buffer_store_dwordx4 {R(o_)}, v5, s[{SOUT}:{SOUT+3}], s81 offen offset:{dt*64}")
    stamp(e, 10, 14)
    if opt.dbgtime: e("s_waitcnt vmcnt(0)")
    dbgmax(e, 7)
    e("s_branch L_END")

def gen_gate_loads(e, W=84):
    srd(e, STA, P_GW, 1280)
    srd(e, STB, P_AX, 2621440)
    e(f"""v_lshlrev_b32 v12, 4, v0
v_lshlrev_b32 v13, 2, v0
s_lshl_b32 s80, s2, 3
s_lshl_b32 s81, s{W}, 1
s_add_u32 s80, s80, s81
s_mul_i32 s81, s80, 1280
s_add_u32 s82, s81, 1280
buffer_load_dwordx4 v[16:19], v12, s[{STA}:{STA+3}], 0 offen
buffer_load_dword v20, v13, s[{STA}:{STA+3}], 0 offen offset:1024
buffer_load_dwordx4 v[22:25], v12, s[{STB}:{STB+3}], s81 offen
buffer_load_dword v26, v13, s[{STB}:{STB+3}], s81 offen offset:1024
buffer_load_dwordx4 v[28:31], v12, s[{STB}:{STB+3}], s82 offen
buffer_load_dword v32, v13, s[{STB}:{STB+3}], s82 offen offset:1024""")

def gen_gate_compute(e):
    e("v_mov_b32 v40, 0\nv_mov_b32 v41, 0")
    for m in range(5):
        e(f"""v_lshlrev_b32 v36, 16, v{16+m}
v_and_b32 v37, 0xffff0000, v{16+m}""")
        for row in range(2):
            x = 22 + 6 * row + m
            e(f"""v_lshlrev_b32 v38, 16, v{x}
v_and_b32 v39, 0xffff0000, v{x}
v_mul_f32 v38, v38, v36
v_mul_f32 v39, v39, v37
v_cvt_pk_bf16_f32 v38, v38, v39
v_lshlrev_b32 v39, 16, v38
v_and_b32 v38, 0xffff0000, v38
v_add_f32 v{40+row}, v{40+row}, v39
v_add_f32 v{40+row}, v{40+row}, v38""")
    for sh in ("row_shr:1", "row_shr:2", "row_shr:4", "row_shr:8", "row_bcast:15 row_mask:0xa", "row_bcast:31 row_mask:0xc"):
        for row in range(2):
            e(f"v_add_f32 v{40+row}, v{40+row}, v{40+row} {sh}")
    e("""v_readlane_b32 s80, v40, 63
v_readlane_b32 s81, v41, 63""")
    e(f"""v_mov_b32 v42, s80
v_mov_b32 v43, s81
v_cmp_eq_u32 vcc, 1, v0
v_cndmask_b32 v42, v42, v43, vcc
v_cvt_pk_bf16_f32 v42, v42, v42
v_and_b32 v42, 0xffff0000, v42
v_mul_f32 v42, 0xbfb8aa3b, v42
v_exp_f32 v42, v42
v_add_f32 v42, 1.0, v42
v_rcp_f32 v42, v42
v_cvt_pk_bf16_f32 v42, v42, v42
v_and_b32 v42, 0xffff0000, v42
v_mov_b32 v43, s{sNONCE}
v_lshlrev_b32 v44, 3, v0
s_lshl_b32 s80, s2, 3
s_lshl_b32 s81, s84, 1
s_add_u32 s80, s80, s81
s_lshl_b32 s80, s80, 3
s_add_u32 s80, s80, {G_OFF}
s_mov_b64 exec, 3
buffer_store_dwordx2 v[42:43], v44, s[{SWS}:{SWS+3}], s80 offen sc0 sc1
s_mov_b64 exec, -1""")

def generate(path):
    e = Emitter()
    hdr = open("gated_mix__ssm_conv_s5__dense_activation_squared_relu__prompt.s.ref").read().split("\n")
    head = [l for l in hdr if l.startswith(";") and "@launch" not in l and "Override" not in l and "grid=ceil" not in l]
    txt = "\n".join(head) + f"\n; @launch grid=(256,1,1) block=(512,1,1) lds={LDS_SIZE}\n"
    txt += '.amdgcn_target "amdgcn-amd-amdhsa--gfx950"\n.text\n'
    txt += f".globl {NAME}\n.p2align 8\n.type {NAME},@function\n{NAME}:\n"
    gen_entry(e)
    gen_consumer(e)
    gen_loader(e)
    gen_p2(e)
    e("L_END:\ns_endpgm\nL_CODE_END:")
    txt += e.text()
    txt += f""".section .rodata,"a"
.p2align 6
.amdhsa_kernel {NAME}
  .amdhsa_next_free_vgpr 256
  .amdhsa_next_free_sgpr 102
  .amdhsa_accum_offset 256
  .amdhsa_group_segment_fixed_size 0
  .amdhsa_kernarg_size 144
  .amdhsa_user_sgpr_count 2
  .amdhsa_user_sgpr_kernarg_segment_ptr 1
  .amdhsa_system_sgpr_workgroup_id_x 1
.end_amdhsa_kernel
"""
    open(path, "w").write(txt)
    print("pads:", e.npad, "lines:", len(e.out))

if __name__ == "__main__":
    opt.check_g = True
    opt.nowait = 0
    opt.nodma = 0
    opt.itstamps = 0
    opt.l2pf = 0
    opt.dbgtime = 0
    opt.sorder = 1
    opt.sshelp = 1
    opt.ststamps = 0
    opt.rot = 0
    opt.sprio = 2
    opt.eprio = 3
    opt.wearly = 0
    opt.ldslate = 0
    opt.prio = 2
    opt.cpf = 1
    opt.wdelay = 1
    opt.noprep = 0
    opt.nost = 0
    opt.map2 = 1
    opt.gw = 1
    opt.gloop = 1
    opt.ssleep = 8
    opt.l2pf2 = 1
    for a in sys.argv[2:]:
        k, v = a.split("=")
        setattr(opt, k, int(v))
    generate(sys.argv[1])
```

```python
import sys
from emit import Emitter

NAME = "gated_mix__ssm_conv_s5__dense_activation_squared_relu__prompt_kernel"

ACT_OFF   = 0
WF_OFF    = 0xC00000
G_OFF     = 0x1000000
AG_OFF    = 0x1010000
WFLAG_OFF = 0x1040000
TFLAG_OFF = 0x1050000
STAMP_OFF = 0x1100000
SLOT = 40960
LDS_PREP = 122880
LDS_TAB  = 143360
LDS_LX   = LDS_TAB + 8448
LDS_FLAG = LDS_LX + 768
LDS_DUMMY = LDS_FLAG + 64
LDS_F    = 0
LDS_Y    = 81920
LDS_SIZE = 163840

SX, SWA, SWB, SWS, STA, STB, SOUT = 4, 8, 12, 16, 20, 24, 28
P_AX, P_LRE, P_LIM, P_BRE, P_BIM, P_CRE, P_CIM, P_LDT, P_DSK, P_BX, P_W1, P_B1, P_W2, P_B2, P_GW, P_OUT, P_DBG, P_WS = [36 + 2 * i for i in range(18)]
sWAVE, sRB, sCOL, sJ, sRB2, sCB, sNONCE, sISU = 72, 73, 74, 75, 76, 77, 78, 79
SG, sGo, sGinc = 28, 83, 85

class Opt:
    phase2 = True
    stamps = False
    spin_limit = 200000
opt = Opt()

def srd(e, s, ptr, size):
    e(f"s_mov_b32 s{s}, s{ptr}\ns_mov_b32 s{s+1}, s{ptr+1}\ns_mov_b32 s{s+2}, {size}\ns_mov_b32 s{s+3}, 0x20000")

def R(b, n=4):
    return f"v[{b}:{b+n-1}]"

_stamp_id = [0]
def stamp(e, idx, tmpv=14):
    if not opt.stamps: return
    e(f"""s_memrealtime s[100:101]
s_lshl_b32 s98, s2, 3
s_add_u32 s98, s98, s{sWAVE}
s_lshl_b32 s98, s98, 6
s_add_u32 s98, s98, {STAMP_OFF + 4*idx}
s_waitcnt lgkmcnt(0)
v_mov_b32 v{tmpv}, s100
v_mov_b32 v{tmpv+1}, 0
s_mov_b64 s[96:97], exec
s_mov_b64 exec, 1
buffer_store_dword v{tmpv}, v{tmpv+1}, s[{SWS}:{SWS+3}], s98 offen
s_mov_b64 exec, s[96:97]""")

def stamp_clk(e, idx, tmpv=14):
    if not opt.stamps: return
    e(f"""s_memtime s[100:101]
s_lshl_b32 s98, s2, 3
s_add_u32 s98, s98, s{sWAVE}
s_lshl_b32 s98, s98, 6
s_add_u32 s98, s98, {STAMP_OFF + 4*idx}
s_waitcnt lgkmcnt(0)
v_mov_b32 v{tmpv}, s100
v_mov_b32 v{tmpv+1}, 0
s_mov_b64 s[96:97], exec
s_mov_b64 exec, 1
buffer_store_dword v{tmpv}, v{tmpv+1}, s[{SWS}:{SWS+3}], s98 offen
s_mov_b64 exec, s[96:97]""")

class Cap:
    def __init__(self): self.l = []
    def __call__(self, s):
        for x in s.split("\n"):
            if x.strip(): self.l.append(x.strip())

def merge(e, main_groups, aux):
    n = len(main_groups); k = 0
    per = -(-len(aux) // n) if n else 0
    for g in main_groups:
        for x in g: e(x)
        for x in aux[k:k + per]: e(x)
        k += per
    for x in aux[k:]: e(x)

def dbgmax(e, idx, neg=False, tv=14):
    if not opt.dbgtime: return
    e(f"""s_memrealtime s[100:101]
s_mov_b32 s96, s{P_DBG}
s_mov_b32 s97, s{P_DBG+1}
s_mov_b32 s98, 256
s_mov_b32 s99, 0x20000
s_waitcnt lgkmcnt(0)""")
    if neg: e("s_not_b32 s100, s100")
    e(f"""v_mov_b32 v{tv}, s100
v_mov_b32 v{tv+1}, 0
s_mov_b64 exec, 1
buffer_atomic_umax v{tv}, v{tv+1}, s[96:99], 0 offen offset:{4*idx}
s_mov_b64 exec, -1""")

def interleave(e, A, B, lead=1):
    bi = 0
    for i, a in enumerate(A):
        e(a)
        if i >= lead - 1 and bi < len(B):
            e(B[bi]); bi += 1
    while bi < len(B):
        e(B[bi]); bi += 1

def spin_nonce(e, tag, vtmp):
    srd(e, STA, P_DBG, 256)
    e(f"""v_mov_b32 v{vtmp+1}, 0
s_mov_b32 s80, 0
L_nonce_{tag}:
buffer_load_dword v{vtmp}, v{vtmp+1}, s[{STA}:{STA+3}], 0 offen sc1
s_add_u32 s80, s80, 1
s_waitcnt vmcnt(0)
v_readfirstlane_b32 s{sNONCE}, v{vtmp}
s_cmp_ge_u32 s80, {opt.spin_limit}
s_cbranch_scc1 L_nonce_done_{tag}
s_cmp_eq_u32 s{sNONCE}, 0
s_cbranch_scc0 L_nonce_done_{tag}
s_sleep 1
s_branch L_nonce_{tag}
L_nonce_done_{tag}:""")

def poll_flags(e, tag, vaddr, vtmp, soff_sgpr, nlanes_mask_lo, mask_hi=0, sleep=1):
    e(f"""s_mov_b32 s80, 0
s_mov_b32 s82, {nlanes_mask_lo}
s_mov_b32 s83, {mask_hi}
L_poll_{tag}:
buffer_load_dword v{vtmp}, v{vaddr}, s[{SWS}:{SWS+3}], s{soff_sgpr} offen sc1
s_add_u32 s80, s80, 1
s_waitcnt vmcnt(0)
v_cmp_ne_u32 vcc, s{sNONCE}, v{vtmp}
s_cmp_ge_u32 s80, {opt.spin_limit}
s_cbranch_scc1 L_poll_done_{tag}
s_and_b64 vcc, vcc, s[82:83]
s_cbranch_scc0 L_poll_done_{tag}
s_sleep {sleep}
s_branch L_poll_{tag}
L_poll_done_{tag}:""")

def gen_entry(e):
    if opt.map2 == 1:
        MAP2 = f"""s_lshr_b32 s82, s80, 1
s_lshl_b32 s82, s82, 3
s_lshr_b32 s83, s81, 2
s_add_u32 s{sRB2}, s82, s83
s_and_b32 s82, s80, 1
s_lshl_b32 s82, s82, 2
s_and_b32 s83, s81, 3
s_add_u32 s{sCB}, s82, s83"""
    else:
        MAP2 = f"""s_lshl_b32 s82, s80, 2
s_and_b32 s83, s81, 3
s_add_u32 s{sRB2}, s82, s83
s_lshr_b32 s{sCB}, s81, 2"""
    e(f"""s_cmp_ge_u32 s2, 256
s_cbranch_scc1 L_END
s_load_dwordx16 s[36:51], s[0:1], 0
s_load_dwordx16 s[52:67], s[0:1], 64
s_load_dwordx4 s[68:71], s[0:1], 128
v_lshrrev_b32 v1, 6, v0
v_and_b32 v0, 63, v0
v_readfirstlane_b32 s{sWAVE}, v1
s_and_b32 s80, s2, 7
s_lshr_b32 s81, s2, 3
s_and_b32 s82, s80, 1
s_lshl_b32 s82, s82, 3
s_and_b32 s83, s81, 7
s_add_u32 s{sRB}, s82, s83
s_lshr_b32 s82, s80, 1
s_lshl_b32 s82, s82, 2
s_lshr_b32 s83, s81, 3
s_add_u32 s{sCOL}, s82, s83
{MAP2}
s_sub_u32 s82, s{sCOL}, 9
s_cmp_ge_u32 s{sCOL}, 9
s_cselect_b32 s{sISU}, 1, 0
s_cselect_b32 s{sJ}, s82, s{sCOL}
s_waitcnt lgkmcnt(0)""")
    srd(e, SWS, P_WS, 0x10000000)
    srd(e, SX, P_AX, 2621440)
    dbgmax(e, 1, neg=True)
    stamp(e, 12, 14)
    e(f"""s_cmp_eq_u32 s2, 0
s_cbranch_scc0 L_no_nonce
s_cmp_eq_u32 s{sWAVE}, 4
s_cbranch_scc0 L_no_nonce
s_memrealtime s[80:81]""")
    srd(e, STA, P_DBG, 256)
    e(f"""s_waitcnt lgkmcnt(0)
s_or_b32 s80, s80, 1
v_mov_b32 v2, s80
v_mov_b32 v3, 0
s_mov_b64 exec, 1
buffer_store_dword v2, v3, s[{STA}:{STA+3}], 0 offen sc0 sc1
s_mov_b64 exec, -1
L_no_nonce:
s_cmp_ge_u32 s{sWAVE}, 4
s_cbranch_scc1 L_LOADER""")

def cmul(e, d, a, b, t):
    e(f"""v_mul_f32 v{d}, v{a}, v{b}
v_mul_f32 v{d+1}, v{a}, v{b+1}
v_fma_f32 v{d}, -v{a+1}, v{b+1}, v{d}
v_fma_f32 v{d+1}, v{a+1}, v{b}, v{d+1}""")

def csq(e, d, a):
    cmul(e, d, a, a, None)

def cfma(e, d, a, b, c):
    e(f"""v_fma_f32 v{d}, v{a}, v{b}, v{c}
v_fma_f32 v{d+1}, v{a}, v{b+1}, v{c+1}
v_fma_f32 v{d}, -v{a+1}, v{b+1}, v{d}
v_fma_f32 v{d+1}, v{a+1}, v{b}, v{d+1}""")

def gen_loader(e):
    e("L_LOADER:")
    vXo = 2; vWo = 4
    sXo = 86
    sWo = 90
    sLX, sLW, sWinc = 32, 33, 34
    def issue_x(s):
        slot = (s % 3) * SLOT
        for m in range(4):
            e(f"s_add_u32 m0, s{sLX}, {slot + m*1024}")
            e(f"buffer_load_dwordx4 v{vXo}, s[{SX}:{SX+3}], s{sXo+m} offen lds")
            e(f"s_add_u32 s{sXo+m}, s{sXo+m}, 128")
    def issue_w(s):
        slot = (s % 3) * SLOT
        for m in range(6):
            S = SWB if (m >> 1) == 1 else SWA
            e(f"s_add_u32 m0, s{sLW}, {slot + m*1024}")
            e(f"buffer_load_dwordx4 v{vWo+m}, s[{S}:{S+3}], s{sWo+m} offen lds")
            e(f"s_add_u32 s{sWo+m}, s{sWo+m}, s{sWinc}")
    def issue(s):
        issue_x(s); issue_w(s)
    e(f"""s_sub_u32 s84, s{sWAVE}, 4
v_lshrrev_b32 v10, 3, v0
v_and_b32 v11, 7, v0
v_xor_b32 v11, v11, v10
v_lshlrev_b32 v11, 4, v11
s_lshl_b32 s{sLX}, s84, 12
s_mul_i32 s{sLW}, s84, 6144
s_add_u32 s{sLW}, s{sLW}, 16384
s_lshl_b32 s85, s{sRB}, 7""")
    e(f"""s_mul_i32 s80, s{sJ}, 96
s_lshl_b32 s81, s84, 5
s_add_u32 s80, s80, s81
v_and_b32 v12, 31, v0
v_add_u32 v12, s80, v12
v_min_u32 v12, 639, v12
v_lshlrev_b32 v12, 1, v12""")
    srd(e, STA, P_LRE, 1280)
    e(f"buffer_load_ushort v20, v12, s[{STA}:{STA+3}], 0 offen")
    srd(e, STB, P_LIM, 1280)
    e(f"buffer_load_ushort v21, v12, s[{STB}:{STB+3}], 0 offen")
    srd(e, STA, P_LDT, 1280)
    e(f"buffer_load_ushort v22, v12, s[{STA}:{STA+3}], 0 offen")
    e(f"""s_cmp_eq_u32 s{sISU}, 1
s_cbranch_scc1 L_LD_U""")
    e(f"""v_mul_u32_u24 v{vXo}, 1280, v10
v_add_u32 v{vXo}, v{vXo}, v11
s_lshl_b32 s80, s84, 5
s_add_u32 s80, s80, s85""")
    for m in range(4):
        e(f"s_add_u32 s81, s80, {16*(m&1) + 8*(m>>1)}\ns_mul_i32 s{sXo+m}, s81, 1280")
    issue_x(0)
    srd(e, SWA, P_W1, 2211840)
    srd(e, SWB, P_W1, 2211840)
    e(f"""s_mul_i32 s80, s84, {16*3456}
s_mul_i32 s81, s{sJ}, 384
s_add_u32 s80, s80, s81""")
    for m in range(6):
        e(f"s_mov_b32 s{sWo+m}, s80")
    e(f"s_mov_b32 s{sWinc}, {64*3456}")
    for m in range(6):
        e(f"""v_add_u32 v12, {64*m}, v0
v_mul_u32_u24 v13, 2731, v12
v_lshrrev_b32 v13, 16, v13
v_mul_u32_u24 v14, 24, v13
v_sub_u32 v14, v12, v14
v_bfe_u32 v15, v13, 1, 1
v_lshlrev_b32 v15, 1, v15
v_bfe_u32 v16, v13, 3, 1
v_lshlrev_b32 v16, 2, v16
v_or_b32 v15, v15, v16
v_xor_b32 v14, v14, v15
v_lshlrev_b32 v14, 4, v14
v_mul_u32_u24 v13, 3456, v13
v_add_u32 v{vWo+m}, v13, v14""")
    e("s_branch L_LD_GO")
    e("L_LD_U:")
    e(f"""v_lshrrev_b32 v12, 5, v0
v_lshlrev_b32 v12, 4, v12
v_bfe_u32 v13, v0, 3, 1
v_lshlrev_b32 v13, 3, v13
v_add_u32 v12, v12, v13
v_bfe_u32 v13, v0, 4, 1
v_add_u32 v12, v12, v13
v_mul_u32_u24 v{vXo}, 1280, v12
v_add_u32 v{vXo}, v{vXo}, v11
s_lshr_b32 s80, s84, 1
s_lshl_b32 s80, s80, 6
s_and_b32 s81, s84, 1
s_lshl_b32 s82, s81, 2
s_add_u32 s80, s80, s82
s_add_u32 s80, s80, s85""")
    for m in range(4):
        e(f"s_add_u32 s82, s80, {32*(m&1) + 2*(m>>1)}\ns_mul_i32 s{sXo+m}, s82, 1280")
    issue_x(0)
    e(f"""v_mul_u32_u24 v12, 1280, v10
v_add_u32 v12, v12, v11""")
    for m in range(6):
        e(f"v_mov_b32 v{vWo+m}, v12")
    e(f"""s_mul_i32 s80, s{sJ}, 96
s_lshr_b32 s82, s84, 1
s_mul_i32 s82, s82, 48
s_add_u32 s80, s80, s82
s_mul_i32 s83, s81, 3""")
    for m in range(6):
        e(f"""s_add_u32 s82, s83, {m>>1}
s_lshr_b32 s82, s82, 1
s_lshl_b32 s82, s82, 4
s_add_u32 s82, s82, s80
s_add_u32 s82, s82, {8*(m&1)}
s_min_u32 s82, s82, 632
s_mul_i32 s{sWo+m}, s82, 1280""")
    e(f"s_mov_b32 s{sWinc}, 128")
    e(f"""s_cmp_eq_u32 s81, 0
s_cselect_b32 s{SWA}, s{P_BRE}, s{P_BIM}
s_cselect_b32 s{SWA+1}, s{P_BRE+1}, s{P_BIM+1}
s_cselect_b32 s{SWB}, s{P_BIM}, s{P_BRE}
s_cselect_b32 s{SWB+1}, s{P_BIM+1}, s{P_BRE+1}
s_mov_b32 s{SWA+2}, 819200
s_mov_b32 s{SWA+3}, 0x20000
s_mov_b32 s{SWB+2}, 819200
s_mov_b32 s{SWB+3}, 0x20000""")
    e("L_LD_GO:")
    def groups(s_):
        slot = (s_ % 3) * SLOT
        G = []
        for m in range(4):
            G.append([f"s_add_u32 m0, s{sLX}, {slot + m*1024}",
                      f"buffer_load_dwordx4 v{vXo}, s[{SX}:{SX+3}], s{sXo+m} offen lds",
                      f"s_add_u32 s{sXo+m}, s{sXo+m}, 128"])
        for m in range(6):
            S = SWB if (m >> 1) == 1 else SWA
            G.append([f"s_add_u32 m0, s{sLW}, {slot + m*1024}",
                      f"buffer_load_dwordx4 v{vWo+m}, s[{S}:{S+3}], s{sWo+m} offen lds",
                      f"s_add_u32 s{sWo+m}, s{sWo+m}, s{sWinc}"])
        return G
    def gath():
        if opt.gall:
            e(f"buffer_load_dword v18, v17, s[{SWS}:{SWS+3}], 0 offen")
        else:
            e(f"buffer_load_dword v18, v17, s[{SG}:{SG+3}], s{sGo} offen\ns_add_u32 s{sGo}, s{sGo}, s{sGinc}")
    issue_w(0)
    if opt.gall: e("v_mov_b32 v17, 0x10000000")
    else: gen_gather_setup(e, 84, 'L', 3)
    issue(1)
    e("s_waitcnt vmcnt(10)\ns_barrier")
    issue(2); gath()
    e("s_waitcnt vmcnt(11)\ns_barrier")
    c = Cap(); gen_lambda_table(c, 0)
    merge(e, groups(3), c.l); gath()
    e("s_waitcnt vmcnt(12)\ns_barrier")
    e(f"""v_and_b32 v62, 31, v0
s_lshl_b32 s80, s84, 5
v_add_u32 v62, s80, v62
v_lshlrev_b32 v62, 3, v62
s_mov_b32 s81, {LDS_TAB}
s_cmp_eq_u32 s84, 3
s_cselect_b32 s80, {LDS_DUMMY - 768}, s81
v_add_u32 v62, s80, v62""")
    c = Cap(); gen_lambda_table(c, 1)
    merge(e, groups(4), c.l); gath()
    for it, (st_, g_) in enumerate(((5, 1), (6, 1), (7, 1), (8, 1))):
        e("s_waitcnt vmcnt(12)\ns_barrier")
        issue(st_)
        if g_: gath()
        if it == 1:
            srd(e, STA, P_DBG, 256)
            e(f"v_mov_b32 v12, 0\nbuffer_load_dword v99, v12, s[{STA}:{STA+3}], 0 offen")
    e("s_waitcnt vmcnt(12)\ns_barrier")
    e(f"""v_readfirstlane_b32 s{sNONCE}, v99
s_cmp_eq_u32 s{sNONCE}, 0
s_cbranch_scc0 L_LD_nonce_ok""")
    spin_nonce(e, 'L', 10)
    e("L_LD_nonce_ok:")
    e(f"""s_mul_i32 s85, s84, 14
s_cmp_eq_u32 s84, 3
s_cselect_b32 s80, 1, 0
s_sub_u32 s85, s85, s80
v_lshlrev_b32 v12, 2, v0
s_lshl_b32 s81, s{sCB}, 9
s_lshl_b32 s82, s85, 2
s_add_u32 s81, s81, s82
s_add_u32 s35, s81, {WFLAG_OFF}
s_mul_i32 s80, s84, 10
s_add_u32 s80, s80, {54 - 16}
s_sub_u32 s80, s80, s85
s_lshl_b32 s80, s80, 2
v_add_u32 v14, s80, v12
v_cmp_le_u32 vcc, 16, v0
v_cndmask_b32 v12, v12, v14, vcc
v_lshlrev_b32 v1, 4, v0
buffer_load_dword v13, v12, s[{SWS}:{SWS+3}], s35 offen sc1""")
    issue(9)
    e("s_waitcnt vmcnt(10)\ns_barrier")
    e(f"""s_mov_b32 s86, s84
s_mul_i32 s87, s86, 20480
s_mul_i32 s84, s{sCB}, 94
s_add_u32 s84, s84, s85
s_mul_i32 s84, s84, 5120
s_add_u32 s84, s84, {WF_OFF}
s_cmp_ge_u32 s86, 2
s_cselect_b32 s89, 13, 14""")
    rot_setup(e, 89, False)
    ld_w, ld_a, queue = gen_p2_stream(e, 'x', 14)
    e(f"""v_cmp_ne_u32 vcc, s{sNONCE}, v13
s_nop 1
s_and_b32 s80, vcc_lo, 0x03ff3fff
s_cbranch_scc1 L_LD_wlate""")
    if opt.gw2:
        w_gathers(e)
    if opt.gw2 != 2:
        ld_w(0); ld_w(1)
    e(f"s_waitcnt vmcnt({(0 if opt.gw2 == 2 else 10) + (3 if opt.gw2 else 0)})\ns_barrier")
    for s_ in range(0 if opt.gw2 == 2 else 2, NW): ld_w(s_)
    e("s_branch L_LD_wdone\nL_LD_wlate:\ns_waitcnt vmcnt(0)\ns_barrier")
    poll_flags(e, 'FW', 12, 13, 35, 0x03ff3fff)
    for s_ in range(NW): ld_w(s_)
    e("L_LD_wdone:")
    stamp(e, 1, 14)
    gen_gate_loads(e, 86)
    lds_wait_ge(e, 'R', 24, 4, 10)
    if opt.wdelay or opt.udelay:
        if not opt.udelay: e(f"s_cmp_eq_u32 s{sISU}, 1\ns_cbranch_scc1 L_LD_nodelay")
        if not opt.wdelay: e(f"s_cmp_eq_u32 s{sISU}, 0\ns_cbranch_scc1 L_LD_nodelay")
        lds_wait_ge(e, 'W', 16, 4, 10)
        e("L_LD_nodelay:")
    stamp(e, 7, 14)
    w_lds(e, NLF, 87, throttle=('A' if opt.thr >= 0 else None))
    lds_count(e, 28, 10)
    if opt.sshelp:
        e(f"s_cmp_eq_u32 s{sISU}, 1\ns_cbranch_scc0 L_NOHELP")
        e(f"""s_mul_i32 s80, s86, 10
s_add_u32 s80, s80, {54 + NW}
s_mul_i32 s81, s{sCB}, 94
s_add_u32 s80, s80, s81
s_mul_i32 s80, s80, 5120
s_add_u32 s80, s80, {WF_OFF}
s_mul_i32 s81, s86, 15360
s_add_u32 s81, s81, {LDS_Y}""")
        for i in range(NLS):
            if opt.thr >= 0: e(f"s_waitcnt vmcnt({opt.thr})")
            for dt in range(5):
                e(f"""s_add_u32 m0, s81, {i*5120 + dt*1024}
buffer_load_dwordx4 v1, s[{SWS}:{SWS+3}], s80 offen sc1 lds
s_add_u32 s80, s80, 1024""")
        e("L_NOHELP:")
    stamp(e, 2, 14)

NLF, NLS = 4, 3
def w_prefetch(e, nsteps, NL, lds_base_sgpr, do_lds=True, rng=None):
    nsh = 8 if opt.map2 == 1 else 4
    per = -(-nsteps * 40 // nsh)
    if opt.gw: l2_prefetch(e, 84, nsteps * 40, nsh, f"s{sRB2}", nsh - 1, -(-per // 64))
    ld_w, ld_a, queue = gen_p2_stream(e, 'x', nsteps)
    for s_ in (range(NW) if rng is None else rng): ld_w(s_)
    if do_lds: w_lds(e, NL, lds_base_sgpr)

def w_gathers(e):
    nsh = 8 if opt.map2 == 1 else 4
    l2_prefetch(e, 84, 14 * 40, nsh, f"s{sRB2}", nsh - 1, 2 if nsh == 8 else 2)
    e(f"""s_mul_i32 s88, s86, 10
s_add_u32 s88, s88, 54
s_mul_i32 s81, s{sCB}, 94
s_add_u32 s88, s88, s81
s_mul_i32 s88, s88, 5120
s_add_u32 s88, s88, {WF_OFF}""")
    l2_prefetch(e, 88, 10 * 40, nsh, f"s{sRB2}", nsh - 1, 1)

def w_lds(e, NL, lds_base_sgpr, queue=None, throttle=None):
    for i in range(NL):
        if throttle is not None:
            e(f"s_cmp_eq_u32 s{sISU}, 1\ns_cbranch_scc0 L_thr_{throttle}{i}\ns_waitcnt vmcnt({opt.thr})\nL_thr_{throttle}{i}:")
        for dt in range(5):
            e(f"""s_add_u32 m0, s{lds_base_sgpr}, {i*5120 + dt*1024}
buffer_load_dwordx4 v1, s[{SWS}:{SWS+3}], s84 offen sc1 lds
s_add_u32 s84, s84, 1024""")
            if queue is not None: queue.append(('l', NW + i))
        wrap_w(e)

def ffn_w_prefetch(e):
    e(f"""s_mov_b32 s86, s84
s_mul_i32 s87, s86, 20480
s_mul_i32 s84, s{sCB}, 94
s_add_u32 s84, s84, s85
s_mul_i32 s84, s84, 5120
s_add_u32 s84, s84, {WF_OFF}
s_cmp_ge_u32 s86, 2
s_cselect_b32 s89, 13, 14""")
    rot_setup(e, 89, False)
    w_prefetch(e, 14, NLF, 87, do_lds=not opt.ldslate)
    if opt.sshelp:
        e(f"""s_cmp_eq_u32 s{sISU}, 1
s_cbranch_scc0 L_NOHELP
s_mul_i32 s80, s86, 10
s_add_u32 s80, s80, 54
s_lshl_b32 s80, s80, 2
s_lshl_b32 s81, s{sCB}, 9
s_add_u32 s80, s80, s81
s_add_u32 s88, s80, {WFLAG_OFF}
v_lshlrev_b32 v12, 2, v0""")
        poll_flags(e, 'HW', 12, 13, 88, 0x3ff)
        e(f"""s_mul_i32 s80, s86, 10
s_add_u32 s80, s80, {54 + NW}
s_mul_i32 s81, s{sCB}, 94
s_add_u32 s80, s80, s81
s_mul_i32 s80, s80, 5120
s_add_u32 s80, s80, {WF_OFF}
s_mul_i32 s81, s86, 15360
s_add_u32 s81, s81, {LDS_Y}""")
        for i in range(NLS):
            for dt in range(5):
                e(f"""s_add_u32 m0, s81, {i*5120 + dt*1024}
buffer_load_dwordx4 v1, s[{SWS}:{SWS+3}], s80 offen sc1 lds
s_add_u32 s80, s80, 1024""")
        e("L_NOHELP:")

def l2_prefetch(e, sbase, nlines, nshare, share_sgpr, share_mask, ninstr, vtmp=12, vdst=15):
    per = -(-nlines // nshare)
    e(f"""s_and_b32 s80, {share_sgpr}, {share_mask}
s_mul_i32 s80, s80, {per*128}
s_add_u32 s80, s80, s{sbase}
v_lshlrev_b32 v{vtmp}, 7, v0""")
    for i in range(ninstr):
        if i * 64 < per and per - i * 64 < 64:
            e(f"v_min_u32 v{vtmp}, {(per - i*64 - 1)*128}, v{vtmp}")
        e(f"buffer_load_dword v{vdst}, v{vtmp}, s[{SWS}:{SWS+3}], s80 offen sc1")
        if i * 64 + 64 < per: e(f"s_add_u32 s80, s80, 8192")

def gen_gather_setup(e, W=84, T='', start=1):
    e(f"""s_lshr_b32 s80, s2, 3
s_and_b32 s81, s80, 7
s_lshr_b32 s80, s80, 3
v_mov_b32 v17, 0x10000000
s_mov_b32 s{sGo}, {128*start}
s_mov_b32 s{sGinc}, 128
s_mov_b32 s{SG}, s{SX}
s_mov_b32 s{SG+1}, s{SX+1}
s_mov_b32 s{SG+2}, 2621440
s_mov_b32 s{SG+3}, 0x20000
s_cmp_eq_u32 s{W}, 0
s_cbranch_scc0 L_GS_1{T}
s_lshl_b32 s80, s80, 5
s_lshl_b32 s82, s{sRB}, 7
s_add_u32 s80, s80, s82
v_add_u32 v16, s80, v0
v_mul_u32_u24 v16, 1280, v16
v_cmp_gt_u32 vcc, 32, v0
v_cndmask_b32 v17, v17, v16, vcc
s_branch L_GS_done{T}
L_GS_1{T}:
s_cmp_ge_u32 s{W}, 3
s_cbranch_scc1 L_GS_done{T}
s_cmp_eq_u32 s{sISU}, 1
s_cbranch_scc1 L_GS_U{T}
s_cmp_eq_u32 s{W}, 1
s_cbranch_scc0 L_GS_done{T}
s_mov_b32 s{SG}, s{P_W1}
s_mov_b32 s{SG+1}, s{P_W1+1}
s_mov_b32 s{SG+2}, 2211840
s_mul_i32 s{sGo}, s{sJ}, 384
s_add_u32 s{sGo}, s{sGo}, {64*3456*start}
s_mov_b32 s{sGinc}, {64*3456}
v_mul_u32_u24 v16, 43, v0
v_lshrrev_b32 v16, 7, v16
v_mul_u32_u24 v15, 3, v16
v_sub_u32 v15, v0, v15
s_lshl_b32 s81, s81, 3
v_add_u32 v16, s81, v16
v_mul_u32_u24 v16, 3456, v16
v_lshlrev_b32 v15, 7, v15
v_add_u32 v16, v16, v15
v_cmp_gt_u32 vcc, 24, v0
v_cndmask_b32 v17, v17, v16, vcc
s_branch L_GS_done{T}
L_GS_U{T}:
s_cmp_eq_u32 s{W}, 1
s_cselect_b32 s{SG}, s{P_BRE}, s{P_BIM}
s_cselect_b32 s{SG+1}, s{P_BRE+1}, s{P_BIM+1}
s_mov_b32 s{SG+2}, 819200
s_mul_i32 s80, s{sJ}, 96
s_mul_i32 s81, s81, 12
s_add_u32 s80, s80, s81
v_add_u32 v16, s80, v0
v_min_u32 v16, 639, v16
v_mul_u32_u24 v16, 1280, v16
v_cmp_gt_u32 vcc, 12, v0
v_cndmask_b32 v17, v17, v16, vcc
L_GS_done{T}:""")
    if not opt.gloop: e("v_mov_b32 v17, 0x10000000")

def gen_unit_ids(e, W):
    e(f"""s_cmp_ge_u32 s2, 108
s_cbranch_scc1 L_UID_C
s_lshr_b32 s3, s2, 1
s_and_b32 s35, s2, 1
s_lshl_b32 s35, s35, 2
s_add_u32 s35, s35, s{W}
s_branch L_UID_done
L_UID_C:
s_sub_u32 s80, s2, 108
s_and_b32 s35, s80, 7
s_lshr_b32 s80, s80, 3
s_lshl_b32 s3, s80, 2
s_add_u32 s3, s3, s{W}
s_add_u32 s3, s3, 54
L_UID_done:""")

def gen_prep_gather(e, W=84):
    e(f"""s_cmp_ge_u32 s3, 54
s_cbranch_scc1 L_PG_C""")
    srd(e, STA, P_W2, 2211840)
    e(f"""v_mul_u32_u24 v10, 52, v0
v_lshrrev_b32 v10, 8, v10
v_mul_u32_u24 v11, 5, v10
v_sub_u32 v11, v0, v11
s_lshl_b32 s80, s{W}, 3
v_add_u32 v10, s80, v10
v_mul_u32_u24 v10, 1280, v10
v_lshlrev_b32 v11, 7, v11
v_add_u32 v10, v10, v11
v_mov_b32 v11, 0x10000000
v_cmp_gt_u32 vcc, 40, v0
v_cndmask_b32 v10, v11, v10, vcc
s_mul_i32 s80, s3, {32*1280}
s_and_b32 s81, s2, 1
s_mul_i32 s81, s81, 640
s_add_u32 s80, s80, s81
buffer_load_dword v18, v10, s[{STA}:{STA+3}], s80 offen
buffer_load_dword v18, v11, s[{STA}:{STA+3}], s80 offen
s_branch L_PG_done
L_PG_C:""")
    srd(e, STA, P_CRE, 819200)
    srd(e, STB, P_CIM, 819200)
    e(f"""s_mul_i32 s81, s35, 80
s_mul_i32 s80, s{W}, 20
s_add_u32 s81, s81, s80
v_add_u32 v10, s81, v0
v_mul_u32_u24 v10, 1280, v10
v_mov_b32 v11, 0x10000000
v_cmp_gt_u32 vcc, 20, v0
v_cndmask_b32 v10, v11, v10, vcc
s_sub_u32 s80, s3, 54
s_lshr_b32 s80, s80, 2
s_min_u32 s80, s80, 9
s_lshl_b32 s80, s80, 7
buffer_load_dword v18, v10, s[{STA}:{STA+3}], s80 offen
buffer_load_dword v18, v10, s[{STB}:{STB+3}], s80 offen
L_PG_done:""")

def gen_lambda_table(e, part):
    L1, L2, L4, L8, L16, L32, L48, L64, L128, L256, L512, L1024, C2 = 30, 32, 34, 36, 38, 40, 42, 44, 46, 48, 50, 52, 54
    if part == 0:
        e(f"""v_lshlrev_b32 v20, 16, v20
v_lshlrev_b32 v21, 16, v21
v_lshlrev_b32 v22, 16, v22
v_mul_f32 v23, 0x3fb8aa3b, v22
v_exp_f32 v23, v23
s_nop 0
v_cvt_pk_bf16_f32 v23, v23, v23
v_and_b32 v23, 0xffff0000, v23
v_mul_f32 v24, v23, v20
v_mul_f32 v25, v23, v21
v_mul_f32 v24, 0x3fb8aa3b, v24
v_exp_f32 v24, v24
v_mul_f32 v25, 0.15915494, v25
v_fract_f32 v25, v25
v_sin_f32 v26, v25
v_cos_f32 v27, v25
s_nop 0
v_mul_f32 v31, v24, v26
v_mul_f32 v30, v24, v27""")
        csq(e, L2, L1); csq(e, L4, L2); csq(e, L8, L4); csq(e, L16, L8); csq(e, L32, L16)
        cmul(e, L48, L32, L16, None)
        csq(e, L64, L32); csq(e, L128, L64)
        return
    csq(e, L256, L128); csq(e, L512, L256); csq(e, L1024, L512)
    e(f"""v_add_f32 v56, -1.0, v30
v_mul_f32 v57, v20, v20
v_fma_f32 v57, v21, v21, v57
v_rcp_f32 v57, v57
v_mul_f32 v58, v56, v20
v_fma_f32 v58, v31, v21, v58
v_mul_f32 v59, v31, v20
v_fma_f32 v59, -v56, v21, v59
v_add_f32 v57, v57, v57
v_mul_f32 v{C2}, v58, v57
v_mul_f32 v{C2+1}, v59, v57
v_mov_b32 v60, 1.0
v_mov_b32 v61, 0""")
    ents = [L1, L8, 60, L16, L32, L48, L64, L128, L512, L1024, C2]
    for i, r in enumerate(ents):
        e(f"ds_write_b64 v62, v[{r}:{r+1}] offset:{i*768}")
    e("s_waitcnt lgkmcnt(0)")

ACC = 64
SETA, SETB = 160, 200
def acc_ffn(ft, tt): return ACC + (ft * 4 + tt) * 4
def acc_u(i, tp): return ACC + (i * 6 + tp) * 4

def reads(kind, st, ks):
    L = []
    vX = 2 + ks
    if kind == 'F':
        xs = [f"ds_read_b128 {R(st + 4*t)}, v{vX} offset:{t*2048}" for t in range(4)]
        ws = []
        for ft in range(6):
            for h in range(2):
                ws.append(f"ds_read_b64_tr_b16 v[{st+16+4*ft+2*h}:{st+16+4*ft+2*h+1}], v{4+ft} offset:{ks*12288 + h*1536}")
        L = ws[:2] + xs + ws[2:]
    else:
        vW = 4 + ks
        xs = [f"ds_read_b128 {R(st + 4*t)}, v{vX} offset:{t*2048}" for t in range(4)]
        ws = [f"ds_read_b128 {R(st + 16 + 4*t)}, v{vW} offset:{t*2048}" for t in range(6)]
        L = [ws[0]] + xs + ws[1:]
    return L

def mfmas(kind, st, first=False):
    L = []
    for n in range(6):
        for t in range(4):
            if kind == 'F':
                d = acc_ffn(n, t)
                c = R(16 + 20 + 4*n) if first else R(d)
                L.append(f"v_mfma_f32_16x16x32_bf16 {R(d)}, {R(st+16+4*n)}, {R(st+4*t)}, {c}")
            else:
                d = acc_u(t, n)
                c = "0" if first else R(d)
                L.append(f"v_mfma_f32_16x16x32_bf16 {R(d)}, {R(st+4*t)}, {R(st+16+4*n)}, {c}")
    return L

def gen_prep_issue(e, W=84, D=116):
    e(f"""s_cmp_ge_u32 s3, 54
s_cbranch_scc1 L_PREP_C""")
    srd(e, STA, P_W2, 2211840)
    e(f"""s_mul_i32 s80, s3, {32*1280}
s_mul_i32 s81, s35, 160
s_add_u32 s80, s80, s81
s_mul_i32 s81, s{W}, 5120
s_add_u32 s81, s81, {LDS_PREP}""")
    for n in range(5):
        e(f"""v_add_u32 v10, {64*n}, v0
v_mul_u32_u24 v11, 205, v10
v_lshrrev_b32 v11, 11, v11
v_mul_u32_u24 v12, 10, v11
v_sub_u32 v12, v10, v12
v_mul_u32_u24 v11, 1280, v11
v_lshlrev_b32 v12, 4, v12
v_add_u32 v11, v11, v12
s_add_u32 m0, s81, {n*1024}
buffer_load_dwordx4 v11, s[{STA}:{STA+3}], s80 offen lds""")
    e("v_mov_b32 v11, 0x10000000")
    for n in range(5):
        e(f"buffer_load_dword v{D}, v11, s[{STA}:{STA+3}], s80 offen")
    e("s_branch L_PREP_issued")
    e("L_PREP_C:")
    srd(e, STA, P_CRE, 819200)
    srd(e, STB, P_CIM, 819200)
    e(f"""v_and_b32 v10, 15, v0
v_mul_u32_u24 v10, 1280, v10
v_lshrrev_b32 v11, 4, v0
v_lshlrev_b32 v11, 3, v11
v_add_u32 v10, v10, v11
s_sub_u32 s80, s3, 54
s_min_u32 s80, s80, 39
s_lshl_b32 s80, s80, 5
s_mul_i32 s81, s35, {80*1280}
s_add_u32 s80, s80, s81""")
    for dt in range(5):
        e(f"buffer_load_dwordx2 v[{D+4*dt}:{D+1+4*dt}], v10, s[{STA}:{STA+3}], s80 offen")
        e(f"buffer_load_dwordx2 v[{D+2+4*dt}:{D+3+4*dt}], v10, s[{STB}:{STB+3}], s80 offen")
        if dt < 4: e(f"s_add_u32 s80, s80, {16*1280}")
    e("L_PREP_issued:")

def gen_prep_finish(e, W=84, D=116, T=''):
    e(f"""s_cmp_ge_u32 s3, 54
s_cbranch_scc1 L_PF_store{T}
v_lshrrev_b32 v10, 4, v0
v_lshlrev_b32 v10, 2, v10
v_bfe_u32 v11, v0, 2, 2
v_add_u32 v10, v10, v11
v_mul_u32_u24 v10, 160, v10
v_and_b32 v11, 3, v0
v_lshlrev_b32 v11, 3, v11
v_add_u32 v10, v10, v11
s_mul_i32 s81, s{W}, 5120
s_add_u32 s81, s81, {LDS_PREP}
v_add_u32 v10, s81, v10""")
    for dt in range(5):
        for h in range(2):
            e(f"ds_read_b64_tr_b16 v[{D+4*dt+2*h}:{D+1+4*dt+2*h}], v10 offset:{dt*32 + h*16*160}")
    e("s_waitcnt lgkmcnt(0)")
    e(f"L_PF_store{T}:")
    e(f"""s_mul_i32 s80, s35, 94
s_add_u32 s80, s80, s3
s_mul_i32 s80, s80, 5120
s_add_u32 s80, s80, {WF_OFF}
v_lshlrev_b32 v10, 4, v0
v_mov_b32 v11, 0x10000000
s_cmp_ge_u32 s3, 94
s_cselect_b32 s81, 1, 0
v_mov_b32 v12, s81
v_cmp_eq_u32 vcc, 1, v12
v_cndmask_b32 v10, v10, v11, vcc""")
    for dt in range(5):
        if dt < 4:
            e(f"buffer_store_dwordx4 {R(D+4*dt)}, v10, s[{SWS}:{SWS+3}], s80 offen offset:{dt*1024} sc1")
        else:
            e(f"s_add_u32 s80, s80, 4096")
            e(f"buffer_store_dwordx4 {R(D+4*dt)}, v10, s[{SWS}:{SWS+3}], s80 offen sc1")

def gen_prep_flag(e):
    e(f"""s_lshl_b32 s80, s35, 9
s_lshl_b32 s81, s3, 2
s_add_u32 s80, s80, s81
s_add_u32 s80, s80, {WFLAG_OFF}
v_mov_b32 v10, s{sNONCE}
s_cmp_ge_u32 s3, 94
s_cselect_b32 s81, 0x10000000, 0
v_mov_b32 v11, s81
s_mov_b64 exec, 1
buffer_store_dword v10, v11, s[{SWS}:{SWS+3}], s80 offen sc0 sc1
s_mov_b64 exec, -1""")

def interleave2(e, A, B, per):
    bi = 0
    for i, a in enumerate(A):
        e(a)
        for _ in range(per[i] if i < len(per) else 0):
            if bi < len(B): e(B[bi]); bi += 1
    while bi < len(B):
        e(B[bi]); bi += 1

def gen_main_loop(e, kind):
    tag = kind
    naddr = [2, 3] + ([4, 5, 6, 7, 8, 9] if kind == 'F' else [4, 5])
    sIT, sDELTA, sSLOT = 86, 87, 88
    def adv_list():
        L = [f"s_add_u32 s{sSLOT}, s{sSLOT}, 1", f"s_cmp_eq_u32 s{sSLOT}, 3",
             f"s_cselect_b32 s{sDELTA}, s90, s89", f"s_cselect_b32 s{sSLOT}, 0, s{sSLOT}"]
        L += [f"v_add_u32 v{v}, s{sDELTA}, v{v}" for v in naddr]
        return L
    e(f"s_mov_b32 s{sIT}, 1\ns_mov_b32 s{sSLOT}, 0\ns_mov_b32 s89, {SLOT}\ns_mov_b32 s90, {-2*SLOT & 0xffffffff}")
    if opt.itstamps:
        e(f"s_memtime s[100:101]\ns_waitcnt lgkmcnt(0)\nv_writelane_b32 v250, s100, 10")
    e("s_waitcnt lgkmcnt(0)\ns_barrier")
    if opt.itstamps:
        e(f"s_memtime s[100:101]\ns_waitcnt lgkmcnt(0)\nv_writelane_b32 v250, s100, 0")
    for r in reads(kind, SETA, 0): e(r)
    e("s_waitcnt lgkmcnt(0)")
    rb = reads(kind, SETB, 1)
    items = rb + adv_list()
    nr = len(rb)
    def perlist(nr, nextra):
        per = [1] * 24
        rem = 24 - nr
        per = [1] * nr + [0] * rem
        k = nextra; i = nr
        while k > 0:
            per[i] += 1; k -= 1; i += 1
            if i == 24: i = max(nr, 8)
        return per
    interleave2(e, mfmas(kind, SETA, first=True), items, perlist(nr, len(items) - nr))
    e("s_waitcnt lgkmcnt(0)")
    e(f"L_ML_{tag}:")
    e("s_barrier")
    if opt.itstamps:
        e(f"s_memtime s[100:101]\ns_waitcnt lgkmcnt(0)\ns_mov_b32 m0, s{sIT}\nv_writelane_b32 v250, s100, m0")
    ra = reads(kind, SETA, 0)
    interleave2(e, mfmas(kind, SETB), ra, [1] * 24)
    e(f"""s_cmp_eq_u32 s{sIT}, 1
s_cbranch_scc0 L_ML_h1_{tag}
buffer_load_dword v249, v248, s[{STA}:{STA+3}], 0 offen
L_ML_h1_{tag}:
s_cmp_eq_u32 s{sIT}, 4
s_cbranch_scc0 L_ML_h2_{tag}
s_waitcnt vmcnt(0)
v_readfirstlane_b32 s{sNONCE}, v249
s_cmp_eq_u32 s{sNONCE}, 0
s_cbranch_scc0 L_ML_h2b_{tag}""")
    spin_nonce(e, 'H' + tag, 10)
    e(f"L_ML_h2b_{tag}:")
    gen_prep_flag(e)
    e(f"L_ML_h2_{tag}:")
    e("s_waitcnt lgkmcnt(0)")
    items = rb + adv_list() + [f"s_add_u32 s{sIT}, s{sIT}, 1", f"s_cmp_lt_u32 s{sIT}, 10"]
    interleave2(e, mfmas(kind, SETA), items, perlist(nr, len(items) - nr))
    e(f"""s_waitcnt lgkmcnt(0)
s_cbranch_scc1 L_ML_{tag}""")
    lds_count(e, 24, 10)
    e(f"""s_mul_i32 s87, s{sWAVE}, 10
s_add_u32 s87, s87, 54
s_lshl_b32 s89, s{sCB}, 9
s_lshl_b32 s90, s87, 2
s_add_u32 s89, s89, s90
s_add_u32 s35, s89, {WFLAG_OFF}
v_lshlrev_b32 v8, 2, v0
buffer_load_dword v1, v8, s[{SWS}:{SWS+3}], s35 offen sc1""")
    for m in mfmas(kind, SETB): e(m)
    if opt.itstamps:
        e(f"""s_memtime s[100:101]
s_waitcnt lgkmcnt(0)
v_writelane_b32 v250, s100, 11
s_lshl_b32 s98, s2, 3
s_add_u32 s98, s98, s{sWAVE}
s_lshl_b32 s98, s98, 6
s_add_u32 s98, s98, {STAMP_OFF + 0x40000}
v_lshlrev_b32 v251, 2, v0
s_mov_b64 exec, 0xffff
buffer_store_dword v250, v251, s[{SWS}:{SWS+3}], s98 offen
s_mov_b64 exec, -1""")

def tile_flag(e, tag):
    nyoung = 0
    if opt.wearly:
        ssm_w_setup(e, tag)
        nyoung = SSM_W_OPS()
    e(f"""s_waitcnt vmcnt({nyoung})
s_lshr_b32 s80, s{sWAVE}, 1
s_lshl_b32 s81, s{sRB}, 1
s_add_u32 s80, s80, s81
s_lshl_b32 s80, s80, 8
s_lshl_b32 s81, s{sCOL}, 1
s_and_b32 s82, s{sWAVE}, 1
s_add_u32 s81, s81, s82
s_lshl_b32 s82, s81, 2
s_cmp_ge_u32 s81, 18
s_cselect_b32 s81, 56, 0
s_add_u32 s80, s80, s82
s_add_u32 s80, s80, s81
s_add_u32 s80, s80, {TFLAG_OFF}
v_mov_b32 v10, s{sNONCE}
v_mov_b32 v11, 0
s_mov_b64 exec, 1
buffer_store_dword v10, v11, s[{SWS}:{SWS+3}], s80 offen sc0 sc1
s_mov_b64 exec, -1""")
    if opt.eprio: e("s_setprio 0")

def SSM_W_OPS():
    nsh = 8 if opt.map2 == 1 else 4
    ng = (-(-(-(-10 * 40 // nsh)) // 64)) if opt.gw else 0
    return NW * 5 + NLS * 5 + ng

def ssm_w_setup(e, tag, order=True, defer_lds=False):
    e(f"""s_waitcnt vmcnt({12 if order else 0})
s_mul_i32 s87, s{sWAVE}, 10
s_add_u32 s87, s87, 54
v_cmp_ne_u32 vcc, s{sNONCE}, v1
v_lshlrev_b32 v1, 4, v0
v_lshlrev_b32 v8, 2, v0
s_and_b32 s80, vcc_lo, 0x3ff
s_cbranch_scc0 L_SSM_wok{tag}""")
    poll_flags(e, 'SW' + tag, 8, 10, 35, 0x3ff)
    e(f"""L_SSM_wok{tag}:
s_mul_i32 s84, s{sCB}, 94
s_add_u32 s84, s84, s87
s_mul_i32 s84, s84, 5120
s_add_u32 s84, s84, {WF_OFF}
s_mul_i32 s85, s{sRB2}, 94
s_add_u32 s85, s85, s87
s_lshl_b32 s85, s85, 12
s_mul_i32 s88, s{sWAVE}, 15360
s_add_u32 s88, s88, {LDS_Y}
v_add_u32 v3, s88, v1""")
    rot_setup(e, 10, True)
    rot_act(e)
    if opt.sorder and order:
        e(f"s_cmp_eq_u32 s{sISU}, 1\ns_cbranch_scc1 L_SSM_noord{tag}")
        lds_wait_ge(e, 'O' + tag, 28, 4, 10)
        e(f"L_SSM_noord{tag}:")
    if opt.sprio: e(f"s_setprio {opt.sprio}")
    if opt.sshelp:
        w_prefetch(e, 10, NLS, 88, do_lds=False, rng=(range(opt.fswn) if defer_lds else None))
        if not defer_lds:
            e(f"s_cmp_eq_u32 s{sISU}, 1\ns_cbranch_scc1 L_SSM_skiplds{tag}")
            w_lds(e, NLS, 88)
            e(f"s_branch L_SSM_ldsdone{tag}\nL_SSM_skiplds{tag}:\ns_add_u32 s84, s84, {NLS*5120}\nL_SSM_ldsdone{tag}:")
    else:
        w_prefetch(e, 10, NLS, 88)

def x_addr_setup(e):
    e(f"""s_lshr_b32 s80, s{sWAVE}, 1
s_lshl_b32 s80, s80, 13
v_and_b32 v10, 15, v0
v_lshlrev_b32 v10, 7, v10
v_lshrrev_b32 v11, 4, v0
v_and_b32 v12, 7, v0
v_xor_b32 v11, v11, v12
v_lshlrev_b32 v11, 4, v11
v_add_u32 v10, v10, v11
v_add_u32 v2, s80, v10
v_xor_b32 v3, 64, v2""")

def p1_l2_prefetch(e, kind):
    e(f"""s_lshr_b32 s81, s2, 3
s_lshr_b32 s82, s81, 3
s_lshl_b32 s82, s82, 5
s_lshl_b32 s83, s{sRB}, 7
s_add_u32 s82, s82, s83
v_and_b32 v10, 31, v0
v_add_u32 v10, s82, v10
v_mul_u32_u24 v10, 1280, v10
v_lshrrev_b32 v11, 5, v0
s_lshl_b32 s83, s{sWAVE}, 1
s_add_u32 s83, s83, 2
v_add_u32 v11, s83, v11
v_lshlrev_b32 v11, 7, v11
v_add_u32 v10, v10, v11
buffer_load_dword v247, v10, s[{SX}:{SX+3}], 0 offen
s_and_b32 s81, s81, 7""")
    if kind == 'F':
        srd(e, STA, P_W1, 2211840)
        e(f"""s_lshl_b32 s83, s{sWAVE}, 6
v_add_u32 v10, s83, v0
v_mul_u32_u24 v11, 2731, v10
v_lshrrev_b32 v11, 16, v11
v_mul_u32_u24 v12, 24, v11
v_sub_u32 v12, v10, v12
v_mul_u32_u24 v13, 43, v12
v_lshrrev_b32 v13, 7, v13
v_mul_u32_u24 v10, 3, v13
v_sub_u32 v12, v12, v10
v_lshlrev_b32 v11, 6, v11
v_add_u32 v11, v11, v13
s_lshl_b32 s83, s81, 3
s_add_u32 s83, s83, 128
v_add_u32 v11, s83, v11
v_mul_u32_u24 v11, 3456, v11
v_lshlrev_b32 v12, 7, v12
v_add_u32 v11, v11, v12
s_mul_i32 s83, s{sJ}, 384
buffer_load_dword v247, v11, s[{STA}:{STA+3}], s83 offen""")
    else:
        e(f"""s_cmp_ge_u32 s{sWAVE}, 2
s_cselect_b32 s{STA}, s{P_BIM}, s{P_BRE}
s_cselect_b32 s{STA+1}, s{P_BIM+1}, s{P_BRE+1}
s_mov_b32 s{STA+2}, 819200
s_mov_b32 s{STA+3}, 0x20000
s_and_b32 s83, s{sWAVE}, 1
s_lshl_b32 s83, s83, 6
v_add_u32 v10, s83, v0
v_min_u32 v10, 95, v10
v_mul_u32_u24 v11, 171, v10
v_lshrrev_b32 v11, 11, v11
v_mul_u32_u24 v12, 12, v11
v_sub_u32 v12, v10, v12
s_mul_i32 s83, s{sJ}, 96
s_mul_i32 s82, s81, 12
s_add_u32 s83, s83, s82
v_add_u32 v12, s83, v12
v_min_u32 v12, 639, v12
v_mul_u32_u24 v12, 1280, v12
v_add_u32 v11, 2, v11
v_lshlrev_b32 v11, 7, v11
v_add_u32 v12, v12, v11
buffer_load_dword v247, v12, s[{STA}:{STA+3}], 0 offen""")

def consumer_start_loads(e, nbefore):
    gen_gather_setup(e, sWAVE, 'C', 0)
    ng = 10 if opt.gall else 3
    for _ in range(ng):
        e(f"buffer_load_dword v18, v17, s[{SG}:{SG+3}], s{sGo} offen\ns_add_u32 s{sGo}, s{sGo}, s{sGinc}")
    gen_unit_ids(e, sWAVE)
    if opt.gall:
        gen_prep_gather(e, sWAVE)
    gen_prep_issue(e, sWAVE, 16)

def consumer_common_setup(e):
    srd(e, STA, P_DBG, 256)
    e("v_mov_b32 v248, 0")

def gen_consumer_ffn(e):
    e("L_CONS_F:")
    srd(e, STB, P_B1, 3456)
    e(f"""s_mul_i32 s80, s{sJ}, 384
s_and_b32 s81, s{sWAVE}, 1
s_mul_i32 s81, s81, 192
s_add_u32 s80, s80, s81
v_lshrrev_b32 v10, 4, v0
v_lshlrev_b32 v10, 3, v10""")
    for ft in range(6):
        e(f"buffer_load_dwordx2 v[{224+2*ft}:{225+2*ft}], v10, s[{STB}:{STB+3}], s80 offen offset:{32*ft}")

    x_addr_setup(e)
    e(f"""v_lshrrev_b32 v10, 4, v0
v_bfe_u32 v11, v0, 2, 2
v_lshlrev_b32 v12, 3, v10
v_add_u32 v12, v12, v11
v_mul_u32_u24 v12, 384, v12
v_bfe_u32 v13, v0, 3, 1
v_lshlrev_b32 v13, 1, v13
v_and_b32 v14, 1, v10
v_lshlrev_b32 v14, 2, v14
v_or_b32 v13, v13, v14
v_bfe_u32 v14, v0, 1, 1
s_and_b32 s81, s{sWAVE}, 1
s_mul_i32 s81, s81, 12
v_add_u32 v14, s81, v14
v_and_b32 v15, 1, v0
v_lshlrev_b32 v15, 3, v15
v_add_u32 v12, v12, v15
v_add_u32 v12, 16384, v12""")
    for ft in range(6):
        e(f"""v_add_u32 v10, {2*ft}, v14
v_xor_b32 v10, v10, v13
v_lshlrev_b32 v10, 4, v10
v_add_u32 v{4+ft}, v12, v10""")
    e("s_waitcnt vmcnt(0)")
    gen_prep_finish(e, sWAVE, 16, 'F')
    consumer_common_setup(e)
    for ft in range(6):
        b = 36 + 4 * ft
        e(f"""v_lshlrev_b32 v{b}, 16, v{224+2*ft}
v_and_b32 v{b+1}, 0xffff0000, v{224+2*ft}
v_lshlrev_b32 v{b+2}, 16, v{225+2*ft}
v_and_b32 v{b+3}, 0xffff0000, v{225+2*ft}""")
    stamp(e, 0, 14)
    stamp_clk(e, 14, 14)
    dbgmax(e, 8)
    gen_main_loop(e, 'F')
    dbgmax(e, 2)
    if opt.eprio: e(f"s_setprio {opt.eprio}")
    stamp(e, 1, 14)
    stamp_clk(e, 15, 14)
    e(f"""s_lshr_b32 s80, s{sWAVE}, 1
s_lshl_b32 s81, s{sRB}, 1
s_add_u32 s80, s80, s81
s_mul_i32 s80, s80, 94
s_mul_i32 s81, s{sJ}, 6
s_add_u32 s80, s80, s81
s_and_b32 s81, s{sWAVE}, 1
s_mul_i32 s81, s81, 3
s_add_u32 s80, s80, s81
s_lshl_b32 s32, s80, 12
v_lshlrev_b32 v10, 4, v0""")
    k = 0
    OB = 196 if opt.fsw else SETA
    pend = []
    for u in range(3):
        for tt in range(4):
            o = OB + 4 * k; k += 1
            vals = [acc_ffn(2*u, tt), acc_ffn(2*u+1, tt)]
            tmp = 16 + 8 * (k & 1)
            for h, a in enumerate(vals):
                for r in range(4):
                    e(f"v_max_f32 v{tmp+4*h+r}, 0, v{a+r}")
            for h, a in enumerate(vals):
                for r in range(0, 4, 2):
                    e(f"v_pk_mul_f32 v[{a+r}:{a+r+1}], v[{a+r}:{a+r+1}], v[{tmp+4*h+r}:{tmp+4*h+r+1}]")
            for h, a in enumerate(vals):
                for r in range(0, 4, 2):
                    e(f"v_cvt_pk_bf16_f32 v{o+2*h+(r>>1)}, v{a+r}, v{a+r+1}")
            st_ = f"buffer_store_dwordx4 {R(o)}, v10, s[{SWS}:{SWS+3}], s32 offen offset:{tt*1024} sc1"
            if opt.fsw: pend.append(st_)
            else: e(st_)
        if u < 2:
            if opt.fsw: pend.append("s_add_u32 s32, s32, 4096")
            else: e("s_add_u32 s32, s32, 4096")
    if opt.fsw:
        ssm_w_setup(e, 'F', order=False, defer_lds=(opt.fsw == 2))
        e("v_lshlrev_b32 v10, 4, v0")
        for x in pend: e(x)
    lds_count(e, 16, 12)
    stamp(e, 2, 14)
    tile_flag(e, 'F')
    dbgmax(e, 3)
    stamp(e, 3, 14)
    if opt.fsw == 2:
        w_prefetch(e, 10, NLS, 88, do_lds=False, rng=range(opt.fswn, NW))
        w_lds(e, NLS, 88)
    e("s_branch L_SSM_P2b" if opt.fsw else "s_branch L_SSM_P2")

def gen_code_prefetch(e):
    e(f"""s_cmp_eq_u32 s{sWAVE}, 3
s_cbranch_scc0 L_CPF_done
s_getpc_b64 s[80:81]
L_CPF_pc:
s_sub_u32 s80, s80, L_CPF_pc-{NAME}
s_subb_u32 s81, s81, 0
s_lshr_b32 s82, s2, 3
s_lshl_b32 s82, s82, 11
v_and_b32 v10, 15, v0
v_lshlrev_b32 v10, 7, v10
v_add_u32 v10, s82, v10
v_min_u32 v10, L_CODE_END-{NAME}-4, v10
s_mov_b64 exec, 0xffff
global_load_dword v19, v10, s[80:81]
s_mov_b64 exec, -1
L_CPF_done:""")

def gen_consumer(e):
    e(f"""v_mov_b32 v10, {LDS_FLAG}
v_mov_b32 v12, 0
v_mov_b32 v13, 0
v_mov_b32 v14, 0
v_mov_b32 v15, 0
ds_write_b128 v10, v[12:15]
ds_write_b128 v10, v[12:15] offset:16""")
    if opt.cpf: gen_code_prefetch(e)
    consumer_start_loads(e, 0)
    e(f"""s_cmp_eq_u32 s{sISU}, 1
s_cbranch_scc1 L_CONS_U""")
    gen_consumer_ffn(e)
    gen_consumer_u(e)

def pk(op, d, a, b, c=None, bsel=None, neg=False):
    assert bsel == 0, "op_sel hi-broadcast is unsafe next to MFMA (measured)"
    n = 3 if c is not None else 2
    sel = [0, bsel] + ([0] if c is not None else [])
    selh = [1, bsel] + ([1] if c is not None else [])
    s = f"{op} v[{d}:{d+1}], v[{a}:{a+1}], v[{b}:{b+1}]" + (f", v[{c}:{c+1}]" if c is not None else "")
    s += " op_sel:[" + ",".join(map(str, sel)) + "] op_sel_hi:[" + ",".join(map(str, selh)) + "]"
    if neg:
        ng = [0, 1] + ([0] if c is not None else [])
        s += " neg_lo:[" + ",".join(map(str, ng)) + "] neg_hi:[" + ",".join(map(str, ng)) + "]"
    return s

def gen_consumer_u(e):
    e("L_CONS_U:")
    x_addr_setup(e)
    e(f"""s_and_b32 s81, s{sWAVE}, 1
s_mul_i32 s81, s81, {96*128}
s_add_u32 s81, s81, 16384
v_add_u32 v4, s81, v10
v_xor_b32 v5, 64, v4""")
    e("s_waitcnt vmcnt(0)")
    gen_prep_finish(e, sWAVE, 16, 'U')
    consumer_common_setup(e)
    stamp(e, 0, 14)
    gen_main_loop(e, 'U')
    if opt.eprio: e(f"s_setprio {opt.eprio}")
    stamp(e, 1, 14)
    def K(ct, i): return 160 + 18 * ct + 2 * i
    LAM, L8, L16, L16Q, L64, L128, L512, L1024, C2 = range(9)
    ent = {LAM: 0, L8: 1, L16: 3, L64: 6, L128: 7, L512: 8, L1024: 9, C2: 10}
    e(f"""s_and_b32 s81, s{sWAVE}, 1
s_mul_i32 s81, s81, {48*8}
s_add_u32 s81, s81, {LDS_TAB}
v_and_b32 v10, 15, v0
v_lshlrev_b32 v10, 3, v10
v_add_u32 v10, s81, v10
v_lshrrev_b32 v11, 4, v0
v_mul_u32_u24 v11, 768, v11
v_add_u32 v11, v11, v10""")
    for ct in range(3):
        for k, en in ent.items():
            e(f"ds_read_b64 v[{K(ct,k)}:{K(ct,k)+1}], v10 offset:{en*768 + ct*128}")
        e(f"ds_read_b64 v[{K(ct,L16Q)}:{K(ct,L16Q)+1}], v11 offset:{2*768 + ct*128}")
    e("s_waitcnt lgkmcnt(0)")
    LI = [2, 252, 254]
    C2I = [16, 18, 20]
    for ct in range(3):
        e(f"v_mov_b32 v{LI[ct]}, v{K(ct, LAM)+1}")
    def U(n, ct, part):
        return acc_u(n >> 1, 2 * ct + part) + 2 * (n & 1)
    def Er(ct, s): return 16 + 8 * ct + 4 * s
    def Ei(ct, s): return 18 + 8 * ct + 4 * s
    for n in range(1, 8):
        src = (n - 1) & 1; dst = n & 1
        for ct in range(3):
            pr = U(0, ct, 0) if n == 1 else Er(ct, src)
            pi = U(0, ct, 1) if n == 1 else Ei(ct, src)
            e(pk("v_pk_fma_f32", Er(ct, dst), pr, K(ct, LAM), U(n, ct, 0), 0))
            e(pk("v_pk_fma_f32", Ei(ct, dst), pi, K(ct, LAM), U(n, ct, 1), 0))
        for ct in range(3):
            pr = U(0, ct, 0) if n == 1 else Er(ct, src)
            pi = U(0, ct, 1) if n == 1 else Ei(ct, src)
            e(pk("v_pk_fma_f32", Er(ct, dst), pi, LI[ct], Er(ct, dst), 0, neg=True))
            e(pk("v_pk_fma_f32", Ei(ct, dst), pr, LI[ct], Ei(ct, dst), 0))
    def LL(ct): return 16 + 8 * ct
    for ct in range(3):
        er, ei, l8 = Er(ct, 1), Ei(ct, 1), K(ct, L8)
        e(f"""v_fma_f32 v{LL(ct)}, v{l8}, v{er}, v{er+1}
v_fma_f32 v{LL(ct)+1}, v{l8}, v{ei}, v{ei+1}
v_fma_f32 v{LL(ct)}, -v{l8+1}, v{ei}, v{LL(ct)}
v_fma_f32 v{LL(ct)+1}, v{l8+1}, v{er}, v{LL(ct)+1}""")
    def G(ct, q): return 214 + 8 * ct + 2 * q
    for ct in range(3):
        for c in range(2):
            a, b, a2, b2 = G(ct, 0) + c, G(ct, 1) + c, G(ct, 2) + c, G(ct, 3) + c
            e(f"""v_mov_b32 v{a}, v{LL(ct)+c}
v_mov_b32 v{b}, v{LL(ct)+c}
v_permlane16_swap_b32 v{a}, v{b}
v_mov_b32 v{a2}, v{a}
v_mov_b32 v{b2}, v{b}
v_permlane32_swap_b32 v{a}, v{a2}
v_permlane32_swap_b32 v{b}, v{b2}""")
    for ct in range(3):
        cfma(e, G(ct, 1), K(ct, L16), G(ct, 0), G(ct, 1))
    for ct in range(3):
        cfma(e, G(ct, 2), K(ct, L16), G(ct, 1), G(ct, 2))
    for ct in range(3):
        cfma(e, G(ct, 3), K(ct, L16), G(ct, 2), G(ct, 3))
    e(f"""s_mov_b32 s80, 0xffff0000
s_mov_b32 s81, 0
s_mov_b32 s82, 0
s_mov_b32 s83, 0x0000ffff
s_mov_b32 s90, 0
s_mov_b32 s91, 0xffff0000""")
    for ct in range(3):
        for c in range(2):
            e(f"""v_cndmask_b32 v{LL(ct)+c}, 0, v{G(ct,0)+c}, s[80:81]
v_cndmask_b32 v{LL(ct)+c}, v{LL(ct)+c}, v{G(ct,1)+c}, s[82:83]
v_cndmask_b32 v{LL(ct)+c}, v{LL(ct)+c}, v{G(ct,2)+c}, s[90:91]""")
    e(f"""s_and_b32 s84, s{sWAVE}, 1
s_mul_i32 s85, s84, {48*8}
s_add_u32 s85, s85, {LDS_LX}
v_and_b32 v10, 15, v0
v_lshlrev_b32 v10, 3, v10
v_add_u32 v10, s85, v10
s_lshl_b32 s85, s84, 2
s_add_u32 s85, s85, {LDS_FLAG}
v_mov_b32 v11, s85
s_cmp_ge_u32 s{sWAVE}, 2
s_cbranch_scc1 L_U_wt1""")
    for ct in range(3):
        e(f"ds_write_b64 v10, v[{G(ct,3)}:{G(ct,3)+1}] offset:{ct*128}")
    e(f"""v_mov_b32 v12, 1
s_waitcnt lgkmcnt(0)
ds_write_b32 v11, v12
s_branch L_U_lb
L_U_wt1:
s_mov_b32 s85, 0
L_U_pairwait:
ds_read_b32 v12, v11
s_add_u32 s85, s85, 1
s_waitcnt lgkmcnt(0)
v_readfirstlane_b32 s86, v12
s_cmp_ge_u32 s85, {opt.spin_limit}
s_cbranch_scc1 L_U_pairok
s_cmp_eq_u32 s86, 0
s_cbranch_scc1 L_U_pairwait
L_U_pairok:""")
    for ct in range(3):
        e(f"ds_read_b64 v[{G(ct,0)}:{G(ct,0)+1}], v10 offset:{ct*128}")
    e("s_waitcnt lgkmcnt(0)")
    for ct in range(3):
        cfma(e, G(ct, 1), K(ct, L64), G(ct, 0), G(ct, 3))
    e(f"""s_mov_b32 s80, 0xffff0000
s_mov_b32 s81, 0
s_mov_b32 s82, 0
s_mov_b32 s83, 0x0000ffff
v_cndmask_b32 v240, v{G(0,1)}, v{G(1,1)}, s[80:81]
v_cndmask_b32 v241, v{G(0,1)+1}, v{G(1,1)+1}, s[80:81]
v_cndmask_b32 v240, v240, v{G(2,1)}, s[82:83]
v_cndmask_b32 v241, v241, v{G(2,1)+1}, s[82:83]
v_mov_b32 v242, s{sNONCE}
v_mov_b32 v243, s{sNONCE}
s_mul_i32 s85, s{sJ}, 16
s_add_u32 s85, s85, s{sRB}
s_mul_i32 s85, s85, 96
s_mul_i32 s86, s84, 48
s_add_u32 s85, s85, s86
s_lshl_b32 s85, s85, 4
s_add_u32 s85, s85, {AG_OFF}
v_lshlrev_b32 v12, 4, v0
s_mov_b32 exec_lo, -1
s_mov_b32 exec_hi, 0x0000ffff
buffer_store_dwordx4 v[240:243], v12, s[{SWS}:{SWS+3}], s85 offen sc0 sc1
s_mov_b64 exec, -1
L_U_lb:""")
    if not opt.udelay: lds_count(e, 16, 12)
    stamp(e, 2, 14)
    LB = 112 + 0
    lbregs = [40 + 4 * i for i in range(6)] + [240 + 4 * i for i in range(4)] + [32 + 0, 36]
    lbregs = [40 + 4 * i for i in range(6)] + [240, 244, 248] + [216, 224, 232]
    e(f"""s_mul_i32 s85, s{sJ}, {16*96}
s_mul_i32 s86, s84, 48
s_add_u32 s85, s85, s86
s_lshl_b32 s85, s85, 4
s_add_u32 s85, s85, {AG_OFF}
v_lshrrev_b32 v12, 4, v0
v_lshlrev_b32 v12, 2, v12
v_sub_u32 v12, s{sRB}, v12
v_mov_b32 v9, 0x10000000
v_and_b32 v13, 15, v0""")
    for m in range(4):
        e(f"""v_subrev_u32 v14, {1+m}, v12
v_cmp_le_i32 s[{88+2*m}:{89+2*m}], 0, v14
v_mul_u32_u24 v15, 96, v14
v_add_u32 v15, v15, v13
v_lshlrev_b32 v15, 4, v15
v_cndmask_b32 v{4+m}, v9, v15, s[{88+2*m}:{89+2*m}]""")
    CR = list(range(38, 52)) + [54]
    for k in range(15):
        e(f"s_mov_b32 s{CR[k]}, s{sNONCE}")
    e(f"""s_add_u32 s87, s85, {47*16 + 8}
s_mov_b32 s86, 0
L_U_cp:""")
    for k in range(15):
        e(f"""s_cmp_gt_u32 s{sRB}, {k}
s_cbranch_scc0 L_U_cpl
s_load_dword s{CR[k]}, s[{P_WS}:{P_WS+1}], s87 offset:{k*1536} glc""")
    e(f"""L_U_cpl:
s_add_u32 s86, s86, 1
s_waitcnt lgkmcnt(0)
s_mov_b32 s81, 0""")
    for k in range(15):
        e(f"s_xor_b32 s82, s{CR[k]}, s{sNONCE}\ns_or_b32 s81, s81, s82")
    e(f"""s_cmp_ge_u32 s86, {opt.spin_limit}
s_cbranch_scc1 L_U_cpok
s_cmp_eq_u32 s81, 0
s_cbranch_scc1 L_U_cpok
s_sleep 1
s_branch L_U_cp
L_U_cpok:""")
    stamp(e, 11, 14)
    e(f"s_mov_b32 s86, 0\nL_U_lbloop:")
    for m in range(4):
        for ct in range(3):
            r = lbregs[m * 3 + ct]
            e(f"buffer_load_dwordx4 {R(r)}, v{4+m}, s[{SWS}:{SWS+3}], s85 offen offset:{ct*256} sc1")
    e("s_add_u32 s86, s86, 1\ns_mov_b64 s[96:97], 0\ns_waitcnt vmcnt(0)")
    for m in range(4):
        for ct in range(3):
            r = lbregs[m * 3 + ct]
            e(f"""v_cmp_ne_u32 vcc, s{sNONCE}, v{r+2}
s_and_b64 vcc, vcc, s[{88+2*m}:{89+2*m}]
s_or_b64 s[96:97], s[96:97], vcc""")
    e(f"""s_cmp_ge_u32 s86, {opt.spin_limit}
s_cbranch_scc1 L_U_lbok
s_cmp_eq_u64 s[96:97], 0
s_cbranch_scc0 L_U_lbloop
L_U_lbok:""")
    if opt.udelay: lds_count(e, 16, 12)
    def S(m, ct): return lbregs[m * 3 + ct]
    for ct in range(3):
        cfma(e, S(2, ct), K(ct, L128), S(3, ct), S(2, ct))
    for ct in range(3):
        cfma(e, S(1, ct), K(ct, L128), S(2, ct), S(1, ct))
    for ct in range(3):
        cfma(e, S(0, ct), K(ct, L128), S(1, ct), S(0, ct))
    for ct in range(3):
        z, b, t, u = S(0, ct), S(1, ct), S(2, ct), S(3, ct)
        e(f"""v_mov_b32 v{b}, v{z}
v_mov_b32 v{b+1}, v{z+1}
v_permlane16_swap_b32 v{z}, v{b}
v_permlane16_swap_b32 v{z+1}, v{b+1}""")
        cfma(e, t, K(ct, L512), b, z)
        e(f"""v_mov_b32 v{u}, v{t}
v_mov_b32 v{u+1}, v{t+1}
v_permlane32_swap_b32 v{t}, v{u}
v_permlane32_swap_b32 v{t+1}, v{u+1}""")
        cfma(e, z, K(ct, L1024), u, t)
    e(f"s_cmp_ge_u32 s{sWAVE}, 2\ns_cbranch_scc0 L_U_hw0")
    for ct in range(3):
        cfma(e, S(1, ct), K(ct, L64), S(0, ct), G(ct, 0))
    e("s_branch L_U_hw1\nL_U_hw0:")
    for ct in range(3):
        e(f"v_mov_b32 v{S(1,ct)}, v{S(0,ct)}\nv_mov_b32 v{S(1,ct)+1}, v{S(0,ct)+1}")
    e("L_U_hw1:\ns_nop 1")
    for ct in range(3):
        cfma(e, S(2, ct), K(ct, L16Q), S(1, ct), LL(ct))
    for ct in range(3):
        hl, l8, er, ei = S(2, ct), K(ct, L8), Er(ct, 1), Ei(ct, 1)
        cr, ci = S(3, ct), S(3, ct) + 2
        e(f"""v_mov_b32 v{cr}, v{hl}
v_mov_b32 v{ci}, v{hl+1}
v_fma_f32 v{cr+1}, v{l8}, v{hl}, v{er}
v_fma_f32 v{ci+1}, v{l8}, v{hl+1}, v{ei}
v_fma_f32 v{cr+1}, -v{l8+1}, v{hl+1}, v{cr+1}
v_fma_f32 v{ci+1}, v{l8+1}, v{hl}, v{ci+1}""")
    for n in range(8):
        for ct in range(3):
            pr = S(3, ct) if n == 0 else U(n - 1, ct, 0)
            pi = S(3, ct) + 2 if n == 0 else U(n - 1, ct, 1)
            e(pk("v_pk_fma_f32", U(n, ct, 0), pr, K(ct, LAM), U(n, ct, 0), 0))
            e(pk("v_pk_fma_f32", U(n, ct, 1), pi, K(ct, LAM), U(n, ct, 1), 0))
        for ct in range(3):
            pr = S(3, ct) if n == 0 else U(n - 1, ct, 0)
            pi = S(3, ct) + 2 if n == 0 else U(n - 1, ct, 1)
            e(pk("v_pk_fma_f32", U(n, ct, 0), pi, LI[ct], U(n, ct, 0), 0, neg=True))
            e(pk("v_pk_fma_f32", U(n, ct, 1), pr, LI[ct], U(n, ct, 1), 0))
    stamp(e, 3, 14)
    e(f"""v_and_b32 v10, 15, v0
v_lshrrev_b32 v11, 4, v0
v_lshlrev_b32 v11, 3, v11
v_sub_u32 v10, v10, v11""")
    for ct in range(3):
        e(f"v_mov_b32 v{C2I[ct]}, v{K(ct, C2)+1}")
    e("v_mov_b32 v14, 0x3f80\nv_mov_b32 v15, 0x3f800000")
    for b in range(2):
        e(f"v_add_u32 v12, {16*b}, v10")
        for rr in range(4):
            d = 40 + 4 * b + rr
            e(f"""v_cmp_eq_u32 vcc, {2*rr}, v12
v_cndmask_b32 v{d}, 0, v14, vcc
v_cmp_eq_u32 vcc, {2*rr+1}, v12
v_cndmask_b32 v{d}, v{d}, v15, vcc""")
    e(f"""s_lshr_b32 s80, s{sWAVE}, 1
s_lshl_b32 s81, s{sRB}, 1
s_add_u32 s80, s80, s81
s_mul_i32 s80, s80, 94
s_mul_i32 s81, s{sJ}, 6
s_mul_i32 s82, s84, 3
s_add_u32 s81, s81, s82
s_add_u32 s80, s80, s81
s_add_u32 s80, s80, 54
s_lshl_b32 s80, s80, 12
v_lshlrev_b32 v10, 4, v0""")
    for ct in range(3):
        c2 = K(ct, C2)
        for i in range(4):
            if i & 1:
                t0, t1, t2, t3 = 216, 218, 220, 222
                m0, m1, m2, m3 = 4, 6, 8, 12
            else:
                t0, t1, t2, t3 = 208 + 6, 24, 26, 28
                t0 = 22
                m0, m1, m2, m3 = 30, 32, 34, 36
            for s_, (tr, ti, mr, mi) in enumerate(((t0, t2, m0, m2), (t1, t3, m1, m3))):
                n = 2 * i + s_
                hr, hi = U(n, ct, 0), U(n, ct, 1)
                e(pk("v_pk_mul_f32", mr, hr, c2, None, 0))
                e(pk("v_pk_mul_f32", mi, hi, c2, None, 0, neg=True))
            for s_, (tr, ti, mr, mi) in enumerate(((t0, t2, m0, m2), (t1, t3, m1, m3))):
                n = 2 * i + s_
                hr, hi = U(n, ct, 0), U(n, ct, 1)
                e(pk("v_pk_fma_f32", tr, hi, C2I[ct], mr, 0, neg=True))
                e(pk("v_pk_fma_f32", ti, hr, C2I[ct], mi, 0, neg=True))
            e(f"""v_cvt_pk_bf16_f32 v{48+i}, v{t0}, v{t1}
v_cvt_pk_bf16_f32 v{52+i}, v{t0+1}, v{t1+1}
v_cvt_pk_bf16_f32 v{56+i}, v{t2}, v{t3}
v_cvt_pk_bf16_f32 v{60+i}, v{t2+1}, v{t3+1}""")
        def D(part, tt): return 224 + 16 * part + 4 * tt
        for part in range(2):
            for a in range(2):
                for b in range(2):
                    A = 48 + 8 * part + 4 * a
                    e(f"v_mfma_f32_16x16x32_bf16 {R(D(part, 2*b+a))}, {R(A)}, {R(40+4*b)}, 0")
        if True:
            e(f"s_add_u32 s82, s81, {ct}\ns_cmp_ge_u32 s82, 40\ns_cbranch_scc1 L_U_skip{ct}")
            for tt in range(4):
                o = acc_u(tt, 2 * ct)
                dr, di = D(0, tt), D(1, tt)
                e(f"""v_cvt_pk_bf16_f32 v{o}, v{dr}, v{dr+1}
v_cvt_pk_bf16_f32 v{o+1}, v{dr+2}, v{dr+3}
v_cvt_pk_bf16_f32 v{o+2}, v{di}, v{di+1}
v_cvt_pk_bf16_f32 v{o+3}, v{di+2}, v{di+3}
buffer_store_dwordx4 {R(o)}, v10, s[{SWS}:{SWS+3}], s80 offen offset:{tt*1024} sc1""")
            e(f"L_U_skip{ct}:\ns_nop 7\ns_add_u32 s80, s80, 4096")
    stamp(e, 4, 14)
    tile_flag(e, 'U')
    dbgmax(e, 4)
    stamp(e, 5, 14)
    e("s_branch L_SSM_P2")

ACC2 = 16
WSL = 96
ASL = 196
NW, NA = 5, 3
def set_nw(nw, na):
    global NW, NA, ASL
    NW, NA = nw, na
    ASL = WSL + 20 * nw
def acc2(dt, tt): return ACC2 + (dt * 4 + tt) * 4

def wrap_w(e):
    if not opt.rot: return
    e("""s_sub_u32 s91, s91, 1
s_cmp_eq_u32 s91, 0
s_cselect_b32 s95, s93, 0
s_sub_u32 s84, s84, s95""")

def wrap_a(e):
    if not opt.rot: return
    e("""s_sub_u32 s92, s92, 1
s_cmp_eq_u32 s92, 0
s_cselect_b32 s95, s94, 0
s_sub_u32 s85, s85, s95""")

def rot_setup(e, n_sgpr_or_const, is_const):
    if not opt.rot: return
    if opt.map2 == 1:
        e(f"""s_and_b32 s95, s{sCB}, 3
s_lshl_b32 s95, s95, 1
s_add_u32 s95, s95, s{sRB2}
s_and_b32 s95, s95, 7""")
    else:
        e(f"""s_and_b32 s95, s{sRB2}, 3
s_lshl_b32 s95, s95, 1
s_add_u32 s95, s95, s{sCB}
s_and_b32 s95, s95, 7""")
    n = f"{n_sgpr_or_const}" if is_const else f"s{n_sgpr_or_const}"
    e(f"""s_mul_i32 s90, s95, {n}
s_lshr_b32 s90, s90, 3
s_sub_u32 s91, {n}, s90
s_mov_b32 s92, s91
s_mul_i32 s93, {n}, 5120
s_mul_i32 s94, {n}, 4096
s_mul_i32 s95, s90, 5120
s_add_u32 s84, s84, s95""")

def rot_act(e):
    if not opt.rot: return
    e("""s_lshl_b32 s95, s90, 12
s_add_u32 s85, s85, s95""")

def gen_p2_stream(e, tag, nsteps, extra_hook=None):
    queue = []
    SC = '' if opt.nosc1 else 'sc1'
    def ld_w(s):
        b = WSL + 20 * (s % NW)
        for dt in range(5):
            if dt < 4:
                e(f"buffer_load_dwordx4 {R(b+4*dt)}, v1, s[{SWS}:{SWS+3}], s84 offen offset:{dt*1024} {SC}")
            else:
                e(f"s_add_u32 s84, s84, 4096")
                e(f"buffer_load_dwordx4 {R(b+4*dt)}, v1, s[{SWS}:{SWS+3}], s84 offen {SC}")
                e(f"s_add_u32 s84, s84, 1024")
            queue.append(('w', s))
        wrap_w(e)
    def ld_a(s):
        b = ASL + 16 * (s % NA)
        for tt in range(4):
            e(f"buffer_load_dwordx4 {R(b+4*tt)}, v1, s[{SWS}:{SWS+3}], s85 offen offset:{tt*1024} {SC}")
            queue.append(('a', s))
        e(f"s_add_u32 s85, s85, 4096")
        wrap_a(e)
    return ld_w, ld_a, queue

def p2_role(e, tag, nsteps):
    pass

def emit_stream(e, nsteps, ld_w, ld_a, queue, NL, vL, late_lds=None):
    if opt.ststamps:
        e(f"s_memtime s[100:101]\ns_waitcnt lgkmcnt(0)\nv_writelane_b32 v250, s100, 0")
    for s in range(min(NA, nsteps)): ld_a(s)
    if late_lds is not None: w_lds(e, NL, late_lds, queue)
    for s in range(nsteps):
        idx = [i for i, q in enumerate(queue) if q in (('w', s), ('a', s))]
        inlds = NW <= s < NW + NL
        if idx:
            last = max(idx)
            n = len(queue) - 1 - last
            e(f"s_waitcnt vmcnt({n})" + (" lgkmcnt(0)" if inlds else ""))
            del queue[:last + 1]
        elif inlds:
            e("s_waitcnt lgkmcnt(0)")
        if opt.ststamps:
            e(f"s_memtime s[100:101]\ns_waitcnt lgkmcnt(0)\nv_writelane_b32 v250, s100, {s+1}")
        wb = WSL + 20 * (s % NW); ab = ASL + 16 * (s % NA)
        for dt in range(5):
            for tt in range(4):
                d = acc2(dt, tt)
                c = "0" if s == 0 else R(d)
                e(f"v_mfma_f32_16x16x32_bf16 {R(d)}, {R(wb+4*dt)}, {R(ab+4*tt)}, {c}")
        if s + NA < nsteps: ld_a(s + NA)
        t = s + NW
        if t < nsteps and t >= NW + NL:
            ld_w(t)
        t = s + 2
        if NW <= t < min(NW + NL, nsteps):
            li = [i for i, q in enumerate(queue) if q == ('l', t)]
            if li:
                e(f"s_waitcnt vmcnt({len(queue) - 1 - max(li)})")
                del queue[:max(li) + 1]
            for dt in range(5):
                e(f"ds_read_b128 {R(WSL + 20*(t % NW) + 4*dt)}, v{vL} offset:{(t-NW)*5120 + dt*1024}")

def spoll_tiles(e, tag, kind, sleep=1):
    off = 0 if kind == 'F' else 128
    n = 18 if kind == 'F' else 14
    e(f"""s_lshl_b32 s89, s{sRB2}, 8
s_add_u32 s89, s89, {TFLAG_OFF + off}
s_mov_b32 s80, 0
L_sp_{tag}:""")
    if kind == 'F':
        e(f"s_load_dwordx16 s[40:55], s[{P_WS}:{P_WS+1}], s89 glc")
        e(f"s_load_dwordx2 s[56:57], s[{P_WS}:{P_WS+1}], s89 offset:64 glc")
        regs = list(range(40, 58))
    else:
        e(f"s_load_dwordx8 s[40:47], s[{P_WS}:{P_WS+1}], s89 glc")
        e(f"s_load_dwordx4 s[48:51], s[{P_WS}:{P_WS+1}], s89 offset:32 glc")
        e(f"s_load_dwordx2 s[54:55], s[{P_WS}:{P_WS+1}], s89 offset:48 glc")
        regs = list(range(40, 52)) + [54, 55]
    e("s_add_u32 s80, s80, 1\ns_waitcnt lgkmcnt(0)\ns_mov_b32 s81, 0")
    for r_ in regs:
        e(f"s_xor_b32 s82, s{r_}, s{sNONCE}\ns_or_b32 s81, s81, s82")
    e(f"""s_cmp_ge_u32 s80, {opt.spin_limit}
s_cbranch_scc1 L_sp_done_{tag}
s_cmp_eq_u32 s81, 0
s_cbranch_scc1 L_sp_done_{tag}
s_sleep {sleep}
s_branch L_sp_{tag}
L_sp_done_{tag}:""")

def lds_signal(e, off, vt):
    e(f"""v_mov_b32 v{vt}, {LDS_FLAG + off}
v_mov_b32 v{vt+1}, 1
ds_write_b32 v{vt}, v{vt+1}""")

def lds_count(e, off, vt):
    e(f"""v_mov_b32 v{vt}, {LDS_FLAG + off}
v_mov_b32 v{vt+1}, 1
s_mov_b64 exec, 1
ds_add_u32 v{vt}, v{vt+1}
s_mov_b64 exec, -1""")

def lds_wait_ge(e, tag, off, n, vt):
    e(f"""v_mov_b32 v{vt}, {LDS_FLAG + off}
s_mov_b32 s80, 0
L_lwg_{tag}:
ds_read_b32 v{vt+1}, v{vt}
s_add_u32 s80, s80, 1
s_waitcnt lgkmcnt(0)
v_readfirstlane_b32 s81, v{vt+1}
s_cmp_ge_u32 s80, {opt.spin_limit * 4}
s_cbranch_scc1 L_lwg_done_{tag}
s_cmp_ge_u32 s81, {n}
s_cbranch_scc1 L_lwg_done_{tag}
s_sleep 1
s_branch L_lwg_{tag}
L_lwg_done_{tag}:""")

def lds_wait(e, tag, off, vt):
    e(f"""v_mov_b32 v{vt}, {LDS_FLAG + off}
s_mov_b32 s80, 0
L_lw_{tag}:
ds_read_b32 v{vt+1}, v{vt}
s_add_u32 s80, s80, 1
s_waitcnt lgkmcnt(0)
v_readfirstlane_b32 s81, v{vt+1}
s_cmp_ge_u32 s80, {opt.spin_limit * 4}
s_cbranch_scc1 L_lw_done_{tag}
s_cmp_eq_u32 s81, 0
s_cbranch_scc0 L_lw_done_{tag}
s_sleep 1
s_branch L_lw_{tag}
L_lw_done_{tag}:""")

def gen_p2(e):
    e("L_FFN_P2:")
    e(f"""s_mul_i32 s80, s{sRB2}, 94
s_add_u32 s85, s85, s80
s_lshl_b32 s85, s85, 12
v_add_u32 v3, s87, v1""")
    rot_act(e)
    e(f"""s_mov_b32 s88, s84
s_mov_b32 s84, s86""")
    nsh_ = 8 if opt.map2 == 1 else 4
    ng_ = (-(-(-(-14 * 40 // nsh_)) // 64)) if opt.gw else 0
    e(f"s_waitcnt vmcnt({NLF*5})")
    gen_gate_compute(e)
    e("s_mov_b32 s84, s88")
    ld_w, ld_a, queue = gen_p2_stream(e, 'F', 14)
    stamp(e, 3, 14)
    e(f"s_cmp_eq_u32 s86, 0\ns_cbranch_scc0 L_FFN_lw")
    spoll_tiles(e, 'FT', 'F')
    e('s_waitcnt vmcnt(0)')
    if opt.sshelp: lds_count(e, 20, 10)
    lds_signal(e, 8, 10)
    e("s_branch L_FFN_go\nL_FFN_lw:\ns_waitcnt vmcnt(0)")
    if opt.sshelp: lds_count(e, 20, 10)
    lds_wait(e, 'F', 8, 10)
    e("L_FFN_go:")
    if opt.prio: e(f"s_setprio {opt.prio}")
    stamp(e, 4, 14)
    if opt.l2pf2: l2_prefetch(e, 85, 14 * 32, 4 if opt.map2 == 1 else 8, f"s{sCB}", 3 if opt.map2 == 1 else 7, 2 if opt.map2 == 1 else 1)
    del queue[:]
    e(f"s_cmp_ge_u32 s86, 2\ns_cbranch_scc1 L_FFN_13")
    emit_stream(e, 14, ld_w, ld_a, queue, NLF, 3, 87 if opt.ldslate else None)
    e("s_branch L_FFN_done")
    e("L_FFN_13:")
    del queue[:]
    emit_stream(e, 13, ld_w, ld_a, queue, NLF, 3, 87 if opt.ldslate else None)
    e("L_FFN_done:")
    dbgmax(e, 5)
    if opt.ststamps:
        e(f"""s_memtime s[100:101]
s_waitcnt lgkmcnt(0)
v_writelane_b32 v250, s100, 15
s_lshl_b32 s98, s2, 3
s_add_u32 s98, s98, s{sWAVE}
s_lshl_b32 s98, s98, 6
s_add_u32 s98, s98, {STAMP_OFF + 0x40000}
v_lshlrev_b32 v251, 2, v0
s_mov_b64 exec, 0xffff
buffer_store_dword v250, v251, s[{SWS}:{SWS+3}], s98 offen
s_mov_b64 exec, -1""")
    stamp(e, 5, 14)
    e(f"""s_mul_i32 s80, s86, 20480
v_add_u32 v2, s80, v1""")
    for tt in range(4):
        for dt in range(5):
            e(f"ds_write_b128 v2, {R(acc2(dt,tt))} offset:{LDS_F + (tt*5+dt)*1024}")
    e("s_waitcnt lgkmcnt(0)\ns_barrier")
    stamp(e, 6, 14)
    e("s_branch L_END")
    e("L_SSM_P2:")
    if not opt.wearly: ssm_w_setup(e, 'P')
    e("L_SSM_P2b:")
    ld_w, ld_a, queue = gen_p2_stream(e, 'S', 10)
    stamp(e, 6, 14)
    e(f"s_cmp_eq_u32 s{sWAVE}, 0\ns_cbranch_scc0 L_SSM_lw")
    spoll_tiles(e, 'ST', 'S')
    e('s_waitcnt vmcnt(0)')
    lds_signal(e, 12, 10)
    e("s_branch L_SSM_go\nL_SSM_lw:\ns_waitcnt vmcnt(0)")
    lds_wait(e, 'S', 12, 10)
    e("L_SSM_go:")
    if opt.sshelp:
        e(f"s_cmp_eq_u32 s{sISU}, 1\ns_cbranch_scc0 L_SSM_nohw")
        lds_wait_ge(e, 'H', 20, 4, 10)
        e("L_SSM_nohw:")
    stamp(e, 7, 14)
    if opt.l2pf2: l2_prefetch(e, 85, 10 * 32, 4 if opt.map2 == 1 else 8, f"s{sCB}", 3 if opt.map2 == 1 else 7, 2 if opt.map2 == 1 else 1)
    del queue[:]
    emit_stream(e, 10, ld_w, ld_a, queue, NLS, 3)
    if opt.ststamps:
        e(f"""s_memtime s[100:101]
s_waitcnt lgkmcnt(0)
v_writelane_b32 v250, s100, 15
s_lshl_b32 s98, s2, 3
s_add_u32 s98, s98, s{sWAVE}
s_lshl_b32 s98, s98, 6
s_add_u32 s98, s98, {STAMP_OFF + 0x40000}
v_lshlrev_b32 v251, 2, v0
s_mov_b64 exec, 0xffff
buffer_store_dword v250, v251, s[{SWS}:{SWS+3}], s98 offen
s_mov_b64 exec, -1""")
    stamp(e, 8, 14)
    dbgmax(e, 6)
    XR, DK, B2, GG = 96, 106, 116, 126
    e(f"""s_lshr_b32 s80, s{sWAVE}, 1
s_lshl_b32 s80, s80, 5
s_and_b32 s81, s{sWAVE}, 1
s_lshl_b32 s81, s81, 3
s_add_u32 s80, s80, s81
s_lshl_b32 s81, s{sRB2}, 6
s_add_u32 s80, s80, s81
v_bfe_u32 v2, v0, 3, 1
v_lshlrev_b32 v2, 4, v2
v_and_b32 v3, 7, v0
v_add_u32 v2, v2, v3
v_add_u32 v2, s80, v2
v_lshrrev_b32 v3, 4, v0
v_lshlrev_b32 v4, 3, v3
s_mul_i32 s81, s{sCB}, 160
v_mul_u32_u24 v5, 1280, v2
v_add_u32 v5, v5, v4
v_lshlrev_b32 v6, 3, v2""")
    srd(e, STA, P_AX, 2621440)
    for dt in range(5):
        e(f"buffer_load_dwordx2 v[{XR+2*dt}:{XR+2*dt+1}], v5, s[{STA}:{STA+3}], s81 offen offset:{32*dt}")
    srd(e, STB, P_DSK, 1280)
    for dt in range(5):
        e(f"buffer_load_dwordx2 v[{DK+2*dt}:{DK+2*dt+1}], v4, s[{STB}:{STB+3}], s81 offen offset:{32*dt}")
    srd(e, STA, P_B2, 1280)
    for dt in range(5):
        e(f"buffer_load_dwordx2 v[{B2+2*dt}:{B2+2*dt+1}], v4, s[{STA}:{STA+3}], s81 offen offset:{32*dt}")
    e(f"s_mov_b32 s82, {G_OFF}")
    e(f"buffer_load_dwordx2 v[{GG}:{GG+1}], v6, s[{SWS}:{SWS+3}], s82 offen sc1")
    e(f"""s_mul_i32 s83, s{sWAVE}, 15360
s_add_u32 s83, s83, {LDS_Y}
v_add_u32 v7, s83, v1""")
    OWN = 130
    for w in range(4):
        e(f"s_cmp_eq_u32 s{sWAVE}, {w}\ns_cbranch_scc0 L_YW_{w}")
        sl = 0
        for tt in range(4):
            if tt == w: continue
            for dt in range(5):
                e(f"ds_write_b128 v7, {R(acc2(dt,tt))} offset:{sl * 5120 + dt * 1024}")
            sl += 1
        for dt in range(5):
            for r in range(4):
                e(f"v_mov_b32 v{OWN+4*dt+r}, v{acc2(dt,w)+r}")
        e(f"s_branch L_YW_done\nL_YW_{w}:")
    e("L_YW_done:")
    for k in range(3):
        e(f"""s_cmp_ge_u32 {k}, s{sWAVE}
s_cselect_b32 s80, {k+1}, {k}
s_cselect_b32 s81, 0, 1
s_sub_u32 s81, s{sWAVE}, s81
s_mul_i32 s80, s80, 15360
s_mul_i32 s81, s81, 5120
s_add_u32 s80, s80, s81
s_add_u32 s80, s80, {LDS_Y}
v_add_u32 v{8+k}, s80, v1""")
    e(f"""s_mul_i32 s80, s{sWAVE}, 5120
v_add_u32 v11, s80, v1
v_add_u32 v12, 40960, v11""")
    e("s_waitcnt lgkmcnt(0)\ns_barrier")
    stamp(e, 9, 14)
    YR, FR = 16, 150
    for k in range(3):
        for dt in range(5):
            e(f"ds_read_b128 {R(YR+20*k+4*dt)}, v{8+k} offset:{dt*1024}")
    for w2 in range(4):
        for dt in range(5):
            e(f"ds_read_b128 {R(FR+20*w2+4*dt)}, v{11+(w2>>1)} offset:{(w2&1)*20480 + dt*1024}")
    e(f"""s_waitcnt vmcnt(0)
v_sub_f32 v13, 1.0, v{GG}
v_cvt_pk_bf16_f32 v13, v13, v13
v_and_b32 v13, 0xffff0000, v13""")
    if opt.check_g:
        e(f"""v_cmp_ne_u32 vcc, s{sNONCE}, v{GG+1}
v_mov_b32 v14, 0x7fc00000
v_cndmask_b32 v{GG}, v{GG}, v14, vcc""")
    e("s_waitcnt lgkmcnt(0)")
    for k in range(3):
        for i in range(0, 20, 2):
            e(f"v_pk_add_f32 v[{OWN+i}:{OWN+i+1}], v[{OWN+i}:{OWN+i+1}], v[{YR+20*k+i}:{YR+20*k+i+1}]")
    for k in range(1, 4):
        for i in range(0, 20, 2):
            e(f"v_pk_add_f32 v[{FR+i}:{FR+i+1}], v[{FR+i}:{FR+i+1}], v[{FR+20*k+i}:{FR+20*k+i+1}]")
    srd(e, SOUT, P_OUT, 5242880)
    e(f"""v_mul_u32_u24 v5, 2560, v2
v_lshlrev_b32 v4, 4, v3
v_add_u32 v5, v5, v4
s_mul_i32 s81, s{sCB}, 320""")
    for dt in range(5):
        T = 16 + 12 * dt
        for nm, src in ((0, XR), (4, DK), (8, B2)):
            e(f"""v_lshlrev_b32 v{T+nm}, 16, v{src+2*dt}
v_and_b32 v{T+nm+1}, 0xffff0000, v{src+2*dt}
v_lshlrev_b32 v{T+nm+2}, 16, v{src+2*dt+1}
v_and_b32 v{T+nm+3}, 0xffff0000, v{src+2*dt+1}""")
        y, f = OWN + 4 * dt, FR + 4 * dt
        for r in range(0, 4, 2):
            e(f"v_pk_fma_f32 v[{y+r}:{y+r+1}], v[{T+r}:{T+r+1}], v[{T+4+r}:{T+4+r+1}], v[{y+r}:{y+r+1}]")
            e(f"v_pk_add_f32 v[{f+r}:{f+r+1}], v[{f+r}:{f+r+1}], v[{T+8+r}:{T+8+r+1}]")
        o_ = 232 + 4 * dt if dt < 5 else 0
        for r in range(4):
            e(f"v_mul_f32 v{T+r}, v{GG}, v{y+r}")
        for r in range(4):
            e(f"v_fma_f32 v{o_+r}, v13, v{f+r}, v{T+r}")
        e(f"buffer_store_dwordx4 {R(o_)}, v5, s[{SOUT}:{SOUT+3}], s81 offen offset:{dt*64} {['', 'sc1', 'nt', 'sc0 sc1'][opt.osc]}")
    stamp(e, 10, 14)
    if opt.dbgtime: e("s_waitcnt vmcnt(0)")
    dbgmax(e, 7)
    e("s_branch L_END")

def gen_gate_loads(e, W=84):
    srd(e, STA, P_GW, 1280)
    srd(e, STB, P_AX, 2621440)
    e(f"""v_lshlrev_b32 v12, 4, v0
v_lshlrev_b32 v13, 2, v0
s_lshl_b32 s80, s2, 3
s_lshl_b32 s81, s{W}, 1
s_add_u32 s80, s80, s81
s_mul_i32 s81, s80, 1280
s_add_u32 s82, s81, 1280
buffer_load_dwordx4 v[16:19], v12, s[{STA}:{STA+3}], 0 offen
buffer_load_dword v20, v13, s[{STA}:{STA+3}], 0 offen offset:1024
buffer_load_dwordx4 v[22:25], v12, s[{STB}:{STB+3}], s81 offen
buffer_load_dword v26, v13, s[{STB}:{STB+3}], s81 offen offset:1024
buffer_load_dwordx4 v[28:31], v12, s[{STB}:{STB+3}], s82 offen
buffer_load_dword v32, v13, s[{STB}:{STB+3}], s82 offen offset:1024""")

def gen_gate_compute(e):
    e("v_mov_b32 v40, 0\nv_mov_b32 v41, 0")
    for m in range(5):
        e(f"""v_lshlrev_b32 v36, 16, v{16+m}
v_and_b32 v37, 0xffff0000, v{16+m}""")
        for row in range(2):
            x = 22 + 6 * row + m
            e(f"""v_lshlrev_b32 v38, 16, v{x}
v_and_b32 v39, 0xffff0000, v{x}
v_mul_f32 v38, v38, v36
v_mul_f32 v39, v39, v37
v_cvt_pk_bf16_f32 v38, v38, v39
v_lshlrev_b32 v39, 16, v38
v_and_b32 v38, 0xffff0000, v38
v_add_f32 v{40+row}, v{40+row}, v39
v_add_f32 v{40+row}, v{40+row}, v38""")
    for sh in ("row_shr:1", "row_shr:2", "row_shr:4", "row_shr:8", "row_bcast:15 row_mask:0xa", "row_bcast:31 row_mask:0xc"):
        for row in range(2):
            e(f"v_add_f32 v{40+row}, v{40+row}, v{40+row} {sh}")
    e("""v_readlane_b32 s80, v40, 63
v_readlane_b32 s81, v41, 63""")
    e(f"""v_mov_b32 v42, s80
v_mov_b32 v43, s81
v_cmp_eq_u32 vcc, 1, v0
v_cndmask_b32 v42, v42, v43, vcc
v_cvt_pk_bf16_f32 v42, v42, v42
v_and_b32 v42, 0xffff0000, v42
v_mul_f32 v42, 0xbfb8aa3b, v42
v_exp_f32 v42, v42
v_add_f32 v42, 1.0, v42
v_rcp_f32 v42, v42
v_cvt_pk_bf16_f32 v42, v42, v42
v_and_b32 v42, 0xffff0000, v42
v_mov_b32 v43, s{sNONCE}
v_lshlrev_b32 v44, 3, v0
s_lshl_b32 s80, s2, 3
s_lshl_b32 s81, s84, 1
s_add_u32 s80, s80, s81
s_lshl_b32 s80, s80, 3
s_add_u32 s80, s80, {G_OFF}
s_mov_b64 exec, 3
buffer_store_dwordx2 v[42:43], v44, s[{SWS}:{SWS+3}], s80 offen sc0 sc1
s_mov_b64 exec, -1""")

def generate(path):
    e = Emitter()
    hdr = open("gated_mix__ssm_conv_s5__dense_activation_squared_relu__prompt.s.ref").read().split("\n")
    head = [l for l in hdr if l.startswith(";") and "@launch" not in l and "Override" not in l and "grid=ceil" not in l]
    txt = "\n".join(head) + f"\n; @launch grid=(256,1,1) block=(512,1,1) lds={LDS_SIZE}\n"
    txt += '.amdgcn_target "amdgcn-amd-amdhsa--gfx950"\n.text\n'
    txt += f".globl {NAME}\n.p2align 8\n.type {NAME},@function\n{NAME}:\n"
    gen_entry(e)
    gen_consumer(e)
    gen_loader(e)
    gen_p2(e)
    e("L_END:\ns_endpgm\nL_CODE_END:")
    txt += e.text()
    txt += f""".section .rodata,"a"
.p2align 6
.amdhsa_kernel {NAME}
  .amdhsa_next_free_vgpr 256
  .amdhsa_next_free_sgpr 102
  .amdhsa_accum_offset 256
  .amdhsa_group_segment_fixed_size 0
  .amdhsa_kernarg_size 144
  .amdhsa_user_sgpr_count 2
  .amdhsa_user_sgpr_kernarg_segment_ptr 1
  .amdhsa_system_sgpr_workgroup_id_x 1
.end_amdhsa_kernel
"""
    open(path, "w").write(txt)
    print("pads:", e.npad, "lines:", len(e.out))

if __name__ == "__main__":
    opt.check_g = True
    opt.nowait = 0
    opt.nodma = 0
    opt.itstamps = 0
    opt.l2pf = 0
    opt.gw2 = 0
    opt.thr = 0
    opt.fswn = 5
    opt.osc = 0
    opt.nosc1 = 0
    opt.nw = 5
    opt.na = 3
    opt.fsw = 2
    opt.gall = 0
    opt.udelay = 0
    opt.dbgtime = 0
    opt.sorder = 1
    opt.sshelp = 1
    opt.ststamps = 0
    opt.rot = 0
    opt.sprio = 0
    opt.eprio = 3
    opt.wearly = 0
    opt.ldslate = 0
    opt.prio = 1
    opt.cpf = 1
    opt.wdelay = 0
    opt.noprep = 0
    opt.nost = 0
    opt.map2 = 1
    opt.gw = 0
    opt.gloop = 1
    opt.ssleep = 8
    opt.l2pf2 = 0
    for a in sys.argv[2:]:
        k, v = a.split("=")
        setattr(opt, k, int(v))
    if opt.nw != 5 or opt.na != 3: set_nw(opt.nw, opt.na)
    generate(sys.argv[1])
```

```python
import sys
from emit import Emitter

NAME = "gated_mix__ssm_conv_s5__dense_activation_squared_relu__prompt_kernel"

ACT_OFF   = 0
WF_OFF    = 0xC00000
G_OFF     = 0x1000000
AG_OFF    = 0x1010000
WFLAG_OFF = 0x1040000
TFLAG_OFF = 0x1050000
STAMP_OFF = 0x1100000
SLOT = 40960
LDS_PREP = 122880
LDS_TAB  = 143360
LDS_LX   = LDS_TAB + 8448
LDS_FLAG = LDS_LX + 768
LDS_DUMMY = LDS_FLAG + 64
LDS_F    = 0
LDS_Y    = 81920
LDS_SIZE = 163840

SX, SWA, SWB, SWS, STA, STB, SOUT = 4, 8, 12, 16, 20, 24, 28
P_AX, P_LRE, P_LIM, P_BRE, P_BIM, P_CRE, P_CIM, P_LDT, P_DSK, P_BX, P_W1, P_B1, P_W2, P_B2, P_GW, P_OUT, P_DBG, P_WS = [36 + 2 * i for i in range(18)]
sWAVE, sRB, sCOL, sJ, sRB2, sCB, sNONCE, sISU = 72, 73, 74, 75, 76, 77, 78, 79
SG, sGo, sGinc = 28, 83, 85

class Opt:
    phase2 = True
    stamps = False
    spin_limit = 200000
opt = Opt()

def srd(e, s, ptr, size):
    e(f"s_mov_b32 s{s}, s{ptr}\ns_mov_b32 s{s+1}, s{ptr+1}\ns_mov_b32 s{s+2}, {size}\ns_mov_b32 s{s+3}, 0x20000")

def R(b, n=4):
    return f"v[{b}:{b+n-1}]"

_stamp_id = [0]
def stamp(e, idx, tmpv=14):
    if not opt.stamps: return
    e(f"""s_memrealtime s[100:101]
s_lshl_b32 s98, s2, 3
s_add_u32 s98, s98, s{sWAVE}
s_lshl_b32 s98, s98, 6
s_add_u32 s98, s98, {STAMP_OFF + 4*idx}
s_waitcnt lgkmcnt(0)
v_mov_b32 v{tmpv}, s100
v_mov_b32 v{tmpv+1}, 0
s_mov_b64 s[96:97], exec
s_mov_b64 exec, 1
buffer_store_dword v{tmpv}, v{tmpv+1}, s[{SWS}:{SWS+3}], s98 offen
s_mov_b64 exec, s[96:97]""")

def stamp_clk(e, idx, tmpv=14):
    if not opt.stamps: return
    e(f"""s_memtime s[100:101]
s_lshl_b32 s98, s2, 3
s_add_u32 s98, s98, s{sWAVE}
s_lshl_b32 s98, s98, 6
s_add_u32 s98, s98, {STAMP_OFF + 4*idx}
s_waitcnt lgkmcnt(0)
v_mov_b32 v{tmpv}, s100
v_mov_b32 v{tmpv+1}, 0
s_mov_b64 s[96:97], exec
s_mov_b64 exec, 1
buffer_store_dword v{tmpv}, v{tmpv+1}, s[{SWS}:{SWS+3}], s98 offen
s_mov_b64 exec, s[96:97]""")

class Cap:
    def __init__(self): self.l = []
    def __call__(self, s):
        for x in s.split("\n"):
            if x.strip(): self.l.append(x.strip())

def merge(e, main_groups, aux):
    n = len(main_groups); k = 0
    per = -(-len(aux) // n) if n else 0
    for g in main_groups:
        for x in g: e(x)
        for x in aux[k:k + per]: e(x)
        k += per
    for x in aux[k:]: e(x)

def dbgmax(e, idx, neg=False, tv=14):
    if not opt.dbgtime: return
    e(f"""s_memrealtime s[100:101]
s_mov_b32 s96, s{P_DBG}
s_mov_b32 s97, s{P_DBG+1}
s_mov_b32 s98, 256
s_mov_b32 s99, 0x20000
s_waitcnt lgkmcnt(0)""")
    if neg: e("s_not_b32 s100, s100")
    e(f"""v_mov_b32 v{tv}, s100
v_mov_b32 v{tv+1}, 0
s_mov_b64 exec, 1
buffer_atomic_umax v{tv}, v{tv+1}, s[96:99], 0 offen offset:{4*idx}
s_mov_b64 exec, -1""")

def interleave(e, A, B, lead=1):
    bi = 0
    for i, a in enumerate(A):
        e(a)
        if i >= lead - 1 and bi < len(B):
            e(B[bi]); bi += 1
    while bi < len(B):
        e(B[bi]); bi += 1

def spin_nonce(e, tag, vtmp):
    srd(e, STA, P_DBG, 256)
    e(f"""v_mov_b32 v{vtmp+1}, 0
s_mov_b32 s80, 0
L_nonce_{tag}:
buffer_load_dword v{vtmp}, v{vtmp+1}, s[{STA}:{STA+3}], 0 offen sc1
s_add_u32 s80, s80, 1
s_waitcnt vmcnt(0)
v_readfirstlane_b32 s{sNONCE}, v{vtmp}
s_cmp_ge_u32 s80, {opt.spin_limit}
s_cbranch_scc1 L_nonce_done_{tag}
s_cmp_eq_u32 s{sNONCE}, 0
s_cbranch_scc0 L_nonce_done_{tag}
s_sleep 1
s_branch L_nonce_{tag}
L_nonce_done_{tag}:""")

def poll_flags(e, tag, vaddr, vtmp, soff_sgpr, nlanes_mask_lo, mask_hi=0, sleep=1):
    e(f"""s_mov_b32 s80, 0
s_mov_b32 s82, {nlanes_mask_lo}
s_mov_b32 s83, {mask_hi}
L_poll_{tag}:
buffer_load_dword v{vtmp}, v{vaddr}, s[{SWS}:{SWS+3}], s{soff_sgpr} offen sc1
s_add_u32 s80, s80, 1
s_waitcnt vmcnt(0)
v_cmp_ne_u32 vcc, s{sNONCE}, v{vtmp}
s_cmp_ge_u32 s80, {opt.spin_limit}
s_cbranch_scc1 L_poll_done_{tag}
s_and_b64 vcc, vcc, s[82:83]
s_cbranch_scc0 L_poll_done_{tag}
s_sleep {sleep}
s_branch L_poll_{tag}
L_poll_done_{tag}:""")

def gen_entry(e):
    if opt.map2 == 1:
        MAP2 = f"""s_lshr_b32 s82, s80, 1
s_lshl_b32 s82, s82, 3
s_lshr_b32 s83, s81, 2
s_add_u32 s{sRB2}, s82, s83
s_and_b32 s82, s80, 1
s_lshl_b32 s82, s82, 2
s_and_b32 s83, s81, 3
s_add_u32 s{sCB}, s82, s83"""
    else:
        MAP2 = f"""s_lshl_b32 s82, s80, 2
s_and_b32 s83, s81, 3
s_add_u32 s{sRB2}, s82, s83
s_lshr_b32 s{sCB}, s81, 2"""
    e(f"""s_cmp_ge_u32 s2, 256
s_cbranch_scc1 L_END
s_load_dwordx16 s[36:51], s[0:1], 0
s_load_dwordx16 s[52:67], s[0:1], 64
s_load_dwordx4 s[68:71], s[0:1], 128
v_lshrrev_b32 v1, 6, v0
v_and_b32 v0, 63, v0
v_readfirstlane_b32 s{sWAVE}, v1
s_and_b32 s80, s2, 7
s_lshr_b32 s81, s2, 3
s_and_b32 s82, s80, 1
s_lshl_b32 s82, s82, 3
s_and_b32 s83, s81, 7
s_add_u32 s{sRB}, s82, s83
s_lshr_b32 s82, s80, 1
s_lshl_b32 s82, s82, 2
s_lshr_b32 s83, s81, 3
s_add_u32 s{sCOL}, s82, s83
{MAP2}
s_sub_u32 s82, s{sCOL}, 9
s_cmp_ge_u32 s{sCOL}, 9
s_cselect_b32 s{sISU}, 1, 0
s_cselect_b32 s{sJ}, s82, s{sCOL}
s_waitcnt lgkmcnt(0)""")
    srd(e, SWS, P_WS, 0x10000000)
    srd(e, SX, P_AX, 2621440)
    dbgmax(e, 1, neg=True)
    stamp(e, 12, 14)
    e(f"""s_cmp_eq_u32 s2, 0
s_cbranch_scc0 L_no_nonce
s_cmp_eq_u32 s{sWAVE}, 4
s_cbranch_scc0 L_no_nonce
s_memrealtime s[80:81]""")
    srd(e, STA, P_DBG, 256)
    e(f"""s_waitcnt lgkmcnt(0)
s_or_b32 s80, s80, 1
v_mov_b32 v2, s80
v_mov_b32 v3, 0
s_mov_b64 exec, 1
buffer_store_dword v2, v3, s[{STA}:{STA+3}], 0 offen sc0 sc1
s_mov_b64 exec, -1
L_no_nonce:
s_cmp_ge_u32 s{sWAVE}, 4
s_cbranch_scc1 L_LOADER""")

def cmul(e, d, a, b, t):
    e(f"""v_mul_f32 v{d}, v{a}, v{b}
v_mul_f32 v{d+1}, v{a}, v{b+1}
v_fma_f32 v{d}, -v{a+1}, v{b+1}, v{d}
v_fma_f32 v{d+1}, v{a+1}, v{b}, v{d+1}""")

def csq(e, d, a):
    cmul(e, d, a, a, None)

def cfma(e, d, a, b, c):
    e(f"""v_fma_f32 v{d}, v{a}, v{b}, v{c}
v_fma_f32 v{d+1}, v{a}, v{b+1}, v{c+1}
v_fma_f32 v{d}, -v{a+1}, v{b+1}, v{d}
v_fma_f32 v{d+1}, v{a+1}, v{b}, v{d+1}""")

def gen_loader(e):
    e("L_LOADER:")
    vXo = 2; vWo = 4
    sXo = 86
    sWo = 90
    sLX, sLW, sWinc = 32, 33, 34
    def issue_x(s):
        slot = (s % 3) * SLOT
        for m in range(4):
            e(f"s_add_u32 m0, s{sLX}, {slot + m*1024}")
            e(f"buffer_load_dwordx4 v{vXo}, s[{SX}:{SX+3}], s{sXo+m} offen lds")
            e(f"s_add_u32 s{sXo+m}, s{sXo+m}, 128")
    def issue_w(s):
        slot = (s % 3) * SLOT
        for m in range(6):
            S = SWB if (m >> 1) == 1 else SWA
            e(f"s_add_u32 m0, s{sLW}, {slot + m*1024}")
            e(f"buffer_load_dwordx4 v{vWo+m}, s[{S}:{S+3}], s{sWo+m} offen lds")
            e(f"s_add_u32 s{sWo+m}, s{sWo+m}, s{sWinc}")
    def issue(s):
        issue_x(s); issue_w(s)
    e(f"""s_sub_u32 s84, s{sWAVE}, 4
v_lshrrev_b32 v10, 3, v0
v_and_b32 v11, 7, v0
v_xor_b32 v11, v11, v10
v_lshlrev_b32 v11, 4, v11
s_lshl_b32 s{sLX}, s84, 12
s_mul_i32 s{sLW}, s84, 6144
s_add_u32 s{sLW}, s{sLW}, 16384
s_lshl_b32 s85, s{sRB}, 7""")
    e(f"""s_mul_i32 s80, s{sJ}, 96
s_lshl_b32 s81, s84, 5
s_add_u32 s80, s80, s81
v_and_b32 v12, 31, v0
v_add_u32 v12, s80, v12
v_min_u32 v12, 639, v12
v_lshlrev_b32 v12, 1, v12""")
    srd(e, STA, P_LRE, 1280)
    e(f"buffer_load_ushort v20, v12, s[{STA}:{STA+3}], 0 offen")
    srd(e, STB, P_LIM, 1280)
    e(f"buffer_load_ushort v21, v12, s[{STB}:{STB+3}], 0 offen")
    srd(e, STA, P_LDT, 1280)
    e(f"buffer_load_ushort v22, v12, s[{STA}:{STA+3}], 0 offen")
    e(f"""s_cmp_eq_u32 s{sISU}, 1
s_cbranch_scc1 L_LD_U""")
    e(f"""v_mul_u32_u24 v{vXo}, 1280, v10
v_add_u32 v{vXo}, v{vXo}, v11
s_lshl_b32 s80, s84, 5
s_add_u32 s80, s80, s85""")
    for m in range(4):
        e(f"s_add_u32 s81, s80, {16*(m&1) + 8*(m>>1)}\ns_mul_i32 s{sXo+m}, s81, 1280")
    issue_x(0)
    srd(e, SWA, P_W1, 2211840)
    srd(e, SWB, P_W1, 2211840)
    e(f"""s_mul_i32 s80, s84, {16*3456}
s_mul_i32 s81, s{sJ}, 384
s_add_u32 s80, s80, s81""")
    for m in range(6):
        e(f"s_mov_b32 s{sWo+m}, s80")
    e(f"s_mov_b32 s{sWinc}, {64*3456}")
    for m in range(6):
        e(f"""v_add_u32 v12, {64*m}, v0
v_mul_u32_u24 v13, 2731, v12
v_lshrrev_b32 v13, 16, v13
v_mul_u32_u24 v14, 24, v13
v_sub_u32 v14, v12, v14
v_bfe_u32 v15, v13, 1, 1
v_lshlrev_b32 v15, 1, v15
v_bfe_u32 v16, v13, 3, 1
v_lshlrev_b32 v16, 2, v16
v_or_b32 v15, v15, v16
v_xor_b32 v14, v14, v15
v_lshlrev_b32 v14, 4, v14
v_mul_u32_u24 v13, 3456, v13
v_add_u32 v{vWo+m}, v13, v14""")
    e("s_branch L_LD_GO")
    e("L_LD_U:")
    e(f"""v_lshrrev_b32 v12, 5, v0
v_lshlrev_b32 v12, 4, v12
v_bfe_u32 v13, v0, 3, 1
v_lshlrev_b32 v13, 3, v13
v_add_u32 v12, v12, v13
v_bfe_u32 v13, v0, 4, 1
v_add_u32 v12, v12, v13
v_mul_u32_u24 v{vXo}, 1280, v12
v_add_u32 v{vXo}, v{vXo}, v11
s_lshr_b32 s80, s84, 1
s_lshl_b32 s80, s80, 6
s_and_b32 s81, s84, 1
s_lshl_b32 s82, s81, 2
s_add_u32 s80, s80, s82
s_add_u32 s80, s80, s85""")
    for m in range(4):
        e(f"s_add_u32 s82, s80, {32*(m&1) + 2*(m>>1)}\ns_mul_i32 s{sXo+m}, s82, 1280")
    issue_x(0)
    e(f"""v_mul_u32_u24 v12, 1280, v10
v_add_u32 v12, v12, v11""")
    for m in range(6):
        e(f"v_mov_b32 v{vWo+m}, v12")
    e(f"""s_mul_i32 s80, s{sJ}, 96
s_lshr_b32 s82, s84, 1
s_mul_i32 s82, s82, 48
s_add_u32 s80, s80, s82
s_mul_i32 s83, s81, 3""")
    for m in range(6):
        e(f"""s_add_u32 s82, s83, {m>>1}
s_lshr_b32 s82, s82, 1
s_lshl_b32 s82, s82, 4
s_add_u32 s82, s82, s80
s_add_u32 s82, s82, {8*(m&1)}
s_min_u32 s82, s82, 632
s_mul_i32 s{sWo+m}, s82, 1280""")
    e(f"s_mov_b32 s{sWinc}, 128")
    e(f"""s_cmp_eq_u32 s81, 0
s_cselect_b32 s{SWA}, s{P_BRE}, s{P_BIM}
s_cselect_b32 s{SWA+1}, s{P_BRE+1}, s{P_BIM+1}
s_cselect_b32 s{SWB}, s{P_BIM}, s{P_BRE}
s_cselect_b32 s{SWB+1}, s{P_BIM+1}, s{P_BRE+1}
s_mov_b32 s{SWA+2}, 819200
s_mov_b32 s{SWA+3}, 0x20000
s_mov_b32 s{SWB+2}, 819200
s_mov_b32 s{SWB+3}, 0x20000""")
    e("L_LD_GO:")
    def groups(s_):
        slot = (s_ % 3) * SLOT
        G = []
        for m in range(4):
            G.append([f"s_add_u32 m0, s{sLX}, {slot + m*1024}",
                      f"buffer_load_dwordx4 v{vXo}, s[{SX}:{SX+3}], s{sXo+m} offen lds",
                      f"s_add_u32 s{sXo+m}, s{sXo+m}, 128"])
        for m in range(6):
            S = SWB if (m >> 1) == 1 else SWA
            G.append([f"s_add_u32 m0, s{sLW}, {slot + m*1024}",
                      f"buffer_load_dwordx4 v{vWo+m}, s[{S}:{S+3}], s{sWo+m} offen lds",
                      f"s_add_u32 s{sWo+m}, s{sWo+m}, s{sWinc}"])
        return G
    def gath():
        if opt.gall:
            e(f"buffer_load_dword v18, v17, s[{SWS}:{SWS+3}], 0 offen")
        else:
            e(f"buffer_load_dword v18, v17, s[{SG}:{SG+3}], s{sGo} offen\ns_add_u32 s{sGo}, s{sGo}, s{sGinc}")
    issue_w(0)
    if opt.gall: e("v_mov_b32 v17, 0x10000000")
    else: gen_gather_setup(e, 84, 'L', 3)
    issue(1)
    e("s_waitcnt vmcnt(10)\ns_barrier")
    issue(2); gath()
    e("s_waitcnt vmcnt(11)\ns_barrier")
    c = Cap(); gen_lambda_table(c, 0)
    merge(e, groups(3), c.l); gath()
    e("s_waitcnt vmcnt(12)\ns_barrier")
    e(f"""v_and_b32 v62, 31, v0
s_lshl_b32 s80, s84, 5
v_add_u32 v62, s80, v62
v_lshlrev_b32 v62, 3, v62
s_mov_b32 s81, {LDS_TAB}
s_cmp_eq_u32 s84, 3
s_cselect_b32 s80, {LDS_DUMMY - 768}, s81
v_add_u32 v62, s80, v62""")
    c = Cap(); gen_lambda_table(c, 1)
    merge(e, groups(4), c.l); gath()
    for it, (st_, g_) in enumerate(((5, 1), (6, 1), (7, 1), (8, 1))):
        e("s_waitcnt vmcnt(12)\ns_barrier")
        issue(st_)
        if g_: gath()
        if it == 1:
            srd(e, STA, P_DBG, 256)
            e(f"v_mov_b32 v12, 0\nbuffer_load_dword v99, v12, s[{STA}:{STA+3}], 0 offen")
    e("s_waitcnt vmcnt(12)\ns_barrier")
    e(f"""v_readfirstlane_b32 s{sNONCE}, v99
s_cmp_eq_u32 s{sNONCE}, 0
s_cbranch_scc0 L_LD_nonce_ok""")
    spin_nonce(e, 'L', 10)
    e("L_LD_nonce_ok:")
    e(f"""s_mul_i32 s85, s84, 14
s_cmp_eq_u32 s84, 3
s_cselect_b32 s80, 1, 0
s_sub_u32 s85, s85, s80
v_lshlrev_b32 v12, 2, v0
s_lshl_b32 s81, s{sCB}, 9
s_lshl_b32 s82, s85, 2
s_add_u32 s81, s81, s82
s_add_u32 s35, s81, {WFLAG_OFF}
s_mul_i32 s80, s84, 10
s_add_u32 s80, s80, {54 - 16}
s_sub_u32 s80, s80, s85
s_lshl_b32 s80, s80, 2
v_add_u32 v14, s80, v12
v_cmp_le_u32 vcc, 16, v0
v_cndmask_b32 v12, v12, v14, vcc
v_lshlrev_b32 v1, 4, v0
buffer_load_dword v13, v12, s[{SWS}:{SWS+3}], s35 offen sc1""")
    issue(9)
    e("s_waitcnt vmcnt(10)\ns_barrier")
    e(f"""s_mov_b32 s86, s84
s_mul_i32 s87, s86, 20480
s_mul_i32 s84, s{sCB}, 94
s_add_u32 s84, s84, s85
s_mul_i32 s84, s84, 5120
s_add_u32 s84, s84, {WF_OFF}
s_cmp_ge_u32 s86, 2
s_cselect_b32 s89, 13, 14""")
    rot_setup(e, 89, False)
    ld_w, ld_a, queue = gen_p2_stream(e, 'x', 14)
    e(f"""v_cmp_ne_u32 vcc, s{sNONCE}, v13
s_nop 1
s_and_b32 s80, vcc_lo, 0x03ff3fff
s_cbranch_scc1 L_LD_wlate""")
    if opt.gw2:
        w_gathers(e)
    if opt.gw2 != 2:
        ld_w(0); ld_w(1)
    e(f"s_waitcnt vmcnt({(0 if opt.gw2 == 2 else 10) + (3 if opt.gw2 else 0)})\ns_barrier")
    for s_ in range(0 if opt.gw2 == 2 else 2, NW): ld_w(s_)
    e("s_branch L_LD_wdone\nL_LD_wlate:\ns_waitcnt vmcnt(0)\ns_barrier")
    poll_flags(e, 'FW', 12, 13, 35, 0x03ff3fff)
    for s_ in range(NW): ld_w(s_)
    e("L_LD_wdone:")
    stamp(e, 1, 14)
    gen_gate_loads(e, 86)
    lds_wait_ge(e, 'R', 24, 4, 10)
    if opt.wdelay or opt.udelay:
        if not opt.udelay: e(f"s_cmp_eq_u32 s{sISU}, 1\ns_cbranch_scc1 L_LD_nodelay")
        if not opt.wdelay: e(f"s_cmp_eq_u32 s{sISU}, 0\ns_cbranch_scc1 L_LD_nodelay")
        lds_wait_ge(e, 'W', 16, 4, 10)
        e("L_LD_nodelay:")
    stamp(e, 7, 14)
    w_lds(e, NLF, 87, throttle=('A' if opt.thr >= 0 else None))
    lds_count(e, 28, 10)
    if opt.sshelp:
        e(f"s_cmp_eq_u32 s{sISU}, 1\ns_cbranch_scc0 L_NOHELP")
        e(f"""s_mul_i32 s80, s86, 10
s_add_u32 s80, s80, {54 + NW}
s_mul_i32 s81, s{sCB}, 94
s_add_u32 s80, s80, s81
s_mul_i32 s80, s80, 5120
s_add_u32 s80, s80, {WF_OFF}
s_mul_i32 s81, s86, 15360
s_add_u32 s81, s81, {LDS_Y}""")
        for i in range(NLS):
            if opt.thr >= 0: e(f"s_waitcnt vmcnt({opt.thr})")
            for dt in range(5):
                e(f"""s_add_u32 m0, s81, {i*5120 + dt*1024}
buffer_load_dwordx4 v1, s[{SWS}:{SWS+3}], s80 offen sc1 lds
s_add_u32 s80, s80, 1024""")
        e("L_NOHELP:")
    stamp(e, 2, 14)

NLF, NLS = 4, 3
def w_prefetch(e, nsteps, NL, lds_base_sgpr, do_lds=True, rng=None):
    nsh = 8 if opt.map2 == 1 else 4
    per = -(-nsteps * 40 // nsh)
    if opt.gw: l2_prefetch(e, 84, nsteps * 40, nsh, f"s{sRB2}", nsh - 1, -(-per // 64))
    ld_w, ld_a, queue = gen_p2_stream(e, 'x', nsteps)
    for s_ in (range(NW) if rng is None else rng): ld_w(s_)
    if do_lds: w_lds(e, NL, lds_base_sgpr)

def w_gathers(e):
    nsh = 8 if opt.map2 == 1 else 4
    l2_prefetch(e, 84, 14 * 40, nsh, f"s{sRB2}", nsh - 1, 2 if nsh == 8 else 2)
    e(f"""s_mul_i32 s88, s86, 10
s_add_u32 s88, s88, 54
s_mul_i32 s81, s{sCB}, 94
s_add_u32 s88, s88, s81
s_mul_i32 s88, s88, 5120
s_add_u32 s88, s88, {WF_OFF}""")
    l2_prefetch(e, 88, 10 * 40, nsh, f"s{sRB2}", nsh - 1, 1)

def w_lds(e, NL, lds_base_sgpr, queue=None, throttle=None):
    for i in range(NL):
        if throttle is not None:
            e(f"s_cmp_eq_u32 s{sISU}, 1\ns_cbranch_scc0 L_thr_{throttle}{i}\ns_waitcnt vmcnt({opt.thr})\nL_thr_{throttle}{i}:")
        for dt in range(5):
            e(f"""s_add_u32 m0, s{lds_base_sgpr}, {i*5120 + dt*1024}
buffer_load_dwordx4 v1, s[{SWS}:{SWS+3}], s84 offen sc1 lds
s_add_u32 s84, s84, 1024""")
            if queue is not None: queue.append(('l', NW + i))
        wrap_w(e)

def ffn_w_prefetch(e):
    e(f"""s_mov_b32 s86, s84
s_mul_i32 s87, s86, 20480
s_mul_i32 s84, s{sCB}, 94
s_add_u32 s84, s84, s85
s_mul_i32 s84, s84, 5120
s_add_u32 s84, s84, {WF_OFF}
s_cmp_ge_u32 s86, 2
s_cselect_b32 s89, 13, 14""")
    rot_setup(e, 89, False)
    w_prefetch(e, 14, NLF, 87, do_lds=not opt.ldslate)
    if opt.sshelp:
        e(f"""s_cmp_eq_u32 s{sISU}, 1
s_cbranch_scc0 L_NOHELP
s_mul_i32 s80, s86, 10
s_add_u32 s80, s80, 54
s_lshl_b32 s80, s80, 2
s_lshl_b32 s81, s{sCB}, 9
s_add_u32 s80, s80, s81
s_add_u32 s88, s80, {WFLAG_OFF}
v_lshlrev_b32 v12, 2, v0""")
        poll_flags(e, 'HW', 12, 13, 88, 0x3ff)
        e(f"""s_mul_i32 s80, s86, 10
s_add_u32 s80, s80, {54 + NW}
s_mul_i32 s81, s{sCB}, 94
s_add_u32 s80, s80, s81
s_mul_i32 s80, s80, 5120
s_add_u32 s80, s80, {WF_OFF}
s_mul_i32 s81, s86, 15360
s_add_u32 s81, s81, {LDS_Y}""")
        for i in range(NLS):
            for dt in range(5):
                e(f"""s_add_u32 m0, s81, {i*5120 + dt*1024}
buffer_load_dwordx4 v1, s[{SWS}:{SWS+3}], s80 offen sc1 lds
s_add_u32 s80, s80, 1024""")
        e("L_NOHELP:")

def l2_prefetch(e, sbase, nlines, nshare, share_sgpr, share_mask, ninstr, vtmp=12, vdst=15):
    per = -(-nlines // nshare)
    e(f"""s_and_b32 s80, {share_sgpr}, {share_mask}
s_mul_i32 s80, s80, {per*128}
s_add_u32 s80, s80, s{sbase}
v_lshlrev_b32 v{vtmp}, 7, v0""")
    for i in range(ninstr):
        if i * 64 < per and per - i * 64 < 64:
            e(f"v_min_u32 v{vtmp}, {(per - i*64 - 1)*128}, v{vtmp}")
        e(f"buffer_load_dword v{vdst}, v{vtmp}, s[{SWS}:{SWS+3}], s80 offen sc1")
        if i * 64 + 64 < per: e(f"s_add_u32 s80, s80, 8192")

def gen_gather_setup(e, W=84, T='', start=1):
    e(f"""s_lshr_b32 s80, s2, 3
s_and_b32 s81, s80, 7
s_lshr_b32 s80, s80, 3
v_mov_b32 v17, 0x10000000
s_mov_b32 s{sGo}, {128*start}
s_mov_b32 s{sGinc}, 128
s_mov_b32 s{SG}, s{SX}
s_mov_b32 s{SG+1}, s{SX+1}
s_mov_b32 s{SG+2}, 2621440
s_mov_b32 s{SG+3}, 0x20000
s_cmp_eq_u32 s{W}, 0
s_cbranch_scc0 L_GS_1{T}
s_lshl_b32 s80, s80, 5
s_lshl_b32 s82, s{sRB}, 7
s_add_u32 s80, s80, s82
v_add_u32 v16, s80, v0
v_mul_u32_u24 v16, 1280, v16
v_cmp_gt_u32 vcc, 32, v0
v_cndmask_b32 v17, v17, v16, vcc
s_branch L_GS_done{T}
L_GS_1{T}:
s_cmp_ge_u32 s{W}, 3
s_cbranch_scc1 L_GS_done{T}
s_cmp_eq_u32 s{sISU}, 1
s_cbranch_scc1 L_GS_U{T}
s_cmp_eq_u32 s{W}, 1
s_cbranch_scc0 L_GS_done{T}
s_mov_b32 s{SG}, s{P_W1}
s_mov_b32 s{SG+1}, s{P_W1+1}
s_mov_b32 s{SG+2}, 2211840
s_mul_i32 s{sGo}, s{sJ}, 384
s_add_u32 s{sGo}, s{sGo}, {64*3456*start}
s_mov_b32 s{sGinc}, {64*3456}
v_mul_u32_u24 v16, 43, v0
v_lshrrev_b32 v16, 7, v16
v_mul_u32_u24 v15, 3, v16
v_sub_u32 v15, v0, v15
s_lshl_b32 s81, s81, 3
v_add_u32 v16, s81, v16
v_mul_u32_u24 v16, 3456, v16
v_lshlrev_b32 v15, 7, v15
v_add_u32 v16, v16, v15
v_cmp_gt_u32 vcc, 24, v0
v_cndmask_b32 v17, v17, v16, vcc
s_branch L_GS_done{T}
L_GS_U{T}:
s_cmp_eq_u32 s{W}, 1
s_cselect_b32 s{SG}, s{P_BRE}, s{P_BIM}
s_cselect_b32 s{SG+1}, s{P_BRE+1}, s{P_BIM+1}
s_mov_b32 s{SG+2}, 819200
s_mul_i32 s80, s{sJ}, 96
s_mul_i32 s81, s81, 12
s_add_u32 s80, s80, s81
v_add_u32 v16, s80, v0
v_min_u32 v16, 639, v16
v_mul_u32_u24 v16, 1280, v16
v_cmp_gt_u32 vcc, 12, v0
v_cndmask_b32 v17, v17, v16, vcc
L_GS_done{T}:""")
    if not opt.gloop: e("v_mov_b32 v17, 0x10000000")

def gen_unit_ids(e, W):
    e(f"""s_cmp_ge_u32 s2, 108
s_cbranch_scc1 L_UID_C
s_lshr_b32 s3, s2, 1
s_and_b32 s35, s2, 1
s_lshl_b32 s35, s35, 2
s_add_u32 s35, s35, s{W}
s_branch L_UID_done
L_UID_C:
s_sub_u32 s80, s2, 108
s_and_b32 s35, s80, 7
s_lshr_b32 s80, s80, 3
s_lshl_b32 s3, s80, 2
s_add_u32 s3, s3, s{W}
s_add_u32 s3, s3, 54
L_UID_done:""")

def gen_prep_gather(e, W=84):
    e(f"""s_cmp_ge_u32 s3, 54
s_cbranch_scc1 L_PG_C""")
    srd(e, STA, P_W2, 2211840)
    e(f"""v_mul_u32_u24 v10, 52, v0
v_lshrrev_b32 v10, 8, v10
v_mul_u32_u24 v11, 5, v10
v_sub_u32 v11, v0, v11
s_lshl_b32 s80, s{W}, 3
v_add_u32 v10, s80, v10
v_mul_u32_u24 v10, 1280, v10
v_lshlrev_b32 v11, 7, v11
v_add_u32 v10, v10, v11
v_mov_b32 v11, 0x10000000
v_cmp_gt_u32 vcc, 40, v0
v_cndmask_b32 v10, v11, v10, vcc
s_mul_i32 s80, s3, {32*1280}
s_and_b32 s81, s2, 1
s_mul_i32 s81, s81, 640
s_add_u32 s80, s80, s81
buffer_load_dword v18, v10, s[{STA}:{STA+3}], s80 offen
buffer_load_dword v18, v11, s[{STA}:{STA+3}], s80 offen
s_branch L_PG_done
L_PG_C:""")
    srd(e, STA, P_CRE, 819200)
    srd(e, STB, P_CIM, 819200)
    e(f"""s_mul_i32 s81, s35, 80
s_mul_i32 s80, s{W}, 20
s_add_u32 s81, s81, s80
v_add_u32 v10, s81, v0
v_mul_u32_u24 v10, 1280, v10
v_mov_b32 v11, 0x10000000
v_cmp_gt_u32 vcc, 20, v0
v_cndmask_b32 v10, v11, v10, vcc
s_sub_u32 s80, s3, 54
s_lshr_b32 s80, s80, 2
s_min_u32 s80, s80, 9
s_lshl_b32 s80, s80, 7
buffer_load_dword v18, v10, s[{STA}:{STA+3}], s80 offen
buffer_load_dword v18, v10, s[{STB}:{STB+3}], s80 offen
L_PG_done:""")

def gen_lambda_table(e, part):
    L1, L2, L4, L8, L16, L32, L48, L64, L128, L256, L512, L1024, C2 = 30, 32, 34, 36, 38, 40, 42, 44, 46, 48, 50, 52, 54
    if part == 0:
        e(f"""v_lshlrev_b32 v20, 16, v20
v_lshlrev_b32 v21, 16, v21
v_lshlrev_b32 v22, 16, v22
v_mul_f32 v23, 0x3fb8aa3b, v22
v_exp_f32 v23, v23
s_nop 0
v_cvt_pk_bf16_f32 v23, v23, v23
v_and_b32 v23, 0xffff0000, v23
v_mul_f32 v24, v23, v20
v_mul_f32 v25, v23, v21
v_mul_f32 v24, 0x3fb8aa3b, v24
v_exp_f32 v24, v24
v_mul_f32 v25, 0.15915494, v25
v_fract_f32 v25, v25
v_sin_f32 v26, v25
v_cos_f32 v27, v25
s_nop 0
v_mul_f32 v31, v24, v26
v_mul_f32 v30, v24, v27""")
        csq(e, L2, L1); csq(e, L4, L2); csq(e, L8, L4); csq(e, L16, L8); csq(e, L32, L16)
        cmul(e, L48, L32, L16, None)
        csq(e, L64, L32); csq(e, L128, L64)
        return
    csq(e, L256, L128); csq(e, L512, L256); csq(e, L1024, L512)
    e(f"""v_add_f32 v56, -1.0, v30
v_mul_f32 v57, v20, v20
v_fma_f32 v57, v21, v21, v57
v_rcp_f32 v57, v57
v_mul_f32 v58, v56, v20
v_fma_f32 v58, v31, v21, v58
v_mul_f32 v59, v31, v20
v_fma_f32 v59, -v56, v21, v59
v_add_f32 v57, v57, v57
v_mul_f32 v{C2}, v58, v57
v_mul_f32 v{C2+1}, v59, v57
v_mov_b32 v60, 1.0
v_mov_b32 v61, 0""")
    ents = [L1, L8, 60, L16, L32, L48, L64, L128, L512, L1024, C2]
    for i, r in enumerate(ents):
        e(f"ds_write_b64 v62, v[{r}:{r+1}] offset:{i*768}")
    e("s_waitcnt lgkmcnt(0)")

ACC = 64
SETA, SETB = 160, 200
def acc_ffn(ft, tt): return ACC + (ft * 4 + tt) * 4
def acc_u(i, tp): return ACC + (i * 6 + tp) * 4

def reads(kind, st, ks):
    L = []
    vX = 2 + ks
    if kind == 'F':
        xs = [f"ds_read_b128 {R(st + 4*t)}, v{vX} offset:{t*2048}" for t in range(4)]
        ws = []
        for ft in range(6):
            for h in range(2):
                ws.append(f"ds_read_b64_tr_b16 v[{st+16+4*ft+2*h}:{st+16+4*ft+2*h+1}], v{4+ft} offset:{ks*12288 + h*1536}")
        L = ws[:2] + xs + ws[2:]
    else:
        vW = 4 + ks
        xs = [f"ds_read_b128 {R(st + 4*t)}, v{vX} offset:{t*2048}" for t in range(4)]
        ws = [f"ds_read_b128 {R(st + 16 + 4*t)}, v{vW} offset:{t*2048}" for t in range(6)]
        L = [ws[0]] + xs + ws[1:]
    return L

def mfmas(kind, st, first=False):
    L = []
    for n in range(6):
        for t in range(4):
            if kind == 'F':
                d = acc_ffn(n, t)
                c = R(16 + 20 + 4*n) if first else R(d)
                L.append(f"v_mfma_f32_16x16x32_bf16 {R(d)}, {R(st+16+4*n)}, {R(st+4*t)}, {c}")
            else:
                d = acc_u(t, n)
                c = "0" if first else R(d)
                L.append(f"v_mfma_f32_16x16x32_bf16 {R(d)}, {R(st+4*t)}, {R(st+16+4*n)}, {c}")
    return L

def gen_prep_issue(e, W=84, D=116):
    e(f"""s_cmp_ge_u32 s3, 54
s_cbranch_scc1 L_PREP_C""")
    srd(e, STA, P_W2, 2211840)
    e(f"""s_mul_i32 s80, s3, {32*1280}
s_mul_i32 s81, s35, 160
s_add_u32 s80, s80, s81
s_mul_i32 s81, s{W}, 5120
s_add_u32 s81, s81, {LDS_PREP}""")
    for n in range(5):
        e(f"""v_add_u32 v10, {64*n}, v0
v_mul_u32_u24 v11, 205, v10
v_lshrrev_b32 v11, 11, v11
v_mul_u32_u24 v12, 10, v11
v_sub_u32 v12, v10, v12
v_mul_u32_u24 v11, 1280, v11
v_lshlrev_b32 v12, 4, v12
v_add_u32 v11, v11, v12
s_add_u32 m0, s81, {n*1024}
buffer_load_dwordx4 v11, s[{STA}:{STA+3}], s80 offen lds""")
    e("v_mov_b32 v11, 0x10000000")
    for n in range(5):
        e(f"buffer_load_dword v{D}, v11, s[{STA}:{STA+3}], s80 offen")
    e("s_branch L_PREP_issued")
    e("L_PREP_C:")
    srd(e, STA, P_CRE, 819200)
    srd(e, STB, P_CIM, 819200)
    e(f"""v_and_b32 v10, 15, v0
v_mul_u32_u24 v10, 1280, v10
v_lshrrev_b32 v11, 4, v0
v_lshlrev_b32 v11, 3, v11
v_add_u32 v10, v10, v11
s_sub_u32 s80, s3, 54
s_min_u32 s80, s80, 39
s_lshl_b32 s80, s80, 5
s_mul_i32 s81, s35, {80*1280}
s_add_u32 s80, s80, s81""")
    for dt in range(5):
        e(f"buffer_load_dwordx2 v[{D+4*dt}:{D+1+4*dt}], v10, s[{STA}:{STA+3}], s80 offen")
        e(f"buffer_load_dwordx2 v[{D+2+4*dt}:{D+3+4*dt}], v10, s[{STB}:{STB+3}], s80 offen")
        if dt < 4: e(f"s_add_u32 s80, s80, {16*1280}")
    e("L_PREP_issued:")

def gen_prep_finish(e, W=84, D=116, T=''):
    e(f"""s_cmp_ge_u32 s3, 54
s_cbranch_scc1 L_PF_store{T}
v_lshrrev_b32 v10, 4, v0
v_lshlrev_b32 v10, 2, v10
v_bfe_u32 v11, v0, 2, 2
v_add_u32 v10, v10, v11
v_mul_u32_u24 v10, 160, v10
v_and_b32 v11, 3, v0
v_lshlrev_b32 v11, 3, v11
v_add_u32 v10, v10, v11
s_mul_i32 s81, s{W}, 5120
s_add_u32 s81, s81, {LDS_PREP}
v_add_u32 v10, s81, v10""")
    for dt in range(5):
        for h in range(2):
            e(f"ds_read_b64_tr_b16 v[{D+4*dt+2*h}:{D+1+4*dt+2*h}], v10 offset:{dt*32 + h*16*160}")
    e("s_waitcnt lgkmcnt(0)")
    e(f"L_PF_store{T}:")
    e(f"""s_mul_i32 s80, s35, 94
s_add_u32 s80, s80, s3
s_mul_i32 s80, s80, 5120
s_add_u32 s80, s80, {WF_OFF}
v_lshlrev_b32 v10, 4, v0
v_mov_b32 v11, 0x10000000
s_cmp_ge_u32 s3, 94
s_cselect_b32 s81, 1, 0
v_mov_b32 v12, s81
v_cmp_eq_u32 vcc, 1, v12
v_cndmask_b32 v10, v10, v11, vcc""")
    for dt in range(5):
        if dt < 4:
            e(f"buffer_store_dwordx4 {R(D+4*dt)}, v10, s[{SWS}:{SWS+3}], s80 offen offset:{dt*1024} sc1")
        else:
            e(f"s_add_u32 s80, s80, 4096")
            e(f"buffer_store_dwordx4 {R(D+4*dt)}, v10, s[{SWS}:{SWS+3}], s80 offen sc1")

def gen_prep_flag(e):
    e(f"""s_lshl_b32 s80, s35, 9
s_lshl_b32 s81, s3, 2
s_add_u32 s80, s80, s81
s_add_u32 s80, s80, {WFLAG_OFF}
v_mov_b32 v10, s{sNONCE}
s_cmp_ge_u32 s3, 94
s_cselect_b32 s81, 0x10000000, 0
v_mov_b32 v11, s81
s_mov_b64 exec, 1
buffer_store_dword v10, v11, s[{SWS}:{SWS+3}], s80 offen sc0 sc1
s_mov_b64 exec, -1""")

def interleave2(e, A, B, per):
    bi = 0
    for i, a in enumerate(A):
        e(a)
        for _ in range(per[i] if i < len(per) else 0):
            if bi < len(B): e(B[bi]); bi += 1
    while bi < len(B):
        e(B[bi]); bi += 1

def gen_main_loop(e, kind):
    tag = kind
    naddr = [2, 3] + ([4, 5, 6, 7, 8, 9] if kind == 'F' else [4, 5])
    sIT, sDELTA, sSLOT = 86, 87, 88
    def adv_list():
        L = [f"s_add_u32 s{sSLOT}, s{sSLOT}, 1", f"s_cmp_eq_u32 s{sSLOT}, 3",
             f"s_cselect_b32 s{sDELTA}, s90, s89", f"s_cselect_b32 s{sSLOT}, 0, s{sSLOT}"]
        L += [f"v_add_u32 v{v}, s{sDELTA}, v{v}" for v in naddr]
        return L
    e(f"s_mov_b32 s{sIT}, 1\ns_mov_b32 s{sSLOT}, 0\ns_mov_b32 s89, {SLOT}\ns_mov_b32 s90, {-2*SLOT & 0xffffffff}")
    if opt.itstamps:
        e(f"s_memtime s[100:101]\ns_waitcnt lgkmcnt(0)\nv_writelane_b32 v250, s100, 10")
    e("s_waitcnt lgkmcnt(0)\ns_barrier")
    if opt.itstamps:
        e(f"s_memtime s[100:101]\ns_waitcnt lgkmcnt(0)\nv_writelane_b32 v250, s100, 0")
    for r in reads(kind, SETA, 0): e(r)
    e("s_waitcnt lgkmcnt(0)")
    rb = reads(kind, SETB, 1)
    items = rb + adv_list()
    nr = len(rb)
    def perlist(nr, nextra):
        per = [1] * 24
        rem = 24 - nr
        per = [1] * nr + [0] * rem
        k = nextra; i = nr
        while k > 0:
            per[i] += 1; k -= 1; i += 1
            if i == 24: i = max(nr, 8)
        return per
    interleave2(e, mfmas(kind, SETA, first=True), items, perlist(nr, len(items) - nr))
    e("s_waitcnt lgkmcnt(0)")
    e(f"L_ML_{tag}:")
    e("s_barrier")
    if opt.itstamps:
        e(f"s_memtime s[100:101]\ns_waitcnt lgkmcnt(0)\ns_mov_b32 m0, s{sIT}\nv_writelane_b32 v250, s100, m0")
    ra = reads(kind, SETA, 0)
    interleave2(e, mfmas(kind, SETB), ra, [1] * 24)
    e(f"""s_cmp_eq_u32 s{sIT}, 1
s_cbranch_scc0 L_ML_h1_{tag}
buffer_load_dword v249, v248, s[{STA}:{STA+3}], 0 offen
L_ML_h1_{tag}:
s_cmp_eq_u32 s{sIT}, 4
s_cbranch_scc0 L_ML_h2_{tag}
s_waitcnt vmcnt(0)
v_readfirstlane_b32 s{sNONCE}, v249
s_cmp_eq_u32 s{sNONCE}, 0
s_cbranch_scc0 L_ML_h2b_{tag}""")
    spin_nonce(e, 'H' + tag, 10)
    e(f"L_ML_h2b_{tag}:")
    gen_prep_flag(e)
    e(f"L_ML_h2_{tag}:")
    e("s_waitcnt lgkmcnt(0)")
    items = rb + adv_list() + [f"s_add_u32 s{sIT}, s{sIT}, 1", f"s_cmp_lt_u32 s{sIT}, 10"]
    interleave2(e, mfmas(kind, SETA), items, perlist(nr, len(items) - nr))
    e(f"""s_waitcnt lgkmcnt(0)
s_cbranch_scc1 L_ML_{tag}""")
    lds_count(e, 24, 10)
    e(f"""s_mul_i32 s87, s{sWAVE}, 10
s_add_u32 s87, s87, 54
s_lshl_b32 s89, s{sCB}, 9
s_lshl_b32 s90, s87, 2
s_add_u32 s89, s89, s90
s_add_u32 s35, s89, {WFLAG_OFF}
v_lshlrev_b32 v8, 2, v0
buffer_load_dword v1, v8, s[{SWS}:{SWS+3}], s35 offen sc1""")
    for m in mfmas(kind, SETB): e(m)
    if opt.itstamps:
        e(f"""s_memtime s[100:101]
s_waitcnt lgkmcnt(0)
v_writelane_b32 v250, s100, 11
s_lshl_b32 s98, s2, 3
s_add_u32 s98, s98, s{sWAVE}
s_lshl_b32 s98, s98, 6
s_add_u32 s98, s98, {STAMP_OFF + 0x40000}
v_lshlrev_b32 v251, 2, v0
s_mov_b64 exec, 0xffff
buffer_store_dword v250, v251, s[{SWS}:{SWS+3}], s98 offen
s_mov_b64 exec, -1""")

def tile_flag(e, tag):
    nyoung = 0
    if opt.wearly:
        ssm_w_setup(e, tag)
        nyoung = SSM_W_OPS()
    e(f"""s_waitcnt vmcnt({nyoung})
s_lshr_b32 s80, s{sWAVE}, 1
s_lshl_b32 s81, s{sRB}, 1
s_add_u32 s80, s80, s81
s_lshl_b32 s80, s80, 8
s_lshl_b32 s81, s{sCOL}, 1
s_and_b32 s82, s{sWAVE}, 1
s_add_u32 s81, s81, s82
s_lshl_b32 s82, s81, 2
s_cmp_ge_u32 s81, 18
s_cselect_b32 s81, 56, 0
s_add_u32 s80, s80, s82
s_add_u32 s80, s80, s81
s_add_u32 s80, s80, {TFLAG_OFF}
v_mov_b32 v10, s{sNONCE}
v_mov_b32 v11, 0
s_mov_b64 exec, 1
buffer_store_dword v10, v11, s[{SWS}:{SWS+3}], s80 offen sc0 sc1
s_mov_b64 exec, -1""")
    if opt.eprio: e("s_setprio 0")

def SSM_W_OPS():
    nsh = 8 if opt.map2 == 1 else 4
    ng = (-(-(-(-10 * 40 // nsh)) // 64)) if opt.gw else 0
    return NW * 5 + NLS * 5 + ng

def ssm_w_setup(e, tag, order=True, defer_lds=False):
    e(f"""s_waitcnt vmcnt({12 if order else 0})
s_mul_i32 s87, s{sWAVE}, 10
s_add_u32 s87, s87, 54
v_cmp_ne_u32 vcc, s{sNONCE}, v1
v_lshlrev_b32 v1, 4, v0
v_lshlrev_b32 v8, 2, v0
s_and_b32 s80, vcc_lo, 0x3ff
s_cbranch_scc0 L_SSM_wok{tag}""")
    poll_flags(e, 'SW' + tag, 8, 10, 35, 0x3ff)
    e(f"""L_SSM_wok{tag}:
s_mul_i32 s84, s{sCB}, 94
s_add_u32 s84, s84, s87
s_mul_i32 s84, s84, 5120
s_add_u32 s84, s84, {WF_OFF}
s_mul_i32 s85, s{sRB2}, 94
s_add_u32 s85, s85, s87
s_lshl_b32 s85, s85, 12
s_mul_i32 s88, s{sWAVE}, 15360
s_add_u32 s88, s88, {LDS_Y}
v_add_u32 v3, s88, v1""")
    rot_setup(e, 10, True)
    rot_act(e)
    if opt.sorder and order:
        e(f"s_cmp_eq_u32 s{sISU}, 1\ns_cbranch_scc1 L_SSM_noord{tag}")
        lds_wait_ge(e, 'O' + tag, 28, 4, 10)
        e(f"L_SSM_noord{tag}:")
    if opt.sprio: e(f"s_setprio {opt.sprio}")
    if opt.sshelp:
        w_prefetch(e, 10, NLS, 88, do_lds=False, rng=(range(opt.fswn) if defer_lds else None))
        if not defer_lds:
            e(f"s_cmp_eq_u32 s{sISU}, 1\ns_cbranch_scc1 L_SSM_skiplds{tag}")
            w_lds(e, NLS, 88)
            e(f"s_branch L_SSM_ldsdone{tag}\nL_SSM_skiplds{tag}:\ns_add_u32 s84, s84, {NLS*5120}\nL_SSM_ldsdone{tag}:")
    else:
        w_prefetch(e, 10, NLS, 88)

def x_addr_setup(e):
    e(f"""s_lshr_b32 s80, s{sWAVE}, 1
s_lshl_b32 s80, s80, 13
v_and_b32 v10, 15, v0
v_lshlrev_b32 v10, 7, v10
v_lshrrev_b32 v11, 4, v0
v_and_b32 v12, 7, v0
v_xor_b32 v11, v11, v12
v_lshlrev_b32 v11, 4, v11
v_add_u32 v10, v10, v11
v_add_u32 v2, s80, v10
v_xor_b32 v3, 64, v2""")

def p1_l2_prefetch(e, kind):
    e(f"""s_lshr_b32 s81, s2, 3
s_lshr_b32 s82, s81, 3
s_lshl_b32 s82, s82, 5
s_lshl_b32 s83, s{sRB}, 7
s_add_u32 s82, s82, s83
v_and_b32 v10, 31, v0
v_add_u32 v10, s82, v10
v_mul_u32_u24 v10, 1280, v10
v_lshrrev_b32 v11, 5, v0
s_lshl_b32 s83, s{sWAVE}, 1
s_add_u32 s83, s83, 2
v_add_u32 v11, s83, v11
v_lshlrev_b32 v11, 7, v11
v_add_u32 v10, v10, v11
buffer_load_dword v247, v10, s[{SX}:{SX+3}], 0 offen
s_and_b32 s81, s81, 7""")
    if kind == 'F':
        srd(e, STA, P_W1, 2211840)
        e(f"""s_lshl_b32 s83, s{sWAVE}, 6
v_add_u32 v10, s83, v0
v_mul_u32_u24 v11, 2731, v10
v_lshrrev_b32 v11, 16, v11
v_mul_u32_u24 v12, 24, v11
v_sub_u32 v12, v10, v12
v_mul_u32_u24 v13, 43, v12
v_lshrrev_b32 v13, 7, v13
v_mul_u32_u24 v10, 3, v13
v_sub_u32 v12, v12, v10
v_lshlrev_b32 v11, 6, v11
v_add_u32 v11, v11, v13
s_lshl_b32 s83, s81, 3
s_add_u32 s83, s83, 128
v_add_u32 v11, s83, v11
v_mul_u32_u24 v11, 3456, v11
v_lshlrev_b32 v12, 7, v12
v_add_u32 v11, v11, v12
s_mul_i32 s83, s{sJ}, 384
buffer_load_dword v247, v11, s[{STA}:{STA+3}], s83 offen""")
    else:
        e(f"""s_cmp_ge_u32 s{sWAVE}, 2
s_cselect_b32 s{STA}, s{P_BIM}, s{P_BRE}
s_cselect_b32 s{STA+1}, s{P_BIM+1}, s{P_BRE+1}
s_mov_b32 s{STA+2}, 819200
s_mov_b32 s{STA+3}, 0x20000
s_and_b32 s83, s{sWAVE}, 1
s_lshl_b32 s83, s83, 6
v_add_u32 v10, s83, v0
v_min_u32 v10, 95, v10
v_mul_u32_u24 v11, 171, v10
v_lshrrev_b32 v11, 11, v11
v_mul_u32_u24 v12, 12, v11
v_sub_u32 v12, v10, v12
s_mul_i32 s83, s{sJ}, 96
s_mul_i32 s82, s81, 12
s_add_u32 s83, s83, s82
v_add_u32 v12, s83, v12
v_min_u32 v12, 639, v12
v_mul_u32_u24 v12, 1280, v12
v_add_u32 v11, 2, v11
v_lshlrev_b32 v11, 7, v11
v_add_u32 v12, v12, v11
buffer_load_dword v247, v12, s[{STA}:{STA+3}], 0 offen""")

def consumer_start_loads(e, nbefore):
    gen_gather_setup(e, sWAVE, 'C', 0)
    ng = 10 if opt.gall else 3
    for _ in range(ng):
        e(f"buffer_load_dword v18, v17, s[{SG}:{SG+3}], s{sGo} offen\ns_add_u32 s{sGo}, s{sGo}, s{sGinc}")
    gen_unit_ids(e, sWAVE)
    if opt.gall:
        gen_prep_gather(e, sWAVE)
    gen_prep_issue(e, sWAVE, 16)

def consumer_common_setup(e):
    srd(e, STA, P_DBG, 256)
    e("v_mov_b32 v248, 0")

def gen_consumer_ffn(e):
    e("L_CONS_F:")
    srd(e, STB, P_B1, 3456)
    e(f"""s_mul_i32 s80, s{sJ}, 384
s_and_b32 s81, s{sWAVE}, 1
s_mul_i32 s81, s81, 192
s_add_u32 s80, s80, s81
v_lshrrev_b32 v10, 4, v0
v_lshlrev_b32 v10, 3, v10""")
    for ft in range(6):
        e(f"buffer_load_dwordx2 v[{224+2*ft}:{225+2*ft}], v10, s[{STB}:{STB+3}], s80 offen offset:{32*ft}")

    x_addr_setup(e)
    e(f"""v_lshrrev_b32 v10, 4, v0
v_bfe_u32 v11, v0, 2, 2
v_lshlrev_b32 v12, 3, v10
v_add_u32 v12, v12, v11
v_mul_u32_u24 v12, 384, v12
v_bfe_u32 v13, v0, 3, 1
v_lshlrev_b32 v13, 1, v13
v_and_b32 v14, 1, v10
v_lshlrev_b32 v14, 2, v14
v_or_b32 v13, v13, v14
v_bfe_u32 v14, v0, 1, 1
s_and_b32 s81, s{sWAVE}, 1
s_mul_i32 s81, s81, 12
v_add_u32 v14, s81, v14
v_and_b32 v15, 1, v0
v_lshlrev_b32 v15, 3, v15
v_add_u32 v12, v12, v15
v_add_u32 v12, 16384, v12""")
    for ft in range(6):
        e(f"""v_add_u32 v10, {2*ft}, v14
v_xor_b32 v10, v10, v13
v_lshlrev_b32 v10, 4, v10
v_add_u32 v{4+ft}, v12, v10""")
    e("s_waitcnt vmcnt(0)")
    gen_prep_finish(e, sWAVE, 16, 'F')
    consumer_common_setup(e)
    for ft in range(6):
        b = 36 + 4 * ft
        e(f"""v_lshlrev_b32 v{b}, 16, v{224+2*ft}
v_and_b32 v{b+1}, 0xffff0000, v{224+2*ft}
v_lshlrev_b32 v{b+2}, 16, v{225+2*ft}
v_and_b32 v{b+3}, 0xffff0000, v{225+2*ft}""")
    stamp(e, 0, 14)
    stamp_clk(e, 14, 14)
    dbgmax(e, 8)
    gen_main_loop(e, 'F')
    dbgmax(e, 2)
    if opt.eprio: e(f"s_setprio {opt.eprio}")
    stamp(e, 1, 14)
    stamp_clk(e, 15, 14)
    e(f"""s_lshr_b32 s80, s{sWAVE}, 1
s_lshl_b32 s81, s{sRB}, 1
s_add_u32 s80, s80, s81
s_mul_i32 s80, s80, 94
s_mul_i32 s81, s{sJ}, 6
s_add_u32 s80, s80, s81
s_and_b32 s81, s{sWAVE}, 1
s_mul_i32 s81, s81, 3
s_add_u32 s80, s80, s81
s_lshl_b32 s32, s80, 12
v_lshlrev_b32 v10, 4, v0""")
    k = 0
    OB = 196 if opt.fsw else SETA
    pend = []
    for u in range(3):
        for tt in range(4):
            o = OB + 4 * k; k += 1
            vals = [acc_ffn(2*u, tt), acc_ffn(2*u+1, tt)]
            tmp = 16 + 8 * (k & 1)
            for h, a in enumerate(vals):
                for r in range(4):
                    e(f"v_max_f32 v{tmp+4*h+r}, 0, v{a+r}")
            for h, a in enumerate(vals):
                for r in range(0, 4, 2):
                    e(f"v_pk_mul_f32 v[{a+r}:{a+r+1}], v[{a+r}:{a+r+1}], v[{tmp+4*h+r}:{tmp+4*h+r+1}]")
            for h, a in enumerate(vals):
                for r in range(0, 4, 2):
                    e(f"v_cvt_pk_bf16_f32 v{o+2*h+(r>>1)}, v{a+r}, v{a+r+1}")
            st_ = f"buffer_store_dwordx4 {R(o)}, v10, s[{SWS}:{SWS+3}], s32 offen offset:{tt*1024} sc1"
            if opt.fsw: pend.append(st_)
            else: e(st_)
        if u < 2:
            if opt.fsw: pend.append("s_add_u32 s32, s32, 4096")
            else: e("s_add_u32 s32, s32, 4096")
    if opt.fsw:
        ssm_w_setup(e, 'F', order=False, defer_lds=(opt.fsw == 2))
        e("v_lshlrev_b32 v10, 4, v0")
        for x in pend: e(x)
    lds_count(e, 16, 12)
    stamp(e, 2, 14)
    tile_flag(e, 'F')
    dbgmax(e, 3)
    stamp(e, 3, 14)
    if opt.fsw == 2:
        w_prefetch(e, 10, NLS, 88, do_lds=False, rng=range(opt.fswn, NW))
        w_lds(e, NLS, 88)
    e("s_branch L_SSM_P2b" if opt.fsw else "s_branch L_SSM_P2")

def gen_code_prefetch(e):
    e(f"""s_cmp_eq_u32 s{sWAVE}, 3
s_cbranch_scc0 L_CPF_done
s_getpc_b64 s[80:81]
L_CPF_pc:
s_sub_u32 s80, s80, L_CPF_pc-{NAME}
s_subb_u32 s81, s81, 0
s_lshr_b32 s82, s2, 3
s_lshl_b32 s82, s82, 11
v_and_b32 v10, 15, v0
v_lshlrev_b32 v10, 7, v10
v_add_u32 v10, s82, v10
v_min_u32 v10, L_CODE_END-{NAME}-4, v10
s_mov_b64 exec, 0xffff
global_load_dword v19, v10, s[80:81]
s_mov_b64 exec, -1
L_CPF_done:""")

def gen_consumer(e):
    e(f"""v_mov_b32 v10, {LDS_FLAG}
v_mov_b32 v12, 0
v_mov_b32 v13, 0
v_mov_b32 v14, 0
v_mov_b32 v15, 0
ds_write_b128 v10, v[12:15]
ds_write_b128 v10, v[12:15] offset:16""")
    if opt.cpf: gen_code_prefetch(e)
    consumer_start_loads(e, 0)
    e(f"""s_cmp_eq_u32 s{sISU}, 1
s_cbranch_scc1 L_CONS_U""")
    gen_consumer_ffn(e)
    gen_consumer_u(e)

def pk(op, d, a, b, c=None, bsel=None, neg=False):
    assert bsel == 0, "op_sel hi-broadcast is unsafe next to MFMA (measured)"
    n = 3 if c is not None else 2
    sel = [0, bsel] + ([0] if c is not None else [])
    selh = [1, bsel] + ([1] if c is not None else [])
    s = f"{op} v[{d}:{d+1}], v[{a}:{a+1}], v[{b}:{b+1}]" + (f", v[{c}:{c+1}]" if c is not None else "")
    s += " op_sel:[" + ",".join(map(str, sel)) + "] op_sel_hi:[" + ",".join(map(str, selh)) + "]"
    if neg:
        ng = [0, 1] + ([0] if c is not None else [])
        s += " neg_lo:[" + ",".join(map(str, ng)) + "] neg_hi:[" + ",".join(map(str, ng)) + "]"
    return s

def gen_consumer_u(e):
    e("L_CONS_U:")
    x_addr_setup(e)
    e(f"""s_and_b32 s81, s{sWAVE}, 1
s_mul_i32 s81, s81, {96*128}
s_add_u32 s81, s81, 16384
v_add_u32 v4, s81, v10
v_xor_b32 v5, 64, v4""")
    e("s_waitcnt vmcnt(0)")
    gen_prep_finish(e, sWAVE, 16, 'U')
    consumer_common_setup(e)
    stamp(e, 0, 14)
    gen_main_loop(e, 'U')
    if opt.eprio: e(f"s_setprio {opt.eprio}")
    stamp(e, 1, 14)
    def K(ct, i): return 160 + 18 * ct + 2 * i
    LAM, L8, L16, L16Q, L64, L128, L512, L1024, C2 = range(9)
    ent = {LAM: 0, L8: 1, L16: 3, L64: 6, L128: 7, L512: 8, L1024: 9, C2: 10}
    e(f"""s_and_b32 s81, s{sWAVE}, 1
s_mul_i32 s81, s81, {48*8}
s_add_u32 s81, s81, {LDS_TAB}
v_and_b32 v10, 15, v0
v_lshlrev_b32 v10, 3, v10
v_add_u32 v10, s81, v10
v_lshrrev_b32 v11, 4, v0
v_mul_u32_u24 v11, 768, v11
v_add_u32 v11, v11, v10""")
    for ct in range(3):
        for k, en in ent.items():
            e(f"ds_read_b64 v[{K(ct,k)}:{K(ct,k)+1}], v10 offset:{en*768 + ct*128}")
        e(f"ds_read_b64 v[{K(ct,L16Q)}:{K(ct,L16Q)+1}], v11 offset:{2*768 + ct*128}")
    e("s_waitcnt lgkmcnt(0)")
    LI = [2, 252, 254]
    C2I = [16, 18, 20]
    for ct in range(3):
        e(f"v_mov_b32 v{LI[ct]}, v{K(ct, LAM)+1}")
    def U(n, ct, part):
        return acc_u(n >> 1, 2 * ct + part) + 2 * (n & 1)
    def Er(ct, s): return 16 + 8 * ct + 4 * s
    def Ei(ct, s): return 18 + 8 * ct + 4 * s
    for n in range(1, 8):
        src = (n - 1) & 1; dst = n & 1
        for ct in range(3):
            pr = U(0, ct, 0) if n == 1 else Er(ct, src)
            pi = U(0, ct, 1) if n == 1 else Ei(ct, src)
            e(pk("v_pk_fma_f32", Er(ct, dst), pr, K(ct, LAM), U(n, ct, 0), 0))
            e(pk("v_pk_fma_f32", Ei(ct, dst), pi, K(ct, LAM), U(n, ct, 1), 0))
        for ct in range(3):
            pr = U(0, ct, 0) if n == 1 else Er(ct, src)
            pi = U(0, ct, 1) if n == 1 else Ei(ct, src)
            e(pk("v_pk_fma_f32", Er(ct, dst), pi, LI[ct], Er(ct, dst), 0, neg=True))
            e(pk("v_pk_fma_f32", Ei(ct, dst), pr, LI[ct], Ei(ct, dst), 0))
    def LL(ct): return 16 + 8 * ct
    for ct in range(3):
        er, ei, l8 = Er(ct, 1), Ei(ct, 1), K(ct, L8)
        e(f"""v_fma_f32 v{LL(ct)}, v{l8}, v{er}, v{er+1}
v_fma_f32 v{LL(ct)+1}, v{l8}, v{ei}, v{ei+1}
v_fma_f32 v{LL(ct)}, -v{l8+1}, v{ei}, v{LL(ct)}
v_fma_f32 v{LL(ct)+1}, v{l8+1}, v{er}, v{LL(ct)+1}""")
    def G(ct, q): return 214 + 8 * ct + 2 * q
    for ct in range(3):
        for c in range(2):
            a, b, a2, b2 = G(ct, 0) + c, G(ct, 1) + c, G(ct, 2) + c, G(ct, 3) + c
            e(f"""v_mov_b32 v{a}, v{LL(ct)+c}
v_mov_b32 v{b}, v{LL(ct)+c}
v_permlane16_swap_b32 v{a}, v{b}
v_mov_b32 v{a2}, v{a}
v_mov_b32 v{b2}, v{b}
v_permlane32_swap_b32 v{a}, v{a2}
v_permlane32_swap_b32 v{b}, v{b2}""")
    for ct in range(3):
        cfma(e, G(ct, 1), K(ct, L16), G(ct, 0), G(ct, 1))
    for ct in range(3):
        cfma(e, G(ct, 2), K(ct, L16), G(ct, 1), G(ct, 2))
    for ct in range(3):
        cfma(e, G(ct, 3), K(ct, L16), G(ct, 2), G(ct, 3))
    e(f"""s_mov_b32 s80, 0xffff0000
s_mov_b32 s81, 0
s_mov_b32 s82, 0
s_mov_b32 s83, 0x0000ffff
s_mov_b32 s90, 0
s_mov_b32 s91, 0xffff0000""")
    for ct in range(3):
        for c in range(2):
            e(f"""v_cndmask_b32 v{LL(ct)+c}, 0, v{G(ct,0)+c}, s[80:81]
v_cndmask_b32 v{LL(ct)+c}, v{LL(ct)+c}, v{G(ct,1)+c}, s[82:83]
v_cndmask_b32 v{LL(ct)+c}, v{LL(ct)+c}, v{G(ct,2)+c}, s[90:91]""")
    e(f"""s_and_b32 s84, s{sWAVE}, 1
s_mul_i32 s85, s84, {48*8}
s_add_u32 s85, s85, {LDS_LX}
v_and_b32 v10, 15, v0
v_lshlrev_b32 v10, 3, v10
v_add_u32 v10, s85, v10
s_lshl_b32 s85, s84, 2
s_add_u32 s85, s85, {LDS_FLAG}
v_mov_b32 v11, s85
s_cmp_ge_u32 s{sWAVE}, 2
s_cbranch_scc1 L_U_wt1""")
    for ct in range(3):
        e(f"ds_write_b64 v10, v[{G(ct,3)}:{G(ct,3)+1}] offset:{ct*128}")
    e(f"""v_mov_b32 v12, 1
s_waitcnt lgkmcnt(0)
ds_write_b32 v11, v12
s_branch L_U_lb
L_U_wt1:
s_mov_b32 s85, 0
L_U_pairwait:
ds_read_b32 v12, v11
s_add_u32 s85, s85, 1
s_waitcnt lgkmcnt(0)
v_readfirstlane_b32 s86, v12
s_cmp_ge_u32 s85, {opt.spin_limit}
s_cbranch_scc1 L_U_pairok
s_cmp_eq_u32 s86, 0
s_cbranch_scc1 L_U_pairwait
L_U_pairok:""")
    for ct in range(3):
        e(f"ds_read_b64 v[{G(ct,0)}:{G(ct,0)+1}], v10 offset:{ct*128}")
    e("s_waitcnt lgkmcnt(0)")
    for ct in range(3):
        cfma(e, G(ct, 1), K(ct, L64), G(ct, 0), G(ct, 3))
    e(f"""s_mov_b32 s80, 0xffff0000
s_mov_b32 s81, 0
s_mov_b32 s82, 0
s_mov_b32 s83, 0x0000ffff
v_cndmask_b32 v240, v{G(0,1)}, v{G(1,1)}, s[80:81]
v_cndmask_b32 v241, v{G(0,1)+1}, v{G(1,1)+1}, s[80:81]
v_cndmask_b32 v240, v240, v{G(2,1)}, s[82:83]
v_cndmask_b32 v241, v241, v{G(2,1)+1}, s[82:83]
v_mov_b32 v242, s{sNONCE}
v_mov_b32 v243, s{sNONCE}
s_mul_i32 s85, s{sJ}, 16
s_add_u32 s85, s85, s{sRB}
s_mul_i32 s85, s85, 96
s_mul_i32 s86, s84, 48
s_add_u32 s85, s85, s86
s_lshl_b32 s85, s85, 4
s_add_u32 s85, s85, {AG_OFF}
v_lshlrev_b32 v12, 4, v0
s_mov_b32 exec_lo, -1
s_mov_b32 exec_hi, 0x0000ffff
buffer_store_dwordx4 v[240:243], v12, s[{SWS}:{SWS+3}], s85 offen sc0 sc1
s_mov_b64 exec, -1
L_U_lb:""")
    if not opt.udelay: lds_count(e, 16, 12)
    stamp(e, 2, 14)
    LB = 112 + 0
    lbregs = [40 + 4 * i for i in range(6)] + [240 + 4 * i for i in range(4)] + [32 + 0, 36]
    lbregs = [40 + 4 * i for i in range(6)] + [240, 244, 248] + [216, 224, 232]
    e(f"""s_mul_i32 s85, s{sJ}, {16*96}
s_mul_i32 s86, s84, 48
s_add_u32 s85, s85, s86
s_lshl_b32 s85, s85, 4
s_add_u32 s85, s85, {AG_OFF}
v_lshrrev_b32 v12, 4, v0
v_lshlrev_b32 v12, 2, v12
v_sub_u32 v12, s{sRB}, v12
v_mov_b32 v9, 0x10000000
v_and_b32 v13, 15, v0""")
    for m in range(4):
        e(f"""v_subrev_u32 v14, {1+m}, v12
v_cmp_le_i32 s[{88+2*m}:{89+2*m}], 0, v14
v_mul_u32_u24 v15, 96, v14
v_add_u32 v15, v15, v13
v_lshlrev_b32 v15, 4, v15
v_cndmask_b32 v{4+m}, v9, v15, s[{88+2*m}:{89+2*m}]""")
    CR = list(range(38, 52)) + [54]
    for k in range(15):
        e(f"s_mov_b32 s{CR[k]}, s{sNONCE}")
    e(f"""s_add_u32 s87, s85, {47*16 + 8}
s_mov_b32 s86, 0
L_U_cp:""")
    for k in range(15):
        e(f"""s_cmp_gt_u32 s{sRB}, {k}
s_cbranch_scc0 L_U_cpl
s_load_dword s{CR[k]}, s[{P_WS}:{P_WS+1}], s87 offset:{k*1536} glc""")
    e(f"""L_U_cpl:
s_add_u32 s86, s86, 1
s_waitcnt lgkmcnt(0)
s_mov_b32 s81, 0""")
    for k in range(15):
        e(f"s_xor_b32 s82, s{CR[k]}, s{sNONCE}\ns_or_b32 s81, s81, s82")
    e(f"""s_cmp_ge_u32 s86, {opt.spin_limit}
s_cbranch_scc1 L_U_cpok
s_cmp_eq_u32 s81, 0
s_cbranch_scc1 L_U_cpok
s_sleep 1
s_branch L_U_cp
L_U_cpok:""")
    stamp(e, 11, 14)
    e(f"s_mov_b32 s86, 0\nL_U_lbloop:")
    for m in range(4):
        for ct in range(3):
            r = lbregs[m * 3 + ct]
            e(f"buffer_load_dwordx4 {R(r)}, v{4+m}, s[{SWS}:{SWS+3}], s85 offen offset:{ct*256} sc1")
    e("s_add_u32 s86, s86, 1\ns_mov_b64 s[96:97], 0\ns_waitcnt vmcnt(0)")
    for m in range(4):
        for ct in range(3):
            r = lbregs[m * 3 + ct]
            e(f"""v_cmp_ne_u32 vcc, s{sNONCE}, v{r+2}
s_and_b64 vcc, vcc, s[{88+2*m}:{89+2*m}]
s_or_b64 s[96:97], s[96:97], vcc""")
    e(f"""s_cmp_ge_u32 s86, {opt.spin_limit}
s_cbranch_scc1 L_U_lbok
s_cmp_eq_u64 s[96:97], 0
s_cbranch_scc0 L_U_lbloop
L_U_lbok:""")
    if opt.udelay: lds_count(e, 16, 12)
    def S(m, ct): return lbregs[m * 3 + ct]
    for ct in range(3):
        cfma(e, S(2, ct), K(ct, L128), S(3, ct), S(2, ct))
    for ct in range(3):
        cfma(e, S(1, ct), K(ct, L128), S(2, ct), S(1, ct))
    for ct in range(3):
        cfma(e, S(0, ct), K(ct, L128), S(1, ct), S(0, ct))
    for ct in range(3):
        z, b, t, u = S(0, ct), S(1, ct), S(2, ct), S(3, ct)
        e(f"""v_mov_b32 v{b}, v{z}
v_mov_b32 v{b+1}, v{z+1}
v_permlane16_swap_b32 v{z}, v{b}
v_permlane16_swap_b32 v{z+1}, v{b+1}""")
        cfma(e, t, K(ct, L512), b, z)
        e(f"""v_mov_b32 v{u}, v{t}
v_mov_b32 v{u+1}, v{t+1}
v_permlane32_swap_b32 v{t}, v{u}
v_permlane32_swap_b32 v{t+1}, v{u+1}""")
        cfma(e, z, K(ct, L1024), u, t)
    e(f"s_cmp_ge_u32 s{sWAVE}, 2\ns_cbranch_scc0 L_U_hw0")
    for ct in range(3):
        cfma(e, S(1, ct), K(ct, L64), S(0, ct), G(ct, 0))
    e("s_branch L_U_hw1\nL_U_hw0:")
    for ct in range(3):
        e(f"v_mov_b32 v{S(1,ct)}, v{S(0,ct)}\nv_mov_b32 v{S(1,ct)+1}, v{S(0,ct)+1}")
    e("L_U_hw1:\ns_nop 1")
    for ct in range(3):
        cfma(e, S(2, ct), K(ct, L16Q), S(1, ct), LL(ct))
    for ct in range(3):
        hl, l8, er, ei = S(2, ct), K(ct, L8), Er(ct, 1), Ei(ct, 1)
        cr, ci = S(3, ct), S(3, ct) + 2
        e(f"""v_mov_b32 v{cr}, v{hl}
v_mov_b32 v{ci}, v{hl+1}
v_fma_f32 v{cr+1}, v{l8}, v{hl}, v{er}
v_fma_f32 v{ci+1}, v{l8}, v{hl+1}, v{ei}
v_fma_f32 v{cr+1}, -v{l8+1}, v{hl+1}, v{cr+1}
v_fma_f32 v{ci+1}, v{l8+1}, v{hl}, v{ci+1}""")
    for n in range(8):
        for ct in range(3):
            pr = S(3, ct) if n == 0 else U(n - 1, ct, 0)
            pi = S(3, ct) + 2 if n == 0 else U(n - 1, ct, 1)
            e(pk("v_pk_fma_f32", U(n, ct, 0), pr, K(ct, LAM), U(n, ct, 0), 0))
            e(pk("v_pk_fma_f32", U(n, ct, 1), pi, K(ct, LAM), U(n, ct, 1), 0))
        for ct in range(3):
            pr = S(3, ct) if n == 0 else U(n - 1, ct, 0)
            pi = S(3, ct) + 2 if n == 0 else U(n - 1, ct, 1)
            e(pk("v_pk_fma_f32", U(n, ct, 0), pi, LI[ct], U(n, ct, 0), 0, neg=True))
            e(pk("v_pk_fma_f32", U(n, ct, 1), pr, LI[ct], U(n, ct, 1), 0))
    stamp(e, 3, 14)
    e(f"""v_and_b32 v10, 15, v0
v_lshrrev_b32 v11, 4, v0
v_lshlrev_b32 v11, 3, v11
v_sub_u32 v10, v10, v11""")
    for ct in range(3):
        e(f"v_mov_b32 v{C2I[ct]}, v{K(ct, C2)+1}")
    e("v_mov_b32 v14, 0x3f80\nv_mov_b32 v15, 0x3f800000")
    for b in range(2):
        e(f"v_add_u32 v12, {16*b}, v10")
        for rr in range(4):
            d = 40 + 4 * b + rr
            e(f"""v_cmp_eq_u32 vcc, {2*rr}, v12
v_cndmask_b32 v{d}, 0, v14, vcc
v_cmp_eq_u32 vcc, {2*rr+1}, v12
v_cndmask_b32 v{d}, v{d}, v15, vcc""")
    e(f"""s_lshr_b32 s80, s{sWAVE}, 1
s_lshl_b32 s81, s{sRB}, 1
s_add_u32 s80, s80, s81
s_mul_i32 s80, s80, 94
s_mul_i32 s81, s{sJ}, 6
s_mul_i32 s82, s84, 3
s_add_u32 s81, s81, s82
s_add_u32 s80, s80, s81
s_add_u32 s80, s80, 54
s_lshl_b32 s80, s80, 12
v_lshlrev_b32 v10, 4, v0""")
    for ct in range(3):
        c2 = K(ct, C2)
        for i in range(4):
            if i & 1:
                t0, t1, t2, t3 = 216, 218, 220, 222
                m0, m1, m2, m3 = 4, 6, 8, 12
            else:
                t0, t1, t2, t3 = 208 + 6, 24, 26, 28
                t0 = 22
                m0, m1, m2, m3 = 30, 32, 34, 36
            for s_, (tr, ti, mr, mi) in enumerate(((t0, t2, m0, m2), (t1, t3, m1, m3))):
                n = 2 * i + s_
                hr, hi = U(n, ct, 0), U(n, ct, 1)
                e(pk("v_pk_mul_f32", mr, hr, c2, None, 0))
                e(pk("v_pk_mul_f32", mi, hi, c2, None, 0, neg=True))
            for s_, (tr, ti, mr, mi) in enumerate(((t0, t2, m0, m2), (t1, t3, m1, m3))):
                n = 2 * i + s_
                hr, hi = U(n, ct, 0), U(n, ct, 1)
                e(pk("v_pk_fma_f32", tr, hi, C2I[ct], mr, 0, neg=True))
                e(pk("v_pk_fma_f32", ti, hr, C2I[ct], mi, 0, neg=True))
            e(f"""v_cvt_pk_bf16_f32 v{48+i}, v{t0}, v{t1}
v_cvt_pk_bf16_f32 v{52+i}, v{t0+1}, v{t1+1}
v_cvt_pk_bf16_f32 v{56+i}, v{t2}, v{t3}
v_cvt_pk_bf16_f32 v{60+i}, v{t2+1}, v{t3+1}""")
        def D(part, tt): return 224 + 16 * part + 4 * tt
        for part in range(2):
            for a in range(2):
                for b in range(2):
                    A = 48 + 8 * part + 4 * a
                    e(f"v_mfma_f32_16x16x32_bf16 {R(D(part, 2*b+a))}, {R(A)}, {R(40+4*b)}, 0")
        if True:
            e(f"s_add_u32 s82, s81, {ct}\ns_cmp_ge_u32 s82, 40\ns_cbranch_scc1 L_U_skip{ct}")
            for tt in range(4):
                o = acc_u(tt, 2 * ct)
                dr, di = D(0, tt), D(1, tt)
                e(f"""v_cvt_pk_bf16_f32 v{o}, v{dr}, v{dr+1}
v_cvt_pk_bf16_f32 v{o+1}, v{dr+2}, v{dr+3}
v_cvt_pk_bf16_f32 v{o+2}, v{di}, v{di+1}
v_cvt_pk_bf16_f32 v{o+3}, v{di+2}, v{di+3}
buffer_store_dwordx4 {R(o)}, v10, s[{SWS}:{SWS+3}], s80 offen offset:{tt*1024} sc1""")
            e(f"L_U_skip{ct}:\ns_nop 7\ns_add_u32 s80, s80, 4096")
    stamp(e, 4, 14)
    tile_flag(e, 'U')
    dbgmax(e, 4)
    stamp(e, 5, 14)
    e("s_branch L_SSM_P2")

ACC2 = 16
WSL = 96
ASL = 196
NW, NA = 5, 3
def set_nw(nw, na):
    global NW, NA, ASL
    NW, NA = nw, na
    ASL = WSL + 20 * nw
def acc2(dt, tt): return ACC2 + (dt * 4 + tt) * 4

def wrap_w(e):
    if not opt.rot: return
    e("""s_sub_u32 s91, s91, 1
s_cmp_eq_u32 s91, 0
s_cselect_b32 s95, s93, 0
s_sub_u32 s84, s84, s95""")

def wrap_a(e):
    if not opt.rot: return
    e("""s_sub_u32 s92, s92, 1
s_cmp_eq_u32 s92, 0
s_cselect_b32 s95, s94, 0
s_sub_u32 s85, s85, s95""")

def rot_setup(e, n_sgpr_or_const, is_const):
    if not opt.rot: return
    if opt.map2 == 1:
        e(f"""s_and_b32 s95, s{sCB}, 3
s_lshl_b32 s95, s95, 1
s_add_u32 s95, s95, s{sRB2}
s_and_b32 s95, s95, 7""")
    else:
        e(f"""s_and_b32 s95, s{sRB2}, 3
s_lshl_b32 s95, s95, 1
s_add_u32 s95, s95, s{sCB}
s_and_b32 s95, s95, 7""")
    n = f"{n_sgpr_or_const}" if is_const else f"s{n_sgpr_or_const}"
    e(f"""s_mul_i32 s90, s95, {n}
s_lshr_b32 s90, s90, 3
s_sub_u32 s91, {n}, s90
s_mov_b32 s92, s91
s_mul_i32 s93, {n}, 5120
s_mul_i32 s94, {n}, 4096
s_mul_i32 s95, s90, 5120
s_add_u32 s84, s84, s95""")

def rot_act(e):
    if not opt.rot: return
    e("""s_lshl_b32 s95, s90, 12
s_add_u32 s85, s85, s95""")

def gen_p2_stream(e, tag, nsteps, extra_hook=None):
    queue = []
    SC = '' if opt.nosc1 else 'sc1'
    def ld_w(s):
        b = WSL + 20 * (s % NW)
        for dt in range(5):
            if dt < 4:
                e(f"buffer_load_dwordx4 {R(b+4*dt)}, v1, s[{SWS}:{SWS+3}], s84 offen offset:{dt*1024} {SC}")
            else:
                e(f"s_add_u32 s84, s84, 4096")
                e(f"buffer_load_dwordx4 {R(b+4*dt)}, v1, s[{SWS}:{SWS+3}], s84 offen {SC}")
                e(f"s_add_u32 s84, s84, 1024")
            queue.append(('w', s))
        wrap_w(e)
    def ld_a(s):
        b = ASL + 16 * (s % NA)
        for tt in range(4):
            e(f"buffer_load_dwordx4 {R(b+4*tt)}, v1, s[{SWS}:{SWS+3}], s85 offen offset:{tt*1024} {SC}")
            queue.append(('a', s))
        e(f"s_add_u32 s85, s85, 4096")
        wrap_a(e)
    return ld_w, ld_a, queue

def p2_role(e, tag, nsteps):
    pass

def emit_stream(e, nsteps, ld_w, ld_a, queue, NL, vL, late_lds=None):
    if opt.ststamps:
        e(f"s_memtime s[100:101]\ns_waitcnt lgkmcnt(0)\nv_writelane_b32 v250, s100, 0")
    for s in range(min(NA, nsteps)): ld_a(s)
    if late_lds is not None: w_lds(e, NL, late_lds, queue)
    for s in range(nsteps):
        idx = [i for i, q in enumerate(queue) if q in (('w', s), ('a', s))]
        inlds = NW <= s < NW + NL
        if idx:
            last = max(idx)
            n = len(queue) - 1 - last
            e(f"s_waitcnt vmcnt({n})" + (" lgkmcnt(0)" if inlds else ""))
            del queue[:last + 1]
        elif inlds:
            e("s_waitcnt lgkmcnt(0)")
        if opt.ststamps:
            e(f"s_memtime s[100:101]\ns_waitcnt lgkmcnt(0)\nv_writelane_b32 v250, s100, {s+1}")
        wb = WSL + 20 * (s % NW); ab = ASL + 16 * (s % NA)
        for dt in range(5):
            for tt in range(4):
                d = acc2(dt, tt)
                c = "0" if s == 0 else R(d)
                e(f"v_mfma_f32_16x16x32_bf16 {R(d)}, {R(wb+4*dt)}, {R(ab+4*tt)}, {c}")
        if s + NA < nsteps: ld_a(s + NA)
        t = s + NW
        if t < nsteps and t >= NW + NL:
            ld_w(t)
        t = s + 2
        if NW <= t < min(NW + NL, nsteps):
            li = [i for i, q in enumerate(queue) if q == ('l', t)]
            if li:
                e(f"s_waitcnt vmcnt({len(queue) - 1 - max(li)})")
                del queue[:max(li) + 1]
            for dt in range(5):
                e(f"ds_read_b128 {R(WSL + 20*(t % NW) + 4*dt)}, v{vL} offset:{(t-NW)*5120 + dt*1024}")

def spoll_tiles(e, tag, kind, sleep=1):
    off = 0 if kind == 'F' else 128
    n = 18 if kind == 'F' else 14
    e(f"""s_lshl_b32 s89, s{sRB2}, 8
s_add_u32 s89, s89, {TFLAG_OFF + off}
s_mov_b32 s80, 0
L_sp_{tag}:""")
    if kind == 'F':
        e(f"s_load_dwordx16 s[40:55], s[{P_WS}:{P_WS+1}], s89 glc")
        e(f"s_load_dwordx2 s[56:57], s[{P_WS}:{P_WS+1}], s89 offset:64 glc")
        regs = list(range(40, 58))
    else:
        e(f"s_load_dwordx8 s[40:47], s[{P_WS}:{P_WS+1}], s89 glc")
        e(f"s_load_dwordx4 s[48:51], s[{P_WS}:{P_WS+1}], s89 offset:32 glc")
        e(f"s_load_dwordx2 s[54:55], s[{P_WS}:{P_WS+1}], s89 offset:48 glc")
        regs = list(range(40, 52)) + [54, 55]
    e("s_add_u32 s80, s80, 1\ns_waitcnt lgkmcnt(0)\ns_mov_b32 s81, 0")
    for r_ in regs:
        e(f"s_xor_b32 s82, s{r_}, s{sNONCE}\ns_or_b32 s81, s81, s82")
    e(f"""s_cmp_ge_u32 s80, {opt.spin_limit}
s_cbranch_scc1 L_sp_done_{tag}
s_cmp_eq_u32 s81, 0
s_cbranch_scc1 L_sp_done_{tag}
s_sleep {sleep}
s_branch L_sp_{tag}
L_sp_done_{tag}:""")

def lds_signal(e, off, vt):
    e(f"""v_mov_b32 v{vt}, {LDS_FLAG + off}
v_mov_b32 v{vt+1}, 1
ds_write_b32 v{vt}, v{vt+1}""")

def lds_count(e, off, vt):
    e(f"""v_mov_b32 v{vt}, {LDS_FLAG + off}
v_mov_b32 v{vt+1}, 1
s_mov_b64 exec, 1
ds_add_u32 v{vt}, v{vt+1}
s_mov_b64 exec, -1""")

def lds_wait_ge(e, tag, off, n, vt):
    e(f"""v_mov_b32 v{vt}, {LDS_FLAG + off}
s_mov_b32 s80, 0
L_lwg_{tag}:
ds_read_b32 v{vt+1}, v{vt}
s_add_u32 s80, s80, 1
s_waitcnt lgkmcnt(0)
v_readfirstlane_b32 s81, v{vt+1}
s_cmp_ge_u32 s80, {opt.spin_limit * 4}
s_cbranch_scc1 L_lwg_done_{tag}
s_cmp_ge_u32 s81, {n}
s_cbranch_scc1 L_lwg_done_{tag}
s_sleep 1
s_branch L_lwg_{tag}
L_lwg_done_{tag}:""")

def lds_wait(e, tag, off, vt):
    e(f"""v_mov_b32 v{vt}, {LDS_FLAG + off}
s_mov_b32 s80, 0
L_lw_{tag}:
ds_read_b32 v{vt+1}, v{vt}
s_add_u32 s80, s80, 1
s_waitcnt lgkmcnt(0)
v_readfirstlane_b32 s81, v{vt+1}
s_cmp_ge_u32 s80, {opt.spin_limit * 4}
s_cbranch_scc1 L_lw_done_{tag}
s_cmp_eq_u32 s81, 0
s_cbranch_scc0 L_lw_done_{tag}
s_sleep 1
s_branch L_lw_{tag}
L_lw_done_{tag}:""")

def gen_p2(e):
    e("L_FFN_P2:")
    e(f"""s_mul_i32 s80, s{sRB2}, 94
s_add_u32 s85, s85, s80
s_lshl_b32 s85, s85, 12
v_add_u32 v3, s87, v1""")
    rot_act(e)
    e(f"""s_mov_b32 s88, s84
s_mov_b32 s84, s86""")
    nsh_ = 8 if opt.map2 == 1 else 4
    ng_ = (-(-(-(-14 * 40 // nsh_)) // 64)) if opt.gw else 0
    e(f"s_waitcnt vmcnt({NLF*5})")
    gen_gate_compute(e)
    e("s_mov_b32 s84, s88")
    ld_w, ld_a, queue = gen_p2_stream(e, 'F', 14)
    stamp(e, 3, 14)
    e(f"s_cmp_eq_u32 s86, 0\ns_cbranch_scc0 L_FFN_lw")
    spoll_tiles(e, 'FT', 'F')
    e('s_waitcnt vmcnt(0)')
    if opt.sshelp: lds_count(e, 20, 10)
    lds_signal(e, 8, 10)
    e("s_branch L_FFN_go\nL_FFN_lw:\ns_waitcnt vmcnt(0)")
    if opt.sshelp: lds_count(e, 20, 10)
    lds_wait(e, 'F', 8, 10)
    e("L_FFN_go:")
    if opt.prio: e(f"s_setprio {opt.prio}")
    stamp(e, 4, 14)
    if opt.l2pf2: l2_prefetch(e, 85, 14 * 32, 4 if opt.map2 == 1 else 8, f"s{sCB}", 3 if opt.map2 == 1 else 7, 2 if opt.map2 == 1 else 1)
    del queue[:]
    e(f"s_cmp_ge_u32 s86, 2\ns_cbranch_scc1 L_FFN_13")
    emit_stream(e, 14, ld_w, ld_a, queue, NLF, 3, 87 if opt.ldslate else None)
    e("s_branch L_FFN_done")
    e("L_FFN_13:")
    del queue[:]
    emit_stream(e, 13, ld_w, ld_a, queue, NLF, 3, 87 if opt.ldslate else None)
    e("L_FFN_done:")
    dbgmax(e, 5)
    if opt.ststamps:
        e(f"""s_memtime s[100:101]
s_waitcnt lgkmcnt(0)
v_writelane_b32 v250, s100, 15
s_lshl_b32 s98, s2, 3
s_add_u32 s98, s98, s{sWAVE}
s_lshl_b32 s98, s98, 6
s_add_u32 s98, s98, {STAMP_OFF + 0x40000}
v_lshlrev_b32 v251, 2, v0
s_mov_b64 exec, 0xffff
buffer_store_dword v250, v251, s[{SWS}:{SWS+3}], s98 offen
s_mov_b64 exec, -1""")
    stamp(e, 5, 14)
    e(f"""s_mul_i32 s80, s86, 20480
v_add_u32 v2, s80, v1""")
    for tt in range(4):
        for dt in range(5):
            e(f"ds_write_b128 v2, {R(acc2(dt,tt))} offset:{LDS_F + (tt*5+dt)*1024}")
    e("s_waitcnt lgkmcnt(0)\ns_barrier")
    stamp(e, 6, 14)
    e("s_branch L_END")
    e("L_SSM_P2:")
    if not opt.wearly: ssm_w_setup(e, 'P')
    e("L_SSM_P2b:")
    ld_w, ld_a, queue = gen_p2_stream(e, 'S', 10)
    stamp(e, 6, 14)
    e(f"s_cmp_eq_u32 s{sWAVE}, 0\ns_cbranch_scc0 L_SSM_lw")
    spoll_tiles(e, 'ST', 'S')
    e('s_waitcnt vmcnt(0)')
    lds_signal(e, 12, 10)
    e("s_branch L_SSM_go\nL_SSM_lw:\ns_waitcnt vmcnt(0)")
    lds_wait(e, 'S', 12, 10)
    e("L_SSM_go:")
    if opt.sshelp:
        e(f"s_cmp_eq_u32 s{sISU}, 1\ns_cbranch_scc0 L_SSM_nohw")
        lds_wait_ge(e, 'H', 20, 4, 10)
        e("L_SSM_nohw:")
    stamp(e, 7, 14)
    if opt.l2pf2: l2_prefetch(e, 85, 10 * 32, 4 if opt.map2 == 1 else 8, f"s{sCB}", 3 if opt.map2 == 1 else 7, 2 if opt.map2 == 1 else 1)
    del queue[:]
    emit_stream(e, 10, ld_w, ld_a, queue, NLS, 3)
    if opt.ststamps:
        e(f"""s_memtime s[100:101]
s_waitcnt lgkmcnt(0)
v_writelane_b32 v250, s100, 15
s_lshl_b32 s98, s2, 3
s_add_u32 s98, s98, s{sWAVE}
s_lshl_b32 s98, s98, 6
s_add_u32 s98, s98, {STAMP_OFF + 0x40000}
v_lshlrev_b32 v251, 2, v0
s_mov_b64 exec, 0xffff
buffer_store_dword v250, v251, s[{SWS}:{SWS+3}], s98 offen
s_mov_b64 exec, -1""")
    stamp(e, 8, 14)
    dbgmax(e, 6)
    XR, DK, B2, GG = 96, 106, 116, 126
    e(f"""s_lshr_b32 s80, s{sWAVE}, 1
s_lshl_b32 s80, s80, 5
s_and_b32 s81, s{sWAVE}, 1
s_lshl_b32 s81, s81, 3
s_add_u32 s80, s80, s81
s_lshl_b32 s81, s{sRB2}, 6
s_add_u32 s80, s80, s81
v_bfe_u32 v2, v0, 3, 1
v_lshlrev_b32 v2, 4, v2
v_and_b32 v3, 7, v0
v_add_u32 v2, v2, v3
v_add_u32 v2, s80, v2
v_lshrrev_b32 v3, 4, v0
v_lshlrev_b32 v4, 3, v3
s_mul_i32 s81, s{sCB}, 160
v_mul_u32_u24 v5, 1280, v2
v_add_u32 v5, v5, v4
v_lshlrev_b32 v6, 3, v2""")
    srd(e, STA, P_AX, 2621440)
    for dt in range(5):
        e(f"buffer_load_dwordx2 v[{XR+2*dt}:{XR+2*dt+1}], v5, s[{STA}:{STA+3}], s81 offen offset:{32*dt}")
    srd(e, STB, P_DSK, 1280)
    for dt in range(5):
        e(f"buffer_load_dwordx2 v[{DK+2*dt}:{DK+2*dt+1}], v4, s[{STB}:{STB+3}], s81 offen offset:{32*dt}")
    srd(e, STA, P_B2, 1280)
    for dt in range(5):
        e(f"buffer_load_dwordx2 v[{B2+2*dt}:{B2+2*dt+1}], v4, s[{STA}:{STA+3}], s81 offen offset:{32*dt}")
    e(f"s_mov_b32 s82, {G_OFF}")
    e(f"buffer_load_dwordx2 v[{GG}:{GG+1}], v6, s[{SWS}:{SWS+3}], s82 offen sc1")
    e(f"""s_mul_i32 s83, s{sWAVE}, 15360
s_add_u32 s83, s83, {LDS_Y}
v_add_u32 v7, s83, v1""")
    OWN = 130
    for w in range(4):
        e(f"s_cmp_eq_u32 s{sWAVE}, {w}\ns_cbranch_scc0 L_YW_{w}")
        sl = 0
        for tt in range(4):
            if tt == w: continue
            for dt in range(5):
                e(f"ds_write_b128 v7, {R(acc2(dt,tt))} offset:{sl * 5120 + dt * 1024}")
            sl += 1
        for dt in range(5):
            for r in range(4):
                e(f"v_mov_b32 v{OWN+4*dt+r}, v{acc2(dt,w)+r}")
        e(f"s_branch L_YW_done\nL_YW_{w}:")
    e("L_YW_done:")
    for k in range(3):
        e(f"""s_cmp_ge_u32 {k}, s{sWAVE}
s_cselect_b32 s80, {k+1}, {k}
s_cselect_b32 s81, 0, 1
s_sub_u32 s81, s{sWAVE}, s81
s_mul_i32 s80, s80, 15360
s_mul_i32 s81, s81, 5120
s_add_u32 s80, s80, s81
s_add_u32 s80, s80, {LDS_Y}
v_add_u32 v{8+k}, s80, v1""")
    e(f"""s_mul_i32 s80, s{sWAVE}, 5120
v_add_u32 v11, s80, v1
v_add_u32 v12, 40960, v11""")
    e("s_waitcnt lgkmcnt(0)\ns_barrier")
    stamp(e, 9, 14)
    YR, FR = 16, 150
    for k in range(3):
        for dt in range(5):
            e(f"ds_read_b128 {R(YR+20*k+4*dt)}, v{8+k} offset:{dt*1024}")
    for w2 in range(4):
        for dt in range(5):
            e(f"ds_read_b128 {R(FR+20*w2+4*dt)}, v{11+(w2>>1)} offset:{(w2&1)*20480 + dt*1024}")
    e(f"""s_waitcnt vmcnt(0)
s_mov_b32 s80, 0
L_G_chk:
v_cmp_ne_u32 vcc, s{sNONCE}, v{GG+1}
s_add_u32 s80, s80, 1
s_cmp_ge_u32 s80, {opt.spin_limit}
s_cbranch_scc1 L_G_ok
s_cmp_eq_u64 vcc, 0
s_cbranch_scc1 L_G_ok
s_sleep 2
buffer_load_dwordx2 v[{GG}:{GG+1}], v6, s[{SWS}:{SWS+3}], s82 offen sc1
s_waitcnt vmcnt(0)
s_branch L_G_chk
L_G_ok:
v_sub_f32 v13, 1.0, v{GG}
v_cvt_pk_bf16_f32 v13, v13, v13
v_and_b32 v13, 0xffff0000, v13""")
    e("s_waitcnt lgkmcnt(0)")
    for k in range(3):
        for i in range(0, 20, 2):
            e(f"v_pk_add_f32 v[{OWN+i}:{OWN+i+1}], v[{OWN+i}:{OWN+i+1}], v[{YR+20*k+i}:{YR+20*k+i+1}]")
    for k in range(1, 4):
        for i in range(0, 20, 2):
            e(f"v_pk_add_f32 v[{FR+i}:{FR+i+1}], v[{FR+i}:{FR+i+1}], v[{FR+20*k+i}:{FR+20*k+i+1}]")
    srd(e, SOUT, P_OUT, 5242880)
    e(f"""v_mul_u32_u24 v5, 2560, v2
v_lshlrev_b32 v4, 4, v3
v_add_u32 v5, v5, v4
s_mul_i32 s81, s{sCB}, 320""")
    for dt in range(5):
        T = 16 + 12 * dt
        for nm, src in ((0, XR), (4, DK), (8, B2)):
            e(f"""v_lshlrev_b32 v{T+nm}, 16, v{src+2*dt}
v_and_b32 v{T+nm+1}, 0xffff0000, v{src+2*dt}
v_lshlrev_b32 v{T+nm+2}, 16, v{src+2*dt+1}
v_and_b32 v{T+nm+3}, 0xffff0000, v{src+2*dt+1}""")
        y, f = OWN + 4 * dt, FR + 4 * dt
        for r in range(0, 4, 2):
            e(f"v_pk_fma_f32 v[{y+r}:{y+r+1}], v[{T+r}:{T+r+1}], v[{T+4+r}:{T+4+r+1}], v[{y+r}:{y+r+1}]")
            e(f"v_pk_add_f32 v[{f+r}:{f+r+1}], v[{f+r}:{f+r+1}], v[{T+8+r}:{T+8+r+1}]")
        o_ = 232 + 4 * dt if dt < 5 else 0
        for r in range(4):
            e(f"v_mul_f32 v{T+r}, v{GG}, v{y+r}")
        for r in range(4):
            e(f"v_fma_f32 v{o_+r}, v13, v{f+r}, v{T+r}")
        e(f"buffer_store_dwordx4 {R(o_)}, v5, s[{SOUT}:{SOUT+3}], s81 offen offset:{dt*64} {['', 'sc1', 'nt', 'sc0 sc1'][opt.osc]}")
    stamp(e, 10, 14)
    if opt.dbgtime: e("s_waitcnt vmcnt(0)")
    dbgmax(e, 7)
    e("s_branch L_END")

def gen_gate_loads(e, W=84):
    srd(e, STA, P_GW, 1280)
    srd(e, STB, P_AX, 2621440)
    e(f"""v_lshlrev_b32 v12, 4, v0
v_lshlrev_b32 v13, 2, v0
s_lshl_b32 s80, s2, 3
s_lshl_b32 s81, s{W}, 1
s_add_u32 s80, s80, s81
s_mul_i32 s81, s80, 1280
s_add_u32 s82, s81, 1280
buffer_load_dwordx4 v[16:19], v12, s[{STA}:{STA+3}], 0 offen
buffer_load_dword v20, v13, s[{STA}:{STA+3}], 0 offen offset:1024
buffer_load_dwordx4 v[22:25], v12, s[{STB}:{STB+3}], s81 offen
buffer_load_dword v26, v13, s[{STB}:{STB+3}], s81 offen offset:1024
buffer_load_dwordx4 v[28:31], v12, s[{STB}:{STB+3}], s82 offen
buffer_load_dword v32, v13, s[{STB}:{STB+3}], s82 offen offset:1024""")

def gen_gate_compute(e):
    e("v_mov_b32 v40, 0\nv_mov_b32 v41, 0")
    for m in range(5):
        e(f"""v_lshlrev_b32 v36, 16, v{16+m}
v_and_b32 v37, 0xffff0000, v{16+m}""")
        for row in range(2):
            x = 22 + 6 * row + m
            e(f"""v_lshlrev_b32 v38, 16, v{x}
v_and_b32 v39, 0xffff0000, v{x}
v_mul_f32 v38, v38, v36
v_mul_f32 v39, v39, v37
v_cvt_pk_bf16_f32 v38, v38, v39
v_lshlrev_b32 v39, 16, v38
v_and_b32 v38, 0xffff0000, v38
v_add_f32 v{40+row}, v{40+row}, v39
v_add_f32 v{40+row}, v{40+row}, v38""")
    for sh in ("row_shr:1", "row_shr:2", "row_shr:4", "row_shr:8", "row_bcast:15 row_mask:0xa", "row_bcast:31 row_mask:0xc"):
        for row in range(2):
            e(f"v_add_f32 v{40+row}, v{40+row}, v{40+row} {sh}")
    e("""v_readlane_b32 s80, v40, 63
v_readlane_b32 s81, v41, 63""")
    e(f"""v_mov_b32 v42, s80
v_mov_b32 v43, s81
v_cmp_eq_u32 vcc, 1, v0
v_cndmask_b32 v42, v42, v43, vcc
v_cvt_pk_bf16_f32 v42, v42, v42
v_and_b32 v42, 0xffff0000, v42
v_mul_f32 v42, 0xbfb8aa3b, v42
v_exp_f32 v42, v42
v_add_f32 v42, 1.0, v42
v_rcp_f32 v42, v42
v_cvt_pk_bf16_f32 v42, v42, v42
v_and_b32 v42, 0xffff0000, v42
v_mov_b32 v43, s{sNONCE}
v_lshlrev_b32 v44, 3, v0
s_lshl_b32 s80, s2, 3
s_lshl_b32 s81, s84, 1
s_add_u32 s80, s80, s81
s_lshl_b32 s80, s80, 3
s_add_u32 s80, s80, {G_OFF}
s_mov_b64 exec, 3
buffer_store_dwordx2 v[42:43], v44, s[{SWS}:{SWS+3}], s80 offen sc0 sc1
s_mov_b64 exec, -1""")

def generate(path):
    e = Emitter()
    hdr = open("gated_mix__ssm_conv_s5__dense_activation_squared_relu__prompt.s.ref").read().split("\n")
    head = [l for l in hdr if l.startswith(";") and "@launch" not in l and "Override" not in l and "grid=ceil" not in l]
    txt = "\n".join(head) + f"\n; @launch grid=(256,1,1) block=(512,1,1) lds={LDS_SIZE}\n"
    txt += '.amdgcn_target "amdgcn-amd-amdhsa--gfx950"\n.text\n'
    txt += f".globl {NAME}\n.p2align 8\n.type {NAME},@function\n{NAME}:\n"
    gen_entry(e)
    gen_consumer(e)
    gen_loader(e)
    gen_p2(e)
    e("L_END:\ns_endpgm\nL_CODE_END:")
    txt += e.text()
    txt += f""".section .rodata,"a"
.p2align 6
.amdhsa_kernel {NAME}
  .amdhsa_next_free_vgpr 256
  .amdhsa_next_free_sgpr 102
  .amdhsa_accum_offset 256
  .amdhsa_group_segment_fixed_size 0
  .amdhsa_kernarg_size 144
  .amdhsa_user_sgpr_count 2
  .amdhsa_user_sgpr_kernarg_segment_ptr 1
  .amdhsa_system_sgpr_workgroup_id_x 1
.end_amdhsa_kernel
"""
    open(path, "w").write(txt)
    print("pads:", e.npad, "lines:", len(e.out))

if __name__ == "__main__":
    opt.check_g = True
    opt.nowait = 0
    opt.nodma = 0
    opt.itstamps = 0
    opt.l2pf = 0
    opt.gw2 = 0
    opt.thr = 0
    opt.fswn = 5
    opt.osc = 0
    opt.nosc1 = 0
    opt.nw = 5
    opt.na = 3
    opt.fsw = 2
    opt.gall = 0
    opt.udelay = 0
    opt.dbgtime = 0
    opt.sorder = 1
    opt.sshelp = 1
    opt.ststamps = 0
    opt.rot = 0
    opt.sprio = 0
    opt.eprio = 3
    opt.wearly = 0
    opt.ldslate = 0
    opt.prio = 1
    opt.cpf = 1
    opt.wdelay = 0
    opt.noprep = 0
    opt.nost = 0
    opt.map2 = 1
    opt.gw = 0
    opt.gloop = 1
    opt.ssleep = 8
    opt.l2pf2 = 0
    for a in sys.argv[2:]:
        k, v = a.split("=")
        setattr(opt, k, int(v))
    if opt.nw != 5 or opt.na != 3: set_nw(opt.nw, opt.na)
    generate(sys.argv[1])
```

```python
import sys
from emit import Emitter

NAME = "gated_mix__ssm_conv_s5__dense_activation_squared_relu__prompt_kernel"

ACT_OFF   = 0
WF_OFF    = 0xC00000
G_OFF     = 0x1000000
AG_OFF    = 0x1010000
WFLAG_OFF = 0x1040000
TFLAG_OFF = 0x1050000
STAMP_OFF = 0x1100000
SLOT = 40960
LDS_PREP = 122880
LDS_TAB  = 143360
LDS_LX   = LDS_TAB + 8448
LDS_FLAG = LDS_LX + 768
LDS_DUMMY = LDS_FLAG + 64
LDS_F    = 0
LDS_Y    = 81920
LDS_SIZE = 163840

SX, SWA, SWB, SWS, STA, STB, SOUT = 4, 8, 12, 16, 20, 24, 28
P_AX, P_LRE, P_LIM, P_BRE, P_BIM, P_CRE, P_CIM, P_LDT, P_DSK, P_BX, P_W1, P_B1, P_W2, P_B2, P_GW, P_OUT, P_DBG, P_WS = [36 + 2 * i for i in range(18)]
sWAVE, sRB, sCOL, sJ, sRB2, sCB, sNONCE, sISU = 72, 73, 74, 75, 76, 77, 78, 79
SG, sGo, sGinc = 28, 83, 85

class Opt:
    phase2 = True
    stamps = False
    spin_limit = 200000
opt = Opt()

def srd(e, s, ptr, size):
    e(f"s_mov_b32 s{s}, s{ptr}\ns_mov_b32 s{s+1}, s{ptr+1}\ns_mov_b32 s{s+2}, {size}\ns_mov_b32 s{s+3}, 0x20000")

def R(b, n=4):
    return f"v[{b}:{b+n-1}]"

_stamp_id = [0]
def stamp(e, idx, tmpv=14):
    if not opt.stamps: return
    e(f"""s_memrealtime s[100:101]
s_lshl_b32 s98, s2, 3
s_add_u32 s98, s98, s{sWAVE}
s_lshl_b32 s98, s98, 6
s_add_u32 s98, s98, {STAMP_OFF + 4*idx}
s_waitcnt lgkmcnt(0)
v_mov_b32 v{tmpv}, s100
v_mov_b32 v{tmpv+1}, 0
s_mov_b64 s[96:97], exec
s_mov_b64 exec, 1
buffer_store_dword v{tmpv}, v{tmpv+1}, s[{SWS}:{SWS+3}], s98 offen
s_mov_b64 exec, s[96:97]""")

def stamp_clk(e, idx, tmpv=14):
    if not opt.stamps: return
    e(f"""s_memtime s[100:101]
s_lshl_b32 s98, s2, 3
s_add_u32 s98, s98, s{sWAVE}
s_lshl_b32 s98, s98, 6
s_add_u32 s98, s98, {STAMP_OFF + 4*idx}
s_waitcnt lgkmcnt(0)
v_mov_b32 v{tmpv}, s100
v_mov_b32 v{tmpv+1}, 0
s_mov_b64 s[96:97], exec
s_mov_b64 exec, 1
buffer_store_dword v{tmpv}, v{tmpv+1}, s[{SWS}:{SWS+3}], s98 offen
s_mov_b64 exec, s[96:97]""")

class Cap:
    def __init__(self): self.l = []
    def __call__(self, s):
        for x in s.split("\n"):
            if x.strip(): self.l.append(x.strip())

def merge(e, main_groups, aux):
    n = len(main_groups); k = 0
    per = -(-len(aux) // n) if n else 0
    for g in main_groups:
        for x in g: e(x)
        for x in aux[k:k + per]: e(x)
        k += per
    for x in aux[k:]: e(x)

_dm = [0]
def dbgmax(e, idx, neg=False, tv=14):
    if not opt.dbgtime: return
    _dm[0] += 1; n = _dm[0]
    e(f"""s_and_b32 s100, s{sWAVE}, 3
s_cmp_eq_u32 s100, 0
s_cbranch_scc0 L_dm{n}
s_cmp_eq_u32 s2, 0
s_cselect_b32 s101, {4*idx}, {4*(idx+8)}
s_cbranch_scc1 L_dmg{n}
s_cmp_eq_u32 s2, 255
s_cbranch_scc0 L_dm{n}
L_dmg{n}:
v_mov_b32 v{tv+1}, s101
s_memrealtime s[100:101]
s_mov_b32 s96, s{P_DBG}
s_mov_b32 s97, s{P_DBG+1}
s_mov_b32 s98, 256
s_mov_b32 s99, 0x20000
s_waitcnt lgkmcnt(0)
v_mov_b32 v{tv}, s100
s_mov_b64 exec, 1
buffer_store_dword v{tv}, v{tv+1}, s[96:99], 0 offen
s_mov_b64 exec, -1
L_dm{n}:""")

def interleave(e, A, B, lead=1):
    bi = 0
    for i, a in enumerate(A):
        e(a)
        if i >= lead - 1 and bi < len(B):
            e(B[bi]); bi += 1
    while bi < len(B):
        e(B[bi]); bi += 1

def spin_nonce(e, tag, vtmp):
    srd(e, STA, P_DBG, 256)
    e(f"""v_mov_b32 v{vtmp+1}, 0
s_mov_b32 s80, 0
L_nonce_{tag}:
buffer_load_dword v{vtmp}, v{vtmp+1}, s[{STA}:{STA+3}], 0 offen sc1
s_add_u32 s80, s80, 1
s_waitcnt vmcnt(0)
v_readfirstlane_b32 s{sNONCE}, v{vtmp}
s_cmp_ge_u32 s80, {opt.spin_limit}
s_cbranch_scc1 L_nonce_done_{tag}
s_cmp_eq_u32 s{sNONCE}, 0
s_cbranch_scc0 L_nonce_done_{tag}
s_sleep 1
s_branch L_nonce_{tag}
L_nonce_done_{tag}:""")

def poll_flags(e, tag, vaddr, vtmp, soff_sgpr, nlanes_mask_lo, mask_hi=0, sleep=1):
    e(f"""s_mov_b32 s80, 0
s_mov_b32 s82, {nlanes_mask_lo}
s_mov_b32 s83, {mask_hi}
L_poll_{tag}:
buffer_load_dword v{vtmp}, v{vaddr}, s[{SWS}:{SWS+3}], s{soff_sgpr} offen sc1
s_add_u32 s80, s80, 1
s_waitcnt vmcnt(0)
v_cmp_ne_u32 vcc, s{sNONCE}, v{vtmp}
s_cmp_ge_u32 s80, {opt.spin_limit}
s_cbranch_scc1 L_poll_done_{tag}
s_and_b64 vcc, vcc, s[82:83]
s_cbranch_scc0 L_poll_done_{tag}
s_sleep {sleep}
s_branch L_poll_{tag}
L_poll_done_{tag}:""")

def gen_entry(e):
    if opt.map2 == 1:
        MAP2 = f"""s_lshr_b32 s82, s80, 1
s_lshl_b32 s82, s82, 3
s_lshr_b32 s83, s81, 2
s_add_u32 s{sRB2}, s82, s83
s_and_b32 s82, s80, 1
s_lshl_b32 s82, s82, 2
s_and_b32 s83, s81, 3
s_add_u32 s{sCB}, s82, s83"""
    else:
        MAP2 = f"""s_lshl_b32 s82, s80, 2
s_and_b32 s83, s81, 3
s_add_u32 s{sRB2}, s82, s83
s_lshr_b32 s{sCB}, s81, 2"""
    e(f"""s_cmp_ge_u32 s2, 256
s_cbranch_scc1 L_END
s_load_dwordx16 s[36:51], s[0:1], 0
s_load_dwordx16 s[52:67], s[0:1], 64
s_load_dwordx4 s[68:71], s[0:1], 128
v_lshrrev_b32 v1, 6, v0
v_and_b32 v0, 63, v0
v_readfirstlane_b32 s{sWAVE}, v1
s_and_b32 s80, s2, 7
s_lshr_b32 s81, s2, 3
s_and_b32 s82, s80, 1
s_lshl_b32 s82, s82, 3
s_and_b32 s83, s81, 7
s_add_u32 s{sRB}, s82, s83
s_lshr_b32 s82, s80, 1
s_lshl_b32 s82, s82, 2
s_lshr_b32 s83, s81, 3
s_add_u32 s{sCOL}, s82, s83
{MAP2}
s_sub_u32 s82, s{sCOL}, 9
s_cmp_ge_u32 s{sCOL}, 9
s_cselect_b32 s{sISU}, 1, 0
s_cselect_b32 s{sJ}, s82, s{sCOL}
s_waitcnt lgkmcnt(0)""")
    srd(e, SWS, P_WS, 0x10000000)
    srd(e, SX, P_AX, 2621440)
    stamp(e, 12, 14)
    e(f"""s_cmp_eq_u32 s2, 0
s_cbranch_scc0 L_no_nonce
s_cmp_eq_u32 s{sWAVE}, 4
s_cbranch_scc0 L_no_nonce
s_memrealtime s[80:81]""")
    srd(e, STA, P_DBG, 256)
    e(f"""s_waitcnt lgkmcnt(0)
s_or_b32 s80, s80, 1
v_mov_b32 v2, s80
v_mov_b32 v3, 0
s_mov_b64 exec, 1
buffer_store_dword v2, v3, s[{STA}:{STA+3}], 0 offen sc0 sc1
s_mov_b64 exec, -1
L_no_nonce:
s_cmp_ge_u32 s{sWAVE}, 4
s_cbranch_scc1 L_LOADER""")

def cmul(e, d, a, b, t):
    e(f"""v_mul_f32 v{d}, v{a}, v{b}
v_mul_f32 v{d+1}, v{a}, v{b+1}
v_fma_f32 v{d}, -v{a+1}, v{b+1}, v{d}
v_fma_f32 v{d+1}, v{a+1}, v{b}, v{d+1}""")

def csq(e, d, a):
    cmul(e, d, a, a, None)

def cfma(e, d, a, b, c):
    e(f"""v_fma_f32 v{d}, v{a}, v{b}, v{c}
v_fma_f32 v{d+1}, v{a}, v{b+1}, v{c+1}
v_fma_f32 v{d}, -v{a+1}, v{b+1}, v{d}
v_fma_f32 v{d+1}, v{a+1}, v{b}, v{d+1}""")

def gen_loader(e):
    e("L_LOADER:")
    vXo = 2; vWo = 4
    sXo = 86
    sWo = 90
    sLX, sLW, sWinc = 32, 33, 34
    def issue_x(s):
        slot = (s % 3) * SLOT
        for m in range(4):
            e(f"s_add_u32 m0, s{sLX}, {slot + m*1024}")
            e(f"buffer_load_dwordx4 v{vXo}, s[{SX}:{SX+3}], s{sXo+m} offen lds")
            e(f"s_add_u32 s{sXo+m}, s{sXo+m}, 128")
    def issue_w(s):
        slot = (s % 3) * SLOT
        for m in range(6):
            S = SWB if (m >> 1) == 1 else SWA
            e(f"s_add_u32 m0, s{sLW}, {slot + m*1024}")
            e(f"buffer_load_dwordx4 v{vWo+m}, s[{S}:{S+3}], s{sWo+m} offen lds")
            e(f"s_add_u32 s{sWo+m}, s{sWo+m}, s{sWinc}")
    def issue(s):
        issue_x(s); issue_w(s)
    e(f"""s_sub_u32 s84, s{sWAVE}, 4
v_lshrrev_b32 v10, 3, v0
v_and_b32 v11, 7, v0
v_xor_b32 v11, v11, v10
v_lshlrev_b32 v11, 4, v11
s_lshl_b32 s{sLX}, s84, 12
s_mul_i32 s{sLW}, s84, 6144
s_add_u32 s{sLW}, s{sLW}, 16384
s_lshl_b32 s85, s{sRB}, 7""")
    e(f"""s_mul_i32 s80, s{sJ}, 96
s_lshl_b32 s81, s84, 5
s_add_u32 s80, s80, s81
v_and_b32 v12, 31, v0
v_add_u32 v12, s80, v12
v_min_u32 v12, 639, v12
v_lshlrev_b32 v12, 1, v12""")
    srd(e, STA, P_LRE, 1280)
    e(f"buffer_load_ushort v20, v12, s[{STA}:{STA+3}], 0 offen")
    srd(e, STB, P_LIM, 1280)
    e(f"buffer_load_ushort v21, v12, s[{STB}:{STB+3}], 0 offen")
    srd(e, STA, P_LDT, 1280)
    e(f"buffer_load_ushort v22, v12, s[{STA}:{STA+3}], 0 offen")
    e(f"""s_cmp_eq_u32 s{sISU}, 1
s_cbranch_scc1 L_LD_U""")
    e(f"""v_mul_u32_u24 v{vXo}, 1280, v10
v_add_u32 v{vXo}, v{vXo}, v11
s_lshl_b32 s80, s84, 5
s_add_u32 s80, s80, s85""")
    for m in range(4):
        e(f"s_add_u32 s81, s80, {16*(m&1) + 8*(m>>1)}\ns_mul_i32 s{sXo+m}, s81, 1280")
    issue_x(0)
    srd(e, SWA, P_W1, 2211840)
    srd(e, SWB, P_W1, 2211840)
    e(f"""s_mul_i32 s80, s84, {16*3456}
s_mul_i32 s81, s{sJ}, 384
s_add_u32 s80, s80, s81""")
    for m in range(6):
        e(f"s_mov_b32 s{sWo+m}, s80")
    e(f"s_mov_b32 s{sWinc}, {64*3456}")
    for m in range(6):
        e(f"""v_add_u32 v12, {64*m}, v0
v_mul_u32_u24 v13, 2731, v12
v_lshrrev_b32 v13, 16, v13
v_mul_u32_u24 v14, 24, v13
v_sub_u32 v14, v12, v14
v_bfe_u32 v15, v13, 1, 1
v_lshlrev_b32 v15, 1, v15
v_bfe_u32 v16, v13, 3, 1
v_lshlrev_b32 v16, 2, v16
v_or_b32 v15, v15, v16
v_xor_b32 v14, v14, v15
v_lshlrev_b32 v14, 4, v14
v_mul_u32_u24 v13, 3456, v13
v_add_u32 v{vWo+m}, v13, v14""")
    e("s_branch L_LD_GO")
    e("L_LD_U:")
    e(f"""v_lshrrev_b32 v12, 5, v0
v_lshlrev_b32 v12, 4, v12
v_bfe_u32 v13, v0, 3, 1
v_lshlrev_b32 v13, 3, v13
v_add_u32 v12, v12, v13
v_bfe_u32 v13, v0, 4, 1
v_add_u32 v12, v12, v13
v_mul_u32_u24 v{vXo}, 1280, v12
v_add_u32 v{vXo}, v{vXo}, v11
s_lshr_b32 s80, s84, 1
s_lshl_b32 s80, s80, 6
s_and_b32 s81, s84, 1
s_lshl_b32 s82, s81, 2
s_add_u32 s80, s80, s82
s_add_u32 s80, s80, s85""")
    for m in range(4):
        e(f"s_add_u32 s82, s80, {32*(m&1) + 2*(m>>1)}\ns_mul_i32 s{sXo+m}, s82, 1280")
    issue_x(0)
    e(f"""v_mul_u32_u24 v12, 1280, v10
v_add_u32 v12, v12, v11""")
    for m in range(6):
        e(f"v_mov_b32 v{vWo+m}, v12")
    e(f"""s_mul_i32 s80, s{sJ}, 96
s_lshr_b32 s82, s84, 1
s_mul_i32 s82, s82, 48
s_add_u32 s80, s80, s82
s_mul_i32 s83, s81, 3""")
    for m in range(6):
        e(f"""s_add_u32 s82, s83, {m>>1}
s_lshr_b32 s82, s82, 1
s_lshl_b32 s82, s82, 4
s_add_u32 s82, s82, s80
s_add_u32 s82, s82, {8*(m&1)}
s_min_u32 s82, s82, 632
s_mul_i32 s{sWo+m}, s82, 1280""")
    e(f"s_mov_b32 s{sWinc}, 128")
    e(f"""s_cmp_eq_u32 s81, 0
s_cselect_b32 s{SWA}, s{P_BRE}, s{P_BIM}
s_cselect_b32 s{SWA+1}, s{P_BRE+1}, s{P_BIM+1}
s_cselect_b32 s{SWB}, s{P_BIM}, s{P_BRE}
s_cselect_b32 s{SWB+1}, s{P_BIM+1}, s{P_BRE+1}
s_mov_b32 s{SWA+2}, 819200
s_mov_b32 s{SWA+3}, 0x20000
s_mov_b32 s{SWB+2}, 819200
s_mov_b32 s{SWB+3}, 0x20000""")
    e("L_LD_GO:")
    def groups(s_):
        slot = (s_ % 3) * SLOT
        G = []
        for m in range(4):
            G.append([f"s_add_u32 m0, s{sLX}, {slot + m*1024}",
                      f"buffer_load_dwordx4 v{vXo}, s[{SX}:{SX+3}], s{sXo+m} offen lds",
                      f"s_add_u32 s{sXo+m}, s{sXo+m}, 128"])
        for m in range(6):
            S = SWB if (m >> 1) == 1 else SWA
            G.append([f"s_add_u32 m0, s{sLW}, {slot + m*1024}",
                      f"buffer_load_dwordx4 v{vWo+m}, s[{S}:{S+3}], s{sWo+m} offen lds",
                      f"s_add_u32 s{sWo+m}, s{sWo+m}, s{sWinc}"])
        return G
    def gath():
        if opt.gall:
            e(f"buffer_load_dword v18, v17, s[{SWS}:{SWS+3}], 0 offen")
        else:
            e(f"buffer_load_dword v18, v17, s[{SG}:{SG+3}], s{sGo} offen\ns_add_u32 s{sGo}, s{sGo}, s{sGinc}")
    issue_w(0)
    if opt.gall: e("v_mov_b32 v17, 0x10000000")
    else: gen_gather_setup(e, 84, 'L', 3)
    issue(1)
    e("s_waitcnt vmcnt(10)\ns_barrier")
    issue(2); gath()
    e("s_waitcnt vmcnt(11)\ns_barrier")
    c = Cap(); gen_lambda_table(c, 0)
    merge(e, groups(3), c.l); gath()
    e("s_waitcnt vmcnt(12)\ns_barrier")
    e(f"""v_and_b32 v62, 31, v0
s_lshl_b32 s80, s84, 5
v_add_u32 v62, s80, v62
v_lshlrev_b32 v62, 3, v62
s_mov_b32 s81, {LDS_TAB}
s_cmp_eq_u32 s84, 3
s_cselect_b32 s80, {LDS_DUMMY - 768}, s81
v_add_u32 v62, s80, v62""")
    c = Cap(); gen_lambda_table(c, 1)
    merge(e, groups(4), c.l); gath()
    for it, (st_, g_) in enumerate(((5, 1), (6, 1), (7, 1), (8, 1))):
        e("s_waitcnt vmcnt(12)\ns_barrier")
        issue(st_)
        if g_: gath()
        if it == 1:
            srd(e, STA, P_DBG, 256)
            e(f"v_mov_b32 v12, 0\nbuffer_load_dword v99, v12, s[{STA}:{STA+3}], 0 offen")
    e("s_waitcnt vmcnt(12)\ns_barrier")
    e(f"""v_readfirstlane_b32 s{sNONCE}, v99
s_cmp_eq_u32 s{sNONCE}, 0
s_cbranch_scc0 L_LD_nonce_ok""")
    spin_nonce(e, 'L', 10)
    e("L_LD_nonce_ok:")
    e(f"""s_mul_i32 s85, s84, 14
s_cmp_eq_u32 s84, 3
s_cselect_b32 s80, 1, 0
s_sub_u32 s85, s85, s80
v_lshlrev_b32 v12, 2, v0
s_lshl_b32 s81, s{sCB}, 9
s_lshl_b32 s82, s85, 2
s_add_u32 s81, s81, s82
s_add_u32 s35, s81, {WFLAG_OFF}
s_mul_i32 s80, s84, 10
s_add_u32 s80, s80, {54 - 16}
s_sub_u32 s80, s80, s85
s_lshl_b32 s80, s80, 2
v_add_u32 v14, s80, v12
v_cmp_le_u32 vcc, 16, v0
v_cndmask_b32 v12, v12, v14, vcc
v_lshlrev_b32 v1, 4, v0
buffer_load_dword v13, v12, s[{SWS}:{SWS+3}], s35 offen sc1""")
    issue(9)
    e("s_waitcnt vmcnt(10)\ns_barrier")
    e(f"""s_mov_b32 s86, s84
s_mul_i32 s87, s86, 20480
s_mul_i32 s84, s{sCB}, 94
s_add_u32 s84, s84, s85
s_mul_i32 s84, s84, 5120
s_add_u32 s84, s84, {WF_OFF}
s_cmp_ge_u32 s86, 2
s_cselect_b32 s89, 13, 14""")
    rot_setup(e, 89, False)
    ld_w, ld_a, queue = gen_p2_stream(e, 'x', 14)
    e(f"""v_cmp_ne_u32 vcc, s{sNONCE}, v13
s_nop 1
s_and_b32 s80, vcc_lo, 0x03ff3fff
s_cbranch_scc1 L_LD_wlate""")
    if opt.gw2:
        w_gathers(e)
    if opt.gw2 != 2:
        ld_w(0); ld_w(1)
    e(f"s_waitcnt vmcnt({(0 if opt.gw2 == 2 else 10) + (3 if opt.gw2 else 0)})\ns_barrier")
    for s_ in range(0 if opt.gw2 == 2 else 2, NW): ld_w(s_)
    e("s_branch L_LD_wdone\nL_LD_wlate:\ns_waitcnt vmcnt(0)\ns_barrier")
    poll_flags(e, 'FW', 12, 13, 35, 0x03ff3fff)
    for s_ in range(NW): ld_w(s_)
    e("L_LD_wdone:")
    stamp(e, 1, 14)
    gen_gate_loads(e, 86)
    lds_wait_ge(e, 'R', 24, 4, 10)
    if opt.wdelay or opt.udelay:
        if not opt.udelay: e(f"s_cmp_eq_u32 s{sISU}, 1\ns_cbranch_scc1 L_LD_nodelay")
        if not opt.wdelay: e(f"s_cmp_eq_u32 s{sISU}, 0\ns_cbranch_scc1 L_LD_nodelay")
        lds_wait_ge(e, 'W', 16, 4, 10)
        e("L_LD_nodelay:")
    stamp(e, 7, 14)
    w_lds(e, NLF, 87, throttle=('A' if opt.thr >= 0 else None))
    lds_count(e, 28, 10)
    if opt.sshelp:
        e(f"s_cmp_eq_u32 s{sISU}, 1\ns_cbranch_scc0 L_NOHELP")
        e(f"""s_mul_i32 s80, s86, 10
s_add_u32 s80, s80, {54 + NW}
s_mul_i32 s81, s{sCB}, 94
s_add_u32 s80, s80, s81
s_mul_i32 s80, s80, 5120
s_add_u32 s80, s80, {WF_OFF}
s_mul_i32 s81, s86, 15360
s_add_u32 s81, s81, {LDS_Y}""")
        for i in range(NLS):
            if opt.thr >= 0: e(f"s_waitcnt vmcnt({opt.thr})")
            for dt in range(5):
                e(f"""s_add_u32 m0, s81, {i*5120 + dt*1024}
buffer_load_dwordx4 v1, s[{SWS}:{SWS+3}], s80 offen sc1 lds
s_add_u32 s80, s80, 1024""")
        e("L_NOHELP:")
    stamp(e, 2, 14)

NLF, NLS = 4, 3
def w_prefetch(e, nsteps, NL, lds_base_sgpr, do_lds=True, rng=None):
    nsh = 8 if opt.map2 == 1 else 4
    per = -(-nsteps * 40 // nsh)
    if opt.gw: l2_prefetch(e, 84, nsteps * 40, nsh, f"s{sRB2}", nsh - 1, -(-per // 64))
    ld_w, ld_a, queue = gen_p2_stream(e, 'x', nsteps)
    for s_ in (range(NW) if rng is None else rng): ld_w(s_)
    if do_lds: w_lds(e, NL, lds_base_sgpr)

def w_gathers(e):
    nsh = 8 if opt.map2 == 1 else 4
    l2_prefetch(e, 84, 14 * 40, nsh, f"s{sRB2}", nsh - 1, 2 if nsh == 8 else 2)
    e(f"""s_mul_i32 s88, s86, 10
s_add_u32 s88, s88, 54
s_mul_i32 s81, s{sCB}, 94
s_add_u32 s88, s88, s81
s_mul_i32 s88, s88, 5120
s_add_u32 s88, s88, {WF_OFF}""")
    l2_prefetch(e, 88, 10 * 40, nsh, f"s{sRB2}", nsh - 1, 1)

def w_lds(e, NL, lds_base_sgpr, queue=None, throttle=None):
    for i in range(NL):
        if throttle is not None:
            e(f"s_cmp_eq_u32 s{sISU}, 1\ns_cbranch_scc0 L_thr_{throttle}{i}\ns_waitcnt vmcnt({opt.thr})\nL_thr_{throttle}{i}:")
        for dt in range(5):
            e(f"""s_add_u32 m0, s{lds_base_sgpr}, {i*5120 + dt*1024}
buffer_load_dwordx4 v1, s[{SWS}:{SWS+3}], s84 offen sc1 lds
s_add_u32 s84, s84, 1024""")
            if queue is not None: queue.append(('l', NW + i))
        wrap_w(e)

def ffn_w_prefetch(e):
    e(f"""s_mov_b32 s86, s84
s_mul_i32 s87, s86, 20480
s_mul_i32 s84, s{sCB}, 94
s_add_u32 s84, s84, s85
s_mul_i32 s84, s84, 5120
s_add_u32 s84, s84, {WF_OFF}
s_cmp_ge_u32 s86, 2
s_cselect_b32 s89, 13, 14""")
    rot_setup(e, 89, False)
    w_prefetch(e, 14, NLF, 87, do_lds=not opt.ldslate)
    if opt.sshelp:
        e(f"""s_cmp_eq_u32 s{sISU}, 1
s_cbranch_scc0 L_NOHELP
s_mul_i32 s80, s86, 10
s_add_u32 s80, s80, 54
s_lshl_b32 s80, s80, 2
s_lshl_b32 s81, s{sCB}, 9
s_add_u32 s80, s80, s81
s_add_u32 s88, s80, {WFLAG_OFF}
v_lshlrev_b32 v12, 2, v0""")
        poll_flags(e, 'HW', 12, 13, 88, 0x3ff)
        e(f"""s_mul_i32 s80, s86, 10
s_add_u32 s80, s80, {54 + NW}
s_mul_i32 s81, s{sCB}, 94
s_add_u32 s80, s80, s81
s_mul_i32 s80, s80, 5120
s_add_u32 s80, s80, {WF_OFF}
s_mul_i32 s81, s86, 15360
s_add_u32 s81, s81, {LDS_Y}""")
        for i in range(NLS):
            for dt in range(5):
                e(f"""s_add_u32 m0, s81, {i*5120 + dt*1024}
buffer_load_dwordx4 v1, s[{SWS}:{SWS+3}], s80 offen sc1 lds
s_add_u32 s80, s80, 1024""")
        e("L_NOHELP:")

def l2_prefetch(e, sbase, nlines, nshare, share_sgpr, share_mask, ninstr, vtmp=12, vdst=15):
    per = -(-nlines // nshare)
    e(f"""s_and_b32 s80, {share_sgpr}, {share_mask}
s_mul_i32 s80, s80, {per*128}
s_add_u32 s80, s80, s{sbase}
v_lshlrev_b32 v{vtmp}, 7, v0""")
    for i in range(ninstr):
        if i * 64 < per and per - i * 64 < 64:
            e(f"v_min_u32 v{vtmp}, {(per - i*64 - 1)*128}, v{vtmp}")
        e(f"buffer_load_dword v{vdst}, v{vtmp}, s[{SWS}:{SWS+3}], s80 offen sc1")
        if i * 64 + 64 < per: e(f"s_add_u32 s80, s80, 8192")

def gen_gather_setup(e, W=84, T='', start=1):
    e(f"""s_lshr_b32 s80, s2, 3
s_and_b32 s81, s80, 7
s_lshr_b32 s80, s80, 3
v_mov_b32 v17, 0x10000000
s_mov_b32 s{sGo}, {128*start}
s_mov_b32 s{sGinc}, 128
s_mov_b32 s{SG}, s{SX}
s_mov_b32 s{SG+1}, s{SX+1}
s_mov_b32 s{SG+2}, 2621440
s_mov_b32 s{SG+3}, 0x20000
s_cmp_eq_u32 s{W}, 0
s_cbranch_scc0 L_GS_1{T}
s_lshl_b32 s80, s80, 5
s_lshl_b32 s82, s{sRB}, 7
s_add_u32 s80, s80, s82
v_add_u32 v16, s80, v0
v_mul_u32_u24 v16, 1280, v16
v_cmp_gt_u32 vcc, 32, v0
v_cndmask_b32 v17, v17, v16, vcc
s_branch L_GS_done{T}
L_GS_1{T}:
s_cmp_ge_u32 s{W}, 3
s_cbranch_scc1 L_GS_done{T}
s_cmp_eq_u32 s{sISU}, 1
s_cbranch_scc1 L_GS_U{T}
s_cmp_eq_u32 s{W}, 1
s_cbranch_scc0 L_GS_done{T}
s_mov_b32 s{SG}, s{P_W1}
s_mov_b32 s{SG+1}, s{P_W1+1}
s_mov_b32 s{SG+2}, 2211840
s_mul_i32 s{sGo}, s{sJ}, 384
s_add_u32 s{sGo}, s{sGo}, {64*3456*start}
s_mov_b32 s{sGinc}, {64*3456}
v_mul_u32_u24 v16, 43, v0
v_lshrrev_b32 v16, 7, v16
v_mul_u32_u24 v15, 3, v16
v_sub_u32 v15, v0, v15
s_lshl_b32 s81, s81, 3
v_add_u32 v16, s81, v16
v_mul_u32_u24 v16, 3456, v16
v_lshlrev_b32 v15, 7, v15
v_add_u32 v16, v16, v15
v_cmp_gt_u32 vcc, 24, v0
v_cndmask_b32 v17, v17, v16, vcc
s_branch L_GS_done{T}
L_GS_U{T}:
s_cmp_eq_u32 s{W}, 1
s_cselect_b32 s{SG}, s{P_BRE}, s{P_BIM}
s_cselect_b32 s{SG+1}, s{P_BRE+1}, s{P_BIM+1}
s_mov_b32 s{SG+2}, 819200
s_mul_i32 s80, s{sJ}, 96
s_mul_i32 s81, s81, 12
s_add_u32 s80, s80, s81
v_add_u32 v16, s80, v0
v_min_u32 v16, 639, v16
v_mul_u32_u24 v16, 1280, v16
v_cmp_gt_u32 vcc, 12, v0
v_cndmask_b32 v17, v17, v16, vcc
L_GS_done{T}:""")
    if not opt.gloop: e("v_mov_b32 v17, 0x10000000")

def gen_unit_ids(e, W):
    e(f"""s_cmp_ge_u32 s2, 108
s_cbranch_scc1 L_UID_C
s_lshr_b32 s3, s2, 1
s_and_b32 s35, s2, 1
s_lshl_b32 s35, s35, 2
s_add_u32 s35, s35, s{W}
s_branch L_UID_done
L_UID_C:
s_sub_u32 s80, s2, 108
s_and_b32 s35, s80, 7
s_lshr_b32 s80, s80, 3
s_lshl_b32 s3, s80, 2
s_add_u32 s3, s3, s{W}
s_add_u32 s3, s3, 54
L_UID_done:""")

def gen_prep_gather(e, W=84):
    e(f"""s_cmp_ge_u32 s3, 54
s_cbranch_scc1 L_PG_C""")
    srd(e, STA, P_W2, 2211840)
    e(f"""v_mul_u32_u24 v10, 52, v0
v_lshrrev_b32 v10, 8, v10
v_mul_u32_u24 v11, 5, v10
v_sub_u32 v11, v0, v11
s_lshl_b32 s80, s{W}, 3
v_add_u32 v10, s80, v10
v_mul_u32_u24 v10, 1280, v10
v_lshlrev_b32 v11, 7, v11
v_add_u32 v10, v10, v11
v_mov_b32 v11, 0x10000000
v_cmp_gt_u32 vcc, 40, v0
v_cndmask_b32 v10, v11, v10, vcc
s_mul_i32 s80, s3, {32*1280}
s_and_b32 s81, s2, 1
s_mul_i32 s81, s81, 640
s_add_u32 s80, s80, s81
buffer_load_dword v18, v10, s[{STA}:{STA+3}], s80 offen
buffer_load_dword v18, v11, s[{STA}:{STA+3}], s80 offen
s_branch L_PG_done
L_PG_C:""")
    srd(e, STA, P_CRE, 819200)
    srd(e, STB, P_CIM, 819200)
    e(f"""s_mul_i32 s81, s35, 80
s_mul_i32 s80, s{W}, 20
s_add_u32 s81, s81, s80
v_add_u32 v10, s81, v0
v_mul_u32_u24 v10, 1280, v10
v_mov_b32 v11, 0x10000000
v_cmp_gt_u32 vcc, 20, v0
v_cndmask_b32 v10, v11, v10, vcc
s_sub_u32 s80, s3, 54
s_lshr_b32 s80, s80, 2
s_min_u32 s80, s80, 9
s_lshl_b32 s80, s80, 7
buffer_load_dword v18, v10, s[{STA}:{STA+3}], s80 offen
buffer_load_dword v18, v10, s[{STB}:{STB+3}], s80 offen
L_PG_done:""")

def gen_lambda_table(e, part):
    L1, L2, L4, L8, L16, L32, L48, L64, L128, L256, L512, L1024, C2 = 30, 32, 34, 36, 38, 40, 42, 44, 46, 48, 50, 52, 54
    if part == 0:
        e(f"""v_lshlrev_b32 v20, 16, v20
v_lshlrev_b32 v21, 16, v21
v_lshlrev_b32 v22, 16, v22
v_mul_f32 v23, 0x3fb8aa3b, v22
v_exp_f32 v23, v23
s_nop 0
v_cvt_pk_bf16_f32 v23, v23, v23
v_and_b32 v23, 0xffff0000, v23
v_mul_f32 v24, v23, v20
v_mul_f32 v25, v23, v21
v_mul_f32 v24, 0x3fb8aa3b, v24
v_exp_f32 v24, v24
v_mul_f32 v25, 0.15915494, v25
v_fract_f32 v25, v25
v_sin_f32 v26, v25
v_cos_f32 v27, v25
s_nop 0
v_mul_f32 v31, v24, v26
v_mul_f32 v30, v24, v27""")
        csq(e, L2, L1); csq(e, L4, L2); csq(e, L8, L4); csq(e, L16, L8); csq(e, L32, L16)
        cmul(e, L48, L32, L16, None)
        csq(e, L64, L32); csq(e, L128, L64)
        return
    csq(e, L256, L128); csq(e, L512, L256); csq(e, L1024, L512)
    e(f"""v_add_f32 v56, -1.0, v30
v_mul_f32 v57, v20, v20
v_fma_f32 v57, v21, v21, v57
v_rcp_f32 v57, v57
v_mul_f32 v58, v56, v20
v_fma_f32 v58, v31, v21, v58
v_mul_f32 v59, v31, v20
v_fma_f32 v59, -v56, v21, v59
v_add_f32 v57, v57, v57
v_mul_f32 v{C2}, v58, v57
v_mul_f32 v{C2+1}, v59, v57
v_mov_b32 v60, 1.0
v_mov_b32 v61, 0""")
    ents = [L1, L8, 60, L16, L32, L48, L64, L128, L512, L1024, C2]
    for i, r in enumerate(ents):
        e(f"ds_write_b64 v62, v[{r}:{r+1}] offset:{i*768}")
    e("s_waitcnt lgkmcnt(0)")

ACC = 64
SETA, SETB = 160, 200
def acc_ffn(ft, tt): return ACC + (ft * 4 + tt) * 4
def acc_u(i, tp): return ACC + (i * 6 + tp) * 4

def reads(kind, st, ks):
    L = []
    vX = 2 + ks
    if kind == 'F':
        xs = [f"ds_read_b128 {R(st + 4*t)}, v{vX} offset:{t*2048}" for t in range(4)]
        ws = []
        for ft in range(6):
            for h in range(2):
                ws.append(f"ds_read_b64_tr_b16 v[{st+16+4*ft+2*h}:{st+16+4*ft+2*h+1}], v{4+ft} offset:{ks*12288 + h*1536}")
        L = ws[:2] + xs + ws[2:]
    else:
        vW = 4 + ks
        xs = [f"ds_read_b128 {R(st + 4*t)}, v{vX} offset:{t*2048}" for t in range(4)]
        ws = [f"ds_read_b128 {R(st + 16 + 4*t)}, v{vW} offset:{t*2048}" for t in range(6)]
        L = [ws[0]] + xs + ws[1:]
    return L

def mfmas(kind, st, first=False):
    L = []
    for n in range(6):
        for t in range(4):
            if kind == 'F':
                d = acc_ffn(n, t)
                c = R(16 + 20 + 4*n) if first else R(d)
                L.append(f"v_mfma_f32_16x16x32_bf16 {R(d)}, {R(st+16+4*n)}, {R(st+4*t)}, {c}")
            else:
                d = acc_u(t, n)
                c = "0" if first else R(d)
                L.append(f"v_mfma_f32_16x16x32_bf16 {R(d)}, {R(st+4*t)}, {R(st+16+4*n)}, {c}")
    return L

def gen_prep_issue(e, W=84, D=116):
    e(f"""s_cmp_ge_u32 s3, 54
s_cbranch_scc1 L_PREP_C""")
    srd(e, STA, P_W2, 2211840)
    e(f"""s_mul_i32 s80, s3, {32*1280}
s_mul_i32 s81, s35, 160
s_add_u32 s80, s80, s81
s_mul_i32 s81, s{W}, 5120
s_add_u32 s81, s81, {LDS_PREP}""")
    for n in range(5):
        e(f"""v_add_u32 v10, {64*n}, v0
v_mul_u32_u24 v11, 205, v10
v_lshrrev_b32 v11, 11, v11
v_mul_u32_u24 v12, 10, v11
v_sub_u32 v12, v10, v12
v_mul_u32_u24 v11, 1280, v11
v_lshlrev_b32 v12, 4, v12
v_add_u32 v11, v11, v12
s_add_u32 m0, s81, {n*1024}
buffer_load_dwordx4 v11, s[{STA}:{STA+3}], s80 offen lds""")
    e("v_mov_b32 v11, 0x10000000")
    for n in range(5):
        e(f"buffer_load_dword v{D}, v11, s[{STA}:{STA+3}], s80 offen")
    e("s_branch L_PREP_issued")
    e("L_PREP_C:")
    srd(e, STA, P_CRE, 819200)
    srd(e, STB, P_CIM, 819200)
    e(f"""v_and_b32 v10, 15, v0
v_mul_u32_u24 v10, 1280, v10
v_lshrrev_b32 v11, 4, v0
v_lshlrev_b32 v11, 3, v11
v_add_u32 v10, v10, v11
s_sub_u32 s80, s3, 54
s_min_u32 s80, s80, 39
s_lshl_b32 s80, s80, 5
s_mul_i32 s81, s35, {80*1280}
s_add_u32 s80, s80, s81""")
    for dt in range(5):
        e(f"buffer_load_dwordx2 v[{D+4*dt}:{D+1+4*dt}], v10, s[{STA}:{STA+3}], s80 offen")
        e(f"buffer_load_dwordx2 v[{D+2+4*dt}:{D+3+4*dt}], v10, s[{STB}:{STB+3}], s80 offen")
        if dt < 4: e(f"s_add_u32 s80, s80, {16*1280}")
    e("L_PREP_issued:")

def gen_prep_finish(e, W=84, D=116, T=''):
    e(f"""s_cmp_ge_u32 s3, 54
s_cbranch_scc1 L_PF_store{T}
v_lshrrev_b32 v10, 4, v0
v_lshlrev_b32 v10, 2, v10
v_bfe_u32 v11, v0, 2, 2
v_add_u32 v10, v10, v11
v_mul_u32_u24 v10, 160, v10
v_and_b32 v11, 3, v0
v_lshlrev_b32 v11, 3, v11
v_add_u32 v10, v10, v11
s_mul_i32 s81, s{W}, 5120
s_add_u32 s81, s81, {LDS_PREP}
v_add_u32 v10, s81, v10""")
    for dt in range(5):
        for h in range(2):
            e(f"ds_read_b64_tr_b16 v[{D+4*dt+2*h}:{D+1+4*dt+2*h}], v10 offset:{dt*32 + h*16*160}")
    e("s_waitcnt lgkmcnt(0)")
    e(f"L_PF_store{T}:")
    e(f"""s_mul_i32 s80, s35, 94
s_add_u32 s80, s80, s3
s_mul_i32 s80, s80, 5120
s_add_u32 s80, s80, {WF_OFF}
v_lshlrev_b32 v10, 4, v0
v_mov_b32 v11, 0x10000000
s_cmp_ge_u32 s3, 94
s_cselect_b32 s81, 1, 0
v_mov_b32 v12, s81
v_cmp_eq_u32 vcc, 1, v12
v_cndmask_b32 v10, v10, v11, vcc""")
    for dt in range(5):
        if dt < 4:
            e(f"buffer_store_dwordx4 {R(D+4*dt)}, v10, s[{SWS}:{SWS+3}], s80 offen offset:{dt*1024} sc1")
        else:
            e(f"s_add_u32 s80, s80, 4096")
            e(f"buffer_store_dwordx4 {R(D+4*dt)}, v10, s[{SWS}:{SWS+3}], s80 offen sc1")

def gen_prep_flag(e):
    e(f"""s_lshl_b32 s80, s35, 9
s_lshl_b32 s81, s3, 2
s_add_u32 s80, s80, s81
s_add_u32 s80, s80, {WFLAG_OFF}
v_mov_b32 v10, s{sNONCE}
s_cmp_ge_u32 s3, 94
s_cselect_b32 s81, 0x10000000, 0
v_mov_b32 v11, s81
s_mov_b64 exec, 1
buffer_store_dword v10, v11, s[{SWS}:{SWS+3}], s80 offen sc0 sc1
s_mov_b64 exec, -1""")

def interleave2(e, A, B, per):
    bi = 0
    for i, a in enumerate(A):
        e(a)
        for _ in range(per[i] if i < len(per) else 0):
            if bi < len(B): e(B[bi]); bi += 1
    while bi < len(B):
        e(B[bi]); bi += 1

def gen_main_loop(e, kind):
    tag = kind
    naddr = [2, 3] + ([4, 5, 6, 7, 8, 9] if kind == 'F' else [4, 5])
    sIT, sDELTA, sSLOT = 86, 87, 88
    def adv_list():
        L = [f"s_add_u32 s{sSLOT}, s{sSLOT}, 1", f"s_cmp_eq_u32 s{sSLOT}, 3",
             f"s_cselect_b32 s{sDELTA}, s90, s89", f"s_cselect_b32 s{sSLOT}, 0, s{sSLOT}"]
        L += [f"v_add_u32 v{v}, s{sDELTA}, v{v}" for v in naddr]
        return L
    e(f"s_mov_b32 s{sIT}, 1\ns_mov_b32 s{sSLOT}, 0\ns_mov_b32 s89, {SLOT}\ns_mov_b32 s90, {-2*SLOT & 0xffffffff}")
    if opt.itstamps:
        e(f"s_memtime s[100:101]\ns_waitcnt lgkmcnt(0)\nv_writelane_b32 v250, s100, 10")
    e("s_waitcnt lgkmcnt(0)\ns_barrier")
    if opt.itstamps:
        e(f"s_memtime s[100:101]\ns_waitcnt lgkmcnt(0)\nv_writelane_b32 v250, s100, 0")
    for r in reads(kind, SETA, 0): e(r)
    e("s_waitcnt lgkmcnt(0)")
    rb = reads(kind, SETB, 1)
    items = rb + adv_list()
    nr = len(rb)
    def perlist(nr, nextra):
        per = [1] * 24
        rem = 24 - nr
        per = [1] * nr + [0] * rem
        k = nextra; i = nr
        while k > 0:
            per[i] += 1; k -= 1; i += 1
            if i == 24: i = max(nr, 8)
        return per
    interleave2(e, mfmas(kind, SETA, first=True), items, perlist(nr, len(items) - nr))
    e("s_waitcnt lgkmcnt(0)")
    e(f"L_ML_{tag}:")
    e("s_barrier")
    if opt.itstamps:
        e(f"s_memtime s[100:101]\ns_waitcnt lgkmcnt(0)\ns_mov_b32 m0, s{sIT}\nv_writelane_b32 v250, s100, m0")
    ra = reads(kind, SETA, 0)
    interleave2(e, mfmas(kind, SETB), ra, [1] * 24)
    e(f"""s_cmp_eq_u32 s{sIT}, 1
s_cbranch_scc0 L_ML_h1_{tag}
buffer_load_dword v249, v248, s[{STA}:{STA+3}], 0 offen
L_ML_h1_{tag}:
s_cmp_eq_u32 s{sIT}, 4
s_cbranch_scc0 L_ML_h2_{tag}
s_waitcnt vmcnt(0)
v_readfirstlane_b32 s{sNONCE}, v249
s_cmp_eq_u32 s{sNONCE}, 0
s_cbranch_scc0 L_ML_h2b_{tag}""")
    spin_nonce(e, 'H' + tag, 10)
    e(f"L_ML_h2b_{tag}:")
    gen_prep_flag(e)
    e(f"L_ML_h2_{tag}:")
    e("s_waitcnt lgkmcnt(0)")
    items = rb + adv_list() + [f"s_add_u32 s{sIT}, s{sIT}, 1", f"s_cmp_lt_u32 s{sIT}, 10"]
    interleave2(e, mfmas(kind, SETA), items, perlist(nr, len(items) - nr))
    e(f"""s_waitcnt lgkmcnt(0)
s_cbranch_scc1 L_ML_{tag}""")
    lds_count(e, 24, 10)
    e(f"""s_mul_i32 s87, s{sWAVE}, 10
s_add_u32 s87, s87, 54
s_lshl_b32 s89, s{sCB}, 9
s_lshl_b32 s90, s87, 2
s_add_u32 s89, s89, s90
s_add_u32 s35, s89, {WFLAG_OFF}
v_lshlrev_b32 v8, 2, v0
buffer_load_dword v1, v8, s[{SWS}:{SWS+3}], s35 offen sc1""")
    for m in mfmas(kind, SETB): e(m)
    if opt.itstamps:
        e(f"""s_memtime s[100:101]
s_waitcnt lgkmcnt(0)
v_writelane_b32 v250, s100, 11
s_lshl_b32 s98, s2, 3
s_add_u32 s98, s98, s{sWAVE}
s_lshl_b32 s98, s98, 6
s_add_u32 s98, s98, {STAMP_OFF + 0x40000}
v_lshlrev_b32 v251, 2, v0
s_mov_b64 exec, 0xffff
buffer_store_dword v250, v251, s[{SWS}:{SWS+3}], s98 offen
s_mov_b64 exec, -1""")

def tile_flag(e, tag):
    nyoung = 0
    if opt.wearly:
        ssm_w_setup(e, tag)
        nyoung = SSM_W_OPS()
    e(f"""s_waitcnt vmcnt({nyoung})
s_lshr_b32 s80, s{sWAVE}, 1
s_lshl_b32 s81, s{sRB}, 1
s_add_u32 s80, s80, s81
s_lshl_b32 s80, s80, 8
s_lshl_b32 s81, s{sCOL}, 1
s_and_b32 s82, s{sWAVE}, 1
s_add_u32 s81, s81, s82
s_lshl_b32 s82, s81, 2
s_cmp_ge_u32 s81, 18
s_cselect_b32 s81, 56, 0
s_add_u32 s80, s80, s82
s_add_u32 s80, s80, s81
s_add_u32 s80, s80, {TFLAG_OFF}
v_mov_b32 v10, s{sNONCE}
v_mov_b32 v11, 0
s_mov_b64 exec, 1
buffer_store_dword v10, v11, s[{SWS}:{SWS+3}], s80 offen sc0 sc1
s_mov_b64 exec, -1""")
    if opt.eprio: e("s_setprio 0")

def SSM_W_OPS():
    nsh = 8 if opt.map2 == 1 else 4
    ng = (-(-(-(-10 * 40 // nsh)) // 64)) if opt.gw else 0
    return NW * 5 + NLS * 5 + ng

def ssm_w_setup(e, tag, order=True, defer_lds=False):
    e(f"""s_waitcnt vmcnt({12 if order else 0})
s_mul_i32 s87, s{sWAVE}, 10
s_add_u32 s87, s87, 54
v_cmp_ne_u32 vcc, s{sNONCE}, v1
v_lshlrev_b32 v1, 4, v0
v_lshlrev_b32 v8, 2, v0
s_and_b32 s80, vcc_lo, 0x3ff
s_cbranch_scc0 L_SSM_wok{tag}""")
    poll_flags(e, 'SW' + tag, 8, 10, 35, 0x3ff)
    e(f"""L_SSM_wok{tag}:
s_mul_i32 s84, s{sCB}, 94
s_add_u32 s84, s84, s87
s_mul_i32 s84, s84, 5120
s_add_u32 s84, s84, {WF_OFF}
s_mul_i32 s85, s{sRB2}, 94
s_add_u32 s85, s85, s87
s_lshl_b32 s85, s85, 12
s_mul_i32 s88, s{sWAVE}, 15360
s_add_u32 s88, s88, {LDS_Y}
v_add_u32 v3, s88, v1""")
    rot_setup(e, 10, True)
    rot_act(e)
    if opt.sorder and order:
        e(f"s_cmp_eq_u32 s{sISU}, 1\ns_cbranch_scc1 L_SSM_noord{tag}")
        lds_wait_ge(e, 'O' + tag, 28, 4, 10)
        e(f"L_SSM_noord{tag}:")
    if opt.sprio: e(f"s_setprio {opt.sprio}")
    if opt.sshelp:
        w_prefetch(e, 10, NLS, 88, do_lds=False, rng=(range(opt.fswn) if defer_lds else None))
        if not defer_lds:
            e(f"s_cmp_eq_u32 s{sISU}, 1\ns_cbranch_scc1 L_SSM_skiplds{tag}")
            w_lds(e, NLS, 88)
            e(f"s_branch L_SSM_ldsdone{tag}\nL_SSM_skiplds{tag}:\ns_add_u32 s84, s84, {NLS*5120}\nL_SSM_ldsdone{tag}:")
    else:
        w_prefetch(e, 10, NLS, 88)

def x_addr_setup(e):
    e(f"""s_lshr_b32 s80, s{sWAVE}, 1
s_lshl_b32 s80, s80, 13
v_and_b32 v10, 15, v0
v_lshlrev_b32 v10, 7, v10
v_lshrrev_b32 v11, 4, v0
v_and_b32 v12, 7, v0
v_xor_b32 v11, v11, v12
v_lshlrev_b32 v11, 4, v11
v_add_u32 v10, v10, v11
v_add_u32 v2, s80, v10
v_xor_b32 v3, 64, v2""")

def p1_l2_prefetch(e, kind):
    e(f"""s_lshr_b32 s81, s2, 3
s_lshr_b32 s82, s81, 3
s_lshl_b32 s82, s82, 5
s_lshl_b32 s83, s{sRB}, 7
s_add_u32 s82, s82, s83
v_and_b32 v10, 31, v0
v_add_u32 v10, s82, v10
v_mul_u32_u24 v10, 1280, v10
v_lshrrev_b32 v11, 5, v0
s_lshl_b32 s83, s{sWAVE}, 1
s_add_u32 s83, s83, 2
v_add_u32 v11, s83, v11
v_lshlrev_b32 v11, 7, v11
v_add_u32 v10, v10, v11
buffer_load_dword v247, v10, s[{SX}:{SX+3}], 0 offen
s_and_b32 s81, s81, 7""")
    if kind == 'F':
        srd(e, STA, P_W1, 2211840)
        e(f"""s_lshl_b32 s83, s{sWAVE}, 6
v_add_u32 v10, s83, v0
v_mul_u32_u24 v11, 2731, v10
v_lshrrev_b32 v11, 16, v11
v_mul_u32_u24 v12, 24, v11
v_sub_u32 v12, v10, v12
v_mul_u32_u24 v13, 43, v12
v_lshrrev_b32 v13, 7, v13
v_mul_u32_u24 v10, 3, v13
v_sub_u32 v12, v12, v10
v_lshlrev_b32 v11, 6, v11
v_add_u32 v11, v11, v13
s_lshl_b32 s83, s81, 3
s_add_u32 s83, s83, 128
v_add_u32 v11, s83, v11
v_mul_u32_u24 v11, 3456, v11
v_lshlrev_b32 v12, 7, v12
v_add_u32 v11, v11, v12
s_mul_i32 s83, s{sJ}, 384
buffer_load_dword v247, v11, s[{STA}:{STA+3}], s83 offen""")
    else:
        e(f"""s_cmp_ge_u32 s{sWAVE}, 2
s_cselect_b32 s{STA}, s{P_BIM}, s{P_BRE}
s_cselect_b32 s{STA+1}, s{P_BIM+1}, s{P_BRE+1}
s_mov_b32 s{STA+2}, 819200
s_mov_b32 s{STA+3}, 0x20000
s_and_b32 s83, s{sWAVE}, 1
s_lshl_b32 s83, s83, 6
v_add_u32 v10, s83, v0
v_min_u32 v10, 95, v10
v_mul_u32_u24 v11, 171, v10
v_lshrrev_b32 v11, 11, v11
v_mul_u32_u24 v12, 12, v11
v_sub_u32 v12, v10, v12
s_mul_i32 s83, s{sJ}, 96
s_mul_i32 s82, s81, 12
s_add_u32 s83, s83, s82
v_add_u32 v12, s83, v12
v_min_u32 v12, 639, v12
v_mul_u32_u24 v12, 1280, v12
v_add_u32 v11, 2, v11
v_lshlrev_b32 v11, 7, v11
v_add_u32 v12, v12, v11
buffer_load_dword v247, v12, s[{STA}:{STA+3}], 0 offen""")

def consumer_start_loads(e, nbefore):
    gen_gather_setup(e, sWAVE, 'C', 0)
    ng = 10 if opt.gall else 3
    for _ in range(ng):
        e(f"buffer_load_dword v18, v17, s[{SG}:{SG+3}], s{sGo} offen\ns_add_u32 s{sGo}, s{sGo}, s{sGinc}")
    gen_unit_ids(e, sWAVE)
    if opt.gall:
        gen_prep_gather(e, sWAVE)
    gen_prep_issue(e, sWAVE, 16)

def consumer_common_setup(e):
    srd(e, STA, P_DBG, 256)
    e("v_mov_b32 v248, 0")

def gen_consumer_ffn(e):
    e("L_CONS_F:")
    srd(e, STB, P_B1, 3456)
    e(f"""s_mul_i32 s80, s{sJ}, 384
s_and_b32 s81, s{sWAVE}, 1
s_mul_i32 s81, s81, 192
s_add_u32 s80, s80, s81
v_lshrrev_b32 v10, 4, v0
v_lshlrev_b32 v10, 3, v10""")
    for ft in range(6):
        e(f"buffer_load_dwordx2 v[{224+2*ft}:{225+2*ft}], v10, s[{STB}:{STB+3}], s80 offen offset:{32*ft}")

    x_addr_setup(e)
    e(f"""v_lshrrev_b32 v10, 4, v0
v_bfe_u32 v11, v0, 2, 2
v_lshlrev_b32 v12, 3, v10
v_add_u32 v12, v12, v11
v_mul_u32_u24 v12, 384, v12
v_bfe_u32 v13, v0, 3, 1
v_lshlrev_b32 v13, 1, v13
v_and_b32 v14, 1, v10
v_lshlrev_b32 v14, 2, v14
v_or_b32 v13, v13, v14
v_bfe_u32 v14, v0, 1, 1
s_and_b32 s81, s{sWAVE}, 1
s_mul_i32 s81, s81, 12
v_add_u32 v14, s81, v14
v_and_b32 v15, 1, v0
v_lshlrev_b32 v15, 3, v15
v_add_u32 v12, v12, v15
v_add_u32 v12, 16384, v12""")
    for ft in range(6):
        e(f"""v_add_u32 v10, {2*ft}, v14
v_xor_b32 v10, v10, v13
v_lshlrev_b32 v10, 4, v10
v_add_u32 v{4+ft}, v12, v10""")
    e("s_waitcnt vmcnt(0)")
    gen_prep_finish(e, sWAVE, 16, 'F')
    consumer_common_setup(e)
    for ft in range(6):
        b = 36 + 4 * ft
        e(f"""v_lshlrev_b32 v{b}, 16, v{224+2*ft}
v_and_b32 v{b+1}, 0xffff0000, v{224+2*ft}
v_lshlrev_b32 v{b+2}, 16, v{225+2*ft}
v_and_b32 v{b+3}, 0xffff0000, v{225+2*ft}""")
    stamp(e, 0, 14)
    stamp_clk(e, 14, 14)
    dbgmax(e, 2)
    gen_main_loop(e, 'F')
    dbgmax(e, 3)
    if opt.eprio: e(f"s_setprio {opt.eprio}")
    stamp(e, 1, 14)
    stamp_clk(e, 15, 14)
    e(f"""s_lshr_b32 s80, s{sWAVE}, 1
s_lshl_b32 s81, s{sRB}, 1
s_add_u32 s80, s80, s81
s_mul_i32 s80, s80, 94
s_mul_i32 s81, s{sJ}, 6
s_add_u32 s80, s80, s81
s_and_b32 s81, s{sWAVE}, 1
s_mul_i32 s81, s81, 3
s_add_u32 s80, s80, s81
s_lshl_b32 s32, s80, 12
v_lshlrev_b32 v10, 4, v0""")
    k = 0
    OB = 196 if opt.fsw else SETA
    pend = []
    for u in range(3):
        for tt in range(4):
            o = OB + 4 * k; k += 1
            vals = [acc_ffn(2*u, tt), acc_ffn(2*u+1, tt)]
            tmp = 16 + 8 * (k & 1)
            for h, a in enumerate(vals):
                for r in range(4):
                    e(f"v_max_f32 v{tmp+4*h+r}, 0, v{a+r}")
            for h, a in enumerate(vals):
                for r in range(0, 4, 2):
                    e(f"v_pk_mul_f32 v[{a+r}:{a+r+1}], v[{a+r}:{a+r+1}], v[{tmp+4*h+r}:{tmp+4*h+r+1}]")
            for h, a in enumerate(vals):
                for r in range(0, 4, 2):
                    e(f"v_cvt_pk_bf16_f32 v{o+2*h+(r>>1)}, v{a+r}, v{a+r+1}")
            st_ = f"buffer_store_dwordx4 {R(o)}, v10, s[{SWS}:{SWS+3}], s32 offen offset:{tt*1024} sc1"
            if opt.fsw: pend.append(st_)
            else: e(st_)
        if u < 2:
            if opt.fsw: pend.append("s_add_u32 s32, s32, 4096")
            else: e("s_add_u32 s32, s32, 4096")
    if opt.fsw:
        ssm_w_setup(e, 'F', order=False, defer_lds=(opt.fsw == 2))
        e("v_lshlrev_b32 v10, 4, v0")
        for x in pend: e(x)
    lds_count(e, 16, 12)
    stamp(e, 2, 14)
    tile_flag(e, 'F')
    dbgmax(e, 4)
    stamp(e, 3, 14)
    if opt.fsw == 2:
        w_prefetch(e, 10, NLS, 88, do_lds=False, rng=range(opt.fswn, NW))
        w_lds(e, NLS, 88)
    e("s_branch L_SSM_P2b" if opt.fsw else "s_branch L_SSM_P2")

def gen_code_prefetch(e):
    e(f"""s_cmp_eq_u32 s{sWAVE}, 3
s_cbranch_scc0 L_CPF_done
s_getpc_b64 s[80:81]
L_CPF_pc:
s_sub_u32 s80, s80, L_CPF_pc-{NAME}
s_subb_u32 s81, s81, 0
s_lshr_b32 s82, s2, 3
s_lshl_b32 s82, s82, 11
v_and_b32 v10, 15, v0
v_lshlrev_b32 v10, 7, v10
v_add_u32 v10, s82, v10
v_min_u32 v10, L_CODE_END-{NAME}-4, v10
s_mov_b64 exec, 0xffff
global_load_dword v19, v10, s[80:81]
s_mov_b64 exec, -1
L_CPF_done:""")

def gen_consumer(e):
    dbgmax(e, 1)
    e(f"""v_mov_b32 v10, {LDS_FLAG}
v_mov_b32 v12, 0
v_mov_b32 v13, 0
v_mov_b32 v14, 0
v_mov_b32 v15, 0
ds_write_b128 v10, v[12:15]
ds_write_b128 v10, v[12:15] offset:16""")
    if opt.cpf: gen_code_prefetch(e)
    consumer_start_loads(e, 0)
    e(f"""s_cmp_eq_u32 s{sISU}, 1
s_cbranch_scc1 L_CONS_U""")
    gen_consumer_ffn(e)
    gen_consumer_u(e)

def pk(op, d, a, b, c=None, bsel=None, neg=False):
    assert bsel == 0, "op_sel hi-broadcast is unsafe next to MFMA (measured)"
    n = 3 if c is not None else 2
    sel = [0, bsel] + ([0] if c is not None else [])
    selh = [1, bsel] + ([1] if c is not None else [])
    s = f"{op} v[{d}:{d+1}], v[{a}:{a+1}], v[{b}:{b+1}]" + (f", v[{c}:{c+1}]" if c is not None else "")
    s += " op_sel:[" + ",".join(map(str, sel)) + "] op_sel_hi:[" + ",".join(map(str, selh)) + "]"
    if neg:
        ng = [0, 1] + ([0] if c is not None else [])
        s += " neg_lo:[" + ",".join(map(str, ng)) + "] neg_hi:[" + ",".join(map(str, ng)) + "]"
    return s

def gen_consumer_u(e):
    e("L_CONS_U:")
    x_addr_setup(e)
    e(f"""s_and_b32 s81, s{sWAVE}, 1
s_mul_i32 s81, s81, {96*128}
s_add_u32 s81, s81, 16384
v_add_u32 v4, s81, v10
v_xor_b32 v5, 64, v4""")
    e("s_waitcnt vmcnt(0)")
    gen_prep_finish(e, sWAVE, 16, 'U')
    consumer_common_setup(e)
    dbgmax(e, 2)
    stamp(e, 0, 14)
    gen_main_loop(e, 'U')
    dbgmax(e, 3)
    if opt.eprio: e(f"s_setprio {opt.eprio}")
    stamp(e, 1, 14)
    def K(ct, i): return 160 + 18 * ct + 2 * i
    LAM, L8, L16, L16Q, L64, L128, L512, L1024, C2 = range(9)
    ent = {LAM: 0, L8: 1, L16: 3, L64: 6, L128: 7, L512: 8, L1024: 9, C2: 10}
    e(f"""s_and_b32 s81, s{sWAVE}, 1
s_mul_i32 s81, s81, {48*8}
s_add_u32 s81, s81, {LDS_TAB}
v_and_b32 v10, 15, v0
v_lshlrev_b32 v10, 3, v10
v_add_u32 v10, s81, v10
v_lshrrev_b32 v11, 4, v0
v_mul_u32_u24 v11, 768, v11
v_add_u32 v11, v11, v10""")
    for ct in range(3):
        for k, en in ent.items():
            e(f"ds_read_b64 v[{K(ct,k)}:{K(ct,k)+1}], v10 offset:{en*768 + ct*128}")
        e(f"ds_read_b64 v[{K(ct,L16Q)}:{K(ct,L16Q)+1}], v11 offset:{2*768 + ct*128}")
    e("s_waitcnt lgkmcnt(0)")
    LI = [2, 252, 254]
    C2I = [16, 18, 20]
    for ct in range(3):
        e(f"v_mov_b32 v{LI[ct]}, v{K(ct, LAM)+1}")
    def U(n, ct, part):
        return acc_u(n >> 1, 2 * ct + part) + 2 * (n & 1)
    def Er(ct, s): return 16 + 8 * ct + 4 * s
    def Ei(ct, s): return 18 + 8 * ct + 4 * s
    for n in range(1, 8):
        src = (n - 1) & 1; dst = n & 1
        for ct in range(3):
            pr = U(0, ct, 0) if n == 1 else Er(ct, src)
            pi = U(0, ct, 1) if n == 1 else Ei(ct, src)
            e(pk("v_pk_fma_f32", Er(ct, dst), pr, K(ct, LAM), U(n, ct, 0), 0))
            e(pk("v_pk_fma_f32", Ei(ct, dst), pi, K(ct, LAM), U(n, ct, 1), 0))
        for ct in range(3):
            pr = U(0, ct, 0) if n == 1 else Er(ct, src)
            pi = U(0, ct, 1) if n == 1 else Ei(ct, src)
            e(pk("v_pk_fma_f32", Er(ct, dst), pi, LI[ct], Er(ct, dst), 0, neg=True))
            e(pk("v_pk_fma_f32", Ei(ct, dst), pr, LI[ct], Ei(ct, dst), 0))
    def LL(ct): return 16 + 8 * ct
    for ct in range(3):
        er, ei, l8 = Er(ct, 1), Ei(ct, 1), K(ct, L8)
        e(f"""v_fma_f32 v{LL(ct)}, v{l8}, v{er}, v{er+1}
v_fma_f32 v{LL(ct)+1}, v{l8}, v{ei}, v{ei+1}
v_fma_f32 v{LL(ct)}, -v{l8+1}, v{ei}, v{LL(ct)}
v_fma_f32 v{LL(ct)+1}, v{l8+1}, v{er}, v{LL(ct)+1}""")
    def G(ct, q): return 214 + 8 * ct + 2 * q
    for ct in range(3):
        for c in range(2):
            a, b, a2, b2 = G(ct, 0) + c, G(ct, 1) + c, G(ct, 2) + c, G(ct, 3) + c
            e(f"""v_mov_b32 v{a}, v{LL(ct)+c}
v_mov_b32 v{b}, v{LL(ct)+c}
v_permlane16_swap_b32 v{a}, v{b}
v_mov_b32 v{a2}, v{a}
v_mov_b32 v{b2}, v{b}
v_permlane32_swap_b32 v{a}, v{a2}
v_permlane32_swap_b32 v{b}, v{b2}""")
    for ct in range(3):
        cfma(e, G(ct, 1), K(ct, L16), G(ct, 0), G(ct, 1))
    for ct in range(3):
        cfma(e, G(ct, 2), K(ct, L16), G(ct, 1), G(ct, 2))
    for ct in range(3):
        cfma(e, G(ct, 3), K(ct, L16), G(ct, 2), G(ct, 3))
    e(f"""s_mov_b32 s80, 0xffff0000
s_mov_b32 s81, 0
s_mov_b32 s82, 0
s_mov_b32 s83, 0x0000ffff
s_mov_b32 s90, 0
s_mov_b32 s91, 0xffff0000""")
    for ct in range(3):
        for c in range(2):
            e(f"""v_cndmask_b32 v{LL(ct)+c}, 0, v{G(ct,0)+c}, s[80:81]
v_cndmask_b32 v{LL(ct)+c}, v{LL(ct)+c}, v{G(ct,1)+c}, s[82:83]
v_cndmask_b32 v{LL(ct)+c}, v{LL(ct)+c}, v{G(ct,2)+c}, s[90:91]""")
    e(f"""s_and_b32 s84, s{sWAVE}, 1
s_mul_i32 s85, s84, {48*8}
s_add_u32 s85, s85, {LDS_LX}
v_and_b32 v10, 15, v0
v_lshlrev_b32 v10, 3, v10
v_add_u32 v10, s85, v10
s_lshl_b32 s85, s84, 2
s_add_u32 s85, s85, {LDS_FLAG}
v_mov_b32 v11, s85
s_cmp_ge_u32 s{sWAVE}, 2
s_cbranch_scc1 L_U_wt1""")
    for ct in range(3):
        e(f"ds_write_b64 v10, v[{G(ct,3)}:{G(ct,3)+1}] offset:{ct*128}")
    e(f"""v_mov_b32 v12, 1
s_waitcnt lgkmcnt(0)
ds_write_b32 v11, v12
s_branch L_U_lb
L_U_wt1:
s_mov_b32 s85, 0
L_U_pairwait:
ds_read_b32 v12, v11
s_add_u32 s85, s85, 1
s_waitcnt lgkmcnt(0)
v_readfirstlane_b32 s86, v12
s_cmp_ge_u32 s85, {opt.spin_limit}
s_cbranch_scc1 L_U_pairok
s_cmp_eq_u32 s86, 0
s_cbranch_scc1 L_U_pairwait
L_U_pairok:""")
    for ct in range(3):
        e(f"ds_read_b64 v[{G(ct,0)}:{G(ct,0)+1}], v10 offset:{ct*128}")
    e("s_waitcnt lgkmcnt(0)")
    for ct in range(3):
        cfma(e, G(ct, 1), K(ct, L64), G(ct, 0), G(ct, 3))
    e(f"""s_mov_b32 s80, 0xffff0000
s_mov_b32 s81, 0
s_mov_b32 s82, 0
s_mov_b32 s83, 0x0000ffff
v_cndmask_b32 v240, v{G(0,1)}, v{G(1,1)}, s[80:81]
v_cndmask_b32 v241, v{G(0,1)+1}, v{G(1,1)+1}, s[80:81]
v_cndmask_b32 v240, v240, v{G(2,1)}, s[82:83]
v_cndmask_b32 v241, v241, v{G(2,1)+1}, s[82:83]
v_mov_b32 v242, s{sNONCE}
v_mov_b32 v243, s{sNONCE}
s_mul_i32 s85, s{sJ}, 16
s_add_u32 s85, s85, s{sRB}
s_mul_i32 s85, s85, 96
s_mul_i32 s86, s84, 48
s_add_u32 s85, s85, s86
s_lshl_b32 s85, s85, 4
s_add_u32 s85, s85, {AG_OFF}
v_lshlrev_b32 v12, 4, v0
s_mov_b32 exec_lo, -1
s_mov_b32 exec_hi, 0x0000ffff
buffer_store_dwordx4 v[240:243], v12, s[{SWS}:{SWS+3}], s85 offen sc0 sc1
s_mov_b64 exec, -1
L_U_lb:""")
    if not opt.udelay: lds_count(e, 16, 12)
    stamp(e, 2, 14)
    LB = 112 + 0
    lbregs = [40 + 4 * i for i in range(6)] + [240 + 4 * i for i in range(4)] + [32 + 0, 36]
    lbregs = [40 + 4 * i for i in range(6)] + [240, 244, 248] + [216, 224, 232]
    e(f"""s_mul_i32 s85, s{sJ}, {16*96}
s_mul_i32 s86, s84, 48
s_add_u32 s85, s85, s86
s_lshl_b32 s85, s85, 4
s_add_u32 s85, s85, {AG_OFF}
v_lshrrev_b32 v12, 4, v0
v_lshlrev_b32 v12, 2, v12
v_sub_u32 v12, s{sRB}, v12
v_mov_b32 v9, 0x10000000
v_and_b32 v13, 15, v0""")
    for m in range(4):
        e(f"""v_subrev_u32 v14, {1+m}, v12
v_cmp_le_i32 s[{88+2*m}:{89+2*m}], 0, v14
v_mul_u32_u24 v15, 96, v14
v_add_u32 v15, v15, v13
v_lshlrev_b32 v15, 4, v15
v_cndmask_b32 v{4+m}, v9, v15, s[{88+2*m}:{89+2*m}]""")
    CR = list(range(38, 52)) + [54]
    for k in range(15):
        e(f"s_mov_b32 s{CR[k]}, s{sNONCE}")
    e(f"""s_add_u32 s87, s85, {47*16 + 8}
s_mov_b32 s86, 0
L_U_cp:""")
    for k in range(15):
        e(f"""s_cmp_gt_u32 s{sRB}, {k}
s_cbranch_scc0 L_U_cpl
s_load_dword s{CR[k]}, s[{P_WS}:{P_WS+1}], s87 offset:{k*1536} glc""")
    e(f"""L_U_cpl:
s_add_u32 s86, s86, 1
s_waitcnt lgkmcnt(0)
s_mov_b32 s81, 0""")
    for k in range(15):
        e(f"s_xor_b32 s82, s{CR[k]}, s{sNONCE}\ns_or_b32 s81, s81, s82")
    e(f"""s_cmp_ge_u32 s86, {opt.spin_limit}
s_cbranch_scc1 L_U_cpok
s_cmp_eq_u32 s81, 0
s_cbranch_scc1 L_U_cpok
s_sleep 1
s_branch L_U_cp
L_U_cpok:""")
    stamp(e, 11, 14)
    e(f"s_mov_b32 s86, 0\nL_U_lbloop:")
    for m in range(4):
        for ct in range(3):
            r = lbregs[m * 3 + ct]
            e(f"buffer_load_dwordx4 {R(r)}, v{4+m}, s[{SWS}:{SWS+3}], s85 offen offset:{ct*256} sc1")
    e("s_add_u32 s86, s86, 1\ns_mov_b64 s[96:97], 0\ns_waitcnt vmcnt(0)")
    for m in range(4):
        for ct in range(3):
            r = lbregs[m * 3 + ct]
            e(f"""v_cmp_ne_u32 vcc, s{sNONCE}, v{r+2}
s_and_b64 vcc, vcc, s[{88+2*m}:{89+2*m}]
s_or_b64 s[96:97], s[96:97], vcc""")
    e(f"""s_cmp_ge_u32 s86, {opt.spin_limit}
s_cbranch_scc1 L_U_lbok
s_cmp_eq_u64 s[96:97], 0
s_cbranch_scc0 L_U_lbloop
L_U_lbok:""")
    if opt.udelay: lds_count(e, 16, 12)
    def S(m, ct): return lbregs[m * 3 + ct]
    for ct in range(3):
        cfma(e, S(2, ct), K(ct, L128), S(3, ct), S(2, ct))
    for ct in range(3):
        cfma(e, S(1, ct), K(ct, L128), S(2, ct), S(1, ct))
    for ct in range(3):
        cfma(e, S(0, ct), K(ct, L128), S(1, ct), S(0, ct))
    for ct in range(3):
        z, b, t, u = S(0, ct), S(1, ct), S(2, ct), S(3, ct)
        e(f"""v_mov_b32 v{b}, v{z}
v_mov_b32 v{b+1}, v{z+1}
v_permlane16_swap_b32 v{z}, v{b}
v_permlane16_swap_b32 v{z+1}, v{b+1}""")
        cfma(e, t, K(ct, L512), b, z)
        e(f"""v_mov_b32 v{u}, v{t}
v_mov_b32 v{u+1}, v{t+1}
v_permlane32_swap_b32 v{t}, v{u}
v_permlane32_swap_b32 v{t+1}, v{u+1}""")
        cfma(e, z, K(ct, L1024), u, t)
    e(f"s_cmp_ge_u32 s{sWAVE}, 2\ns_cbranch_scc0 L_U_hw0")
    for ct in range(3):
        cfma(e, S(1, ct), K(ct, L64), S(0, ct), G(ct, 0))
    e("s_branch L_U_hw1\nL_U_hw0:")
    for ct in range(3):
        e(f"v_mov_b32 v{S(1,ct)}, v{S(0,ct)}\nv_mov_b32 v{S(1,ct)+1}, v{S(0,ct)+1}")
    e("L_U_hw1:\ns_nop 1")
    for ct in range(3):
        cfma(e, S(2, ct), K(ct, L16Q), S(1, ct), LL(ct))
    for ct in range(3):
        hl, l8, er, ei = S(2, ct), K(ct, L8), Er(ct, 1), Ei(ct, 1)
        cr, ci = S(3, ct), S(3, ct) + 2
        e(f"""v_mov_b32 v{cr}, v{hl}
v_mov_b32 v{ci}, v{hl+1}
v_fma_f32 v{cr+1}, v{l8}, v{hl}, v{er}
v_fma_f32 v{ci+1}, v{l8}, v{hl+1}, v{ei}
v_fma_f32 v{cr+1}, -v{l8+1}, v{hl+1}, v{cr+1}
v_fma_f32 v{ci+1}, v{l8+1}, v{hl}, v{ci+1}""")
    for n in range(8):
        for ct in range(3):
            pr = S(3, ct) if n == 0 else U(n - 1, ct, 0)
            pi = S(3, ct) + 2 if n == 0 else U(n - 1, ct, 1)
            e(pk("v_pk_fma_f32", U(n, ct, 0), pr, K(ct, LAM), U(n, ct, 0), 0))
            e(pk("v_pk_fma_f32", U(n, ct, 1), pi, K(ct, LAM), U(n, ct, 1), 0))
        for ct in range(3):
            pr = S(3, ct) if n == 0 else U(n - 1, ct, 0)
            pi = S(3, ct) + 2 if n == 0 else U(n - 1, ct, 1)
            e(pk("v_pk_fma_f32", U(n, ct, 0), pi, LI[ct], U(n, ct, 0), 0, neg=True))
            e(pk("v_pk_fma_f32", U(n, ct, 1), pr, LI[ct], U(n, ct, 1), 0))
    stamp(e, 3, 14)
    e(f"""v_and_b32 v10, 15, v0
v_lshrrev_b32 v11, 4, v0
v_lshlrev_b32 v11, 3, v11
v_sub_u32 v10, v10, v11""")
    for ct in range(3):
        e(f"v_mov_b32 v{C2I[ct]}, v{K(ct, C2)+1}")
    e("v_mov_b32 v14, 0x3f80\nv_mov_b32 v15, 0x3f800000")
    for b in range(2):
        e(f"v_add_u32 v12, {16*b}, v10")
        for rr in range(4):
            d = 40 + 4 * b + rr
            e(f"""v_cmp_eq_u32 vcc, {2*rr}, v12
v_cndmask_b32 v{d}, 0, v14, vcc
v_cmp_eq_u32 vcc, {2*rr+1}, v12
v_cndmask_b32 v{d}, v{d}, v15, vcc""")
    e(f"""s_lshr_b32 s80, s{sWAVE}, 1
s_lshl_b32 s81, s{sRB}, 1
s_add_u32 s80, s80, s81
s_mul_i32 s80, s80, 94
s_mul_i32 s81, s{sJ}, 6
s_mul_i32 s82, s84, 3
s_add_u32 s81, s81, s82
s_add_u32 s80, s80, s81
s_add_u32 s80, s80, 54
s_lshl_b32 s80, s80, 12
v_lshlrev_b32 v10, 4, v0""")
    for ct in range(3):
        c2 = K(ct, C2)
        for i in range(4):
            if i & 1:
                t0, t1, t2, t3 = 216, 218, 220, 222
                m0, m1, m2, m3 = 4, 6, 8, 12
            else:
                t0, t1, t2, t3 = 208 + 6, 24, 26, 28
                t0 = 22
                m0, m1, m2, m3 = 30, 32, 34, 36
            for s_, (tr, ti, mr, mi) in enumerate(((t0, t2, m0, m2), (t1, t3, m1, m3))):
                n = 2 * i + s_
                hr, hi = U(n, ct, 0), U(n, ct, 1)
                e(pk("v_pk_mul_f32", mr, hr, c2, None, 0))
                e(pk("v_pk_mul_f32", mi, hi, c2, None, 0, neg=True))
            for s_, (tr, ti, mr, mi) in enumerate(((t0, t2, m0, m2), (t1, t3, m1, m3))):
                n = 2 * i + s_
                hr, hi = U(n, ct, 0), U(n, ct, 1)
                e(pk("v_pk_fma_f32", tr, hi, C2I[ct], mr, 0, neg=True))
                e(pk("v_pk_fma_f32", ti, hr, C2I[ct], mi, 0, neg=True))
            e(f"""v_cvt_pk_bf16_f32 v{48+i}, v{t0}, v{t1}
v_cvt_pk_bf16_f32 v{52+i}, v{t0+1}, v{t1+1}
v_cvt_pk_bf16_f32 v{56+i}, v{t2}, v{t3}
v_cvt_pk_bf16_f32 v{60+i}, v{t2+1}, v{t3+1}""")
        def D(part, tt): return 224 + 16 * part + 4 * tt
        for part in range(2):
            for a in range(2):
                for b in range(2):
                    A = 48 + 8 * part + 4 * a
                    e(f"v_mfma_f32_16x16x32_bf16 {R(D(part, 2*b+a))}, {R(A)}, {R(40+4*b)}, 0")
        if True:
            e(f"s_add_u32 s82, s81, {ct}\ns_cmp_ge_u32 s82, 40\ns_cbranch_scc1 L_U_skip{ct}")
            for tt in range(4):
                o = acc_u(tt, 2 * ct)
                dr, di = D(0, tt), D(1, tt)
                e(f"""v_cvt_pk_bf16_f32 v{o}, v{dr}, v{dr+1}
v_cvt_pk_bf16_f32 v{o+1}, v{dr+2}, v{dr+3}
v_cvt_pk_bf16_f32 v{o+2}, v{di}, v{di+1}
v_cvt_pk_bf16_f32 v{o+3}, v{di+2}, v{di+3}
buffer_store_dwordx4 {R(o)}, v10, s[{SWS}:{SWS+3}], s80 offen offset:{tt*1024} sc1""")
            e(f"L_U_skip{ct}:\ns_nop 7\ns_add_u32 s80, s80, 4096")
    stamp(e, 4, 14)
    tile_flag(e, 'U')
    dbgmax(e, 4)
    stamp(e, 5, 14)
    e("s_branch L_SSM_P2")

ACC2 = 16
WSL = 96
ASL = 196
NW, NA = 5, 3
def set_nw(nw, na):
    global NW, NA, ASL
    NW, NA = nw, na
    ASL = WSL + 20 * nw
def acc2(dt, tt): return ACC2 + (dt * 4 + tt) * 4

def wrap_w(e):
    if not opt.rot: return
    e("""s_sub_u32 s91, s91, 1
s_cmp_eq_u32 s91, 0
s_cselect_b32 s95, s93, 0
s_sub_u32 s84, s84, s95""")

def wrap_a(e):
    if not opt.rot: return
    e("""s_sub_u32 s92, s92, 1
s_cmp_eq_u32 s92, 0
s_cselect_b32 s95, s94, 0
s_sub_u32 s85, s85, s95""")

def rot_setup(e, n_sgpr_or_const, is_const):
    if not opt.rot: return
    if opt.map2 == 1:
        e(f"""s_and_b32 s95, s{sCB}, 3
s_lshl_b32 s95, s95, 1
s_add_u32 s95, s95, s{sRB2}
s_and_b32 s95, s95, 7""")
    else:
        e(f"""s_and_b32 s95, s{sRB2}, 3
s_lshl_b32 s95, s95, 1
s_add_u32 s95, s95, s{sCB}
s_and_b32 s95, s95, 7""")
    n = f"{n_sgpr_or_const}" if is_const else f"s{n_sgpr_or_const}"
    e(f"""s_mul_i32 s90, s95, {n}
s_lshr_b32 s90, s90, 3
s_sub_u32 s91, {n}, s90
s_mov_b32 s92, s91
s_mul_i32 s93, {n}, 5120
s_mul_i32 s94, {n}, 4096
s_mul_i32 s95, s90, 5120
s_add_u32 s84, s84, s95""")

def rot_act(e):
    if not opt.rot: return
    e("""s_lshl_b32 s95, s90, 12
s_add_u32 s85, s85, s95""")

def gen_p2_stream(e, tag, nsteps, extra_hook=None):
    queue = []
    SC = '' if opt.nosc1 else 'sc1'
    def ld_w(s):
        b = WSL + 20 * (s % NW)
        for dt in range(5):
            if dt < 4:
                e(f"buffer_load_dwordx4 {R(b+4*dt)}, v1, s[{SWS}:{SWS+3}], s84 offen offset:{dt*1024} {SC}")
            else:
                e(f"s_add_u32 s84, s84, 4096")
                e(f"buffer_load_dwordx4 {R(b+4*dt)}, v1, s[{SWS}:{SWS+3}], s84 offen {SC}")
                e(f"s_add_u32 s84, s84, 1024")
            queue.append(('w', s))
        wrap_w(e)
    def ld_a(s):
        b = ASL + 16 * (s % NA)
        for tt in range(4):
            e(f"buffer_load_dwordx4 {R(b+4*tt)}, v1, s[{SWS}:{SWS+3}], s85 offen offset:{tt*1024} {SC}")
            queue.append(('a', s))
        e(f"s_add_u32 s85, s85, 4096")
        wrap_a(e)
    return ld_w, ld_a, queue

def p2_role(e, tag, nsteps):
    pass

def emit_stream(e, nsteps, ld_w, ld_a, queue, NL, vL, late_lds=None):
    if opt.ststamps:
        e(f"s_memtime s[100:101]\ns_waitcnt lgkmcnt(0)\nv_writelane_b32 v250, s100, 0")
    for s in range(min(NA, nsteps)): ld_a(s)
    if late_lds is not None: w_lds(e, NL, late_lds, queue)
    for s in range(nsteps):
        idx = [i for i, q in enumerate(queue) if q in (('w', s), ('a', s))]
        inlds = NW <= s < NW + NL
        if idx:
            last = max(idx)
            n = len(queue) - 1 - last
            e(f"s_waitcnt vmcnt({n})" + (" lgkmcnt(0)" if inlds else ""))
            del queue[:last + 1]
        elif inlds:
            e("s_waitcnt lgkmcnt(0)")
        if opt.ststamps:
            e(f"s_memtime s[100:101]\ns_waitcnt lgkmcnt(0)\nv_writelane_b32 v250, s100, {s+1}")
        wb = WSL + 20 * (s % NW); ab = ASL + 16 * (s % NA)
        for dt in range(5):
            for tt in range(4):
                d = acc2(dt, tt)
                c = "0" if s == 0 else R(d)
                e(f"v_mfma_f32_16x16x32_bf16 {R(d)}, {R(wb+4*dt)}, {R(ab+4*tt)}, {c}")
        if s + NA < nsteps: ld_a(s + NA)
        t = s + NW
        if t < nsteps and t >= NW + NL:
            ld_w(t)
        t = s + 2
        if NW <= t < min(NW + NL, nsteps):
            li = [i for i, q in enumerate(queue) if q == ('l', t)]
            if li:
                e(f"s_waitcnt vmcnt({len(queue) - 1 - max(li)})")
                del queue[:max(li) + 1]
            for dt in range(5):
                e(f"ds_read_b128 {R(WSL + 20*(t % NW) + 4*dt)}, v{vL} offset:{(t-NW)*5120 + dt*1024}")

def spoll_tiles(e, tag, kind, sleep=1):
    off = 0 if kind == 'F' else 128
    n = 18 if kind == 'F' else 14
    e(f"""s_lshl_b32 s89, s{sRB2}, 8
s_add_u32 s89, s89, {TFLAG_OFF + off}
s_mov_b32 s80, 0
L_sp_{tag}:""")
    if kind == 'F':
        e(f"s_load_dwordx16 s[40:55], s[{P_WS}:{P_WS+1}], s89 glc")
        e(f"s_load_dwordx2 s[56:57], s[{P_WS}:{P_WS+1}], s89 offset:64 glc")
        regs = list(range(40, 58))
    else:
        e(f"s_load_dwordx8 s[40:47], s[{P_WS}:{P_WS+1}], s89 glc")
        e(f"s_load_dwordx4 s[48:51], s[{P_WS}:{P_WS+1}], s89 offset:32 glc")
        e(f"s_load_dwordx2 s[54:55], s[{P_WS}:{P_WS+1}], s89 offset:48 glc")
        regs = list(range(40, 52)) + [54, 55]
    e("s_add_u32 s80, s80, 1\ns_waitcnt lgkmcnt(0)\ns_mov_b32 s81, 0")
    for r_ in regs:
        e(f"s_xor_b32 s82, s{r_}, s{sNONCE}\ns_or_b32 s81, s81, s82")
    e(f"""s_cmp_ge_u32 s80, {opt.spin_limit}
s_cbranch_scc1 L_sp_done_{tag}
s_cmp_eq_u32 s81, 0
s_cbranch_scc1 L_sp_done_{tag}
s_sleep {sleep}
s_branch L_sp_{tag}
L_sp_done_{tag}:""")

def lds_signal(e, off, vt):
    e(f"""v_mov_b32 v{vt}, {LDS_FLAG + off}
v_mov_b32 v{vt+1}, 1
ds_write_b32 v{vt}, v{vt+1}""")

def lds_count(e, off, vt):
    e(f"""v_mov_b32 v{vt}, {LDS_FLAG + off}
v_mov_b32 v{vt+1}, 1
s_mov_b64 exec, 1
ds_add_u32 v{vt}, v{vt+1}
s_mov_b64 exec, -1""")

def lds_wait_ge(e, tag, off, n, vt):
    e(f"""v_mov_b32 v{vt}, {LDS_FLAG + off}
s_mov_b32 s80, 0
L_lwg_{tag}:
ds_read_b32 v{vt+1}, v{vt}
s_add_u32 s80, s80, 1
s_waitcnt lgkmcnt(0)
v_readfirstlane_b32 s81, v{vt+1}
s_cmp_ge_u32 s80, {opt.spin_limit * 4}
s_cbranch_scc1 L_lwg_done_{tag}
s_cmp_ge_u32 s81, {n}
s_cbranch_scc1 L_lwg_done_{tag}
s_sleep 1
s_branch L_lwg_{tag}
L_lwg_done_{tag}:""")

def lds_wait(e, tag, off, vt):
    e(f"""v_mov_b32 v{vt}, {LDS_FLAG + off}
s_mov_b32 s80, 0
L_lw_{tag}:
ds_read_b32 v{vt+1}, v{vt}
s_add_u32 s80, s80, 1
s_waitcnt lgkmcnt(0)
v_readfirstlane_b32 s81, v{vt+1}
s_cmp_ge_u32 s80, {opt.spin_limit * 4}
s_cbranch_scc1 L_lw_done_{tag}
s_cmp_eq_u32 s81, 0
s_cbranch_scc0 L_lw_done_{tag}
s_sleep 1
s_branch L_lw_{tag}
L_lw_done_{tag}:""")

def gen_p2(e):
    e("L_FFN_P2:")
    e(f"""s_mul_i32 s80, s{sRB2}, 94
s_add_u32 s85, s85, s80
s_lshl_b32 s85, s85, 12
v_add_u32 v3, s87, v1""")
    rot_act(e)
    e(f"""s_mov_b32 s88, s84
s_mov_b32 s84, s86""")
    nsh_ = 8 if opt.map2 == 1 else 4
    ng_ = (-(-(-(-14 * 40 // nsh_)) // 64)) if opt.gw else 0
    e(f"s_waitcnt vmcnt({NLF*5})")
    gen_gate_compute(e)
    e("s_mov_b32 s84, s88")
    ld_w, ld_a, queue = gen_p2_stream(e, 'F', 14)
    stamp(e, 3, 14)
    e(f"s_cmp_eq_u32 s86, 0\ns_cbranch_scc0 L_FFN_lw")
    spoll_tiles(e, 'FT', 'F')
    e('s_waitcnt vmcnt(0)')
    if opt.sshelp: lds_count(e, 20, 10)
    lds_signal(e, 8, 10)
    e("s_branch L_FFN_go\nL_FFN_lw:\ns_waitcnt vmcnt(0)")
    if opt.sshelp: lds_count(e, 20, 10)
    lds_wait(e, 'F', 8, 10)
    e("L_FFN_go:")
    if opt.prio: e(f"s_setprio {opt.prio}")
    stamp(e, 4, 14)
    if opt.l2pf2: l2_prefetch(e, 85, 14 * 32, 4 if opt.map2 == 1 else 8, f"s{sCB}", 3 if opt.map2 == 1 else 7, 2 if opt.map2 == 1 else 1)
    del queue[:]
    e(f"s_cmp_ge_u32 s86, 2\ns_cbranch_scc1 L_FFN_13")
    emit_stream(e, 14, ld_w, ld_a, queue, NLF, 3, 87 if opt.ldslate else None)
    e("s_branch L_FFN_done")
    e("L_FFN_13:")
    del queue[:]
    emit_stream(e, 13, ld_w, ld_a, queue, NLF, 3, 87 if opt.ldslate else None)
    e("L_FFN_done:")
    if opt.ststamps:
        e(f"""s_memtime s[100:101]
s_waitcnt lgkmcnt(0)
v_writelane_b32 v250, s100, 15
s_lshl_b32 s98, s2, 3
s_add_u32 s98, s98, s{sWAVE}
s_lshl_b32 s98, s98, 6
s_add_u32 s98, s98, {STAMP_OFF + 0x40000}
v_lshlrev_b32 v251, 2, v0
s_mov_b64 exec, 0xffff
buffer_store_dword v250, v251, s[{SWS}:{SWS+3}], s98 offen
s_mov_b64 exec, -1""")
    stamp(e, 5, 14)
    e(f"""s_mul_i32 s80, s86, 20480
v_add_u32 v2, s80, v1""")
    for tt in range(4):
        for dt in range(5):
            e(f"ds_write_b128 v2, {R(acc2(dt,tt))} offset:{LDS_F + (tt*5+dt)*1024}")
    e("s_waitcnt lgkmcnt(0)\ns_barrier")
    stamp(e, 6, 14)
    e("s_branch L_END")
    e("L_SSM_P2:")
    if not opt.wearly: ssm_w_setup(e, 'P')
    e("L_SSM_P2b:")
    ld_w, ld_a, queue = gen_p2_stream(e, 'S', 10)
    stamp(e, 6, 14)
    e(f"s_cmp_eq_u32 s{sWAVE}, 0\ns_cbranch_scc0 L_SSM_lw")
    spoll_tiles(e, 'ST', 'S')
    e('s_waitcnt vmcnt(0)')
    lds_signal(e, 12, 10)
    e("s_branch L_SSM_go\nL_SSM_lw:\ns_waitcnt vmcnt(0)")
    lds_wait(e, 'S', 12, 10)
    e("L_SSM_go:")
    if opt.sshelp:
        e(f"s_cmp_eq_u32 s{sISU}, 1\ns_cbranch_scc0 L_SSM_nohw")
        lds_wait_ge(e, 'H', 20, 4, 10)
        e("L_SSM_nohw:")
    stamp(e, 7, 14)
    dbgmax(e, 5)
    if opt.l2pf2: l2_prefetch(e, 85, 10 * 32, 4 if opt.map2 == 1 else 8, f"s{sCB}", 3 if opt.map2 == 1 else 7, 2 if opt.map2 == 1 else 1)
    del queue[:]
    emit_stream(e, 10, ld_w, ld_a, queue, NLS, 3)
    if opt.ststamps:
        e(f"""s_memtime s[100:101]
s_waitcnt lgkmcnt(0)
v_writelane_b32 v250, s100, 15
s_lshl_b32 s98, s2, 3
s_add_u32 s98, s98, s{sWAVE}
s_lshl_b32 s98, s98, 6
s_add_u32 s98, s98, {STAMP_OFF + 0x40000}
v_lshlrev_b32 v251, 2, v0
s_mov_b64 exec, 0xffff
buffer_store_dword v250, v251, s[{SWS}:{SWS+3}], s98 offen
s_mov_b64 exec, -1""")
    stamp(e, 8, 14)
    dbgmax(e, 6)
    XR, DK, B2, GG = 96, 106, 116, 126
    e(f"""s_lshr_b32 s80, s{sWAVE}, 1
s_lshl_b32 s80, s80, 5
s_and_b32 s81, s{sWAVE}, 1
s_lshl_b32 s81, s81, 3
s_add_u32 s80, s80, s81
s_lshl_b32 s81, s{sRB2}, 6
s_add_u32 s80, s80, s81
v_bfe_u32 v2, v0, 3, 1
v_lshlrev_b32 v2, 4, v2
v_and_b32 v3, 7, v0
v_add_u32 v2, v2, v3
v_add_u32 v2, s80, v2
v_lshrrev_b32 v3, 4, v0
v_lshlrev_b32 v4, 3, v3
s_mul_i32 s81, s{sCB}, 160
v_mul_u32_u24 v5, 1280, v2
v_add_u32 v5, v5, v4
v_lshlrev_b32 v6, 3, v2""")
    srd(e, STA, P_AX, 2621440)
    for dt in range(5):
        e(f"buffer_load_dwordx2 v[{XR+2*dt}:{XR+2*dt+1}], v5, s[{STA}:{STA+3}], s81 offen offset:{32*dt}")
    srd(e, STB, P_DSK, 1280)
    for dt in range(5):
        e(f"buffer_load_dwordx2 v[{DK+2*dt}:{DK+2*dt+1}], v4, s[{STB}:{STB+3}], s81 offen offset:{32*dt}")
    srd(e, STA, P_B2, 1280)
    for dt in range(5):
        e(f"buffer_load_dwordx2 v[{B2+2*dt}:{B2+2*dt+1}], v4, s[{STA}:{STA+3}], s81 offen offset:{32*dt}")
    e(f"s_mov_b32 s82, {G_OFF}")
    e(f"buffer_load_dwordx2 v[{GG}:{GG+1}], v6, s[{SWS}:{SWS+3}], s82 offen sc1")
    e(f"""s_mul_i32 s83, s{sWAVE}, 15360
s_add_u32 s83, s83, {LDS_Y}
v_add_u32 v7, s83, v1""")
    OWN = 130
    for w in range(4):
        e(f"s_cmp_eq_u32 s{sWAVE}, {w}\ns_cbranch_scc0 L_YW_{w}")
        sl = 0
        for tt in range(4):
            if tt == w: continue
            for dt in range(5):
                e(f"ds_write_b128 v7, {R(acc2(dt,tt))} offset:{sl * 5120 + dt * 1024}")
            sl += 1
        for dt in range(5):
            for r in range(4):
                e(f"v_mov_b32 v{OWN+4*dt+r}, v{acc2(dt,w)+r}")
        e(f"s_branch L_YW_done\nL_YW_{w}:")
    e("L_YW_done:")
    for k in range(3):
        e(f"""s_cmp_ge_u32 {k}, s{sWAVE}
s_cselect_b32 s80, {k+1}, {k}
s_cselect_b32 s81, 0, 1
s_sub_u32 s81, s{sWAVE}, s81
s_mul_i32 s80, s80, 15360
s_mul_i32 s81, s81, 5120
s_add_u32 s80, s80, s81
s_add_u32 s80, s80, {LDS_Y}
v_add_u32 v{8+k}, s80, v1""")
    e(f"""s_mul_i32 s80, s{sWAVE}, 5120
v_add_u32 v11, s80, v1
v_add_u32 v12, 40960, v11""")
    e("s_waitcnt lgkmcnt(0)\ns_barrier")
    stamp(e, 9, 14)
    YR, FR = 16, 150
    for k in range(3):
        for dt in range(5):
            e(f"ds_read_b128 {R(YR+20*k+4*dt)}, v{8+k} offset:{dt*1024}")
    for w2 in range(4):
        for dt in range(5):
            e(f"ds_read_b128 {R(FR+20*w2+4*dt)}, v{11+(w2>>1)} offset:{(w2&1)*20480 + dt*1024}")
    e(f"""s_waitcnt vmcnt(0)
s_mov_b32 s80, 0
L_G_chk:
v_cmp_ne_u32 vcc, s{sNONCE}, v{GG+1}
s_add_u32 s80, s80, 1
s_cmp_ge_u32 s80, {opt.spin_limit}
s_cbranch_scc1 L_G_ok
s_cmp_eq_u64 vcc, 0
s_cbranch_scc1 L_G_ok
s_sleep 2
buffer_load_dwordx2 v[{GG}:{GG+1}], v6, s[{SWS}:{SWS+3}], s82 offen sc1
s_waitcnt vmcnt(0)
s_branch L_G_chk
L_G_ok:
v_sub_f32 v13, 1.0, v{GG}
v_cvt_pk_bf16_f32 v13, v13, v13
v_and_b32 v13, 0xffff0000, v13""")
    e("s_waitcnt lgkmcnt(0)")
    for k in range(3):
        for i in range(0, 20, 2):
            e(f"v_pk_add_f32 v[{OWN+i}:{OWN+i+1}], v[{OWN+i}:{OWN+i+1}], v[{YR+20*k+i}:{YR+20*k+i+1}]")
    for k in range(1, 4):
        for i in range(0, 20, 2):
            e(f"v_pk_add_f32 v[{FR+i}:{FR+i+1}], v[{FR+i}:{FR+i+1}], v[{FR+20*k+i}:{FR+20*k+i+1}]")
    srd(e, SOUT, P_OUT, 5242880)
    e(f"""v_mul_u32_u24 v5, 2560, v2
v_lshlrev_b32 v4, 4, v3
v_add_u32 v5, v5, v4
s_mul_i32 s81, s{sCB}, 320""")
    for dt in range(5):
        T = 16 + 12 * dt
        for nm, src in ((0, XR), (4, DK), (8, B2)):
            e(f"""v_lshlrev_b32 v{T+nm}, 16, v{src+2*dt}
v_and_b32 v{T+nm+1}, 0xffff0000, v{src+2*dt}
v_lshlrev_b32 v{T+nm+2}, 16, v{src+2*dt+1}
v_and_b32 v{T+nm+3}, 0xffff0000, v{src+2*dt+1}""")
        y, f = OWN + 4 * dt, FR + 4 * dt
        for r in range(0, 4, 2):
            e(f"v_pk_fma_f32 v[{y+r}:{y+r+1}], v[{T+r}:{T+r+1}], v[{T+4+r}:{T+4+r+1}], v[{y+r}:{y+r+1}]")
            e(f"v_pk_add_f32 v[{f+r}:{f+r+1}], v[{f+r}:{f+r+1}], v[{T+8+r}:{T+8+r+1}]")
        o_ = 232 + 4 * dt if dt < 5 else 0
        for r in range(4):
            e(f"v_mul_f32 v{T+r}, v{GG}, v{y+r}")
        for r in range(4):
            e(f"v_fma_f32 v{o_+r}, v13, v{f+r}, v{T+r}")
        e(f"buffer_store_dwordx4 {R(o_)}, v5, s[{SOUT}:{SOUT+3}], s81 offen offset:{dt*64} {['', 'sc1', 'nt', 'sc0 sc1'][opt.osc]}")
    stamp(e, 10, 14)
    if opt.dbgtime: e("s_waitcnt vmcnt(0)")
    dbgmax(e, 7)
    e("s_branch L_END")

def gen_gate_loads(e, W=84):
    srd(e, STA, P_GW, 1280)
    srd(e, STB, P_AX, 2621440)
    e(f"""v_lshlrev_b32 v12, 4, v0
v_lshlrev_b32 v13, 2, v0
s_lshl_b32 s80, s2, 3
s_lshl_b32 s81, s{W}, 1
s_add_u32 s80, s80, s81
s_mul_i32 s81, s80, 1280
s_add_u32 s82, s81, 1280
buffer_load_dwordx4 v[16:19], v12, s[{STA}:{STA+3}], 0 offen
buffer_load_dword v20, v13, s[{STA}:{STA+3}], 0 offen offset:1024
buffer_load_dwordx4 v[22:25], v12, s[{STB}:{STB+3}], s81 offen
buffer_load_dword v26, v13, s[{STB}:{STB+3}], s81 offen offset:1024
buffer_load_dwordx4 v[28:31], v12, s[{STB}:{STB+3}], s82 offen
buffer_load_dword v32, v13, s[{STB}:{STB+3}], s82 offen offset:1024""")

def gen_gate_compute(e):
    e("v_mov_b32 v40, 0\nv_mov_b32 v41, 0")
    for m in range(5):
        e(f"""v_lshlrev_b32 v36, 16, v{16+m}
v_and_b32 v37, 0xffff0000, v{16+m}""")
        for row in range(2):
            x = 22 + 6 * row + m
            e(f"""v_lshlrev_b32 v38, 16, v{x}
v_and_b32 v39, 0xffff0000, v{x}
v_mul_f32 v38, v38, v36
v_mul_f32 v39, v39, v37
v_cvt_pk_bf16_f32 v38, v38, v39
v_lshlrev_b32 v39, 16, v38
v_and_b32 v38, 0xffff0000, v38
v_add_f32 v{40+row}, v{40+row}, v39
v_add_f32 v{40+row}, v{40+row}, v38""")
    for sh in ("row_shr:1", "row_shr:2", "row_shr:4", "row_shr:8", "row_bcast:15 row_mask:0xa", "row_bcast:31 row_mask:0xc"):
        for row in range(2):
            e(f"v_add_f32 v{40+row}, v{40+row}, v{40+row} {sh}")
    e("""v_readlane_b32 s80, v40, 63
v_readlane_b32 s81, v41, 63""")
    e(f"""v_mov_b32 v42, s80
v_mov_b32 v43, s81
v_cmp_eq_u32 vcc, 1, v0
v_cndmask_b32 v42, v42, v43, vcc
v_cvt_pk_bf16_f32 v42, v42, v42
v_and_b32 v42, 0xffff0000, v42
v_mul_f32 v42, 0xbfb8aa3b, v42
v_exp_f32 v42, v42
v_add_f32 v42, 1.0, v42
v_rcp_f32 v42, v42
v_cvt_pk_bf16_f32 v42, v42, v42
v_and_b32 v42, 0xffff0000, v42
v_mov_b32 v43, s{sNONCE}
v_lshlrev_b32 v44, 3, v0
s_lshl_b32 s80, s2, 3
s_lshl_b32 s81, s84, 1
s_add_u32 s80, s80, s81
s_lshl_b32 s80, s80, 3
s_add_u32 s80, s80, {G_OFF}
s_mov_b64 exec, 3
buffer_store_dwordx2 v[42:43], v44, s[{SWS}:{SWS+3}], s80 offen sc0 sc1
s_mov_b64 exec, -1""")

def generate(path):
    e = Emitter()
    hdr = open("gated_mix__ssm_conv_s5__dense_activation_squared_relu__prompt.s.ref").read().split("\n")
    head = [l for l in hdr if l.startswith(";") and "@launch" not in l and "Override" not in l and "grid=ceil" not in l]
    txt = "\n".join(head) + f"\n; @launch grid=(256,1,1) block=(512,1,1) lds={LDS_SIZE}\n"
    txt += '.amdgcn_target "amdgcn-amd-amdhsa--gfx950"\n.text\n'
    txt += f".globl {NAME}\n.p2align 8\n.type {NAME},@function\n{NAME}:\n"
    gen_entry(e)
    gen_consumer(e)
    gen_loader(e)
    gen_p2(e)
    e("L_END:\ns_endpgm\nL_CODE_END:")
    txt += e.text()
    txt += f""".section .rodata,"a"
.p2align 6
.amdhsa_kernel {NAME}
  .amdhsa_next_free_vgpr 256
  .amdhsa_next_free_sgpr 102
  .amdhsa_accum_offset 256
  .amdhsa_group_segment_fixed_size 0
  .amdhsa_kernarg_size 144
  .amdhsa_user_sgpr_count 2
  .amdhsa_user_sgpr_kernarg_segment_ptr 1
  .amdhsa_system_sgpr_workgroup_id_x 1
.end_amdhsa_kernel
"""
    open(path, "w").write(txt)
    print("pads:", e.npad, "lines:", len(e.out))

if __name__ == "__main__":
    opt.check_g = True
    opt.nowait = 0
    opt.nodma = 0
    opt.itstamps = 0
    opt.l2pf = 0
    opt.gw2 = 0
    opt.thr = 0
    opt.fswn = 5
    opt.osc = 0
    opt.nosc1 = 0
    opt.nw = 5
    opt.na = 3
    opt.fsw = 2
    opt.gall = 0
    opt.udelay = 0
    opt.dbgtime = 0
    opt.sorder = 1
    opt.sshelp = 1
    opt.ststamps = 0
    opt.rot = 0
    opt.sprio = 0
    opt.eprio = 3
    opt.wearly = 0
    opt.ldslate = 0
    opt.prio = 1
    opt.cpf = 1
    opt.wdelay = 0
    opt.noprep = 0
    opt.nost = 0
    opt.map2 = 1
    opt.gw = 0
    opt.gloop = 1
    opt.ssleep = 8
    opt.l2pf2 = 0
    for a in sys.argv[2:]:
        k, v = a.split("=")
        setattr(opt, k, int(v))
    if opt.nw != 5 or opt.na != 3: set_nw(opt.nw, opt.na)
    generate(sys.argv[1])
```

```python
import sys
from emit import Emitter

NAME = "gated_mix__ssm_conv_s5__dense_activation_squared_relu__prompt_kernel"

ACT_OFF   = 0
WF_OFF    = 0xC00000
G_OFF     = 0x1000000
AG_OFF    = 0x1010000
WFLAG_OFF = 0x1040000
TFLAG_OFF = 0x1050000
STAMP_OFF = 0x1100000
SLOT = 40960
LDS_PREP = 122880
LDS_TAB  = 143360
LDS_LX   = LDS_TAB + 8448
LDS_FLAG = LDS_LX + 768
LDS_DUMMY = LDS_FLAG + 64
LDS_F    = 0
LDS_Y    = 81920
LDS_SIZE = 163840

SX, SWA, SWB, SWS, STA, STB, SOUT = 4, 8, 12, 16, 20, 24, 28
P_AX, P_LRE, P_LIM, P_BRE, P_BIM, P_CRE, P_CIM, P_LDT, P_DSK, P_BX, P_W1, P_B1, P_W2, P_B2, P_GW, P_OUT, P_DBG, P_WS = [36 + 2 * i for i in range(18)]
sWAVE, sRB, sCOL, sJ, sRB2, sCB, sNONCE, sISU = 72, 73, 74, 75, 76, 77, 78, 79
SG, sGo, sGinc = 28, 83, 85

class Opt:
    phase2 = True
    stamps = False
    spin_limit = 200000
opt = Opt()

def srd(e, s, ptr, size):
    e(f"s_mov_b32 s{s}, s{ptr}\ns_mov_b32 s{s+1}, s{ptr+1}\ns_mov_b32 s{s+2}, {size}\ns_mov_b32 s{s+3}, 0x20000")

def R(b, n=4):
    return f"v[{b}:{b+n-1}]"

_stamp_id = [0]
def stamp(e, idx, tmpv=14):
    if not opt.stamps: return
    e(f"""s_memrealtime s[100:101]
s_lshl_b32 s98, s2, 3
s_add_u32 s98, s98, s{sWAVE}
s_lshl_b32 s98, s98, 6
s_add_u32 s98, s98, {STAMP_OFF + 4*idx}
s_waitcnt lgkmcnt(0)
v_mov_b32 v{tmpv}, s100
v_mov_b32 v{tmpv+1}, 0
s_mov_b64 s[96:97], exec
s_mov_b64 exec, 1
buffer_store_dword v{tmpv}, v{tmpv+1}, s[{SWS}:{SWS+3}], s98 offen
s_mov_b64 exec, s[96:97]""")

def stamp_clk(e, idx, tmpv=14):
    if not opt.stamps: return
    e(f"""s_memtime s[100:101]
s_lshl_b32 s98, s2, 3
s_add_u32 s98, s98, s{sWAVE}
s_lshl_b32 s98, s98, 6
s_add_u32 s98, s98, {STAMP_OFF + 4*idx}
s_waitcnt lgkmcnt(0)
v_mov_b32 v{tmpv}, s100
v_mov_b32 v{tmpv+1}, 0
s_mov_b64 s[96:97], exec
s_mov_b64 exec, 1
buffer_store_dword v{tmpv}, v{tmpv+1}, s[{SWS}:{SWS+3}], s98 offen
s_mov_b64 exec, s[96:97]""")

class Cap:
    def __init__(self): self.l = []
    def __call__(self, s):
        for x in s.split("\n"):
            if x.strip(): self.l.append(x.strip())

def merge(e, main_groups, aux):
    n = len(main_groups); k = 0
    per = -(-len(aux) // n) if n else 0
    for g in main_groups:
        for x in g: e(x)
        for x in aux[k:k + per]: e(x)
        k += per
    for x in aux[k:]: e(x)

_dm = [0]
def dbgmax(e, idx, neg=False, tv=14):
    if not opt.dbgtime: return
    _dm[0] += 1; n = _dm[0]
    e(f"""s_and_b32 s100, s{sWAVE}, 3
s_cmp_eq_u32 s100, 0
s_cbranch_scc0 L_dm{n}
s_cmp_eq_u32 s2, 0
s_cselect_b32 s101, {4*idx}, {4*(idx+8)}
s_cbranch_scc1 L_dmg{n}
s_cmp_eq_u32 s2, 255
s_cbranch_scc0 L_dm{n}
L_dmg{n}:
v_mov_b32 v{tv+1}, s101
s_memrealtime s[100:101]
s_mov_b32 s96, s{P_DBG}
s_mov_b32 s97, s{P_DBG+1}
s_mov_b32 s98, 256
s_mov_b32 s99, 0x20000
s_waitcnt lgkmcnt(0)
v_mov_b32 v{tv}, s100
s_mov_b64 exec, 1
buffer_store_dword v{tv}, v{tv+1}, s[96:99], 0 offen
s_mov_b64 exec, -1
L_dm{n}:""")

def interleave(e, A, B, lead=1):
    bi = 0
    for i, a in enumerate(A):
        e(a)
        if i >= lead - 1 and bi < len(B):
            e(B[bi]); bi += 1
    while bi < len(B):
        e(B[bi]); bi += 1

def spin_nonce(e, tag, vtmp):
    srd(e, STA, P_DBG, 256)
    e(f"""v_mov_b32 v{vtmp+1}, 0
s_mov_b32 s80, 0
L_nonce_{tag}:
buffer_load_dword v{vtmp}, v{vtmp+1}, s[{STA}:{STA+3}], 0 offen sc1
s_add_u32 s80, s80, 1
s_waitcnt vmcnt(0)
v_readfirstlane_b32 s{sNONCE}, v{vtmp}
s_cmp_ge_u32 s80, {opt.spin_limit}
s_cbranch_scc1 L_nonce_done_{tag}
s_cmp_eq_u32 s{sNONCE}, 0
s_cbranch_scc0 L_nonce_done_{tag}
s_sleep 1
s_branch L_nonce_{tag}
L_nonce_done_{tag}:""")

def poll_flags(e, tag, vaddr, vtmp, soff_sgpr, nlanes_mask_lo, mask_hi=0, sleep=1):
    e(f"""s_mov_b32 s80, 0
s_mov_b32 s82, {nlanes_mask_lo}
s_mov_b32 s83, {mask_hi}
L_poll_{tag}:
buffer_load_dword v{vtmp}, v{vaddr}, s[{SWS}:{SWS+3}], s{soff_sgpr} offen sc1
s_add_u32 s80, s80, 1
s_waitcnt vmcnt(0)
v_cmp_ne_u32 vcc, s{sNONCE}, v{vtmp}
s_cmp_ge_u32 s80, {opt.spin_limit}
s_cbranch_scc1 L_poll_done_{tag}
s_and_b64 vcc, vcc, s[82:83]
s_cbranch_scc0 L_poll_done_{tag}
s_sleep {sleep}
s_branch L_poll_{tag}
L_poll_done_{tag}:""")

def gen_entry(e):
    if opt.map2 == 1:
        MAP2 = f"""s_lshr_b32 s82, s80, 1
s_lshl_b32 s82, s82, 3
s_lshr_b32 s83, s81, 2
s_add_u32 s{sRB2}, s82, s83
s_and_b32 s82, s80, 1
s_lshl_b32 s82, s82, 2
s_and_b32 s83, s81, 3
s_add_u32 s{sCB}, s82, s83"""
    else:
        MAP2 = f"""s_lshl_b32 s82, s80, 2
s_and_b32 s83, s81, 3
s_add_u32 s{sRB2}, s82, s83
s_lshr_b32 s{sCB}, s81, 2"""
    e(f"""s_cmp_ge_u32 s2, 256
s_cbranch_scc1 L_END
s_load_dwordx16 s[36:51], s[0:1], 0
s_load_dwordx16 s[52:67], s[0:1], 64
s_load_dwordx4 s[68:71], s[0:1], 128
v_lshrrev_b32 v1, 6, v0
v_and_b32 v0, 63, v0
v_readfirstlane_b32 s{sWAVE}, v1
s_and_b32 s80, s2, 7
s_lshr_b32 s81, s2, 3
s_and_b32 s82, s80, 1
s_lshl_b32 s82, s82, 3
s_and_b32 s83, s81, 7
s_add_u32 s{sRB}, s82, s83
s_lshr_b32 s82, s80, 1
s_lshl_b32 s82, s82, 2
s_lshr_b32 s83, s81, 3
s_add_u32 s{sCOL}, s82, s83
{MAP2}
s_sub_u32 s82, s{sCOL}, 9
s_cmp_ge_u32 s{sCOL}, 9
s_cselect_b32 s{sISU}, 1, 0
s_cselect_b32 s{sJ}, s82, s{sCOL}
s_waitcnt lgkmcnt(0)""")
    srd(e, SWS, P_WS, 0x10000000)
    srd(e, SX, P_AX, 2621440)
    stamp(e, 12, 14)
    e(f"""s_cmp_eq_u32 s2, 0
s_cbranch_scc0 L_no_nonce
s_cmp_eq_u32 s{sWAVE}, 4
s_cbranch_scc0 L_no_nonce
s_memrealtime s[80:81]""")
    srd(e, STA, P_DBG, 256)
    e(f"""s_waitcnt lgkmcnt(0)
s_or_b32 s80, s80, 1
v_mov_b32 v2, s80
v_mov_b32 v3, 0
s_mov_b64 exec, 1
buffer_store_dword v2, v3, s[{STA}:{STA+3}], 0 offen sc0 sc1
s_mov_b64 exec, -1
L_no_nonce:
s_cmp_ge_u32 s{sWAVE}, 4
s_cbranch_scc1 L_LOADER""")

def cmul(e, d, a, b, t):
    e(f"""v_mul_f32 v{d}, v{a}, v{b}
v_mul_f32 v{d+1}, v{a}, v{b+1}
v_fma_f32 v{d}, -v{a+1}, v{b+1}, v{d}
v_fma_f32 v{d+1}, v{a+1}, v{b}, v{d+1}""")

def csq(e, d, a):
    cmul(e, d, a, a, None)

def cfma(e, d, a, b, c):
    e(f"""v_fma_f32 v{d}, v{a}, v{b}, v{c}
v_fma_f32 v{d+1}, v{a}, v{b+1}, v{c+1}
v_fma_f32 v{d}, -v{a+1}, v{b+1}, v{d}
v_fma_f32 v{d+1}, v{a+1}, v{b}, v{d+1}""")

def gen_loader(e):
    e("L_LOADER:")
    vXo = 2; vWo = 4
    sXo = 86
    sWo = 90
    sLX, sLW, sWinc = 32, 33, 34
    def issue_x(s):
        slot = (s % 3) * SLOT
        for m in range(4):
            e(f"s_add_u32 m0, s{sLX}, {slot + m*1024}")
            e(f"buffer_load_dwordx4 v{vXo}, s[{SX}:{SX+3}], s{sXo+m} offen lds")
            e(f"s_add_u32 s{sXo+m}, s{sXo+m}, 128")
    def issue_w(s):
        slot = (s % 3) * SLOT
        for m in range(6):
            S = SWB if (m >> 1) == 1 else SWA
            e(f"s_add_u32 m0, s{sLW}, {slot + m*1024}")
            e(f"buffer_load_dwordx4 v{vWo+m}, s[{S}:{S+3}], s{sWo+m} offen lds")
            e(f"s_add_u32 s{sWo+m}, s{sWo+m}, s{sWinc}")
    def issue(s):
        issue_x(s); issue_w(s)
    e(f"""s_sub_u32 s84, s{sWAVE}, 4
v_lshrrev_b32 v10, 3, v0
v_and_b32 v11, 7, v0
v_xor_b32 v11, v11, v10
v_lshlrev_b32 v11, 4, v11
s_lshl_b32 s{sLX}, s84, 12
s_mul_i32 s{sLW}, s84, 6144
s_add_u32 s{sLW}, s{sLW}, 16384
s_lshl_b32 s85, s{sRB}, 7""")
    e(f"""s_mul_i32 s80, s{sJ}, 96
s_lshl_b32 s81, s84, 5
s_add_u32 s80, s80, s81
v_and_b32 v12, 31, v0
v_add_u32 v12, s80, v12
v_min_u32 v12, 639, v12
v_lshlrev_b32 v12, 1, v12""")
    srd(e, STA, P_LRE, 1280)
    e(f"buffer_load_ushort v20, v12, s[{STA}:{STA+3}], 0 offen")
    srd(e, STB, P_LIM, 1280)
    e(f"buffer_load_ushort v21, v12, s[{STB}:{STB+3}], 0 offen")
    srd(e, STA, P_LDT, 1280)
    e(f"buffer_load_ushort v22, v12, s[{STA}:{STA+3}], 0 offen")
    e(f"""s_cmp_eq_u32 s{sISU}, 1
s_cbranch_scc1 L_LD_U""")
    e(f"""v_mul_u32_u24 v{vXo}, 1280, v10
v_add_u32 v{vXo}, v{vXo}, v11
s_lshl_b32 s80, s84, 5
s_add_u32 s80, s80, s85""")
    for m in range(4):
        e(f"s_add_u32 s81, s80, {16*(m&1) + 8*(m>>1)}\ns_mul_i32 s{sXo+m}, s81, 1280")
    issue_x(0)
    srd(e, SWA, P_W1, 2211840)
    srd(e, SWB, P_W1, 2211840)
    e(f"""s_mul_i32 s80, s84, {16*3456}
s_mul_i32 s81, s{sJ}, 384
s_add_u32 s80, s80, s81""")
    for m in range(6):
        e(f"s_mov_b32 s{sWo+m}, s80")
    e(f"s_mov_b32 s{sWinc}, {64*3456}")
    for m in range(6):
        e(f"""v_add_u32 v12, {64*m}, v0
v_mul_u32_u24 v13, 2731, v12
v_lshrrev_b32 v13, 16, v13
v_mul_u32_u24 v14, 24, v13
v_sub_u32 v14, v12, v14
v_bfe_u32 v15, v13, 1, 1
v_lshlrev_b32 v15, 1, v15
v_bfe_u32 v16, v13, 3, 1
v_lshlrev_b32 v16, 2, v16
v_or_b32 v15, v15, v16
v_xor_b32 v14, v14, v15
v_lshlrev_b32 v14, 4, v14
v_mul_u32_u24 v13, 3456, v13
v_add_u32 v{vWo+m}, v13, v14""")
    e("s_branch L_LD_GO")
    e("L_LD_U:")
    e(f"""v_lshrrev_b32 v12, 5, v0
v_lshlrev_b32 v12, 4, v12
v_bfe_u32 v13, v0, 3, 1
v_lshlrev_b32 v13, 3, v13
v_add_u32 v12, v12, v13
v_bfe_u32 v13, v0, 4, 1
v_add_u32 v12, v12, v13
v_mul_u32_u24 v{vXo}, 1280, v12
v_add_u32 v{vXo}, v{vXo}, v11
s_lshr_b32 s80, s84, 1
s_lshl_b32 s80, s80, 6
s_and_b32 s81, s84, 1
s_lshl_b32 s82, s81, 2
s_add_u32 s80, s80, s82
s_add_u32 s80, s80, s85""")
    for m in range(4):
        e(f"s_add_u32 s82, s80, {32*(m&1) + 2*(m>>1)}\ns_mul_i32 s{sXo+m}, s82, 1280")
    issue_x(0)
    e(f"""v_mul_u32_u24 v12, 1280, v10
v_add_u32 v12, v12, v11""")
    for m in range(6):
        e(f"v_mov_b32 v{vWo+m}, v12")
    e(f"""s_mul_i32 s80, s{sJ}, 96
s_lshr_b32 s82, s84, 1
s_mul_i32 s82, s82, 48
s_add_u32 s80, s80, s82
s_mul_i32 s83, s81, 3""")
    for m in range(6):
        e(f"""s_add_u32 s82, s83, {m>>1}
s_lshr_b32 s82, s82, 1
s_lshl_b32 s82, s82, 4
s_add_u32 s82, s82, s80
s_add_u32 s82, s82, {8*(m&1)}
s_min_u32 s82, s82, 632
s_mul_i32 s{sWo+m}, s82, 1280""")
    e(f"s_mov_b32 s{sWinc}, 128")
    e(f"""s_cmp_eq_u32 s81, 0
s_cselect_b32 s{SWA}, s{P_BRE}, s{P_BIM}
s_cselect_b32 s{SWA+1}, s{P_BRE+1}, s{P_BIM+1}
s_cselect_b32 s{SWB}, s{P_BIM}, s{P_BRE}
s_cselect_b32 s{SWB+1}, s{P_BIM+1}, s{P_BRE+1}
s_mov_b32 s{SWA+2}, 819200
s_mov_b32 s{SWA+3}, 0x20000
s_mov_b32 s{SWB+2}, 819200
s_mov_b32 s{SWB+3}, 0x20000""")
    e("L_LD_GO:")
    def groups(s_):
        slot = (s_ % 3) * SLOT
        G = []
        for m in range(4):
            G.append([f"s_add_u32 m0, s{sLX}, {slot + m*1024}",
                      f"buffer_load_dwordx4 v{vXo}, s[{SX}:{SX+3}], s{sXo+m} offen lds",
                      f"s_add_u32 s{sXo+m}, s{sXo+m}, 128"])
        for m in range(6):
            S = SWB if (m >> 1) == 1 else SWA
            G.append([f"s_add_u32 m0, s{sLW}, {slot + m*1024}",
                      f"buffer_load_dwordx4 v{vWo+m}, s[{S}:{S+3}], s{sWo+m} offen lds",
                      f"s_add_u32 s{sWo+m}, s{sWo+m}, s{sWinc}"])
        return G
    def gath():
        if opt.gall:
            e(f"buffer_load_dword v18, v17, s[{SWS}:{SWS+3}], 0 offen")
        else:
            e(f"buffer_load_dword v18, v17, s[{SG}:{SG+3}], s{sGo} offen\ns_add_u32 s{sGo}, s{sGo}, s{sGinc}")
    issue_w(0)
    if opt.gall: e("v_mov_b32 v17, 0x10000000")
    else: gen_gather_setup(e, 84, 'L', 3)
    issue(1)
    e("s_waitcnt vmcnt(10)\ns_barrier")
    issue(2); gath()
    e("s_waitcnt vmcnt(11)\ns_barrier")
    c = Cap(); gen_lambda_table(c, 0)
    merge(e, groups(3), c.l); gath()
    e("s_waitcnt vmcnt(12)\ns_barrier")
    e(f"""v_and_b32 v62, 31, v0
s_lshl_b32 s80, s84, 5
v_add_u32 v62, s80, v62
v_lshlrev_b32 v62, 3, v62
s_mov_b32 s81, {LDS_TAB}
s_cmp_eq_u32 s84, 3
s_cselect_b32 s80, {LDS_DUMMY - 768}, s81
v_add_u32 v62, s80, v62""")
    c = Cap(); gen_lambda_table(c, 1)
    merge(e, groups(4), c.l); gath()
    srd(e, STA, P_DBG, 256)
    e(f"v_mov_b32 v12, 0\nbuffer_load_dword v99, v12, s[{STA}:{STA+3}], 0 offen")
    e("s_waitcnt vmcnt(13)\ns_barrier")
    issue(5); gath()
    e("s_waitcnt vmcnt(11)\ns_barrier")
    e(f"""v_readfirstlane_b32 s{sNONCE}, v99
s_cmp_eq_u32 s{sNONCE}, 0
s_cbranch_scc0 L_LD_nonce_ok""")
    spin_nonce(e, 'L', 10)
    e("L_LD_nonce_ok:")
    e(f"""s_mul_i32 s3, s84, 14
s_cmp_eq_u32 s84, 3
s_cselect_b32 s80, 1, 0
s_sub_u32 s3, s3, s80
v_lshlrev_b32 v12, 2, v0
s_lshl_b32 s81, s{sCB}, 9
s_lshl_b32 s82, s3, 2
s_add_u32 s81, s81, s82
s_add_u32 s35, s81, {WFLAG_OFF}
s_mul_i32 s80, s84, 10
s_add_u32 s80, s80, {54 - 16}
s_sub_u32 s80, s80, s3
s_lshl_b32 s80, s80, 2
v_add_u32 v14, s80, v12
v_cmp_le_u32 vcc, 16, v0
v_cndmask_b32 v12, v12, v14, vcc
v_lshlrev_b32 v1, 4, v0
buffer_load_dword v13, v12, s[{SWS}:{SWS+3}], s35 offen sc1""")
    issue(6); gath()
    e("s_waitcnt vmcnt(11)\ns_barrier")
    nsh = 8 if opt.map2 == 1 else 4
    perF, perS = -(-560 // nsh), -(-400 // nsh)
    e(f"""v_cmp_ne_u32 vcc, s{sNONCE}, v13
s_nop 1
s_and_b32 s99, vcc_lo, 0x03ff3fff
s_and_b32 s80, s{sRB2}, {nsh-1}
s_mul_i32 s81, s{sCB}, 94
s_add_u32 s82, s81, s3
s_mul_i32 s82, s82, 5120
s_mul_i32 s97, s80, {perF*128}
s_add_u32 s97, s97, s82
s_add_u32 s97, s97, {WF_OFF}
s_mul_i32 s82, s84, 10
s_add_u32 s82, s82, 54
s_add_u32 s82, s82, s81
s_mul_i32 s82, s82, 5120
s_mul_i32 s98, s80, {perS*128}
s_add_u32 s98, s98, s82
s_add_u32 s98, s98, {WF_OFF}
v_lshlrev_b32 v15, 7, v0
v_mov_b32 v14, 0x10000000
s_cmp_eq_u32 s99, 0
s_cselect_b32 s80, {1 if opt.gw3 else 0}, 0
v_mov_b32 v16, s80
v_cmp_eq_u32 vcc, 1, v16
v_cndmask_b32 v15, v14, v15, vcc""")
    def wg(i):
        if i == 0:
            e(f"buffer_load_dword v18, v15, s[{SWS}:{SWS+3}], s97 offen sc1")
        elif i == 1:
            e(f"""v_cmp_ne_u32 vcc, v14, v15
v_min_u32 v16, {(perF-64-1)*128 if perF > 64 else 0}, v15
v_cndmask_b32 v16, v14, v16, vcc
s_add_u32 s97, s97, 8192
buffer_load_dword v18, v16, s[{SWS}:{SWS+3}], s97 offen sc1""")
        else:
            e(f"""v_cmp_ne_u32 vcc, v14, v15
v_min_u32 v16, {(min(perS,64)-1)*128}, v15
v_cndmask_b32 v16, v14, v16, vcc
buffer_load_dword v18, v16, s[{SWS}:{SWS+3}], s98 offen sc1""")
    issue(7); gath(); wg(0)
    e("s_waitcnt vmcnt(13)\ns_barrier")
    issue(8); gath(); wg(1)
    e("s_waitcnt vmcnt(14)\ns_barrier")
    issue(9); wg(2)
    e("s_waitcnt vmcnt(13)\ns_barrier")
    e(f"""s_mov_b32 s85, s3
s_mov_b32 s86, s84
s_mul_i32 s87, s86, 20480
s_mul_i32 s84, s{sCB}, 94
s_add_u32 s84, s84, s85
s_mul_i32 s84, s84, 5120
s_add_u32 s84, s84, {WF_OFF}
s_cmp_ge_u32 s86, 2
s_cselect_b32 s89, 13, 14""")
    rot_setup(e, 89, False)
    ld_w, ld_a, queue = gen_p2_stream(e, 'x', 14)
    e(f"""s_cmp_eq_u32 s99, 0
s_cbranch_scc0 L_LD_wlate""")
    ld_w(0); ld_w(1)
    e("s_waitcnt vmcnt(11)\ns_barrier")
    for s_ in range(2, NW): ld_w(s_)
    e("s_branch L_LD_wdone\nL_LD_wlate:\ns_waitcnt vmcnt(0)\ns_barrier")
    poll_flags(e, 'FW', 12, 13, 35, 0x03ff3fff)
    for s_ in range(NW): ld_w(s_)
    e("L_LD_wdone:")
    stamp(e, 1, 14)
    gen_gate_loads(e, 86)
    lds_wait_ge(e, 'R', 24, 4, 10)
    if opt.wdelay or opt.udelay:
        if not opt.udelay: e(f"s_cmp_eq_u32 s{sISU}, 1\ns_cbranch_scc1 L_LD_nodelay")
        if not opt.wdelay: e(f"s_cmp_eq_u32 s{sISU}, 0\ns_cbranch_scc1 L_LD_nodelay")
        lds_wait_ge(e, 'W', 16, 4, 10)
        e("L_LD_nodelay:")
    stamp(e, 7, 14)
    w_lds(e, NLF, 87, throttle=('A' if opt.thr >= 0 else None))
    lds_count(e, 28, 10)
    if opt.sshelp:
        e(f"s_cmp_eq_u32 s{sISU}, 1\ns_cbranch_scc0 L_NOHELP")
        e(f"""s_mul_i32 s80, s86, 10
s_add_u32 s80, s80, {54 + NW}
s_mul_i32 s81, s{sCB}, 94
s_add_u32 s80, s80, s81
s_mul_i32 s80, s80, 5120
s_add_u32 s80, s80, {WF_OFF}
s_mul_i32 s81, s86, 15360
s_add_u32 s81, s81, {LDS_Y}""")
        for i in range(NLS):
            if opt.thr >= 0: e(f"s_waitcnt vmcnt({opt.thr})")
            for dt in range(5):
                e(f"""s_add_u32 m0, s81, {i*5120 + dt*1024}
buffer_load_dwordx4 v1, s[{SWS}:{SWS+3}], s80 offen sc1 lds
s_add_u32 s80, s80, 1024""")
        e("L_NOHELP:")
    stamp(e, 2, 14)

NLF, NLS = 4, 3
def w_prefetch(e, nsteps, NL, lds_base_sgpr, do_lds=True, rng=None):
    nsh = 8 if opt.map2 == 1 else 4
    per = -(-nsteps * 40 // nsh)
    if opt.gw: l2_prefetch(e, 84, nsteps * 40, nsh, f"s{sRB2}", nsh - 1, -(-per // 64))
    ld_w, ld_a, queue = gen_p2_stream(e, 'x', nsteps)
    for s_ in (range(NW) if rng is None else rng): ld_w(s_)
    if do_lds: w_lds(e, NL, lds_base_sgpr)

def w_gathers(e):
    nsh = 8 if opt.map2 == 1 else 4
    l2_prefetch(e, 84, 14 * 40, nsh, f"s{sRB2}", nsh - 1, 2 if nsh == 8 else 2)
    e(f"""s_mul_i32 s88, s86, 10
s_add_u32 s88, s88, 54
s_mul_i32 s81, s{sCB}, 94
s_add_u32 s88, s88, s81
s_mul_i32 s88, s88, 5120
s_add_u32 s88, s88, {WF_OFF}""")
    l2_prefetch(e, 88, 10 * 40, nsh, f"s{sRB2}", nsh - 1, 1)

def w_lds(e, NL, lds_base_sgpr, queue=None, throttle=None):
    for i in range(NL):
        if throttle is not None:
            e(f"s_cmp_eq_u32 s{sISU}, 1\ns_cbranch_scc0 L_thr_{throttle}{i}\ns_waitcnt vmcnt({opt.thr})\nL_thr_{throttle}{i}:")
        for dt in range(5):
            e(f"""s_add_u32 m0, s{lds_base_sgpr}, {i*5120 + dt*1024}
buffer_load_dwordx4 v1, s[{SWS}:{SWS+3}], s84 offen sc1 lds
s_add_u32 s84, s84, 1024""")
            if queue is not None: queue.append(('l', NW + i))
        wrap_w(e)

def ffn_w_prefetch(e):
    e(f"""s_mov_b32 s86, s84
s_mul_i32 s87, s86, 20480
s_mul_i32 s84, s{sCB}, 94
s_add_u32 s84, s84, s85
s_mul_i32 s84, s84, 5120
s_add_u32 s84, s84, {WF_OFF}
s_cmp_ge_u32 s86, 2
s_cselect_b32 s89, 13, 14""")
    rot_setup(e, 89, False)
    w_prefetch(e, 14, NLF, 87, do_lds=not opt.ldslate)
    if opt.sshelp:
        e(f"""s_cmp_eq_u32 s{sISU}, 1
s_cbranch_scc0 L_NOHELP
s_mul_i32 s80, s86, 10
s_add_u32 s80, s80, 54
s_lshl_b32 s80, s80, 2
s_lshl_b32 s81, s{sCB}, 9
s_add_u32 s80, s80, s81
s_add_u32 s88, s80, {WFLAG_OFF}
v_lshlrev_b32 v12, 2, v0""")
        poll_flags(e, 'HW', 12, 13, 88, 0x3ff)
        e(f"""s_mul_i32 s80, s86, 10
s_add_u32 s80, s80, {54 + NW}
s_mul_i32 s81, s{sCB}, 94
s_add_u32 s80, s80, s81
s_mul_i32 s80, s80, 5120
s_add_u32 s80, s80, {WF_OFF}
s_mul_i32 s81, s86, 15360
s_add_u32 s81, s81, {LDS_Y}""")
        for i in range(NLS):
            for dt in range(5):
                e(f"""s_add_u32 m0, s81, {i*5120 + dt*1024}
buffer_load_dwordx4 v1, s[{SWS}:{SWS+3}], s80 offen sc1 lds
s_add_u32 s80, s80, 1024""")
        e("L_NOHELP:")

def l2_prefetch(e, sbase, nlines, nshare, share_sgpr, share_mask, ninstr, vtmp=12, vdst=15):
    per = -(-nlines // nshare)
    e(f"""s_and_b32 s80, {share_sgpr}, {share_mask}
s_mul_i32 s80, s80, {per*128}
s_add_u32 s80, s80, s{sbase}
v_lshlrev_b32 v{vtmp}, 7, v0""")
    for i in range(ninstr):
        if i * 64 < per and per - i * 64 < 64:
            e(f"v_min_u32 v{vtmp}, {(per - i*64 - 1)*128}, v{vtmp}")
        e(f"buffer_load_dword v{vdst}, v{vtmp}, s[{SWS}:{SWS+3}], s80 offen sc1")
        if i * 64 + 64 < per: e(f"s_add_u32 s80, s80, 8192")

def gen_gather_setup(e, W=84, T='', start=1):
    e(f"""s_lshr_b32 s80, s2, 3
s_and_b32 s81, s80, 7
s_lshr_b32 s80, s80, 3
v_mov_b32 v17, 0x10000000
s_mov_b32 s{sGo}, {128*start}
s_mov_b32 s{sGinc}, 128
s_mov_b32 s{SG}, s{SX}
s_mov_b32 s{SG+1}, s{SX+1}
s_mov_b32 s{SG+2}, 2621440
s_mov_b32 s{SG+3}, 0x20000
s_cmp_eq_u32 s{W}, 0
s_cbranch_scc0 L_GS_1{T}
s_lshl_b32 s80, s80, 5
s_lshl_b32 s82, s{sRB}, 7
s_add_u32 s80, s80, s82
v_add_u32 v16, s80, v0
v_mul_u32_u24 v16, 1280, v16
v_cmp_gt_u32 vcc, 32, v0
v_cndmask_b32 v17, v17, v16, vcc
s_branch L_GS_done{T}
L_GS_1{T}:
s_cmp_ge_u32 s{W}, 3
s_cbranch_scc1 L_GS_done{T}
s_cmp_eq_u32 s{sISU}, 1
s_cbranch_scc1 L_GS_U{T}
s_cmp_eq_u32 s{W}, 1
s_cbranch_scc0 L_GS_done{T}
s_mov_b32 s{SG}, s{P_W1}
s_mov_b32 s{SG+1}, s{P_W1+1}
s_mov_b32 s{SG+2}, 2211840
s_mul_i32 s{sGo}, s{sJ}, 384
s_add_u32 s{sGo}, s{sGo}, {64*3456*start}
s_mov_b32 s{sGinc}, {64*3456}
v_mul_u32_u24 v16, 43, v0
v_lshrrev_b32 v16, 7, v16
v_mul_u32_u24 v15, 3, v16
v_sub_u32 v15, v0, v15
s_lshl_b32 s81, s81, 3
v_add_u32 v16, s81, v16
v_mul_u32_u24 v16, 3456, v16
v_lshlrev_b32 v15, 7, v15
v_add_u32 v16, v16, v15
v_cmp_gt_u32 vcc, 24, v0
v_cndmask_b32 v17, v17, v16, vcc
s_branch L_GS_done{T}
L_GS_U{T}:
s_cmp_eq_u32 s{W}, 1
s_cselect_b32 s{SG}, s{P_BRE}, s{P_BIM}
s_cselect_b32 s{SG+1}, s{P_BRE+1}, s{P_BIM+1}
s_mov_b32 s{SG+2}, 819200
s_mul_i32 s80, s{sJ}, 96
s_mul_i32 s81, s81, 12
s_add_u32 s80, s80, s81
v_add_u32 v16, s80, v0
v_min_u32 v16, 639, v16
v_mul_u32_u24 v16, 1280, v16
v_cmp_gt_u32 vcc, 12, v0
v_cndmask_b32 v17, v17, v16, vcc
L_GS_done{T}:""")
    if not opt.gloop: e("v_mov_b32 v17, 0x10000000")

def gen_unit_ids(e, W):
    e(f"""s_cmp_ge_u32 s2, 108
s_cbranch_scc1 L_UID_C
s_lshr_b32 s3, s2, 1
s_and_b32 s35, s2, 1
s_lshl_b32 s35, s35, 2
s_add_u32 s35, s35, s{W}
s_branch L_UID_done
L_UID_C:
s_sub_u32 s80, s2, 108
s_and_b32 s35, s80, 7
s_lshr_b32 s80, s80, 3
s_lshl_b32 s3, s80, 2
s_add_u32 s3, s3, s{W}
s_add_u32 s3, s3, 54
L_UID_done:""")

def gen_prep_gather(e, W=84):
    e(f"""s_cmp_ge_u32 s3, 54
s_cbranch_scc1 L_PG_C""")
    srd(e, STA, P_W2, 2211840)
    e(f"""v_mul_u32_u24 v10, 52, v0
v_lshrrev_b32 v10, 8, v10
v_mul_u32_u24 v11, 5, v10
v_sub_u32 v11, v0, v11
s_lshl_b32 s80, s{W}, 3
v_add_u32 v10, s80, v10
v_mul_u32_u24 v10, 1280, v10
v_lshlrev_b32 v11, 7, v11
v_add_u32 v10, v10, v11
v_mov_b32 v11, 0x10000000
v_cmp_gt_u32 vcc, 40, v0
v_cndmask_b32 v10, v11, v10, vcc
s_mul_i32 s80, s3, {32*1280}
s_and_b32 s81, s2, 1
s_mul_i32 s81, s81, 640
s_add_u32 s80, s80, s81
buffer_load_dword v18, v10, s[{STA}:{STA+3}], s80 offen
buffer_load_dword v18, v11, s[{STA}:{STA+3}], s80 offen
s_branch L_PG_done
L_PG_C:""")
    srd(e, STA, P_CRE, 819200)
    srd(e, STB, P_CIM, 819200)
    e(f"""s_mul_i32 s81, s35, 80
s_mul_i32 s80, s{W}, 20
s_add_u32 s81, s81, s80
v_add_u32 v10, s81, v0
v_mul_u32_u24 v10, 1280, v10
v_mov_b32 v11, 0x10000000
v_cmp_gt_u32 vcc, 20, v0
v_cndmask_b32 v10, v11, v10, vcc
s_sub_u32 s80, s3, 54
s_lshr_b32 s80, s80, 2
s_min_u32 s80, s80, 9
s_lshl_b32 s80, s80, 7
buffer_load_dword v18, v10, s[{STA}:{STA+3}], s80 offen
buffer_load_dword v18, v10, s[{STB}:{STB+3}], s80 offen
L_PG_done:""")

def gen_lambda_table(e, part):
    L1, L2, L4, L8, L16, L32, L48, L64, L128, L256, L512, L1024, C2 = 30, 32, 34, 36, 38, 40, 42, 44, 46, 48, 50, 52, 54
    if part == 0:
        e(f"""v_lshlrev_b32 v20, 16, v20
v_lshlrev_b32 v21, 16, v21
v_lshlrev_b32 v22, 16, v22
v_mul_f32 v23, 0x3fb8aa3b, v22
v_exp_f32 v23, v23
s_nop 0
v_cvt_pk_bf16_f32 v23, v23, v23
v_and_b32 v23, 0xffff0000, v23
v_mul_f32 v24, v23, v20
v_mul_f32 v25, v23, v21
v_mul_f32 v24, 0x3fb8aa3b, v24
v_exp_f32 v24, v24
v_mul_f32 v25, 0.15915494, v25
v_fract_f32 v25, v25
v_sin_f32 v26, v25
v_cos_f32 v27, v25
s_nop 0
v_mul_f32 v31, v24, v26
v_mul_f32 v30, v24, v27""")
        csq(e, L2, L1); csq(e, L4, L2); csq(e, L8, L4); csq(e, L16, L8); csq(e, L32, L16)
        cmul(e, L48, L32, L16, None)
        csq(e, L64, L32); csq(e, L128, L64)
        return
    csq(e, L256, L128); csq(e, L512, L256); csq(e, L1024, L512)
    e(f"""v_add_f32 v56, -1.0, v30
v_mul_f32 v57, v20, v20
v_fma_f32 v57, v21, v21, v57
v_rcp_f32 v57, v57
v_mul_f32 v58, v56, v20
v_fma_f32 v58, v31, v21, v58
v_mul_f32 v59, v31, v20
v_fma_f32 v59, -v56, v21, v59
v_add_f32 v57, v57, v57
v_mul_f32 v{C2}, v58, v57
v_mul_f32 v{C2+1}, v59, v57
v_mov_b32 v60, 1.0
v_mov_b32 v61, 0""")
    ents = [L1, L8, 60, L16, L32, L48, L64, L128, L512, L1024, C2]
    for i, r in enumerate(ents):
        e(f"ds_write_b64 v62, v[{r}:{r+1}] offset:{i*768}")
    e("s_waitcnt lgkmcnt(0)")

ACC = 64
SETA, SETB = 160, 200
def acc_ffn(ft, tt): return ACC + (ft * 4 + tt) * 4
def acc_u(i, tp): return ACC + (i * 6 + tp) * 4

def reads(kind, st, ks):
    L = []
    vX = 2 + ks
    if kind == 'F':
        xs = [f"ds_read_b128 {R(st + 4*t)}, v{vX} offset:{t*2048}" for t in range(4)]
        ws = []
        for ft in range(6):
            for h in range(2):
                ws.append(f"ds_read_b64_tr_b16 v[{st+16+4*ft+2*h}:{st+16+4*ft+2*h+1}], v{4+ft} offset:{ks*12288 + h*1536}")
        L = ws[:2] + xs + ws[2:]
    else:
        vW = 4 + ks
        xs = [f"ds_read_b128 {R(st + 4*t)}, v{vX} offset:{t*2048}" for t in range(4)]
        ws = [f"ds_read_b128 {R(st + 16 + 4*t)}, v{vW} offset:{t*2048}" for t in range(6)]
        L = [ws[0]] + xs + ws[1:]
    return L

def mfmas(kind, st, first=False):
    L = []
    for n in range(6):
        for t in range(4):
            if kind == 'F':
                d = acc_ffn(n, t)
                c = R(16 + 20 + 4*n) if first else R(d)
                L.append(f"v_mfma_f32_16x16x32_bf16 {R(d)}, {R(st+16+4*n)}, {R(st+4*t)}, {c}")
            else:
                d = acc_u(t, n)
                c = "0" if first else R(d)
                L.append(f"v_mfma_f32_16x16x32_bf16 {R(d)}, {R(st+4*t)}, {R(st+16+4*n)}, {c}")
    return L

def gen_prep_issue(e, W=84, D=116):
    e(f"""s_cmp_ge_u32 s3, 54
s_cbranch_scc1 L_PREP_C""")
    srd(e, STA, P_W2, 2211840)
    e(f"""s_mul_i32 s80, s3, {32*1280}
s_mul_i32 s81, s35, 160
s_add_u32 s80, s80, s81
s_mul_i32 s81, s{W}, 5120
s_add_u32 s81, s81, {LDS_PREP}""")
    for n in range(5):
        e(f"""v_add_u32 v10, {64*n}, v0
v_mul_u32_u24 v11, 205, v10
v_lshrrev_b32 v11, 11, v11
v_mul_u32_u24 v12, 10, v11
v_sub_u32 v12, v10, v12
v_mul_u32_u24 v11, 1280, v11
v_lshlrev_b32 v12, 4, v12
v_add_u32 v11, v11, v12
s_add_u32 m0, s81, {n*1024}
buffer_load_dwordx4 v11, s[{STA}:{STA+3}], s80 offen lds""")
    e("v_mov_b32 v11, 0x10000000")
    for n in range(5):
        e(f"buffer_load_dword v{D}, v11, s[{STA}:{STA+3}], s80 offen")
    e("s_branch L_PREP_issued")
    e("L_PREP_C:")
    srd(e, STA, P_CRE, 819200)
    srd(e, STB, P_CIM, 819200)
    e(f"""v_and_b32 v10, 15, v0
v_mul_u32_u24 v10, 1280, v10
v_lshrrev_b32 v11, 4, v0
v_lshlrev_b32 v11, 3, v11
v_add_u32 v10, v10, v11
s_sub_u32 s80, s3, 54
s_min_u32 s80, s80, 39
s_lshl_b32 s80, s80, 5
s_mul_i32 s81, s35, {80*1280}
s_add_u32 s80, s80, s81""")
    for dt in range(5):
        e(f"buffer_load_dwordx2 v[{D+4*dt}:{D+1+4*dt}], v10, s[{STA}:{STA+3}], s80 offen")
        e(f"buffer_load_dwordx2 v[{D+2+4*dt}:{D+3+4*dt}], v10, s[{STB}:{STB+3}], s80 offen")
        if dt < 4: e(f"s_add_u32 s80, s80, {16*1280}")
    e("L_PREP_issued:")

def gen_prep_finish(e, W=84, D=116, T=''):
    e(f"""s_cmp_ge_u32 s3, 54
s_cbranch_scc1 L_PF_store{T}
v_lshrrev_b32 v10, 4, v0
v_lshlrev_b32 v10, 2, v10
v_bfe_u32 v11, v0, 2, 2
v_add_u32 v10, v10, v11
v_mul_u32_u24 v10, 160, v10
v_and_b32 v11, 3, v0
v_lshlrev_b32 v11, 3, v11
v_add_u32 v10, v10, v11
s_mul_i32 s81, s{W}, 5120
s_add_u32 s81, s81, {LDS_PREP}
v_add_u32 v10, s81, v10""")
    for dt in range(5):
        for h in range(2):
            e(f"ds_read_b64_tr_b16 v[{D+4*dt+2*h}:{D+1+4*dt+2*h}], v10 offset:{dt*32 + h*16*160}")
    e("s_waitcnt lgkmcnt(0)")
    e(f"L_PF_store{T}:")
    e(f"""s_mul_i32 s80, s35, 94
s_add_u32 s80, s80, s3
s_mul_i32 s80, s80, 5120
s_add_u32 s80, s80, {WF_OFF}
v_lshlrev_b32 v10, 4, v0
v_mov_b32 v11, 0x10000000
s_cmp_ge_u32 s3, 94
s_cselect_b32 s81, 1, 0
v_mov_b32 v12, s81
v_cmp_eq_u32 vcc, 1, v12
v_cndmask_b32 v10, v10, v11, vcc""")
    for dt in range(5):
        if dt < 4:
            e(f"buffer_store_dwordx4 {R(D+4*dt)}, v10, s[{SWS}:{SWS+3}], s80 offen offset:{dt*1024} sc1")
        else:
            e(f"s_add_u32 s80, s80, 4096")
            e(f"buffer_store_dwordx4 {R(D+4*dt)}, v10, s[{SWS}:{SWS+3}], s80 offen sc1")

def gen_prep_flag(e):
    e(f"""s_lshl_b32 s80, s35, 9
s_lshl_b32 s81, s3, 2
s_add_u32 s80, s80, s81
s_add_u32 s80, s80, {WFLAG_OFF}
v_mov_b32 v10, s{sNONCE}
s_cmp_ge_u32 s3, 94
s_cselect_b32 s81, 0x10000000, 0
v_mov_b32 v11, s81
s_mov_b64 exec, 1
buffer_store_dword v10, v11, s[{SWS}:{SWS+3}], s80 offen sc0 sc1
s_mov_b64 exec, -1""")

def interleave2(e, A, B, per):
    bi = 0
    for i, a in enumerate(A):
        e(a)
        for _ in range(per[i] if i < len(per) else 0):
            if bi < len(B): e(B[bi]); bi += 1
    while bi < len(B):
        e(B[bi]); bi += 1

def gen_main_loop(e, kind):
    tag = kind
    naddr = [2, 3] + ([4, 5, 6, 7, 8, 9] if kind == 'F' else [4, 5])
    sIT, sDELTA, sSLOT = 86, 87, 88
    def adv_list():
        L = [f"s_add_u32 s{sSLOT}, s{sSLOT}, 1", f"s_cmp_eq_u32 s{sSLOT}, 3",
             f"s_cselect_b32 s{sDELTA}, s90, s89", f"s_cselect_b32 s{sSLOT}, 0, s{sSLOT}"]
        L += [f"v_add_u32 v{v}, s{sDELTA}, v{v}" for v in naddr]
        return L
    e(f"s_mov_b32 s{sIT}, 1\ns_mov_b32 s{sSLOT}, 0\ns_mov_b32 s89, {SLOT}\ns_mov_b32 s90, {-2*SLOT & 0xffffffff}")
    if opt.itstamps:
        e(f"s_memtime s[100:101]\ns_waitcnt lgkmcnt(0)\nv_writelane_b32 v250, s100, 10")
    e("s_waitcnt lgkmcnt(0)\ns_barrier")
    if opt.itstamps:
        e(f"s_memtime s[100:101]\ns_waitcnt lgkmcnt(0)\nv_writelane_b32 v250, s100, 0")
    for r in reads(kind, SETA, 0): e(r)
    e("s_waitcnt lgkmcnt(0)")
    rb = reads(kind, SETB, 1)
    items = rb + adv_list()
    nr = len(rb)
    def perlist(nr, nextra):
        per = [1] * 24
        rem = 24 - nr
        per = [1] * nr + [0] * rem
        k = nextra; i = nr
        while k > 0:
            per[i] += 1; k -= 1; i += 1
            if i == 24: i = max(nr, 8)
        return per
    interleave2(e, mfmas(kind, SETA, first=True), items, perlist(nr, len(items) - nr))
    e("s_waitcnt lgkmcnt(0)")
    e(f"L_ML_{tag}:")
    e("s_barrier")
    if opt.itstamps:
        e(f"s_memtime s[100:101]\ns_waitcnt lgkmcnt(0)\ns_mov_b32 m0, s{sIT}\nv_writelane_b32 v250, s100, m0")
    ra = reads(kind, SETA, 0)
    interleave2(e, mfmas(kind, SETB), ra, [1] * 24)
    e(f"""s_cmp_eq_u32 s{sIT}, {opt.flit}
s_cbranch_scc0 L_ML_h2_{tag}
s_waitcnt vmcnt(0)
v_readfirstlane_b32 s{sNONCE}, v249
s_cmp_eq_u32 s{sNONCE}, 0
s_cbranch_scc0 L_ML_h2b_{tag}""")
    spin_nonce(e, 'H' + tag, 10)
    e(f"L_ML_h2b_{tag}:")
    gen_prep_flag(e)
    e(f"L_ML_h2_{tag}:")
    e("s_waitcnt lgkmcnt(0)")
    items = rb + adv_list() + [f"s_add_u32 s{sIT}, s{sIT}, 1", f"s_cmp_lt_u32 s{sIT}, 10"]
    interleave2(e, mfmas(kind, SETA), items, perlist(nr, len(items) - nr))
    e(f"""s_waitcnt lgkmcnt(0)
s_cbranch_scc1 L_ML_{tag}""")
    lds_count(e, 24, 10)
    e(f"""s_mul_i32 s87, s{sWAVE}, 10
s_add_u32 s87, s87, 54
s_lshl_b32 s89, s{sCB}, 9
s_lshl_b32 s90, s87, 2
s_add_u32 s89, s89, s90
s_add_u32 s35, s89, {WFLAG_OFF}
v_lshlrev_b32 v8, 2, v0
buffer_load_dword v1, v8, s[{SWS}:{SWS+3}], s35 offen sc1""")
    for m in mfmas(kind, SETB): e(m)
    if opt.itstamps:
        e(f"""s_memtime s[100:101]
s_waitcnt lgkmcnt(0)
v_writelane_b32 v250, s100, 11
s_lshl_b32 s98, s2, 3
s_add_u32 s98, s98, s{sWAVE}
s_lshl_b32 s98, s98, 6
s_add_u32 s98, s98, {STAMP_OFF + 0x40000}
v_lshlrev_b32 v251, 2, v0
s_mov_b64 exec, 0xffff
buffer_store_dword v250, v251, s[{SWS}:{SWS+3}], s98 offen
s_mov_b64 exec, -1""")

def tile_flag(e, tag):
    nyoung = 0
    if opt.wearly:
        ssm_w_setup(e, tag)
        nyoung = SSM_W_OPS()
    e(f"""s_waitcnt vmcnt({nyoung})
s_lshr_b32 s80, s{sWAVE}, 1
s_lshl_b32 s81, s{sRB}, 1
s_add_u32 s80, s80, s81
s_lshl_b32 s80, s80, 8
s_lshl_b32 s81, s{sCOL}, 1
s_and_b32 s82, s{sWAVE}, 1
s_add_u32 s81, s81, s82
s_lshl_b32 s82, s81, 2
s_cmp_ge_u32 s81, 18
s_cselect_b32 s81, 56, 0
s_add_u32 s80, s80, s82
s_add_u32 s80, s80, s81
s_add_u32 s80, s80, {TFLAG_OFF}
v_mov_b32 v10, s{sNONCE}
v_mov_b32 v11, 0
s_mov_b64 exec, 1
buffer_store_dword v10, v11, s[{SWS}:{SWS+3}], s80 offen sc0 sc1
s_mov_b64 exec, -1""")
    if opt.eprio: e("s_setprio 0")

def SSM_W_OPS():
    nsh = 8 if opt.map2 == 1 else 4
    ng = (-(-(-(-10 * 40 // nsh)) // 64)) if opt.gw else 0
    return NW * 5 + NLS * 5 + ng

def ssm_w_setup(e, tag, order=True, defer_lds=False):
    e(f"""s_waitcnt vmcnt({12 if order else 0})
s_mul_i32 s87, s{sWAVE}, 10
s_add_u32 s87, s87, 54
v_cmp_ne_u32 vcc, s{sNONCE}, v1
v_lshlrev_b32 v1, 4, v0
v_lshlrev_b32 v8, 2, v0
s_and_b32 s80, vcc_lo, 0x3ff
s_cbranch_scc0 L_SSM_wok{tag}""")
    poll_flags(e, 'SW' + tag, 8, 10, 35, 0x3ff)
    e(f"""L_SSM_wok{tag}:
s_mul_i32 s84, s{sCB}, 94
s_add_u32 s84, s84, s87
s_mul_i32 s84, s84, 5120
s_add_u32 s84, s84, {WF_OFF}
s_mul_i32 s85, s{sRB2}, 94
s_add_u32 s85, s85, s87
s_lshl_b32 s85, s85, 12
s_mul_i32 s88, s{sWAVE}, 15360
s_add_u32 s88, s88, {LDS_Y}
v_add_u32 v3, s88, v1""")
    rot_setup(e, 10, True)
    rot_act(e)
    if opt.sorder and order:
        e(f"s_cmp_eq_u32 s{sISU}, 1\ns_cbranch_scc1 L_SSM_noord{tag}")
        lds_wait_ge(e, 'O' + tag, 28, 4, 10)
        e(f"L_SSM_noord{tag}:")
    if opt.sprio: e(f"s_setprio {opt.sprio}")
    if opt.sshelp:
        w_prefetch(e, 10, NLS, 88, do_lds=False, rng=(range(opt.fswn) if defer_lds else None))
        if not defer_lds:
            e(f"s_cmp_eq_u32 s{sISU}, 1\ns_cbranch_scc1 L_SSM_skiplds{tag}")
            w_lds(e, NLS, 88)
            e(f"s_branch L_SSM_ldsdone{tag}\nL_SSM_skiplds{tag}:\ns_add_u32 s84, s84, {NLS*5120}\nL_SSM_ldsdone{tag}:")
    else:
        w_prefetch(e, 10, NLS, 88)

def x_addr_setup(e):
    e(f"""s_lshr_b32 s80, s{sWAVE}, 1
s_lshl_b32 s80, s80, 13
v_and_b32 v10, 15, v0
v_lshlrev_b32 v10, 7, v10
v_lshrrev_b32 v11, 4, v0
v_and_b32 v12, 7, v0
v_xor_b32 v11, v11, v12
v_lshlrev_b32 v11, 4, v11
v_add_u32 v10, v10, v11
v_add_u32 v2, s80, v10
v_xor_b32 v3, 64, v2""")

def p1_l2_prefetch(e, kind):
    e(f"""s_lshr_b32 s81, s2, 3
s_lshr_b32 s82, s81, 3
s_lshl_b32 s82, s82, 5
s_lshl_b32 s83, s{sRB}, 7
s_add_u32 s82, s82, s83
v_and_b32 v10, 31, v0
v_add_u32 v10, s82, v10
v_mul_u32_u24 v10, 1280, v10
v_lshrrev_b32 v11, 5, v0
s_lshl_b32 s83, s{sWAVE}, 1
s_add_u32 s83, s83, 2
v_add_u32 v11, s83, v11
v_lshlrev_b32 v11, 7, v11
v_add_u32 v10, v10, v11
buffer_load_dword v247, v10, s[{SX}:{SX+3}], 0 offen
s_and_b32 s81, s81, 7""")
    if kind == 'F':
        srd(e, STA, P_W1, 2211840)
        e(f"""s_lshl_b32 s83, s{sWAVE}, 6
v_add_u32 v10, s83, v0
v_mul_u32_u24 v11, 2731, v10
v_lshrrev_b32 v11, 16, v11
v_mul_u32_u24 v12, 24, v11
v_sub_u32 v12, v10, v12
v_mul_u32_u24 v13, 43, v12
v_lshrrev_b32 v13, 7, v13
v_mul_u32_u24 v10, 3, v13
v_sub_u32 v12, v12, v10
v_lshlrev_b32 v11, 6, v11
v_add_u32 v11, v11, v13
s_lshl_b32 s83, s81, 3
s_add_u32 s83, s83, 128
v_add_u32 v11, s83, v11
v_mul_u32_u24 v11, 3456, v11
v_lshlrev_b32 v12, 7, v12
v_add_u32 v11, v11, v12
s_mul_i32 s83, s{sJ}, 384
buffer_load_dword v247, v11, s[{STA}:{STA+3}], s83 offen""")
    else:
        e(f"""s_cmp_ge_u32 s{sWAVE}, 2
s_cselect_b32 s{STA}, s{P_BIM}, s{P_BRE}
s_cselect_b32 s{STA+1}, s{P_BIM+1}, s{P_BRE+1}
s_mov_b32 s{STA+2}, 819200
s_mov_b32 s{STA+3}, 0x20000
s_and_b32 s83, s{sWAVE}, 1
s_lshl_b32 s83, s83, 6
v_add_u32 v10, s83, v0
v_min_u32 v10, 95, v10
v_mul_u32_u24 v11, 171, v10
v_lshrrev_b32 v11, 11, v11
v_mul_u32_u24 v12, 12, v11
v_sub_u32 v12, v10, v12
s_mul_i32 s83, s{sJ}, 96
s_mul_i32 s82, s81, 12
s_add_u32 s83, s83, s82
v_add_u32 v12, s83, v12
v_min_u32 v12, 639, v12
v_mul_u32_u24 v12, 1280, v12
v_add_u32 v11, 2, v11
v_lshlrev_b32 v11, 7, v11
v_add_u32 v12, v12, v11
buffer_load_dword v247, v12, s[{STA}:{STA+3}], 0 offen""")

def consumer_start_loads(e, nbefore):
    gen_gather_setup(e, sWAVE, 'C', 0)
    ng = 10 if opt.gall else 3
    for _ in range(ng):
        e(f"buffer_load_dword v18, v17, s[{SG}:{SG+3}], s{sGo} offen\ns_add_u32 s{sGo}, s{sGo}, s{sGinc}")
    gen_unit_ids(e, sWAVE)
    if opt.gall:
        gen_prep_gather(e, sWAVE)
    gen_prep_issue(e, sWAVE, 16)

def consumer_common_setup(e):
    srd(e, STA, P_DBG, 256)
    e(f"v_mov_b32 v248, 0\nbuffer_load_dword v249, v248, s[{STA}:{STA+3}], 0 offen")

def gen_consumer_ffn(e):
    e("L_CONS_F:")
    srd(e, STB, P_B1, 3456)
    e(f"""s_mul_i32 s80, s{sJ}, 384
s_and_b32 s81, s{sWAVE}, 1
s_mul_i32 s81, s81, 192
s_add_u32 s80, s80, s81
v_lshrrev_b32 v10, 4, v0
v_lshlrev_b32 v10, 3, v10""")
    for ft in range(6):
        e(f"buffer_load_dwordx2 v[{224+2*ft}:{225+2*ft}], v10, s[{STB}:{STB+3}], s80 offen offset:{32*ft}")

    x_addr_setup(e)
    e(f"""v_lshrrev_b32 v10, 4, v0
v_bfe_u32 v11, v0, 2, 2
v_lshlrev_b32 v12, 3, v10
v_add_u32 v12, v12, v11
v_mul_u32_u24 v12, 384, v12
v_bfe_u32 v13, v0, 3, 1
v_lshlrev_b32 v13, 1, v13
v_and_b32 v14, 1, v10
v_lshlrev_b32 v14, 2, v14
v_or_b32 v13, v13, v14
v_bfe_u32 v14, v0, 1, 1
s_and_b32 s81, s{sWAVE}, 1
s_mul_i32 s81, s81, 12
v_add_u32 v14, s81, v14
v_and_b32 v15, 1, v0
v_lshlrev_b32 v15, 3, v15
v_add_u32 v12, v12, v15
v_add_u32 v12, 16384, v12""")
    for ft in range(6):
        e(f"""v_add_u32 v10, {2*ft}, v14
v_xor_b32 v10, v10, v13
v_lshlrev_b32 v10, 4, v10
v_add_u32 v{4+ft}, v12, v10""")
    e("s_waitcnt vmcnt(0)")
    gen_prep_finish(e, sWAVE, 16, 'F')
    consumer_common_setup(e)
    for ft in range(6):
        b = 36 + 4 * ft
        e(f"""v_lshlrev_b32 v{b}, 16, v{224+2*ft}
v_and_b32 v{b+1}, 0xffff0000, v{224+2*ft}
v_lshlrev_b32 v{b+2}, 16, v{225+2*ft}
v_and_b32 v{b+3}, 0xffff0000, v{225+2*ft}""")
    stamp(e, 0, 14)
    stamp_clk(e, 14, 14)
    dbgmax(e, 2)
    gen_main_loop(e, 'F')
    dbgmax(e, 3)
    if opt.eprio: e(f"s_setprio {opt.eprio}")
    stamp(e, 1, 14)
    stamp_clk(e, 15, 14)
    e(f"""s_lshr_b32 s80, s{sWAVE}, 1
s_lshl_b32 s81, s{sRB}, 1
s_add_u32 s80, s80, s81
s_mul_i32 s80, s80, 94
s_mul_i32 s81, s{sJ}, 6
s_add_u32 s80, s80, s81
s_and_b32 s81, s{sWAVE}, 1
s_mul_i32 s81, s81, 3
s_add_u32 s80, s80, s81
s_lshl_b32 s32, s80, 12
v_lshlrev_b32 v10, 4, v0""")
    k = 0
    OB = 196 if opt.fsw else SETA
    pend = []
    for u in range(3):
        for tt in range(4):
            o = OB + 4 * k; k += 1
            vals = [acc_ffn(2*u, tt), acc_ffn(2*u+1, tt)]
            tmp = 16 + 8 * (k & 1)
            for h, a in enumerate(vals):
                for r in range(4):
                    e(f"v_max_f32 v{tmp+4*h+r}, 0, v{a+r}")
            for h, a in enumerate(vals):
                for r in range(0, 4, 2):
                    e(f"v_pk_mul_f32 v[{a+r}:{a+r+1}], v[{a+r}:{a+r+1}], v[{tmp+4*h+r}:{tmp+4*h+r+1}]")
            for h, a in enumerate(vals):
                for r in range(0, 4, 2):
                    e(f"v_cvt_pk_bf16_f32 v{o+2*h+(r>>1)}, v{a+r}, v{a+r+1}")
            st_ = f"buffer_store_dwordx4 {R(o)}, v10, s[{SWS}:{SWS+3}], s32 offen offset:{tt*1024} sc1"
            if opt.fsw: pend.append(st_)
            else: e(st_)
        if u < 2:
            if opt.fsw: pend.append("s_add_u32 s32, s32, 4096")
            else: e("s_add_u32 s32, s32, 4096")
    if opt.fsw:
        ssm_w_setup(e, 'F', order=False, defer_lds=(opt.fsw == 2))
        e("v_lshlrev_b32 v10, 4, v0")
        for x in pend: e(x)
    lds_count(e, 16, 12)
    stamp(e, 2, 14)
    tile_flag(e, 'F')
    dbgmax(e, 4)
    stamp(e, 3, 14)
    if opt.fsw == 2:
        w_prefetch(e, 10, NLS, 88, do_lds=False, rng=range(opt.fswn, NW))
        w_lds(e, NLS, 88)
    e("s_branch L_SSM_P2b" if opt.fsw else "s_branch L_SSM_P2")

def gen_code_prefetch(e):
    e(f"""s_cmp_eq_u32 s{sWAVE}, 3
s_cbranch_scc0 L_CPF_done
s_getpc_b64 s[80:81]
L_CPF_pc:
s_sub_u32 s80, s80, L_CPF_pc-{NAME}
s_subb_u32 s81, s81, 0
s_lshr_b32 s82, s2, 3
s_lshl_b32 s82, s82, 11
v_and_b32 v10, 15, v0
v_lshlrev_b32 v10, 7, v10
v_add_u32 v10, s82, v10
v_min_u32 v10, L_CODE_END-{NAME}-4, v10
s_mov_b64 exec, 0xffff
global_load_dword v19, v10, s[80:81]
s_mov_b64 exec, -1
L_CPF_done:""")

def gen_consumer(e):
    dbgmax(e, 1)
    e(f"""v_mov_b32 v10, {LDS_FLAG}
v_mov_b32 v12, 0
v_mov_b32 v13, 0
v_mov_b32 v14, 0
v_mov_b32 v15, 0
ds_write_b128 v10, v[12:15]
ds_write_b128 v10, v[12:15] offset:16""")
    if opt.cpf: gen_code_prefetch(e)
    consumer_start_loads(e, 0)
    e(f"""s_cmp_eq_u32 s{sISU}, 1
s_cbranch_scc1 L_CONS_U""")
    gen_consumer_ffn(e)
    gen_consumer_u(e)

def pk(op, d, a, b, c=None, bsel=None, neg=False):
    assert bsel == 0, "op_sel hi-broadcast is unsafe next to MFMA (measured)"
    n = 3 if c is not None else 2
    sel = [0, bsel] + ([0] if c is not None else [])
    selh = [1, bsel] + ([1] if c is not None else [])
    s = f"{op} v[{d}:{d+1}], v[{a}:{a+1}], v[{b}:{b+1}]" + (f", v[{c}:{c+1}]" if c is not None else "")
    s += " op_sel:[" + ",".join(map(str, sel)) + "] op_sel_hi:[" + ",".join(map(str, selh)) + "]"
    if neg:
        ng = [0, 1] + ([0] if c is not None else [])
        s += " neg_lo:[" + ",".join(map(str, ng)) + "] neg_hi:[" + ",".join(map(str, ng)) + "]"
    return s

def gen_consumer_u(e):
    e("L_CONS_U:")
    x_addr_setup(e)
    e(f"""s_and_b32 s81, s{sWAVE}, 1
s_mul_i32 s81, s81, {96*128}
s_add_u32 s81, s81, 16384
v_add_u32 v4, s81, v10
v_xor_b32 v5, 64, v4""")
    e("s_waitcnt vmcnt(0)")
    gen_prep_finish(e, sWAVE, 16, 'U')
    consumer_common_setup(e)
    dbgmax(e, 2)
    stamp(e, 0, 14)
    gen_main_loop(e, 'U')
    dbgmax(e, 3)
    if opt.eprio: e(f"s_setprio {opt.eprio}")
    stamp(e, 1, 14)
    def K(ct, i): return 160 + 18 * ct + 2 * i
    LAM, L8, L16, L16Q, L64, L128, L512, L1024, C2 = range(9)
    ent = {LAM: 0, L8: 1, L16: 3, L64: 6, L128: 7, L512: 8, L1024: 9, C2: 10}
    e(f"""s_and_b32 s81, s{sWAVE}, 1
s_mul_i32 s81, s81, {48*8}
s_add_u32 s81, s81, {LDS_TAB}
v_and_b32 v10, 15, v0
v_lshlrev_b32 v10, 3, v10
v_add_u32 v10, s81, v10
v_lshrrev_b32 v11, 4, v0
v_mul_u32_u24 v11, 768, v11
v_add_u32 v11, v11, v10""")
    for ct in range(3):
        for k, en in ent.items():
            e(f"ds_read_b64 v[{K(ct,k)}:{K(ct,k)+1}], v10 offset:{en*768 + ct*128}")
        e(f"ds_read_b64 v[{K(ct,L16Q)}:{K(ct,L16Q)+1}], v11 offset:{2*768 + ct*128}")
    e("s_waitcnt lgkmcnt(0)")
    LI = [2, 252, 254]
    C2I = [16, 18, 20]
    for ct in range(3):
        e(f"v_mov_b32 v{LI[ct]}, v{K(ct, LAM)+1}")
    def U(n, ct, part):
        return acc_u(n >> 1, 2 * ct + part) + 2 * (n & 1)
    def Er(ct, s): return 16 + 8 * ct + 4 * s
    def Ei(ct, s): return 18 + 8 * ct + 4 * s
    for n in range(1, 8):
        src = (n - 1) & 1; dst = n & 1
        for ct in range(3):
            pr = U(0, ct, 0) if n == 1 else Er(ct, src)
            pi = U(0, ct, 1) if n == 1 else Ei(ct, src)
            e(pk("v_pk_fma_f32", Er(ct, dst), pr, K(ct, LAM), U(n, ct, 0), 0))
            e(pk("v_pk_fma_f32", Ei(ct, dst), pi, K(ct, LAM), U(n, ct, 1), 0))
        for ct in range(3):
            pr = U(0, ct, 0) if n == 1 else Er(ct, src)
            pi = U(0, ct, 1) if n == 1 else Ei(ct, src)
            e(pk("v_pk_fma_f32", Er(ct, dst), pi, LI[ct], Er(ct, dst), 0, neg=True))
            e(pk("v_pk_fma_f32", Ei(ct, dst), pr, LI[ct], Ei(ct, dst), 0))
    def LL(ct): return 16 + 8 * ct
    for ct in range(3):
        er, ei, l8 = Er(ct, 1), Ei(ct, 1), K(ct, L8)
        e(f"""v_fma_f32 v{LL(ct)}, v{l8}, v{er}, v{er+1}
v_fma_f32 v{LL(ct)+1}, v{l8}, v{ei}, v{ei+1}
v_fma_f32 v{LL(ct)}, -v{l8+1}, v{ei}, v{LL(ct)}
v_fma_f32 v{LL(ct)+1}, v{l8+1}, v{er}, v{LL(ct)+1}""")
    def G(ct, q): return 214 + 8 * ct + 2 * q
    for ct in range(3):
        for c in range(2):
            a, b, a2, b2 = G(ct, 0) + c, G(ct, 1) + c, G(ct, 2) + c, G(ct, 3) + c
            e(f"""v_mov_b32 v{a}, v{LL(ct)+c}
v_mov_b32 v{b}, v{LL(ct)+c}
v_permlane16_swap_b32 v{a}, v{b}
v_mov_b32 v{a2}, v{a}
v_mov_b32 v{b2}, v{b}
v_permlane32_swap_b32 v{a}, v{a2}
v_permlane32_swap_b32 v{b}, v{b2}""")
    for ct in range(3):
        cfma(e, G(ct, 1), K(ct, L16), G(ct, 0), G(ct, 1))
    for ct in range(3):
        cfma(e, G(ct, 2), K(ct, L16), G(ct, 1), G(ct, 2))
    for ct in range(3):
        cfma(e, G(ct, 3), K(ct, L16), G(ct, 2), G(ct, 3))
    e(f"""s_mov_b32 s80, 0xffff0000
s_mov_b32 s81, 0
s_mov_b32 s82, 0
s_mov_b32 s83, 0x0000ffff
s_mov_b32 s90, 0
s_mov_b32 s91, 0xffff0000""")
    for ct in range(3):
        for c in range(2):
            e(f"""v_cndmask_b32 v{LL(ct)+c}, 0, v{G(ct,0)+c}, s[80:81]
v_cndmask_b32 v{LL(ct)+c}, v{LL(ct)+c}, v{G(ct,1)+c}, s[82:83]
v_cndmask_b32 v{LL(ct)+c}, v{LL(ct)+c}, v{G(ct,2)+c}, s[90:91]""")
    e(f"""s_and_b32 s84, s{sWAVE}, 1
s_mul_i32 s85, s84, {48*8}
s_add_u32 s85, s85, {LDS_LX}
v_and_b32 v10, 15, v0
v_lshlrev_b32 v10, 3, v10
v_add_u32 v10, s85, v10
s_lshl_b32 s85, s84, 2
s_add_u32 s85, s85, {LDS_FLAG}
v_mov_b32 v11, s85
s_cmp_ge_u32 s{sWAVE}, 2
s_cbranch_scc1 L_U_wt1""")
    for ct in range(3):
        e(f"ds_write_b64 v10, v[{G(ct,3)}:{G(ct,3)+1}] offset:{ct*128}")
    e(f"""v_mov_b32 v12, 1
s_waitcnt lgkmcnt(0)
ds_write_b32 v11, v12
s_branch L_U_lb
L_U_wt1:
s_mov_b32 s85, 0
L_U_pairwait:
ds_read_b32 v12, v11
s_add_u32 s85, s85, 1
s_waitcnt lgkmcnt(0)
v_readfirstlane_b32 s86, v12
s_cmp_ge_u32 s85, {opt.spin_limit}
s_cbranch_scc1 L_U_pairok
s_cmp_eq_u32 s86, 0
s_cbranch_scc1 L_U_pairwait
L_U_pairok:""")
    for ct in range(3):
        e(f"ds_read_b64 v[{G(ct,0)}:{G(ct,0)+1}], v10 offset:{ct*128}")
    e("s_waitcnt lgkmcnt(0)")
    for ct in range(3):
        cfma(e, G(ct, 1), K(ct, L64), G(ct, 0), G(ct, 3))
    e(f"""s_mov_b32 s80, 0xffff0000
s_mov_b32 s81, 0
s_mov_b32 s82, 0
s_mov_b32 s83, 0x0000ffff
v_cndmask_b32 v240, v{G(0,1)}, v{G(1,1)}, s[80:81]
v_cndmask_b32 v241, v{G(0,1)+1}, v{G(1,1)+1}, s[80:81]
v_cndmask_b32 v240, v240, v{G(2,1)}, s[82:83]
v_cndmask_b32 v241, v241, v{G(2,1)+1}, s[82:83]
v_mov_b32 v242, s{sNONCE}
v_mov_b32 v243, s{sNONCE}
s_mul_i32 s85, s{sJ}, 16
s_add_u32 s85, s85, s{sRB}
s_mul_i32 s85, s85, 96
s_mul_i32 s86, s84, 48
s_add_u32 s85, s85, s86
s_lshl_b32 s85, s85, 4
s_add_u32 s85, s85, {AG_OFF}
v_lshlrev_b32 v12, 4, v0
s_mov_b32 exec_lo, -1
s_mov_b32 exec_hi, 0x0000ffff
buffer_store_dwordx4 v[240:243], v12, s[{SWS}:{SWS+3}], s85 offen sc0 sc1
s_mov_b64 exec, -1
L_U_lb:""")
    if not opt.udelay: lds_count(e, 16, 12)
    stamp(e, 2, 14)
    LB = 112 + 0
    lbregs = [40 + 4 * i for i in range(6)] + [240 + 4 * i for i in range(4)] + [32 + 0, 36]
    lbregs = [40 + 4 * i for i in range(6)] + [240, 244, 248] + [216, 224, 232]
    e(f"""s_mul_i32 s85, s{sJ}, {16*96}
s_mul_i32 s86, s84, 48
s_add_u32 s85, s85, s86
s_lshl_b32 s85, s85, 4
s_add_u32 s85, s85, {AG_OFF}
v_lshrrev_b32 v12, 4, v0
v_lshlrev_b32 v12, 2, v12
v_sub_u32 v12, s{sRB}, v12
v_mov_b32 v9, 0x10000000
v_and_b32 v13, 15, v0""")
    for m in range(4):
        e(f"""v_subrev_u32 v14, {1+m}, v12
v_cmp_le_i32 s[{88+2*m}:{89+2*m}], 0, v14
v_mul_u32_u24 v15, 96, v14
v_add_u32 v15, v15, v13
v_lshlrev_b32 v15, 4, v15
v_cndmask_b32 v{4+m}, v9, v15, s[{88+2*m}:{89+2*m}]""")
    CR = list(range(38, 52)) + [54]
    for k in range(15):
        e(f"s_mov_b32 s{CR[k]}, s{sNONCE}")
    e(f"""s_add_u32 s87, s85, {47*16 + 8}
s_mov_b32 s86, 0
L_U_cp:""")
    for k in range(15):
        e(f"""s_cmp_gt_u32 s{sRB}, {k}
s_cbranch_scc0 L_U_cpl
s_load_dword s{CR[k]}, s[{P_WS}:{P_WS+1}], s87 offset:{k*1536} glc""")
    e(f"""L_U_cpl:
s_add_u32 s86, s86, 1
s_waitcnt lgkmcnt(0)
s_mov_b32 s81, 0""")
    for k in range(15):
        e(f"s_xor_b32 s82, s{CR[k]}, s{sNONCE}\ns_or_b32 s81, s81, s82")
    e(f"""s_cmp_ge_u32 s86, {opt.spin_limit}
s_cbranch_scc1 L_U_cpok
s_cmp_eq_u32 s81, 0
s_cbranch_scc1 L_U_cpok
s_sleep 1
s_branch L_U_cp
L_U_cpok:""")
    stamp(e, 11, 14)
    e(f"s_mov_b32 s86, 0\nL_U_lbloop:")
    for m in range(4):
        for ct in range(3):
            r = lbregs[m * 3 + ct]
            e(f"buffer_load_dwordx4 {R(r)}, v{4+m}, s[{SWS}:{SWS+3}], s85 offen offset:{ct*256} sc1")
    e("s_add_u32 s86, s86, 1\ns_mov_b64 s[96:97], 0\ns_waitcnt vmcnt(0)")
    for m in range(4):
        for ct in range(3):
            r = lbregs[m * 3 + ct]
            e(f"""v_cmp_ne_u32 vcc, s{sNONCE}, v{r+2}
s_and_b64 vcc, vcc, s[{88+2*m}:{89+2*m}]
s_or_b64 s[96:97], s[96:97], vcc""")
    e(f"""s_cmp_ge_u32 s86, {opt.spin_limit}
s_cbranch_scc1 L_U_lbok
s_cmp_eq_u64 s[96:97], 0
s_cbranch_scc0 L_U_lbloop
L_U_lbok:""")
    if opt.udelay: lds_count(e, 16, 12)
    def S(m, ct): return lbregs[m * 3 + ct]
    for ct in range(3):
        cfma(e, S(2, ct), K(ct, L128), S(3, ct), S(2, ct))
    for ct in range(3):
        cfma(e, S(1, ct), K(ct, L128), S(2, ct), S(1, ct))
    for ct in range(3):
        cfma(e, S(0, ct), K(ct, L128), S(1, ct), S(0, ct))
    for ct in range(3):
        z, b, t, u = S(0, ct), S(1, ct), S(2, ct), S(3, ct)
        e(f"""v_mov_b32 v{b}, v{z}
v_mov_b32 v{b+1}, v{z+1}
v_permlane16_swap_b32 v{z}, v{b}
v_permlane16_swap_b32 v{z+1}, v{b+1}""")
        cfma(e, t, K(ct, L512), b, z)
        e(f"""v_mov_b32 v{u}, v{t}
v_mov_b32 v{u+1}, v{t+1}
v_permlane32_swap_b32 v{t}, v{u}
v_permlane32_swap_b32 v{t+1}, v{u+1}""")
        cfma(e, z, K(ct, L1024), u, t)
    e(f"s_cmp_ge_u32 s{sWAVE}, 2\ns_cbranch_scc0 L_U_hw0")
    for ct in range(3):
        cfma(e, S(1, ct), K(ct, L64), S(0, ct), G(ct, 0))
    e("s_branch L_U_hw1\nL_U_hw0:")
    for ct in range(3):
        e(f"v_mov_b32 v{S(1,ct)}, v{S(0,ct)}\nv_mov_b32 v{S(1,ct)+1}, v{S(0,ct)+1}")
    e("L_U_hw1:\ns_nop 1")
    for ct in range(3):
        cfma(e, S(2, ct), K(ct, L16Q), S(1, ct), LL(ct))
    for ct in range(3):
        hl, l8, er, ei = S(2, ct), K(ct, L8), Er(ct, 1), Ei(ct, 1)
        cr, ci = S(3, ct), S(3, ct) + 2
        e(f"""v_mov_b32 v{cr}, v{hl}
v_mov_b32 v{ci}, v{hl+1}
v_fma_f32 v{cr+1}, v{l8}, v{hl}, v{er}
v_fma_f32 v{ci+1}, v{l8}, v{hl+1}, v{ei}
v_fma_f32 v{cr+1}, -v{l8+1}, v{hl+1}, v{cr+1}
v_fma_f32 v{ci+1}, v{l8+1}, v{hl}, v{ci+1}""")
    for n in range(8):
        for ct in range(3):
            pr = S(3, ct) if n == 0 else U(n - 1, ct, 0)
            pi = S(3, ct) + 2 if n == 0 else U(n - 1, ct, 1)
            e(pk("v_pk_fma_f32", U(n, ct, 0), pr, K(ct, LAM), U(n, ct, 0), 0))
            e(pk("v_pk_fma_f32", U(n, ct, 1), pi, K(ct, LAM), U(n, ct, 1), 0))
        for ct in range(3):
            pr = S(3, ct) if n == 0 else U(n - 1, ct, 0)
            pi = S(3, ct) + 2 if n == 0 else U(n - 1, ct, 1)
            e(pk("v_pk_fma_f32", U(n, ct, 0), pi, LI[ct], U(n, ct, 0), 0, neg=True))
            e(pk("v_pk_fma_f32", U(n, ct, 1), pr, LI[ct], U(n, ct, 1), 0))
    stamp(e, 3, 14)
    e(f"""v_and_b32 v10, 15, v0
v_lshrrev_b32 v11, 4, v0
v_lshlrev_b32 v11, 3, v11
v_sub_u32 v10, v10, v11""")
    for ct in range(3):
        e(f"v_mov_b32 v{C2I[ct]}, v{K(ct, C2)+1}")
    e("v_mov_b32 v14, 0x3f80\nv_mov_b32 v15, 0x3f800000")
    for b in range(2):
        e(f"v_add_u32 v12, {16*b}, v10")
        for rr in range(4):
            d = 40 + 4 * b + rr
            e(f"""v_cmp_eq_u32 vcc, {2*rr}, v12
v_cndmask_b32 v{d}, 0, v14, vcc
v_cmp_eq_u32 vcc, {2*rr+1}, v12
v_cndmask_b32 v{d}, v{d}, v15, vcc""")
    e(f"""s_lshr_b32 s80, s{sWAVE}, 1
s_lshl_b32 s81, s{sRB}, 1
s_add_u32 s80, s80, s81
s_mul_i32 s80, s80, 94
s_mul_i32 s81, s{sJ}, 6
s_mul_i32 s82, s84, 3
s_add_u32 s81, s81, s82
s_add_u32 s80, s80, s81
s_add_u32 s80, s80, 54
s_lshl_b32 s80, s80, 12
v_lshlrev_b32 v10, 4, v0""")
    for ct in range(3):
        c2 = K(ct, C2)
        for i in range(4):
            if i & 1:
                t0, t1, t2, t3 = 216, 218, 220, 222
                m0, m1, m2, m3 = 4, 6, 8, 12
            else:
                t0, t1, t2, t3 = 208 + 6, 24, 26, 28
                t0 = 22
                m0, m1, m2, m3 = 30, 32, 34, 36
            for s_, (tr, ti, mr, mi) in enumerate(((t0, t2, m0, m2), (t1, t3, m1, m3))):
                n = 2 * i + s_
                hr, hi = U(n, ct, 0), U(n, ct, 1)
                e(pk("v_pk_mul_f32", mr, hr, c2, None, 0))
                e(pk("v_pk_mul_f32", mi, hi, c2, None, 0, neg=True))
            for s_, (tr, ti, mr, mi) in enumerate(((t0, t2, m0, m2), (t1, t3, m1, m3))):
                n = 2 * i + s_
                hr, hi = U(n, ct, 0), U(n, ct, 1)
                e(pk("v_pk_fma_f32", tr, hi, C2I[ct], mr, 0, neg=True))
                e(pk("v_pk_fma_f32", ti, hr, C2I[ct], mi, 0, neg=True))
            e(f"""v_cvt_pk_bf16_f32 v{48+i}, v{t0}, v{t1}
v_cvt_pk_bf16_f32 v{52+i}, v{t0+1}, v{t1+1}
v_cvt_pk_bf16_f32 v{56+i}, v{t2}, v{t3}
v_cvt_pk_bf16_f32 v{60+i}, v{t2+1}, v{t3+1}""")
        def D(part, tt): return 224 + 16 * part + 4 * tt
        for part in range(2):
            for a in range(2):
                for b in range(2):
                    A = 48 + 8 * part + 4 * a
                    e(f"v_mfma_f32_16x16x32_bf16 {R(D(part, 2*b+a))}, {R(A)}, {R(40+4*b)}, 0")
        if True:
            e(f"s_add_u32 s82, s81, {ct}\ns_cmp_ge_u32 s82, 40\ns_cbranch_scc1 L_U_skip{ct}")
            for tt in range(4):
                o = acc_u(tt, 2 * ct)
                dr, di = D(0, tt), D(1, tt)
                e(f"""v_cvt_pk_bf16_f32 v{o}, v{dr}, v{dr+1}
v_cvt_pk_bf16_f32 v{o+1}, v{dr+2}, v{dr+3}
v_cvt_pk_bf16_f32 v{o+2}, v{di}, v{di+1}
v_cvt_pk_bf16_f32 v{o+3}, v{di+2}, v{di+3}
buffer_store_dwordx4 {R(o)}, v10, s[{SWS}:{SWS+3}], s80 offen offset:{tt*1024} sc1""")
            e(f"L_U_skip{ct}:\ns_nop 7\ns_add_u32 s80, s80, 4096")
    stamp(e, 4, 14)
    tile_flag(e, 'U')
    dbgmax(e, 4)
    stamp(e, 5, 14)
    e("s_branch L_SSM_P2")

ACC2 = 16
WSL = 96
ASL = 196
NW, NA = 5, 3
def set_nw(nw, na):
    global NW, NA, ASL
    NW, NA = nw, na
    ASL = WSL + 20 * nw
def acc2(dt, tt): return ACC2 + (dt * 4 + tt) * 4

def wrap_w(e):
    if not opt.rot: return
    e("""s_sub_u32 s91, s91, 1
s_cmp_eq_u32 s91, 0
s_cselect_b32 s95, s93, 0
s_sub_u32 s84, s84, s95""")

def wrap_a(e):
    if not opt.rot: return
    e("""s_sub_u32 s92, s92, 1
s_cmp_eq_u32 s92, 0
s_cselect_b32 s95, s94, 0
s_sub_u32 s85, s85, s95""")

def rot_setup(e, n_sgpr_or_const, is_const):
    if not opt.rot: return
    if opt.map2 == 1:
        e(f"""s_and_b32 s95, s{sCB}, 3
s_lshl_b32 s95, s95, 1
s_add_u32 s95, s95, s{sRB2}
s_and_b32 s95, s95, 7""")
    else:
        e(f"""s_and_b32 s95, s{sRB2}, 3
s_lshl_b32 s95, s95, 1
s_add_u32 s95, s95, s{sCB}
s_and_b32 s95, s95, 7""")
    n = f"{n_sgpr_or_const}" if is_const else f"s{n_sgpr_or_const}"
    e(f"""s_mul_i32 s90, s95, {n}
s_lshr_b32 s90, s90, 3
s_sub_u32 s91, {n}, s90
s_mov_b32 s92, s91
s_mul_i32 s93, {n}, 5120
s_mul_i32 s94, {n}, 4096
s_mul_i32 s95, s90, 5120
s_add_u32 s84, s84, s95""")

def rot_act(e):
    if not opt.rot: return
    e("""s_lshl_b32 s95, s90, 12
s_add_u32 s85, s85, s95""")

def gen_p2_stream(e, tag, nsteps, extra_hook=None):
    queue = []
    SC = '' if opt.nosc1 else 'sc1'
    def ld_w(s):
        b = WSL + 20 * (s % NW)
        for dt in range(5):
            if dt < 4:
                e(f"buffer_load_dwordx4 {R(b+4*dt)}, v1, s[{SWS}:{SWS+3}], s84 offen offset:{dt*1024} {SC}")
            else:
                e(f"s_add_u32 s84, s84, 4096")
                e(f"buffer_load_dwordx4 {R(b+4*dt)}, v1, s[{SWS}:{SWS+3}], s84 offen {SC}")
                e(f"s_add_u32 s84, s84, 1024")
            queue.append(('w', s))
        wrap_w(e)
    def ld_a(s):
        b = ASL + 16 * (s % NA)
        for tt in range(4):
            e(f"buffer_load_dwordx4 {R(b+4*tt)}, v1, s[{SWS}:{SWS+3}], s85 offen offset:{tt*1024} {SC}")
            queue.append(('a', s))
        e(f"s_add_u32 s85, s85, 4096")
        wrap_a(e)
    return ld_w, ld_a, queue

def p2_role(e, tag, nsteps):
    pass

def emit_stream(e, nsteps, ld_w, ld_a, queue, NL, vL, late_lds=None):
    if opt.ststamps:
        e(f"s_memtime s[100:101]\ns_waitcnt lgkmcnt(0)\nv_writelane_b32 v250, s100, 0")
    for s in range(min(NA, nsteps)): ld_a(s)
    if late_lds is not None: w_lds(e, NL, late_lds, queue)
    for s in range(nsteps):
        idx = [i for i, q in enumerate(queue) if q in (('w', s), ('a', s))]
        inlds = NW <= s < NW + NL
        if idx:
            last = max(idx)
            n = len(queue) - 1 - last
            e(f"s_waitcnt vmcnt({n})" + (" lgkmcnt(0)" if inlds else ""))
            del queue[:last + 1]
        elif inlds:
            e("s_waitcnt lgkmcnt(0)")
        if opt.ststamps:
            e(f"s_memtime s[100:101]\ns_waitcnt lgkmcnt(0)\nv_writelane_b32 v250, s100, {s+1}")
        wb = WSL + 20 * (s % NW); ab = ASL + 16 * (s % NA)
        for dt in range(5):
            for tt in range(4):
                d = acc2(dt, tt)
                c = R(d)
                e(f"v_mfma_f32_16x16x32_bf16 {R(d)}, {R(wb+4*dt)}, {R(ab+4*tt)}, {c}")
        if s + NA < nsteps: ld_a(s + NA)
        t = s + NW
        if t < nsteps and t >= NW + NL:
            ld_w(t)
        t = s + 2
        if NW <= t < min(NW + NL, nsteps):
            li = [i for i, q in enumerate(queue) if q == ('l', t)]
            if li:
                e(f"s_waitcnt vmcnt({len(queue) - 1 - max(li)})")
                del queue[:max(li) + 1]
            for dt in range(5):
                e(f"ds_read_b128 {R(WSL + 20*(t % NW) + 4*dt)}, v{vL} offset:{(t-NW)*5120 + dt*1024}")

def spoll_tiles(e, tag, kind, sleep=1):
    off = 0 if kind == 'F' else 128
    n = 18 if kind == 'F' else 14
    e(f"""s_lshl_b32 s89, s{sRB2}, 8
s_add_u32 s89, s89, {TFLAG_OFF + off}
s_mov_b32 s80, 0
L_sp_{tag}:""")
    if kind == 'F':
        e(f"s_load_dwordx16 s[40:55], s[{P_WS}:{P_WS+1}], s89 glc")
        e(f"s_load_dwordx2 s[56:57], s[{P_WS}:{P_WS+1}], s89 offset:64 glc")
        regs = list(range(40, 58))
    else:
        e(f"s_load_dwordx8 s[40:47], s[{P_WS}:{P_WS+1}], s89 glc")
        e(f"s_load_dwordx4 s[48:51], s[{P_WS}:{P_WS+1}], s89 offset:32 glc")
        e(f"s_load_dwordx2 s[54:55], s[{P_WS}:{P_WS+1}], s89 offset:48 glc")
        regs = list(range(40, 52)) + [54, 55]
    e("s_add_u32 s80, s80, 1\ns_waitcnt lgkmcnt(0)\ns_mov_b32 s81, 0")
    for r_ in regs:
        e(f"s_xor_b32 s82, s{r_}, s{sNONCE}\ns_or_b32 s81, s81, s82")
    e(f"""s_cmp_ge_u32 s80, {opt.spin_limit}
s_cbranch_scc1 L_sp_done_{tag}
s_cmp_eq_u32 s81, 0
s_cbranch_scc1 L_sp_done_{tag}
s_sleep {sleep}
s_branch L_sp_{tag}
L_sp_done_{tag}:""")

def ffn_acc_init(e):
    srd(e, STA, P_B2, 1280)
    e(f"""v_lshrrev_b32 v4, 4, v0
v_lshlrev_b32 v4, 3, v4
v_mov_b32 v5, 0x10000000
s_cmp_eq_u32 s86, 0
s_cselect_b32 s80, 0, 1
v_mov_b32 v6, s80
v_cmp_eq_u32 vcc, 1, v6
v_cndmask_b32 v4, v4, v5, vcc
s_mul_i32 s81, s{sCB}, 160""")
    for dt in range(5):
        e(f"buffer_load_dwordx2 v[{244+2*dt}:{245+2*dt}], v4, s[{STA}:{STA+3}], s81 offen offset:{32*dt}")
    e("s_waitcnt vmcnt(0)")
    for dt in range(5):
        b = acc2(dt, 0)
        e(f"""v_lshlrev_b32 v{b}, 16, v{244+2*dt}
v_and_b32 v{b+1}, 0xffff0000, v{244+2*dt}
v_lshlrev_b32 v{b+2}, 16, v{245+2*dt}
v_and_b32 v{b+3}, 0xffff0000, v{245+2*dt}""")
        for tt in range(1, 4):
            for r in range(4):
                e(f"v_mov_b32 v{acc2(dt,tt)+r}, v{b+r}")

def ssm_pre(e):
    e(f"""s_lshr_b32 s80, s{sWAVE}, 1
s_lshl_b32 s80, s80, 5
s_and_b32 s81, s{sWAVE}, 1
s_lshl_b32 s81, s81, 3
s_add_u32 s80, s80, s81
s_lshl_b32 s81, s{sRB2}, 6
s_add_u32 s80, s80, s81
v_bfe_u32 v4, v0, 3, 1
v_lshlrev_b32 v4, 4, v4
v_and_b32 v5, 7, v0
v_add_u32 v4, v4, v5
v_add_u32 v4, s80, v4
v_lshrrev_b32 v5, 4, v0
v_lshlrev_b32 v6, 3, v5
s_mul_i32 s81, s{sCB}, 160
v_mul_u32_u24 v7, 1280, v4
v_add_u32 v7, v7, v6
v_lshlrev_b32 v8, 3, v4
v_mul_u32_u24 v248, 2560, v4
v_lshlrev_b32 v5, 4, v5
v_add_u32 v248, v248, v5""")
    XR, DK = 196, 206
    srd(e, STA, P_AX, 2621440)
    for dt in range(5):
        e(f"buffer_load_dwordx2 v[{XR+2*dt}:{XR+2*dt+1}], v7, s[{STA}:{STA+3}], s81 offen offset:{32*dt}")
    srd(e, STB, P_DSK, 1280)
    for dt in range(5):
        e(f"buffer_load_dwordx2 v[{DK+2*dt}:{DK+2*dt+1}], v6, s[{STB}:{STB+3}], s81 offen offset:{32*dt}")
    e(f"""s_mov_b32 s82, {G_OFF}
buffer_load_dwordx2 v[244:245], v8, s[{SWS}:{SWS+3}], s82 offen sc1""")
    for i in range(80):
        e(f"v_mov_b32 v{ACC2+i}, 0")
    e(f"""s_waitcnt vmcnt(0)
s_mov_b32 s80, 0
L_G_chk:
v_cmp_ne_u32 vcc, s{sNONCE}, v245
s_add_u32 s80, s80, 1
s_cmp_ge_u32 s80, {opt.spin_limit}
s_cbranch_scc1 L_G_ok
s_cmp_eq_u64 vcc, 0
s_cbranch_scc1 L_G_ok
s_sleep 2
buffer_load_dwordx2 v[244:245], v8, s[{SWS}:{SWS+3}], s82 offen sc1
s_waitcnt vmcnt(0)
s_branch L_G_chk
L_G_ok:
v_sub_f32 v246, 1.0, v244
v_cvt_pk_bf16_f32 v246, v246, v246
v_and_b32 v246, 0xffff0000, v246""")
    for dt in range(5):
        T = 216 + 4 * dt
        e(f"""v_lshlrev_b32 v10, 16, v{XR+2*dt}
v_and_b32 v11, 0xffff0000, v{XR+2*dt}
v_lshlrev_b32 v12, 16, v{XR+2*dt+1}
v_and_b32 v13, 0xffff0000, v{XR+2*dt+1}
v_lshlrev_b32 v{T}, 16, v{DK+2*dt}
v_and_b32 v{T+1}, 0xffff0000, v{DK+2*dt}
v_lshlrev_b32 v{T+2}, 16, v{DK+2*dt+1}
v_and_b32 v{T+3}, 0xffff0000, v{DK+2*dt+1}
v_mul_f32 v{T}, v{T}, v10
v_mul_f32 v{T+1}, v{T+1}, v11
v_mul_f32 v{T+2}, v{T+2}, v12
v_mul_f32 v{T+3}, v{T+3}, v13""")
    for w in range(4):
        e(f"s_cmp_eq_u32 s{sWAVE}, {w}\ns_cbranch_scc0 L_PRE_{w}")
        for dt in range(5):
            for r in range(4):
                e(f"v_mov_b32 v{acc2(dt,w)+r}, v{216+4*dt+r}")
        e(f"L_PRE_{w}:")

def lds_signal(e, off, vt):
    e(f"""v_mov_b32 v{vt}, {LDS_FLAG + off}
v_mov_b32 v{vt+1}, 1
ds_write_b32 v{vt}, v{vt+1}""")

def lds_count(e, off, vt):
    e(f"""v_mov_b32 v{vt}, {LDS_FLAG + off}
v_mov_b32 v{vt+1}, 1
s_mov_b64 exec, 1
ds_add_u32 v{vt}, v{vt+1}
s_mov_b64 exec, -1""")

def lds_wait_ge(e, tag, off, n, vt):
    e(f"""v_mov_b32 v{vt}, {LDS_FLAG + off}
s_mov_b32 s80, 0
L_lwg_{tag}:
ds_read_b32 v{vt+1}, v{vt}
s_add_u32 s80, s80, 1
s_waitcnt lgkmcnt(0)
v_readfirstlane_b32 s81, v{vt+1}
s_cmp_ge_u32 s80, {opt.spin_limit * 4}
s_cbranch_scc1 L_lwg_done_{tag}
s_cmp_ge_u32 s81, {n}
s_cbranch_scc1 L_lwg_done_{tag}
s_sleep 1
s_branch L_lwg_{tag}
L_lwg_done_{tag}:""")

def lds_wait(e, tag, off, vt):
    e(f"""v_mov_b32 v{vt}, {LDS_FLAG + off}
s_mov_b32 s80, 0
L_lw_{tag}:
ds_read_b32 v{vt+1}, v{vt}
s_add_u32 s80, s80, 1
s_waitcnt lgkmcnt(0)
v_readfirstlane_b32 s81, v{vt+1}
s_cmp_ge_u32 s80, {opt.spin_limit * 4}
s_cbranch_scc1 L_lw_done_{tag}
s_cmp_eq_u32 s81, 0
s_cbranch_scc0 L_lw_done_{tag}
s_sleep 1
s_branch L_lw_{tag}
L_lw_done_{tag}:""")

def gen_p2(e):
    e("L_FFN_P2:")
    e(f"""s_mul_i32 s80, s{sRB2}, 94
s_add_u32 s85, s85, s80
s_lshl_b32 s85, s85, 12
v_add_u32 v3, s87, v1""")
    rot_act(e)
    e(f"""s_mov_b32 s88, s84
s_mov_b32 s84, s86""")
    nsh_ = 8 if opt.map2 == 1 else 4
    ng_ = (-(-(-(-14 * 40 // nsh_)) // 64)) if opt.gw else 0
    e(f"s_waitcnt vmcnt({NLF*5})")
    gen_gate_compute(e)
    e("s_mov_b32 s84, s88")
    ffn_acc_init(e)
    ld_w, ld_a, queue = gen_p2_stream(e, 'F', 14)
    stamp(e, 3, 14)
    e(f"s_cmp_eq_u32 s86, 0\ns_cbranch_scc0 L_FFN_lw")
    spoll_tiles(e, 'FT', 'F')
    e('s_waitcnt vmcnt(0)')
    if opt.sshelp: lds_count(e, 20, 10)
    lds_signal(e, 8, 10)
    e("s_branch L_FFN_go\nL_FFN_lw:\ns_waitcnt vmcnt(0)")
    if opt.sshelp: lds_count(e, 20, 10)
    lds_wait(e, 'F', 8, 10)
    e("L_FFN_go:")
    if opt.prio: e(f"s_setprio {opt.prio}")
    stamp(e, 4, 14)
    if opt.l2pf2: l2_prefetch(e, 85, 14 * 32, 4 if opt.map2 == 1 else 8, f"s{sCB}", 3 if opt.map2 == 1 else 7, 2 if opt.map2 == 1 else 1)
    del queue[:]
    e(f"s_cmp_ge_u32 s86, 2\ns_cbranch_scc1 L_FFN_13")
    emit_stream(e, 14, ld_w, ld_a, queue, NLF, 3, 87 if opt.ldslate else None)
    e("s_branch L_FFN_done")
    e("L_FFN_13:")
    del queue[:]
    emit_stream(e, 13, ld_w, ld_a, queue, NLF, 3, 87 if opt.ldslate else None)
    e("L_FFN_done:")
    if opt.ststamps:
        e(f"""s_memtime s[100:101]
s_waitcnt lgkmcnt(0)
v_writelane_b32 v250, s100, 15
s_lshl_b32 s98, s2, 3
s_add_u32 s98, s98, s{sWAVE}
s_lshl_b32 s98, s98, 6
s_add_u32 s98, s98, {STAMP_OFF + 0x40000}
v_lshlrev_b32 v251, 2, v0
s_mov_b64 exec, 0xffff
buffer_store_dword v250, v251, s[{SWS}:{SWS+3}], s98 offen
s_mov_b64 exec, -1""")
    stamp(e, 5, 14)
    e(f"""s_mul_i32 s80, s86, 20480
v_add_u32 v2, s80, v1""")
    for tt in range(4):
        for dt in range(5):
            e(f"ds_write_b128 v2, {R(acc2(dt,tt))} offset:{LDS_F + (tt*5+dt)*1024}")
    e("s_waitcnt lgkmcnt(0)\ns_barrier")
    stamp(e, 6, 14)
    e("s_branch L_END")
    e("L_SSM_P2:")
    if not opt.wearly: ssm_w_setup(e, 'P')
    e("L_SSM_P2b:")
    ssm_pre(e)
    ld_w, ld_a, queue = gen_p2_stream(e, 'S', 10)
    stamp(e, 6, 14)
    e(f"s_cmp_eq_u32 s{sWAVE}, 0\ns_cbranch_scc0 L_SSM_lw")
    spoll_tiles(e, 'ST', 'S')
    e('s_waitcnt vmcnt(0)')
    lds_signal(e, 12, 10)
    e("s_branch L_SSM_go\nL_SSM_lw:\ns_waitcnt vmcnt(0)")
    lds_wait(e, 'S', 12, 10)
    e("L_SSM_go:")
    if opt.sshelp:
        e(f"s_cmp_eq_u32 s{sISU}, 1\ns_cbranch_scc0 L_SSM_nohw")
        lds_wait_ge(e, 'H', 20, 4, 10)
        e("L_SSM_nohw:")
    stamp(e, 7, 14)
    dbgmax(e, 5)
    if opt.l2pf2: l2_prefetch(e, 85, 10 * 32, 4 if opt.map2 == 1 else 8, f"s{sCB}", 3 if opt.map2 == 1 else 7, 2 if opt.map2 == 1 else 1)
    del queue[:]
    emit_stream(e, 10, ld_w, ld_a, queue, NLS, 3)
    if opt.ststamps:
        e(f"""s_memtime s[100:101]
s_waitcnt lgkmcnt(0)
v_writelane_b32 v250, s100, 15
s_lshl_b32 s98, s2, 3
s_add_u32 s98, s98, s{sWAVE}
s_lshl_b32 s98, s98, 6
s_add_u32 s98, s98, {STAMP_OFF + 0x40000}
v_lshlrev_b32 v251, 2, v0
s_mov_b64 exec, 0xffff
buffer_store_dword v250, v251, s[{SWS}:{SWS+3}], s98 offen
s_mov_b64 exec, -1""")
    stamp(e, 8, 14)
    dbgmax(e, 6)
    e(f"""s_mul_i32 s83, s{sWAVE}, 15360
s_add_u32 s83, s83, {LDS_Y}
v_add_u32 v7, s83, v1""")
    OWN = 130
    for w in range(4):
        e(f"s_cmp_eq_u32 s{sWAVE}, {w}\ns_cbranch_scc0 L_YW_{w}")
        sl = 0
        for tt in range(4):
            if tt == w: continue
            for dt in range(5):
                e(f"ds_write_b128 v7, {R(acc2(dt,tt))} offset:{sl * 5120 + dt * 1024}")
            sl += 1
        for dt in range(5):
            for r in range(4):
                e(f"v_mov_b32 v{OWN+4*dt+r}, v{acc2(dt,w)+r}")
        e(f"s_branch L_YW_done\nL_YW_{w}:")
    e("L_YW_done:")
    for k in range(3):
        e(f"""s_cmp_ge_u32 {k}, s{sWAVE}
s_cselect_b32 s80, {k+1}, {k}
s_cselect_b32 s81, 0, 1
s_sub_u32 s81, s{sWAVE}, s81
s_mul_i32 s80, s80, 15360
s_mul_i32 s81, s81, 5120
s_add_u32 s80, s80, s81
s_add_u32 s80, s80, {LDS_Y}
v_add_u32 v{8+k}, s80, v1""")
    e(f"""s_mul_i32 s80, s{sWAVE}, 5120
v_add_u32 v11, s80, v1
v_add_u32 v12, 40960, v11""")
    srd(e, SOUT, P_OUT, 5242880)
    e(f"s_mul_i32 s81, s{sCB}, 320")
    e("s_waitcnt lgkmcnt(0)\ns_barrier")
    stamp(e, 9, 14)
    YR, FR = 16, 150
    for dt in range(5):
        for k in range(3):
            e(f"ds_read_b128 {R(YR+20*k+4*dt)}, v{8+k} offset:{dt*1024}")
        for w2 in range(4):
            e(f"ds_read_b128 {R(FR+20*w2+4*dt)}, v{11+(w2>>1)} offset:{(w2&1)*20480 + dt*1024}")
    for dt in range(5):
        e(f"s_waitcnt lgkmcnt({min(15, 7*(4-dt))})")
        y, f = OWN + 4 * dt, FR + 4 * dt
        t1, t2 = 80 + 0, 84
        A = 96 + 4 * dt
        for r in range(0, 4, 2):
            e(f"v_pk_add_f32 v[{YR+4*dt+r}:{YR+4*dt+r+1}], v[{YR+4*dt+r}:{YR+4*dt+r+1}], v[{YR+20+4*dt+r}:{YR+20+4*dt+r+1}]")
            e(f"v_pk_add_f32 v[{y+r}:{y+r+1}], v[{y+r}:{y+r+1}], v[{YR+40+4*dt+r}:{YR+40+4*dt+r+1}]")
            e(f"v_pk_add_f32 v[{f+r}:{f+r+1}], v[{f+r}:{f+r+1}], v[{f+20+r}:{f+20+r+1}]")
            e(f"v_pk_add_f32 v[{f+40+r}:{f+40+r+1}], v[{f+40+r}:{f+40+r+1}], v[{f+60+r}:{f+60+r+1}]")
        B_ = 76 + 0
        for r in range(0, 4, 2):
            e(f"v_pk_add_f32 v[{YR+20+4*dt+r}:{YR+20+4*dt+r+1}], v[{y+r}:{y+r+1}], v[{YR+4*dt+r}:{YR+4*dt+r+1}]")
            e(f"v_pk_add_f32 v[{f+20+r}:{f+20+r+1}], v[{f+r}:{f+r+1}], v[{f+40+r}:{f+40+r+1}]")
        for r in range(0, 4, 2):
            e(f"v_pk_mul_f32 v[{YR+40+4*dt+r}:{YR+40+4*dt+r+1}], v[{YR+20+4*dt+r}:{YR+20+4*dt+r+1}], v[244:245] op_sel:[0,0] op_sel_hi:[1,0]")
        for r in range(0, 4, 2):
            e(f"v_pk_fma_f32 v[{A+r}:{A+r+1}], v[{f+20+r}:{f+20+r+1}], v[246:247], v[{YR+40+4*dt+r}:{YR+40+4*dt+r+1}] op_sel:[0,0,0] op_sel_hi:[1,0,1]")
        e(f"buffer_store_dwordx4 {R(A)}, v248, s[{SOUT}:{SOUT+3}], s81 offen offset:{dt*64} {['', 'sc1', 'nt', 'sc0 sc1'][opt.osc]}")
    stamp(e, 10, 14)
    if opt.dbgtime: e("s_waitcnt vmcnt(0)")
    dbgmax(e, 7)
    e("s_branch L_END")

def gen_gate_loads(e, W=84):
    srd(e, STA, P_GW, 1280)
    srd(e, STB, P_AX, 2621440)
    e(f"""v_lshlrev_b32 v12, 4, v0
v_lshlrev_b32 v13, 2, v0
s_lshl_b32 s80, s2, 3
s_lshl_b32 s81, s{W}, 1
s_add_u32 s80, s80, s81
s_mul_i32 s81, s80, 1280
s_add_u32 s82, s81, 1280
buffer_load_dwordx4 v[16:19], v12, s[{STA}:{STA+3}], 0 offen
buffer_load_dword v20, v13, s[{STA}:{STA+3}], 0 offen offset:1024
buffer_load_dwordx4 v[22:25], v12, s[{STB}:{STB+3}], s81 offen
buffer_load_dword v26, v13, s[{STB}:{STB+3}], s81 offen offset:1024
buffer_load_dwordx4 v[28:31], v12, s[{STB}:{STB+3}], s82 offen
buffer_load_dword v32, v13, s[{STB}:{STB+3}], s82 offen offset:1024""")

def gen_gate_compute(e):
    e("v_mov_b32 v40, 0\nv_mov_b32 v41, 0")
    for m in range(5):
        e(f"""v_lshlrev_b32 v36, 16, v{16+m}
v_and_b32 v37, 0xffff0000, v{16+m}""")
        for row in range(2):
            x = 22 + 6 * row + m
            e(f"""v_lshlrev_b32 v38, 16, v{x}
v_and_b32 v39, 0xffff0000, v{x}
v_mul_f32 v38, v38, v36
v_mul_f32 v39, v39, v37
v_cvt_pk_bf16_f32 v38, v38, v39
v_lshlrev_b32 v39, 16, v38
v_and_b32 v38, 0xffff0000, v38
v_add_f32 v{40+row}, v{40+row}, v39
v_add_f32 v{40+row}, v{40+row}, v38""")
    for sh in ("row_shr:1", "row_shr:2", "row_shr:4", "row_shr:8", "row_bcast:15 row_mask:0xa", "row_bcast:31 row_mask:0xc"):
        for row in range(2):
            e(f"v_add_f32 v{40+row}, v{40+row}, v{40+row} {sh}")
    e("""v_readlane_b32 s80, v40, 63
v_readlane_b32 s81, v41, 63""")
    e(f"""v_mov_b32 v42, s80
v_mov_b32 v43, s81
v_cmp_eq_u32 vcc, 1, v0
v_cndmask_b32 v42, v42, v43, vcc
v_cvt_pk_bf16_f32 v42, v42, v42
v_and_b32 v42, 0xffff0000, v42
v_mul_f32 v42, 0xbfb8aa3b, v42
v_exp_f32 v42, v42
v_add_f32 v42, 1.0, v42
v_rcp_f32 v42, v42
v_cvt_pk_bf16_f32 v42, v42, v42
v_and_b32 v42, 0xffff0000, v42
v_mov_b32 v43, s{sNONCE}
v_lshlrev_b32 v44, 3, v0
s_lshl_b32 s80, s2, 3
s_lshl_b32 s81, s84, 1
s_add_u32 s80, s80, s81
s_lshl_b32 s80, s80, 3
s_add_u32 s80, s80, {G_OFF}
s_mov_b64 exec, 3
buffer_store_dwordx2 v[42:43], v44, s[{SWS}:{SWS+3}], s80 offen sc0 sc1
s_mov_b64 exec, -1""")

def generate(path):
    e = Emitter()
    hdr = open("gated_mix__ssm_conv_s5__dense_activation_squared_relu__prompt.s.ref").read().split("\n")
    head = [l for l in hdr if l.startswith(";") and "@launch" not in l and "Override" not in l and "grid=ceil" not in l]
    txt = "\n".join(head) + f"\n; @launch grid=(256,1,1) block=(512,1,1) lds={LDS_SIZE}\n"
    txt += '.amdgcn_target "amdgcn-amd-amdhsa--gfx950"\n.text\n'
    txt += f".globl {NAME}\n.p2align 8\n.type {NAME},@function\n{NAME}:\n"
    gen_entry(e)
    gen_consumer(e)
    gen_loader(e)
    gen_p2(e)
    e("L_END:\ns_endpgm\nL_CODE_END:")
    txt += e.text()
    txt += f""".section .rodata,"a"
.p2align 6
.amdhsa_kernel {NAME}
  .amdhsa_next_free_vgpr 256
  .amdhsa_next_free_sgpr 102
  .amdhsa_accum_offset 256
  .amdhsa_group_segment_fixed_size 0
  .amdhsa_kernarg_size 144
  .amdhsa_user_sgpr_count 2
  .amdhsa_user_sgpr_kernarg_segment_ptr 1
  .amdhsa_system_sgpr_workgroup_id_x 1
.end_amdhsa_kernel
"""
    open(path, "w").write(txt)
    print("pads:", e.npad, "lines:", len(e.out))

if __name__ == "__main__":
    opt.check_g = True
    opt.nowait = 0
    opt.nodma = 0
    opt.itstamps = 0
    opt.l2pf = 0
    opt.gw3 = 0
    opt.flit = 2
    opt.gw2 = 0
    opt.thr = 0
    opt.fswn = 5
    opt.osc = 0
    opt.nosc1 = 0
    opt.nw = 5
    opt.na = 3
    opt.fsw = 2
    opt.gall = 0
    opt.udelay = 0
    opt.dbgtime = 0
    opt.sorder = 1
    opt.sshelp = 1
    opt.ststamps = 0
    opt.rot = 0
    opt.sprio = 0
    opt.eprio = 3
    opt.wearly = 0
    opt.ldslate = 0
    opt.prio = 1
    opt.cpf = 1
    opt.wdelay = 0
    opt.noprep = 0
    opt.nost = 0
    opt.map2 = 1
    opt.gw = 0
    opt.gloop = 1
    opt.ssleep = 8
    opt.l2pf2 = 0
    for a in sys.argv[2:]:
        k, v = a.split("=")
        setattr(opt, k, int(v))
    if opt.nw != 5 or opt.na != 3: set_nw(opt.nw, opt.na)
    generate(sys.argv[1])
```

```python
import sys
from emit import Emitter

NAME = "gated_mix__ssm_conv_s5__dense_activation_squared_relu__prompt_kernel"

ACT_OFF   = 0
WF_OFF    = 0xC00000
G_OFF     = 0x1000000
AG_OFF    = 0x1010000
WFLAG_OFF = 0x1040000
TFLAG_OFF = 0x1050000
STAMP_OFF = 0x1100000
SLOT = 40960
LDS_PREP = 122880
LDS_TAB  = 143360
LDS_LX   = LDS_TAB + 8448
LDS_FLAG = LDS_LX + 768
LDS_DUMMY = LDS_FLAG + 64
LDS_F    = 0
LDS_Y    = 81920
LDS_SIZE = 163840

SX, SWA, SWB, SWS, STA, STB, SOUT = 4, 8, 12, 16, 20, 24, 28
P_AX, P_LRE, P_LIM, P_BRE, P_BIM, P_CRE, P_CIM, P_LDT, P_DSK, P_BX, P_W1, P_B1, P_W2, P_B2, P_GW, P_OUT, P_DBG, P_WS = [36 + 2 * i for i in range(18)]
sWAVE, sRB, sCOL, sJ, sRB2, sCB, sNONCE, sISU = 72, 73, 74, 75, 76, 77, 78, 79
SG, sGo, sGinc = 28, 83, 85

class Opt:
    phase2 = True
    stamps = False
    spin_limit = 200000
opt = Opt()

def srd(e, s, ptr, size):
    e(f"s_mov_b32 s{s}, s{ptr}\ns_mov_b32 s{s+1}, s{ptr+1}\ns_mov_b32 s{s+2}, {size}\ns_mov_b32 s{s+3}, 0x20000")

def R(b, n=4):
    return f"v[{b}:{b+n-1}]"

_stamp_id = [0]
def stamp(e, idx, tmpv=14):
    if not opt.stamps: return
    e(f"""s_memrealtime s[100:101]
s_lshl_b32 s98, s2, 3
s_add_u32 s98, s98, s{sWAVE}
s_lshl_b32 s98, s98, 6
s_add_u32 s98, s98, {STAMP_OFF + 4*idx}
s_waitcnt lgkmcnt(0)
v_mov_b32 v{tmpv}, s100
v_mov_b32 v{tmpv+1}, 0
s_mov_b64 s[96:97], exec
s_mov_b64 exec, 1
buffer_store_dword v{tmpv}, v{tmpv+1}, s[{SWS}:{SWS+3}], s98 offen
s_mov_b64 exec, s[96:97]""")

def stamp_clk(e, idx, tmpv=14):
    if not opt.stamps: return
    e(f"""s_memtime s[100:101]
s_lshl_b32 s98, s2, 3
s_add_u32 s98, s98, s{sWAVE}
s_lshl_b32 s98, s98, 6
s_add_u32 s98, s98, {STAMP_OFF + 4*idx}
s_waitcnt lgkmcnt(0)
v_mov_b32 v{tmpv}, s100
v_mov_b32 v{tmpv+1}, 0
s_mov_b64 s[96:97], exec
s_mov_b64 exec, 1
buffer_store_dword v{tmpv}, v{tmpv+1}, s[{SWS}:{SWS+3}], s98 offen
s_mov_b64 exec, s[96:97]""")

class Cap:
    def __init__(self): self.l = []
    def __call__(self, s):
        for x in s.split("\n"):
            if x.strip(): self.l.append(x.strip())

def merge(e, main_groups, aux):
    n = len(main_groups); k = 0
    per = -(-len(aux) // n) if n else 0
    for g in main_groups:
        for x in g: e(x)
        for x in aux[k:k + per]: e(x)
        k += per
    for x in aux[k:]: e(x)

_dm = [0]
def dbgmax(e, idx, neg=False, tv=14):
    if not opt.dbgtime: return
    _dm[0] += 1; n = _dm[0]
    e(f"""s_and_b32 s100, s{sWAVE}, 3
s_cmp_eq_u32 s100, 0
s_cbranch_scc0 L_dm{n}
s_cmp_eq_u32 s2, 0
s_cselect_b32 s101, {4*idx}, {4*(idx+8)}
s_cbranch_scc1 L_dmg{n}
s_cmp_eq_u32 s2, 255
s_cbranch_scc0 L_dm{n}
L_dmg{n}:
v_mov_b32 v{tv+1}, s101
s_memrealtime s[100:101]
s_mov_b32 s96, s{P_DBG}
s_mov_b32 s97, s{P_DBG+1}
s_mov_b32 s98, 256
s_mov_b32 s99, 0x20000
s_waitcnt lgkmcnt(0)
v_mov_b32 v{tv}, s100
s_mov_b64 exec, 1
buffer_store_dword v{tv}, v{tv+1}, s[96:99], 0 offen
s_mov_b64 exec, -1
L_dm{n}:""")

def probe(e, k):
    if opt.probe != k: return
    e(f"""s_memrealtime s[100:101]
s_waitcnt lgkmcnt(0)
s_add_u32 s99, s100, 300
L_probe_{k}_{probe.n}:
s_sleep 2
s_memrealtime s[100:101]
s_waitcnt lgkmcnt(0)
s_sub_u32 s98, s99, s100
s_cmp_gt_i32 s98, 0
s_cbranch_scc1 L_probe_{k}_{probe.n}""")
    probe.n += 1
probe.n = 0

def interleave(e, A, B, lead=1):
    bi = 0
    for i, a in enumerate(A):
        e(a)
        if i >= lead - 1 and bi < len(B):
            e(B[bi]); bi += 1
    while bi < len(B):
        e(B[bi]); bi += 1

def spin_nonce(e, tag, vtmp):
    srd(e, STA, P_DBG, 256)
    e(f"""v_mov_b32 v{vtmp+1}, 0
s_mov_b32 s80, 0
L_nonce_{tag}:
buffer_load_dword v{vtmp}, v{vtmp+1}, s[{STA}:{STA+3}], 0 offen sc1
s_add_u32 s80, s80, 1
s_waitcnt vmcnt(0)
v_readfirstlane_b32 s{sNONCE}, v{vtmp}
s_cmp_ge_u32 s80, {opt.spin_limit}
s_cbranch_scc1 L_nonce_done_{tag}
s_cmp_eq_u32 s{sNONCE}, 0
s_cbranch_scc0 L_nonce_done_{tag}
s_sleep 1
s_branch L_nonce_{tag}
L_nonce_done_{tag}:""")

def poll_flags(e, tag, vaddr, vtmp, soff_sgpr, nlanes_mask_lo, mask_hi=0, sleep=1):
    e(f"""s_mov_b32 s80, 0
s_mov_b32 s82, {nlanes_mask_lo}
s_mov_b32 s83, {mask_hi}
L_poll_{tag}:
buffer_load_dword v{vtmp}, v{vaddr}, s[{SWS}:{SWS+3}], s{soff_sgpr} offen sc1
s_add_u32 s80, s80, 1
s_waitcnt vmcnt(0)
v_cmp_ne_u32 vcc, s{sNONCE}, v{vtmp}
s_cmp_ge_u32 s80, {opt.spin_limit}
s_cbranch_scc1 L_poll_done_{tag}
s_and_b64 vcc, vcc, s[82:83]
s_cbranch_scc0 L_poll_done_{tag}
s_sleep {sleep}
s_branch L_poll_{tag}
L_poll_done_{tag}:""")

def gen_entry(e):
    if opt.map2 == 1:
        MAP2 = f"""s_lshr_b32 s82, s80, 1
s_lshl_b32 s82, s82, 3
s_lshr_b32 s83, s81, 2
s_add_u32 s{sRB2}, s82, s83
s_and_b32 s82, s80, 1
s_lshl_b32 s82, s82, 2
s_and_b32 s83, s81, 3
s_add_u32 s{sCB}, s82, s83"""
    else:
        MAP2 = f"""s_lshl_b32 s82, s80, 2
s_and_b32 s83, s81, 3
s_add_u32 s{sRB2}, s82, s83
s_lshr_b32 s{sCB}, s81, 2"""
    e(f"""s_cmp_ge_u32 s2, 256
s_cbranch_scc1 L_END
s_load_dwordx16 s[36:51], s[0:1], 0
s_load_dwordx16 s[52:67], s[0:1], 64
s_load_dwordx4 s[68:71], s[0:1], 128
v_lshrrev_b32 v1, 6, v0
v_and_b32 v0, 63, v0
v_readfirstlane_b32 s{sWAVE}, v1
s_and_b32 s80, s2, 7
s_lshr_b32 s81, s2, 3
s_and_b32 s82, s80, 1
s_lshl_b32 s82, s82, 3
s_and_b32 s83, s81, 7
s_add_u32 s{sRB}, s82, s83
s_lshr_b32 s82, s80, 1
s_lshl_b32 s82, s82, 2
s_lshr_b32 s83, s81, 3
s_add_u32 s{sCOL}, s82, s83
{MAP2}
s_sub_u32 s82, s{sCOL}, 9
s_cmp_ge_u32 s{sCOL}, 9
s_cselect_b32 s{sISU}, 1, 0
s_cselect_b32 s{sJ}, s82, s{sCOL}
s_waitcnt lgkmcnt(0)""")
    srd(e, SWS, P_WS, 0x10000000)
    srd(e, SX, P_AX, 2621440)
    stamp(e, 12, 14)
    e(f"""s_cmp_eq_u32 s2, 0
s_cbranch_scc0 L_no_nonce
s_cmp_eq_u32 s{sWAVE}, 4
s_cbranch_scc0 L_no_nonce
s_memrealtime s[80:81]""")
    srd(e, STA, P_DBG, 256)
    e(f"""s_waitcnt lgkmcnt(0)
s_or_b32 s80, s80, 1
v_mov_b32 v2, s80
v_mov_b32 v3, 0
s_mov_b64 exec, 1
buffer_store_dword v2, v3, s[{STA}:{STA+3}], 0 offen sc0 sc1
s_mov_b64 exec, -1
L_no_nonce:
s_cmp_ge_u32 s{sWAVE}, 4
s_cbranch_scc1 L_LOADER""")

def cmul(e, d, a, b, t):
    e(f"""v_mul_f32 v{d}, v{a}, v{b}
v_mul_f32 v{d+1}, v{a}, v{b+1}
v_fma_f32 v{d}, -v{a+1}, v{b+1}, v{d}
v_fma_f32 v{d+1}, v{a+1}, v{b}, v{d+1}""")

def csq(e, d, a):
    cmul(e, d, a, a, None)

def cfma(e, d, a, b, c):
    e(f"""v_fma_f32 v{d}, v{a}, v{b}, v{c}
v_fma_f32 v{d+1}, v{a}, v{b+1}, v{c+1}
v_fma_f32 v{d}, -v{a+1}, v{b+1}, v{d}
v_fma_f32 v{d+1}, v{a+1}, v{b}, v{d+1}""")

def gen_loader(e):
    e("L_LOADER:")
    probe(e, 6)
    vXo = 2; vWo = 4
    sXo = 86
    sWo = 90
    sLX, sLW, sWinc = 32, 33, 34
    def issue_x(s):
        slot = (s % 3) * SLOT
        for m in range(4):
            e(f"s_add_u32 m0, s{sLX}, {slot + m*1024}")
            e(f"buffer_load_dwordx4 v{vXo}, s[{SX}:{SX+3}], s{sXo+m} offen lds")
            e(f"s_add_u32 s{sXo+m}, s{sXo+m}, 128")
    def issue_w(s):
        slot = (s % 3) * SLOT
        for m in range(6):
            S = SWB if (m >> 1) == 1 else SWA
            e(f"s_add_u32 m0, s{sLW}, {slot + m*1024}")
            e(f"buffer_load_dwordx4 v{vWo+m}, s[{S}:{S+3}], s{sWo+m} offen lds")
            e(f"s_add_u32 s{sWo+m}, s{sWo+m}, s{sWinc}")
    def issue(s):
        issue_x(s); issue_w(s)
    e(f"""s_sub_u32 s84, s{sWAVE}, 4
v_lshrrev_b32 v10, 3, v0
v_and_b32 v11, 7, v0
v_xor_b32 v11, v11, v10
v_lshlrev_b32 v11, 4, v11
s_lshl_b32 s{sLX}, s84, 12
s_mul_i32 s{sLW}, s84, 6144
s_add_u32 s{sLW}, s{sLW}, 16384
s_lshl_b32 s85, s{sRB}, 7""")
    e(f"""s_mul_i32 s80, s{sJ}, 96
s_lshl_b32 s81, s84, 5
s_add_u32 s80, s80, s81
v_and_b32 v12, 31, v0
v_add_u32 v12, s80, v12
v_min_u32 v12, 639, v12
v_lshlrev_b32 v12, 1, v12""")
    srd(e, STA, P_LRE, 1280)
    e(f"buffer_load_ushort v20, v12, s[{STA}:{STA+3}], 0 offen")
    srd(e, STB, P_LIM, 1280)
    e(f"buffer_load_ushort v21, v12, s[{STB}:{STB+3}], 0 offen")
    srd(e, STA, P_LDT, 1280)
    e(f"buffer_load_ushort v22, v12, s[{STA}:{STA+3}], 0 offen")
    e(f"""s_cmp_eq_u32 s{sISU}, 1
s_cbranch_scc1 L_LD_U""")
    e(f"""v_mul_u32_u24 v{vXo}, 1280, v10
v_add_u32 v{vXo}, v{vXo}, v11
s_lshl_b32 s80, s84, 5
s_add_u32 s80, s80, s85""")
    for m in range(4):
        e(f"s_add_u32 s81, s80, {16*(m&1) + 8*(m>>1)}\ns_mul_i32 s{sXo+m}, s81, 1280")
    issue_x(0)
    srd(e, SWA, P_W1, 2211840)
    srd(e, SWB, P_W1, 2211840)
    e(f"""s_mul_i32 s80, s84, {16*3456}
s_mul_i32 s81, s{sJ}, 384
s_add_u32 s80, s80, s81""")
    for m in range(6):
        e(f"s_mov_b32 s{sWo+m}, s80")
    e(f"s_mov_b32 s{sWinc}, {64*3456}")
    for m in range(6):
        e(f"""v_add_u32 v12, {64*m}, v0
v_mul_u32_u24 v13, 2731, v12
v_lshrrev_b32 v13, 16, v13
v_mul_u32_u24 v14, 24, v13
v_sub_u32 v14, v12, v14
v_bfe_u32 v15, v13, 1, 1
v_lshlrev_b32 v15, 1, v15
v_bfe_u32 v16, v13, 3, 1
v_lshlrev_b32 v16, 2, v16
v_or_b32 v15, v15, v16
v_xor_b32 v14, v14, v15
v_lshlrev_b32 v14, 4, v14
v_mul_u32_u24 v13, 3456, v13
v_add_u32 v{vWo+m}, v13, v14""")
    e("s_branch L_LD_GO")
    e("L_LD_U:")
    e(f"""v_lshrrev_b32 v12, 5, v0
v_lshlrev_b32 v12, 4, v12
v_bfe_u32 v13, v0, 3, 1
v_lshlrev_b32 v13, 3, v13
v_add_u32 v12, v12, v13
v_bfe_u32 v13, v0, 4, 1
v_add_u32 v12, v12, v13
v_mul_u32_u24 v{vXo}, 1280, v12
v_add_u32 v{vXo}, v{vXo}, v11
s_lshr_b32 s80, s84, 1
s_lshl_b32 s80, s80, 6
s_and_b32 s81, s84, 1
s_lshl_b32 s82, s81, 2
s_add_u32 s80, s80, s82
s_add_u32 s80, s80, s85""")
    for m in range(4):
        e(f"s_add_u32 s82, s80, {32*(m&1) + 2*(m>>1)}\ns_mul_i32 s{sXo+m}, s82, 1280")
    issue_x(0)
    e(f"""v_mul_u32_u24 v12, 1280, v10
v_add_u32 v12, v12, v11""")
    for m in range(6):
        e(f"v_mov_b32 v{vWo+m}, v12")
    e(f"""s_mul_i32 s80, s{sJ}, 96
s_lshr_b32 s82, s84, 1
s_mul_i32 s82, s82, 48
s_add_u32 s80, s80, s82
s_mul_i32 s83, s81, 3""")
    for m in range(6):
        e(f"""s_add_u32 s82, s83, {m>>1}
s_lshr_b32 s82, s82, 1
s_lshl_b32 s82, s82, 4
s_add_u32 s82, s82, s80
s_add_u32 s82, s82, {8*(m&1)}
s_min_u32 s82, s82, 632
s_mul_i32 s{sWo+m}, s82, 1280""")
    e(f"s_mov_b32 s{sWinc}, 128")
    e(f"""s_cmp_eq_u32 s81, 0
s_cselect_b32 s{SWA}, s{P_BRE}, s{P_BIM}
s_cselect_b32 s{SWA+1}, s{P_BRE+1}, s{P_BIM+1}
s_cselect_b32 s{SWB}, s{P_BIM}, s{P_BRE}
s_cselect_b32 s{SWB+1}, s{P_BIM+1}, s{P_BRE+1}
s_mov_b32 s{SWA+2}, 819200
s_mov_b32 s{SWA+3}, 0x20000
s_mov_b32 s{SWB+2}, 819200
s_mov_b32 s{SWB+3}, 0x20000""")
    e("L_LD_GO:")
    def groups(s_):
        slot = (s_ % 3) * SLOT
        G = []
        for m in range(4):
            G.append([f"s_add_u32 m0, s{sLX}, {slot + m*1024}",
                      f"buffer_load_dwordx4 v{vXo}, s[{SX}:{SX+3}], s{sXo+m} offen lds",
                      f"s_add_u32 s{sXo+m}, s{sXo+m}, 128"])
        for m in range(6):
            S = SWB if (m >> 1) == 1 else SWA
            G.append([f"s_add_u32 m0, s{sLW}, {slot + m*1024}",
                      f"buffer_load_dwordx4 v{vWo+m}, s[{S}:{S+3}], s{sWo+m} offen lds",
                      f"s_add_u32 s{sWo+m}, s{sWo+m}, s{sWinc}"])
        return G
    def gath():
        if opt.gall:
            e(f"buffer_load_dword v18, v17, s[{SWS}:{SWS+3}], 0 offen")
        else:
            e(f"buffer_load_dword v18, v17, s[{SG}:{SG+3}], s{sGo} offen\ns_add_u32 s{sGo}, s{sGo}, s{sGinc}")
    issue_w(0)
    if opt.gall: e("v_mov_b32 v17, 0x10000000")
    else: gen_gather_setup(e, 84, 'L', 3)
    issue(1)
    e("s_waitcnt vmcnt(10)\ns_barrier")
    issue(2); gath()
    e("s_waitcnt vmcnt(11)\ns_barrier")
    c = Cap(); gen_lambda_table(c, 0)
    merge(e, groups(3), c.l); gath()
    e("s_waitcnt vmcnt(12)\ns_barrier")
    e(f"""v_and_b32 v62, 31, v0
s_lshl_b32 s80, s84, 5
v_add_u32 v62, s80, v62
v_lshlrev_b32 v62, 3, v62
s_mov_b32 s81, {LDS_TAB}
s_cmp_eq_u32 s84, 3
s_cselect_b32 s80, {LDS_DUMMY - 768}, s81
v_add_u32 v62, s80, v62""")
    c = Cap(); gen_lambda_table(c, 1)
    merge(e, groups(4), c.l); gath()
    for it, (st_, g_) in enumerate(((5, 1), (6, 1), (7, 1), (8, 1))):
        e("s_waitcnt vmcnt(12)\ns_barrier")
        issue(st_)
        if g_: gath()
        if it == 1:
            srd(e, STA, P_DBG, 256)
            e(f"v_mov_b32 v12, 0\nbuffer_load_dword v99, v12, s[{STA}:{STA+3}], 0 offen")
    e("s_waitcnt vmcnt(12)\ns_barrier")
    e(f"""v_readfirstlane_b32 s{sNONCE}, v99
s_cmp_eq_u32 s{sNONCE}, 0
s_cbranch_scc0 L_LD_nonce_ok""")
    spin_nonce(e, 'L', 10)
    e("L_LD_nonce_ok:")
    e(f"""s_mul_i32 s85, s84, 14
s_cmp_eq_u32 s84, 3
s_cselect_b32 s80, 1, 0
s_sub_u32 s85, s85, s80
v_lshlrev_b32 v12, 2, v0
s_lshl_b32 s81, s{sCB}, 9
s_lshl_b32 s82, s85, 2
s_add_u32 s81, s81, s82
s_add_u32 s35, s81, {WFLAG_OFF}
s_mul_i32 s80, s84, 10
s_add_u32 s80, s80, {54 - 16}
s_sub_u32 s80, s80, s85
s_lshl_b32 s80, s80, 2
v_add_u32 v14, s80, v12
v_cmp_le_u32 vcc, 16, v0
v_cndmask_b32 v12, v12, v14, vcc
v_lshlrev_b32 v1, 4, v0
buffer_load_dword v13, v12, s[{SWS}:{SWS+3}], s35 offen sc1""")
    issue(9)
    e("s_waitcnt vmcnt(10)\ns_barrier")
    e(f"""s_mov_b32 s86, s84
s_mul_i32 s87, s86, 20480
s_mul_i32 s84, s{sCB}, 94
s_add_u32 s84, s84, s85
s_mul_i32 s84, s84, 5120
s_add_u32 s84, s84, {WF_OFF}
s_cmp_ge_u32 s86, 2
s_cselect_b32 s89, 13, 14""")
    rot_setup(e, 89, False)
    ld_w, ld_a, queue = gen_p2_stream(e, 'x', 14)
    e(f"""v_cmp_ne_u32 vcc, s{sNONCE}, v13
s_nop 1
s_and_b32 s80, vcc_lo, 0x03ff3fff
s_cbranch_scc1 L_LD_wlate""")
    if opt.gw2:
        w_gathers(e)
    if opt.gw2 != 2:
        ld_w(0); ld_w(1)
    e(f"s_waitcnt vmcnt({(0 if opt.gw2 == 2 else 10) + (3 if opt.gw2 else 0)})\ns_barrier")
    for s_ in range(0 if opt.gw2 == 2 else 2, NW): ld_w(s_)
    e("s_branch L_LD_wdone\nL_LD_wlate:\ns_waitcnt vmcnt(0)\ns_barrier")
    poll_flags(e, 'FW', 12, 13, 35, 0x03ff3fff)
    for s_ in range(NW): ld_w(s_)
    e("L_LD_wdone:")
    stamp(e, 1, 14)
    gen_gate_loads(e, 86)
    lds_wait_ge(e, 'R', 24, 4, 10)
    if opt.wdelay or opt.udelay:
        if not opt.udelay: e(f"s_cmp_eq_u32 s{sISU}, 1\ns_cbranch_scc1 L_LD_nodelay")
        if not opt.wdelay: e(f"s_cmp_eq_u32 s{sISU}, 0\ns_cbranch_scc1 L_LD_nodelay")
        lds_wait_ge(e, 'W', 16, 4, 10)
        e("L_LD_nodelay:")
    stamp(e, 7, 14)
    w_lds(e, NLF, 87, throttle=('A' if opt.thr >= 0 else None))
    lds_count(e, 28, 10)
    if opt.sshelp:
        e(f"s_cmp_eq_u32 s{sISU}, 1\ns_cbranch_scc0 L_NOHELP")
        e(f"""s_mul_i32 s80, s86, 10
s_add_u32 s80, s80, {54 + NW}
s_mul_i32 s81, s{sCB}, 94
s_add_u32 s80, s80, s81
s_mul_i32 s80, s80, 5120
s_add_u32 s80, s80, {WF_OFF}
s_mul_i32 s81, s86, 15360
s_add_u32 s81, s81, {LDS_Y}""")
        for i in range(NLS):
            if opt.thr >= 0: e(f"s_waitcnt vmcnt({opt.thr})")
            for dt in range(5):
                e(f"""s_add_u32 m0, s81, {i*5120 + dt*1024}
buffer_load_dwordx4 v1, s[{SWS}:{SWS+3}], s80 offen sc1 lds
s_add_u32 s80, s80, 1024""")
        e("L_NOHELP:")
    stamp(e, 2, 14)

NLF, NLS = 4, 3
def w_prefetch(e, nsteps, NL, lds_base_sgpr, do_lds=True, rng=None):
    nsh = 8 if opt.map2 == 1 else 4
    per = -(-nsteps * 40 // nsh)
    if opt.gw: l2_prefetch(e, 84, nsteps * 40, nsh, f"s{sRB2}", nsh - 1, -(-per // 64))
    ld_w, ld_a, queue = gen_p2_stream(e, 'x', nsteps)
    for s_ in (range(NW) if rng is None else rng): ld_w(s_)
    if do_lds: w_lds(e, NL, lds_base_sgpr)

def w_gathers(e):
    nsh = 8 if opt.map2 == 1 else 4
    l2_prefetch(e, 84, 14 * 40, nsh, f"s{sRB2}", nsh - 1, 2 if nsh == 8 else 2)
    e(f"""s_mul_i32 s88, s86, 10
s_add_u32 s88, s88, 54
s_mul_i32 s81, s{sCB}, 94
s_add_u32 s88, s88, s81
s_mul_i32 s88, s88, 5120
s_add_u32 s88, s88, {WF_OFF}""")
    l2_prefetch(e, 88, 10 * 40, nsh, f"s{sRB2}", nsh - 1, 1)

def w_lds(e, NL, lds_base_sgpr, queue=None, throttle=None):
    for i in range(NL):
        if throttle is not None:
            e(f"s_cmp_eq_u32 s{sISU}, 1\ns_cbranch_scc0 L_thr_{throttle}{i}\ns_waitcnt vmcnt({opt.thr})\nL_thr_{throttle}{i}:")
        for dt in range(5):
            e(f"""s_add_u32 m0, s{lds_base_sgpr}, {i*5120 + dt*1024}
buffer_load_dwordx4 v1, s[{SWS}:{SWS+3}], s84 offen sc1 lds
s_add_u32 s84, s84, 1024""")
            if queue is not None: queue.append(('l', NW + i))
        wrap_w(e)

def ffn_w_prefetch(e):
    e(f"""s_mov_b32 s86, s84
s_mul_i32 s87, s86, 20480
s_mul_i32 s84, s{sCB}, 94
s_add_u32 s84, s84, s85
s_mul_i32 s84, s84, 5120
s_add_u32 s84, s84, {WF_OFF}
s_cmp_ge_u32 s86, 2
s_cselect_b32 s89, 13, 14""")
    rot_setup(e, 89, False)
    w_prefetch(e, 14, NLF, 87, do_lds=not opt.ldslate)
    if opt.sshelp:
        e(f"""s_cmp_eq_u32 s{sISU}, 1
s_cbranch_scc0 L_NOHELP
s_mul_i32 s80, s86, 10
s_add_u32 s80, s80, 54
s_lshl_b32 s80, s80, 2
s_lshl_b32 s81, s{sCB}, 9
s_add_u32 s80, s80, s81
s_add_u32 s88, s80, {WFLAG_OFF}
v_lshlrev_b32 v12, 2, v0""")
        poll_flags(e, 'HW', 12, 13, 88, 0x3ff)
        e(f"""s_mul_i32 s80, s86, 10
s_add_u32 s80, s80, {54 + NW}
s_mul_i32 s81, s{sCB}, 94
s_add_u32 s80, s80, s81
s_mul_i32 s80, s80, 5120
s_add_u32 s80, s80, {WF_OFF}
s_mul_i32 s81, s86, 15360
s_add_u32 s81, s81, {LDS_Y}""")
        for i in range(NLS):
            for dt in range(5):
                e(f"""s_add_u32 m0, s81, {i*5120 + dt*1024}
buffer_load_dwordx4 v1, s[{SWS}:{SWS+3}], s80 offen sc1 lds
s_add_u32 s80, s80, 1024""")
        e("L_NOHELP:")

def l2_prefetch(e, sbase, nlines, nshare, share_sgpr, share_mask, ninstr, vtmp=12, vdst=15):
    per = -(-nlines // nshare)
    e(f"""s_and_b32 s80, {share_sgpr}, {share_mask}
s_mul_i32 s80, s80, {per*128}
s_add_u32 s80, s80, s{sbase}
v_lshlrev_b32 v{vtmp}, 7, v0""")
    for i in range(ninstr):
        if i * 64 < per and per - i * 64 < 64:
            e(f"v_min_u32 v{vtmp}, {(per - i*64 - 1)*128}, v{vtmp}")
        e(f"buffer_load_dword v{vdst}, v{vtmp}, s[{SWS}:{SWS+3}], s80 offen sc1")
        if i * 64 + 64 < per: e(f"s_add_u32 s80, s80, 8192")

def gen_gather_setup(e, W=84, T='', start=1):
    e(f"""s_lshr_b32 s80, s2, 3
s_and_b32 s81, s80, 7
s_lshr_b32 s80, s80, 3
v_mov_b32 v17, 0x10000000
s_mov_b32 s{sGo}, {128*start}
s_mov_b32 s{sGinc}, 128
s_mov_b32 s{SG}, s{SX}
s_mov_b32 s{SG+1}, s{SX+1}
s_mov_b32 s{SG+2}, 2621440
s_mov_b32 s{SG+3}, 0x20000
s_cmp_eq_u32 s{W}, 0
s_cbranch_scc0 L_GS_1{T}
s_lshl_b32 s80, s80, 5
s_lshl_b32 s82, s{sRB}, 7
s_add_u32 s80, s80, s82
v_add_u32 v16, s80, v0
v_mul_u32_u24 v16, 1280, v16
v_cmp_gt_u32 vcc, 32, v0
v_cndmask_b32 v17, v17, v16, vcc
s_branch L_GS_done{T}
L_GS_1{T}:
s_cmp_ge_u32 s{W}, 3
s_cbranch_scc1 L_GS_done{T}
s_cmp_eq_u32 s{sISU}, 1
s_cbranch_scc1 L_GS_U{T}
s_cmp_eq_u32 s{W}, 1
s_cbranch_scc0 L_GS_done{T}
s_mov_b32 s{SG}, s{P_W1}
s_mov_b32 s{SG+1}, s{P_W1+1}
s_mov_b32 s{SG+2}, 2211840
s_mul_i32 s{sGo}, s{sJ}, 384
s_add_u32 s{sGo}, s{sGo}, {64*3456*start}
s_mov_b32 s{sGinc}, {64*3456}
v_mul_u32_u24 v16, 43, v0
v_lshrrev_b32 v16, 7, v16
v_mul_u32_u24 v15, 3, v16
v_sub_u32 v15, v0, v15
s_lshl_b32 s81, s81, 3
v_add_u32 v16, s81, v16
v_mul_u32_u24 v16, 3456, v16
v_lshlrev_b32 v15, 7, v15
v_add_u32 v16, v16, v15
v_cmp_gt_u32 vcc, 24, v0
v_cndmask_b32 v17, v17, v16, vcc
s_branch L_GS_done{T}
L_GS_U{T}:
s_cmp_eq_u32 s{W}, 1
s_cselect_b32 s{SG}, s{P_BRE}, s{P_BIM}
s_cselect_b32 s{SG+1}, s{P_BRE+1}, s{P_BIM+1}
s_mov_b32 s{SG+2}, 819200
s_mul_i32 s80, s{sJ}, 96
s_mul_i32 s81, s81, 12
s_add_u32 s80, s80, s81
v_add_u32 v16, s80, v0
v_min_u32 v16, 639, v16
v_mul_u32_u24 v16, 1280, v16
v_cmp_gt_u32 vcc, 12, v0
v_cndmask_b32 v17, v17, v16, vcc
L_GS_done{T}:""")
    if not opt.gloop: e("v_mov_b32 v17, 0x10000000")

def gen_unit_ids(e, W):
    e(f"""s_cmp_ge_u32 s2, 108
s_cbranch_scc1 L_UID_C
s_lshr_b32 s3, s2, 1
s_and_b32 s35, s2, 1
s_lshl_b32 s35, s35, 2
s_add_u32 s35, s35, s{W}
s_branch L_UID_done
L_UID_C:
s_sub_u32 s80, s2, 108
s_and_b32 s35, s80, 7
s_lshr_b32 s80, s80, 3
s_lshl_b32 s3, s80, 2
s_add_u32 s3, s3, s{W}
s_add_u32 s3, s3, 54
L_UID_done:""")

def gen_prep_gather(e, W=84):
    e(f"""s_cmp_ge_u32 s3, 54
s_cbranch_scc1 L_PG_C""")
    srd(e, STA, P_W2, 2211840)
    e(f"""v_mul_u32_u24 v10, 52, v0
v_lshrrev_b32 v10, 8, v10
v_mul_u32_u24 v11, 5, v10
v_sub_u32 v11, v0, v11
s_lshl_b32 s80, s{W}, 3
v_add_u32 v10, s80, v10
v_mul_u32_u24 v10, 1280, v10
v_lshlrev_b32 v11, 7, v11
v_add_u32 v10, v10, v11
v_mov_b32 v11, 0x10000000
v_cmp_gt_u32 vcc, 40, v0
v_cndmask_b32 v10, v11, v10, vcc
s_mul_i32 s80, s3, {32*1280}
s_and_b32 s81, s2, 1
s_mul_i32 s81, s81, 640
s_add_u32 s80, s80, s81
buffer_load_dword v18, v10, s[{STA}:{STA+3}], s80 offen
buffer_load_dword v18, v11, s[{STA}:{STA+3}], s80 offen
s_branch L_PG_done
L_PG_C:""")
    srd(e, STA, P_CRE, 819200)
    srd(e, STB, P_CIM, 819200)
    e(f"""s_mul_i32 s81, s35, 80
s_mul_i32 s80, s{W}, 20
s_add_u32 s81, s81, s80
v_add_u32 v10, s81, v0
v_mul_u32_u24 v10, 1280, v10
v_mov_b32 v11, 0x10000000
v_cmp_gt_u32 vcc, 20, v0
v_cndmask_b32 v10, v11, v10, vcc
s_sub_u32 s80, s3, 54
s_lshr_b32 s80, s80, 2
s_min_u32 s80, s80, 9
s_lshl_b32 s80, s80, 7
buffer_load_dword v18, v10, s[{STA}:{STA+3}], s80 offen
buffer_load_dword v18, v10, s[{STB}:{STB+3}], s80 offen
L_PG_done:""")

def gen_lambda_table(e, part):
    L1, L2, L4, L8, L16, L32, L48, L64, L128, L256, L512, L1024, C2 = 30, 32, 34, 36, 38, 40, 42, 44, 46, 48, 50, 52, 54
    if part == 0:
        e(f"""v_lshlrev_b32 v20, 16, v20
v_lshlrev_b32 v21, 16, v21
v_lshlrev_b32 v22, 16, v22
v_mul_f32 v23, 0x3fb8aa3b, v22
v_exp_f32 v23, v23
s_nop 0
v_cvt_pk_bf16_f32 v23, v23, v23
v_and_b32 v23, 0xffff0000, v23
v_mul_f32 v24, v23, v20
v_mul_f32 v25, v23, v21
v_mul_f32 v24, 0x3fb8aa3b, v24
v_exp_f32 v24, v24
v_mul_f32 v25, 0.15915494, v25
v_fract_f32 v25, v25
v_sin_f32 v26, v25
v_cos_f32 v27, v25
s_nop 0
v_mul_f32 v31, v24, v26
v_mul_f32 v30, v24, v27""")
        csq(e, L2, L1); csq(e, L4, L2); csq(e, L8, L4); csq(e, L16, L8); csq(e, L32, L16)
        cmul(e, L48, L32, L16, None)
        csq(e, L64, L32); csq(e, L128, L64)
        return
    csq(e, L256, L128); csq(e, L512, L256); csq(e, L1024, L512)
    e(f"""v_add_f32 v56, -1.0, v30
v_mul_f32 v57, v20, v20
v_fma_f32 v57, v21, v21, v57
v_rcp_f32 v57, v57
v_mul_f32 v58, v56, v20
v_fma_f32 v58, v31, v21, v58
v_mul_f32 v59, v31, v20
v_fma_f32 v59, -v56, v21, v59
v_add_f32 v57, v57, v57
v_mul_f32 v{C2}, v58, v57
v_mul_f32 v{C2+1}, v59, v57
v_mov_b32 v60, 1.0
v_mov_b32 v61, 0""")
    ents = [L1, L8, 60, L16, L32, L48, L64, L128, L512, L1024, C2]
    for i, r in enumerate(ents):
        e(f"ds_write_b64 v62, v[{r}:{r+1}] offset:{i*768}")
    e("s_waitcnt lgkmcnt(0)")

ACC = 64
SETA, SETB = 160, 200
def acc_ffn(ft, tt): return ACC + (ft * 4 + tt) * 4
def acc_u(i, tp): return ACC + (i * 6 + tp) * 4

def reads(kind, st, ks):
    L = []
    vX = 2 + ks
    if kind == 'F':
        xs = [f"ds_read_b128 {R(st + 4*t)}, v{vX} offset:{t*2048}" for t in range(4)]
        ws = []
        for ft in range(6):
            for h in range(2):
                ws.append(f"ds_read_b64_tr_b16 v[{st+16+4*ft+2*h}:{st+16+4*ft+2*h+1}], v{4+ft} offset:{ks*12288 + h*1536}")
        L = ws[:2] + xs + ws[2:]
    else:
        vW = 4 + ks
        xs = [f"ds_read_b128 {R(st + 4*t)}, v{vX} offset:{t*2048}" for t in range(4)]
        ws = [f"ds_read_b128 {R(st + 16 + 4*t)}, v{vW} offset:{t*2048}" for t in range(6)]
        L = [ws[0]] + xs + ws[1:]
    return L

def mfmas(kind, st, first=False):
    L = []
    for n in range(6):
        for t in range(4):
            if kind == 'F':
                d = acc_ffn(n, t)
                c = R(16 + 20 + 4*n) if first else R(d)
                L.append(f"v_mfma_f32_16x16x32_bf16 {R(d)}, {R(st+16+4*n)}, {R(st+4*t)}, {c}")
            else:
                d = acc_u(t, n)
                c = "0" if first else R(d)
                L.append(f"v_mfma_f32_16x16x32_bf16 {R(d)}, {R(st+4*t)}, {R(st+16+4*n)}, {c}")
    return L

def gen_prep_issue(e, W=84, D=116):
    e(f"""s_cmp_ge_u32 s3, 54
s_cbranch_scc1 L_PREP_C""")
    srd(e, STA, P_W2, 2211840)
    e(f"""s_mul_i32 s80, s3, {32*1280}
s_mul_i32 s81, s35, 160
s_add_u32 s80, s80, s81
s_mul_i32 s81, s{W}, 5120
s_add_u32 s81, s81, {LDS_PREP}""")
    for n in range(5):
        e(f"""v_add_u32 v10, {64*n}, v0
v_mul_u32_u24 v11, 205, v10
v_lshrrev_b32 v11, 11, v11
v_mul_u32_u24 v12, 10, v11
v_sub_u32 v12, v10, v12
v_mul_u32_u24 v11, 1280, v11
v_lshlrev_b32 v12, 4, v12
v_add_u32 v11, v11, v12
s_add_u32 m0, s81, {n*1024}
buffer_load_dwordx4 v11, s[{STA}:{STA+3}], s80 offen lds""")
    e("v_mov_b32 v11, 0x10000000")
    for n in range(5):
        e(f"buffer_load_dword v{D}, v11, s[{STA}:{STA+3}], s80 offen")
    e("s_branch L_PREP_issued")
    e("L_PREP_C:")
    srd(e, STA, P_CRE, 819200)
    srd(e, STB, P_CIM, 819200)
    e(f"""v_and_b32 v10, 15, v0
v_mul_u32_u24 v10, 1280, v10
v_lshrrev_b32 v11, 4, v0
v_lshlrev_b32 v11, 3, v11
v_add_u32 v10, v10, v11
s_sub_u32 s80, s3, 54
s_min_u32 s80, s80, 39
s_lshl_b32 s80, s80, 5
s_mul_i32 s81, s35, {80*1280}
s_add_u32 s80, s80, s81""")
    for dt in range(5):
        e(f"buffer_load_dwordx2 v[{D+4*dt}:{D+1+4*dt}], v10, s[{STA}:{STA+3}], s80 offen")
        e(f"buffer_load_dwordx2 v[{D+2+4*dt}:{D+3+4*dt}], v10, s[{STB}:{STB+3}], s80 offen")
        if dt < 4: e(f"s_add_u32 s80, s80, {16*1280}")
    e("L_PREP_issued:")

def gen_prep_finish(e, W=84, D=116, T=''):
    e(f"""s_cmp_ge_u32 s3, 54
s_cbranch_scc1 L_PF_store{T}
v_lshrrev_b32 v10, 4, v0
v_lshlrev_b32 v10, 2, v10
v_bfe_u32 v11, v0, 2, 2
v_add_u32 v10, v10, v11
v_mul_u32_u24 v10, 160, v10
v_and_b32 v11, 3, v0
v_lshlrev_b32 v11, 3, v11
v_add_u32 v10, v10, v11
s_mul_i32 s81, s{W}, 5120
s_add_u32 s81, s81, {LDS_PREP}
v_add_u32 v10, s81, v10""")
    for dt in range(5):
        for h in range(2):
            e(f"ds_read_b64_tr_b16 v[{D+4*dt+2*h}:{D+1+4*dt+2*h}], v10 offset:{dt*32 + h*16*160}")
    e("s_waitcnt lgkmcnt(0)")
    e(f"L_PF_store{T}:")
    e(f"""s_mul_i32 s80, s35, 94
s_add_u32 s80, s80, s3
s_mul_i32 s80, s80, 5120
s_add_u32 s80, s80, {WF_OFF}
v_lshlrev_b32 v10, 4, v0
v_mov_b32 v11, 0x10000000
s_cmp_ge_u32 s3, 94
s_cselect_b32 s81, 1, 0
v_mov_b32 v12, s81
v_cmp_eq_u32 vcc, 1, v12
v_cndmask_b32 v10, v10, v11, vcc""")
    for dt in range(5):
        if dt < 4:
            e(f"buffer_store_dwordx4 {R(D+4*dt)}, v10, s[{SWS}:{SWS+3}], s80 offen offset:{dt*1024} sc1")
        else:
            e(f"s_add_u32 s80, s80, 4096")
            e(f"buffer_store_dwordx4 {R(D+4*dt)}, v10, s[{SWS}:{SWS+3}], s80 offen sc1")

def gen_prep_flag(e):
    e(f"""s_lshl_b32 s80, s35, 9
s_lshl_b32 s81, s3, 2
s_add_u32 s80, s80, s81
s_add_u32 s80, s80, {WFLAG_OFF}
v_mov_b32 v10, s{sNONCE}
s_cmp_ge_u32 s3, 94
s_cselect_b32 s81, 0x10000000, 0
v_mov_b32 v11, s81
s_mov_b64 exec, 1
buffer_store_dword v10, v11, s[{SWS}:{SWS+3}], s80 offen sc0 sc1
s_mov_b64 exec, -1""")

def interleave2(e, A, B, per):
    bi = 0
    for i, a in enumerate(A):
        e(a)
        for _ in range(per[i] if i < len(per) else 0):
            if bi < len(B): e(B[bi]); bi += 1
    while bi < len(B):
        e(B[bi]); bi += 1

def gen_main_loop(e, kind):
    tag = kind
    naddr = [2, 3] + ([4, 5, 6, 7, 8, 9] if kind == 'F' else [4, 5])
    sIT, sDELTA, sSLOT = 86, 87, 88
    def adv_list():
        L = [f"s_add_u32 s{sSLOT}, s{sSLOT}, 1", f"s_cmp_eq_u32 s{sSLOT}, 3",
             f"s_cselect_b32 s{sDELTA}, s90, s89", f"s_cselect_b32 s{sSLOT}, 0, s{sSLOT}"]
        L += [f"v_add_u32 v{v}, s{sDELTA}, v{v}" for v in naddr]
        return L
    e(f"s_mov_b32 s{sIT}, 1\ns_mov_b32 s{sSLOT}, 0\ns_mov_b32 s89, {SLOT}\ns_mov_b32 s90, {-2*SLOT & 0xffffffff}")
    if opt.itstamps:
        e(f"s_memtime s[100:101]\ns_waitcnt lgkmcnt(0)\nv_writelane_b32 v250, s100, 10")
    e("s_waitcnt lgkmcnt(0)\ns_barrier")
    if opt.itstamps:
        e(f"s_memtime s[100:101]\ns_waitcnt lgkmcnt(0)\nv_writelane_b32 v250, s100, 0")
    for r in reads(kind, SETA, 0): e(r)
    e("s_waitcnt lgkmcnt(0)")
    rb = reads(kind, SETB, 1)
    items = rb + adv_list()
    nr = len(rb)
    def perlist(nr, nextra):
        per = [1] * 24
        rem = 24 - nr
        per = [1] * nr + [0] * rem
        k = nextra; i = nr
        while k > 0:
            per[i] += 1; k -= 1; i += 1
            if i == 24: i = max(nr, 8)
        return per
    interleave2(e, mfmas(kind, SETA, first=True), items, perlist(nr, len(items) - nr))
    e("s_waitcnt lgkmcnt(0)")
    e(f"L_ML_{tag}:")
    e("s_barrier")
    if opt.itstamps:
        e(f"s_memtime s[100:101]\ns_waitcnt lgkmcnt(0)\ns_mov_b32 m0, s{sIT}\nv_writelane_b32 v250, s100, m0")
    ra = reads(kind, SETA, 0)
    interleave2(e, mfmas(kind, SETB), ra, [1] * 24)
    e(f"""s_cmp_eq_u32 s{sIT}, 1
s_cbranch_scc0 L_ML_h1_{tag}
buffer_load_dword v249, v248, s[{STA}:{STA+3}], 0 offen
L_ML_h1_{tag}:
s_cmp_eq_u32 s{sIT}, 4
s_cbranch_scc0 L_ML_h2_{tag}
s_waitcnt vmcnt(0)
v_readfirstlane_b32 s{sNONCE}, v249
s_cmp_eq_u32 s{sNONCE}, 0
s_cbranch_scc0 L_ML_h2b_{tag}""")
    spin_nonce(e, 'H' + tag, 10)
    e(f"L_ML_h2b_{tag}:")
    gen_prep_flag(e)
    e(f"L_ML_h2_{tag}:")
    e("s_waitcnt lgkmcnt(0)")
    items = rb + adv_list() + [f"s_add_u32 s{sIT}, s{sIT}, 1", f"s_cmp_lt_u32 s{sIT}, 10"]
    interleave2(e, mfmas(kind, SETA), items, perlist(nr, len(items) - nr))
    e(f"""s_waitcnt lgkmcnt(0)
s_cbranch_scc1 L_ML_{tag}""")
    lds_count(e, 24, 10)
    e(f"""s_mul_i32 s87, s{sWAVE}, 10
s_add_u32 s87, s87, 54
s_lshl_b32 s89, s{sCB}, 9
s_lshl_b32 s90, s87, 2
s_add_u32 s89, s89, s90
s_add_u32 s35, s89, {WFLAG_OFF}
v_lshlrev_b32 v8, 2, v0
buffer_load_dword v1, v8, s[{SWS}:{SWS+3}], s35 offen sc1""")
    for m in mfmas(kind, SETB): e(m)
    if opt.itstamps:
        e(f"""s_memtime s[100:101]
s_waitcnt lgkmcnt(0)
v_writelane_b32 v250, s100, 11
s_lshl_b32 s98, s2, 3
s_add_u32 s98, s98, s{sWAVE}
s_lshl_b32 s98, s98, 6
s_add_u32 s98, s98, {STAMP_OFF + 0x40000}
v_lshlrev_b32 v251, 2, v0
s_mov_b64 exec, 0xffff
buffer_store_dword v250, v251, s[{SWS}:{SWS+3}], s98 offen
s_mov_b64 exec, -1""")

def tile_flag(e, tag):
    nyoung = 0
    if opt.wearly:
        ssm_w_setup(e, tag)
        nyoung = SSM_W_OPS()
    e(f"""s_waitcnt vmcnt({nyoung})
s_lshr_b32 s80, s{sWAVE}, 1
s_lshl_b32 s81, s{sRB}, 1
s_add_u32 s80, s80, s81
s_lshl_b32 s80, s80, 8
s_lshl_b32 s81, s{sCOL}, 1
s_and_b32 s82, s{sWAVE}, 1
s_add_u32 s81, s81, s82
s_lshl_b32 s82, s81, 2
s_cmp_ge_u32 s81, 18
s_cselect_b32 s81, 56, 0
s_add_u32 s80, s80, s82
s_add_u32 s80, s80, s81
s_add_u32 s80, s80, {TFLAG_OFF}
v_mov_b32 v10, s{sNONCE}
v_mov_b32 v11, 0
s_mov_b64 exec, 1
buffer_store_dword v10, v11, s[{SWS}:{SWS+3}], s80 offen sc0 sc1
s_mov_b64 exec, -1""")
    if opt.eprio: e("s_setprio 0")

def SSM_W_OPS():
    nsh = 8 if opt.map2 == 1 else 4
    ng = (-(-(-(-10 * 40 // nsh)) // 64)) if opt.gw else 0
    return NW * 5 + NLS * 5 + ng

def ssm_w_setup(e, tag, order=True, defer_lds=False):
    e(f"""s_waitcnt vmcnt({12 if order else 0})
s_mul_i32 s87, s{sWAVE}, 10
s_add_u32 s87, s87, 54
v_cmp_ne_u32 vcc, s{sNONCE}, v1
v_lshlrev_b32 v1, 4, v0
v_lshlrev_b32 v8, 2, v0
s_and_b32 s80, vcc_lo, 0x3ff
s_cbranch_scc0 L_SSM_wok{tag}""")
    poll_flags(e, 'SW' + tag, 8, 10, 35, 0x3ff)
    e(f"""L_SSM_wok{tag}:
s_mul_i32 s84, s{sCB}, 94
s_add_u32 s84, s84, s87
s_mul_i32 s84, s84, 5120
s_add_u32 s84, s84, {WF_OFF}
s_mul_i32 s85, s{sRB2}, 94
s_add_u32 s85, s85, s87
s_lshl_b32 s85, s85, 12
s_mul_i32 s88, s{sWAVE}, 15360
s_add_u32 s88, s88, {LDS_Y}
v_add_u32 v3, s88, v1""")
    rot_setup(e, 10, True)
    rot_act(e)
    if opt.sorder and order:
        e(f"s_cmp_eq_u32 s{sISU}, 1\ns_cbranch_scc1 L_SSM_noord{tag}")
        lds_wait_ge(e, 'O' + tag, 28, 4, 10)
        e(f"L_SSM_noord{tag}:")
    if opt.sprio: e(f"s_setprio {opt.sprio}")
    if opt.sshelp:
        w_prefetch(e, 10, NLS, 88, do_lds=False, rng=(range(opt.fswn) if defer_lds else None))
        if not defer_lds:
            e(f"s_cmp_eq_u32 s{sISU}, 1\ns_cbranch_scc1 L_SSM_skiplds{tag}")
            w_lds(e, NLS, 88)
            e(f"s_branch L_SSM_ldsdone{tag}\nL_SSM_skiplds{tag}:\ns_add_u32 s84, s84, {NLS*5120}\nL_SSM_ldsdone{tag}:")
    else:
        w_prefetch(e, 10, NLS, 88)

def x_addr_setup(e):
    e(f"""s_lshr_b32 s80, s{sWAVE}, 1
s_lshl_b32 s80, s80, 13
v_and_b32 v10, 15, v0
v_lshlrev_b32 v10, 7, v10
v_lshrrev_b32 v11, 4, v0
v_and_b32 v12, 7, v0
v_xor_b32 v11, v11, v12
v_lshlrev_b32 v11, 4, v11
v_add_u32 v10, v10, v11
v_add_u32 v2, s80, v10
v_xor_b32 v3, 64, v2""")

def p1_l2_prefetch(e, kind):
    e(f"""s_lshr_b32 s81, s2, 3
s_lshr_b32 s82, s81, 3
s_lshl_b32 s82, s82, 5
s_lshl_b32 s83, s{sRB}, 7
s_add_u32 s82, s82, s83
v_and_b32 v10, 31, v0
v_add_u32 v10, s82, v10
v_mul_u32_u24 v10, 1280, v10
v_lshrrev_b32 v11, 5, v0
s_lshl_b32 s83, s{sWAVE}, 1
s_add_u32 s83, s83, 2
v_add_u32 v11, s83, v11
v_lshlrev_b32 v11, 7, v11
v_add_u32 v10, v10, v11
buffer_load_dword v247, v10, s[{SX}:{SX+3}], 0 offen
s_and_b32 s81, s81, 7""")
    if kind == 'F':
        srd(e, STA, P_W1, 2211840)
        e(f"""s_lshl_b32 s83, s{sWAVE}, 6
v_add_u32 v10, s83, v0
v_mul_u32_u24 v11, 2731, v10
v_lshrrev_b32 v11, 16, v11
v_mul_u32_u24 v12, 24, v11
v_sub_u32 v12, v10, v12
v_mul_u32_u24 v13, 43, v12
v_lshrrev_b32 v13, 7, v13
v_mul_u32_u24 v10, 3, v13
v_sub_u32 v12, v12, v10
v_lshlrev_b32 v11, 6, v11
v_add_u32 v11, v11, v13
s_lshl_b32 s83, s81, 3
s_add_u32 s83, s83, 128
v_add_u32 v11, s83, v11
v_mul_u32_u24 v11, 3456, v11
v_lshlrev_b32 v12, 7, v12
v_add_u32 v11, v11, v12
s_mul_i32 s83, s{sJ}, 384
buffer_load_dword v247, v11, s[{STA}:{STA+3}], s83 offen""")
    else:
        e(f"""s_cmp_ge_u32 s{sWAVE}, 2
s_cselect_b32 s{STA}, s{P_BIM}, s{P_BRE}
s_cselect_b32 s{STA+1}, s{P_BIM+1}, s{P_BRE+1}
s_mov_b32 s{STA+2}, 819200
s_mov_b32 s{STA+3}, 0x20000
s_and_b32 s83, s{sWAVE}, 1
s_lshl_b32 s83, s83, 6
v_add_u32 v10, s83, v0
v_min_u32 v10, 95, v10
v_mul_u32_u24 v11, 171, v10
v_lshrrev_b32 v11, 11, v11
v_mul_u32_u24 v12, 12, v11
v_sub_u32 v12, v10, v12
s_mul_i32 s83, s{sJ}, 96
s_mul_i32 s82, s81, 12
s_add_u32 s83, s83, s82
v_add_u32 v12, s83, v12
v_min_u32 v12, 639, v12
v_mul_u32_u24 v12, 1280, v12
v_add_u32 v11, 2, v11
v_lshlrev_b32 v11, 7, v11
v_add_u32 v12, v12, v11
buffer_load_dword v247, v12, s[{STA}:{STA+3}], 0 offen""")

def consumer_start_loads(e, nbefore):
    gen_gather_setup(e, sWAVE, 'C', 0)
    ng = 10 if opt.gall else 3
    for _ in range(ng):
        e(f"buffer_load_dword v18, v17, s[{SG}:{SG+3}], s{sGo} offen\ns_add_u32 s{sGo}, s{sGo}, s{sGinc}")
    gen_unit_ids(e, sWAVE)
    if opt.gall:
        gen_prep_gather(e, sWAVE)
    gen_prep_issue(e, sWAVE, 16)

def consumer_common_setup(e):
    srd(e, STA, P_DBG, 256)
    e("v_mov_b32 v248, 0")

def gen_consumer_ffn(e):
    e("L_CONS_F:")
    srd(e, STB, P_B1, 3456)
    e(f"""s_mul_i32 s80, s{sJ}, 384
s_and_b32 s81, s{sWAVE}, 1
s_mul_i32 s81, s81, 192
s_add_u32 s80, s80, s81
v_lshrrev_b32 v10, 4, v0
v_lshlrev_b32 v10, 3, v10""")
    for ft in range(6):
        e(f"buffer_load_dwordx2 v[{224+2*ft}:{225+2*ft}], v10, s[{STB}:{STB+3}], s80 offen offset:{32*ft}")

    x_addr_setup(e)
    e(f"""v_lshrrev_b32 v10, 4, v0
v_bfe_u32 v11, v0, 2, 2
v_lshlrev_b32 v12, 3, v10
v_add_u32 v12, v12, v11
v_mul_u32_u24 v12, 384, v12
v_bfe_u32 v13, v0, 3, 1
v_lshlrev_b32 v13, 1, v13
v_and_b32 v14, 1, v10
v_lshlrev_b32 v14, 2, v14
v_or_b32 v13, v13, v14
v_bfe_u32 v14, v0, 1, 1
s_and_b32 s81, s{sWAVE}, 1
s_mul_i32 s81, s81, 12
v_add_u32 v14, s81, v14
v_and_b32 v15, 1, v0
v_lshlrev_b32 v15, 3, v15
v_add_u32 v12, v12, v15
v_add_u32 v12, 16384, v12""")
    for ft in range(6):
        e(f"""v_add_u32 v10, {2*ft}, v14
v_xor_b32 v10, v10, v13
v_lshlrev_b32 v10, 4, v10
v_add_u32 v{4+ft}, v12, v10""")
    e("s_waitcnt vmcnt(0)")
    gen_prep_finish(e, sWAVE, 16, 'F')
    consumer_common_setup(e)
    for ft in range(6):
        b = 36 + 4 * ft
        e(f"""v_lshlrev_b32 v{b}, 16, v{224+2*ft}
v_and_b32 v{b+1}, 0xffff0000, v{224+2*ft}
v_lshlrev_b32 v{b+2}, 16, v{225+2*ft}
v_and_b32 v{b+3}, 0xffff0000, v{225+2*ft}""")
    stamp(e, 0, 14)
    stamp_clk(e, 14, 14)
    dbgmax(e, 2)
    gen_main_loop(e, 'F')
    probe(e, 1)
    dbgmax(e, 3)
    if opt.eprio: e(f"s_setprio {opt.eprio}")
    stamp(e, 1, 14)
    stamp_clk(e, 15, 14)
    e(f"""s_lshr_b32 s80, s{sWAVE}, 1
s_lshl_b32 s81, s{sRB}, 1
s_add_u32 s80, s80, s81
s_mul_i32 s80, s80, 94
s_mul_i32 s81, s{sJ}, 6
s_add_u32 s80, s80, s81
s_and_b32 s81, s{sWAVE}, 1
s_mul_i32 s81, s81, 3
s_add_u32 s80, s80, s81
s_lshl_b32 s32, s80, 12
v_lshlrev_b32 v10, 4, v0""")
    k = 0
    OB = 196 if opt.fsw else SETA
    pend = []
    for u in range(3):
        for tt in range(4):
            o = OB + 4 * k; k += 1
            vals = [acc_ffn(2*u, tt), acc_ffn(2*u+1, tt)]
            tmp = 16 + 8 * (k & 1)
            for h, a in enumerate(vals):
                for r in range(4):
                    e(f"v_max_f32 v{tmp+4*h+r}, 0, v{a+r}")
            for h, a in enumerate(vals):
                for r in range(0, 4, 2):
                    e(f"v_pk_mul_f32 v[{a+r}:{a+r+1}], v[{a+r}:{a+r+1}], v[{tmp+4*h+r}:{tmp+4*h+r+1}]")
            for h, a in enumerate(vals):
                for r in range(0, 4, 2):
                    e(f"v_cvt_pk_bf16_f32 v{o+2*h+(r>>1)}, v{a+r}, v{a+r+1}")
            st_ = f"buffer_store_dwordx4 {R(o)}, v10, s[{SWS}:{SWS+3}], s32 offen offset:{tt*1024} sc1"
            if opt.fsw: pend.append(st_)
            else: e(st_)
        if u < 2:
            if opt.fsw: pend.append("s_add_u32 s32, s32, 4096")
            else: e("s_add_u32 s32, s32, 4096")
    if opt.fsw:
        ssm_w_setup(e, 'F', order=False, defer_lds=(opt.fsw == 2))
        e("v_lshlrev_b32 v10, 4, v0")
        for x in pend: e(x)
    lds_count(e, 16, 12)
    stamp(e, 2, 14)
    tile_flag(e, 'F')
    dbgmax(e, 4)
    stamp(e, 3, 14)
    if opt.fsw == 2:
        w_prefetch(e, 10, NLS, 88, do_lds=False, rng=range(opt.fswn, NW))
        w_lds(e, NLS, 88)
    e("s_branch L_SSM_P2b" if opt.fsw else "s_branch L_SSM_P2")

def gen_code_prefetch(e):
    e(f"""s_cmp_eq_u32 s{sWAVE}, 3
s_cbranch_scc0 L_CPF_done
s_getpc_b64 s[80:81]
L_CPF_pc:
s_sub_u32 s80, s80, L_CPF_pc-{NAME}
s_subb_u32 s81, s81, 0
s_lshr_b32 s82, s2, 3
s_lshl_b32 s82, s82, 11
v_and_b32 v10, 15, v0
v_lshlrev_b32 v10, 7, v10
v_add_u32 v10, s82, v10
v_min_u32 v10, L_CODE_END-{NAME}-4, v10
s_mov_b64 exec, 0xffff
global_load_dword v19, v10, s[80:81]
s_mov_b64 exec, -1
L_CPF_done:""")

def gen_consumer(e):
    dbgmax(e, 1)
    e(f"""v_mov_b32 v10, {LDS_FLAG}
v_mov_b32 v12, 0
v_mov_b32 v13, 0
v_mov_b32 v14, 0
v_mov_b32 v15, 0
ds_write_b128 v10, v[12:15]
ds_write_b128 v10, v[12:15] offset:16""")
    if opt.cpf: gen_code_prefetch(e)
    consumer_start_loads(e, 0)
    e(f"""s_cmp_eq_u32 s{sISU}, 1
s_cbranch_scc1 L_CONS_U""")
    gen_consumer_ffn(e)
    gen_consumer_u(e)

def pk(op, d, a, b, c=None, bsel=None, neg=False):
    assert bsel == 0, "op_sel hi-broadcast is unsafe next to MFMA (measured)"
    n = 3 if c is not None else 2
    sel = [0, bsel] + ([0] if c is not None else [])
    selh = [1, bsel] + ([1] if c is not None else [])
    s = f"{op} v[{d}:{d+1}], v[{a}:{a+1}], v[{b}:{b+1}]" + (f", v[{c}:{c+1}]" if c is not None else "")
    s += " op_sel:[" + ",".join(map(str, sel)) + "] op_sel_hi:[" + ",".join(map(str, selh)) + "]"
    if neg:
        ng = [0, 1] + ([0] if c is not None else [])
        s += " neg_lo:[" + ",".join(map(str, ng)) + "] neg_hi:[" + ",".join(map(str, ng)) + "]"
    return s

def gen_consumer_u(e):
    e("L_CONS_U:")
    x_addr_setup(e)
    e(f"""s_and_b32 s81, s{sWAVE}, 1
s_mul_i32 s81, s81, {96*128}
s_add_u32 s81, s81, 16384
v_add_u32 v4, s81, v10
v_xor_b32 v5, 64, v4""")
    e("s_waitcnt vmcnt(0)")
    gen_prep_finish(e, sWAVE, 16, 'U')
    consumer_common_setup(e)
    dbgmax(e, 2)
    stamp(e, 0, 14)
    gen_main_loop(e, 'U')
    probe(e, 2)
    dbgmax(e, 3)
    if opt.eprio: e(f"s_setprio {opt.eprio}")
    stamp(e, 1, 14)
    def K(ct, i): return 160 + 18 * ct + 2 * i
    LAM, L8, L16, L16Q, L64, L128, L512, L1024, C2 = range(9)
    ent = {LAM: 0, L8: 1, L16: 3, L64: 6, L128: 7, L512: 8, L1024: 9, C2: 10}
    e(f"""s_and_b32 s81, s{sWAVE}, 1
s_mul_i32 s81, s81, {48*8}
s_add_u32 s81, s81, {LDS_TAB}
v_and_b32 v10, 15, v0
v_lshlrev_b32 v10, 3, v10
v_add_u32 v10, s81, v10
v_lshrrev_b32 v11, 4, v0
v_mul_u32_u24 v11, 768, v11
v_add_u32 v11, v11, v10""")
    for ct in range(3):
        for k, en in ent.items():
            e(f"ds_read_b64 v[{K(ct,k)}:{K(ct,k)+1}], v10 offset:{en*768 + ct*128}")
        e(f"ds_read_b64 v[{K(ct,L16Q)}:{K(ct,L16Q)+1}], v11 offset:{2*768 + ct*128}")
    e("s_waitcnt lgkmcnt(0)")
    LI = [2, 252, 254]
    C2I = [16, 18, 20]
    for ct in range(3):
        e(f"v_mov_b32 v{LI[ct]}, v{K(ct, LAM)+1}")
    def U(n, ct, part):
        return acc_u(n >> 1, 2 * ct + part) + 2 * (n & 1)
    def Er(ct, s): return 16 + 8 * ct + 4 * s
    def Ei(ct, s): return 18 + 8 * ct + 4 * s
    for n in range(1, 8):
        src = (n - 1) & 1; dst = n & 1
        for ct in range(3):
            pr = U(0, ct, 0) if n == 1 else Er(ct, src)
            pi = U(0, ct, 1) if n == 1 else Ei(ct, src)
            e(pk("v_pk_fma_f32", Er(ct, dst), pr, K(ct, LAM), U(n, ct, 0), 0))
            e(pk("v_pk_fma_f32", Ei(ct, dst), pi, K(ct, LAM), U(n, ct, 1), 0))
        for ct in range(3):
            pr = U(0, ct, 0) if n == 1 else Er(ct, src)
            pi = U(0, ct, 1) if n == 1 else Ei(ct, src)
            e(pk("v_pk_fma_f32", Er(ct, dst), pi, LI[ct], Er(ct, dst), 0, neg=True))
            e(pk("v_pk_fma_f32", Ei(ct, dst), pr, LI[ct], Ei(ct, dst), 0))
    def LL(ct): return 16 + 8 * ct
    for ct in range(3):
        er, ei, l8 = Er(ct, 1), Ei(ct, 1), K(ct, L8)
        e(f"""v_fma_f32 v{LL(ct)}, v{l8}, v{er}, v{er+1}
v_fma_f32 v{LL(ct)+1}, v{l8}, v{ei}, v{ei+1}
v_fma_f32 v{LL(ct)}, -v{l8+1}, v{ei}, v{LL(ct)}
v_fma_f32 v{LL(ct)+1}, v{l8+1}, v{er}, v{LL(ct)+1}""")
    def G(ct, q): return 214 + 8 * ct + 2 * q
    for ct in range(3):
        for c in range(2):
            a, b, a2, b2 = G(ct, 0) + c, G(ct, 1) + c, G(ct, 2) + c, G(ct, 3) + c
            e(f"""v_mov_b32 v{a}, v{LL(ct)+c}
v_mov_b32 v{b}, v{LL(ct)+c}
v_permlane16_swap_b32 v{a}, v{b}
v_mov_b32 v{a2}, v{a}
v_mov_b32 v{b2}, v{b}
v_permlane32_swap_b32 v{a}, v{a2}
v_permlane32_swap_b32 v{b}, v{b2}""")
    for ct in range(3):
        cfma(e, G(ct, 1), K(ct, L16), G(ct, 0), G(ct, 1))
    for ct in range(3):
        cfma(e, G(ct, 2), K(ct, L16), G(ct, 1), G(ct, 2))
    for ct in range(3):
        cfma(e, G(ct, 3), K(ct, L16), G(ct, 2), G(ct, 3))
    e(f"""s_mov_b32 s80, 0xffff0000
s_mov_b32 s81, 0
s_mov_b32 s82, 0
s_mov_b32 s83, 0x0000ffff
s_mov_b32 s90, 0
s_mov_b32 s91, 0xffff0000""")
    for ct in range(3):
        for c in range(2):
            e(f"""v_cndmask_b32 v{LL(ct)+c}, 0, v{G(ct,0)+c}, s[80:81]
v_cndmask_b32 v{LL(ct)+c}, v{LL(ct)+c}, v{G(ct,1)+c}, s[82:83]
v_cndmask_b32 v{LL(ct)+c}, v{LL(ct)+c}, v{G(ct,2)+c}, s[90:91]""")
    e(f"""s_and_b32 s84, s{sWAVE}, 1
s_mul_i32 s85, s84, {48*8}
s_add_u32 s85, s85, {LDS_LX}
v_and_b32 v10, 15, v0
v_lshlrev_b32 v10, 3, v10
v_add_u32 v10, s85, v10
s_lshl_b32 s85, s84, 2
s_add_u32 s85, s85, {LDS_FLAG}
v_mov_b32 v11, s85
s_cmp_ge_u32 s{sWAVE}, 2
s_cbranch_scc1 L_U_wt1""")
    for ct in range(3):
        e(f"ds_write_b64 v10, v[{G(ct,3)}:{G(ct,3)+1}] offset:{ct*128}")
    e(f"""v_mov_b32 v12, 1
s_waitcnt lgkmcnt(0)
ds_write_b32 v11, v12
s_branch L_U_lb
L_U_wt1:
s_mov_b32 s85, 0
L_U_pairwait:
ds_read_b32 v12, v11
s_add_u32 s85, s85, 1
s_waitcnt lgkmcnt(0)
v_readfirstlane_b32 s86, v12
s_cmp_ge_u32 s85, {opt.spin_limit}
s_cbranch_scc1 L_U_pairok
s_cmp_eq_u32 s86, 0
s_cbranch_scc1 L_U_pairwait
L_U_pairok:""")
    for ct in range(3):
        e(f"ds_read_b64 v[{G(ct,0)}:{G(ct,0)+1}], v10 offset:{ct*128}")
    e("s_waitcnt lgkmcnt(0)")
    for ct in range(3):
        cfma(e, G(ct, 1), K(ct, L64), G(ct, 0), G(ct, 3))
    e(f"""s_mov_b32 s80, 0xffff0000
s_mov_b32 s81, 0
s_mov_b32 s82, 0
s_mov_b32 s83, 0x0000ffff
v_cndmask_b32 v240, v{G(0,1)}, v{G(1,1)}, s[80:81]
v_cndmask_b32 v241, v{G(0,1)+1}, v{G(1,1)+1}, s[80:81]
v_cndmask_b32 v240, v240, v{G(2,1)}, s[82:83]
v_cndmask_b32 v241, v241, v{G(2,1)+1}, s[82:83]
v_mov_b32 v242, s{sNONCE}
v_mov_b32 v243, s{sNONCE}
s_mul_i32 s85, s{sJ}, 16
s_add_u32 s85, s85, s{sRB}
s_mul_i32 s85, s85, 96
s_mul_i32 s86, s84, 48
s_add_u32 s85, s85, s86
s_lshl_b32 s85, s85, 4
s_add_u32 s85, s85, {AG_OFF}
v_lshlrev_b32 v12, 4, v0
s_mov_b32 exec_lo, -1
s_mov_b32 exec_hi, 0x0000ffff
buffer_store_dwordx4 v[240:243], v12, s[{SWS}:{SWS+3}], s85 offen sc0 sc1
s_mov_b64 exec, -1
L_U_lb:""")
    if not opt.udelay: lds_count(e, 16, 12)
    stamp(e, 2, 14)
    LB = 112 + 0
    lbregs = [40 + 4 * i for i in range(6)] + [240 + 4 * i for i in range(4)] + [32 + 0, 36]
    lbregs = [40 + 4 * i for i in range(6)] + [240, 244, 248] + [216, 224, 232]
    e(f"""s_mul_i32 s85, s{sJ}, {16*96}
s_mul_i32 s86, s84, 48
s_add_u32 s85, s85, s86
s_lshl_b32 s85, s85, 4
s_add_u32 s85, s85, {AG_OFF}
v_lshrrev_b32 v12, 4, v0
v_lshlrev_b32 v12, 2, v12
v_sub_u32 v12, s{sRB}, v12
v_mov_b32 v9, 0x10000000
v_and_b32 v13, 15, v0""")
    for m in range(4):
        e(f"""v_subrev_u32 v14, {1+m}, v12
v_cmp_le_i32 s[{88+2*m}:{89+2*m}], 0, v14
v_mul_u32_u24 v15, 96, v14
v_add_u32 v15, v15, v13
v_lshlrev_b32 v15, 4, v15
v_cndmask_b32 v{4+m}, v9, v15, s[{88+2*m}:{89+2*m}]""")
    CR = list(range(38, 52)) + [54]
    for k in range(15):
        e(f"s_mov_b32 s{CR[k]}, s{sNONCE}")
    e(f"""s_add_u32 s87, s85, {47*16 + 8}
s_mov_b32 s86, 0
L_U_cp:""")
    for k in range(15):
        e(f"""s_cmp_gt_u32 s{sRB}, {k}
s_cbranch_scc0 L_U_cpl
s_load_dword s{CR[k]}, s[{P_WS}:{P_WS+1}], s87 offset:{k*1536} glc""")
    e(f"""L_U_cpl:
s_add_u32 s86, s86, 1
s_waitcnt lgkmcnt(0)
s_mov_b32 s81, 0""")
    for k in range(15):
        e(f"s_xor_b32 s82, s{CR[k]}, s{sNONCE}\ns_or_b32 s81, s81, s82")
    e(f"""s_cmp_ge_u32 s86, {opt.spin_limit}
s_cbranch_scc1 L_U_cpok
s_cmp_eq_u32 s81, 0
s_cbranch_scc1 L_U_cpok
s_sleep 1
s_branch L_U_cp
L_U_cpok:""")
    stamp(e, 11, 14)
    e(f"s_mov_b32 s86, 0\nL_U_lbloop:")
    for m in range(4):
        for ct in range(3):
            r = lbregs[m * 3 + ct]
            e(f"buffer_load_dwordx4 {R(r)}, v{4+m}, s[{SWS}:{SWS+3}], s85 offen offset:{ct*256} sc1")
    e("s_add_u32 s86, s86, 1\ns_mov_b64 s[96:97], 0\ns_waitcnt vmcnt(0)")
    for m in range(4):
        for ct in range(3):
            r = lbregs[m * 3 + ct]
            e(f"""v_cmp_ne_u32 vcc, s{sNONCE}, v{r+2}
s_and_b64 vcc, vcc, s[{88+2*m}:{89+2*m}]
s_or_b64 s[96:97], s[96:97], vcc""")
    e(f"""s_cmp_ge_u32 s86, {opt.spin_limit}
s_cbranch_scc1 L_U_lbok
s_cmp_eq_u64 s[96:97], 0
s_cbranch_scc0 L_U_lbloop
L_U_lbok:""")
    if opt.udelay: lds_count(e, 16, 12)
    def S(m, ct): return lbregs[m * 3 + ct]
    for ct in range(3):
        cfma(e, S(2, ct), K(ct, L128), S(3, ct), S(2, ct))
    for ct in range(3):
        cfma(e, S(1, ct), K(ct, L128), S(2, ct), S(1, ct))
    for ct in range(3):
        cfma(e, S(0, ct), K(ct, L128), S(1, ct), S(0, ct))
    for ct in range(3):
        z, b, t, u = S(0, ct), S(1, ct), S(2, ct), S(3, ct)
        e(f"""v_mov_b32 v{b}, v{z}
v_mov_b32 v{b+1}, v{z+1}
v_permlane16_swap_b32 v{z}, v{b}
v_permlane16_swap_b32 v{z+1}, v{b+1}""")
        cfma(e, t, K(ct, L512), b, z)
        e(f"""v_mov_b32 v{u}, v{t}
v_mov_b32 v{u+1}, v{t+1}
v_permlane32_swap_b32 v{t}, v{u}
v_permlane32_swap_b32 v{t+1}, v{u+1}""")
        cfma(e, z, K(ct, L1024), u, t)
    e(f"s_cmp_ge_u32 s{sWAVE}, 2\ns_cbranch_scc0 L_U_hw0")
    for ct in range(3):
        cfma(e, S(1, ct), K(ct, L64), S(0, ct), G(ct, 0))
    e("s_branch L_U_hw1\nL_U_hw0:")
    for ct in range(3):
        e(f"v_mov_b32 v{S(1,ct)}, v{S(0,ct)}\nv_mov_b32 v{S(1,ct)+1}, v{S(0,ct)+1}")
    e("L_U_hw1:\ns_nop 1")
    for ct in range(3):
        cfma(e, S(2, ct), K(ct, L16Q), S(1, ct), LL(ct))
    for ct in range(3):
        hl, l8, er, ei = S(2, ct), K(ct, L8), Er(ct, 1), Ei(ct, 1)
        cr, ci = S(3, ct), S(3, ct) + 2
        e(f"""v_mov_b32 v{cr}, v{hl}
v_mov_b32 v{ci}, v{hl+1}
v_fma_f32 v{cr+1}, v{l8}, v{hl}, v{er}
v_fma_f32 v{ci+1}, v{l8}, v{hl+1}, v{ei}
v_fma_f32 v{cr+1}, -v{l8+1}, v{hl+1}, v{cr+1}
v_fma_f32 v{ci+1}, v{l8+1}, v{hl}, v{ci+1}""")
    for n in range(8):
        for ct in range(3):
            pr = S(3, ct) if n == 0 else U(n - 1, ct, 0)
            pi = S(3, ct) + 2 if n == 0 else U(n - 1, ct, 1)
            e(pk("v_pk_fma_f32", U(n, ct, 0), pr, K(ct, LAM), U(n, ct, 0), 0))
            e(pk("v_pk_fma_f32", U(n, ct, 1), pi, K(ct, LAM), U(n, ct, 1), 0))
        for ct in range(3):
            pr = S(3, ct) if n == 0 else U(n - 1, ct, 0)
            pi = S(3, ct) + 2 if n == 0 else U(n - 1, ct, 1)
            e(pk("v_pk_fma_f32", U(n, ct, 0), pi, LI[ct], U(n, ct, 0), 0, neg=True))
            e(pk("v_pk_fma_f32", U(n, ct, 1), pr, LI[ct], U(n, ct, 1), 0))
    stamp(e, 3, 14)
    e(f"""v_and_b32 v10, 15, v0
v_lshrrev_b32 v11, 4, v0
v_lshlrev_b32 v11, 3, v11
v_sub_u32 v10, v10, v11""")
    for ct in range(3):
        e(f"v_mov_b32 v{C2I[ct]}, v{K(ct, C2)+1}")
    e("v_mov_b32 v14, 0x3f80\nv_mov_b32 v15, 0x3f800000")
    for b in range(2):
        e(f"v_add_u32 v12, {16*b}, v10")
        for rr in range(4):
            d = 40 + 4 * b + rr
            e(f"""v_cmp_eq_u32 vcc, {2*rr}, v12
v_cndmask_b32 v{d}, 0, v14, vcc
v_cmp_eq_u32 vcc, {2*rr+1}, v12
v_cndmask_b32 v{d}, v{d}, v15, vcc""")
    e(f"""s_lshr_b32 s80, s{sWAVE}, 1
s_lshl_b32 s81, s{sRB}, 1
s_add_u32 s80, s80, s81
s_mul_i32 s80, s80, 94
s_mul_i32 s81, s{sJ}, 6
s_mul_i32 s82, s84, 3
s_add_u32 s81, s81, s82
s_add_u32 s80, s80, s81
s_add_u32 s80, s80, 54
s_lshl_b32 s80, s80, 12
v_lshlrev_b32 v10, 4, v0""")
    for ct in range(3):
        c2 = K(ct, C2)
        for i in range(4):
            if i & 1:
                t0, t1, t2, t3 = 216, 218, 220, 222
                m0, m1, m2, m3 = 4, 6, 8, 12
            else:
                t0, t1, t2, t3 = 208 + 6, 24, 26, 28
                t0 = 22
                m0, m1, m2, m3 = 30, 32, 34, 36
            for s_, (tr, ti, mr, mi) in enumerate(((t0, t2, m0, m2), (t1, t3, m1, m3))):
                n = 2 * i + s_
                hr, hi = U(n, ct, 0), U(n, ct, 1)
                e(pk("v_pk_mul_f32", mr, hr, c2, None, 0))
                e(pk("v_pk_mul_f32", mi, hi, c2, None, 0, neg=True))
            for s_, (tr, ti, mr, mi) in enumerate(((t0, t2, m0, m2), (t1, t3, m1, m3))):
                n = 2 * i + s_
                hr, hi = U(n, ct, 0), U(n, ct, 1)
                e(pk("v_pk_fma_f32", tr, hi, C2I[ct], mr, 0, neg=True))
                e(pk("v_pk_fma_f32", ti, hr, C2I[ct], mi, 0, neg=True))
            e(f"""v_cvt_pk_bf16_f32 v{48+i}, v{t0}, v{t1}
v_cvt_pk_bf16_f32 v{52+i}, v{t0+1}, v{t1+1}
v_cvt_pk_bf16_f32 v{56+i}, v{t2}, v{t3}
v_cvt_pk_bf16_f32 v{60+i}, v{t2+1}, v{t3+1}""")
        def D(part, tt): return 224 + 16 * part + 4 * tt
        for part in range(2):
            for a in range(2):
                for b in range(2):
                    A = 48 + 8 * part + 4 * a
                    e(f"v_mfma_f32_16x16x32_bf16 {R(D(part, 2*b+a))}, {R(A)}, {R(40+4*b)}, 0")
        if True:
            e(f"s_add_u32 s82, s81, {ct}\ns_cmp_ge_u32 s82, 40\ns_cbranch_scc1 L_U_skip{ct}")
            for tt in range(4):
                o = acc_u(tt, 2 * ct)
                dr, di = D(0, tt), D(1, tt)
                e(f"""v_cvt_pk_bf16_f32 v{o}, v{dr}, v{dr+1}
v_cvt_pk_bf16_f32 v{o+1}, v{dr+2}, v{dr+3}
v_cvt_pk_bf16_f32 v{o+2}, v{di}, v{di+1}
v_cvt_pk_bf16_f32 v{o+3}, v{di+2}, v{di+3}
buffer_store_dwordx4 {R(o)}, v10, s[{SWS}:{SWS+3}], s80 offen offset:{tt*1024} sc1""")
            e(f"L_U_skip{ct}:\ns_nop 7\ns_add_u32 s80, s80, 4096")
    stamp(e, 4, 14)
    tile_flag(e, 'U')
    dbgmax(e, 4)
    stamp(e, 5, 14)
    e("s_branch L_SSM_P2")

ACC2 = 16
WSL = 96
ASL = 196
NW, NA = 5, 3
def set_nw(nw, na):
    global NW, NA, ASL
    NW, NA = nw, na
    ASL = WSL + 20 * nw
def acc2(dt, tt): return ACC2 + (dt * 4 + tt) * 4

def wrap_w(e):
    if not opt.rot: return
    e("""s_sub_u32 s91, s91, 1
s_cmp_eq_u32 s91, 0
s_cselect_b32 s95, s93, 0
s_sub_u32 s84, s84, s95""")

def wrap_a(e):
    if not opt.rot: return
    e("""s_sub_u32 s92, s92, 1
s_cmp_eq_u32 s92, 0
s_cselect_b32 s95, s94, 0
s_sub_u32 s85, s85, s95""")

def rot_setup(e, n_sgpr_or_const, is_const):
    if not opt.rot: return
    if opt.map2 == 1:
        e(f"""s_and_b32 s95, s{sCB}, 3
s_lshl_b32 s95, s95, 1
s_add_u32 s95, s95, s{sRB2}
s_and_b32 s95, s95, 7""")
    else:
        e(f"""s_and_b32 s95, s{sRB2}, 3
s_lshl_b32 s95, s95, 1
s_add_u32 s95, s95, s{sCB}
s_and_b32 s95, s95, 7""")
    n = f"{n_sgpr_or_const}" if is_const else f"s{n_sgpr_or_const}"
    e(f"""s_mul_i32 s90, s95, {n}
s_lshr_b32 s90, s90, 3
s_sub_u32 s91, {n}, s90
s_mov_b32 s92, s91
s_mul_i32 s93, {n}, 5120
s_mul_i32 s94, {n}, 4096
s_mul_i32 s95, s90, 5120
s_add_u32 s84, s84, s95""")

def rot_act(e):
    if not opt.rot: return
    e("""s_lshl_b32 s95, s90, 12
s_add_u32 s85, s85, s95""")

def gen_p2_stream(e, tag, nsteps, extra_hook=None):
    queue = []
    SC = '' if opt.nosc1 else 'sc1'
    def ld_w(s):
        b = WSL + 20 * (s % NW)
        for dt in range(5):
            if dt < 4:
                e(f"buffer_load_dwordx4 {R(b+4*dt)}, v1, s[{SWS}:{SWS+3}], s84 offen offset:{dt*1024} {SC}")
            else:
                e(f"s_add_u32 s84, s84, 4096")
                e(f"buffer_load_dwordx4 {R(b+4*dt)}, v1, s[{SWS}:{SWS+3}], s84 offen {SC}")
                e(f"s_add_u32 s84, s84, 1024")
            queue.append(('w', s))
        wrap_w(e)
    def ld_a(s):
        b = ASL + 16 * (s % NA)
        for tt in range(4):
            e(f"buffer_load_dwordx4 {R(b+4*tt)}, v1, s[{SWS}:{SWS+3}], s85 offen offset:{tt*1024} {SC}")
            queue.append(('a', s))
        e(f"s_add_u32 s85, s85, 4096")
        wrap_a(e)
    return ld_w, ld_a, queue

def p2_role(e, tag, nsteps):
    pass

def emit_stream(e, nsteps, ld_w, ld_a, queue, NL, vL, late_lds=None):
    if opt.ststamps:
        e(f"s_memtime s[100:101]\ns_waitcnt lgkmcnt(0)\nv_writelane_b32 v250, s100, 0")
    for s in range(min(NA, nsteps)): ld_a(s)
    if late_lds is not None: w_lds(e, NL, late_lds, queue)
    for s in range(nsteps):
        idx = [i for i, q in enumerate(queue) if q in (('w', s), ('a', s))]
        inlds = NW <= s < NW + NL
        if idx:
            last = max(idx)
            n = len(queue) - 1 - last
            e(f"s_waitcnt vmcnt({n})" + (" lgkmcnt(0)" if inlds else ""))
            del queue[:last + 1]
        elif inlds:
            e("s_waitcnt lgkmcnt(0)")
        if opt.ststamps:
            e(f"s_memtime s[100:101]\ns_waitcnt lgkmcnt(0)\nv_writelane_b32 v250, s100, {s+1}")
        wb = WSL + 20 * (s % NW); ab = ASL + 16 * (s % NA)
        for dt in range(5):
            for tt in range(4):
                d = acc2(dt, tt)
                c = "0" if s == 0 else R(d)
                e(f"v_mfma_f32_16x16x32_bf16 {R(d)}, {R(wb+4*dt)}, {R(ab+4*tt)}, {c}")
        if s + NA < nsteps: ld_a(s + NA)
        t = s + NW
        if t < nsteps and t >= NW + NL:
            ld_w(t)
        t = s + 2
        if NW <= t < min(NW + NL, nsteps):
            li = [i for i, q in enumerate(queue) if q == ('l', t)]
            if li:
                e(f"s_waitcnt vmcnt({len(queue) - 1 - max(li)})")
                del queue[:max(li) + 1]
            for dt in range(5):
                e(f"ds_read_b128 {R(WSL + 20*(t % NW) + 4*dt)}, v{vL} offset:{(t-NW)*5120 + dt*1024}")

def spoll_tiles(e, tag, kind, sleep=1):
    off = 0 if kind == 'F' else 128
    n = 18 if kind == 'F' else 14
    e(f"""s_lshl_b32 s89, s{sRB2}, 8
s_add_u32 s89, s89, {TFLAG_OFF + off}
s_mov_b32 s80, 0
L_sp_{tag}:""")
    if kind == 'F':
        e(f"s_load_dwordx16 s[40:55], s[{P_WS}:{P_WS+1}], s89 glc")
        e(f"s_load_dwordx2 s[56:57], s[{P_WS}:{P_WS+1}], s89 offset:64 glc")
        regs = list(range(40, 58))
    else:
        e(f"s_load_dwordx8 s[40:47], s[{P_WS}:{P_WS+1}], s89 glc")
        e(f"s_load_dwordx4 s[48:51], s[{P_WS}:{P_WS+1}], s89 offset:32 glc")
        e(f"s_load_dwordx2 s[54:55], s[{P_WS}:{P_WS+1}], s89 offset:48 glc")
        regs = list(range(40, 52)) + [54, 55]
    e("s_add_u32 s80, s80, 1\ns_waitcnt lgkmcnt(0)\ns_mov_b32 s81, 0")
    for r_ in regs:
        e(f"s_xor_b32 s82, s{r_}, s{sNONCE}\ns_or_b32 s81, s81, s82")
    e(f"""s_cmp_ge_u32 s80, {opt.spin_limit}
s_cbranch_scc1 L_sp_done_{tag}
s_cmp_eq_u32 s81, 0
s_cbranch_scc1 L_sp_done_{tag}
s_sleep {sleep}
s_branch L_sp_{tag}
L_sp_done_{tag}:""")

def lds_signal(e, off, vt):
    e(f"""v_mov_b32 v{vt}, {LDS_FLAG + off}
v_mov_b32 v{vt+1}, 1
ds_write_b32 v{vt}, v{vt+1}""")

def lds_count(e, off, vt):
    e(f"""v_mov_b32 v{vt}, {LDS_FLAG + off}
v_mov_b32 v{vt+1}, 1
s_mov_b64 exec, 1
ds_add_u32 v{vt}, v{vt+1}
s_mov_b64 exec, -1""")

def lds_wait_ge(e, tag, off, n, vt):
    e(f"""v_mov_b32 v{vt}, {LDS_FLAG + off}
s_mov_b32 s80, 0
L_lwg_{tag}:
ds_read_b32 v{vt+1}, v{vt}
s_add_u32 s80, s80, 1
s_waitcnt lgkmcnt(0)
v_readfirstlane_b32 s81, v{vt+1}
s_cmp_ge_u32 s80, {opt.spin_limit * 4}
s_cbranch_scc1 L_lwg_done_{tag}
s_cmp_ge_u32 s81, {n}
s_cbranch_scc1 L_lwg_done_{tag}
s_sleep 1
s_branch L_lwg_{tag}
L_lwg_done_{tag}:""")

def lds_wait(e, tag, off, vt):
    e(f"""v_mov_b32 v{vt}, {LDS_FLAG + off}
s_mov_b32 s80, 0
L_lw_{tag}:
ds_read_b32 v{vt+1}, v{vt}
s_add_u32 s80, s80, 1
s_waitcnt lgkmcnt(0)
v_readfirstlane_b32 s81, v{vt+1}
s_cmp_ge_u32 s80, {opt.spin_limit * 4}
s_cbranch_scc1 L_lw_done_{tag}
s_cmp_eq_u32 s81, 0
s_cbranch_scc0 L_lw_done_{tag}
s_sleep 1
s_branch L_lw_{tag}
L_lw_done_{tag}:""")

def gen_p2(e):
    e("L_FFN_P2:")
    e(f"""s_mul_i32 s80, s{sRB2}, 94
s_add_u32 s85, s85, s80
s_lshl_b32 s85, s85, 12
v_add_u32 v3, s87, v1""")
    rot_act(e)
    e(f"""s_mov_b32 s88, s84
s_mov_b32 s84, s86""")
    nsh_ = 8 if opt.map2 == 1 else 4
    ng_ = (-(-(-(-14 * 40 // nsh_)) // 64)) if opt.gw else 0
    e(f"s_waitcnt vmcnt({NLF*5})")
    gen_gate_compute(e)
    e("s_mov_b32 s84, s88")
    ld_w, ld_a, queue = gen_p2_stream(e, 'F', 14)
    probe(e, 3)
    stamp(e, 3, 14)
    e(f"s_cmp_eq_u32 s86, 0\ns_cbranch_scc0 L_FFN_lw")
    spoll_tiles(e, 'FT', 'F')
    e('s_waitcnt vmcnt(0)')
    if opt.sshelp: lds_count(e, 20, 10)
    lds_signal(e, 8, 10)
    e("s_branch L_FFN_go\nL_FFN_lw:\ns_waitcnt vmcnt(0)")
    if opt.sshelp: lds_count(e, 20, 10)
    lds_wait(e, 'F', 8, 10)
    e("L_FFN_go:")
    if opt.prio: e(f"s_setprio {opt.prio}")
    stamp(e, 4, 14)
    if opt.l2pf2: l2_prefetch(e, 85, 14 * 32, 4 if opt.map2 == 1 else 8, f"s{sCB}", 3 if opt.map2 == 1 else 7, 2 if opt.map2 == 1 else 1)
    del queue[:]
    e(f"s_cmp_ge_u32 s86, 2\ns_cbranch_scc1 L_FFN_13")
    emit_stream(e, 14, ld_w, ld_a, queue, NLF, 3, 87 if opt.ldslate else None)
    e("s_branch L_FFN_done")
    e("L_FFN_13:")
    del queue[:]
    emit_stream(e, 13, ld_w, ld_a, queue, NLF, 3, 87 if opt.ldslate else None)
    e("L_FFN_done:")
    if opt.ststamps:
        e(f"""s_memtime s[100:101]
s_waitcnt lgkmcnt(0)
v_writelane_b32 v250, s100, 15
s_lshl_b32 s98, s2, 3
s_add_u32 s98, s98, s{sWAVE}
s_lshl_b32 s98, s98, 6
s_add_u32 s98, s98, {STAMP_OFF + 0x40000}
v_lshlrev_b32 v251, 2, v0
s_mov_b64 exec, 0xffff
buffer_store_dword v250, v251, s[{SWS}:{SWS+3}], s98 offen
s_mov_b64 exec, -1""")
    stamp(e, 5, 14)
    e(f"""s_mul_i32 s80, s86, 20480
v_add_u32 v2, s80, v1""")
    for tt in range(4):
        for dt in range(5):
            e(f"ds_write_b128 v2, {R(acc2(dt,tt))} offset:{LDS_F + (tt*5+dt)*1024}")
    e("s_waitcnt lgkmcnt(0)\ns_barrier")
    stamp(e, 6, 14)
    e("s_branch L_END")
    e("L_SSM_P2:")
    probe(e, 4)
    if not opt.wearly: ssm_w_setup(e, 'P')
    e("L_SSM_P2b:")
    ld_w, ld_a, queue = gen_p2_stream(e, 'S', 10)
    stamp(e, 6, 14)
    e(f"s_cmp_eq_u32 s{sWAVE}, 0\ns_cbranch_scc0 L_SSM_lw")
    spoll_tiles(e, 'ST', 'S')
    e('s_waitcnt vmcnt(0)')
    lds_signal(e, 12, 10)
    e("s_branch L_SSM_go\nL_SSM_lw:\ns_waitcnt vmcnt(0)")
    lds_wait(e, 'S', 12, 10)
    e("L_SSM_go:")
    if opt.sshelp:
        e(f"s_cmp_eq_u32 s{sISU}, 1\ns_cbranch_scc0 L_SSM_nohw")
        lds_wait_ge(e, 'H', 20, 4, 10)
        e("L_SSM_nohw:")
    stamp(e, 7, 14)
    dbgmax(e, 5)
    if opt.l2pf2: l2_prefetch(e, 85, 10 * 32, 4 if opt.map2 == 1 else 8, f"s{sCB}", 3 if opt.map2 == 1 else 7, 2 if opt.map2 == 1 else 1)
    del queue[:]
    emit_stream(e, 10, ld_w, ld_a, queue, NLS, 3)
    if opt.ststamps:
        e(f"""s_memtime s[100:101]
s_waitcnt lgkmcnt(0)
v_writelane_b32 v250, s100, 15
s_lshl_b32 s98, s2, 3
s_add_u32 s98, s98, s{sWAVE}
s_lshl_b32 s98, s98, 6
s_add_u32 s98, s98, {STAMP_OFF + 0x40000}
v_lshlrev_b32 v251, 2, v0
s_mov_b64 exec, 0xffff
buffer_store_dword v250, v251, s[{SWS}:{SWS+3}], s98 offen
s_mov_b64 exec, -1""")
    stamp(e, 8, 14)
    dbgmax(e, 6)
    XR, DK, B2, GG = 96, 106, 116, 126
    e(f"""s_lshr_b32 s80, s{sWAVE}, 1
s_lshl_b32 s80, s80, 5
s_and_b32 s81, s{sWAVE}, 1
s_lshl_b32 s81, s81, 3
s_add_u32 s80, s80, s81
s_lshl_b32 s81, s{sRB2}, 6
s_add_u32 s80, s80, s81
v_bfe_u32 v2, v0, 3, 1
v_lshlrev_b32 v2, 4, v2
v_and_b32 v3, 7, v0
v_add_u32 v2, v2, v3
v_add_u32 v2, s80, v2
v_lshrrev_b32 v3, 4, v0
v_lshlrev_b32 v4, 3, v3
s_mul_i32 s81, s{sCB}, 160
v_mul_u32_u24 v5, 1280, v2
v_add_u32 v5, v5, v4
v_lshlrev_b32 v6, 3, v2""")
    srd(e, STA, P_AX, 2621440)
    for dt in range(5):
        e(f"buffer_load_dwordx2 v[{XR+2*dt}:{XR+2*dt+1}], v5, s[{STA}:{STA+3}], s81 offen offset:{32*dt}")
    srd(e, STB, P_DSK, 1280)
    for dt in range(5):
        e(f"buffer_load_dwordx2 v[{DK+2*dt}:{DK+2*dt+1}], v4, s[{STB}:{STB+3}], s81 offen offset:{32*dt}")
    srd(e, STA, P_B2, 1280)
    for dt in range(5):
        e(f"buffer_load_dwordx2 v[{B2+2*dt}:{B2+2*dt+1}], v4, s[{STA}:{STA+3}], s81 offen offset:{32*dt}")
    e(f"s_mov_b32 s82, {G_OFF}")
    e(f"buffer_load_dwordx2 v[{GG}:{GG+1}], v6, s[{SWS}:{SWS+3}], s82 offen sc1")
    e(f"""s_mul_i32 s83, s{sWAVE}, 15360
s_add_u32 s83, s83, {LDS_Y}
v_add_u32 v7, s83, v1""")
    OWN = 130
    for w in range(4):
        e(f"s_cmp_eq_u32 s{sWAVE}, {w}\ns_cbranch_scc0 L_YW_{w}")
        sl = 0
        for tt in range(4):
            if tt == w: continue
            for dt in range(5):
                e(f"ds_write_b128 v7, {R(acc2(dt,tt))} offset:{sl * 5120 + dt * 1024}")
            sl += 1
        for dt in range(5):
            for r in range(4):
                e(f"v_mov_b32 v{OWN+4*dt+r}, v{acc2(dt,w)+r}")
        e(f"s_branch L_YW_done\nL_YW_{w}:")
    e("L_YW_done:")
    for k in range(3):
        e(f"""s_cmp_ge_u32 {k}, s{sWAVE}
s_cselect_b32 s80, {k+1}, {k}
s_cselect_b32 s81, 0, 1
s_sub_u32 s81, s{sWAVE}, s81
s_mul_i32 s80, s80, 15360
s_mul_i32 s81, s81, 5120
s_add_u32 s80, s80, s81
s_add_u32 s80, s80, {LDS_Y}
v_add_u32 v{8+k}, s80, v1""")
    e(f"""s_mul_i32 s80, s{sWAVE}, 5120
v_add_u32 v11, s80, v1
v_add_u32 v12, 40960, v11""")
    e("s_waitcnt lgkmcnt(0)\ns_barrier")
    stamp(e, 9, 14)
    YR, FR = 16, 150
    for k in range(3):
        for dt in range(5):
            e(f"ds_read_b128 {R(YR+20*k+4*dt)}, v{8+k} offset:{dt*1024}")
    for w2 in range(4):
        for dt in range(5):
            e(f"ds_read_b128 {R(FR+20*w2+4*dt)}, v{11+(w2>>1)} offset:{(w2&1)*20480 + dt*1024}")
    e(f"""s_waitcnt vmcnt(0)
s_mov_b32 s80, 0
L_G_chk:
v_cmp_ne_u32 vcc, s{sNONCE}, v{GG+1}
s_add_u32 s80, s80, 1
s_cmp_ge_u32 s80, {opt.spin_limit}
s_cbranch_scc1 L_G_ok
s_cmp_eq_u64 vcc, 0
s_cbranch_scc1 L_G_ok
s_sleep 2
buffer_load_dwordx2 v[{GG}:{GG+1}], v6, s[{SWS}:{SWS+3}], s82 offen sc1
s_waitcnt vmcnt(0)
s_branch L_G_chk
L_G_ok:
v_sub_f32 v13, 1.0, v{GG}
v_cvt_pk_bf16_f32 v13, v13, v13
v_and_b32 v13, 0xffff0000, v13""")
    e("s_waitcnt lgkmcnt(0)")
    for k in range(3):
        for i in range(0, 20, 2):
            e(f"v_pk_add_f32 v[{OWN+i}:{OWN+i+1}], v[{OWN+i}:{OWN+i+1}], v[{YR+20*k+i}:{YR+20*k+i+1}]")
    for k in range(1, 4):
        for i in range(0, 20, 2):
            e(f"v_pk_add_f32 v[{FR+i}:{FR+i+1}], v[{FR+i}:{FR+i+1}], v[{FR+20*k+i}:{FR+20*k+i+1}]")
    srd(e, SOUT, P_OUT, 5242880)
    e(f"""v_mul_u32_u24 v5, 2560, v2
v_lshlrev_b32 v4, 4, v3
v_add_u32 v5, v5, v4
s_mul_i32 s81, s{sCB}, 320""")
    for dt in range(5):
        T = 16 + 12 * dt
        for nm, src in ((0, XR), (4, DK), (8, B2)):
            e(f"""v_lshlrev_b32 v{T+nm}, 16, v{src+2*dt}
v_and_b32 v{T+nm+1}, 0xffff0000, v{src+2*dt}
v_lshlrev_b32 v{T+nm+2}, 16, v{src+2*dt+1}
v_and_b32 v{T+nm+3}, 0xffff0000, v{src+2*dt+1}""")
        y, f = OWN + 4 * dt, FR + 4 * dt
        for r in range(0, 4, 2):
            e(f"v_pk_fma_f32 v[{y+r}:{y+r+1}], v[{T+r}:{T+r+1}], v[{T+4+r}:{T+4+r+1}], v[{y+r}:{y+r+1}]")
            e(f"v_pk_add_f32 v[{f+r}:{f+r+1}], v[{f+r}:{f+r+1}], v[{T+8+r}:{T+8+r+1}]")
        o_ = 232 + 4 * dt if dt < 5 else 0
        for r in range(4):
            e(f"v_mul_f32 v{T+r}, v{GG}, v{y+r}")
        for r in range(4):
            e(f"v_fma_f32 v{o_+r}, v13, v{f+r}, v{T+r}")
        e(f"buffer_store_dwordx4 {R(o_)}, v5, s[{SOUT}:{SOUT+3}], s81 offen offset:{dt*64} {['', 'sc1', 'nt', 'sc0 sc1'][opt.osc]}")
    stamp(e, 10, 14)
    if opt.dbgtime: e("s_waitcnt vmcnt(0)")
    dbgmax(e, 7)
    e("s_branch L_END")

def gen_gate_loads(e, W=84):
    srd(e, STA, P_GW, 1280)
    srd(e, STB, P_AX, 2621440)
    e(f"""v_lshlrev_b32 v12, 4, v0
v_lshlrev_b32 v13, 2, v0
s_lshl_b32 s80, s2, 3
s_lshl_b32 s81, s{W}, 1
s_add_u32 s80, s80, s81
s_mul_i32 s81, s80, 1280
s_add_u32 s82, s81, 1280
buffer_load_dwordx4 v[16:19], v12, s[{STA}:{STA+3}], 0 offen
buffer_load_dword v20, v13, s[{STA}:{STA+3}], 0 offen offset:1024
buffer_load_dwordx4 v[22:25], v12, s[{STB}:{STB+3}], s81 offen
buffer_load_dword v26, v13, s[{STB}:{STB+3}], s81 offen offset:1024
buffer_load_dwordx4 v[28:31], v12, s[{STB}:{STB+3}], s82 offen
buffer_load_dword v32, v13, s[{STB}:{STB+3}], s82 offen offset:1024""")

def gen_gate_compute(e):
    e("v_mov_b32 v40, 0\nv_mov_b32 v41, 0")
    for m in range(5):
        e(f"""v_lshlrev_b32 v36, 16, v{16+m}
v_and_b32 v37, 0xffff0000, v{16+m}""")
        for row in range(2):
            x = 22 + 6 * row + m
            e(f"""v_lshlrev_b32 v38, 16, v{x}
v_and_b32 v39, 0xffff0000, v{x}
v_mul_f32 v38, v38, v36
v_mul_f32 v39, v39, v37
v_cvt_pk_bf16_f32 v38, v38, v39
v_lshlrev_b32 v39, 16, v38
v_and_b32 v38, 0xffff0000, v38
v_add_f32 v{40+row}, v{40+row}, v39
v_add_f32 v{40+row}, v{40+row}, v38""")
    for sh in ("row_shr:1", "row_shr:2", "row_shr:4", "row_shr:8", "row_bcast:15 row_mask:0xa", "row_bcast:31 row_mask:0xc"):
        for row in range(2):
            e(f"v_add_f32 v{40+row}, v{40+row}, v{40+row} {sh}")
    e("""v_readlane_b32 s80, v40, 63
v_readlane_b32 s81, v41, 63""")
    e(f"""v_mov_b32 v42, s80
v_mov_b32 v43, s81
v_cmp_eq_u32 vcc, 1, v0
v_cndmask_b32 v42, v42, v43, vcc
v_cvt_pk_bf16_f32 v42, v42, v42
v_and_b32 v42, 0xffff0000, v42
v_mul_f32 v42, 0xbfb8aa3b, v42
v_exp_f32 v42, v42
v_add_f32 v42, 1.0, v42
v_rcp_f32 v42, v42
v_cvt_pk_bf16_f32 v42, v42, v42
v_and_b32 v42, 0xffff0000, v42
v_mov_b32 v43, s{sNONCE}
v_lshlrev_b32 v44, 3, v0
s_lshl_b32 s80, s2, 3
s_lshl_b32 s81, s84, 1
s_add_u32 s80, s80, s81
s_lshl_b32 s80, s80, 3
s_add_u32 s80, s80, {G_OFF}
s_mov_b64 exec, 3
buffer_store_dwordx2 v[42:43], v44, s[{SWS}:{SWS+3}], s80 offen sc0 sc1
s_mov_b64 exec, -1""")

def generate(path):
    e = Emitter()
    hdr = open("gated_mix__ssm_conv_s5__dense_activation_squared_relu__prompt.s.ref").read().split("\n")
    head = [l for l in hdr if l.startswith(";") and "@launch" not in l and "Override" not in l and "grid=ceil" not in l]
    txt = "\n".join(head) + f"\n; @launch grid=(256,1,1) block=(512,1,1) lds={LDS_SIZE}\n"
    txt += '.amdgcn_target "amdgcn-amd-amdhsa--gfx950"\n.text\n'
    txt += f".globl {NAME}\n.p2align 8\n.type {NAME},@function\n{NAME}:\n"
    gen_entry(e)
    gen_consumer(e)
    gen_loader(e)
    gen_p2(e)
    e("L_END:\ns_endpgm\nL_CODE_END:")
    txt += e.text()
    txt += f""".section .rodata,"a"
.p2align 6
.amdhsa_kernel {NAME}
  .amdhsa_next_free_vgpr 256
  .amdhsa_next_free_sgpr 102
  .amdhsa_accum_offset 256
  .amdhsa_group_segment_fixed_size 0
  .amdhsa_kernarg_size 144
  .amdhsa_user_sgpr_count 2
  .amdhsa_user_sgpr_kernarg_segment_ptr 1
  .amdhsa_system_sgpr_workgroup_id_x 1
.end_amdhsa_kernel
"""
    open(path, "w").write(txt)
    print("pads:", e.npad, "lines:", len(e.out))

if __name__ == "__main__":
    opt.check_g = True
    opt.nowait = 0
    opt.nodma = 0
    opt.itstamps = 0
    opt.l2pf = 0
    opt.probe = 0
    opt.gw2 = 0
    opt.thr = 0
    opt.fswn = 5
    opt.osc = 0
    opt.nosc1 = 0
    opt.nw = 5
    opt.na = 3
    opt.fsw = 2
    opt.gall = 0
    opt.udelay = 0
    opt.dbgtime = 0
    opt.sorder = 1
    opt.sshelp = 1
    opt.ststamps = 0
    opt.rot = 0
    opt.sprio = 0
    opt.eprio = 3
    opt.wearly = 0
    opt.ldslate = 0
    opt.prio = 1
    opt.cpf = 1
    opt.wdelay = 0
    opt.noprep = 0
    opt.nost = 0
    opt.map2 = 1
    opt.gw = 0
    opt.gloop = 1
    opt.ssleep = 8
    opt.l2pf2 = 0
    for a in sys.argv[2:]:
        k, v = a.split("=")
        setattr(opt, k, int(v))
    if opt.nw != 5 or opt.na != 3: set_nw(opt.nw, opt.na)
    generate(sys.argv[1])
```

```python
import sys
from emit import Emitter

NAME = "gated_mix__ssm_conv_s5__dense_activation_squared_relu__prompt_kernel"

ACT_OFF   = 0
WF_OFF    = 0xC00000
G_OFF     = 0x1000000
AG_OFF    = 0x1010000
WFLAG_OFF = 0x1040000
TFLAG_OFF = 0x1050000
STAMP_OFF = 0x1100000
SLOT = 40960
LDS_PREP = 122880
LDS_TAB  = 143360
LDS_LX   = LDS_TAB + 8448
LDS_FLAG = LDS_LX + 768
LDS_DUMMY = LDS_FLAG + 64
LDS_F    = 0
LDS_Y    = 81920
LDS_SIZE = 163840

SX, SWA, SWB, SWS, STA, STB, SOUT = 4, 8, 12, 16, 20, 24, 28
P_AX, P_LRE, P_LIM, P_BRE, P_BIM, P_CRE, P_CIM, P_LDT, P_DSK, P_BX, P_W1, P_B1, P_W2, P_B2, P_GW, P_OUT, P_DBG, P_WS = [36 + 2 * i for i in range(18)]
sWAVE, sRB, sCOL, sJ, sRB2, sCB, sNONCE, sISU = 72, 73, 74, 75, 76, 77, 78, 79
SG, sGo, sGinc = 28, 83, 85

class Opt:
    phase2 = True
    stamps = False
    spin_limit = 200000
opt = Opt()

def srd(e, s, ptr, size):
    e(f"s_mov_b32 s{s}, s{ptr}\ns_mov_b32 s{s+1}, s{ptr+1}\ns_mov_b32 s{s+2}, {size}\ns_mov_b32 s{s+3}, 0x20000")

def R(b, n=4):
    return f"v[{b}:{b+n-1}]"

_stamp_id = [0]
def stamp(e, idx, tmpv=14):
    if not opt.stamps: return
    e(f"""s_memrealtime s[100:101]
s_lshl_b32 s98, s2, 3
s_add_u32 s98, s98, s{sWAVE}
s_lshl_b32 s98, s98, 6
s_add_u32 s98, s98, {STAMP_OFF + 4*idx}
s_waitcnt lgkmcnt(0)
v_mov_b32 v{tmpv}, s100
v_mov_b32 v{tmpv+1}, 0
s_mov_b64 s[96:97], exec
s_mov_b64 exec, 1
buffer_store_dword v{tmpv}, v{tmpv+1}, s[{SWS}:{SWS+3}], s98 offen
s_mov_b64 exec, s[96:97]""")

def stamp_clk(e, idx, tmpv=14):
    if not opt.stamps: return
    e(f"""s_memtime s[100:101]
s_lshl_b32 s98, s2, 3
s_add_u32 s98, s98, s{sWAVE}
s_lshl_b32 s98, s98, 6
s_add_u32 s98, s98, {STAMP_OFF + 4*idx}
s_waitcnt lgkmcnt(0)
v_mov_b32 v{tmpv}, s100
v_mov_b32 v{tmpv+1}, 0
s_mov_b64 s[96:97], exec
s_mov_b64 exec, 1
buffer_store_dword v{tmpv}, v{tmpv+1}, s[{SWS}:{SWS+3}], s98 offen
s_mov_b64 exec, s[96:97]""")

class Cap:
    def __init__(self): self.l = []
    def __call__(self, s):
        for x in s.split("\n"):
            if x.strip(): self.l.append(x.strip())

def merge(e, main_groups, aux):
    n = len(main_groups); k = 0
    per = -(-len(aux) // n) if n else 0
    for g in main_groups:
        for x in g: e(x)
        for x in aux[k:k + per]: e(x)
        k += per
    for x in aux[k:]: e(x)

_dm = [0]
def dbgmax(e, idx, neg=False, tv=14):
    if not opt.dbgtime: return
    _dm[0] += 1; n = _dm[0]
    e(f"""s_and_b32 s100, s{sWAVE}, 3
s_cmp_eq_u32 s100, 0
s_cbranch_scc0 L_dm{n}
s_cmp_eq_u32 s2, 0
s_cselect_b32 s101, {4*idx}, {4*(idx+8)}
s_cbranch_scc1 L_dmg{n}
s_cmp_eq_u32 s2, 255
s_cbranch_scc0 L_dm{n}
L_dmg{n}:
v_mov_b32 v{tv+1}, s101
s_memrealtime s[100:101]
s_mov_b32 s96, s{P_DBG}
s_mov_b32 s97, s{P_DBG+1}
s_mov_b32 s98, 256
s_mov_b32 s99, 0x20000
s_waitcnt lgkmcnt(0)
v_mov_b32 v{tv}, s100
s_mov_b64 exec, 1
buffer_store_dword v{tv}, v{tv+1}, s[96:99], 0 offen
s_mov_b64 exec, -1
L_dm{n}:""")

def interleave(e, A, B, lead=1):
    bi = 0
    for i, a in enumerate(A):
        e(a)
        if i >= lead - 1 and bi < len(B):
            e(B[bi]); bi += 1
    while bi < len(B):
        e(B[bi]); bi += 1

def spin_nonce(e, tag, vtmp):
    srd(e, STA, P_DBG, 256)
    e(f"""v_mov_b32 v{vtmp+1}, 0
s_mov_b32 s80, 0
L_nonce_{tag}:
buffer_load_dword v{vtmp}, v{vtmp+1}, s[{STA}:{STA+3}], 0 offen sc1
s_add_u32 s80, s80, 1
s_waitcnt vmcnt(0)
v_readfirstlane_b32 s{sNONCE}, v{vtmp}
s_cmp_ge_u32 s80, {opt.spin_limit}
s_cbranch_scc1 L_nonce_done_{tag}
s_cmp_eq_u32 s{sNONCE}, 0
s_cbranch_scc0 L_nonce_done_{tag}
s_sleep 1
s_branch L_nonce_{tag}
L_nonce_done_{tag}:""")

def poll_flags(e, tag, vaddr, vtmp, soff_sgpr, nlanes_mask_lo, mask_hi=0, sleep=1):
    e(f"""s_mov_b32 s80, 0
s_mov_b32 s82, {nlanes_mask_lo}
s_mov_b32 s83, {mask_hi}
L_poll_{tag}:
buffer_load_dword v{vtmp}, v{vaddr}, s[{SWS}:{SWS+3}], s{soff_sgpr} offen sc1
s_add_u32 s80, s80, 1
s_waitcnt vmcnt(0)
v_cmp_ne_u32 vcc, s{sNONCE}, v{vtmp}
s_cmp_ge_u32 s80, {opt.spin_limit}
s_cbranch_scc1 L_poll_done_{tag}
s_and_b64 vcc, vcc, s[82:83]
s_cbranch_scc0 L_poll_done_{tag}
s_sleep {sleep}
s_branch L_poll_{tag}
L_poll_done_{tag}:""")

def gen_entry(e):
    if opt.map2 == 1:
        MAP2 = f"""s_lshr_b32 s82, s80, 1
s_lshl_b32 s82, s82, 3
s_lshr_b32 s83, s81, 2
s_add_u32 s{sRB2}, s82, s83
s_and_b32 s82, s80, 1
s_lshl_b32 s82, s82, 2
s_and_b32 s83, s81, 3
s_add_u32 s{sCB}, s82, s83"""
    else:
        MAP2 = f"""s_lshl_b32 s82, s80, 2
s_and_b32 s83, s81, 3
s_add_u32 s{sRB2}, s82, s83
s_lshr_b32 s{sCB}, s81, 2"""
    e(f"""s_cmp_ge_u32 s2, 256
s_cbranch_scc1 L_END
s_load_dwordx16 s[36:51], s[0:1], 0
s_load_dwordx16 s[52:67], s[0:1], 64
s_load_dwordx4 s[68:71], s[0:1], 128
v_lshrrev_b32 v1, 6, v0
v_and_b32 v0, 63, v0
v_readfirstlane_b32 s{sWAVE}, v1
s_and_b32 s80, s2, 7
s_lshr_b32 s81, s2, 3
s_and_b32 s82, s80, 1
s_lshl_b32 s82, s82, 3
s_and_b32 s83, s81, 7
s_add_u32 s{sRB}, s82, s83
s_lshr_b32 s82, s80, 1
s_lshl_b32 s82, s82, 2
s_lshr_b32 s83, s81, 3
s_add_u32 s{sCOL}, s82, s83
{MAP2}
s_sub_u32 s82, s{sCOL}, 9
s_cmp_ge_u32 s{sCOL}, 9
s_cselect_b32 s{sISU}, 1, 0
s_cselect_b32 s{sJ}, s82, s{sCOL}
s_waitcnt lgkmcnt(0)""")
    srd(e, SWS, P_WS, 0x10000000)
    srd(e, SX, P_AX, 2621440)
    stamp(e, 12, 14)
    e(f"""s_cmp_eq_u32 s2, 0
s_cbranch_scc0 L_no_nonce
s_cmp_eq_u32 s{sWAVE}, 4
s_cbranch_scc0 L_no_nonce
s_memrealtime s[80:81]""")
    srd(e, STA, P_DBG, 256)
    e(f"""s_waitcnt lgkmcnt(0)
s_or_b32 s80, s80, 1
v_mov_b32 v2, s80
v_mov_b32 v3, 0
s_mov_b64 exec, 1
buffer_store_dword v2, v3, s[{STA}:{STA+3}], 0 offen sc0 sc1
s_mov_b64 exec, -1
L_no_nonce:
s_cmp_ge_u32 s{sWAVE}, 4
s_cbranch_scc1 L_LOADER""")

def cmul(e, d, a, b, t):
    e(f"""v_mul_f32 v{d}, v{a}, v{b}
v_mul_f32 v{d+1}, v{a}, v{b+1}
v_fma_f32 v{d}, -v{a+1}, v{b+1}, v{d}
v_fma_f32 v{d+1}, v{a+1}, v{b}, v{d+1}""")

def csq(e, d, a):
    cmul(e, d, a, a, None)

def cfma(e, d, a, b, c):
    e(f"""v_fma_f32 v{d}, v{a}, v{b}, v{c}
v_fma_f32 v{d+1}, v{a}, v{b+1}, v{c+1}
v_fma_f32 v{d}, -v{a+1}, v{b+1}, v{d}
v_fma_f32 v{d+1}, v{a+1}, v{b}, v{d+1}""")

def gen_loader(e):
    e("L_LOADER:")
    vXo = 2; vWo = 4
    sXo = 86
    sWo = 90
    sLX, sLW, sWinc = 32, 33, 34
    def issue_x(s):
        slot = (s % 3) * SLOT
        for m in range(4):
            e(f"s_add_u32 m0, s{sLX}, {slot + m*1024}")
            e(f"buffer_load_dwordx4 v{vXo}, s[{SX}:{SX+3}], s{sXo+m} offen lds")
            e(f"s_add_u32 s{sXo+m}, s{sXo+m}, 128")
    def issue_w(s):
        slot = (s % 3) * SLOT
        for m in range(6):
            S = SWB if (m >> 1) == 1 else SWA
            e(f"s_add_u32 m0, s{sLW}, {slot + m*1024}")
            e(f"buffer_load_dwordx4 v{vWo+m}, s[{S}:{S+3}], s{sWo+m} offen lds")
            e(f"s_add_u32 s{sWo+m}, s{sWo+m}, s{sWinc}")
    def issue(s):
        issue_x(s); issue_w(s)
    e(f"""s_sub_u32 s84, s{sWAVE}, 4
v_lshrrev_b32 v10, 3, v0
v_and_b32 v11, 7, v0
v_xor_b32 v11, v11, v10
v_lshlrev_b32 v11, 4, v11
s_lshl_b32 s{sLX}, s84, 12
s_mul_i32 s{sLW}, s84, 6144
s_add_u32 s{sLW}, s{sLW}, 16384
s_lshl_b32 s85, s{sRB}, 7""")
    e(f"""s_mul_i32 s80, s{sJ}, 96
s_lshl_b32 s81, s84, 5
s_add_u32 s80, s80, s81
v_and_b32 v12, 31, v0
v_add_u32 v12, s80, v12
v_min_u32 v12, 639, v12
v_lshlrev_b32 v12, 1, v12""")
    srd(e, STA, P_LRE, 1280)
    e(f"buffer_load_ushort v20, v12, s[{STA}:{STA+3}], 0 offen")
    srd(e, STB, P_LIM, 1280)
    e(f"buffer_load_ushort v21, v12, s[{STB}:{STB+3}], 0 offen")
    srd(e, STA, P_LDT, 1280)
    e(f"buffer_load_ushort v22, v12, s[{STA}:{STA+3}], 0 offen")
    e(f"""s_cmp_eq_u32 s{sISU}, 1
s_cbranch_scc1 L_LD_U""")
    e(f"""v_mul_u32_u24 v{vXo}, 1280, v10
v_add_u32 v{vXo}, v{vXo}, v11
s_lshl_b32 s80, s84, 5
s_add_u32 s80, s80, s85""")
    for m in range(4):
        e(f"s_add_u32 s81, s80, {16*(m&1) + 8*(m>>1)}\ns_mul_i32 s{sXo+m}, s81, 1280")
    issue_x(0)
    srd(e, SWA, P_W1, 2211840)
    srd(e, SWB, P_W1, 2211840)
    e(f"""s_mul_i32 s80, s84, {16*3456}
s_mul_i32 s81, s{sJ}, 384
s_add_u32 s80, s80, s81""")
    for m in range(6):
        e(f"s_mov_b32 s{sWo+m}, s80")
    e(f"s_mov_b32 s{sWinc}, {64*3456}")
    for m in range(6):
        e(f"""v_add_u32 v12, {64*m}, v0
v_mul_u32_u24 v13, 2731, v12
v_lshrrev_b32 v13, 16, v13
v_mul_u32_u24 v14, 24, v13
v_sub_u32 v14, v12, v14
v_bfe_u32 v15, v13, 1, 1
v_lshlrev_b32 v15, 1, v15
v_bfe_u32 v16, v13, 3, 1
v_lshlrev_b32 v16, 2, v16
v_or_b32 v15, v15, v16
v_xor_b32 v14, v14, v15
v_lshlrev_b32 v14, 4, v14
v_mul_u32_u24 v13, 3456, v13
v_add_u32 v{vWo+m}, v13, v14""")
    e("s_branch L_LD_GO")
    e("L_LD_U:")
    e(f"""v_lshrrev_b32 v12, 5, v0
v_lshlrev_b32 v12, 4, v12
v_bfe_u32 v13, v0, 3, 1
v_lshlrev_b32 v13, 3, v13
v_add_u32 v12, v12, v13
v_bfe_u32 v13, v0, 4, 1
v_add_u32 v12, v12, v13
v_mul_u32_u24 v{vXo}, 1280, v12
v_add_u32 v{vXo}, v{vXo}, v11
s_lshr_b32 s80, s84, 1
s_lshl_b32 s80, s80, 6
s_and_b32 s81, s84, 1
s_lshl_b32 s82, s81, 2
s_add_u32 s80, s80, s82
s_add_u32 s80, s80, s85""")
    for m in range(4):
        e(f"s_add_u32 s82, s80, {32*(m&1) + 2*(m>>1)}\ns_mul_i32 s{sXo+m}, s82, 1280")
    issue_x(0)
    e(f"""v_mul_u32_u24 v12, 1280, v10
v_add_u32 v12, v12, v11""")
    for m in range(6):
        e(f"v_mov_b32 v{vWo+m}, v12")
    e(f"""s_mul_i32 s80, s{sJ}, 96
s_lshr_b32 s82, s84, 1
s_mul_i32 s82, s82, 48
s_add_u32 s80, s80, s82
s_mul_i32 s83, s81, 3""")
    for m in range(6):
        e(f"""s_add_u32 s82, s83, {m>>1}
s_lshr_b32 s82, s82, 1
s_lshl_b32 s82, s82, 4
s_add_u32 s82, s82, s80
s_add_u32 s82, s82, {8*(m&1)}
s_min_u32 s82, s82, 632
s_mul_i32 s{sWo+m}, s82, 1280""")
    e(f"s_mov_b32 s{sWinc}, 128")
    e(f"""s_cmp_eq_u32 s81, 0
s_cselect_b32 s{SWA}, s{P_BRE}, s{P_BIM}
s_cselect_b32 s{SWA+1}, s{P_BRE+1}, s{P_BIM+1}
s_cselect_b32 s{SWB}, s{P_BIM}, s{P_BRE}
s_cselect_b32 s{SWB+1}, s{P_BIM+1}, s{P_BRE+1}
s_mov_b32 s{SWA+2}, 819200
s_mov_b32 s{SWA+3}, 0x20000
s_mov_b32 s{SWB+2}, 819200
s_mov_b32 s{SWB+3}, 0x20000""")
    e("L_LD_GO:")
    def groups(s_):
        slot = (s_ % 3) * SLOT
        G = []
        for m in range(4):
            G.append([f"s_add_u32 m0, s{sLX}, {slot + m*1024}",
                      f"buffer_load_dwordx4 v{vXo}, s[{SX}:{SX+3}], s{sXo+m} offen lds",
                      f"s_add_u32 s{sXo+m}, s{sXo+m}, 128"])
        for m in range(6):
            S = SWB if (m >> 1) == 1 else SWA
            G.append([f"s_add_u32 m0, s{sLW}, {slot + m*1024}",
                      f"buffer_load_dwordx4 v{vWo+m}, s[{S}:{S+3}], s{sWo+m} offen lds",
                      f"s_add_u32 s{sWo+m}, s{sWo+m}, s{sWinc}"])
        return G
    def gath():
        if opt.gall:
            e(f"buffer_load_dword v18, v17, s[{SWS}:{SWS+3}], 0 offen")
        else:
            e(f"buffer_load_dword v18, v17, s[{SG}:{SG+3}], s{sGo} offen\ns_add_u32 s{sGo}, s{sGo}, s{sGinc}")
    issue_w(0)
    if opt.gall: e("v_mov_b32 v17, 0x10000000")
    else: gen_gather_setup(e, 84, 'L', 3)
    issue(1)
    e("s_waitcnt vmcnt(10)\ns_barrier")
    issue(2); gath()
    e("s_waitcnt vmcnt(11)\ns_barrier")
    c = Cap(); gen_lambda_table(c, 0)
    merge(e, groups(3), c.l); gath()
    e("s_waitcnt vmcnt(12)\ns_barrier")
    e(f"""v_and_b32 v62, 31, v0
s_lshl_b32 s80, s84, 5
v_add_u32 v62, s80, v62
v_lshlrev_b32 v62, 3, v62
s_mov_b32 s81, {LDS_TAB}
s_cmp_eq_u32 s84, 3
s_cselect_b32 s80, {LDS_DUMMY - 768}, s81
v_add_u32 v62, s80, v62""")
    c = Cap(); gen_lambda_table(c, 1)
    merge(e, groups(4), c.l); gath()
    for it, (st_, g_) in enumerate(((5, 1), (6, 1), (7, 1), (8, 1))):
        e("s_waitcnt vmcnt(12)\ns_barrier")
        issue(st_)
        if g_: gath()
        if it == 1:
            srd(e, STA, P_DBG, 256)
            e(f"v_mov_b32 v12, 0\nbuffer_load_dword v99, v12, s[{STA}:{STA+3}], 0 offen")
    e("s_waitcnt vmcnt(12)\ns_barrier")
    e(f"""v_readfirstlane_b32 s{sNONCE}, v99
s_cmp_eq_u32 s{sNONCE}, 0
s_cbranch_scc0 L_LD_nonce_ok""")
    spin_nonce(e, 'L', 10)
    e("L_LD_nonce_ok:")
    e(f"""s_mul_i32 s85, s84, 14
s_cmp_eq_u32 s84, 3
s_cselect_b32 s80, 1, 0
s_sub_u32 s85, s85, s80
v_lshlrev_b32 v12, 2, v0
s_lshl_b32 s81, s{sCB}, 9
s_lshl_b32 s82, s85, 2
s_add_u32 s81, s81, s82
s_add_u32 s35, s81, {WFLAG_OFF}
s_mul_i32 s80, s84, 10
s_add_u32 s80, s80, {54 - 16}
s_sub_u32 s80, s80, s85
s_lshl_b32 s80, s80, 2
v_add_u32 v14, s80, v12
v_cmp_le_u32 vcc, 16, v0
v_cndmask_b32 v12, v12, v14, vcc
v_lshlrev_b32 v1, 4, v0
buffer_load_dword v13, v12, s[{SWS}:{SWS+3}], s35 offen sc1""")
    issue(9)
    e("s_waitcnt vmcnt(10)\ns_barrier")
    e(f"""s_mov_b32 s86, s84
s_mul_i32 s87, s86, 20480
s_mul_i32 s84, s{sCB}, 94
s_add_u32 s84, s84, s85
s_mul_i32 s84, s84, 5120
s_add_u32 s84, s84, {WF_OFF}
s_cmp_ge_u32 s86, 2
s_cselect_b32 s89, 13, 14""")
    rot_setup(e, 89, False)
    ld_w, ld_a, queue = gen_p2_stream(e, 'x', 14)
    e(f"""v_cmp_ne_u32 vcc, s{sNONCE}, v13
s_nop 1
s_and_b32 s80, vcc_lo, 0x03ff3fff
s_cbranch_scc1 L_LD_wlate""")
    if opt.gw2:
        w_gathers(e)
    if opt.gw2 != 2:
        ld_w(0); ld_w(1)
    e(f"s_waitcnt vmcnt({(0 if opt.gw2 == 2 else 10) + (3 if opt.gw2 else 0)})\ns_barrier")
    for s_ in range(0 if opt.gw2 == 2 else 2, NW): ld_w(s_)
    e("s_branch L_LD_wdone\nL_LD_wlate:\ns_waitcnt vmcnt(0)\ns_barrier")
    poll_flags(e, 'FW', 12, 13, 35, 0x03ff3fff)
    for s_ in range(NW): ld_w(s_)
    e("L_LD_wdone:")
    stamp(e, 1, 14)
    gen_gate_loads(e, 86)
    lds_wait_ge(e, 'R', 24, 4, 10)
    if opt.wdelay or opt.udelay:
        if not opt.udelay: e(f"s_cmp_eq_u32 s{sISU}, 1\ns_cbranch_scc1 L_LD_nodelay")
        if not opt.wdelay: e(f"s_cmp_eq_u32 s{sISU}, 0\ns_cbranch_scc1 L_LD_nodelay")
        lds_wait_ge(e, 'W', 16, 4, 10)
        e("L_LD_nodelay:")
    stamp(e, 7, 14)
    w_lds(e, NLF, 87, throttle=('A' if opt.thr >= 0 else None))
    lds_count(e, 28, 10)
    if opt.sshelp:
        e(f"s_cmp_eq_u32 s{sISU}, 1\ns_cbranch_scc0 L_NOHELP")
        e(f"""s_mul_i32 s80, s86, 10
s_add_u32 s80, s80, {54 + NW}
s_mul_i32 s81, s{sCB}, 94
s_add_u32 s80, s80, s81
s_mul_i32 s80, s80, 5120
s_add_u32 s80, s80, {WF_OFF}
s_mul_i32 s81, s86, 15360
s_add_u32 s81, s81, {LDS_Y}""")
        for i in range(NLS):
            if opt.thr >= 0: e(f"s_waitcnt vmcnt({opt.thr})")
            for dt in range(5):
                e(f"""s_add_u32 m0, s81, {i*5120 + dt*1024}
buffer_load_dwordx4 v1, s[{SWS}:{SWS+3}], s80 offen sc1 lds
s_add_u32 s80, s80, 1024""")
        e("L_NOHELP:")
    stamp(e, 2, 14)

NLF, NLS = 4, 3
def w_prefetch(e, nsteps, NL, lds_base_sgpr, do_lds=True, rng=None):
    nsh = 8 if opt.map2 == 1 else 4
    per = -(-nsteps * 40 // nsh)
    if opt.gw: l2_prefetch(e, 84, nsteps * 40, nsh, f"s{sRB2}", nsh - 1, -(-per // 64))
    ld_w, ld_a, queue = gen_p2_stream(e, 'x', nsteps)
    for s_ in (range(NW) if rng is None else rng): ld_w(s_)
    if do_lds: w_lds(e, NL, lds_base_sgpr)

def w_gathers(e):
    nsh = 8 if opt.map2 == 1 else 4
    l2_prefetch(e, 84, 14 * 40, nsh, f"s{sRB2}", nsh - 1, 2 if nsh == 8 else 2)
    e(f"""s_mul_i32 s88, s86, 10
s_add_u32 s88, s88, 54
s_mul_i32 s81, s{sCB}, 94
s_add_u32 s88, s88, s81
s_mul_i32 s88, s88, 5120
s_add_u32 s88, s88, {WF_OFF}""")
    l2_prefetch(e, 88, 10 * 40, nsh, f"s{sRB2}", nsh - 1, 1)

def w_lds(e, NL, lds_base_sgpr, queue=None, throttle=None):
    for i in range(NL):
        if throttle is not None:
            e(f"s_cmp_eq_u32 s{sISU}, 1\ns_cbranch_scc0 L_thr_{throttle}{i}\ns_waitcnt vmcnt({opt.thr})\nL_thr_{throttle}{i}:")
        for dt in range(5):
            e(f"""s_add_u32 m0, s{lds_base_sgpr}, {i*5120 + dt*1024}
buffer_load_dwordx4 v1, s[{SWS}:{SWS+3}], s84 offen sc1 lds
s_add_u32 s84, s84, 1024""")
            if queue is not None: queue.append(('l', NW + i))
        wrap_w(e)

def ffn_w_prefetch(e):
    e(f"""s_mov_b32 s86, s84
s_mul_i32 s87, s86, 20480
s_mul_i32 s84, s{sCB}, 94
s_add_u32 s84, s84, s85
s_mul_i32 s84, s84, 5120
s_add_u32 s84, s84, {WF_OFF}
s_cmp_ge_u32 s86, 2
s_cselect_b32 s89, 13, 14""")
    rot_setup(e, 89, False)
    w_prefetch(e, 14, NLF, 87, do_lds=not opt.ldslate)
    if opt.sshelp:
        e(f"""s_cmp_eq_u32 s{sISU}, 1
s_cbranch_scc0 L_NOHELP
s_mul_i32 s80, s86, 10
s_add_u32 s80, s80, 54
s_lshl_b32 s80, s80, 2
s_lshl_b32 s81, s{sCB}, 9
s_add_u32 s80, s80, s81
s_add_u32 s88, s80, {WFLAG_OFF}
v_lshlrev_b32 v12, 2, v0""")
        poll_flags(e, 'HW', 12, 13, 88, 0x3ff)
        e(f"""s_mul_i32 s80, s86, 10
s_add_u32 s80, s80, {54 + NW}
s_mul_i32 s81, s{sCB}, 94
s_add_u32 s80, s80, s81
s_mul_i32 s80, s80, 5120
s_add_u32 s80, s80, {WF_OFF}
s_mul_i32 s81, s86, 15360
s_add_u32 s81, s81, {LDS_Y}""")
        for i in range(NLS):
            for dt in range(5):
                e(f"""s_add_u32 m0, s81, {i*5120 + dt*1024}
buffer_load_dwordx4 v1, s[{SWS}:{SWS+3}], s80 offen sc1 lds
s_add_u32 s80, s80, 1024""")
        e("L_NOHELP:")

def l2_prefetch(e, sbase, nlines, nshare, share_sgpr, share_mask, ninstr, vtmp=12, vdst=15):
    per = -(-nlines // nshare)
    e(f"""s_and_b32 s80, {share_sgpr}, {share_mask}
s_mul_i32 s80, s80, {per*128}
s_add_u32 s80, s80, s{sbase}
v_lshlrev_b32 v{vtmp}, 7, v0""")
    for i in range(ninstr):
        if i * 64 < per and per - i * 64 < 64:
            e(f"v_min_u32 v{vtmp}, {(per - i*64 - 1)*128}, v{vtmp}")
        e(f"buffer_load_dword v{vdst}, v{vtmp}, s[{SWS}:{SWS+3}], s80 offen sc1")
        if i * 64 + 64 < per: e(f"s_add_u32 s80, s80, 8192")

def gen_gather_setup(e, W=84, T='', start=1):
    e(f"""s_lshr_b32 s80, s2, 3
s_and_b32 s81, s80, 7
s_lshr_b32 s80, s80, 3
v_mov_b32 v17, 0x10000000
s_mov_b32 s{sGo}, {128*start}
s_mov_b32 s{sGinc}, 128
s_mov_b32 s{SG}, s{SX}
s_mov_b32 s{SG+1}, s{SX+1}
s_mov_b32 s{SG+2}, 2621440
s_mov_b32 s{SG+3}, 0x20000
s_cmp_eq_u32 s{W}, 0
s_cbranch_scc0 L_GS_1{T}
s_lshl_b32 s80, s80, 5
s_lshl_b32 s82, s{sRB}, 7
s_add_u32 s80, s80, s82
v_add_u32 v16, s80, v0
v_mul_u32_u24 v16, 1280, v16
v_cmp_gt_u32 vcc, 32, v0
v_cndmask_b32 v17, v17, v16, vcc
s_branch L_GS_done{T}
L_GS_1{T}:
s_cmp_ge_u32 s{W}, 3
s_cbranch_scc1 L_GS_done{T}
s_cmp_eq_u32 s{sISU}, 1
s_cbranch_scc1 L_GS_U{T}
s_cmp_eq_u32 s{W}, 1
s_cbranch_scc0 L_GS_done{T}
s_mov_b32 s{SG}, s{P_W1}
s_mov_b32 s{SG+1}, s{P_W1+1}
s_mov_b32 s{SG+2}, 2211840
s_mul_i32 s{sGo}, s{sJ}, 384
s_add_u32 s{sGo}, s{sGo}, {64*3456*start}
s_mov_b32 s{sGinc}, {64*3456}
v_mul_u32_u24 v16, 43, v0
v_lshrrev_b32 v16, 7, v16
v_mul_u32_u24 v15, 3, v16
v_sub_u32 v15, v0, v15
s_lshl_b32 s81, s81, 3
v_add_u32 v16, s81, v16
v_mul_u32_u24 v16, 3456, v16
v_lshlrev_b32 v15, 7, v15
v_add_u32 v16, v16, v15
v_cmp_gt_u32 vcc, 24, v0
v_cndmask_b32 v17, v17, v16, vcc
s_branch L_GS_done{T}
L_GS_U{T}:
s_cmp_eq_u32 s{W}, 1
s_cselect_b32 s{SG}, s{P_BRE}, s{P_BIM}
s_cselect_b32 s{SG+1}, s{P_BRE+1}, s{P_BIM+1}
s_mov_b32 s{SG+2}, 819200
s_mul_i32 s80, s{sJ}, 96
s_mul_i32 s81, s81, 12
s_add_u32 s80, s80, s81
v_add_u32 v16, s80, v0
v_min_u32 v16, 639, v16
v_mul_u32_u24 v16, 1280, v16
v_cmp_gt_u32 vcc, 12, v0
v_cndmask_b32 v17, v17, v16, vcc
L_GS_done{T}:""")
    if not opt.gloop: e("v_mov_b32 v17, 0x10000000")

def gen_unit_ids(e, W):
    e(f"""s_cmp_ge_u32 s2, 108
s_cbranch_scc1 L_UID_C
s_lshr_b32 s3, s2, 1
s_and_b32 s35, s2, 1
s_lshl_b32 s35, s35, 2
s_add_u32 s35, s35, s{W}
s_branch L_UID_done
L_UID_C:
s_sub_u32 s80, s2, 108
s_and_b32 s35, s80, 7
s_lshr_b32 s80, s80, 3
s_lshl_b32 s3, s80, 2
s_add_u32 s3, s3, s{W}
s_add_u32 s3, s3, 54
L_UID_done:""")

def gen_prep_gather(e, W=84):
    e(f"""s_cmp_ge_u32 s3, 54
s_cbranch_scc1 L_PG_C""")
    srd(e, STA, P_W2, 2211840)
    e(f"""v_mul_u32_u24 v10, 52, v0
v_lshrrev_b32 v10, 8, v10
v_mul_u32_u24 v11, 5, v10
v_sub_u32 v11, v0, v11
s_lshl_b32 s80, s{W}, 3
v_add_u32 v10, s80, v10
v_mul_u32_u24 v10, 1280, v10
v_lshlrev_b32 v11, 7, v11
v_add_u32 v10, v10, v11
v_mov_b32 v11, 0x10000000
v_cmp_gt_u32 vcc, 40, v0
v_cndmask_b32 v10, v11, v10, vcc
s_mul_i32 s80, s3, {32*1280}
s_and_b32 s81, s2, 1
s_mul_i32 s81, s81, 640
s_add_u32 s80, s80, s81
buffer_load_dword v18, v10, s[{STA}:{STA+3}], s80 offen
buffer_load_dword v18, v11, s[{STA}:{STA+3}], s80 offen
s_branch L_PG_done
L_PG_C:""")
    srd(e, STA, P_CRE, 819200)
    srd(e, STB, P_CIM, 819200)
    e(f"""s_mul_i32 s81, s35, 80
s_mul_i32 s80, s{W}, 20
s_add_u32 s81, s81, s80
v_add_u32 v10, s81, v0
v_mul_u32_u24 v10, 1280, v10
v_mov_b32 v11, 0x10000000
v_cmp_gt_u32 vcc, 20, v0
v_cndmask_b32 v10, v11, v10, vcc
s_sub_u32 s80, s3, 54
s_lshr_b32 s80, s80, 2
s_min_u32 s80, s80, 9
s_lshl_b32 s80, s80, 7
buffer_load_dword v18, v10, s[{STA}:{STA+3}], s80 offen
buffer_load_dword v18, v10, s[{STB}:{STB+3}], s80 offen
L_PG_done:""")

def gen_lambda_table(e, part):
    L1, L2, L4, L8, L16, L32, L48, L64, L128, L256, L512, L1024, C2 = 30, 32, 34, 36, 38, 40, 42, 44, 46, 48, 50, 52, 54
    if part == 0:
        e(f"""v_lshlrev_b32 v20, 16, v20
v_lshlrev_b32 v21, 16, v21
v_lshlrev_b32 v22, 16, v22
v_mul_f32 v23, 0x3fb8aa3b, v22
v_exp_f32 v23, v23
s_nop 0
v_cvt_pk_bf16_f32 v23, v23, v23
v_and_b32 v23, 0xffff0000, v23
v_mul_f32 v24, v23, v20
v_mul_f32 v25, v23, v21
v_mul_f32 v24, 0x3fb8aa3b, v24
v_exp_f32 v24, v24
v_mul_f32 v25, 0.15915494, v25
v_fract_f32 v25, v25
v_sin_f32 v26, v25
v_cos_f32 v27, v25
s_nop 0
v_mul_f32 v31, v24, v26
v_mul_f32 v30, v24, v27""")
        csq(e, L2, L1); csq(e, L4, L2); csq(e, L8, L4); csq(e, L16, L8); csq(e, L32, L16)
        cmul(e, L48, L32, L16, None)
        csq(e, L64, L32); csq(e, L128, L64)
        return
    csq(e, L256, L128); csq(e, L512, L256); csq(e, L1024, L512)
    e(f"""v_add_f32 v56, -1.0, v30
v_mul_f32 v57, v20, v20
v_fma_f32 v57, v21, v21, v57
v_rcp_f32 v57, v57
v_mul_f32 v58, v56, v20
v_fma_f32 v58, v31, v21, v58
v_mul_f32 v59, v31, v20
v_fma_f32 v59, -v56, v21, v59
v_add_f32 v57, v57, v57
v_mul_f32 v{C2}, v58, v57
v_mul_f32 v{C2+1}, v59, v57
v_mov_b32 v60, 1.0
v_mov_b32 v61, 0""")
    ents = [L1, L8, 60, L16, L32, L48, L64, L128, L512, L1024, C2]
    for i, r in enumerate(ents):
        e(f"ds_write_b64 v62, v[{r}:{r+1}] offset:{i*768}")
    e("s_waitcnt lgkmcnt(0)")

ACC = 64
SETA, SETB = 160, 200
def acc_ffn(ft, tt): return ACC + (ft * 4 + tt) * 4
def acc_u(i, tp): return ACC + (i * 6 + tp) * 4

def reads(kind, st, ks):
    L = []
    vX = 2 + ks
    if kind == 'F':
        xs = [f"ds_read_b128 {R(st + 4*t)}, v{vX} offset:{t*2048}" for t in range(4)]
        ws = []
        for ft in range(6):
            for h in range(2):
                ws.append(f"ds_read_b64_tr_b16 v[{st+16+4*ft+2*h}:{st+16+4*ft+2*h+1}], v{4+ft} offset:{ks*12288 + h*1536}")
        L = ws[:2] + xs + ws[2:]
    else:
        vW = 4 + ks
        xs = [f"ds_read_b128 {R(st + 4*t)}, v{vX} offset:{t*2048}" for t in range(4)]
        ws = [f"ds_read_b128 {R(st + 16 + 4*t)}, v{vW} offset:{t*2048}" for t in range(6)]
        L = [ws[0]] + xs + ws[1:]
    return L

def mfmas(kind, st, first=False):
    L = []
    for n in range(6):
        for t in range(4):
            if kind == 'F':
                d = acc_ffn(n, t)
                c = R(16 + 20 + 4*n) if first else R(d)
                L.append(f"v_mfma_f32_16x16x32_bf16 {R(d)}, {R(st+16+4*n)}, {R(st+4*t)}, {c}")
            else:
                d = acc_u(t, n)
                c = "0" if first else R(d)
                L.append(f"v_mfma_f32_16x16x32_bf16 {R(d)}, {R(st+4*t)}, {R(st+16+4*n)}, {c}")
    return L

def gen_prep_issue(e, W=84, D=116):
    e(f"""s_cmp_ge_u32 s3, 54
s_cbranch_scc1 L_PREP_C""")
    srd(e, STA, P_W2, 2211840)
    e(f"""s_mul_i32 s80, s3, {32*1280}
s_mul_i32 s81, s35, 160
s_add_u32 s80, s80, s81
s_mul_i32 s81, s{W}, 5120
s_add_u32 s81, s81, {LDS_PREP}""")
    for n in range(5):
        e(f"""v_add_u32 v10, {64*n}, v0
v_mul_u32_u24 v11, 205, v10
v_lshrrev_b32 v11, 11, v11
v_mul_u32_u24 v12, 10, v11
v_sub_u32 v12, v10, v12
v_mul_u32_u24 v11, 1280, v11
v_lshlrev_b32 v12, 4, v12
v_add_u32 v11, v11, v12
s_add_u32 m0, s81, {n*1024}
buffer_load_dwordx4 v11, s[{STA}:{STA+3}], s80 offen lds""")
    e("v_mov_b32 v11, 0x10000000")
    for n in range(5):
        e(f"buffer_load_dword v{D}, v11, s[{STA}:{STA+3}], s80 offen")
    e("s_branch L_PREP_issued")
    e("L_PREP_C:")
    srd(e, STA, P_CRE, 819200)
    srd(e, STB, P_CIM, 819200)
    e(f"""v_and_b32 v10, 15, v0
v_mul_u32_u24 v10, 1280, v10
v_lshrrev_b32 v11, 4, v0
v_lshlrev_b32 v11, 3, v11
v_add_u32 v10, v10, v11
s_sub_u32 s80, s3, 54
s_min_u32 s80, s80, 39
s_lshl_b32 s80, s80, 5
s_mul_i32 s81, s35, {80*1280}
s_add_u32 s80, s80, s81""")
    for dt in range(5):
        e(f"buffer_load_dwordx2 v[{D+4*dt}:{D+1+4*dt}], v10, s[{STA}:{STA+3}], s80 offen")
        e(f"buffer_load_dwordx2 v[{D+2+4*dt}:{D+3+4*dt}], v10, s[{STB}:{STB+3}], s80 offen")
        if dt < 4: e(f"s_add_u32 s80, s80, {16*1280}")
    e("L_PREP_issued:")

def gen_prep_finish(e, W=84, D=116, T=''):
    e(f"""s_cmp_ge_u32 s3, 54
s_cbranch_scc1 L_PF_store{T}
v_lshrrev_b32 v10, 4, v0
v_lshlrev_b32 v10, 2, v10
v_bfe_u32 v11, v0, 2, 2
v_add_u32 v10, v10, v11
v_mul_u32_u24 v10, 160, v10
v_and_b32 v11, 3, v0
v_lshlrev_b32 v11, 3, v11
v_add_u32 v10, v10, v11
s_mul_i32 s81, s{W}, 5120
s_add_u32 s81, s81, {LDS_PREP}
v_add_u32 v10, s81, v10""")
    for dt in range(5):
        for h in range(2):
            e(f"ds_read_b64_tr_b16 v[{D+4*dt+2*h}:{D+1+4*dt+2*h}], v10 offset:{dt*32 + h*16*160}")
    e("s_waitcnt lgkmcnt(0)")
    e(f"L_PF_store{T}:")
    e(f"""s_mul_i32 s80, s35, 94
s_add_u32 s80, s80, s3
s_mul_i32 s80, s80, 5120
s_add_u32 s80, s80, {WF_OFF}
v_lshlrev_b32 v10, 4, v0
v_mov_b32 v11, 0x10000000
s_cmp_ge_u32 s3, 94
s_cselect_b32 s81, 1, 0
v_mov_b32 v12, s81
v_cmp_eq_u32 vcc, 1, v12
v_cndmask_b32 v10, v10, v11, vcc""")
    for dt in range(5):
        if dt < 4:
            e(f"buffer_store_dwordx4 {R(D+4*dt)}, v10, s[{SWS}:{SWS+3}], s80 offen offset:{dt*1024} sc1")
        else:
            e(f"s_add_u32 s80, s80, 4096")
            e(f"buffer_store_dwordx4 {R(D+4*dt)}, v10, s[{SWS}:{SWS+3}], s80 offen sc1")

def gen_prep_flag(e):
    e(f"""s_lshl_b32 s80, s35, 9
s_lshl_b32 s81, s3, 2
s_add_u32 s80, s80, s81
s_add_u32 s80, s80, {WFLAG_OFF}
v_mov_b32 v10, s{sNONCE}
s_cmp_ge_u32 s3, 94
s_cselect_b32 s81, 0x10000000, 0
v_mov_b32 v11, s81
s_mov_b64 exec, 1
buffer_store_dword v10, v11, s[{SWS}:{SWS+3}], s80 offen sc0 sc1
s_mov_b64 exec, -1""")

def interleave2(e, A, B, per):
    bi = 0
    for i, a in enumerate(A):
        e(a)
        for _ in range(per[i] if i < len(per) else 0):
            if bi < len(B): e(B[bi]); bi += 1
    while bi < len(B):
        e(B[bi]); bi += 1

def gen_main_loop(e, kind):
    tag = kind
    naddr = [2, 3] + ([4, 5, 6, 7, 8, 9] if kind == 'F' else [4, 5])
    sIT, sDELTA, sSLOT = 86, 87, 88
    def adv_list():
        L = [f"s_add_u32 s{sSLOT}, s{sSLOT}, 1", f"s_cmp_eq_u32 s{sSLOT}, 3",
             f"s_cselect_b32 s{sDELTA}, s90, s89", f"s_cselect_b32 s{sSLOT}, 0, s{sSLOT}"]
        L += [f"v_add_u32 v{v}, s{sDELTA}, v{v}" for v in naddr]
        return L
    e(f"s_mov_b32 s{sIT}, 1\ns_mov_b32 s{sSLOT}, 0\ns_mov_b32 s89, {SLOT}\ns_mov_b32 s90, {-2*SLOT & 0xffffffff}")
    if opt.itstamps:
        e(f"s_memtime s[100:101]\ns_waitcnt lgkmcnt(0)\nv_writelane_b32 v250, s100, 10")
    e("s_waitcnt lgkmcnt(0)\ns_barrier")
    if opt.itstamps:
        e(f"s_memtime s[100:101]\ns_waitcnt lgkmcnt(0)\nv_writelane_b32 v250, s100, 0")
    for r in reads(kind, SETA, 0): e(r)
    e("s_waitcnt lgkmcnt(0)")
    rb = reads(kind, SETB, 1)
    items = rb + adv_list()
    nr = len(rb)
    def perlist(nr, nextra):
        per = [1] * 24
        rem = 24 - nr
        per = [1] * nr + [0] * rem
        k = nextra; i = nr
        while k > 0:
            per[i] += 1; k -= 1; i += 1
            if i == 24: i = max(nr, 8)
        return per
    interleave2(e, mfmas(kind, SETA, first=True), items, perlist(nr, len(items) - nr))
    e("s_waitcnt lgkmcnt(0)")
    e(f"L_ML_{tag}:")
    e("s_barrier")
    if opt.itstamps:
        e(f"s_memtime s[100:101]\ns_waitcnt lgkmcnt(0)\ns_mov_b32 m0, s{sIT}\nv_writelane_b32 v250, s100, m0")
    ra = reads(kind, SETA, 0)
    interleave2(e, mfmas(kind, SETB), ra, [1] * 24)
    e(f"""s_cmp_eq_u32 s{sIT}, 1
s_cbranch_scc0 L_ML_h1_{tag}
buffer_load_dword v249, v248, s[{STA}:{STA+3}], 0 offen
L_ML_h1_{tag}:
s_cmp_eq_u32 s{sIT}, 4
s_cbranch_scc0 L_ML_h2_{tag}
s_waitcnt vmcnt(0)
v_readfirstlane_b32 s{sNONCE}, v249
s_cmp_eq_u32 s{sNONCE}, 0
s_cbranch_scc0 L_ML_h2b_{tag}""")
    spin_nonce(e, 'H' + tag, 10)
    e(f"L_ML_h2b_{tag}:")
    gen_prep_flag(e)
    e(f"L_ML_h2_{tag}:")
    e("s_waitcnt lgkmcnt(0)")
    items = rb + adv_list() + [f"s_add_u32 s{sIT}, s{sIT}, 1", f"s_cmp_lt_u32 s{sIT}, 10"]
    interleave2(e, mfmas(kind, SETA), items, perlist(nr, len(items) - nr))
    e(f"""s_waitcnt lgkmcnt(0)
s_cbranch_scc1 L_ML_{tag}""")
    lds_count(e, 24, 10)
    e(f"""s_mul_i32 s87, s{sWAVE}, 10
s_add_u32 s87, s87, 54
s_lshl_b32 s89, s{sCB}, 9
s_lshl_b32 s90, s87, 2
s_add_u32 s89, s89, s90
s_add_u32 s35, s89, {WFLAG_OFF}
v_lshlrev_b32 v8, 2, v0
buffer_load_dword v1, v8, s[{SWS}:{SWS+3}], s35 offen sc1""")
    for m in mfmas(kind, SETB): e(m)
    if opt.itstamps:
        e(f"""s_memtime s[100:101]
s_waitcnt lgkmcnt(0)
v_writelane_b32 v250, s100, 11
s_lshl_b32 s98, s2, 3
s_add_u32 s98, s98, s{sWAVE}
s_lshl_b32 s98, s98, 6
s_add_u32 s98, s98, {STAMP_OFF + 0x40000}
v_lshlrev_b32 v251, 2, v0
s_mov_b64 exec, 0xffff
buffer_store_dword v250, v251, s[{SWS}:{SWS+3}], s98 offen
s_mov_b64 exec, -1""")

def tile_flag(e, tag):
    nyoung = 0
    if opt.wearly:
        ssm_w_setup(e, tag)
        nyoung = SSM_W_OPS()
    e(f"""s_waitcnt vmcnt({nyoung})
s_lshr_b32 s80, s{sWAVE}, 1
s_lshl_b32 s81, s{sRB}, 1
s_add_u32 s80, s80, s81
s_lshl_b32 s80, s80, 8
s_lshl_b32 s81, s{sCOL}, 1
s_and_b32 s82, s{sWAVE}, 1
s_add_u32 s81, s81, s82
s_lshl_b32 s82, s81, 2
s_cmp_ge_u32 s81, 18
s_cselect_b32 s81, 56, 0
s_add_u32 s80, s80, s82
s_add_u32 s80, s80, s81
s_add_u32 s80, s80, {TFLAG_OFF}
v_mov_b32 v10, s{sNONCE}
v_mov_b32 v11, 0
s_mov_b64 exec, 1
buffer_store_dword v10, v11, s[{SWS}:{SWS+3}], s80 offen sc0 sc1
s_mov_b64 exec, -1""")
    if opt.eprio: e("s_setprio 0")

def SSM_W_OPS():
    nsh = 8 if opt.map2 == 1 else 4
    ng = (-(-(-(-10 * 40 // nsh)) // 64)) if opt.gw else 0
    return NW * 5 + NLS * 5 + ng

def ssm_w_setup(e, tag, order=True, defer_lds=False):
    e(f"""s_waitcnt vmcnt({12 if order else 0})
s_mul_i32 s87, s{sWAVE}, 10
s_add_u32 s87, s87, 54
v_cmp_ne_u32 vcc, s{sNONCE}, v1
v_lshlrev_b32 v1, 4, v0
v_lshlrev_b32 v8, 2, v0
s_and_b32 s80, vcc_lo, 0x3ff
s_cbranch_scc0 L_SSM_wok{tag}""")
    poll_flags(e, 'SW' + tag, 8, 10, 35, 0x3ff)
    e(f"""L_SSM_wok{tag}:
s_mul_i32 s84, s{sCB}, 94
s_add_u32 s84, s84, s87
s_mul_i32 s84, s84, 5120
s_add_u32 s84, s84, {WF_OFF}
s_mul_i32 s85, s{sRB2}, 94
s_add_u32 s85, s85, s87
s_lshl_b32 s85, s85, 12
s_mul_i32 s88, s{sWAVE}, 15360
s_add_u32 s88, s88, {LDS_Y}
v_add_u32 v3, s88, v1""")
    rot_setup(e, 10, True)
    rot_act(e)
    if opt.sorder and order:
        e(f"s_cmp_eq_u32 s{sISU}, 1\ns_cbranch_scc1 L_SSM_noord{tag}")
        lds_wait_ge(e, 'O' + tag, 28, 4, 10)
        e(f"L_SSM_noord{tag}:")
    if opt.sprio: e(f"s_setprio {opt.sprio}")
    if opt.sshelp:
        w_prefetch(e, 10, NLS, 88, do_lds=False, rng=(range(opt.fswn) if defer_lds else None))
        if not defer_lds:
            e(f"s_cmp_eq_u32 s{sISU}, 1\ns_cbranch_scc1 L_SSM_skiplds{tag}")
            w_lds(e, NLS, 88)
            e(f"s_branch L_SSM_ldsdone{tag}\nL_SSM_skiplds{tag}:\ns_add_u32 s84, s84, {NLS*5120}\nL_SSM_ldsdone{tag}:")
    else:
        w_prefetch(e, 10, NLS, 88)

def x_addr_setup(e):
    e(f"""s_lshr_b32 s80, s{sWAVE}, 1
s_lshl_b32 s80, s80, 13
v_and_b32 v10, 15, v0
v_lshlrev_b32 v10, 7, v10
v_lshrrev_b32 v11, 4, v0
v_and_b32 v12, 7, v0
v_xor_b32 v11, v11, v12
v_lshlrev_b32 v11, 4, v11
v_add_u32 v10, v10, v11
v_add_u32 v2, s80, v10
v_xor_b32 v3, 64, v2""")

def p1_l2_prefetch(e, kind):
    e(f"""s_lshr_b32 s81, s2, 3
s_lshr_b32 s82, s81, 3
s_lshl_b32 s82, s82, 5
s_lshl_b32 s83, s{sRB}, 7
s_add_u32 s82, s82, s83
v_and_b32 v10, 31, v0
v_add_u32 v10, s82, v10
v_mul_u32_u24 v10, 1280, v10
v_lshrrev_b32 v11, 5, v0
s_lshl_b32 s83, s{sWAVE}, 1
s_add_u32 s83, s83, 2
v_add_u32 v11, s83, v11
v_lshlrev_b32 v11, 7, v11
v_add_u32 v10, v10, v11
buffer_load_dword v247, v10, s[{SX}:{SX+3}], 0 offen
s_and_b32 s81, s81, 7""")
    if kind == 'F':
        srd(e, STA, P_W1, 2211840)
        e(f"""s_lshl_b32 s83, s{sWAVE}, 6
v_add_u32 v10, s83, v0
v_mul_u32_u24 v11, 2731, v10
v_lshrrev_b32 v11, 16, v11
v_mul_u32_u24 v12, 24, v11
v_sub_u32 v12, v10, v12
v_mul_u32_u24 v13, 43, v12
v_lshrrev_b32 v13, 7, v13
v_mul_u32_u24 v10, 3, v13
v_sub_u32 v12, v12, v10
v_lshlrev_b32 v11, 6, v11
v_add_u32 v11, v11, v13
s_lshl_b32 s83, s81, 3
s_add_u32 s83, s83, 128
v_add_u32 v11, s83, v11
v_mul_u32_u24 v11, 3456, v11
v_lshlrev_b32 v12, 7, v12
v_add_u32 v11, v11, v12
s_mul_i32 s83, s{sJ}, 384
buffer_load_dword v247, v11, s[{STA}:{STA+3}], s83 offen""")
    else:
        e(f"""s_cmp_ge_u32 s{sWAVE}, 2
s_cselect_b32 s{STA}, s{P_BIM}, s{P_BRE}
s_cselect_b32 s{STA+1}, s{P_BIM+1}, s{P_BRE+1}
s_mov_b32 s{STA+2}, 819200
s_mov_b32 s{STA+3}, 0x20000
s_and_b32 s83, s{sWAVE}, 1
s_lshl_b32 s83, s83, 6
v_add_u32 v10, s83, v0
v_min_u32 v10, 95, v10
v_mul_u32_u24 v11, 171, v10
v_lshrrev_b32 v11, 11, v11
v_mul_u32_u24 v12, 12, v11
v_sub_u32 v12, v10, v12
s_mul_i32 s83, s{sJ}, 96
s_mul_i32 s82, s81, 12
s_add_u32 s83, s83, s82
v_add_u32 v12, s83, v12
v_min_u32 v12, 639, v12
v_mul_u32_u24 v12, 1280, v12
v_add_u32 v11, 2, v11
v_lshlrev_b32 v11, 7, v11
v_add_u32 v12, v12, v11
buffer_load_dword v247, v12, s[{STA}:{STA+3}], 0 offen""")

def consumer_start_loads(e, nbefore):
    gen_gather_setup(e, sWAVE, 'C', 0)
    ng = 10 if opt.gall else 3
    for _ in range(ng):
        e(f"buffer_load_dword v18, v17, s[{SG}:{SG+3}], s{sGo} offen\ns_add_u32 s{sGo}, s{sGo}, s{sGinc}")
    gen_unit_ids(e, sWAVE)
    if opt.gall:
        gen_prep_gather(e, sWAVE)
    gen_prep_issue(e, sWAVE, 16)

def consumer_common_setup(e):
    srd(e, STA, P_DBG, 256)
    e("v_mov_b32 v248, 0")

def gen_consumer_ffn(e):
    e("L_CONS_F:")
    srd(e, STB, P_B1, 3456)
    e(f"""s_mul_i32 s80, s{sJ}, 384
s_and_b32 s81, s{sWAVE}, 1
s_mul_i32 s81, s81, 192
s_add_u32 s80, s80, s81
v_lshrrev_b32 v10, 4, v0
v_lshlrev_b32 v10, 3, v10""")
    for ft in range(6):
        e(f"buffer_load_dwordx2 v[{224+2*ft}:{225+2*ft}], v10, s[{STB}:{STB+3}], s80 offen offset:{32*ft}")

    x_addr_setup(e)
    e(f"""v_lshrrev_b32 v10, 4, v0
v_bfe_u32 v11, v0, 2, 2
v_lshlrev_b32 v12, 3, v10
v_add_u32 v12, v12, v11
v_mul_u32_u24 v12, 384, v12
v_bfe_u32 v13, v0, 3, 1
v_lshlrev_b32 v13, 1, v13
v_and_b32 v14, 1, v10
v_lshlrev_b32 v14, 2, v14
v_or_b32 v13, v13, v14
v_bfe_u32 v14, v0, 1, 1
s_and_b32 s81, s{sWAVE}, 1
s_mul_i32 s81, s81, 12
v_add_u32 v14, s81, v14
v_and_b32 v15, 1, v0
v_lshlrev_b32 v15, 3, v15
v_add_u32 v12, v12, v15
v_add_u32 v12, 16384, v12""")
    for ft in range(6):
        e(f"""v_add_u32 v10, {2*ft}, v14
v_xor_b32 v10, v10, v13
v_lshlrev_b32 v10, 4, v10
v_add_u32 v{4+ft}, v12, v10""")
    e("s_waitcnt vmcnt(0)")
    gen_prep_finish(e, sWAVE, 16, 'F')
    consumer_common_setup(e)
    for ft in range(6):
        b = 36 + 4 * ft
        e(f"""v_lshlrev_b32 v{b}, 16, v{224+2*ft}
v_and_b32 v{b+1}, 0xffff0000, v{224+2*ft}
v_lshlrev_b32 v{b+2}, 16, v{225+2*ft}
v_and_b32 v{b+3}, 0xffff0000, v{225+2*ft}""")
    stamp(e, 0, 14)
    stamp_clk(e, 14, 14)
    dbgmax(e, 2)
    gen_main_loop(e, 'F')
    dbgmax(e, 3)
    if opt.eprio: e(f"s_setprio {opt.eprio}")
    stamp(e, 1, 14)
    stamp_clk(e, 15, 14)
    e(f"""s_lshr_b32 s80, s{sWAVE}, 1
s_lshl_b32 s81, s{sRB}, 1
s_add_u32 s80, s80, s81
s_mul_i32 s80, s80, 94
s_mul_i32 s81, s{sJ}, 6
s_add_u32 s80, s80, s81
s_and_b32 s81, s{sWAVE}, 1
s_mul_i32 s81, s81, 3
s_add_u32 s80, s80, s81
s_lshl_b32 s32, s80, 12
v_lshlrev_b32 v10, 4, v0""")
    k = 0
    OB = 196 if opt.fsw else SETA
    pend = []
    for u in range(3):
        for tt in range(4):
            o = OB + 4 * k; k += 1
            vals = [acc_ffn(2*u, tt), acc_ffn(2*u+1, tt)]
            tmp = 16 + 8 * (k & 1)
            for h, a in enumerate(vals):
                for r in range(4):
                    e(f"v_max_f32 v{tmp+4*h+r}, 0, v{a+r}")
            for h, a in enumerate(vals):
                for r in range(0, 4, 2):
                    e(f"v_pk_mul_f32 v[{a+r}:{a+r+1}], v[{a+r}:{a+r+1}], v[{tmp+4*h+r}:{tmp+4*h+r+1}]")
            for h, a in enumerate(vals):
                for r in range(0, 4, 2):
                    e(f"v_cvt_pk_bf16_f32 v{o+2*h+(r>>1)}, v{a+r}, v{a+r+1}")
            st_ = f"buffer_store_dwordx4 {R(o)}, v10, s[{SWS}:{SWS+3}], s32 offen offset:{tt*1024} sc1"
            if opt.fsw: pend.append(st_)
            else: e(st_)
        if u < 2:
            if opt.fsw: pend.append("s_add_u32 s32, s32, 4096")
            else: e("s_add_u32 s32, s32, 4096")
    if opt.fsw:
        ssm_w_setup(e, 'F', order=False, defer_lds=(opt.fsw == 2))
        e("v_lshlrev_b32 v10, 4, v0")
        for x in pend: e(x)
    lds_count(e, 16, 12)
    stamp(e, 2, 14)
    tile_flag(e, 'F')
    dbgmax(e, 4)
    stamp(e, 3, 14)
    if opt.fsw == 2:
        w_prefetch(e, 10, NLS, 88, do_lds=False, rng=range(opt.fswn, NW))
        w_lds(e, NLS, 88)
    e("s_branch L_SSM_P2b" if opt.fsw else "s_branch L_SSM_P2")

def gen_code_prefetch(e):
    e(f"""s_cmp_eq_u32 s{sWAVE}, 3
s_cbranch_scc0 L_CPF_done
s_getpc_b64 s[80:81]
L_CPF_pc:
s_sub_u32 s80, s80, L_CPF_pc-{NAME}
s_subb_u32 s81, s81, 0
s_lshr_b32 s82, s2, 3
s_lshl_b32 s82, s82, 11
v_and_b32 v10, 15, v0
v_lshlrev_b32 v10, 7, v10
v_add_u32 v10, s82, v10
v_min_u32 v10, L_CODE_END-{NAME}-4, v10
s_mov_b64 exec, 0xffff
global_load_dword v19, v10, s[80:81]
s_mov_b64 exec, -1
L_CPF_done:""")

def gen_consumer(e):
    dbgmax(e, 1)
    e(f"""v_mov_b32 v10, {LDS_FLAG}
v_mov_b32 v12, 0
v_mov_b32 v13, 0
v_mov_b32 v14, 0
v_mov_b32 v15, 0
ds_write_b128 v10, v[12:15]
ds_write_b128 v10, v[12:15] offset:16""")
    if opt.cpf: gen_code_prefetch(e)
    consumer_start_loads(e, 0)
    e(f"""s_cmp_eq_u32 s{sISU}, 1
s_cbranch_scc1 L_CONS_U""")
    gen_consumer_ffn(e)
    gen_consumer_u(e)

def pk(op, d, a, b, c=None, bsel=None, neg=False):
    assert bsel == 0, "op_sel hi-broadcast is unsafe next to MFMA (measured)"
    n = 3 if c is not None else 2
    sel = [0, bsel] + ([0] if c is not None else [])
    selh = [1, bsel] + ([1] if c is not None else [])
    s = f"{op} v[{d}:{d+1}], v[{a}:{a+1}], v[{b}:{b+1}]" + (f", v[{c}:{c+1}]" if c is not None else "")
    s += " op_sel:[" + ",".join(map(str, sel)) + "] op_sel_hi:[" + ",".join(map(str, selh)) + "]"
    if neg:
        ng = [0, 1] + ([0] if c is not None else [])
        s += " neg_lo:[" + ",".join(map(str, ng)) + "] neg_hi:[" + ",".join(map(str, ng)) + "]"
    return s

def gen_consumer_u(e):
    e("L_CONS_U:")
    x_addr_setup(e)
    e(f"""s_and_b32 s81, s{sWAVE}, 1
s_mul_i32 s81, s81, {96*128}
s_add_u32 s81, s81, 16384
v_add_u32 v4, s81, v10
v_xor_b32 v5, 64, v4""")
    e("s_waitcnt vmcnt(0)")
    gen_prep_finish(e, sWAVE, 16, 'U')
    consumer_common_setup(e)
    dbgmax(e, 2)
    stamp(e, 0, 14)
    gen_main_loop(e, 'U')
    dbgmax(e, 3)
    if opt.eprio: e(f"s_setprio {opt.eprio}")
    stamp(e, 1, 14)
    def K(ct, i): return 160 + 18 * ct + 2 * i
    LAM, L8, L16, L16Q, L64, L128, L512, L1024, C2 = range(9)
    ent = {LAM: 0, L8: 1, L16: 3, L64: 6, L128: 7, L512: 8, L1024: 9, C2: 10}
    e(f"""s_and_b32 s81, s{sWAVE}, 1
s_mul_i32 s81, s81, {48*8}
s_add_u32 s81, s81, {LDS_TAB}
v_and_b32 v10, 15, v0
v_lshlrev_b32 v10, 3, v10
v_add_u32 v10, s81, v10
v_lshrrev_b32 v11, 4, v0
v_mul_u32_u24 v11, 768, v11
v_add_u32 v11, v11, v10""")
    for ct in range(3):
        for k, en in ent.items():
            e(f"ds_read_b64 v[{K(ct,k)}:{K(ct,k)+1}], v10 offset:{en*768 + ct*128}")
        e(f"ds_read_b64 v[{K(ct,L16Q)}:{K(ct,L16Q)+1}], v11 offset:{2*768 + ct*128}")
    e("s_waitcnt lgkmcnt(0)")
    LI = [2, 252, 254]
    C2I = [16, 18, 20]
    for ct in range(3):
        e(f"v_mov_b32 v{LI[ct]}, v{K(ct, LAM)+1}")
    def U(n, ct, part):
        return acc_u(n >> 1, 2 * ct + part) + 2 * (n & 1)
    def Er(ct, s): return 16 + 8 * ct + 4 * s
    def Ei(ct, s): return 18 + 8 * ct + 4 * s
    for n in range(1, 8):
        src = (n - 1) & 1; dst = n & 1
        for ct in range(3):
            pr = U(0, ct, 0) if n == 1 else Er(ct, src)
            pi = U(0, ct, 1) if n == 1 else Ei(ct, src)
            e(pk("v_pk_fma_f32", Er(ct, dst), pr, K(ct, LAM), U(n, ct, 0), 0))
            e(pk("v_pk_fma_f32", Ei(ct, dst), pi, K(ct, LAM), U(n, ct, 1), 0))
        for ct in range(3):
            pr = U(0, ct, 0) if n == 1 else Er(ct, src)
            pi = U(0, ct, 1) if n == 1 else Ei(ct, src)
            e(pk("v_pk_fma_f32", Er(ct, dst), pi, LI[ct], Er(ct, dst), 0, neg=True))
            e(pk("v_pk_fma_f32", Ei(ct, dst), pr, LI[ct], Ei(ct, dst), 0))
    def LL(ct): return 16 + 8 * ct
    for ct in range(3):
        er, ei, l8 = Er(ct, 1), Ei(ct, 1), K(ct, L8)
        e(f"""v_fma_f32 v{LL(ct)}, v{l8}, v{er}, v{er+1}
v_fma_f32 v{LL(ct)+1}, v{l8}, v{ei}, v{ei+1}
v_fma_f32 v{LL(ct)}, -v{l8+1}, v{ei}, v{LL(ct)}
v_fma_f32 v{LL(ct)+1}, v{l8+1}, v{er}, v{LL(ct)+1}""")
    def G(ct, q): return 214 + 8 * ct + 2 * q
    for ct in range(3):
        for c in range(2):
            a, b, a2, b2 = G(ct, 0) + c, G(ct, 1) + c, G(ct, 2) + c, G(ct, 3) + c
            e(f"""v_mov_b32 v{a}, v{LL(ct)+c}
v_mov_b32 v{b}, v{LL(ct)+c}
v_permlane16_swap_b32 v{a}, v{b}
v_mov_b32 v{a2}, v{a}
v_mov_b32 v{b2}, v{b}
v_permlane32_swap_b32 v{a}, v{a2}
v_permlane32_swap_b32 v{b}, v{b2}""")
    for ct in range(3):
        cfma(e, G(ct, 1), K(ct, L16), G(ct, 0), G(ct, 1))
    for ct in range(3):
        cfma(e, G(ct, 2), K(ct, L16), G(ct, 1), G(ct, 2))
    for ct in range(3):
        cfma(e, G(ct, 3), K(ct, L16), G(ct, 2), G(ct, 3))
    e(f"""s_mov_b32 s80, 0xffff0000
s_mov_b32 s81, 0
s_mov_b32 s82, 0
s_mov_b32 s83, 0x0000ffff
s_mov_b32 s90, 0
s_mov_b32 s91, 0xffff0000""")
    for ct in range(3):
        for c in range(2):
            e(f"""v_cndmask_b32 v{LL(ct)+c}, 0, v{G(ct,0)+c}, s[80:81]
v_cndmask_b32 v{LL(ct)+c}, v{LL(ct)+c}, v{G(ct,1)+c}, s[82:83]
v_cndmask_b32 v{LL(ct)+c}, v{LL(ct)+c}, v{G(ct,2)+c}, s[90:91]""")
    e(f"""s_and_b32 s84, s{sWAVE}, 1
s_mul_i32 s85, s84, {48*8}
s_add_u32 s85, s85, {LDS_LX}
v_and_b32 v10, 15, v0
v_lshlrev_b32 v10, 3, v10
v_add_u32 v10, s85, v10
s_lshl_b32 s85, s84, 2
s_add_u32 s85, s85, {LDS_FLAG}
v_mov_b32 v11, s85
s_cmp_ge_u32 s{sWAVE}, 2
s_cbranch_scc1 L_U_wt1""")
    for ct in range(3):
        e(f"ds_write_b64 v10, v[{G(ct,3)}:{G(ct,3)+1}] offset:{ct*128}")
    e(f"""v_mov_b32 v12, 1
s_waitcnt lgkmcnt(0)
ds_write_b32 v11, v12
s_branch L_U_lb
L_U_wt1:
s_mov_b32 s85, 0
L_U_pairwait:
ds_read_b32 v12, v11
s_add_u32 s85, s85, 1
s_waitcnt lgkmcnt(0)
v_readfirstlane_b32 s86, v12
s_cmp_ge_u32 s85, {opt.spin_limit}
s_cbranch_scc1 L_U_pairok
s_cmp_eq_u32 s86, 0
s_cbranch_scc1 L_U_pairwait
L_U_pairok:""")
    for ct in range(3):
        e(f"ds_read_b64 v[{G(ct,0)}:{G(ct,0)+1}], v10 offset:{ct*128}")
    e("s_waitcnt lgkmcnt(0)")
    for ct in range(3):
        cfma(e, G(ct, 1), K(ct, L64), G(ct, 0), G(ct, 3))
    e(f"""s_mov_b32 s80, 0xffff0000
s_mov_b32 s81, 0
s_mov_b32 s82, 0
s_mov_b32 s83, 0x0000ffff
v_cndmask_b32 v240, v{G(0,1)}, v{G(1,1)}, s[80:81]
v_cndmask_b32 v241, v{G(0,1)+1}, v{G(1,1)+1}, s[80:81]
v_cndmask_b32 v240, v240, v{G(2,1)}, s[82:83]
v_cndmask_b32 v241, v241, v{G(2,1)+1}, s[82:83]
v_mov_b32 v242, s{sNONCE}
v_mov_b32 v243, s{sNONCE}
s_mul_i32 s85, s{sJ}, 16
s_add_u32 s85, s85, s{sRB}
s_mul_i32 s85, s85, 96
s_mul_i32 s86, s84, 48
s_add_u32 s85, s85, s86
s_lshl_b32 s85, s85, 4
s_add_u32 s85, s85, {AG_OFF}
v_lshlrev_b32 v12, 4, v0
s_mov_b32 exec_lo, -1
s_mov_b32 exec_hi, 0x0000ffff
buffer_store_dwordx4 v[240:243], v12, s[{SWS}:{SWS+3}], s85 offen sc0 sc1
s_mov_b64 exec, -1
L_U_lb:""")
    if not opt.udelay: lds_count(e, 16, 12)
    stamp(e, 2, 14)
    LB = 112 + 0
    lbregs = [40 + 4 * i for i in range(6)] + [240 + 4 * i for i in range(4)] + [32 + 0, 36]
    lbregs = [40 + 4 * i for i in range(6)] + [240, 244, 248] + [216, 224, 232]
    e(f"""s_mul_i32 s85, s{sJ}, {16*96}
s_mul_i32 s86, s84, 48
s_add_u32 s85, s85, s86
s_lshl_b32 s85, s85, 4
s_add_u32 s85, s85, {AG_OFF}
v_lshrrev_b32 v12, 4, v0
v_lshlrev_b32 v12, 2, v12
v_sub_u32 v12, s{sRB}, v12
v_mov_b32 v9, 0x10000000
v_and_b32 v13, 15, v0""")
    for m in range(4):
        e(f"""v_subrev_u32 v14, {1+m}, v12
v_cmp_le_i32 s[{88+2*m}:{89+2*m}], 0, v14
v_mul_u32_u24 v15, 96, v14
v_add_u32 v15, v15, v13
v_lshlrev_b32 v15, 4, v15
v_cndmask_b32 v{4+m}, v9, v15, s[{88+2*m}:{89+2*m}]""")
    C2J = [8, 10, 238]
    for ct in range(3):
        e(f"v_mov_b32 v{C2J[ct]}, v{K(ct, C2)+1}")
    tk = 0
    for n in range(8):
        for ct in range(3):
            ur, ui = U(n, ct, 0), U(n, ct, 1)
            ta, tb = 40 + 4 * (tk % 6), 42 + 4 * (tk % 6); tk += 1
            e(pk("v_pk_mul_f32", ta, ur, K(ct, C2), None, 0))
            e(pk("v_pk_mul_f32", tb, ur, C2J[ct], None, 0))
            e(pk("v_pk_fma_f32", ur, ui, C2J[ct], ta, 0, neg=True))
            e(pk("v_pk_fma_f32", ui, ui, K(ct, C2), tb, 0))
    CR = list(range(38, 52)) + [54]
    for k in range(15):
        e(f"s_mov_b32 s{CR[k]}, s{sNONCE}")
    e(f"""s_add_u32 s87, s85, {47*16 + 8}
s_mov_b32 s86, 0
L_U_cp:""")
    for k in range(15):
        e(f"""s_cmp_gt_u32 s{sRB}, {k}
s_cbranch_scc0 L_U_cpl
s_load_dword s{CR[k]}, s[{P_WS}:{P_WS+1}], s87 offset:{k*1536} glc""")
    e(f"""L_U_cpl:
s_add_u32 s86, s86, 1
s_waitcnt lgkmcnt(0)
s_mov_b32 s81, 0""")
    for k in range(15):
        e(f"s_xor_b32 s82, s{CR[k]}, s{sNONCE}\ns_or_b32 s81, s81, s82")
    e(f"""s_cmp_ge_u32 s86, {opt.spin_limit}
s_cbranch_scc1 L_U_cpok
s_cmp_eq_u32 s81, 0
s_cbranch_scc1 L_U_cpok
s_sleep 1
s_branch L_U_cp
L_U_cpok:""")
    stamp(e, 11, 14)
    e(f"s_mov_b32 s86, 0\nL_U_lbloop:")
    for m in range(4):
        for ct in range(3):
            r = lbregs[m * 3 + ct]
            e(f"buffer_load_dwordx4 {R(r)}, v{4+m}, s[{SWS}:{SWS+3}], s85 offen offset:{ct*256} sc1")
    e("s_add_u32 s86, s86, 1\ns_mov_b64 s[96:97], 0\ns_waitcnt vmcnt(0)")
    for m in range(4):
        for ct in range(3):
            r = lbregs[m * 3 + ct]
            e(f"""v_cmp_ne_u32 vcc, s{sNONCE}, v{r+2}
s_and_b64 vcc, vcc, s[{88+2*m}:{89+2*m}]
s_or_b64 s[96:97], s[96:97], vcc""")
    e(f"""s_cmp_ge_u32 s86, {opt.spin_limit}
s_cbranch_scc1 L_U_lbok
s_cmp_eq_u64 s[96:97], 0
s_cbranch_scc0 L_U_lbloop
L_U_lbok:""")
    if opt.udelay: lds_count(e, 16, 12)
    def S(m, ct): return lbregs[m * 3 + ct]
    for ct in range(3):
        cfma(e, S(2, ct), K(ct, L128), S(3, ct), S(2, ct))
    for ct in range(3):
        cfma(e, S(1, ct), K(ct, L128), S(2, ct), S(1, ct))
    for ct in range(3):
        cfma(e, S(0, ct), K(ct, L128), S(1, ct), S(0, ct))
    for ct in range(3):
        z, b, t, u = S(0, ct), S(1, ct), S(2, ct), S(3, ct)
        e(f"""v_mov_b32 v{b}, v{z}
v_mov_b32 v{b+1}, v{z+1}
v_permlane16_swap_b32 v{z}, v{b}
v_permlane16_swap_b32 v{z+1}, v{b+1}""")
        cfma(e, t, K(ct, L512), b, z)
        e(f"""v_mov_b32 v{u}, v{t}
v_mov_b32 v{u+1}, v{t+1}
v_permlane32_swap_b32 v{t}, v{u}
v_permlane32_swap_b32 v{t+1}, v{u+1}""")
        cfma(e, z, K(ct, L1024), u, t)
    e(f"s_cmp_ge_u32 s{sWAVE}, 2\ns_cbranch_scc0 L_U_hw0")
    for ct in range(3):
        cfma(e, S(1, ct), K(ct, L64), S(0, ct), G(ct, 0))
    e("s_branch L_U_hw1\nL_U_hw0:")
    for ct in range(3):
        e(f"v_mov_b32 v{S(1,ct)}, v{S(0,ct)}\nv_mov_b32 v{S(1,ct)+1}, v{S(0,ct)+1}")
    e("L_U_hw1:\ns_nop 1")
    for ct in range(3):
        cfma(e, S(2, ct), K(ct, L16Q), S(1, ct), LL(ct))
    for ct in range(3):
        hl, l8, er, ei = S(2, ct), K(ct, L8), Er(ct, 1), Ei(ct, 1)
        cr, ci = S(3, ct), S(3, ct) + 2
        e(f"""v_mov_b32 v{cr}, v{hl}
v_mov_b32 v{ci}, v{hl+1}
v_fma_f32 v{cr+1}, v{l8}, v{hl}, v{er}
v_fma_f32 v{ci+1}, v{l8}, v{hl+1}, v{ei}
v_fma_f32 v{cr+1}, -v{l8+1}, v{hl+1}, v{cr+1}
v_fma_f32 v{ci+1}, v{l8+1}, v{hl}, v{ci+1}""")
    for ct in range(3):
        cr, ci = S(3, ct), S(3, ct) + 2
        ta, tb = S(1, ct), S(1, ct) + 2
        e(pk("v_pk_mul_f32", ta, cr, K(ct, C2), None, 0))
        e(pk("v_pk_mul_f32", tb, cr, C2J[ct], None, 0))
    for ct in range(3):
        cr, ci = S(3, ct), S(3, ct) + 2
        ta, tb = S(1, ct), S(1, ct) + 2
        e(pk("v_pk_fma_f32", cr, ci, C2J[ct], ta, 0, neg=True))
        e(pk("v_pk_fma_f32", ci, ci, K(ct, C2), tb, 0))
    for n in range(8):
        for ct in range(3):
            pr = S(3, ct) if n == 0 else U(n - 1, ct, 0)
            pi = S(3, ct) + 2 if n == 0 else U(n - 1, ct, 1)
            e(pk("v_pk_fma_f32", U(n, ct, 0), pr, K(ct, LAM), U(n, ct, 0), 0))
            e(pk("v_pk_fma_f32", U(n, ct, 1), pi, K(ct, LAM), U(n, ct, 1), 0))
        for ct in range(3):
            pr = S(3, ct) if n == 0 else U(n - 1, ct, 0)
            pi = S(3, ct) + 2 if n == 0 else U(n - 1, ct, 1)
            e(pk("v_pk_fma_f32", U(n, ct, 0), pi, LI[ct], U(n, ct, 0), 0, neg=True))
            e(pk("v_pk_fma_f32", U(n, ct, 1), pr, LI[ct], U(n, ct, 1), 0))
    stamp(e, 3, 14)
    e(f"""v_and_b32 v10, 15, v0
v_lshrrev_b32 v11, 4, v0
v_lshlrev_b32 v11, 3, v11
v_sub_u32 v10, v10, v11""")
    e("v_mov_b32 v14, 0x3f80")
    for b in range(2):
        e(f"""v_add_u32 v12, {16*b}, v10
v_and_b32 v13, 1, v12
v_lshlrev_b32 v13, 4, v13
v_lshlrev_b32 v13, v13, v14
v_lshrrev_b32 v12, 1, v12
v_cmp_eq_u32 s[86:87], 0, v12
v_cmp_eq_u32 s[88:89], 1, v12
v_cmp_eq_u32 s[90:91], 2, v12
v_cmp_eq_u32 s[92:93], 3, v12
v_cndmask_b32 v{40+4*b}, 0, v13, s[86:87]
v_cndmask_b32 v{41+4*b}, 0, v13, s[88:89]
v_cndmask_b32 v{42+4*b}, 0, v13, s[90:91]
v_cndmask_b32 v{43+4*b}, 0, v13, s[92:93]""")
    e(f"""s_lshr_b32 s80, s{sWAVE}, 1
s_lshl_b32 s81, s{sRB}, 1
s_add_u32 s80, s80, s81
s_mul_i32 s80, s80, 94
s_mul_i32 s81, s{sJ}, 6
s_mul_i32 s82, s84, 3
s_add_u32 s81, s81, s82
s_add_u32 s80, s80, s81
s_add_u32 s80, s80, 54
s_lshl_b32 s80, s80, 12
v_lshlrev_b32 v10, 4, v0""")
    for ct in range(3):
        c2 = K(ct, C2)
        for i in range(4):
            r0, r1, i0, i1 = U(2*i, ct, 0), U(2*i+1, ct, 0), U(2*i, ct, 1), U(2*i+1, ct, 1)
            e(f"""v_cvt_pk_bf16_f32 v{48+i}, v{r0}, v{r1}
v_cvt_pk_bf16_f32 v{52+i}, v{r0+1}, v{r1+1}
v_cvt_pk_bf16_f32 v{56+i}, -v{i0}, -v{i1}
v_cvt_pk_bf16_f32 v{60+i}, -v{i0+1}, -v{i1+1}""")
        def D(part, tt): return 224 + 16 * part + 4 * tt
        for part in range(2):
            for a in range(2):
                for b in range(2):
                    A = 48 + 8 * part + 4 * a
                    e(f"v_mfma_f32_16x16x32_bf16 {R(D(part, 2*b+a))}, {R(A)}, {R(40+4*b)}, 0")
        if True:
            e(f"s_add_u32 s82, s81, {ct}\ns_cmp_ge_u32 s82, 40\ns_cbranch_scc1 L_U_skip{ct}")
            for tt in range(4):
                o = acc_u(tt, 2 * ct)
                dr, di = D(0, tt), D(1, tt)
                e(f"""v_cvt_pk_bf16_f32 v{o}, v{dr}, v{dr+1}
v_cvt_pk_bf16_f32 v{o+1}, v{dr+2}, v{dr+3}
v_cvt_pk_bf16_f32 v{o+2}, v{di}, v{di+1}
v_cvt_pk_bf16_f32 v{o+3}, v{di+2}, v{di+3}
buffer_store_dwordx4 {R(o)}, v10, s[{SWS}:{SWS+3}], s80 offen offset:{tt*1024} sc1""")
            e(f"L_U_skip{ct}:\ns_nop 7\ns_add_u32 s80, s80, 4096")
    stamp(e, 4, 14)
    tile_flag(e, 'U')
    dbgmax(e, 4)
    stamp(e, 5, 14)
    e("s_branch L_SSM_P2")

ACC2 = 16
WSL = 96
ASL = 196
NW, NA = 5, 3
def set_nw(nw, na):
    global NW, NA, ASL
    NW, NA = nw, na
    ASL = WSL + 20 * nw
def acc2(dt, tt): return ACC2 + (dt * 4 + tt) * 4

def wrap_w(e):
    if not opt.rot: return
    e("""s_sub_u32 s91, s91, 1
s_cmp_eq_u32 s91, 0
s_cselect_b32 s95, s93, 0
s_sub_u32 s84, s84, s95""")

def wrap_a(e):
    if not opt.rot: return
    e("""s_sub_u32 s92, s92, 1
s_cmp_eq_u32 s92, 0
s_cselect_b32 s95, s94, 0
s_sub_u32 s85, s85, s95""")

def rot_setup(e, n_sgpr_or_const, is_const):
    if not opt.rot: return
    if opt.map2 == 1:
        e(f"""s_and_b32 s95, s{sCB}, 3
s_lshl_b32 s95, s95, 1
s_add_u32 s95, s95, s{sRB2}
s_and_b32 s95, s95, 7""")
    else:
        e(f"""s_and_b32 s95, s{sRB2}, 3
s_lshl_b32 s95, s95, 1
s_add_u32 s95, s95, s{sCB}
s_and_b32 s95, s95, 7""")
    n = f"{n_sgpr_or_const}" if is_const else f"s{n_sgpr_or_const}"
    e(f"""s_mul_i32 s90, s95, {n}
s_lshr_b32 s90, s90, 3
s_sub_u32 s91, {n}, s90
s_mov_b32 s92, s91
s_mul_i32 s93, {n}, 5120
s_mul_i32 s94, {n}, 4096
s_mul_i32 s95, s90, 5120
s_add_u32 s84, s84, s95""")

def rot_act(e):
    if not opt.rot: return
    e("""s_lshl_b32 s95, s90, 12
s_add_u32 s85, s85, s95""")

def gen_p2_stream(e, tag, nsteps, extra_hook=None):
    queue = []
    SC = '' if opt.nosc1 else 'sc1'
    def ld_w(s):
        b = WSL + 20 * (s % NW)
        for dt in range(5):
            if dt < 4:
                e(f"buffer_load_dwordx4 {R(b+4*dt)}, v1, s[{SWS}:{SWS+3}], s84 offen offset:{dt*1024} {SC}")
            else:
                e(f"s_add_u32 s84, s84, 4096")
                e(f"buffer_load_dwordx4 {R(b+4*dt)}, v1, s[{SWS}:{SWS+3}], s84 offen {SC}")
                e(f"s_add_u32 s84, s84, 1024")
            queue.append(('w', s))
        wrap_w(e)
    def ld_a(s):
        b = ASL + 16 * (s % NA)
        for tt in range(4):
            e(f"buffer_load_dwordx4 {R(b+4*tt)}, v1, s[{SWS}:{SWS+3}], s85 offen offset:{tt*1024} {SC}")
            queue.append(('a', s))
        e(f"s_add_u32 s85, s85, 4096")
        wrap_a(e)
    return ld_w, ld_a, queue

def p2_role(e, tag, nsteps):
    pass

def emit_stream(e, nsteps, ld_w, ld_a, queue, NL, vL, late_lds=None):
    if opt.ststamps:
        e(f"s_memtime s[100:101]\ns_waitcnt lgkmcnt(0)\nv_writelane_b32 v250, s100, 0")
    for s in range(min(NA, nsteps)): ld_a(s)
    if late_lds is not None: w_lds(e, NL, late_lds, queue)
    for s in range(nsteps):
        idx = [i for i, q in enumerate(queue) if q in (('w', s), ('a', s))]
        inlds = NW <= s < NW + NL
        if idx:
            last = max(idx)
            n = len(queue) - 1 - last
            e(f"s_waitcnt vmcnt({n})" + (" lgkmcnt(0)" if inlds else ""))
            del queue[:last + 1]
        elif inlds:
            e("s_waitcnt lgkmcnt(0)")
        if opt.ststamps:
            e(f"s_memtime s[100:101]\ns_waitcnt lgkmcnt(0)\nv_writelane_b32 v250, s100, {s+1}")
        wb = WSL + 20 * (s % NW); ab = ASL + 16 * (s % NA)
        for dt in range(5):
            for tt in range(4):
                d = acc2(dt, tt)
                c = R(d)
                e(f"v_mfma_f32_16x16x32_bf16 {R(d)}, {R(wb+4*dt)}, {R(ab+4*tt)}, {c}")
        if s + NA < nsteps: ld_a(s + NA)
        t = s + NW
        if t < nsteps and t >= NW + NL:
            ld_w(t)
        t = s + 2
        if NW <= t < min(NW + NL, nsteps):
            li = [i for i, q in enumerate(queue) if q == ('l', t)]
            if li:
                e(f"s_waitcnt vmcnt({len(queue) - 1 - max(li)})")
                del queue[:max(li) + 1]
            for dt in range(5):
                e(f"ds_read_b128 {R(WSL + 20*(t % NW) + 4*dt)}, v{vL} offset:{(t-NW)*5120 + dt*1024}")

def spoll_tiles(e, tag, kind, sleep=1):
    off = 0 if kind == 'F' else 128
    n = 18 if kind == 'F' else 14
    e(f"""s_lshl_b32 s89, s{sRB2}, 8
s_add_u32 s89, s89, {TFLAG_OFF + off}
s_mov_b32 s80, 0
L_sp_{tag}:""")
    if kind == 'F':
        e(f"s_load_dwordx16 s[40:55], s[{P_WS}:{P_WS+1}], s89 glc")
        e(f"s_load_dwordx2 s[56:57], s[{P_WS}:{P_WS+1}], s89 offset:64 glc")
        regs = list(range(40, 58))
    else:
        e(f"s_load_dwordx8 s[40:47], s[{P_WS}:{P_WS+1}], s89 glc")
        e(f"s_load_dwordx4 s[48:51], s[{P_WS}:{P_WS+1}], s89 offset:32 glc")
        e(f"s_load_dwordx2 s[54:55], s[{P_WS}:{P_WS+1}], s89 offset:48 glc")
        regs = list(range(40, 52)) + [54, 55]
    e("s_add_u32 s80, s80, 1\ns_waitcnt lgkmcnt(0)\ns_mov_b32 s81, 0")
    for r_ in regs:
        e(f"s_xor_b32 s82, s{r_}, s{sNONCE}\ns_or_b32 s81, s81, s82")
    e(f"""s_cmp_ge_u32 s80, {opt.spin_limit}
s_cbranch_scc1 L_sp_done_{tag}
s_cmp_eq_u32 s81, 0
s_cbranch_scc1 L_sp_done_{tag}
s_sleep {sleep}
s_branch L_sp_{tag}
L_sp_done_{tag}:""")

def ffn_acc_init(e):
    srd(e, STA, P_B2, 1280)
    e(f"""v_lshrrev_b32 v4, 4, v0
v_lshlrev_b32 v4, 3, v4
v_mov_b32 v5, 0x10000000
s_cmp_eq_u32 s86, 0
s_cselect_b32 s80, 0, 1
v_mov_b32 v6, s80
v_cmp_eq_u32 vcc, 1, v6
v_cndmask_b32 v4, v4, v5, vcc
s_mul_i32 s81, s{sCB}, 160""")
    for dt in range(5):
        e(f"buffer_load_dwordx2 v[{244+2*dt}:{245+2*dt}], v4, s[{STA}:{STA+3}], s81 offen offset:{32*dt}")
    e("s_waitcnt vmcnt(0)")
    for dt in range(5):
        b = acc2(dt, 0)
        e(f"""v_lshlrev_b32 v{b}, 16, v{244+2*dt}
v_and_b32 v{b+1}, 0xffff0000, v{244+2*dt}
v_lshlrev_b32 v{b+2}, 16, v{245+2*dt}
v_and_b32 v{b+3}, 0xffff0000, v{245+2*dt}""")
        for tt in range(1, 4):
            for r in range(4):
                e(f"v_mov_b32 v{acc2(dt,tt)+r}, v{b+r}")

def ssm_pre(e):
    e(f"""s_lshr_b32 s80, s{sWAVE}, 1
s_lshl_b32 s80, s80, 5
s_and_b32 s81, s{sWAVE}, 1
s_lshl_b32 s81, s81, 3
s_add_u32 s80, s80, s81
s_lshl_b32 s81, s{sRB2}, 6
s_add_u32 s80, s80, s81
v_bfe_u32 v4, v0, 3, 1
v_lshlrev_b32 v4, 4, v4
v_and_b32 v5, 7, v0
v_add_u32 v4, v4, v5
v_add_u32 v4, s80, v4
v_lshrrev_b32 v5, 4, v0
v_lshlrev_b32 v6, 3, v5
s_mul_i32 s81, s{sCB}, 160
v_mul_u32_u24 v7, 1280, v4
v_add_u32 v7, v7, v6
v_lshlrev_b32 v8, 3, v4
v_mul_u32_u24 v248, 2560, v4
v_lshlrev_b32 v5, 4, v5
v_add_u32 v248, v248, v5""")
    XR, DK = 196, 206
    srd(e, STA, P_AX, 2621440)
    for dt in range(5):
        e(f"buffer_load_dwordx2 v[{XR+2*dt}:{XR+2*dt+1}], v7, s[{STA}:{STA+3}], s81 offen offset:{32*dt}")
    srd(e, STB, P_DSK, 1280)
    for dt in range(5):
        e(f"buffer_load_dwordx2 v[{DK+2*dt}:{DK+2*dt+1}], v6, s[{STB}:{STB+3}], s81 offen offset:{32*dt}")
    e(f"""s_mov_b32 s82, {G_OFF}
buffer_load_dwordx2 v[244:245], v8, s[{SWS}:{SWS+3}], s82 offen sc1""")
    for i in range(80):
        e(f"v_mov_b32 v{ACC2+i}, 0")
    e(f"""s_waitcnt vmcnt(0)
s_mov_b32 s80, 0
L_G_chk:
v_cmp_ne_u32 vcc, s{sNONCE}, v245
s_add_u32 s80, s80, 1
s_cmp_ge_u32 s80, {opt.spin_limit}
s_cbranch_scc1 L_G_ok
s_cmp_eq_u64 vcc, 0
s_cbranch_scc1 L_G_ok
s_sleep 2
buffer_load_dwordx2 v[244:245], v8, s[{SWS}:{SWS+3}], s82 offen sc1
s_waitcnt vmcnt(0)
s_branch L_G_chk
L_G_ok:
v_sub_f32 v246, 1.0, v244
v_cvt_pk_bf16_f32 v246, v246, v246
v_and_b32 v246, 0xffff0000, v246""")
    for dt in range(5):
        T = 216 + 4 * dt
        e(f"""v_lshlrev_b32 v10, 16, v{XR+2*dt}
v_and_b32 v11, 0xffff0000, v{XR+2*dt}
v_lshlrev_b32 v12, 16, v{XR+2*dt+1}
v_and_b32 v13, 0xffff0000, v{XR+2*dt+1}
v_lshlrev_b32 v{T}, 16, v{DK+2*dt}
v_and_b32 v{T+1}, 0xffff0000, v{DK+2*dt}
v_lshlrev_b32 v{T+2}, 16, v{DK+2*dt+1}
v_and_b32 v{T+3}, 0xffff0000, v{DK+2*dt+1}
v_mul_f32 v{T}, v{T}, v10
v_mul_f32 v{T+1}, v{T+1}, v11
v_mul_f32 v{T+2}, v{T+2}, v12
v_mul_f32 v{T+3}, v{T+3}, v13""")
    for w in range(4):
        e(f"s_cmp_eq_u32 s{sWAVE}, {w}\ns_cbranch_scc0 L_PRE_{w}")
        for dt in range(5):
            for r in range(4):
                e(f"v_mov_b32 v{acc2(dt,w)+r}, v{216+4*dt+r}")
        e(f"L_PRE_{w}:")

def lds_signal(e, off, vt):
    e(f"""v_mov_b32 v{vt}, {LDS_FLAG + off}
v_mov_b32 v{vt+1}, 1
ds_write_b32 v{vt}, v{vt+1}""")

def lds_count(e, off, vt):
    e(f"""v_mov_b32 v{vt}, {LDS_FLAG + off}
v_mov_b32 v{vt+1}, 1
s_mov_b64 exec, 1
ds_add_u32 v{vt}, v{vt+1}
s_mov_b64 exec, -1""")

def lds_wait_ge(e, tag, off, n, vt):
    e(f"""v_mov_b32 v{vt}, {LDS_FLAG + off}
s_mov_b32 s80, 0
L_lwg_{tag}:
ds_read_b32 v{vt+1}, v{vt}
s_add_u32 s80, s80, 1
s_waitcnt lgkmcnt(0)
v_readfirstlane_b32 s81, v{vt+1}
s_cmp_ge_u32 s80, {opt.spin_limit * 4}
s_cbranch_scc1 L_lwg_done_{tag}
s_cmp_ge_u32 s81, {n}
s_cbranch_scc1 L_lwg_done_{tag}
s_sleep 1
s_branch L_lwg_{tag}
L_lwg_done_{tag}:""")

def lds_wait(e, tag, off, vt):
    e(f"""v_mov_b32 v{vt}, {LDS_FLAG + off}
s_mov_b32 s80, 0
L_lw_{tag}:
ds_read_b32 v{vt+1}, v{vt}
s_add_u32 s80, s80, 1
s_waitcnt lgkmcnt(0)
v_readfirstlane_b32 s81, v{vt+1}
s_cmp_ge_u32 s80, {opt.spin_limit * 4}
s_cbranch_scc1 L_lw_done_{tag}
s_cmp_eq_u32 s81, 0
s_cbranch_scc0 L_lw_done_{tag}
s_sleep 1
s_branch L_lw_{tag}
L_lw_done_{tag}:""")

def gen_p2(e):
    e("L_FFN_P2:")
    e(f"""s_mul_i32 s80, s{sRB2}, 94
s_add_u32 s85, s85, s80
s_lshl_b32 s85, s85, 12
v_add_u32 v3, s87, v1""")
    rot_act(e)
    e(f"""s_mov_b32 s88, s84
s_mov_b32 s84, s86""")
    nsh_ = 8 if opt.map2 == 1 else 4
    ng_ = (-(-(-(-14 * 40 // nsh_)) // 64)) if opt.gw else 0
    e(f"s_waitcnt vmcnt({NLF*5})")
    gen_gate_compute(e)
    e("s_mov_b32 s84, s88")
    ffn_acc_init(e)
    ld_w, ld_a, queue = gen_p2_stream(e, 'F', 14)
    stamp(e, 3, 14)
    e(f"s_cmp_eq_u32 s86, 0\ns_cbranch_scc0 L_FFN_lw")
    spoll_tiles(e, 'FT', 'F')
    e('s_waitcnt vmcnt(0)')
    if opt.sshelp: lds_count(e, 20, 10)
    lds_signal(e, 8, 10)
    e("s_branch L_FFN_go\nL_FFN_lw:\ns_waitcnt vmcnt(0)")
    if opt.sshelp: lds_count(e, 20, 10)
    lds_wait(e, 'F', 8, 10)
    e("L_FFN_go:")
    if opt.prio: e(f"s_setprio {opt.prio}")
    stamp(e, 4, 14)
    if opt.l2pf2: l2_prefetch(e, 85, 14 * 32, 4 if opt.map2 == 1 else 8, f"s{sCB}", 3 if opt.map2 == 1 else 7, 2 if opt.map2 == 1 else 1)
    del queue[:]
    e(f"s_cmp_ge_u32 s86, 2\ns_cbranch_scc1 L_FFN_13")
    emit_stream(e, 14, ld_w, ld_a, queue, NLF, 3, 87 if opt.ldslate else None)
    e("s_branch L_FFN_done")
    e("L_FFN_13:")
    del queue[:]
    emit_stream(e, 13, ld_w, ld_a, queue, NLF, 3, 87 if opt.ldslate else None)
    e("L_FFN_done:")
    if opt.ststamps:
        e(f"""s_memtime s[100:101]
s_waitcnt lgkmcnt(0)
v_writelane_b32 v250, s100, 15
s_lshl_b32 s98, s2, 3
s_add_u32 s98, s98, s{sWAVE}
s_lshl_b32 s98, s98, 6
s_add_u32 s98, s98, {STAMP_OFF + 0x40000}
v_lshlrev_b32 v251, 2, v0
s_mov_b64 exec, 0xffff
buffer_store_dword v250, v251, s[{SWS}:{SWS+3}], s98 offen
s_mov_b64 exec, -1""")
    stamp(e, 5, 14)
    e(f"""s_mul_i32 s80, s86, 20480
v_add_u32 v2, s80, v1""")
    for tt in range(4):
        for dt in range(5):
            e(f"ds_write_b128 v2, {R(acc2(dt,tt))} offset:{LDS_F + (tt*5+dt)*1024}")
    e("s_waitcnt lgkmcnt(0)\ns_barrier")
    stamp(e, 6, 14)
    e("s_branch L_END")
    e("L_SSM_P2:")
    if not opt.wearly: ssm_w_setup(e, 'P')
    e("L_SSM_P2b:")
    ssm_pre(e)
    ld_w, ld_a, queue = gen_p2_stream(e, 'S', 10)
    stamp(e, 6, 14)
    e(f"s_cmp_eq_u32 s{sWAVE}, 0\ns_cbranch_scc0 L_SSM_lw")
    spoll_tiles(e, 'ST', 'S')
    e('s_waitcnt vmcnt(0)')
    lds_signal(e, 12, 10)
    e("s_branch L_SSM_go\nL_SSM_lw:\ns_waitcnt vmcnt(0)")
    lds_wait(e, 'S', 12, 10)
    e("L_SSM_go:")
    if opt.sshelp:
        e(f"s_cmp_eq_u32 s{sISU}, 1\ns_cbranch_scc0 L_SSM_nohw")
        lds_wait_ge(e, 'H', 20, 4, 10)
        e("L_SSM_nohw:")
    stamp(e, 7, 14)
    dbgmax(e, 5)
    if opt.l2pf2: l2_prefetch(e, 85, 10 * 32, 4 if opt.map2 == 1 else 8, f"s{sCB}", 3 if opt.map2 == 1 else 7, 2 if opt.map2 == 1 else 1)
    del queue[:]
    emit_stream(e, 10, ld_w, ld_a, queue, NLS, 3)
    if opt.ststamps:
        e(f"""s_memtime s[100:101]
s_waitcnt lgkmcnt(0)
v_writelane_b32 v250, s100, 15
s_lshl_b32 s98, s2, 3
s_add_u32 s98, s98, s{sWAVE}
s_lshl_b32 s98, s98, 6
s_add_u32 s98, s98, {STAMP_OFF + 0x40000}
v_lshlrev_b32 v251, 2, v0
s_mov_b64 exec, 0xffff
buffer_store_dword v250, v251, s[{SWS}:{SWS+3}], s98 offen
s_mov_b64 exec, -1""")
    stamp(e, 8, 14)
    dbgmax(e, 6)
    e(f"""s_mul_i32 s83, s{sWAVE}, 15360
s_add_u32 s83, s83, {LDS_Y}
v_add_u32 v7, s83, v1""")
    OWN = 130
    for w in range(4):
        e(f"s_cmp_eq_u32 s{sWAVE}, {w}\ns_cbranch_scc0 L_YW_{w}")
        sl = 0
        for tt in range(4):
            if tt == w: continue
            for dt in range(5):
                e(f"ds_write_b128 v7, {R(acc2(dt,tt))} offset:{sl * 5120 + dt * 1024}")
            sl += 1
        for dt in range(5):
            for r in range(4):
                e(f"v_mov_b32 v{OWN+4*dt+r}, v{acc2(dt,w)+r}")
        e(f"s_branch L_YW_done\nL_YW_{w}:")
    e("L_YW_done:")
    for k in range(3):
        e(f"""s_cmp_ge_u32 {k}, s{sWAVE}
s_cselect_b32 s80, {k+1}, {k}
s_cselect_b32 s81, 0, 1
s_sub_u32 s81, s{sWAVE}, s81
s_mul_i32 s80, s80, 15360
s_mul_i32 s81, s81, 5120
s_add_u32 s80, s80, s81
s_add_u32 s80, s80, {LDS_Y}
v_add_u32 v{8+k}, s80, v1""")
    e(f"""s_mul_i32 s80, s{sWAVE}, 5120
v_add_u32 v11, s80, v1
v_add_u32 v12, 40960, v11""")
    srd(e, SOUT, P_OUT, 5242880)
    e(f"s_mul_i32 s81, s{sCB}, 320")
    e("s_waitcnt lgkmcnt(0)\ns_barrier")
    stamp(e, 9, 14)
    YR, FR = 16, 150
    for dt in range(5):
        for k in range(3):
            e(f"ds_read_b128 {R(YR+20*k+4*dt)}, v{8+k} offset:{dt*1024}")
        for w2 in range(4):
            e(f"ds_read_b128 {R(FR+20*w2+4*dt)}, v{11+(w2>>1)} offset:{(w2&1)*20480 + dt*1024}")
    for dt in range(5):
        e(f"s_waitcnt lgkmcnt({min(15, 7*(4-dt))})")
        y, f = OWN + 4 * dt, FR + 4 * dt
        t1, t2 = 80 + 0, 84
        A = 96 + 4 * dt
        for r in range(0, 4, 2):
            e(f"v_pk_add_f32 v[{YR+4*dt+r}:{YR+4*dt+r+1}], v[{YR+4*dt+r}:{YR+4*dt+r+1}], v[{YR+20+4*dt+r}:{YR+20+4*dt+r+1}]")
            e(f"v_pk_add_f32 v[{y+r}:{y+r+1}], v[{y+r}:{y+r+1}], v[{YR+40+4*dt+r}:{YR+40+4*dt+r+1}]")
            e(f"v_pk_add_f32 v[{f+r}:{f+r+1}], v[{f+r}:{f+r+1}], v[{f+20+r}:{f+20+r+1}]")
            e(f"v_pk_add_f32 v[{f+40+r}:{f+40+r+1}], v[{f+40+r}:{f+40+r+1}], v[{f+60+r}:{f+60+r+1}]")
        B_ = 76 + 0
        for r in range(0, 4, 2):
            e(f"v_pk_add_f32 v[{YR+20+4*dt+r}:{YR+20+4*dt+r+1}], v[{y+r}:{y+r+1}], v[{YR+4*dt+r}:{YR+4*dt+r+1}]")
            e(f"v_pk_add_f32 v[{f+20+r}:{f+20+r+1}], v[{f+r}:{f+r+1}], v[{f+40+r}:{f+40+r+1}]")
        for r in range(0, 4, 2):
            e(f"v_pk_mul_f32 v[{YR+40+4*dt+r}:{YR+40+4*dt+r+1}], v[{YR+20+4*dt+r}:{YR+20+4*dt+r+1}], v[244:245] op_sel:[0,0] op_sel_hi:[1,0]")
        for r in range(0, 4, 2):
            e(f"v_pk_fma_f32 v[{A+r}:{A+r+1}], v[{f+20+r}:{f+20+r+1}], v[246:247], v[{YR+40+4*dt+r}:{YR+40+4*dt+r+1}] op_sel:[0,0,0] op_sel_hi:[1,0,1]")
        e(f"buffer_store_dwordx4 {R(A)}, v248, s[{SOUT}:{SOUT+3}], s81 offen offset:{dt*64} {['', 'sc1', 'nt', 'sc0 sc1'][opt.osc]}")
    stamp(e, 10, 14)
    if opt.dbgtime: e("s_waitcnt vmcnt(0)")
    dbgmax(e, 7)
    e("s_branch L_END")

def gen_gate_loads(e, W=84):
    srd(e, STA, P_GW, 1280)
    srd(e, STB, P_AX, 2621440)
    e(f"""v_lshlrev_b32 v12, 4, v0
v_lshlrev_b32 v13, 2, v0
s_lshl_b32 s80, s2, 3
s_lshl_b32 s81, s{W}, 1
s_add_u32 s80, s80, s81
s_mul_i32 s81, s80, 1280
s_add_u32 s82, s81, 1280
buffer_load_dwordx4 v[16:19], v12, s[{STA}:{STA+3}], 0 offen
buffer_load_dword v20, v13, s[{STA}:{STA+3}], 0 offen offset:1024
buffer_load_dwordx4 v[22:25], v12, s[{STB}:{STB+3}], s81 offen
buffer_load_dword v26, v13, s[{STB}:{STB+3}], s81 offen offset:1024
buffer_load_dwordx4 v[28:31], v12, s[{STB}:{STB+3}], s82 offen
buffer_load_dword v32, v13, s[{STB}:{STB+3}], s82 offen offset:1024""")

def gen_gate_compute(e):
    e("v_mov_b32 v40, 0\nv_mov_b32 v41, 0")
    for m in range(5):
        e(f"""v_lshlrev_b32 v36, 16, v{16+m}
v_and_b32 v37, 0xffff0000, v{16+m}""")
        for row in range(2):
            x = 22 + 6 * row + m
            e(f"""v_lshlrev_b32 v38, 16, v{x}
v_and_b32 v39, 0xffff0000, v{x}
v_mul_f32 v38, v38, v36
v_mul_f32 v39, v39, v37
v_cvt_pk_bf16_f32 v38, v38, v39
v_lshlrev_b32 v39, 16, v38
v_and_b32 v38, 0xffff0000, v38
v_add_f32 v{40+row}, v{40+row}, v39
v_add_f32 v{40+row}, v{40+row}, v38""")
    for sh in ("row_shr:1", "row_shr:2", "row_shr:4", "row_shr:8", "row_bcast:15 row_mask:0xa", "row_bcast:31 row_mask:0xc"):
        for row in range(2):
            e(f"v_add_f32 v{40+row}, v{40+row}, v{40+row} {sh}")
    e("""v_readlane_b32 s80, v40, 63
v_readlane_b32 s81, v41, 63""")
    e(f"""v_mov_b32 v42, s80
v_mov_b32 v43, s81
v_cmp_eq_u32 vcc, 1, v0
v_cndmask_b32 v42, v42, v43, vcc
v_cvt_pk_bf16_f32 v42, v42, v42
v_and_b32 v42, 0xffff0000, v42
v_mul_f32 v42, 0xbfb8aa3b, v42
v_exp_f32 v42, v42
v_add_f32 v42, 1.0, v42
v_rcp_f32 v42, v42
v_cvt_pk_bf16_f32 v42, v42, v42
v_and_b32 v42, 0xffff0000, v42
v_mov_b32 v43, s{sNONCE}
v_lshlrev_b32 v44, 3, v0
s_lshl_b32 s80, s2, 3
s_lshl_b32 s81, s84, 1
s_add_u32 s80, s80, s81
s_lshl_b32 s80, s80, 3
s_add_u32 s80, s80, {G_OFF}
s_mov_b64 exec, 3
buffer_store_dwordx2 v[42:43], v44, s[{SWS}:{SWS+3}], s80 offen sc0 sc1
s_mov_b64 exec, -1""")

def generate(path):
    e = Emitter()
    hdr = open("gated_mix__ssm_conv_s5__dense_activation_squared_relu__prompt.s.ref").read().split("\n")
    head = [l for l in hdr if l.startswith(";") and "@launch" not in l and "Override" not in l and "grid=ceil" not in l]
    txt = "\n".join(head) + f"\n; @launch grid=(256,1,1) block=(512,1,1) lds={LDS_SIZE}\n"
    txt += '.amdgcn_target "amdgcn-amd-amdhsa--gfx950"\n.text\n'
    txt += f".globl {NAME}\n.p2align 8\n.type {NAME},@function\n{NAME}:\n"
    gen_entry(e)
    gen_consumer(e)
    gen_loader(e)
    gen_p2(e)
    e("L_END:\ns_endpgm\nL_CODE_END:")
    txt += e.text()
    txt += f""".section .rodata,"a"
.p2align 6
.amdhsa_kernel {NAME}
  .amdhsa_next_free_vgpr 256
  .amdhsa_next_free_sgpr 102
  .amdhsa_accum_offset 256
  .amdhsa_group_segment_fixed_size 0
  .amdhsa_kernarg_size 144
  .amdhsa_user_sgpr_count 2
  .amdhsa_user_sgpr_kernarg_segment_ptr 1
  .amdhsa_system_sgpr_workgroup_id_x 1
.end_amdhsa_kernel
"""
    open(path, "w").write(txt)
    print("pads:", e.npad, "lines:", len(e.out))

if __name__ == "__main__":
    opt.check_g = True
    opt.nowait = 0
    opt.nodma = 0
    opt.itstamps = 0
    opt.l2pf = 0
    opt.gw2 = 0
    opt.thr = 0
    opt.fswn = 5
    opt.osc = 0
    opt.nosc1 = 0
    opt.nw = 5
    opt.na = 3
    opt.fsw = 2
    opt.gall = 0
    opt.udelay = 0
    opt.dbgtime = 0
    opt.sorder = 1
    opt.sshelp = 1
    opt.ststamps = 0
    opt.rot = 0
    opt.sprio = 0
    opt.eprio = 3
    opt.wearly = 0
    opt.ldslate = 0
    opt.prio = 1
    opt.cpf = 1
    opt.wdelay = 0
    opt.noprep = 0
    opt.nost = 0
    opt.map2 = 1
    opt.gw = 0
    opt.gloop = 1
    opt.ssleep = 8
    opt.l2pf2 = 0
    for a in sys.argv[2:]:
        k, v = a.split("=")
        setattr(opt, k, int(v))
    if opt.nw != 5 or opt.na != 3: set_nw(opt.nw, opt.na)
    generate(sys.argv[1])
```

```python
import sys
from emit import Emitter

NAME = "gated_mix__ssm_conv_s5__dense_activation_squared_relu__prompt_kernel"

ACT_OFF   = 0
WF_OFF    = 0xC00000
G_OFF     = 0x1000000
AG_OFF    = 0x1010000
WFLAG_OFF = 0x1040000
TFLAG_OFF = 0x1050000
STAMP_OFF = 0x1100000
SLOT = 40960
LDS_PREP = 122880
LDS_TAB  = 143360
LDS_LX   = LDS_TAB + 8448
LDS_FLAG = LDS_LX + 768
LDS_DUMMY = LDS_FLAG + 64
LDS_F    = 0
LDS_Y    = 81920
LDS_SIZE = 163840

SX, SWA, SWB, SWS, STA, STB, SOUT = 4, 8, 12, 16, 20, 24, 28
P_AX, P_LRE, P_LIM, P_BRE, P_BIM, P_CRE, P_CIM, P_LDT, P_DSK, P_BX, P_W1, P_B1, P_W2, P_B2, P_GW, P_OUT, P_DBG, P_WS = [36 + 2 * i for i in range(18)]
sWAVE, sRB, sCOL, sJ, sRB2, sCB, sNONCE, sISU = 72, 73, 74, 75, 76, 77, 78, 79
SG, sGo, sGinc = 28, 83, 85

class Opt:
    phase2 = True
    stamps = False
    spin_limit = 200000
opt = Opt()

def srd(e, s, ptr, size):
    e(f"s_mov_b32 s{s}, s{ptr}\ns_mov_b32 s{s+1}, s{ptr+1}\ns_mov_b32 s{s+2}, {size}\ns_mov_b32 s{s+3}, 0x20000")

def R(b, n=4):
    return f"v[{b}:{b+n-1}]"

_stamp_id = [0]
def stamp(e, idx, tmpv=14):
    if not opt.stamps: return
    e(f"""s_memrealtime s[100:101]
s_lshl_b32 s98, s2, 3
s_add_u32 s98, s98, s{sWAVE}
s_lshl_b32 s98, s98, 6
s_add_u32 s98, s98, {STAMP_OFF + 4*idx}
s_waitcnt lgkmcnt(0)
v_mov_b32 v{tmpv}, s100
v_mov_b32 v{tmpv+1}, 0
s_mov_b64 s[96:97], exec
s_mov_b64 exec, 1
buffer_store_dword v{tmpv}, v{tmpv+1}, s[{SWS}:{SWS+3}], s98 offen
s_mov_b64 exec, s[96:97]""")

def stamp_clk(e, idx, tmpv=14):
    if not opt.stamps: return
    e(f"""s_memtime s[100:101]
s_lshl_b32 s98, s2, 3
s_add_u32 s98, s98, s{sWAVE}
s_lshl_b32 s98, s98, 6
s_add_u32 s98, s98, {STAMP_OFF + 4*idx}
s_waitcnt lgkmcnt(0)
v_mov_b32 v{tmpv}, s100
v_mov_b32 v{tmpv+1}, 0
s_mov_b64 s[96:97], exec
s_mov_b64 exec, 1
buffer_store_dword v{tmpv}, v{tmpv+1}, s[{SWS}:{SWS+3}], s98 offen
s_mov_b64 exec, s[96:97]""")

class Cap:
    def __init__(self): self.l = []
    def __call__(self, s):
        for x in s.split("\n"):
            if x.strip(): self.l.append(x.strip())

def merge(e, main_groups, aux):
    n = len(main_groups); k = 0
    per = -(-len(aux) // n) if n else 0
    for g in main_groups:
        for x in g: e(x)
        for x in aux[k:k + per]: e(x)
        k += per
    for x in aux[k:]: e(x)

_dm = [0]
def dbgmax(e, idx, neg=False, tv=14):
    if not opt.dbgtime: return
    _dm[0] += 1; n = _dm[0]
    e(f"""s_and_b32 s100, s{sWAVE}, 3
s_cmp_eq_u32 s100, 0
s_cbranch_scc0 L_dm{n}
s_cmp_eq_u32 s2, 0
s_cselect_b32 s101, {4*idx}, {4*(idx+8)}
s_cbranch_scc1 L_dmg{n}
s_cmp_eq_u32 s2, 255
s_cbranch_scc0 L_dm{n}
L_dmg{n}:
v_mov_b32 v{tv+1}, s101
s_memrealtime s[100:101]
s_mov_b32 s96, s{P_DBG}
s_mov_b32 s97, s{P_DBG+1}
s_mov_b32 s98, 256
s_mov_b32 s99, 0x20000
s_waitcnt lgkmcnt(0)
v_mov_b32 v{tv}, s100
s_mov_b64 exec, 1
buffer_store_dword v{tv}, v{tv+1}, s[96:99], 0 offen
s_mov_b64 exec, -1
L_dm{n}:""")

def interleave(e, A, B, lead=1):
    bi = 0
    for i, a in enumerate(A):
        e(a)
        if i >= lead - 1 and bi < len(B):
            e(B[bi]); bi += 1
    while bi < len(B):
        e(B[bi]); bi += 1

def spin_nonce(e, tag, vtmp):
    srd(e, STA, P_DBG, 256)
    e(f"""v_mov_b32 v{vtmp+1}, 0
s_mov_b32 s80, 0
L_nonce_{tag}:
buffer_load_dword v{vtmp}, v{vtmp+1}, s[{STA}:{STA+3}], 0 offen sc1
s_add_u32 s80, s80, 1
s_waitcnt vmcnt(0)
v_readfirstlane_b32 s{sNONCE}, v{vtmp}
s_cmp_ge_u32 s80, {opt.spin_limit}
s_cbranch_scc1 L_nonce_done_{tag}
s_cmp_eq_u32 s{sNONCE}, 0
s_cbranch_scc0 L_nonce_done_{tag}
s_sleep 1
s_branch L_nonce_{tag}
L_nonce_done_{tag}:""")

def poll_flags(e, tag, vaddr, vtmp, soff_sgpr, nlanes_mask_lo, mask_hi=0, sleep=1):
    e(f"""s_mov_b32 s80, 0
s_mov_b32 s82, {nlanes_mask_lo}
s_mov_b32 s83, {mask_hi}
L_poll_{tag}:
buffer_load_dword v{vtmp}, v{vaddr}, s[{SWS}:{SWS+3}], s{soff_sgpr} offen sc1
s_add_u32 s80, s80, 1
s_waitcnt vmcnt(0)
v_cmp_ne_u32 vcc, s{sNONCE}, v{vtmp}
s_cmp_ge_u32 s80, {opt.spin_limit}
s_cbranch_scc1 L_poll_done_{tag}
s_and_b64 vcc, vcc, s[82:83]
s_cbranch_scc0 L_poll_done_{tag}
s_sleep {sleep}
s_branch L_poll_{tag}
L_poll_done_{tag}:""")

def gen_entry(e):
    if opt.map2 == 1:
        MAP2 = f"""s_lshr_b32 s82, s80, 1
s_lshl_b32 s82, s82, 3
s_lshr_b32 s83, s81, 2
s_add_u32 s{sRB2}, s82, s83
s_and_b32 s82, s80, 1
s_lshl_b32 s82, s82, 2
s_and_b32 s83, s81, 3
s_add_u32 s{sCB}, s82, s83"""
    else:
        MAP2 = f"""s_lshl_b32 s82, s80, 2
s_and_b32 s83, s81, 3
s_add_u32 s{sRB2}, s82, s83
s_lshr_b32 s{sCB}, s81, 2"""
    e(f"""s_cmp_ge_u32 s2, 256
s_cbranch_scc1 L_END
s_load_dwordx16 s[36:51], s[0:1], 0
s_load_dwordx16 s[52:67], s[0:1], 64
s_load_dwordx4 s[68:71], s[0:1], 128
v_lshrrev_b32 v1, 6, v0
v_and_b32 v0, 63, v0
v_readfirstlane_b32 s{sWAVE}, v1
s_and_b32 s80, s2, 7
s_lshr_b32 s81, s2, 3
s_and_b32 s82, s80, 1
s_lshl_b32 s82, s82, 3
s_and_b32 s83, s81, 7
s_add_u32 s{sRB}, s82, s83
s_lshr_b32 s82, s80, 1
s_lshl_b32 s82, s82, 2
s_lshr_b32 s83, s81, 3
s_add_u32 s{sCOL}, s82, s83
{MAP2}
s_sub_u32 s82, s{sCOL}, 9
s_cmp_ge_u32 s{sCOL}, 9
s_cselect_b32 s{sISU}, 1, 0
s_cselect_b32 s{sJ}, s82, s{sCOL}
s_waitcnt lgkmcnt(0)""")
    srd(e, SWS, P_WS, 0x10000000)
    srd(e, SX, P_AX, 2621440)
    stamp(e, 12, 14)
    e(f"""s_cmp_eq_u32 s2, 0
s_cbranch_scc0 L_no_nonce
s_cmp_eq_u32 s{sWAVE}, 4
s_cbranch_scc0 L_no_nonce
s_memrealtime s[80:81]""")
    srd(e, STA, P_DBG, 256)
    e(f"""s_waitcnt lgkmcnt(0)
s_or_b32 s80, s80, 1
v_mov_b32 v2, s80
v_mov_b32 v3, 0
s_mov_b64 exec, 1
buffer_store_dword v2, v3, s[{STA}:{STA+3}], 0 offen sc0 sc1
s_mov_b64 exec, -1
L_no_nonce:
s_cmp_ge_u32 s{sWAVE}, 4
s_cbranch_scc1 L_LOADER""")

def cmul(e, d, a, b, t):
    e(f"""v_mul_f32 v{d}, v{a}, v{b}
v_mul_f32 v{d+1}, v{a}, v{b+1}
v_fma_f32 v{d}, -v{a+1}, v{b+1}, v{d}
v_fma_f32 v{d+1}, v{a+1}, v{b}, v{d+1}""")

def csq(e, d, a):
    cmul(e, d, a, a, None)

def cfma(e, d, a, b, c):
    e(f"""v_fma_f32 v{d}, v{a}, v{b}, v{c}
v_fma_f32 v{d+1}, v{a}, v{b+1}, v{c+1}
v_fma_f32 v{d}, -v{a+1}, v{b+1}, v{d}
v_fma_f32 v{d+1}, v{a+1}, v{b}, v{d+1}""")

def gen_loader(e):
    e("L_LOADER:")
    vXo = 2; vWo = 4
    sXo = 86
    sWo = 90
    sLX, sLW, sWinc = 32, 33, 34
    def issue_x(s):
        slot = (s % 3) * SLOT
        for m in range(4):
            e(f"s_add_u32 m0, s{sLX}, {slot + m*1024}")
            e(f"buffer_load_dwordx4 v{vXo}, s[{SX}:{SX+3}], s{sXo+m} offen lds")
            e(f"s_add_u32 s{sXo+m}, s{sXo+m}, 128")
    def issue_w(s):
        slot = (s % 3) * SLOT
        for m in range(6):
            S = SWB if (m >> 1) == 1 else SWA
            e(f"s_add_u32 m0, s{sLW}, {slot + m*1024}")
            e(f"buffer_load_dwordx4 v{vWo+m}, s[{S}:{S+3}], s{sWo+m} offen lds")
            e(f"s_add_u32 s{sWo+m}, s{sWo+m}, s{sWinc}")
    def issue(s):
        issue_x(s); issue_w(s)
    e(f"""s_sub_u32 s84, s{sWAVE}, 4
v_lshrrev_b32 v10, 3, v0
v_and_b32 v11, 7, v0
v_xor_b32 v11, v11, v10
v_lshlrev_b32 v11, 4, v11
s_lshl_b32 s{sLX}, s84, 12
s_mul_i32 s{sLW}, s84, 6144
s_add_u32 s{sLW}, s{sLW}, 16384
s_lshl_b32 s85, s{sRB}, 7""")
    e(f"""s_mul_i32 s80, s{sJ}, 96
s_lshl_b32 s81, s84, 5
s_add_u32 s80, s80, s81
v_and_b32 v12, 31, v0
v_add_u32 v12, s80, v12
v_min_u32 v12, 639, v12
v_lshlrev_b32 v12, 1, v12""")
    srd(e, STA, P_LRE, 1280)
    e(f"buffer_load_ushort v20, v12, s[{STA}:{STA+3}], 0 offen")
    srd(e, STB, P_LIM, 1280)
    e(f"buffer_load_ushort v21, v12, s[{STB}:{STB+3}], 0 offen")
    srd(e, STA, P_LDT, 1280)
    e(f"buffer_load_ushort v22, v12, s[{STA}:{STA+3}], 0 offen")
    e(f"""s_cmp_eq_u32 s{sISU}, 1
s_cbranch_scc1 L_LD_U""")
    e(f"""v_mul_u32_u24 v{vXo}, 1280, v10
v_add_u32 v{vXo}, v{vXo}, v11
s_lshl_b32 s80, s84, 5
s_add_u32 s80, s80, s85""")
    for m in range(4):
        e(f"s_add_u32 s81, s80, {16*(m&1) + 8*(m>>1)}\ns_mul_i32 s{sXo+m}, s81, 1280")
    issue_x(0)
    srd(e, SWA, P_W1, 2211840)
    srd(e, SWB, P_W1, 2211840)
    e(f"""s_mul_i32 s80, s84, {16*3456}
s_mul_i32 s81, s{sJ}, 384
s_add_u32 s80, s80, s81""")
    for m in range(6):
        e(f"s_mov_b32 s{sWo+m}, s80")
    e(f"s_mov_b32 s{sWinc}, {64*3456}")
    for m in range(6):
        e(f"""v_add_u32 v12, {64*m}, v0
v_mul_u32_u24 v13, 2731, v12
v_lshrrev_b32 v13, 16, v13
v_mul_u32_u24 v14, 24, v13
v_sub_u32 v14, v12, v14
v_bfe_u32 v15, v13, 1, 1
v_lshlrev_b32 v15, 1, v15
v_bfe_u32 v16, v13, 3, 1
v_lshlrev_b32 v16, 2, v16
v_or_b32 v15, v15, v16
v_xor_b32 v14, v14, v15
v_lshlrev_b32 v14, 4, v14
v_mul_u32_u24 v13, 3456, v13
v_add_u32 v{vWo+m}, v13, v14""")
    e("s_branch L_LD_GO")
    e("L_LD_U:")
    e(f"""v_lshrrev_b32 v12, 5, v0
v_lshlrev_b32 v12, 4, v12
v_bfe_u32 v13, v0, 3, 1
v_lshlrev_b32 v13, 3, v13
v_add_u32 v12, v12, v13
v_bfe_u32 v13, v0, 4, 1
v_add_u32 v12, v12, v13
v_mul_u32_u24 v{vXo}, 1280, v12
v_add_u32 v{vXo}, v{vXo}, v11
s_lshr_b32 s80, s84, 1
s_lshl_b32 s80, s80, 6
s_and_b32 s81, s84, 1
s_lshl_b32 s82, s81, 2
s_add_u32 s80, s80, s82
s_add_u32 s80, s80, s85""")
    for m in range(4):
        e(f"s_add_u32 s82, s80, {32*(m&1) + 2*(m>>1)}\ns_mul_i32 s{sXo+m}, s82, 1280")
    issue_x(0)
    e(f"""v_mul_u32_u24 v12, 1280, v10
v_add_u32 v12, v12, v11""")
    for m in range(6):
        e(f"v_mov_b32 v{vWo+m}, v12")
    e(f"""s_mul_i32 s80, s{sJ}, 96
s_lshr_b32 s82, s84, 1
s_mul_i32 s82, s82, 48
s_add_u32 s80, s80, s82
s_mul_i32 s83, s81, 3""")
    for m in range(6):
        e(f"""s_add_u32 s82, s83, {m>>1}
s_lshr_b32 s82, s82, 1
s_lshl_b32 s82, s82, 4
s_add_u32 s82, s82, s80
s_add_u32 s82, s82, {8*(m&1)}
s_min_u32 s82, s82, 632
s_mul_i32 s{sWo+m}, s82, 1280""")
    e(f"s_mov_b32 s{sWinc}, 128")
    e(f"""s_cmp_eq_u32 s81, 0
s_cselect_b32 s{SWA}, s{P_BRE}, s{P_BIM}
s_cselect_b32 s{SWA+1}, s{P_BRE+1}, s{P_BIM+1}
s_cselect_b32 s{SWB}, s{P_BIM}, s{P_BRE}
s_cselect_b32 s{SWB+1}, s{P_BIM+1}, s{P_BRE+1}
s_mov_b32 s{SWA+2}, 819200
s_mov_b32 s{SWA+3}, 0x20000
s_mov_b32 s{SWB+2}, 819200
s_mov_b32 s{SWB+3}, 0x20000""")
    e("L_LD_GO:")
    def groups(s_):
        slot = (s_ % 3) * SLOT
        G = []
        for m in range(4):
            G.append([f"s_add_u32 m0, s{sLX}, {slot + m*1024}",
                      f"buffer_load_dwordx4 v{vXo}, s[{SX}:{SX+3}], s{sXo+m} offen lds",
                      f"s_add_u32 s{sXo+m}, s{sXo+m}, 128"])
        for m in range(6):
            S = SWB if (m >> 1) == 1 else SWA
            G.append([f"s_add_u32 m0, s{sLW}, {slot + m*1024}",
                      f"buffer_load_dwordx4 v{vWo+m}, s[{S}:{S+3}], s{sWo+m} offen lds",
                      f"s_add_u32 s{sWo+m}, s{sWo+m}, s{sWinc}"])
        return G
    def gath():
        if opt.gall:
            e(f"buffer_load_dword v18, v17, s[{SWS}:{SWS+3}], 0 offen")
        else:
            e(f"buffer_load_dword v18, v17, s[{SG}:{SG+3}], s{sGo} offen\ns_add_u32 s{sGo}, s{sGo}, s{sGinc}")
    issue_w(0)
    if opt.gall: e("v_mov_b32 v17, 0x10000000")
    else: gen_gather_setup(e, 84, 'L', 3)
    issue(1)
    e("s_waitcnt vmcnt(10)\ns_barrier")
    issue(2); gath()
    e("s_waitcnt vmcnt(11)\ns_barrier")
    c = Cap(); gen_lambda_table(c, 0)
    merge(e, groups(3), c.l); gath()
    e("s_waitcnt vmcnt(12)\ns_barrier")
    e(f"""v_and_b32 v62, 31, v0
s_lshl_b32 s80, s84, 5
v_add_u32 v62, s80, v62
v_lshlrev_b32 v62, 3, v62
s_mov_b32 s81, {LDS_TAB}
s_cmp_eq_u32 s84, 3
s_cselect_b32 s80, {LDS_DUMMY - 768}, s81
v_add_u32 v62, s80, v62""")
    c = Cap(); gen_lambda_table(c, 1)
    merge(e, groups(4), c.l); gath()
    for it, (st_, g_) in enumerate(((5, 1), (6, 1), (7, 1), (8, 1))):
        e("s_waitcnt vmcnt(12)\ns_barrier")
        issue(st_)
        if g_: gath()
        if it == 1:
            srd(e, STA, P_DBG, 256)
            e(f"v_mov_b32 v12, 0\nbuffer_load_dword v99, v12, s[{STA}:{STA+3}], 0 offen")
    e("s_waitcnt vmcnt(12)\ns_barrier")
    e(f"""v_readfirstlane_b32 s{sNONCE}, v99
s_cmp_eq_u32 s{sNONCE}, 0
s_cbranch_scc0 L_LD_nonce_ok""")
    spin_nonce(e, 'L', 10)
    e("L_LD_nonce_ok:")
    e(f"""s_mul_i32 s85, s84, 14
s_cmp_eq_u32 s84, 3
s_cselect_b32 s80, 1, 0
s_sub_u32 s85, s85, s80
v_lshlrev_b32 v12, 2, v0
s_lshl_b32 s81, s{sCB}, 9
s_lshl_b32 s82, s85, 2
s_add_u32 s81, s81, s82
s_add_u32 s35, s81, {WFLAG_OFF}
s_mul_i32 s80, s84, 10
s_add_u32 s80, s80, {54 - 16}
s_sub_u32 s80, s80, s85
s_lshl_b32 s80, s80, 2
v_add_u32 v14, s80, v12
v_cmp_le_u32 vcc, 16, v0
v_cndmask_b32 v12, v12, v14, vcc
v_lshlrev_b32 v1, 4, v0
buffer_load_dword v13, v12, s[{SWS}:{SWS+3}], s35 offen sc1""")
    issue(9)
    e("s_waitcnt vmcnt(10)\ns_barrier")
    e(f"""s_mov_b32 s86, s84
s_mul_i32 s87, s86, 20480
s_mul_i32 s84, s{sCB}, 94
s_add_u32 s84, s84, s85
s_mul_i32 s84, s84, 5120
s_add_u32 s84, s84, {WF_OFF}
s_cmp_ge_u32 s86, 2
s_cselect_b32 s89, 13, 14""")
    rot_setup(e, 89, False)
    ld_w, ld_a, queue = gen_p2_stream(e, 'x', 14)
    e(f"""v_cmp_ne_u32 vcc, s{sNONCE}, v13
s_nop 1
s_and_b32 s80, vcc_lo, 0x03ff3fff
s_cbranch_scc1 L_LD_wlate""")
    if opt.gw2:
        w_gathers(e)
    if opt.gw2 != 2:
        ld_w(0); ld_w(1)
    e(f"s_waitcnt vmcnt({(0 if opt.gw2 == 2 else 10) + (3 if opt.gw2 else 0)})\ns_barrier")
    for s_ in range(0 if opt.gw2 == 2 else 2, NW): ld_w(s_)
    e("s_branch L_LD_wdone\nL_LD_wlate:\ns_waitcnt vmcnt(0)\ns_barrier")
    poll_flags(e, 'FW', 12, 13, 35, 0x03ff3fff)
    for s_ in range(NW): ld_w(s_)
    e("L_LD_wdone:")
    stamp(e, 1, 14)
    gen_gate_loads(e, 86)
    ffn_acc_loads(e)
    lds_wait_ge(e, 'R', 24, 4, 10)
    if opt.wdelay or opt.udelay:
        if not opt.udelay: e(f"s_cmp_eq_u32 s{sISU}, 1\ns_cbranch_scc1 L_LD_nodelay")
        if not opt.wdelay: e(f"s_cmp_eq_u32 s{sISU}, 0\ns_cbranch_scc1 L_LD_nodelay")
        lds_wait_ge(e, 'W', 16, 4, 10)
        e("L_LD_nodelay:")
    stamp(e, 7, 14)
    w_lds(e, NLF, 87, throttle=('A' if opt.thr >= 0 else None))
    lds_count(e, 28, 10)
    if opt.sshelp:
        e(f"s_cmp_eq_u32 s{sISU}, 1\ns_cbranch_scc0 L_NOHELP")
        e(f"""s_mul_i32 s80, s86, 10
s_add_u32 s80, s80, {54 + NW}
s_mul_i32 s81, s{sCB}, 94
s_add_u32 s80, s80, s81
s_mul_i32 s80, s80, 5120
s_add_u32 s80, s80, {WF_OFF}
s_mul_i32 s81, s86, 15360
s_add_u32 s81, s81, {LDS_Y}""")
        for i in range(NLS):
            if opt.thr >= 0: e(f"s_waitcnt vmcnt({opt.thr})")
            for dt in range(5):
                e(f"""s_add_u32 m0, s81, {i*5120 + dt*1024}
buffer_load_dwordx4 v1, s[{SWS}:{SWS+3}], s80 offen sc1 lds
s_add_u32 s80, s80, 1024""")
        e("L_NOHELP:")
    stamp(e, 2, 14)

NLF, NLS = 4, 3
def w_prefetch(e, nsteps, NL, lds_base_sgpr, do_lds=True, rng=None):
    nsh = 8 if opt.map2 == 1 else 4
    per = -(-nsteps * 40 // nsh)
    if opt.gw: l2_prefetch(e, 84, nsteps * 40, nsh, f"s{sRB2}", nsh - 1, -(-per // 64))
    ld_w, ld_a, queue = gen_p2_stream(e, 'x', nsteps)
    for s_ in (range(NW) if rng is None else rng): ld_w(s_)
    if do_lds: w_lds(e, NL, lds_base_sgpr)

def w_gathers(e):
    nsh = 8 if opt.map2 == 1 else 4
    l2_prefetch(e, 84, 14 * 40, nsh, f"s{sRB2}", nsh - 1, 2 if nsh == 8 else 2)
    e(f"""s_mul_i32 s88, s86, 10
s_add_u32 s88, s88, 54
s_mul_i32 s81, s{sCB}, 94
s_add_u32 s88, s88, s81
s_mul_i32 s88, s88, 5120
s_add_u32 s88, s88, {WF_OFF}""")
    l2_prefetch(e, 88, 10 * 40, nsh, f"s{sRB2}", nsh - 1, 1)

def w_lds(e, NL, lds_base_sgpr, queue=None, throttle=None):
    for i in range(NL):
        if throttle is not None:
            e(f"s_cmp_eq_u32 s{sISU}, 1\ns_cbranch_scc0 L_thr_{throttle}{i}\ns_waitcnt vmcnt({opt.thr})\nL_thr_{throttle}{i}:")
        for dt in range(5):
            e(f"""s_add_u32 m0, s{lds_base_sgpr}, {i*5120 + dt*1024}
buffer_load_dwordx4 v1, s[{SWS}:{SWS+3}], s84 offen sc1 lds
s_add_u32 s84, s84, 1024""")
            if queue is not None: queue.append(('l', NW + i))
        wrap_w(e)

def ffn_w_prefetch(e):
    e(f"""s_mov_b32 s86, s84
s_mul_i32 s87, s86, 20480
s_mul_i32 s84, s{sCB}, 94
s_add_u32 s84, s84, s85
s_mul_i32 s84, s84, 5120
s_add_u32 s84, s84, {WF_OFF}
s_cmp_ge_u32 s86, 2
s_cselect_b32 s89, 13, 14""")
    rot_setup(e, 89, False)
    w_prefetch(e, 14, NLF, 87, do_lds=not opt.ldslate)
    if opt.sshelp:
        e(f"""s_cmp_eq_u32 s{sISU}, 1
s_cbranch_scc0 L_NOHELP
s_mul_i32 s80, s86, 10
s_add_u32 s80, s80, 54
s_lshl_b32 s80, s80, 2
s_lshl_b32 s81, s{sCB}, 9
s_add_u32 s80, s80, s81
s_add_u32 s88, s80, {WFLAG_OFF}
v_lshlrev_b32 v12, 2, v0""")
        poll_flags(e, 'HW', 12, 13, 88, 0x3ff)
        e(f"""s_mul_i32 s80, s86, 10
s_add_u32 s80, s80, {54 + NW}
s_mul_i32 s81, s{sCB}, 94
s_add_u32 s80, s80, s81
s_mul_i32 s80, s80, 5120
s_add_u32 s80, s80, {WF_OFF}
s_mul_i32 s81, s86, 15360
s_add_u32 s81, s81, {LDS_Y}""")
        for i in range(NLS):
            for dt in range(5):
                e(f"""s_add_u32 m0, s81, {i*5120 + dt*1024}
buffer_load_dwordx4 v1, s[{SWS}:{SWS+3}], s80 offen sc1 lds
s_add_u32 s80, s80, 1024""")
        e("L_NOHELP:")

def l2_prefetch(e, sbase, nlines, nshare, share_sgpr, share_mask, ninstr, vtmp=12, vdst=15):
    per = -(-nlines // nshare)
    e(f"""s_and_b32 s80, {share_sgpr}, {share_mask}
s_mul_i32 s80, s80, {per*128}
s_add_u32 s80, s80, s{sbase}
v_lshlrev_b32 v{vtmp}, 7, v0""")
    for i in range(ninstr):
        if i * 64 < per and per - i * 64 < 64:
            e(f"v_min_u32 v{vtmp}, {(per - i*64 - 1)*128}, v{vtmp}")
        e(f"buffer_load_dword v{vdst}, v{vtmp}, s[{SWS}:{SWS+3}], s80 offen sc1")
        if i * 64 + 64 < per: e(f"s_add_u32 s80, s80, 8192")

def gen_gather_setup(e, W=84, T='', start=1):
    e(f"""s_lshr_b32 s80, s2, 3
s_and_b32 s81, s80, 7
s_lshr_b32 s80, s80, 3
v_mov_b32 v17, 0x10000000
s_mov_b32 s{sGo}, {128*start}
s_mov_b32 s{sGinc}, 128
s_mov_b32 s{SG}, s{SX}
s_mov_b32 s{SG+1}, s{SX+1}
s_mov_b32 s{SG+2}, 2621440
s_mov_b32 s{SG+3}, 0x20000
s_cmp_eq_u32 s{W}, 0
s_cbranch_scc0 L_GS_1{T}
s_lshl_b32 s80, s80, 5
s_lshl_b32 s82, s{sRB}, 7
s_add_u32 s80, s80, s82
v_add_u32 v16, s80, v0
v_mul_u32_u24 v16, 1280, v16
v_cmp_gt_u32 vcc, 32, v0
v_cndmask_b32 v17, v17, v16, vcc
s_branch L_GS_done{T}
L_GS_1{T}:
s_cmp_ge_u32 s{W}, 3
s_cbranch_scc1 L_GS_done{T}
s_cmp_eq_u32 s{sISU}, 1
s_cbranch_scc1 L_GS_U{T}
s_cmp_eq_u32 s{W}, 1
s_cbranch_scc0 L_GS_done{T}
s_mov_b32 s{SG}, s{P_W1}
s_mov_b32 s{SG+1}, s{P_W1+1}
s_mov_b32 s{SG+2}, 2211840
s_mul_i32 s{sGo}, s{sJ}, 384
s_add_u32 s{sGo}, s{sGo}, {64*3456*start}
s_mov_b32 s{sGinc}, {64*3456}
v_mul_u32_u24 v16, 43, v0
v_lshrrev_b32 v16, 7, v16
v_mul_u32_u24 v15, 3, v16
v_sub_u32 v15, v0, v15
s_lshl_b32 s81, s81, 3
v_add_u32 v16, s81, v16
v_mul_u32_u24 v16, 3456, v16
v_lshlrev_b32 v15, 7, v15
v_add_u32 v16, v16, v15
v_cmp_gt_u32 vcc, 24, v0
v_cndmask_b32 v17, v17, v16, vcc
s_branch L_GS_done{T}
L_GS_U{T}:
s_cmp_eq_u32 s{W}, 1
s_cselect_b32 s{SG}, s{P_BRE}, s{P_BIM}
s_cselect_b32 s{SG+1}, s{P_BRE+1}, s{P_BIM+1}
s_mov_b32 s{SG+2}, 819200
s_mul_i32 s80, s{sJ}, 96
s_mul_i32 s81, s81, 12
s_add_u32 s80, s80, s81
v_add_u32 v16, s80, v0
v_min_u32 v16, 639, v16
v_mul_u32_u24 v16, 1280, v16
v_cmp_gt_u32 vcc, 12, v0
v_cndmask_b32 v17, v17, v16, vcc
L_GS_done{T}:""")
    if not opt.gloop: e("v_mov_b32 v17, 0x10000000")

def gen_unit_ids(e, W):
    e(f"""s_cmp_ge_u32 s2, 108
s_cbranch_scc1 L_UID_C
s_lshr_b32 s3, s2, 1
s_and_b32 s35, s2, 1
s_lshl_b32 s35, s35, 2
s_add_u32 s35, s35, s{W}
s_branch L_UID_done
L_UID_C:
s_sub_u32 s80, s2, 108
s_and_b32 s35, s80, 7
s_lshr_b32 s80, s80, 3
s_lshl_b32 s3, s80, 2
s_add_u32 s3, s3, s{W}
s_add_u32 s3, s3, 54
L_UID_done:""")

def gen_prep_gather(e, W=84):
    e(f"""s_cmp_ge_u32 s3, 54
s_cbranch_scc1 L_PG_C""")
    srd(e, STA, P_W2, 2211840)
    e(f"""v_mul_u32_u24 v10, 52, v0
v_lshrrev_b32 v10, 8, v10
v_mul_u32_u24 v11, 5, v10
v_sub_u32 v11, v0, v11
s_lshl_b32 s80, s{W}, 3
v_add_u32 v10, s80, v10
v_mul_u32_u24 v10, 1280, v10
v_lshlrev_b32 v11, 7, v11
v_add_u32 v10, v10, v11
v_mov_b32 v11, 0x10000000
v_cmp_gt_u32 vcc, 40, v0
v_cndmask_b32 v10, v11, v10, vcc
s_mul_i32 s80, s3, {32*1280}
s_and_b32 s81, s2, 1
s_mul_i32 s81, s81, 640
s_add_u32 s80, s80, s81
buffer_load_dword v18, v10, s[{STA}:{STA+3}], s80 offen
buffer_load_dword v18, v11, s[{STA}:{STA+3}], s80 offen
s_branch L_PG_done
L_PG_C:""")
    srd(e, STA, P_CRE, 819200)
    srd(e, STB, P_CIM, 819200)
    e(f"""s_mul_i32 s81, s35, 80
s_mul_i32 s80, s{W}, 20
s_add_u32 s81, s81, s80
v_add_u32 v10, s81, v0
v_mul_u32_u24 v10, 1280, v10
v_mov_b32 v11, 0x10000000
v_cmp_gt_u32 vcc, 20, v0
v_cndmask_b32 v10, v11, v10, vcc
s_sub_u32 s80, s3, 54
s_lshr_b32 s80, s80, 2
s_min_u32 s80, s80, 9
s_lshl_b32 s80, s80, 7
buffer_load_dword v18, v10, s[{STA}:{STA+3}], s80 offen
buffer_load_dword v18, v10, s[{STB}:{STB+3}], s80 offen
L_PG_done:""")

def gen_lambda_table(e, part):
    L1, L2, L4, L8, L16, L32, L48, L64, L128, L256, L512, L1024, C2 = 30, 32, 34, 36, 38, 40, 42, 44, 46, 48, 50, 52, 54
    if part == 0:
        e(f"""v_lshlrev_b32 v20, 16, v20
v_lshlrev_b32 v21, 16, v21
v_lshlrev_b32 v22, 16, v22
v_mul_f32 v23, 0x3fb8aa3b, v22
v_exp_f32 v23, v23
s_nop 0
v_cvt_pk_bf16_f32 v23, v23, v23
v_and_b32 v23, 0xffff0000, v23
v_mul_f32 v24, v23, v20
v_mul_f32 v25, v23, v21
v_mul_f32 v24, 0x3fb8aa3b, v24
v_exp_f32 v24, v24
v_mul_f32 v25, 0.15915494, v25
v_fract_f32 v25, v25
v_sin_f32 v26, v25
v_cos_f32 v27, v25
s_nop 0
v_mul_f32 v31, v24, v26
v_mul_f32 v30, v24, v27""")
        csq(e, L2, L1); csq(e, L4, L2); csq(e, L8, L4); csq(e, L16, L8); csq(e, L32, L16)
        cmul(e, L48, L32, L16, None)
        csq(e, L64, L32); csq(e, L128, L64)
        return
    csq(e, L256, L128); csq(e, L512, L256); csq(e, L1024, L512)
    e(f"""v_add_f32 v56, -1.0, v30
v_mul_f32 v57, v20, v20
v_fma_f32 v57, v21, v21, v57
v_rcp_f32 v57, v57
v_mul_f32 v58, v56, v20
v_fma_f32 v58, v31, v21, v58
v_mul_f32 v59, v31, v20
v_fma_f32 v59, -v56, v21, v59
v_add_f32 v57, v57, v57
v_mul_f32 v{C2}, v58, v57
v_mul_f32 v{C2+1}, v59, v57
v_mov_b32 v60, 1.0
v_mov_b32 v61, 0""")
    ents = [L1, L8, 60, L16, L32, L48, L64, L128, L512, L1024, C2]
    for i, r in enumerate(ents):
        e(f"ds_write_b64 v62, v[{r}:{r+1}] offset:{i*768}")
    e("s_waitcnt lgkmcnt(0)")

ACC = 64
SETA, SETB = 160, 200
def acc_ffn(ft, tt): return ACC + (ft * 4 + tt) * 4
def acc_u(i, tp): return ACC + (i * 6 + tp) * 4

def reads(kind, st, ks):
    L = []
    vX = 2 + ks
    if kind == 'F':
        xs = [f"ds_read_b128 {R(st + 4*t)}, v{vX} offset:{t*2048}" for t in range(4)]
        ws = []
        for ft in range(6):
            for h in range(2):
                ws.append(f"ds_read_b64_tr_b16 v[{st+16+4*ft+2*h}:{st+16+4*ft+2*h+1}], v{4+ft} offset:{ks*12288 + h*1536}")
        L = ws[:2] + xs + ws[2:]
    else:
        vW = 4 + ks
        xs = [f"ds_read_b128 {R(st + 4*t)}, v{vX} offset:{t*2048}" for t in range(4)]
        ws = [f"ds_read_b128 {R(st + 16 + 4*t)}, v{vW} offset:{t*2048}" for t in range(6)]
        L = [ws[0]] + xs + ws[1:]
    return L

def mfmas(kind, st, first=False):
    L = []
    for n in range(6):
        for t in range(4):
            if kind == 'F':
                d = acc_ffn(n, t)
                c = R(16 + 20 + 4*n) if first else R(d)
                L.append(f"v_mfma_f32_16x16x32_bf16 {R(d)}, {R(st+16+4*n)}, {R(st+4*t)}, {c}")
            else:
                d = acc_u(t, n)
                c = "0" if first else R(d)
                L.append(f"v_mfma_f32_16x16x32_bf16 {R(d)}, {R(st+4*t)}, {R(st+16+4*n)}, {c}")
    return L

def gen_prep_issue(e, W=84, D=116, T=''):
    e(f"""s_cmp_ge_u32 s3, 54
s_cbranch_scc1 L_PREP_C{T}""")
    srd(e, STA, P_W2, 2211840)
    e(f"""s_mul_i32 s80, s3, {32*1280}
s_mul_i32 s81, s35, 160
s_add_u32 s80, s80, s81
s_mul_i32 s81, s{W}, 5120
s_add_u32 s81, s81, {LDS_PREP}""")
    for n in range(5):
        e(f"""v_add_u32 v10, {64*n}, v0
v_mul_u32_u24 v11, 205, v10
v_lshrrev_b32 v11, 11, v11
v_mul_u32_u24 v12, 10, v11
v_sub_u32 v12, v10, v12
v_mul_u32_u24 v11, 1280, v11
v_lshlrev_b32 v12, 4, v12
v_add_u32 v11, v11, v12
s_add_u32 m0, s81, {n*1024}
buffer_load_dwordx4 v11, s[{STA}:{STA+3}], s80 offen lds""")
    e("v_mov_b32 v11, 0x10000000")
    for n in range(5):
        e(f"buffer_load_dword v{D}, v11, s[{STA}:{STA+3}], s80 offen")
    e(f"s_branch L_PREP_issued{T}")
    e(f"L_PREP_C{T}:")
    srd(e, STA, P_CRE, 819200)
    srd(e, STB, P_CIM, 819200)
    e(f"""v_and_b32 v10, 15, v0
v_mul_u32_u24 v10, 1280, v10
v_lshrrev_b32 v11, 4, v0
v_lshlrev_b32 v11, 3, v11
v_add_u32 v10, v10, v11
s_sub_u32 s80, s3, 54
s_min_u32 s80, s80, 39
s_lshl_b32 s80, s80, 5
s_mul_i32 s81, s35, {80*1280}
s_add_u32 s80, s80, s81""")
    for dt in range(5):
        e(f"buffer_load_dwordx2 v[{D+4*dt}:{D+1+4*dt}], v10, s[{STA}:{STA+3}], s80 offen")
        e(f"buffer_load_dwordx2 v[{D+2+4*dt}:{D+3+4*dt}], v10, s[{STB}:{STB+3}], s80 offen")
        if dt < 4: e(f"s_add_u32 s80, s80, {16*1280}")
    e(f"L_PREP_issued{T}:")

def gen_prep_finish(e, W=84, D=116, T=''):
    e(f"""s_cmp_ge_u32 s3, 54
s_cbranch_scc1 L_PF_store{T}
v_lshrrev_b32 v10, 4, v0
v_lshlrev_b32 v10, 2, v10
v_bfe_u32 v11, v0, 2, 2
v_add_u32 v10, v10, v11
v_mul_u32_u24 v10, 160, v10
v_and_b32 v11, 3, v0
v_lshlrev_b32 v11, 3, v11
v_add_u32 v10, v10, v11
s_mul_i32 s81, s{W}, 5120
s_add_u32 s81, s81, {LDS_PREP}
v_add_u32 v10, s81, v10""")
    for dt in range(5):
        for h in range(2):
            e(f"ds_read_b64_tr_b16 v[{D+4*dt+2*h}:{D+1+4*dt+2*h}], v10 offset:{dt*32 + h*16*160}")
    e("s_waitcnt lgkmcnt(0)")
    e(f"L_PF_store{T}:")
    e(f"""s_mul_i32 s80, s35, 94
s_add_u32 s80, s80, s3
s_mul_i32 s80, s80, 5120
s_add_u32 s80, s80, {WF_OFF}
v_lshlrev_b32 v10, 4, v0
v_mov_b32 v11, 0x10000000
s_cmp_ge_u32 s3, 94
s_cselect_b32 s81, 1, 0
v_mov_b32 v12, s81
v_cmp_eq_u32 vcc, 1, v12
v_cndmask_b32 v10, v10, v11, vcc""")
    for dt in range(5):
        if dt < 4:
            e(f"buffer_store_dwordx4 {R(D+4*dt)}, v10, s[{SWS}:{SWS+3}], s80 offen offset:{dt*1024} sc1")
        else:
            e(f"s_add_u32 s80, s80, 4096")
            e(f"buffer_store_dwordx4 {R(D+4*dt)}, v10, s[{SWS}:{SWS+3}], s80 offen sc1")

def gen_prep_flag(e):
    e(f"""s_lshl_b32 s80, s35, 9
s_lshl_b32 s81, s3, 2
s_add_u32 s80, s80, s81
s_add_u32 s80, s80, {WFLAG_OFF}
v_mov_b32 v10, s{sNONCE}
s_cmp_ge_u32 s3, 94
s_cselect_b32 s81, 0x10000000, 0
v_mov_b32 v11, s81
s_mov_b64 exec, 1
buffer_store_dword v10, v11, s[{SWS}:{SWS+3}], s80 offen sc0 sc1
s_mov_b64 exec, -1""")

def interleave2(e, A, B, per):
    bi = 0
    for i, a in enumerate(A):
        e(a)
        for _ in range(per[i] if i < len(per) else 0):
            if bi < len(B): e(B[bi]); bi += 1
    while bi < len(B):
        e(B[bi]); bi += 1

def gen_main_loop(e, kind):
    tag = kind
    naddr = [2, 3] + ([4, 5, 6, 7, 8, 9] if kind == 'F' else [4, 5])
    sIT, sDELTA, sSLOT = 86, 87, 88
    def adv_list():
        L = [f"s_add_u32 s{sSLOT}, s{sSLOT}, 1", f"s_cmp_eq_u32 s{sSLOT}, 3",
             f"s_cselect_b32 s{sDELTA}, s90, s89", f"s_cselect_b32 s{sSLOT}, 0, s{sSLOT}"]
        L += [f"v_add_u32 v{v}, s{sDELTA}, v{v}" for v in naddr]
        return L
    e(f"s_mov_b32 s{sIT}, 1\ns_mov_b32 s{sSLOT}, 0\ns_mov_b32 s89, {SLOT}\ns_mov_b32 s90, {-2*SLOT & 0xffffffff}")
    if opt.itstamps:
        e(f"s_memtime s[100:101]\ns_waitcnt lgkmcnt(0)\nv_writelane_b32 v250, s100, 10")
    e("s_waitcnt lgkmcnt(0)\ns_barrier")
    if opt.itstamps:
        e(f"s_memtime s[100:101]\ns_waitcnt lgkmcnt(0)\nv_writelane_b32 v250, s100, 0")
    for r in reads(kind, SETA, 0): e(r)
    if opt.plate: gen_prep_issue(e, sWAVE, 16, tag)
    e("s_waitcnt lgkmcnt(0)")
    rb = reads(kind, SETB, 1)
    items = rb + adv_list()
    nr = len(rb)
    def perlist(nr, nextra):
        per = [1] * 24
        rem = 24 - nr
        per = [1] * nr + [0] * rem
        k = nextra; i = nr
        while k > 0:
            per[i] += 1; k -= 1; i += 1
            if i == 24: i = max(nr, 8)
        return per
    interleave2(e, mfmas(kind, SETA, first=True), items, perlist(nr, len(items) - nr))
    e("s_waitcnt lgkmcnt(0)")
    e(f"L_ML_{tag}:")
    e("s_barrier")
    if opt.itstamps:
        e(f"s_memtime s[100:101]\ns_waitcnt lgkmcnt(0)\ns_mov_b32 m0, s{sIT}\nv_writelane_b32 v250, s100, m0")
    ra = reads(kind, SETA, 0)
    interleave2(e, mfmas(kind, SETB), ra, [1] * 24)
    if opt.plate:
        e(f"s_cmp_eq_u32 s{sIT}, {opt.pfin}\ns_cbranch_scc0 L_ML_h0_{tag}\ns_waitcnt vmcnt(0)")
        gen_prep_finish(e, sWAVE, 16, 'H' + tag)
        srd(e, STA, P_DBG, 256)
        e(f"buffer_load_dword v249, v248, s[{STA}:{STA+3}], 0 offen\nL_ML_h0_{tag}:")
    e(f"""s_cmp_eq_u32 s{sIT}, 1
s_cbranch_scc0 L_ML_h1_{tag}""")
    if not opt.plate: e(f"buffer_load_dword v249, v248, s[{STA}:{STA+3}], 0 offen")
    e(f"""L_ML_h1_{tag}:
s_cmp_eq_u32 s{sIT}, {opt.pfin + 2 if opt.plate else 4}
s_cbranch_scc0 L_ML_h2_{tag}
s_waitcnt vmcnt(0)
v_readfirstlane_b32 s{sNONCE}, v249
s_cmp_eq_u32 s{sNONCE}, 0
s_cbranch_scc0 L_ML_h2b_{tag}""")
    spin_nonce(e, 'H' + tag, 10)
    e(f"L_ML_h2b_{tag}:")
    gen_prep_flag(e)
    e(f"L_ML_h2_{tag}:")
    e("s_waitcnt lgkmcnt(0)")
    items = rb + adv_list() + [f"s_add_u32 s{sIT}, s{sIT}, 1", f"s_cmp_lt_u32 s{sIT}, 10"]
    interleave2(e, mfmas(kind, SETA), items, perlist(nr, len(items) - nr))
    e(f"""s_waitcnt lgkmcnt(0)
s_cbranch_scc1 L_ML_{tag}""")
    lds_count(e, 24, 10)
    e(f"""s_mul_i32 s87, s{sWAVE}, 10
s_add_u32 s87, s87, 54
s_lshl_b32 s89, s{sCB}, 9
s_lshl_b32 s90, s87, 2
s_add_u32 s89, s89, s90
s_add_u32 s35, s89, {WFLAG_OFF}
v_lshlrev_b32 v8, 2, v0
buffer_load_dword v1, v8, s[{SWS}:{SWS+3}], s35 offen sc1""")
    for m in mfmas(kind, SETB): e(m)
    if opt.itstamps:
        e(f"""s_memtime s[100:101]
s_waitcnt lgkmcnt(0)
v_writelane_b32 v250, s100, 11
s_lshl_b32 s98, s2, 3
s_add_u32 s98, s98, s{sWAVE}
s_lshl_b32 s98, s98, 6
s_add_u32 s98, s98, {STAMP_OFF + 0x40000}
v_lshlrev_b32 v251, 2, v0
s_mov_b64 exec, 0xffff
buffer_store_dword v250, v251, s[{SWS}:{SWS+3}], s98 offen
s_mov_b64 exec, -1""")

def tile_flag(e, tag):
    nyoung = 0
    if opt.wearly:
        ssm_w_setup(e, tag)
        nyoung = SSM_W_OPS()
    e(f"""s_waitcnt vmcnt({nyoung})
s_lshr_b32 s80, s{sWAVE}, 1
s_lshl_b32 s81, s{sRB}, 1
s_add_u32 s80, s80, s81
s_lshl_b32 s80, s80, 8
s_lshl_b32 s81, s{sCOL}, 1
s_and_b32 s82, s{sWAVE}, 1
s_add_u32 s81, s81, s82
s_lshl_b32 s82, s81, 2
s_cmp_ge_u32 s81, 18
s_cselect_b32 s81, 56, 0
s_add_u32 s80, s80, s82
s_add_u32 s80, s80, s81
s_add_u32 s80, s80, {TFLAG_OFF}
v_mov_b32 v10, s{sNONCE}
v_mov_b32 v11, 0
s_mov_b64 exec, 1
buffer_store_dword v10, v11, s[{SWS}:{SWS+3}], s80 offen sc0 sc1
s_mov_b64 exec, -1""")
    if opt.eprio: e("s_setprio 0")

def SSM_W_OPS():
    nsh = 8 if opt.map2 == 1 else 4
    ng = (-(-(-(-10 * 40 // nsh)) // 64)) if opt.gw else 0
    return NW * 5 + NLS * 5 + ng

def ssm_w_setup(e, tag, order=True, defer_lds=False):
    e(f"""s_waitcnt vmcnt({12 if order else 0})
s_mul_i32 s87, s{sWAVE}, 10
s_add_u32 s87, s87, 54
v_cmp_ne_u32 vcc, s{sNONCE}, v1
v_lshlrev_b32 v1, 4, v0
v_lshlrev_b32 v8, 2, v0
s_and_b32 s80, vcc_lo, 0x3ff
s_cbranch_scc0 L_SSM_wok{tag}""")
    poll_flags(e, 'SW' + tag, 8, 10, 35, 0x3ff)
    e(f"""L_SSM_wok{tag}:
s_mul_i32 s84, s{sCB}, 94
s_add_u32 s84, s84, s87
s_mul_i32 s84, s84, 5120
s_add_u32 s84, s84, {WF_OFF}
s_mul_i32 s85, s{sRB2}, 94
s_add_u32 s85, s85, s87
s_lshl_b32 s85, s85, 12
s_mul_i32 s88, s{sWAVE}, 15360
s_add_u32 s88, s88, {LDS_Y}
v_add_u32 v3, s88, v1""")
    rot_setup(e, 10, True)
    rot_act(e)
    if opt.sorder and order:
        e(f"s_cmp_eq_u32 s{sISU}, 1\ns_cbranch_scc1 L_SSM_noord{tag}")
        lds_wait_ge(e, 'O' + tag, 28, 4, 10)
        e(f"L_SSM_noord{tag}:")
    if opt.sprio: e(f"s_setprio {opt.sprio}")
    if opt.sshelp:
        w_prefetch(e, 10, NLS, 88, do_lds=False, rng=(range(opt.fswn) if defer_lds else None))
        if not defer_lds:
            e(f"s_cmp_eq_u32 s{sISU}, 1\ns_cbranch_scc1 L_SSM_skiplds{tag}")
            w_lds(e, NLS, 88)
            e(f"s_branch L_SSM_ldsdone{tag}\nL_SSM_skiplds{tag}:\ns_add_u32 s84, s84, {NLS*5120}\nL_SSM_ldsdone{tag}:")
    else:
        w_prefetch(e, 10, NLS, 88)

def x_addr_setup(e):
    e(f"""s_lshr_b32 s80, s{sWAVE}, 1
s_lshl_b32 s80, s80, 13
v_and_b32 v10, 15, v0
v_lshlrev_b32 v10, 7, v10
v_lshrrev_b32 v11, 4, v0
v_and_b32 v12, 7, v0
v_xor_b32 v11, v11, v12
v_lshlrev_b32 v11, 4, v11
v_add_u32 v10, v10, v11
v_add_u32 v2, s80, v10
v_xor_b32 v3, 64, v2""")

def p1_l2_prefetch(e, kind):
    e(f"""s_lshr_b32 s81, s2, 3
s_lshr_b32 s82, s81, 3
s_lshl_b32 s82, s82, 5
s_lshl_b32 s83, s{sRB}, 7
s_add_u32 s82, s82, s83
v_and_b32 v10, 31, v0
v_add_u32 v10, s82, v10
v_mul_u32_u24 v10, 1280, v10
v_lshrrev_b32 v11, 5, v0
s_lshl_b32 s83, s{sWAVE}, 1
s_add_u32 s83, s83, 2
v_add_u32 v11, s83, v11
v_lshlrev_b32 v11, 7, v11
v_add_u32 v10, v10, v11
buffer_load_dword v247, v10, s[{SX}:{SX+3}], 0 offen
s_and_b32 s81, s81, 7""")
    if kind == 'F':
        srd(e, STA, P_W1, 2211840)
        e(f"""s_lshl_b32 s83, s{sWAVE}, 6
v_add_u32 v10, s83, v0
v_mul_u32_u24 v11, 2731, v10
v_lshrrev_b32 v11, 16, v11
v_mul_u32_u24 v12, 24, v11
v_sub_u32 v12, v10, v12
v_mul_u32_u24 v13, 43, v12
v_lshrrev_b32 v13, 7, v13
v_mul_u32_u24 v10, 3, v13
v_sub_u32 v12, v12, v10
v_lshlrev_b32 v11, 6, v11
v_add_u32 v11, v11, v13
s_lshl_b32 s83, s81, 3
s_add_u32 s83, s83, 128
v_add_u32 v11, s83, v11
v_mul_u32_u24 v11, 3456, v11
v_lshlrev_b32 v12, 7, v12
v_add_u32 v11, v11, v12
s_mul_i32 s83, s{sJ}, 384
buffer_load_dword v247, v11, s[{STA}:{STA+3}], s83 offen""")
    else:
        e(f"""s_cmp_ge_u32 s{sWAVE}, 2
s_cselect_b32 s{STA}, s{P_BIM}, s{P_BRE}
s_cselect_b32 s{STA+1}, s{P_BIM+1}, s{P_BRE+1}
s_mov_b32 s{STA+2}, 819200
s_mov_b32 s{STA+3}, 0x20000
s_and_b32 s83, s{sWAVE}, 1
s_lshl_b32 s83, s83, 6
v_add_u32 v10, s83, v0
v_min_u32 v10, 95, v10
v_mul_u32_u24 v11, 171, v10
v_lshrrev_b32 v11, 11, v11
v_mul_u32_u24 v12, 12, v11
v_sub_u32 v12, v10, v12
s_mul_i32 s83, s{sJ}, 96
s_mul_i32 s82, s81, 12
s_add_u32 s83, s83, s82
v_add_u32 v12, s83, v12
v_min_u32 v12, 639, v12
v_mul_u32_u24 v12, 1280, v12
v_add_u32 v11, 2, v11
v_lshlrev_b32 v11, 7, v11
v_add_u32 v12, v12, v11
buffer_load_dword v247, v12, s[{STA}:{STA+3}], 0 offen""")

def consumer_start_loads(e, nbefore):
    gen_gather_setup(e, sWAVE, 'C', 0)
    ng = 10 if opt.gall else 3
    for _ in range(ng):
        e(f"buffer_load_dword v18, v17, s[{SG}:{SG+3}], s{sGo} offen\ns_add_u32 s{sGo}, s{sGo}, s{sGinc}")
    gen_unit_ids(e, sWAVE)
    if opt.gall or opt.plate == 2:
        gen_prep_gather(e, sWAVE)
    if not opt.plate: gen_prep_issue(e, sWAVE, 16)

def consumer_common_setup(e):
    srd(e, STA, P_DBG, 256)
    e("v_mov_b32 v248, 0")

def gen_consumer_ffn(e):
    e("L_CONS_F:")
    srd(e, STB, P_B1, 3456)
    e(f"""s_mul_i32 s80, s{sJ}, 384
s_and_b32 s81, s{sWAVE}, 1
s_mul_i32 s81, s81, 192
s_add_u32 s80, s80, s81
v_lshrrev_b32 v10, 4, v0
v_lshlrev_b32 v10, 3, v10""")
    for ft in range(6):
        e(f"buffer_load_dwordx2 v[{224+2*ft}:{225+2*ft}], v10, s[{STB}:{STB+3}], s80 offen offset:{32*ft}")

    x_addr_setup(e)
    e(f"""v_lshrrev_b32 v10, 4, v0
v_bfe_u32 v11, v0, 2, 2
v_lshlrev_b32 v12, 3, v10
v_add_u32 v12, v12, v11
v_mul_u32_u24 v12, 384, v12
v_bfe_u32 v13, v0, 3, 1
v_lshlrev_b32 v13, 1, v13
v_and_b32 v14, 1, v10
v_lshlrev_b32 v14, 2, v14
v_or_b32 v13, v13, v14
v_bfe_u32 v14, v0, 1, 1
s_and_b32 s81, s{sWAVE}, 1
s_mul_i32 s81, s81, 12
v_add_u32 v14, s81, v14
v_and_b32 v15, 1, v0
v_lshlrev_b32 v15, 3, v15
v_add_u32 v12, v12, v15
v_add_u32 v12, 16384, v12""")
    for ft in range(6):
        e(f"""v_add_u32 v10, {2*ft}, v14
v_xor_b32 v10, v10, v13
v_lshlrev_b32 v10, 4, v10
v_add_u32 v{4+ft}, v12, v10""")
    if opt.plate:
        e(f"s_waitcnt vmcnt(0)" if False else "s_waitcnt vmcnt(0)")
    else:
        e("s_waitcnt vmcnt(0)")
        gen_prep_finish(e, sWAVE, 16, 'F')
    consumer_common_setup(e)
    for ft in range(6):
        b = 36 + 4 * ft
        e(f"""v_lshlrev_b32 v{b}, 16, v{224+2*ft}
v_and_b32 v{b+1}, 0xffff0000, v{224+2*ft}
v_lshlrev_b32 v{b+2}, 16, v{225+2*ft}
v_and_b32 v{b+3}, 0xffff0000, v{225+2*ft}""")
    stamp(e, 0, 14)
    stamp_clk(e, 14, 14)
    dbgmax(e, 2)
    gen_main_loop(e, 'F')
    dbgmax(e, 3)
    if opt.eprio: e(f"s_setprio {opt.eprio}")
    stamp(e, 1, 14)
    stamp_clk(e, 15, 14)
    e(f"""s_lshr_b32 s80, s{sWAVE}, 1
s_lshl_b32 s81, s{sRB}, 1
s_add_u32 s80, s80, s81
s_mul_i32 s80, s80, 94
s_mul_i32 s81, s{sJ}, 6
s_add_u32 s80, s80, s81
s_and_b32 s81, s{sWAVE}, 1
s_mul_i32 s81, s81, 3
s_add_u32 s80, s80, s81
s_lshl_b32 s32, s80, 12
v_lshlrev_b32 v10, 4, v0""")
    k = 0
    OB = 196 if opt.fsw else SETA
    pend = []
    for u in range(3):
        for tt in range(4):
            o = OB + 4 * k; k += 1
            vals = [acc_ffn(2*u, tt), acc_ffn(2*u+1, tt)]
            tmp = 16 + 8 * (k & 1)
            for h, a in enumerate(vals):
                for r in range(4):
                    e(f"v_max_f32 v{tmp+4*h+r}, 0, v{a+r}")
            for h, a in enumerate(vals):
                for r in range(0, 4, 2):
                    e(f"v_pk_mul_f32 v[{a+r}:{a+r+1}], v[{a+r}:{a+r+1}], v[{tmp+4*h+r}:{tmp+4*h+r+1}]")
            for h, a in enumerate(vals):
                for r in range(0, 4, 2):
                    e(f"v_cvt_pk_bf16_f32 v{o+2*h+(r>>1)}, v{a+r}, v{a+r+1}")
            st_ = f"buffer_store_dwordx4 {R(o)}, v10, s[{SWS}:{SWS+3}], s32 offen offset:{tt*1024} sc1"
            if opt.fsw: pend.append(st_)
            else: e(st_)
        if u < 2:
            if opt.fsw: pend.append("s_add_u32 s32, s32, 4096")
            else: e("s_add_u32 s32, s32, 4096")
    if opt.fsw:
        ssm_w_setup(e, 'F', order=False, defer_lds=(opt.fsw == 2))
        e("v_lshlrev_b32 v10, 4, v0")
        for x in pend: e(x)
    lds_count(e, 16, 12)
    stamp(e, 2, 14)
    tile_flag(e, 'F')
    dbgmax(e, 4)
    stamp(e, 3, 14)
    if opt.fsw == 2:
        w_prefetch(e, 10, NLS, 88, do_lds=False, rng=range(opt.fswn, NW))
        w_lds(e, NLS, 88)
    e("s_branch L_SSM_P2b" if opt.fsw else "s_branch L_SSM_P2")

def gen_code_prefetch(e):
    e(f"""s_cmp_eq_u32 s{sWAVE}, 3
s_cbranch_scc0 L_CPF_done
s_getpc_b64 s[80:81]
L_CPF_pc:
s_sub_u32 s80, s80, L_CPF_pc-{NAME}
s_subb_u32 s81, s81, 0
s_lshr_b32 s82, s2, 3
s_lshl_b32 s82, s82, 11
v_and_b32 v10, 15, v0
v_lshlrev_b32 v10, 7, v10
v_add_u32 v10, s82, v10
v_min_u32 v10, L_CODE_END-{NAME}-4, v10
s_mov_b64 exec, 0xffff
global_load_dword v19, v10, s[80:81]
s_mov_b64 exec, -1
L_CPF_done:""")

def gen_consumer(e):
    dbgmax(e, 1)
    e(f"""v_mov_b32 v10, {LDS_FLAG}
v_mov_b32 v12, 0
v_mov_b32 v13, 0
v_mov_b32 v14, 0
v_mov_b32 v15, 0
ds_write_b128 v10, v[12:15]
ds_write_b128 v10, v[12:15] offset:16
ds_write_b128 v10, v[12:15] offset:32""")
    if opt.cpf: gen_code_prefetch(e)
    consumer_start_loads(e, 0)
    e(f"""s_cmp_eq_u32 s{sISU}, 1
s_cbranch_scc1 L_CONS_U""")
    gen_consumer_ffn(e)
    gen_consumer_u(e)

def pk(op, d, a, b, c=None, bsel=None, neg=False):
    assert bsel == 0, "op_sel hi-broadcast is unsafe next to MFMA (measured)"
    n = 3 if c is not None else 2
    sel = [0, bsel] + ([0] if c is not None else [])
    selh = [1, bsel] + ([1] if c is not None else [])
    s = f"{op} v[{d}:{d+1}], v[{a}:{a+1}], v[{b}:{b+1}]" + (f", v[{c}:{c+1}]" if c is not None else "")
    s += " op_sel:[" + ",".join(map(str, sel)) + "] op_sel_hi:[" + ",".join(map(str, selh)) + "]"
    if neg:
        ng = [0, 1] + ([0] if c is not None else [])
        s += " neg_lo:[" + ",".join(map(str, ng)) + "] neg_hi:[" + ",".join(map(str, ng)) + "]"
    return s

def gen_consumer_u(e):
    e("L_CONS_U:")
    x_addr_setup(e)
    e(f"""s_and_b32 s81, s{sWAVE}, 1
s_mul_i32 s81, s81, {96*128}
s_add_u32 s81, s81, 16384
v_add_u32 v4, s81, v10
v_xor_b32 v5, 64, v4""")
    if not opt.plate:
        e("s_waitcnt vmcnt(0)")
        gen_prep_finish(e, sWAVE, 16, 'U')
    consumer_common_setup(e)
    dbgmax(e, 2)
    stamp(e, 0, 14)
    gen_main_loop(e, 'U')
    dbgmax(e, 3)
    if opt.eprio: e(f"s_setprio {opt.eprio}")
    stamp(e, 1, 14)
    def K(ct, i): return 160 + 18 * ct + 2 * i
    LAM, L8, L16, L16Q, L64, L128, L512, L1024, C2 = range(9)
    ent = {LAM: 0, L8: 1, L16: 3, L64: 6, L128: 7, L512: 8, L1024: 9, C2: 10}
    e(f"""s_and_b32 s81, s{sWAVE}, 1
s_mul_i32 s81, s81, {48*8}
s_add_u32 s81, s81, {LDS_TAB}
v_and_b32 v10, 15, v0
v_lshlrev_b32 v10, 3, v10
v_add_u32 v10, s81, v10
v_lshrrev_b32 v11, 4, v0
v_mul_u32_u24 v11, 768, v11
v_add_u32 v11, v11, v10""")
    for ct in range(3):
        for k, en in ent.items():
            e(f"ds_read_b64 v[{K(ct,k)}:{K(ct,k)+1}], v10 offset:{en*768 + ct*128}")
        e(f"ds_read_b64 v[{K(ct,L16Q)}:{K(ct,L16Q)+1}], v11 offset:{2*768 + ct*128}")
    e("s_waitcnt lgkmcnt(0)")
    LI = [2, 252, 254]
    C2I = [16, 18, 20]
    for ct in range(3):
        e(f"v_mov_b32 v{LI[ct]}, v{K(ct, LAM)+1}")
    def U(n, ct, part):
        return acc_u(n >> 1, 2 * ct + part) + 2 * (n & 1)
    def Er(ct, s): return 16 + 8 * ct + 4 * s
    def Ei(ct, s): return 18 + 8 * ct + 4 * s
    for n in range(1, 8):
        src = (n - 1) & 1; dst = n & 1
        for ct in range(3):
            pr = U(0, ct, 0) if n == 1 else Er(ct, src)
            pi = U(0, ct, 1) if n == 1 else Ei(ct, src)
            e(pk("v_pk_fma_f32", Er(ct, dst), pr, K(ct, LAM), U(n, ct, 0), 0))
            e(pk("v_pk_fma_f32", Ei(ct, dst), pi, K(ct, LAM), U(n, ct, 1), 0))
        for ct in range(3):
            pr = U(0, ct, 0) if n == 1 else Er(ct, src)
            pi = U(0, ct, 1) if n == 1 else Ei(ct, src)
            e(pk("v_pk_fma_f32", Er(ct, dst), pi, LI[ct], Er(ct, dst), 0, neg=True))
            e(pk("v_pk_fma_f32", Ei(ct, dst), pr, LI[ct], Ei(ct, dst), 0))
    def LL(ct): return 16 + 8 * ct
    for ct in range(3):
        er, ei, l8 = Er(ct, 1), Ei(ct, 1), K(ct, L8)
        e(f"""v_fma_f32 v{LL(ct)}, v{l8}, v{er}, v{er+1}
v_fma_f32 v{LL(ct)+1}, v{l8}, v{ei}, v{ei+1}
v_fma_f32 v{LL(ct)}, -v{l8+1}, v{ei}, v{LL(ct)}
v_fma_f32 v{LL(ct)+1}, v{l8+1}, v{er}, v{LL(ct)+1}""")
    def G(ct, q): return 214 + 8 * ct + 2 * q
    for ct in range(3):
        for c in range(2):
            a, b, a2, b2 = G(ct, 0) + c, G(ct, 1) + c, G(ct, 2) + c, G(ct, 3) + c
            e(f"""v_mov_b32 v{a}, v{LL(ct)+c}
v_mov_b32 v{b}, v{LL(ct)+c}
v_permlane16_swap_b32 v{a}, v{b}
v_mov_b32 v{a2}, v{a}
v_mov_b32 v{b2}, v{b}
v_permlane32_swap_b32 v{a}, v{a2}
v_permlane32_swap_b32 v{b}, v{b2}""")
    for ct in range(3):
        cfma(e, G(ct, 1), K(ct, L16), G(ct, 0), G(ct, 1))
    for ct in range(3):
        cfma(e, G(ct, 2), K(ct, L16), G(ct, 1), G(ct, 2))
    for ct in range(3):
        cfma(e, G(ct, 3), K(ct, L16), G(ct, 2), G(ct, 3))
    e(f"""s_mov_b32 s80, 0xffff0000
s_mov_b32 s81, 0
s_mov_b32 s82, 0
s_mov_b32 s83, 0x0000ffff
s_mov_b32 s90, 0
s_mov_b32 s91, 0xffff0000""")
    for ct in range(3):
        for c in range(2):
            e(f"""v_cndmask_b32 v{LL(ct)+c}, 0, v{G(ct,0)+c}, s[80:81]
v_cndmask_b32 v{LL(ct)+c}, v{LL(ct)+c}, v{G(ct,1)+c}, s[82:83]
v_cndmask_b32 v{LL(ct)+c}, v{LL(ct)+c}, v{G(ct,2)+c}, s[90:91]""")
    e(f"""s_and_b32 s84, s{sWAVE}, 1
s_mul_i32 s85, s84, {48*8}
s_add_u32 s85, s85, {LDS_LX}
v_and_b32 v10, 15, v0
v_lshlrev_b32 v10, 3, v10
v_add_u32 v10, s85, v10
s_lshl_b32 s85, s84, 2
s_add_u32 s85, s85, {LDS_FLAG}
v_mov_b32 v11, s85
s_cmp_ge_u32 s{sWAVE}, 2
s_cbranch_scc1 L_U_wt1""")
    for ct in range(3):
        e(f"ds_write_b64 v10, v[{G(ct,3)}:{G(ct,3)+1}] offset:{ct*128}")
    e(f"""v_mov_b32 v12, 1
s_waitcnt lgkmcnt(0)
ds_write_b32 v11, v12
s_branch L_U_lb
L_U_wt1:
s_mov_b32 s85, 0
L_U_pairwait:
ds_read_b32 v12, v11
s_add_u32 s85, s85, 1
s_waitcnt lgkmcnt(0)
v_readfirstlane_b32 s86, v12
s_cmp_ge_u32 s85, {opt.spin_limit}
s_cbranch_scc1 L_U_pairok
s_cmp_eq_u32 s86, 0
s_cbranch_scc1 L_U_pairwait
L_U_pairok:""")
    for ct in range(3):
        e(f"ds_read_b64 v[{G(ct,0)}:{G(ct,0)+1}], v10 offset:{ct*128}")
    e("s_waitcnt lgkmcnt(0)")
    for ct in range(3):
        cfma(e, G(ct, 1), K(ct, L64), G(ct, 0), G(ct, 3))
    e(f"""s_mov_b32 s80, 0xffff0000
s_mov_b32 s81, 0
s_mov_b32 s82, 0
s_mov_b32 s83, 0x0000ffff
v_cndmask_b32 v240, v{G(0,1)}, v{G(1,1)}, s[80:81]
v_cndmask_b32 v241, v{G(0,1)+1}, v{G(1,1)+1}, s[80:81]
v_cndmask_b32 v240, v240, v{G(2,1)}, s[82:83]
v_cndmask_b32 v241, v241, v{G(2,1)+1}, s[82:83]
v_mov_b32 v242, s{sNONCE}
v_mov_b32 v243, s{sNONCE}
s_mul_i32 s85, s{sJ}, 16
s_add_u32 s85, s85, s{sRB}
s_mul_i32 s85, s85, 96
s_mul_i32 s86, s84, 48
s_add_u32 s85, s85, s86
s_lshl_b32 s85, s85, 4
s_add_u32 s85, s85, {AG_OFF}
v_lshlrev_b32 v12, 4, v0
s_mov_b32 exec_lo, -1
s_mov_b32 exec_hi, 0x0000ffff
buffer_store_dwordx4 v[240:243], v12, s[{SWS}:{SWS+3}], s85 offen sc0 sc1
s_mov_b64 exec, -1
L_U_lb:""")
    if not opt.udelay: lds_count(e, 16, 12)
    stamp(e, 2, 14)
    LB = 112 + 0
    lbregs = [40 + 4 * i for i in range(6)] + [240 + 4 * i for i in range(4)] + [32 + 0, 36]
    lbregs = [40 + 4 * i for i in range(6)] + [240, 244, 248] + [216, 224, 232]
    e(f"""s_mul_i32 s85, s{sJ}, {16*96}
s_mul_i32 s86, s84, 48
s_add_u32 s85, s85, s86
s_lshl_b32 s85, s85, 4
s_add_u32 s85, s85, {AG_OFF}
v_lshrrev_b32 v12, 4, v0
v_lshlrev_b32 v12, 2, v12
v_sub_u32 v12, s{sRB}, v12
v_mov_b32 v9, 0x10000000
v_and_b32 v13, 15, v0""")
    for m in range(4):
        e(f"""v_subrev_u32 v14, {1+m}, v12
v_cmp_le_i32 s[{88+2*m}:{89+2*m}], 0, v14
v_mul_u32_u24 v15, 96, v14
v_add_u32 v15, v15, v13
v_lshlrev_b32 v15, 4, v15
v_cndmask_b32 v{4+m}, v9, v15, s[{88+2*m}:{89+2*m}]""")
    C2J = [8, 10, 238]
    for ct in range(3):
        e(f"v_mov_b32 v{C2J[ct]}, v{K(ct, C2)+1}")
    tk = 0
    for n in range(8):
        for ct in range(3):
            ur, ui = U(n, ct, 0), U(n, ct, 1)
            ta, tb = 40 + 4 * (tk % 6), 42 + 4 * (tk % 6); tk += 1
            e(pk("v_pk_mul_f32", ta, ur, K(ct, C2), None, 0))
            e(pk("v_pk_mul_f32", tb, ur, C2J[ct], None, 0))
            e(pk("v_pk_fma_f32", ur, ui, C2J[ct], ta, 0, neg=True))
            e(pk("v_pk_fma_f32", ui, ui, K(ct, C2), tb, 0))
    CR = list(range(38, 52)) + [54]
    for k in range(15):
        e(f"s_mov_b32 s{CR[k]}, s{sNONCE}")
    e(f"""s_add_u32 s87, s85, {47*16 + 8}
s_mov_b32 s86, 0
L_U_cp:""")
    for k in range(15):
        e(f"""s_cmp_gt_u32 s{sRB}, {k}
s_cbranch_scc0 L_U_cpl
s_load_dword s{CR[k]}, s[{P_WS}:{P_WS+1}], s87 offset:{k*1536} glc""")
    e(f"""L_U_cpl:
s_add_u32 s86, s86, 1
s_waitcnt lgkmcnt(0)
s_mov_b32 s81, 0""")
    for k in range(15):
        e(f"s_xor_b32 s82, s{CR[k]}, s{sNONCE}\ns_or_b32 s81, s81, s82")
    e(f"""s_cmp_ge_u32 s86, {opt.spin_limit}
s_cbranch_scc1 L_U_cpok
s_cmp_eq_u32 s81, 0
s_cbranch_scc1 L_U_cpok
s_sleep 1
s_branch L_U_cp
L_U_cpok:""")
    stamp(e, 11, 14)
    e(f"s_mov_b32 s86, 0\nL_U_lbloop:")
    for m in range(4):
        for ct in range(3):
            r = lbregs[m * 3 + ct]
            e(f"buffer_load_dwordx4 {R(r)}, v{4+m}, s[{SWS}:{SWS+3}], s85 offen offset:{ct*256} sc1")
    e("s_add_u32 s86, s86, 1\ns_mov_b64 s[96:97], 0\ns_waitcnt vmcnt(0)")
    for m in range(4):
        for ct in range(3):
            r = lbregs[m * 3 + ct]
            e(f"""v_cmp_ne_u32 vcc, s{sNONCE}, v{r+2}
s_and_b64 vcc, vcc, s[{88+2*m}:{89+2*m}]
s_or_b64 s[96:97], s[96:97], vcc""")
    e(f"""s_cmp_ge_u32 s86, {opt.spin_limit}
s_cbranch_scc1 L_U_lbok
s_cmp_eq_u64 s[96:97], 0
s_cbranch_scc0 L_U_lbloop
L_U_lbok:""")
    if opt.udelay: lds_count(e, 16, 12)
    def S(m, ct): return lbregs[m * 3 + ct]
    for ct in range(3):
        cfma(e, S(2, ct), K(ct, L128), S(3, ct), S(2, ct))
    for ct in range(3):
        cfma(e, S(1, ct), K(ct, L128), S(2, ct), S(1, ct))
    for ct in range(3):
        cfma(e, S(0, ct), K(ct, L128), S(1, ct), S(0, ct))
    for ct in range(3):
        z, b, t, u = S(0, ct), S(1, ct), S(2, ct), S(3, ct)
        e(f"""v_mov_b32 v{b}, v{z}
v_mov_b32 v{b+1}, v{z+1}
v_permlane16_swap_b32 v{z}, v{b}
v_permlane16_swap_b32 v{z+1}, v{b+1}""")
        cfma(e, t, K(ct, L512), b, z)
        e(f"""v_mov_b32 v{u}, v{t}
v_mov_b32 v{u+1}, v{t+1}
v_permlane32_swap_b32 v{t}, v{u}
v_permlane32_swap_b32 v{t+1}, v{u+1}""")
        cfma(e, z, K(ct, L1024), u, t)
    e(f"s_cmp_ge_u32 s{sWAVE}, 2\ns_cbranch_scc0 L_U_hw0")
    for ct in range(3):
        cfma(e, S(1, ct), K(ct, L64), S(0, ct), G(ct, 0))
    e("s_branch L_U_hw1\nL_U_hw0:")
    for ct in range(3):
        e(f"v_mov_b32 v{S(1,ct)}, v{S(0,ct)}\nv_mov_b32 v{S(1,ct)+1}, v{S(0,ct)+1}")
    e("L_U_hw1:\ns_nop 1")
    for ct in range(3):
        cfma(e, S(2, ct), K(ct, L16Q), S(1, ct), LL(ct))
    for ct in range(3):
        hl, l8, er, ei = S(2, ct), K(ct, L8), Er(ct, 1), Ei(ct, 1)
        cr, ci = S(3, ct), S(3, ct) + 2
        e(f"""v_mov_b32 v{cr}, v{hl}
v_mov_b32 v{ci}, v{hl+1}
v_fma_f32 v{cr+1}, v{l8}, v{hl}, v{er}
v_fma_f32 v{ci+1}, v{l8}, v{hl+1}, v{ei}
v_fma_f32 v{cr+1}, -v{l8+1}, v{hl+1}, v{cr+1}
v_fma_f32 v{ci+1}, v{l8+1}, v{hl}, v{ci+1}""")
    for ct in range(3):
        cr, ci = S(3, ct), S(3, ct) + 2
        ta, tb = S(1, ct), S(1, ct) + 2
        e(pk("v_pk_mul_f32", ta, cr, K(ct, C2), None, 0))
        e(pk("v_pk_mul_f32", tb, cr, C2J[ct], None, 0))
    for ct in range(3):
        cr, ci = S(3, ct), S(3, ct) + 2
        ta, tb = S(1, ct), S(1, ct) + 2
        e(pk("v_pk_fma_f32", cr, ci, C2J[ct], ta, 0, neg=True))
        e(pk("v_pk_fma_f32", ci, ci, K(ct, C2), tb, 0))
    for n in range(8):
        for ct in range(3):
            pr = S(3, ct) if n == 0 else U(n - 1, ct, 0)
            pi = S(3, ct) + 2 if n == 0 else U(n - 1, ct, 1)
            e(pk("v_pk_fma_f32", U(n, ct, 0), pr, K(ct, LAM), U(n, ct, 0), 0))
            e(pk("v_pk_fma_f32", U(n, ct, 1), pi, K(ct, LAM), U(n, ct, 1), 0))
        for ct in range(3):
            pr = S(3, ct) if n == 0 else U(n - 1, ct, 0)
            pi = S(3, ct) + 2 if n == 0 else U(n - 1, ct, 1)
            e(pk("v_pk_fma_f32", U(n, ct, 0), pi, LI[ct], U(n, ct, 0), 0, neg=True))
            e(pk("v_pk_fma_f32", U(n, ct, 1), pr, LI[ct], U(n, ct, 1), 0))
    stamp(e, 3, 14)
    e(f"""v_and_b32 v10, 15, v0
v_lshrrev_b32 v11, 4, v0
v_lshlrev_b32 v11, 3, v11
v_sub_u32 v10, v10, v11""")
    e("v_mov_b32 v14, 0x3f80")
    for b in range(2):
        e(f"""v_add_u32 v12, {16*b}, v10
v_and_b32 v13, 1, v12
v_lshlrev_b32 v13, 4, v13
v_lshlrev_b32 v13, v13, v14
v_lshrrev_b32 v12, 1, v12
v_cmp_eq_u32 s[86:87], 0, v12
v_cmp_eq_u32 s[88:89], 1, v12
v_cmp_eq_u32 s[90:91], 2, v12
v_cmp_eq_u32 s[92:93], 3, v12
v_cndmask_b32 v{40+4*b}, 0, v13, s[86:87]
v_cndmask_b32 v{41+4*b}, 0, v13, s[88:89]
v_cndmask_b32 v{42+4*b}, 0, v13, s[90:91]
v_cndmask_b32 v{43+4*b}, 0, v13, s[92:93]""")
    e(f"""s_lshr_b32 s80, s{sWAVE}, 1
s_lshl_b32 s81, s{sRB}, 1
s_add_u32 s80, s80, s81
s_mul_i32 s80, s80, 94
s_mul_i32 s81, s{sJ}, 6
s_mul_i32 s82, s84, 3
s_add_u32 s81, s81, s82
s_add_u32 s80, s80, s81
s_add_u32 s80, s80, 54
s_lshl_b32 s80, s80, 12
v_lshlrev_b32 v10, 4, v0""")
    for ct in range(3):
        c2 = K(ct, C2)
        for i in range(4):
            r0, r1, i0, i1 = U(2*i, ct, 0), U(2*i+1, ct, 0), U(2*i, ct, 1), U(2*i+1, ct, 1)
            e(f"""v_cvt_pk_bf16_f32 v{48+i}, v{r0}, v{r1}
v_cvt_pk_bf16_f32 v{52+i}, v{r0+1}, v{r1+1}
v_cvt_pk_bf16_f32 v{56+i}, -v{i0}, -v{i1}
v_cvt_pk_bf16_f32 v{60+i}, -v{i0+1}, -v{i1+1}""")
        def D(part, tt): return 224 + 16 * part + 4 * tt
        for part in range(2):
            for a in range(2):
                for b in range(2):
                    A = 48 + 8 * part + 4 * a
                    e(f"v_mfma_f32_16x16x32_bf16 {R(D(part, 2*b+a))}, {R(A)}, {R(40+4*b)}, 0")
        if True:
            e(f"s_add_u32 s82, s81, {ct}\ns_cmp_ge_u32 s82, 40\ns_cbranch_scc1 L_U_skip{ct}")
            for tt in range(4):
                o = acc_u(tt, 2 * ct)
                dr, di = D(0, tt), D(1, tt)
                e(f"""v_cvt_pk_bf16_f32 v{o}, v{dr}, v{dr+1}
v_cvt_pk_bf16_f32 v{o+1}, v{dr+2}, v{dr+3}
v_cvt_pk_bf16_f32 v{o+2}, v{di}, v{di+1}
v_cvt_pk_bf16_f32 v{o+3}, v{di+2}, v{di+3}
buffer_store_dwordx4 {R(o)}, v10, s[{SWS}:{SWS+3}], s80 offen offset:{tt*1024} sc1""")
            e(f"L_U_skip{ct}:\ns_nop 7\ns_add_u32 s80, s80, 4096")
    if opt.uhold: lds_count(e, 32, 12)
    stamp(e, 4, 14)
    tile_flag(e, 'U')
    dbgmax(e, 4)
    stamp(e, 5, 14)
    e("s_branch L_SSM_P2")

ACC2 = 16
WSL = 96
ASL = 196
NW, NA = 5, 3
def set_nw(nw, na):
    global NW, NA, ASL
    NW, NA = nw, na
    ASL = WSL + 20 * nw
def acc2(dt, tt): return ACC2 + (dt * 4 + tt) * 4

def wrap_w(e):
    if not opt.rot: return
    e("""s_sub_u32 s91, s91, 1
s_cmp_eq_u32 s91, 0
s_cselect_b32 s95, s93, 0
s_sub_u32 s84, s84, s95""")

def wrap_a(e):
    if not opt.rot: return
    e("""s_sub_u32 s92, s92, 1
s_cmp_eq_u32 s92, 0
s_cselect_b32 s95, s94, 0
s_sub_u32 s85, s85, s95""")

def rot_setup(e, n_sgpr_or_const, is_const):
    if not opt.rot: return
    if opt.map2 == 1:
        e(f"""s_and_b32 s95, s{sCB}, 3
s_lshl_b32 s95, s95, 1
s_add_u32 s95, s95, s{sRB2}
s_and_b32 s95, s95, 7""")
    else:
        e(f"""s_and_b32 s95, s{sRB2}, 3
s_lshl_b32 s95, s95, 1
s_add_u32 s95, s95, s{sCB}
s_and_b32 s95, s95, 7""")
    n = f"{n_sgpr_or_const}" if is_const else f"s{n_sgpr_or_const}"
    e(f"""s_mul_i32 s90, s95, {n}
s_lshr_b32 s90, s90, 3
s_sub_u32 s91, {n}, s90
s_mov_b32 s92, s91
s_mul_i32 s93, {n}, 5120
s_mul_i32 s94, {n}, 4096
s_mul_i32 s95, s90, 5120
s_add_u32 s84, s84, s95""")

def rot_act(e):
    if not opt.rot: return
    e("""s_lshl_b32 s95, s90, 12
s_add_u32 s85, s85, s95""")

def gen_p2_stream(e, tag, nsteps, extra_hook=None):
    queue = []
    SC = '' if opt.nosc1 else 'sc1'
    def ld_w(s):
        b = WSL + 20 * (s % NW)
        for dt in range(5):
            if dt < 4:
                e(f"buffer_load_dwordx4 {R(b+4*dt)}, v1, s[{SWS}:{SWS+3}], s84 offen offset:{dt*1024} {SC}")
            else:
                e(f"s_add_u32 s84, s84, 4096")
                e(f"buffer_load_dwordx4 {R(b+4*dt)}, v1, s[{SWS}:{SWS+3}], s84 offen {SC}")
                e(f"s_add_u32 s84, s84, 1024")
            queue.append(('w', s))
        wrap_w(e)
    def ld_a(s):
        b = ASL + 16 * (s % NA)
        for tt in range(4):
            e(f"buffer_load_dwordx4 {R(b+4*tt)}, v1, s[{SWS}:{SWS+3}], s85 offen offset:{tt*1024} {SC}")
            queue.append(('a', s))
        e(f"s_add_u32 s85, s85, 4096")
        wrap_a(e)
    return ld_w, ld_a, queue

def p2_role(e, tag, nsteps):
    pass

def emit_stream(e, nsteps, ld_w, ld_a, queue, NL, vL, late_lds=None, sig20=False):
    if opt.ststamps:
        e(f"s_memtime s[100:101]\ns_waitcnt lgkmcnt(0)\nv_writelane_b32 v250, s100, 0")
    for s in range(min(NA, nsteps)): ld_a(s)
    if late_lds is not None: w_lds(e, NL, late_lds, queue)
    for s in range(nsteps):
        idx = [i for i, q in enumerate(queue) if q in (('w', s), ('a', s))]
        inlds = NW <= s < NW + NL
        if idx:
            last = max(idx)
            n = len(queue) - 1 - last
            e(f"s_waitcnt vmcnt({n})" + (" lgkmcnt(0)" if inlds else ""))
            del queue[:last + 1]
        elif inlds:
            e("s_waitcnt lgkmcnt(0)")
        if sig20 and s == 0 and opt.sshelp: lds_count(e, 20, 10)
        if opt.ststamps:
            e(f"s_memtime s[100:101]\ns_waitcnt lgkmcnt(0)\nv_writelane_b32 v250, s100, {s+1}")
        wb = WSL + 20 * (s % NW); ab = ASL + 16 * (s % NA)
        for dt in range(5):
            for tt in range(4):
                d = acc2(dt, tt)
                c = R(d)
                e(f"v_mfma_f32_16x16x32_bf16 {R(d)}, {R(wb+4*dt)}, {R(ab+4*tt)}, {c}")
        if s + NA < nsteps: ld_a(s + NA)
        t = s + NW
        if t < nsteps and t >= NW + NL:
            ld_w(t)
        t = s + 2
        if NW <= t < min(NW + NL, nsteps):
            li = [i for i, q in enumerate(queue) if q == ('l', t)]
            if li:
                e(f"s_waitcnt vmcnt({len(queue) - 1 - max(li)})")
                del queue[:max(li) + 1]
            for dt in range(5):
                e(f"ds_read_b128 {R(WSL + 20*(t % NW) + 4*dt)}, v{vL} offset:{(t-NW)*5120 + dt*1024}")

def spoll_tiles(e, tag, kind, sleep=1):
    off = 0 if kind == 'F' else 128
    n = 18 if kind == 'F' else 14
    e(f"""s_lshl_b32 s89, s{sRB2}, 8
s_add_u32 s89, s89, {TFLAG_OFF + off}
s_mov_b32 s80, 0
L_sp_{tag}:""")
    if kind == 'F':
        e(f"s_load_dwordx16 s[40:55], s[{P_WS}:{P_WS+1}], s89 glc")
        e(f"s_load_dwordx2 s[56:57], s[{P_WS}:{P_WS+1}], s89 offset:64 glc")
        regs = list(range(40, 58))
    else:
        e(f"s_load_dwordx8 s[40:47], s[{P_WS}:{P_WS+1}], s89 glc")
        e(f"s_load_dwordx4 s[48:51], s[{P_WS}:{P_WS+1}], s89 offset:32 glc")
        e(f"s_load_dwordx2 s[54:55], s[{P_WS}:{P_WS+1}], s89 offset:48 glc")
        regs = list(range(40, 52)) + [54, 55]
    e("s_add_u32 s80, s80, 1\ns_waitcnt lgkmcnt(0)\ns_mov_b32 s81, 0")
    for r_ in regs:
        e(f"s_xor_b32 s82, s{r_}, s{sNONCE}\ns_or_b32 s81, s81, s82")
    e(f"""s_cmp_ge_u32 s80, {opt.spin_limit}
s_cbranch_scc1 L_sp_done_{tag}
s_cmp_eq_u32 s81, 0
s_cbranch_scc1 L_sp_done_{tag}
s_sleep {sleep}
s_branch L_sp_{tag}
L_sp_done_{tag}:""")

def ffn_acc_loads(e):
    srd(e, STA, P_B2, 1280)
    e(f"""v_lshrrev_b32 v4, 4, v0
v_lshlrev_b32 v4, 3, v4
v_mov_b32 v5, 0x10000000
s_cmp_eq_u32 s86, 0
s_cselect_b32 s80, 0, 1
v_mov_b32 v6, s80
v_cmp_eq_u32 vcc, 1, v6
v_cndmask_b32 v4, v4, v5, vcc
s_mul_i32 s81, s{sCB}, 160""")
    for dt in range(5):
        e(f"buffer_load_dwordx2 v[{244+2*dt}:{245+2*dt}], v4, s[{STA}:{STA+3}], s81 offen offset:{32*dt}")

def ffn_acc_init(e):
    for dt in range(5):
        b = acc2(dt, 0)
        e(f"""v_lshlrev_b32 v{b}, 16, v{244+2*dt}
v_and_b32 v{b+1}, 0xffff0000, v{244+2*dt}
v_lshlrev_b32 v{b+2}, 16, v{245+2*dt}
v_and_b32 v{b+3}, 0xffff0000, v{245+2*dt}""")
        for tt in range(1, 4):
            for r in range(4):
                e(f"v_mov_b32 v{acc2(dt,tt)+r}, v{b+r}")

def ssm_pre(e):
    e(f"""s_lshr_b32 s80, s{sWAVE}, 1
s_lshl_b32 s80, s80, 5
s_and_b32 s81, s{sWAVE}, 1
s_lshl_b32 s81, s81, 3
s_add_u32 s80, s80, s81
s_lshl_b32 s81, s{sRB2}, 6
s_add_u32 s80, s80, s81
v_bfe_u32 v4, v0, 3, 1
v_lshlrev_b32 v4, 4, v4
v_and_b32 v5, 7, v0
v_add_u32 v4, v4, v5
v_add_u32 v4, s80, v4
v_lshrrev_b32 v5, 4, v0
v_lshlrev_b32 v6, 3, v5
s_mul_i32 s81, s{sCB}, 160
v_mul_u32_u24 v7, 1280, v4
v_add_u32 v7, v7, v6
v_lshlrev_b32 v8, 3, v4
v_mul_u32_u24 v248, 2560, v4
v_lshlrev_b32 v5, 4, v5
v_add_u32 v248, v248, v5""")
    XR, DK = 196, 206
    srd(e, STA, P_AX, 2621440)
    for dt in range(5):
        e(f"buffer_load_dwordx2 v[{XR+2*dt}:{XR+2*dt+1}], v7, s[{STA}:{STA+3}], s81 offen offset:{32*dt}")
    srd(e, STB, P_DSK, 1280)
    for dt in range(5):
        e(f"buffer_load_dwordx2 v[{DK+2*dt}:{DK+2*dt+1}], v6, s[{STB}:{STB+3}], s81 offen offset:{32*dt}")
    e(f"""s_mov_b32 s82, {G_OFF}
buffer_load_dwordx2 v[244:245], v8, s[{SWS}:{SWS+3}], s82 offen sc1""")
    for i in range(80):
        e(f"v_mov_b32 v{ACC2+i}, 0")
    e(f"""s_waitcnt vmcnt(0)
s_mov_b32 s80, 0
L_G_chk:
v_cmp_ne_u32 vcc, s{sNONCE}, v245
s_add_u32 s80, s80, 1
s_cmp_ge_u32 s80, {opt.spin_limit}
s_cbranch_scc1 L_G_ok
s_cmp_eq_u64 vcc, 0
s_cbranch_scc1 L_G_ok
s_sleep 2
buffer_load_dwordx2 v[244:245], v8, s[{SWS}:{SWS+3}], s82 offen sc1
s_waitcnt vmcnt(0)
s_branch L_G_chk
L_G_ok:
v_sub_f32 v246, 1.0, v244
v_cvt_pk_bf16_f32 v246, v246, v246
v_and_b32 v246, 0xffff0000, v246""")
    for dt in range(5):
        T = 216 + 4 * dt
        e(f"""v_lshlrev_b32 v10, 16, v{XR+2*dt}
v_and_b32 v11, 0xffff0000, v{XR+2*dt}
v_lshlrev_b32 v12, 16, v{XR+2*dt+1}
v_and_b32 v13, 0xffff0000, v{XR+2*dt+1}
v_lshlrev_b32 v{T}, 16, v{DK+2*dt}
v_and_b32 v{T+1}, 0xffff0000, v{DK+2*dt}
v_lshlrev_b32 v{T+2}, 16, v{DK+2*dt+1}
v_and_b32 v{T+3}, 0xffff0000, v{DK+2*dt+1}
v_mul_f32 v{T}, v{T}, v10
v_mul_f32 v{T+1}, v{T+1}, v11
v_mul_f32 v{T+2}, v{T+2}, v12
v_mul_f32 v{T+3}, v{T+3}, v13""")
    for w in range(4):
        e(f"s_cmp_eq_u32 s{sWAVE}, {w}\ns_cbranch_scc0 L_PRE_{w}")
        for dt in range(5):
            for r in range(4):
                e(f"v_mov_b32 v{acc2(dt,w)+r}, v{216+4*dt+r}")
        e(f"L_PRE_{w}:")

def lds_signal(e, off, vt):
    e(f"""v_mov_b32 v{vt}, {LDS_FLAG + off}
v_mov_b32 v{vt+1}, 1
ds_write_b32 v{vt}, v{vt+1}""")

def lds_count(e, off, vt):
    e(f"""v_mov_b32 v{vt}, {LDS_FLAG + off}
v_mov_b32 v{vt+1}, 1
s_mov_b64 exec, 1
ds_add_u32 v{vt}, v{vt+1}
s_mov_b64 exec, -1""")

def lds_wait_ge(e, tag, off, n, vt):
    e(f"""v_mov_b32 v{vt}, {LDS_FLAG + off}
s_mov_b32 s80, 0
L_lwg_{tag}:
ds_read_b32 v{vt+1}, v{vt}
s_add_u32 s80, s80, 1
s_waitcnt lgkmcnt(0)
v_readfirstlane_b32 s81, v{vt+1}
s_cmp_ge_u32 s80, {opt.spin_limit * 4}
s_cbranch_scc1 L_lwg_done_{tag}
s_cmp_ge_u32 s81, {n}
s_cbranch_scc1 L_lwg_done_{tag}
s_sleep 1
s_branch L_lwg_{tag}
L_lwg_done_{tag}:""")

def lds_wait(e, tag, off, vt):
    e(f"""v_mov_b32 v{vt}, {LDS_FLAG + off}
s_mov_b32 s80, 0
L_lw_{tag}:
ds_read_b32 v{vt+1}, v{vt}
s_add_u32 s80, s80, 1
s_waitcnt lgkmcnt(0)
v_readfirstlane_b32 s81, v{vt+1}
s_cmp_ge_u32 s80, {opt.spin_limit * 4}
s_cbranch_scc1 L_lw_done_{tag}
s_cmp_eq_u32 s81, 0
s_cbranch_scc0 L_lw_done_{tag}
s_sleep 1
s_branch L_lw_{tag}
L_lw_done_{tag}:""")

def gen_p2(e):
    e("L_FFN_P2:")
    e(f"""s_mul_i32 s80, s{sRB2}, 94
s_add_u32 s85, s85, s80
s_lshl_b32 s85, s85, 12
v_add_u32 v3, s87, v1""")
    rot_act(e)
    e(f"""s_mov_b32 s88, s84
s_mov_b32 s84, s86""")
    nsh_ = 8 if opt.map2 == 1 else 4
    ng_ = (-(-(-(-14 * 40 // nsh_)) // 64)) if opt.gw else 0
    e(f"s_waitcnt vmcnt({NLF*5})")
    gen_gate_compute(e)
    e("s_mov_b32 s84, s88")
    ffn_acc_init(e)
    ld_w, ld_a, queue = gen_p2_stream(e, 'F', 14)
    stamp(e, 3, 14)
    e(f"s_cmp_eq_u32 s86, 0\ns_cbranch_scc0 L_FFN_lw")
    spoll_tiles(e, 'FT', 'F')
    lds_signal(e, 8, 10)
    e("s_branch L_FFN_go\nL_FFN_lw:")
    lds_wait(e, 'F', 8, 10)
    e("L_FFN_go:")
    if opt.uhold:
        e(f"s_cmp_eq_u32 s{sISU}, 1\ns_cbranch_scc0 L_FFN_nohold")
        lds_wait_ge(e, 'UH', 32, 4, 10)
        e("L_FFN_nohold:")
    if opt.prio: e(f"s_setprio {opt.prio}")
    stamp(e, 4, 14)
    if opt.l2pf2: l2_prefetch(e, 85, 14 * 32, 4 if opt.map2 == 1 else 8, f"s{sCB}", 3 if opt.map2 == 1 else 7, 2 if opt.map2 == 1 else 1)
    del queue[:]
    e(f"s_cmp_ge_u32 s86, 2\ns_cbranch_scc1 L_FFN_13")
    emit_stream(e, 14, ld_w, ld_a, queue, NLF, 3, 87 if opt.ldslate else None, sig20=True)
    e("s_branch L_FFN_done")
    e("L_FFN_13:")
    del queue[:]
    emit_stream(e, 13, ld_w, ld_a, queue, NLF, 3, 87 if opt.ldslate else None, sig20=True)
    e("L_FFN_done:")
    if opt.ststamps:
        e(f"""s_memtime s[100:101]
s_waitcnt lgkmcnt(0)
v_writelane_b32 v250, s100, 15
s_lshl_b32 s98, s2, 3
s_add_u32 s98, s98, s{sWAVE}
s_lshl_b32 s98, s98, 6
s_add_u32 s98, s98, {STAMP_OFF + 0x40000}
v_lshlrev_b32 v251, 2, v0
s_mov_b64 exec, 0xffff
buffer_store_dword v250, v251, s[{SWS}:{SWS+3}], s98 offen
s_mov_b64 exec, -1""")
    stamp(e, 5, 14)
    e(f"""s_mul_i32 s80, s86, 20480
v_add_u32 v2, s80, v1""")
    for tt in range(4):
        for dt in range(5):
            e(f"ds_write_b128 v2, {R(acc2(dt,tt))} offset:{LDS_F + (tt*5+dt)*1024}")
    e("s_waitcnt lgkmcnt(0)\ns_barrier")
    stamp(e, 6, 14)
    e("s_branch L_END")
    e("L_SSM_P2:")
    if not opt.wearly: ssm_w_setup(e, 'P')
    e("L_SSM_P2b:")
    ssm_pre(e)
    ld_w, ld_a, queue = gen_p2_stream(e, 'S', 10)
    stamp(e, 6, 14)
    e(f"s_cmp_eq_u32 s{sWAVE}, 0\ns_cbranch_scc0 L_SSM_lw")
    spoll_tiles(e, 'ST', 'S')
    e('s_waitcnt vmcnt(0)')
    lds_signal(e, 12, 10)
    e("s_branch L_SSM_go\nL_SSM_lw:\ns_waitcnt vmcnt(0)")
    lds_wait(e, 'S', 12, 10)
    e("L_SSM_go:")
    if opt.sshelp:
        e(f"s_cmp_eq_u32 s{sISU}, 1\ns_cbranch_scc0 L_SSM_nohw")
        lds_wait_ge(e, 'H', 20, 4, 10)
        e("L_SSM_nohw:")
    stamp(e, 7, 14)
    dbgmax(e, 5)
    if opt.l2pf2: l2_prefetch(e, 85, 10 * 32, 4 if opt.map2 == 1 else 8, f"s{sCB}", 3 if opt.map2 == 1 else 7, 2 if opt.map2 == 1 else 1)
    del queue[:]
    emit_stream(e, 10, ld_w, ld_a, queue, NLS, 3)
    if opt.ststamps:
        e(f"""s_memtime s[100:101]
s_waitcnt lgkmcnt(0)
v_writelane_b32 v250, s100, 15
s_lshl_b32 s98, s2, 3
s_add_u32 s98, s98, s{sWAVE}
s_lshl_b32 s98, s98, 6
s_add_u32 s98, s98, {STAMP_OFF + 0x40000}
v_lshlrev_b32 v251, 2, v0
s_mov_b64 exec, 0xffff
buffer_store_dword v250, v251, s[{SWS}:{SWS+3}], s98 offen
s_mov_b64 exec, -1""")
    stamp(e, 8, 14)
    dbgmax(e, 6)
    e(f"""s_mul_i32 s83, s{sWAVE}, 15360
s_add_u32 s83, s83, {LDS_Y}
v_add_u32 v7, s83, v1""")
    OWN = 130
    for w in range(4):
        e(f"s_cmp_eq_u32 s{sWAVE}, {w}\ns_cbranch_scc0 L_YW_{w}")
        sl = 0
        for tt in range(4):
            if tt == w: continue
            for dt in range(5):
                e(f"ds_write_b128 v7, {R(acc2(dt,tt))} offset:{sl * 5120 + dt * 1024}")
            sl += 1
        for dt in range(5):
            for r in range(4):
                e(f"v_mov_b32 v{OWN+4*dt+r}, v{acc2(dt,w)+r}")
        e(f"s_branch L_YW_done\nL_YW_{w}:")
    e("L_YW_done:")
    for k in range(3):
        e(f"""s_cmp_ge_u32 {k}, s{sWAVE}
s_cselect_b32 s80, {k+1}, {k}
s_cselect_b32 s81, 0, 1
s_sub_u32 s81, s{sWAVE}, s81
s_mul_i32 s80, s80, 15360
s_mul_i32 s81, s81, 5120
s_add_u32 s80, s80, s81
s_add_u32 s80, s80, {LDS_Y}
v_add_u32 v{8+k}, s80, v1""")
    e(f"""s_mul_i32 s80, s{sWAVE}, 5120
v_add_u32 v11, s80, v1
v_add_u32 v12, 40960, v11""")
    srd(e, SOUT, P_OUT, 5242880)
    e(f"s_mul_i32 s81, s{sCB}, 320")
    e("s_waitcnt lgkmcnt(0)\ns_barrier")
    stamp(e, 9, 14)
    YR, FR = 16, 150
    for dt in range(5):
        for k in range(3):
            e(f"ds_read_b128 {R(YR+20*k+4*dt)}, v{8+k} offset:{dt*1024}")
        for w2 in range(4):
            e(f"ds_read_b128 {R(FR+20*w2+4*dt)}, v{11+(w2>>1)} offset:{(w2&1)*20480 + dt*1024}")
    for dt in range(5):
        e(f"s_waitcnt lgkmcnt({min(15, 7*(4-dt))})")
        y, f = OWN + 4 * dt, FR + 4 * dt
        t1, t2 = 80 + 0, 84
        A = 96 + 4 * dt
        for r in range(0, 4, 2):
            e(f"v_pk_add_f32 v[{YR+4*dt+r}:{YR+4*dt+r+1}], v[{YR+4*dt+r}:{YR+4*dt+r+1}], v[{YR+20+4*dt+r}:{YR+20+4*dt+r+1}]")
            e(f"v_pk_add_f32 v[{y+r}:{y+r+1}], v[{y+r}:{y+r+1}], v[{YR+40+4*dt+r}:{YR+40+4*dt+r+1}]")
            e(f"v_pk_add_f32 v[{f+r}:{f+r+1}], v[{f+r}:{f+r+1}], v[{f+20+r}:{f+20+r+1}]")
            e(f"v_pk_add_f32 v[{f+40+r}:{f+40+r+1}], v[{f+40+r}:{f+40+r+1}], v[{f+60+r}:{f+60+r+1}]")
        B_ = 76 + 0
        for r in range(0, 4, 2):
            e(f"v_pk_add_f32 v[{YR+20+4*dt+r}:{YR+20+4*dt+r+1}], v[{y+r}:{y+r+1}], v[{YR+4*dt+r}:{YR+4*dt+r+1}]")
            e(f"v_pk_add_f32 v[{f+20+r}:{f+20+r+1}], v[{f+r}:{f+r+1}], v[{f+40+r}:{f+40+r+1}]")
        for r in range(0, 4, 2):
            e(f"v_pk_mul_f32 v[{YR+40+4*dt+r}:{YR+40+4*dt+r+1}], v[{YR+20+4*dt+r}:{YR+20+4*dt+r+1}], v[244:245] op_sel:[0,0] op_sel_hi:[1,0]")
        for r in range(0, 4, 2):
            e(f"v_pk_fma_f32 v[{A+r}:{A+r+1}], v[{f+20+r}:{f+20+r+1}], v[246:247], v[{YR+40+4*dt+r}:{YR+40+4*dt+r+1}] op_sel:[0,0,0] op_sel_hi:[1,0,1]")
        e(f"buffer_store_dwordx4 {R(A)}, v248, s[{SOUT}:{SOUT+3}], s81 offen offset:{dt*64} {['', 'sc1', 'nt', 'sc0 sc1'][opt.osc]}")
    stamp(e, 10, 14)
    if opt.dbgtime: e("s_waitcnt vmcnt(0)")
    dbgmax(e, 7)
    e("s_branch L_END")

def gen_gate_loads(e, W=84):
    srd(e, STA, P_GW, 1280)
    srd(e, STB, P_AX, 2621440)
    e(f"""v_lshlrev_b32 v12, 4, v0
v_lshlrev_b32 v13, 2, v0
s_lshl_b32 s80, s2, 3
s_lshl_b32 s81, s{W}, 1
s_add_u32 s80, s80, s81
s_mul_i32 s81, s80, 1280
s_add_u32 s82, s81, 1280
buffer_load_dwordx4 v[16:19], v12, s[{STA}:{STA+3}], 0 offen
buffer_load_dword v20, v13, s[{STA}:{STA+3}], 0 offen offset:1024
buffer_load_dwordx4 v[22:25], v12, s[{STB}:{STB+3}], s81 offen
buffer_load_dword v26, v13, s[{STB}:{STB+3}], s81 offen offset:1024
buffer_load_dwordx4 v[28:31], v12, s[{STB}:{STB+3}], s82 offen
buffer_load_dword v32, v13, s[{STB}:{STB+3}], s82 offen offset:1024""")

def gen_gate_compute(e):
    e("v_mov_b32 v40, 0\nv_mov_b32 v41, 0")
    for m in range(5):
        e(f"""v_lshlrev_b32 v36, 16, v{16+m}
v_and_b32 v37, 0xffff0000, v{16+m}""")
        for row in range(2):
            x = 22 + 6 * row + m
            e(f"""v_lshlrev_b32 v38, 16, v{x}
v_and_b32 v39, 0xffff0000, v{x}
v_mul_f32 v38, v38, v36
v_mul_f32 v39, v39, v37
v_cvt_pk_bf16_f32 v38, v38, v39
v_lshlrev_b32 v39, 16, v38
v_and_b32 v38, 0xffff0000, v38
v_add_f32 v{40+row}, v{40+row}, v39
v_add_f32 v{40+row}, v{40+row}, v38""")
    for sh in ("row_shr:1", "row_shr:2", "row_shr:4", "row_shr:8", "row_bcast:15 row_mask:0xa", "row_bcast:31 row_mask:0xc"):
        for row in range(2):
            e(f"v_add_f32 v{40+row}, v{40+row}, v{40+row} {sh}")
    e("""v_readlane_b32 s80, v40, 63
v_readlane_b32 s81, v41, 63""")
    e(f"""v_mov_b32 v42, s80
v_mov_b32 v43, s81
v_cmp_eq_u32 vcc, 1, v0
v_cndmask_b32 v42, v42, v43, vcc
v_cvt_pk_bf16_f32 v42, v42, v42
v_and_b32 v42, 0xffff0000, v42
v_mul_f32 v42, 0xbfb8aa3b, v42
v_exp_f32 v42, v42
v_add_f32 v42, 1.0, v42
v_rcp_f32 v42, v42
v_cvt_pk_bf16_f32 v42, v42, v42
v_and_b32 v42, 0xffff0000, v42
v_mov_b32 v43, s{sNONCE}
v_lshlrev_b32 v44, 3, v0
s_lshl_b32 s80, s2, 3
s_lshl_b32 s81, s84, 1
s_add_u32 s80, s80, s81
s_lshl_b32 s80, s80, 3
s_add_u32 s80, s80, {G_OFF}
s_mov_b64 exec, 3
buffer_store_dwordx2 v[42:43], v44, s[{SWS}:{SWS+3}], s80 offen sc0 sc1
s_mov_b64 exec, -1""")

def generate(path):
    e = Emitter()
    hdr = open("gated_mix__ssm_conv_s5__dense_activation_squared_relu__prompt.s.ref").read().split("\n")
    head = [l for l in hdr if l.startswith(";") and "@launch" not in l and "Override" not in l and "grid=ceil" not in l]
    txt = "\n".join(head) + f"\n; @launch grid=(256,1,1) block=(512,1,1) lds={LDS_SIZE}\n"
    txt += '.amdgcn_target "amdgcn-amd-amdhsa--gfx950"\n.text\n'
    txt += f".globl {NAME}\n.p2align 8\n.type {NAME},@function\n{NAME}:\n"
    gen_entry(e)
    gen_consumer(e)
    gen_loader(e)
    gen_p2(e)
    e("L_END:\ns_endpgm\nL_CODE_END:")
    txt += e.text()
    txt += f""".section .rodata,"a"
.p2align 6
.amdhsa_kernel {NAME}
  .amdhsa_next_free_vgpr 256
  .amdhsa_next_free_sgpr 102
  .amdhsa_accum_offset 256
  .amdhsa_group_segment_fixed_size 0
  .amdhsa_kernarg_size 144
  .amdhsa_user_sgpr_count 2
  .amdhsa_user_sgpr_kernarg_segment_ptr 1
  .amdhsa_system_sgpr_workgroup_id_x 1
.end_amdhsa_kernel
"""
    open(path, "w").write(txt)
    print("pads:", e.npad, "lines:", len(e.out))

if __name__ == "__main__":
    opt.check_g = True
    opt.nowait = 0
    opt.nodma = 0
    opt.itstamps = 0
    opt.l2pf = 0
    opt.plate = 0
    opt.pfin = 2
    opt.uhold = 1
    opt.gw2 = 0
    opt.thr = 0
    opt.fswn = 5
    opt.osc = 0
    opt.nosc1 = 0
    opt.nw = 5
    opt.na = 3
    opt.fsw = 2
    opt.gall = 0
    opt.udelay = 0
    opt.dbgtime = 0
    opt.sorder = 1
    opt.sshelp = 1
    opt.ststamps = 0
    opt.rot = 0
    opt.sprio = 0
    opt.eprio = 3
    opt.wearly = 0
    opt.ldslate = 0
    opt.prio = 1
    opt.cpf = 1
    opt.wdelay = 0
    opt.noprep = 0
    opt.nost = 0
    opt.map2 = 1
    opt.gw = 0
    opt.gloop = 1
    opt.ssleep = 8
    opt.l2pf2 = 0
    for a in sys.argv[2:]:
        k, v = a.split("=")
        setattr(opt, k, int(v))
    if opt.nw != 5 or opt.na != 3: set_nw(opt.nw, opt.na)
    generate(sys.argv[1])
```

```python
import sys
from emit import Emitter

NAME = "gated_mix__ssm_conv_s5__dense_activation_squared_relu__prompt_kernel"

ACT_OFF   = 0
WF_OFF    = 0xC00000
G_OFF     = 0x1000000
AG_OFF    = 0x1010000
WFLAG_OFF = 0x1040000
TFLAG_OFF = 0x1050000
STAMP_OFF = 0x1100000
SLOT = 40960
LDS_PREP = 122880
LDS_TAB  = 143360
LDS_LX   = LDS_TAB + 8448
LDS_FLAG = LDS_LX + 768
LDS_DUMMY = LDS_FLAG + 64
LDS_F    = 0
LDS_Y    = 81920
LDS_SIZE = 163840

SX, SWA, SWB, SWS, STA, STB, SOUT = 4, 8, 12, 16, 20, 24, 28
P_AX, P_LRE, P_LIM, P_BRE, P_BIM, P_CRE, P_CIM, P_LDT, P_DSK, P_BX, P_W1, P_B1, P_W2, P_B2, P_GW, P_OUT, P_DBG, P_WS = [36 + 2 * i for i in range(18)]
sWAVE, sRB, sCOL, sJ, sRB2, sCB, sNONCE, sISU = 72, 73, 74, 75, 76, 77, 78, 79
SG, sGo, sGinc = 28, 83, 85

class Opt:
    phase2 = True
    stamps = False
    spin_limit = 200000
opt = Opt()

def srd(e, s, ptr, size):
    e(f"s_mov_b32 s{s}, s{ptr}\ns_mov_b32 s{s+1}, s{ptr+1}\ns_mov_b32 s{s+2}, {size}\ns_mov_b32 s{s+3}, 0x20000")

def R(b, n=4):
    return f"v[{b}:{b+n-1}]"

_stamp_id = [0]
def stamp(e, idx, tmpv=14):
    if not opt.stamps: return
    e(f"""s_memrealtime s[100:101]
s_lshl_b32 s98, s2, 3
s_add_u32 s98, s98, s{sWAVE}
s_lshl_b32 s98, s98, 6
s_add_u32 s98, s98, {STAMP_OFF + 4*idx}
s_waitcnt lgkmcnt(0)
v_mov_b32 v{tmpv}, s100
v_mov_b32 v{tmpv+1}, 0
s_mov_b64 s[96:97], exec
s_mov_b64 exec, 1
buffer_store_dword v{tmpv}, v{tmpv+1}, s[{SWS}:{SWS+3}], s98 offen
s_mov_b64 exec, s[96:97]""")

def stamp_clk(e, idx, tmpv=14):
    if not opt.stamps: return
    e(f"""s_memtime s[100:101]
s_lshl_b32 s98, s2, 3
s_add_u32 s98, s98, s{sWAVE}
s_lshl_b32 s98, s98, 6
s_add_u32 s98, s98, {STAMP_OFF + 4*idx}
s_waitcnt lgkmcnt(0)
v_mov_b32 v{tmpv}, s100
v_mov_b32 v{tmpv+1}, 0
s_mov_b64 s[96:97], exec
s_mov_b64 exec, 1
buffer_store_dword v{tmpv}, v{tmpv+1}, s[{SWS}:{SWS+3}], s98 offen
s_mov_b64 exec, s[96:97]""")

class Cap:
    def __init__(self): self.l = []
    def __call__(self, s):
        for x in s.split("\n"):
            if x.strip(): self.l.append(x.strip())

def merge(e, main_groups, aux):
    n = len(main_groups); k = 0
    per = -(-len(aux) // n) if n else 0
    for g in main_groups:
        for x in g: e(x)
        for x in aux[k:k + per]: e(x)
        k += per
    for x in aux[k:]: e(x)

_dm = [0]
def dbgmax(e, idx, neg=False, tv=14):
    if not opt.dbgtime: return
    _dm[0] += 1; n = _dm[0]
    e(f"""s_and_b32 s100, s{sWAVE}, 3
s_cmp_eq_u32 s100, 0
s_cbranch_scc0 L_dm{n}
s_cmp_eq_u32 s2, 0
s_cselect_b32 s101, {4*idx}, {4*(idx+8)}
s_cbranch_scc1 L_dmg{n}
s_cmp_eq_u32 s2, 255
s_cbranch_scc0 L_dm{n}
L_dmg{n}:
v_mov_b32 v{tv+1}, s101
s_memrealtime s[100:101]
s_mov_b32 s96, s{P_DBG}
s_mov_b32 s97, s{P_DBG+1}
s_mov_b32 s98, 256
s_mov_b32 s99, 0x20000
s_waitcnt lgkmcnt(0)
v_mov_b32 v{tv}, s100
s_mov_b64 exec, 1
buffer_store_dword v{tv}, v{tv+1}, s[96:99], 0 offen
s_mov_b64 exec, -1
L_dm{n}:""")

def interleave(e, A, B, lead=1):
    bi = 0
    for i, a in enumerate(A):
        e(a)
        if i >= lead - 1 and bi < len(B):
            e(B[bi]); bi += 1
    while bi < len(B):
        e(B[bi]); bi += 1

def spin_nonce(e, tag, vtmp):
    srd(e, STA, P_DBG, 256)
    e(f"""v_mov_b32 v{vtmp+1}, 0
s_mov_b32 s80, 0
L_nonce_{tag}:
buffer_load_dword v{vtmp}, v{vtmp+1}, s[{STA}:{STA+3}], 0 offen sc1
s_add_u32 s80, s80, 1
s_waitcnt vmcnt(0)
v_readfirstlane_b32 s{sNONCE}, v{vtmp}
s_cmp_ge_u32 s80, {opt.spin_limit}
s_cbranch_scc1 L_nonce_done_{tag}
s_cmp_eq_u32 s{sNONCE}, 0
s_cbranch_scc0 L_nonce_done_{tag}
s_sleep 1
s_branch L_nonce_{tag}
L_nonce_done_{tag}:""")

def poll_flags(e, tag, vaddr, vtmp, soff_sgpr, nlanes_mask_lo, mask_hi=0, sleep=1):
    e(f"""s_mov_b32 s80, 0
s_mov_b32 s82, {nlanes_mask_lo}
s_mov_b32 s83, {mask_hi}
L_poll_{tag}:
buffer_load_dword v{vtmp}, v{vaddr}, s[{SWS}:{SWS+3}], s{soff_sgpr} offen sc1
s_add_u32 s80, s80, 1
s_waitcnt vmcnt(0)
v_cmp_ne_u32 vcc, s{sNONCE}, v{vtmp}
s_cmp_ge_u32 s80, {opt.spin_limit}
s_cbranch_scc1 L_poll_done_{tag}
s_and_b64 vcc, vcc, s[82:83]
s_cbranch_scc0 L_poll_done_{tag}
s_sleep {sleep}
s_branch L_poll_{tag}
L_poll_done_{tag}:""")

def gen_entry(e):
    if opt.map2 == 1:
        MAP2 = f"""s_lshr_b32 s82, s80, 1
s_lshl_b32 s82, s82, 3
s_lshr_b32 s83, s81, 2
s_add_u32 s{sRB2}, s82, s83
s_and_b32 s82, s80, 1
s_lshl_b32 s82, s82, 2
s_and_b32 s83, s81, 3
s_add_u32 s{sCB}, s82, s83"""
    else:
        MAP2 = f"""s_lshl_b32 s82, s80, 2
s_and_b32 s83, s81, 3
s_add_u32 s{sRB2}, s82, s83
s_lshr_b32 s{sCB}, s81, 2"""
    e(f"""s_cmp_ge_u32 s2, 256
s_cbranch_scc1 L_END
s_load_dwordx16 s[36:51], s[0:1], 0
s_load_dwordx16 s[52:67], s[0:1], 64
s_load_dwordx4 s[68:71], s[0:1], 128
v_lshrrev_b32 v1, 6, v0
v_and_b32 v0, 63, v0
v_readfirstlane_b32 s{sWAVE}, v1
s_and_b32 s80, s2, 7
s_lshr_b32 s81, s2, 3
s_and_b32 s82, s80, 1
s_lshl_b32 s82, s82, 3
s_and_b32 s83, s81, 7
s_add_u32 s{sRB}, s82, s83
s_lshr_b32 s82, s80, 1
s_lshl_b32 s82, s82, 2
s_lshr_b32 s83, s81, 3
s_add_u32 s{sCOL}, s82, s83
{MAP2}
s_sub_u32 s82, s{sCOL}, 9
s_cmp_ge_u32 s{sCOL}, 9
s_cselect_b32 s{sISU}, 1, 0
s_cselect_b32 s{sJ}, s82, s{sCOL}
s_waitcnt lgkmcnt(0)""")
    srd(e, SWS, P_WS, 0x10000000)
    srd(e, SX, P_AX, 2621440)
    stamp(e, 12, 14)
    e(f"""s_cmp_eq_u32 s2, 0
s_cbranch_scc0 L_no_nonce
s_cmp_eq_u32 s{sWAVE}, 4
s_cbranch_scc0 L_no_nonce
s_memrealtime s[80:81]""")
    srd(e, STA, P_DBG, 256)
    e(f"""s_waitcnt lgkmcnt(0)
s_or_b32 s80, s80, 1
v_mov_b32 v2, s80
v_mov_b32 v3, 0
s_mov_b64 exec, 1
buffer_store_dword v2, v3, s[{STA}:{STA+3}], 0 offen sc0 sc1
s_mov_b64 exec, -1
L_no_nonce:
s_cmp_ge_u32 s{sWAVE}, 4
s_cbranch_scc1 L_LOADER""")

def cmul(e, d, a, b, t):
    e(f"""v_mul_f32 v{d}, v{a}, v{b}
v_mul_f32 v{d+1}, v{a}, v{b+1}
v_fma_f32 v{d}, -v{a+1}, v{b+1}, v{d}
v_fma_f32 v{d+1}, v{a+1}, v{b}, v{d+1}""")

def csq(e, d, a):
    cmul(e, d, a, a, None)

def cfma(e, d, a, b, c):
    e(f"""v_fma_f32 v{d}, v{a}, v{b}, v{c}
v_fma_f32 v{d+1}, v{a}, v{b+1}, v{c+1}
v_fma_f32 v{d}, -v{a+1}, v{b+1}, v{d}
v_fma_f32 v{d+1}, v{a+1}, v{b}, v{d+1}""")

def gen_loader(e):
    e("L_LOADER:")
    vXo = 2; vWo = 4
    sXo = 86
    sWo = 90
    sLX, sLW, sWinc = 32, 33, 34
    def issue_x(s):
        slot = (s % 3) * SLOT
        for m in range(4):
            e(f"s_add_u32 m0, s{sLX}, {slot + m*1024}")
            e(f"buffer_load_dwordx4 v{vXo}, s[{SX}:{SX+3}], s{sXo+m} offen lds")
            e(f"s_add_u32 s{sXo+m}, s{sXo+m}, 128")
    def issue_w(s):
        slot = (s % 3) * SLOT
        for m in range(6):
            S = SWB if (m >> 1) == 1 else SWA
            e(f"s_add_u32 m0, s{sLW}, {slot + m*1024}")
            e(f"buffer_load_dwordx4 v{vWo+m}, s[{S}:{S+3}], s{sWo+m} offen lds")
            e(f"s_add_u32 s{sWo+m}, s{sWo+m}, s{sWinc}")
    def issue(s):
        issue_x(s); issue_w(s)
    e(f"""s_sub_u32 s84, s{sWAVE}, 4
v_lshrrev_b32 v10, 3, v0
v_and_b32 v11, 7, v0
v_xor_b32 v11, v11, v10
v_lshlrev_b32 v11, 4, v11
s_lshl_b32 s{sLX}, s84, 12
s_mul_i32 s{sLW}, s84, 6144
s_add_u32 s{sLW}, s{sLW}, 16384
s_lshl_b32 s85, s{sRB}, 7""")
    e(f"""s_mul_i32 s80, s{sJ}, 96
s_lshl_b32 s81, s84, 5
s_add_u32 s80, s80, s81
v_and_b32 v12, 31, v0
v_add_u32 v12, s80, v12
v_min_u32 v12, 639, v12
v_lshlrev_b32 v12, 1, v12""")
    srd(e, STA, P_LRE, 1280)
    e(f"buffer_load_ushort v20, v12, s[{STA}:{STA+3}], 0 offen")
    srd(e, STB, P_LIM, 1280)
    e(f"buffer_load_ushort v21, v12, s[{STB}:{STB+3}], 0 offen")
    srd(e, STA, P_LDT, 1280)
    e(f"buffer_load_ushort v22, v12, s[{STA}:{STA+3}], 0 offen")
    e(f"""s_cmp_eq_u32 s{sISU}, 1
s_cbranch_scc1 L_LD_U""")
    e(f"""v_mul_u32_u24 v{vXo}, 1280, v10
v_add_u32 v{vXo}, v{vXo}, v11
s_lshl_b32 s80, s84, 5
s_add_u32 s80, s80, s85""")
    for m in range(4):
        e(f"s_add_u32 s81, s80, {16*(m&1) + 8*(m>>1)}\ns_mul_i32 s{sXo+m}, s81, 1280")
    issue_x(0)
    srd(e, SWA, P_W1, 2211840)
    srd(e, SWB, P_W1, 2211840)
    e(f"""s_mul_i32 s80, s84, {16*3456}
s_mul_i32 s81, s{sJ}, 384
s_add_u32 s80, s80, s81""")
    for m in range(6):
        e(f"s_mov_b32 s{sWo+m}, s80")
    e(f"s_mov_b32 s{sWinc}, {64*3456}")
    for m in range(6):
        e(f"""v_add_u32 v12, {64*m}, v0
v_mul_u32_u24 v13, 2731, v12
v_lshrrev_b32 v13, 16, v13
v_mul_u32_u24 v14, 24, v13
v_sub_u32 v14, v12, v14
v_bfe_u32 v15, v13, 1, 1
v_lshlrev_b32 v15, 1, v15
v_bfe_u32 v16, v13, 3, 1
v_lshlrev_b32 v16, 2, v16
v_or_b32 v15, v15, v16
v_xor_b32 v14, v14, v15
v_lshlrev_b32 v14, 4, v14
v_mul_u32_u24 v13, 3456, v13
v_add_u32 v{vWo+m}, v13, v14""")
    e("s_branch L_LD_GO")
    e("L_LD_U:")
    e(f"""v_lshrrev_b32 v12, 5, v0
v_lshlrev_b32 v12, 4, v12
v_bfe_u32 v13, v0, 3, 1
v_lshlrev_b32 v13, 3, v13
v_add_u32 v12, v12, v13
v_bfe_u32 v13, v0, 4, 1
v_add_u32 v12, v12, v13
v_mul_u32_u24 v{vXo}, 1280, v12
v_add_u32 v{vXo}, v{vXo}, v11
s_lshr_b32 s80, s84, 1
s_lshl_b32 s80, s80, 6
s_and_b32 s81, s84, 1
s_lshl_b32 s82, s81, 2
s_add_u32 s80, s80, s82
s_add_u32 s80, s80, s85""")
    for m in range(4):
        e(f"s_add_u32 s82, s80, {32*(m&1) + 2*(m>>1)}\ns_mul_i32 s{sXo+m}, s82, 1280")
    issue_x(0)
    e(f"""v_mul_u32_u24 v12, 1280, v10
v_add_u32 v12, v12, v11""")
    for m in range(6):
        e(f"v_mov_b32 v{vWo+m}, v12")
    e(f"""s_mul_i32 s80, s{sJ}, 96
s_lshr_b32 s82, s84, 1
s_mul_i32 s82, s82, 48
s_add_u32 s80, s80, s82
s_mul_i32 s83, s81, 3""")
    for m in range(6):
        e(f"""s_add_u32 s82, s83, {m>>1}
s_lshr_b32 s82, s82, 1
s_lshl_b32 s82, s82, 4
s_add_u32 s82, s82, s80
s_add_u32 s82, s82, {8*(m&1)}
s_min_u32 s82, s82, 632
s_mul_i32 s{sWo+m}, s82, 1280""")
    e(f"s_mov_b32 s{sWinc}, 128")
    e(f"""s_cmp_eq_u32 s81, 0
s_cselect_b32 s{SWA}, s{P_BRE}, s{P_BIM}
s_cselect_b32 s{SWA+1}, s{P_BRE+1}, s{P_BIM+1}
s_cselect_b32 s{SWB}, s{P_BIM}, s{P_BRE}
s_cselect_b32 s{SWB+1}, s{P_BIM+1}, s{P_BRE+1}
s_mov_b32 s{SWA+2}, 819200
s_mov_b32 s{SWA+3}, 0x20000
s_mov_b32 s{SWB+2}, 819200
s_mov_b32 s{SWB+3}, 0x20000""")
    e("L_LD_GO:")
    def groups(s_):
        slot = (s_ % 3) * SLOT
        G = []
        for m in range(4):
            G.append([f"s_add_u32 m0, s{sLX}, {slot + m*1024}",
                      f"buffer_load_dwordx4 v{vXo}, s[{SX}:{SX+3}], s{sXo+m} offen lds",
                      f"s_add_u32 s{sXo+m}, s{sXo+m}, 128"])
        for m in range(6):
            S = SWB if (m >> 1) == 1 else SWA
            G.append([f"s_add_u32 m0, s{sLW}, {slot + m*1024}",
                      f"buffer_load_dwordx4 v{vWo+m}, s[{S}:{S+3}], s{sWo+m} offen lds",
                      f"s_add_u32 s{sWo+m}, s{sWo+m}, s{sWinc}"])
        return G
    def gath():
        if opt.gall:
            e(f"buffer_load_dword v18, v17, s[{SWS}:{SWS+3}], 0 offen")
        else:
            e(f"buffer_load_dword v18, v17, s[{SG}:{SG+3}], s{sGo} offen\ns_add_u32 s{sGo}, s{sGo}, s{sGinc}")
    issue_w(0)
    if opt.gall: e("v_mov_b32 v17, 0x10000000")
    else: gen_gather_setup(e, 84, 'L', 3)
    issue(1)
    e("s_waitcnt vmcnt(10)\ns_barrier")
    issue(2); gath()
    e("s_waitcnt vmcnt(11)\ns_barrier")
    cA = Cap(); gen_lambda_table(cA, 0)
    cB = Cap(); gen_lambda_table(cB, 1)
    lam = cA.l + ['<ADDR>'] + cB.l
    nq = 4
    per_ = -(-len(lam) // nq)
    parts = [lam[i*per_:(i+1)*per_] for i in range(nq)]
    addr_code = [f"v_and_b32 v62, 31, v0", f"v_lshlrev_b32 v62, 3, v62", f"v_add_u32 v62, s96, v62"]
    def expand(L):
        out = []
        for x in L:
            if x == '<ADDR>': out += addr_code
            else: out.append(x)
        return out
    e(f"""s_lshl_b32 s80, s84, 8
s_add_u32 s80, s80, {LDS_TAB}
s_mov_b32 s81, {LDS_DUMMY}
s_cmp_eq_u32 s84, 3
s_cselect_b32 s96, s81, s80""")
    merge(e, groups(3), expand(parts[0])); gath()
    e("s_waitcnt vmcnt(12)\ns_barrier")
    merge(e, groups(4), expand(parts[1])); gath()
    for it, (st_, g_) in enumerate(((5, 1), (6, 1), (7, 1), (8, 1))):
        e("s_waitcnt vmcnt(12)\ns_barrier")
        if it < 2: merge(e, groups(st_), expand(parts[2 + it]))
        else: issue(st_)
        if g_: gath()
        if it == 1:
            srd(e, STA, P_DBG, 256)
            e(f"v_mov_b32 v12, 0\nbuffer_load_dword v99, v12, s[{STA}:{STA+3}], 0 offen")
    e("s_waitcnt vmcnt(12)\ns_barrier")
    e(f"""v_readfirstlane_b32 s{sNONCE}, v99
s_cmp_eq_u32 s{sNONCE}, 0
s_cbranch_scc0 L_LD_nonce_ok""")
    spin_nonce(e, 'L', 10)
    e("L_LD_nonce_ok:")
    e(f"""s_mul_i32 s85, s84, 14
s_cmp_eq_u32 s84, 3
s_cselect_b32 s80, 1, 0
s_sub_u32 s85, s85, s80
v_lshlrev_b32 v12, 2, v0
s_lshl_b32 s81, s{sCB}, 9
s_lshl_b32 s82, s85, 2
s_add_u32 s81, s81, s82
s_add_u32 s35, s81, {WFLAG_OFF}
s_mul_i32 s80, s84, 10
s_add_u32 s80, s80, {54 - 16}
s_sub_u32 s80, s80, s85
s_lshl_b32 s80, s80, 2
v_add_u32 v14, s80, v12
v_cmp_le_u32 vcc, 16, v0
v_cndmask_b32 v12, v12, v14, vcc
v_lshlrev_b32 v1, 4, v0
buffer_load_dword v13, v12, s[{SWS}:{SWS+3}], s35 offen sc1""")
    issue(9)
    e("s_waitcnt vmcnt(10)\ns_barrier")
    e(f"""s_mov_b32 s86, s84
s_mul_i32 s87, s86, 20480
s_mul_i32 s84, s{sCB}, 94
s_add_u32 s84, s84, s85
s_mul_i32 s84, s84, 5120
s_add_u32 s84, s84, {WF_OFF}
s_cmp_ge_u32 s86, 2
s_cselect_b32 s89, 13, 14""")
    rot_setup(e, 89, False)
    ld_w, ld_a, queue = gen_p2_stream(e, 'x', 14)
    e(f"""v_cmp_ne_u32 vcc, s{sNONCE}, v13
s_nop 1
s_and_b32 s80, vcc_lo, 0x03ff3fff
s_cbranch_scc1 L_LD_wlate""")
    if opt.gw2:
        w_gathers(e)
    if opt.gw2 != 2:
        ld_w(0); ld_w(1)
    e(f"s_waitcnt vmcnt({(0 if opt.gw2 == 2 else 10) + (3 if opt.gw2 else 0)})\ns_barrier")
    for s_ in range(0 if opt.gw2 == 2 else 2, NW): ld_w(s_)
    e("s_branch L_LD_wdone\nL_LD_wlate:\ns_waitcnt vmcnt(0)\ns_barrier")
    poll_flags(e, 'FW', 12, 13, 35, 0x03ff3fff)
    for s_ in range(NW): ld_w(s_)
    e("L_LD_wdone:")
    stamp(e, 1, 14)
    gen_gate_loads(e, 86)
    ffn_acc_loads(e)
    lds_wait_ge(e, 'R', 24, 4, 10)
    if opt.wdelay or opt.udelay:
        if not opt.udelay: e(f"s_cmp_eq_u32 s{sISU}, 1\ns_cbranch_scc1 L_LD_nodelay")
        if not opt.wdelay: e(f"s_cmp_eq_u32 s{sISU}, 0\ns_cbranch_scc1 L_LD_nodelay")
        lds_wait_ge(e, 'W', 16, 4, 10)
        e("L_LD_nodelay:")
    stamp(e, 7, 14)
    w_lds(e, NLF, 87, throttle=('A' if opt.thr >= 0 else None))
    lds_count(e, 28, 10)
    if opt.sshelp:
        e(f"s_cmp_eq_u32 s{sISU}, 1\ns_cbranch_scc0 L_NOHELP")
        e(f"""s_mul_i32 s80, s86, 10
s_add_u32 s80, s80, {54 + NW}
s_mul_i32 s81, s{sCB}, 94
s_add_u32 s80, s80, s81
s_mul_i32 s80, s80, 5120
s_add_u32 s80, s80, {WF_OFF}
s_mul_i32 s81, s86, 15360
s_add_u32 s81, s81, {LDS_Y}""")
        for i in range(NLS):
            if opt.thr >= 0: e(f"s_waitcnt vmcnt({opt.thr})")
            for dt in range(5):
                e(f"""s_add_u32 m0, s81, {i*5120 + dt*1024}
buffer_load_dwordx4 v1, s[{SWS}:{SWS+3}], s80 offen sc1 lds
s_add_u32 s80, s80, 1024""")
        e("L_NOHELP:")
    stamp(e, 2, 14)

NLF, NLS = 4, 3
def w_prefetch(e, nsteps, NL, lds_base_sgpr, do_lds=True, rng=None):
    nsh = 8 if opt.map2 == 1 else 4
    per = -(-nsteps * 40 // nsh)
    if opt.gw: l2_prefetch(e, 84, nsteps * 40, nsh, f"s{sRB2}", nsh - 1, -(-per // 64))
    ld_w, ld_a, queue = gen_p2_stream(e, 'x', nsteps)
    for s_ in (range(NW) if rng is None else rng): ld_w(s_)
    if do_lds: w_lds(e, NL, lds_base_sgpr)

def w_gathers(e):
    nsh = 8 if opt.map2 == 1 else 4
    l2_prefetch(e, 84, 14 * 40, nsh, f"s{sRB2}", nsh - 1, 2 if nsh == 8 else 2)
    e(f"""s_mul_i32 s88, s86, 10
s_add_u32 s88, s88, 54
s_mul_i32 s81, s{sCB}, 94
s_add_u32 s88, s88, s81
s_mul_i32 s88, s88, 5120
s_add_u32 s88, s88, {WF_OFF}""")
    l2_prefetch(e, 88, 10 * 40, nsh, f"s{sRB2}", nsh - 1, 1)

def w_lds(e, NL, lds_base_sgpr, queue=None, throttle=None):
    for i in range(NL):
        if throttle is not None:
            e(f"s_cmp_eq_u32 s{sISU}, 1\ns_cbranch_scc0 L_thr_{throttle}{i}\ns_waitcnt vmcnt({opt.thr})\nL_thr_{throttle}{i}:")
        for dt in range(5):
            e(f"""s_add_u32 m0, s{lds_base_sgpr}, {i*5120 + dt*1024}
buffer_load_dwordx4 v1, s[{SWS}:{SWS+3}], s84 offen sc1 lds
s_add_u32 s84, s84, 1024""")
            if queue is not None: queue.append(('l', NW + i))
        wrap_w(e)

def ffn_w_prefetch(e):
    e(f"""s_mov_b32 s86, s84
s_mul_i32 s87, s86, 20480
s_mul_i32 s84, s{sCB}, 94
s_add_u32 s84, s84, s85
s_mul_i32 s84, s84, 5120
s_add_u32 s84, s84, {WF_OFF}
s_cmp_ge_u32 s86, 2
s_cselect_b32 s89, 13, 14""")
    rot_setup(e, 89, False)
    w_prefetch(e, 14, NLF, 87, do_lds=not opt.ldslate)
    if opt.sshelp:
        e(f"""s_cmp_eq_u32 s{sISU}, 1
s_cbranch_scc0 L_NOHELP
s_mul_i32 s80, s86, 10
s_add_u32 s80, s80, 54
s_lshl_b32 s80, s80, 2
s_lshl_b32 s81, s{sCB}, 9
s_add_u32 s80, s80, s81
s_add_u32 s88, s80, {WFLAG_OFF}
v_lshlrev_b32 v12, 2, v0""")
        poll_flags(e, 'HW', 12, 13, 88, 0x3ff)
        e(f"""s_mul_i32 s80, s86, 10
s_add_u32 s80, s80, {54 + NW}
s_mul_i32 s81, s{sCB}, 94
s_add_u32 s80, s80, s81
s_mul_i32 s80, s80, 5120
s_add_u32 s80, s80, {WF_OFF}
s_mul_i32 s81, s86, 15360
s_add_u32 s81, s81, {LDS_Y}""")
        for i in range(NLS):
            for dt in range(5):
                e(f"""s_add_u32 m0, s81, {i*5120 + dt*1024}
buffer_load_dwordx4 v1, s[{SWS}:{SWS+3}], s80 offen sc1 lds
s_add_u32 s80, s80, 1024""")
        e("L_NOHELP:")

def l2_prefetch(e, sbase, nlines, nshare, share_sgpr, share_mask, ninstr, vtmp=12, vdst=15):
    per = -(-nlines // nshare)
    e(f"""s_and_b32 s80, {share_sgpr}, {share_mask}
s_mul_i32 s80, s80, {per*128}
s_add_u32 s80, s80, s{sbase}
v_lshlrev_b32 v{vtmp}, 7, v0""")
    for i in range(ninstr):
        if i * 64 < per and per - i * 64 < 64:
            e(f"v_min_u32 v{vtmp}, {(per - i*64 - 1)*128}, v{vtmp}")
        e(f"buffer_load_dword v{vdst}, v{vtmp}, s[{SWS}:{SWS+3}], s80 offen sc1")
        if i * 64 + 64 < per: e(f"s_add_u32 s80, s80, 8192")

def gen_gather_setup(e, W=84, T='', start=1):
    e(f"""s_lshr_b32 s80, s2, 3
s_and_b32 s81, s80, 7
s_lshr_b32 s80, s80, 3
v_mov_b32 v17, 0x10000000
s_mov_b32 s{sGo}, {128*start}
s_mov_b32 s{sGinc}, 128
s_mov_b32 s{SG}, s{SX}
s_mov_b32 s{SG+1}, s{SX+1}
s_mov_b32 s{SG+2}, 2621440
s_mov_b32 s{SG+3}, 0x20000
s_cmp_eq_u32 s{W}, 0
s_cbranch_scc0 L_GS_1{T}
s_lshl_b32 s80, s80, 5
s_lshl_b32 s82, s{sRB}, 7
s_add_u32 s80, s80, s82
v_add_u32 v16, s80, v0
v_mul_u32_u24 v16, 1280, v16
v_cmp_gt_u32 vcc, 32, v0
v_cndmask_b32 v17, v17, v16, vcc
s_branch L_GS_done{T}
L_GS_1{T}:
s_cmp_ge_u32 s{W}, 3
s_cbranch_scc1 L_GS_done{T}
s_cmp_eq_u32 s{sISU}, 1
s_cbranch_scc1 L_GS_U{T}
s_cmp_eq_u32 s{W}, 1
s_cbranch_scc0 L_GS_done{T}
s_mov_b32 s{SG}, s{P_W1}
s_mov_b32 s{SG+1}, s{P_W1+1}
s_mov_b32 s{SG+2}, 2211840
s_mul_i32 s{sGo}, s{sJ}, 384
s_add_u32 s{sGo}, s{sGo}, {64*3456*start}
s_mov_b32 s{sGinc}, {64*3456}
v_mul_u32_u24 v16, 43, v0
v_lshrrev_b32 v16, 7, v16
v_mul_u32_u24 v15, 3, v16
v_sub_u32 v15, v0, v15
s_lshl_b32 s81, s81, 3
v_add_u32 v16, s81, v16
v_mul_u32_u24 v16, 3456, v16
v_lshlrev_b32 v15, 7, v15
v_add_u32 v16, v16, v15
v_cmp_gt_u32 vcc, 24, v0
v_cndmask_b32 v17, v17, v16, vcc
s_branch L_GS_done{T}
L_GS_U{T}:
s_cmp_eq_u32 s{W}, 1
s_cselect_b32 s{SG}, s{P_BRE}, s{P_BIM}
s_cselect_b32 s{SG+1}, s{P_BRE+1}, s{P_BIM+1}
s_mov_b32 s{SG+2}, 819200
s_mul_i32 s80, s{sJ}, 96
s_mul_i32 s81, s81, 12
s_add_u32 s80, s80, s81
v_add_u32 v16, s80, v0
v_min_u32 v16, 639, v16
v_mul_u32_u24 v16, 1280, v16
v_cmp_gt_u32 vcc, 12, v0
v_cndmask_b32 v17, v17, v16, vcc
L_GS_done{T}:""")
    if not opt.gloop: e("v_mov_b32 v17, 0x10000000")

def gen_unit_ids(e, W):
    e(f"""s_cmp_ge_u32 s2, 108
s_cbranch_scc1 L_UID_C
s_lshr_b32 s3, s2, 1
s_and_b32 s35, s2, 1
s_lshl_b32 s35, s35, 2
s_add_u32 s35, s35, s{W}
s_branch L_UID_done
L_UID_C:
s_sub_u32 s80, s2, 108
s_and_b32 s35, s80, 7
s_lshr_b32 s80, s80, 3
s_lshl_b32 s3, s80, 2
s_add_u32 s3, s3, s{W}
s_add_u32 s3, s3, 54
L_UID_done:""")

def gen_prep_gather(e, W=84):
    e(f"""s_cmp_ge_u32 s3, 54
s_cbranch_scc1 L_PG_C""")
    srd(e, STA, P_W2, 2211840)
    e(f"""v_mul_u32_u24 v10, 52, v0
v_lshrrev_b32 v10, 8, v10
v_mul_u32_u24 v11, 5, v10
v_sub_u32 v11, v0, v11
s_lshl_b32 s80, s{W}, 3
v_add_u32 v10, s80, v10
v_mul_u32_u24 v10, 1280, v10
v_lshlrev_b32 v11, 7, v11
v_add_u32 v10, v10, v11
v_mov_b32 v11, 0x10000000
v_cmp_gt_u32 vcc, 40, v0
v_cndmask_b32 v10, v11, v10, vcc
s_mul_i32 s80, s3, {32*1280}
s_and_b32 s81, s2, 1
s_mul_i32 s81, s81, 640
s_add_u32 s80, s80, s81
buffer_load_dword v18, v10, s[{STA}:{STA+3}], s80 offen
buffer_load_dword v18, v11, s[{STA}:{STA+3}], s80 offen
s_branch L_PG_done
L_PG_C:""")
    srd(e, STA, P_CRE, 819200)
    srd(e, STB, P_CIM, 819200)
    e(f"""s_mul_i32 s81, s35, 80
s_mul_i32 s80, s{W}, 20
s_add_u32 s81, s81, s80
v_add_u32 v10, s81, v0
v_mul_u32_u24 v10, 1280, v10
v_mov_b32 v11, 0x10000000
v_cmp_gt_u32 vcc, 20, v0
v_cndmask_b32 v10, v11, v10, vcc
s_sub_u32 s80, s3, 54
s_lshr_b32 s80, s80, 2
s_min_u32 s80, s80, 9
s_lshl_b32 s80, s80, 7
buffer_load_dword v18, v10, s[{STA}:{STA+3}], s80 offen
buffer_load_dword v18, v10, s[{STB}:{STB+3}], s80 offen
L_PG_done:""")

def gen_lambda_table(e, part):
    L1, L2, L4, L8, L16, L32, L48, L64, L128, L256, L512, L1024, C2 = 30, 32, 34, 36, 38, 40, 42, 44, 46, 48, 50, 52, 54
    if part == 0:
        e(f"""v_lshlrev_b32 v20, 16, v20
v_lshlrev_b32 v21, 16, v21
v_lshlrev_b32 v22, 16, v22
v_mul_f32 v23, 0x3fb8aa3b, v22
v_exp_f32 v23, v23
s_nop 0
v_cvt_pk_bf16_f32 v23, v23, v23
v_and_b32 v23, 0xffff0000, v23
v_mul_f32 v24, v23, v20
v_mul_f32 v25, v23, v21
v_mul_f32 v24, 0x3fb8aa3b, v24
v_exp_f32 v24, v24
v_mul_f32 v25, 0.15915494, v25
v_fract_f32 v25, v25
v_sin_f32 v26, v25
v_cos_f32 v27, v25
s_nop 0
v_mul_f32 v31, v24, v26
v_mul_f32 v30, v24, v27""")
        csq(e, L2, L1); csq(e, L4, L2); csq(e, L8, L4); csq(e, L16, L8); csq(e, L32, L16)
        cmul(e, L48, L32, L16, None)
        csq(e, L64, L32); csq(e, L128, L64)
        return
    csq(e, L256, L128); csq(e, L512, L256); csq(e, L1024, L512)
    e(f"""v_add_f32 v56, -1.0, v30
v_mul_f32 v57, v20, v20
v_fma_f32 v57, v21, v21, v57
v_rcp_f32 v57, v57
v_mul_f32 v58, v56, v20
v_fma_f32 v58, v31, v21, v58
v_mul_f32 v59, v31, v20
v_fma_f32 v59, -v56, v21, v59
v_add_f32 v57, v57, v57
v_mul_f32 v{C2}, v58, v57
v_mul_f32 v{C2+1}, v59, v57
v_mov_b32 v60, 1.0
v_mov_b32 v61, 0""")
    ents = [L1, L8, 60, L16, L32, L48, L64, L128, L512, L1024, C2]
    for i, r in enumerate(ents):
        e(f"ds_write_b64 v62, v[{r}:{r+1}] offset:{i*768}")
    e("s_waitcnt lgkmcnt(0)")

ACC = 64
SETA, SETB = 160, 200
def acc_ffn(ft, tt): return ACC + (ft * 4 + tt) * 4
def acc_u(i, tp): return ACC + (i * 6 + tp) * 4

def reads(kind, st, ks):
    L = []
    vX = 2 + ks
    if kind == 'F':
        xs = [f"ds_read_b128 {R(st + 4*t)}, v{vX} offset:{t*2048}" for t in range(4)]
        ws = []
        for ft in range(6):
            for h in range(2):
                ws.append(f"ds_read_b64_tr_b16 v[{st+16+4*ft+2*h}:{st+16+4*ft+2*h+1}], v{4+ft} offset:{ks*12288 + h*1536}")
        L = ws[:2] + xs + ws[2:]
    else:
        vW = 4 + ks
        xs = [f"ds_read_b128 {R(st + 4*t)}, v{vX} offset:{t*2048}" for t in range(4)]
        ws = [f"ds_read_b128 {R(st + 16 + 4*t)}, v{vW} offset:{t*2048}" for t in range(6)]
        L = [ws[0]] + xs + ws[1:]
    return L

def mfmas(kind, st, first=False):
    L = []
    for n in range(6):
        for t in range(4):
            if kind == 'F':
                d = acc_ffn(n, t)
                c = R(16 + 20 + 4*n) if first else R(d)
                L.append(f"v_mfma_f32_16x16x32_bf16 {R(d)}, {R(st+16+4*n)}, {R(st+4*t)}, {c}")
            else:
                d = acc_u(t, n)
                c = "0" if first else R(d)
                L.append(f"v_mfma_f32_16x16x32_bf16 {R(d)}, {R(st+4*t)}, {R(st+16+4*n)}, {c}")
    return L

def gen_prep_issue(e, W=84, D=116, T=''):
    e(f"""s_cmp_ge_u32 s3, 54
s_cbranch_scc1 L_PREP_C{T}""")
    srd(e, STA, P_W2, 2211840)
    e(f"""s_mul_i32 s80, s3, {32*1280}
s_mul_i32 s81, s35, 160
s_add_u32 s80, s80, s81
s_mul_i32 s81, s{W}, 5120
s_add_u32 s81, s81, {LDS_PREP}""")
    for n in range(5):
        e(f"""v_add_u32 v10, {64*n}, v0
v_mul_u32_u24 v11, 205, v10
v_lshrrev_b32 v11, 11, v11
v_mul_u32_u24 v12, 10, v11
v_sub_u32 v12, v10, v12
v_mul_u32_u24 v11, 1280, v11
v_lshlrev_b32 v12, 4, v12
v_add_u32 v11, v11, v12
s_add_u32 m0, s81, {n*1024}
buffer_load_dwordx4 v11, s[{STA}:{STA+3}], s80 offen lds""")
    e("v_mov_b32 v11, 0x10000000")
    for n in range(5):
        e(f"buffer_load_dword v{D}, v11, s[{STA}:{STA+3}], s80 offen")
    e(f"s_branch L_PREP_issued{T}")
    e(f"L_PREP_C{T}:")
    srd(e, STA, P_CRE, 819200)
    srd(e, STB, P_CIM, 819200)
    e(f"""v_and_b32 v10, 15, v0
v_mul_u32_u24 v10, 1280, v10
v_lshrrev_b32 v11, 4, v0
v_lshlrev_b32 v11, 3, v11
v_add_u32 v10, v10, v11
s_sub_u32 s80, s3, 54
s_min_u32 s80, s80, 39
s_lshl_b32 s80, s80, 5
s_mul_i32 s81, s35, {80*1280}
s_add_u32 s80, s80, s81""")
    for dt in range(5):
        e(f"buffer_load_dwordx2 v[{D+4*dt}:{D+1+4*dt}], v10, s[{STA}:{STA+3}], s80 offen")
        e(f"buffer_load_dwordx2 v[{D+2+4*dt}:{D+3+4*dt}], v10, s[{STB}:{STB+3}], s80 offen")
        if dt < 4: e(f"s_add_u32 s80, s80, {16*1280}")
    e(f"L_PREP_issued{T}:")

def gen_prep_finish(e, W=84, D=116, T=''):
    e(f"""s_cmp_ge_u32 s3, 54
s_cbranch_scc1 L_PF_store{T}
v_lshrrev_b32 v10, 4, v0
v_lshlrev_b32 v10, 2, v10
v_bfe_u32 v11, v0, 2, 2
v_add_u32 v10, v10, v11
v_mul_u32_u24 v10, 160, v10
v_and_b32 v11, 3, v0
v_lshlrev_b32 v11, 3, v11
v_add_u32 v10, v10, v11
s_mul_i32 s81, s{W}, 5120
s_add_u32 s81, s81, {LDS_PREP}
v_add_u32 v10, s81, v10""")
    for dt in range(5):
        for h in range(2):
            e(f"ds_read_b64_tr_b16 v[{D+4*dt+2*h}:{D+1+4*dt+2*h}], v10 offset:{dt*32 + h*16*160}")
    e("s_waitcnt lgkmcnt(0)")
    e(f"L_PF_store{T}:")
    e(f"""s_mul_i32 s80, s35, 94
s_add_u32 s80, s80, s3
s_mul_i32 s80, s80, 5120
s_add_u32 s80, s80, {WF_OFF}
v_lshlrev_b32 v10, 4, v0
v_mov_b32 v11, 0x10000000
s_cmp_ge_u32 s3, 94
s_cselect_b32 s81, 1, 0
v_mov_b32 v12, s81
v_cmp_eq_u32 vcc, 1, v12
v_cndmask_b32 v10, v10, v11, vcc""")
    for dt in range(5):
        if dt < 4:
            e(f"buffer_store_dwordx4 {R(D+4*dt)}, v10, s[{SWS}:{SWS+3}], s80 offen offset:{dt*1024} sc1")
        else:
            e(f"s_add_u32 s80, s80, 4096")
            e(f"buffer_store_dwordx4 {R(D+4*dt)}, v10, s[{SWS}:{SWS+3}], s80 offen sc1")

def gen_prep_flag(e):
    e(f"""s_lshl_b32 s80, s35, 9
s_lshl_b32 s81, s3, 2
s_add_u32 s80, s80, s81
s_add_u32 s80, s80, {WFLAG_OFF}
v_mov_b32 v10, s{sNONCE}
s_cmp_ge_u32 s3, 94
s_cselect_b32 s81, 0x10000000, 0
v_mov_b32 v11, s81
s_mov_b64 exec, 1
buffer_store_dword v10, v11, s[{SWS}:{SWS+3}], s80 offen sc0 sc1
s_mov_b64 exec, -1""")

def interleave2(e, A, B, per):
    bi = 0
    for i, a in enumerate(A):
        e(a)
        for _ in range(per[i] if i < len(per) else 0):
            if bi < len(B): e(B[bi]); bi += 1
    while bi < len(B):
        e(B[bi]); bi += 1

def gen_main_loop(e, kind):
    tag = kind
    naddr = [2, 3] + ([4, 5, 6, 7, 8, 9] if kind == 'F' else [4, 5])
    sIT, sDELTA, sSLOT = 86, 87, 88
    def adv_list():
        L = [f"s_add_u32 s{sSLOT}, s{sSLOT}, 1", f"s_cmp_eq_u32 s{sSLOT}, 3",
             f"s_cselect_b32 s{sDELTA}, s90, s89", f"s_cselect_b32 s{sSLOT}, 0, s{sSLOT}"]
        L += [f"v_add_u32 v{v}, s{sDELTA}, v{v}" for v in naddr]
        return L
    e(f"s_mov_b32 s{sIT}, 1\ns_mov_b32 s{sSLOT}, 0\ns_mov_b32 s89, {SLOT}\ns_mov_b32 s90, {-2*SLOT & 0xffffffff}")
    if opt.itstamps:
        e(f"s_memtime s[100:101]\ns_waitcnt lgkmcnt(0)\nv_writelane_b32 v250, s100, 10")
    e("s_waitcnt lgkmcnt(0)\ns_barrier")
    if opt.itstamps:
        e(f"s_memtime s[100:101]\ns_waitcnt lgkmcnt(0)\nv_writelane_b32 v250, s100, 0")
    for r in reads(kind, SETA, 0): e(r)
    if opt.plate: gen_prep_issue(e, sWAVE, 16, tag)
    e("s_waitcnt lgkmcnt(0)")
    rb = reads(kind, SETB, 1)
    items = rb + adv_list()
    nr = len(rb)
    def perlist(nr, nextra):
        per = [1] * 24
        rem = 24 - nr
        per = [1] * nr + [0] * rem
        k = nextra; i = nr
        while k > 0:
            per[i] += 1; k -= 1; i += 1
            if i == 24: i = max(nr, 8)
        return per
    interleave2(e, mfmas(kind, SETA, first=True), items, perlist(nr, len(items) - nr))
    e("s_waitcnt lgkmcnt(0)")
    e(f"L_ML_{tag}:")
    e("s_barrier")
    if opt.itstamps:
        e(f"s_memtime s[100:101]\ns_waitcnt lgkmcnt(0)\ns_mov_b32 m0, s{sIT}\nv_writelane_b32 v250, s100, m0")
    ra = reads(kind, SETA, 0)
    interleave2(e, mfmas(kind, SETB), ra, [1] * 24)
    if opt.plate:
        e(f"s_cmp_eq_u32 s{sIT}, {opt.pfin}\ns_cbranch_scc0 L_ML_h0_{tag}\ns_waitcnt vmcnt(0)")
        gen_prep_finish(e, sWAVE, 16, 'H' + tag)
        srd(e, STA, P_DBG, 256)
        e(f"buffer_load_dword v249, v248, s[{STA}:{STA+3}], 0 offen\nL_ML_h0_{tag}:")
    e(f"""s_cmp_eq_u32 s{sIT}, 1
s_cbranch_scc0 L_ML_h1_{tag}""")
    if not opt.plate: e(f"buffer_load_dword v249, v248, s[{STA}:{STA+3}], 0 offen")
    e(f"""L_ML_h1_{tag}:
s_cmp_eq_u32 s{sIT}, {opt.pfin + 2 if opt.plate else 4}
s_cbranch_scc0 L_ML_h2_{tag}
s_waitcnt vmcnt(0)
v_readfirstlane_b32 s{sNONCE}, v249
s_cmp_eq_u32 s{sNONCE}, 0
s_cbranch_scc0 L_ML_h2b_{tag}""")
    spin_nonce(e, 'H' + tag, 10)
    e(f"L_ML_h2b_{tag}:")
    gen_prep_flag(e)
    e(f"L_ML_h2_{tag}:")
    e("s_waitcnt lgkmcnt(0)")
    items = rb + adv_list() + [f"s_add_u32 s{sIT}, s{sIT}, 1", f"s_cmp_lt_u32 s{sIT}, 10"]
    interleave2(e, mfmas(kind, SETA), items, perlist(nr, len(items) - nr))
    e(f"""s_waitcnt lgkmcnt(0)
s_cbranch_scc1 L_ML_{tag}""")
    lds_count(e, 24, 10)
    e(f"""s_mul_i32 s87, s{sWAVE}, 10
s_add_u32 s87, s87, 54
s_lshl_b32 s89, s{sCB}, 9
s_lshl_b32 s90, s87, 2
s_add_u32 s89, s89, s90
s_add_u32 s35, s89, {WFLAG_OFF}
v_lshlrev_b32 v8, 2, v0
buffer_load_dword v1, v8, s[{SWS}:{SWS+3}], s35 offen sc1""")
    for m in mfmas(kind, SETB): e(m)
    if opt.itstamps:
        e(f"""s_memtime s[100:101]
s_waitcnt lgkmcnt(0)
v_writelane_b32 v250, s100, 11
s_lshl_b32 s98, s2, 3
s_add_u32 s98, s98, s{sWAVE}
s_lshl_b32 s98, s98, 6
s_add_u32 s98, s98, {STAMP_OFF + 0x40000}
v_lshlrev_b32 v251, 2, v0
s_mov_b64 exec, 0xffff
buffer_store_dword v250, v251, s[{SWS}:{SWS+3}], s98 offen
s_mov_b64 exec, -1""")

def tile_flag(e, tag):
    nyoung = 0
    if opt.wearly:
        ssm_w_setup(e, tag)
        nyoung = SSM_W_OPS()
    e(f"""s_waitcnt vmcnt({nyoung})
s_lshr_b32 s80, s{sWAVE}, 1
s_lshl_b32 s81, s{sRB}, 1
s_add_u32 s80, s80, s81
s_lshl_b32 s80, s80, 8
s_lshl_b32 s81, s{sCOL}, 1
s_and_b32 s82, s{sWAVE}, 1
s_add_u32 s81, s81, s82
s_lshl_b32 s82, s81, 2
s_cmp_ge_u32 s81, 18
s_cselect_b32 s81, 56, 0
s_add_u32 s80, s80, s82
s_add_u32 s80, s80, s81
s_add_u32 s80, s80, {TFLAG_OFF}
v_mov_b32 v10, s{sNONCE}
v_mov_b32 v11, 0
s_mov_b64 exec, 1
buffer_store_dword v10, v11, s[{SWS}:{SWS+3}], s80 offen sc0 sc1
s_mov_b64 exec, -1""")
    if opt.eprio: e("s_setprio 0")

def SSM_W_OPS():
    nsh = 8 if opt.map2 == 1 else 4
    ng = (-(-(-(-10 * 40 // nsh)) // 64)) if opt.gw else 0
    return NW * 5 + NLS * 5 + ng

def ssm_w_setup(e, tag, order=True, defer_lds=False):
    e(f"""s_waitcnt vmcnt({12 if order else 0})
s_mul_i32 s87, s{sWAVE}, 10
s_add_u32 s87, s87, 54
v_cmp_ne_u32 vcc, s{sNONCE}, v1
v_lshlrev_b32 v1, 4, v0
v_lshlrev_b32 v8, 2, v0
s_and_b32 s80, vcc_lo, 0x3ff
s_cbranch_scc0 L_SSM_wok{tag}""")
    poll_flags(e, 'SW' + tag, 8, 10, 35, 0x3ff)
    e(f"""L_SSM_wok{tag}:
s_mul_i32 s84, s{sCB}, 94
s_add_u32 s84, s84, s87
s_mul_i32 s84, s84, 5120
s_add_u32 s84, s84, {WF_OFF}
s_mul_i32 s85, s{sRB2}, 94
s_add_u32 s85, s85, s87
s_lshl_b32 s85, s85, 12
s_mul_i32 s88, s{sWAVE}, 15360
s_add_u32 s88, s88, {LDS_Y}
v_add_u32 v3, s88, v1""")
    rot_setup(e, 10, True)
    rot_act(e)
    if opt.sorder and order:
        e(f"s_cmp_eq_u32 s{sISU}, 1\ns_cbranch_scc1 L_SSM_noord{tag}")
        lds_wait_ge(e, 'O' + tag, 28, 4, 10)
        e(f"L_SSM_noord{tag}:")
    if opt.sprio: e(f"s_setprio {opt.sprio}")
    if opt.sshelp:
        w_prefetch(e, 10, NLS, 88, do_lds=False, rng=(range(opt.fswn) if defer_lds else None))
        if not defer_lds:
            e(f"s_cmp_eq_u32 s{sISU}, 1\ns_cbranch_scc1 L_SSM_skiplds{tag}")
            w_lds(e, NLS, 88)
            e(f"s_branch L_SSM_ldsdone{tag}\nL_SSM_skiplds{tag}:\ns_add_u32 s84, s84, {NLS*5120}\nL_SSM_ldsdone{tag}:")
    else:
        w_prefetch(e, 10, NLS, 88)

def x_addr_setup(e):
    e(f"""s_lshr_b32 s80, s{sWAVE}, 1
s_lshl_b32 s80, s80, 13
v_and_b32 v10, 15, v0
v_lshlrev_b32 v10, 7, v10
v_lshrrev_b32 v11, 4, v0
v_and_b32 v12, 7, v0
v_xor_b32 v11, v11, v12
v_lshlrev_b32 v11, 4, v11
v_add_u32 v10, v10, v11
v_add_u32 v2, s80, v10
v_xor_b32 v3, 64, v2""")

def p1_l2_prefetch(e, kind):
    e(f"""s_lshr_b32 s81, s2, 3
s_lshr_b32 s82, s81, 3
s_lshl_b32 s82, s82, 5
s_lshl_b32 s83, s{sRB}, 7
s_add_u32 s82, s82, s83
v_and_b32 v10, 31, v0
v_add_u32 v10, s82, v10
v_mul_u32_u24 v10, 1280, v10
v_lshrrev_b32 v11, 5, v0
s_lshl_b32 s83, s{sWAVE}, 1
s_add_u32 s83, s83, 2
v_add_u32 v11, s83, v11
v_lshlrev_b32 v11, 7, v11
v_add_u32 v10, v10, v11
buffer_load_dword v247, v10, s[{SX}:{SX+3}], 0 offen
s_and_b32 s81, s81, 7""")
    if kind == 'F':
        srd(e, STA, P_W1, 2211840)
        e(f"""s_lshl_b32 s83, s{sWAVE}, 6
v_add_u32 v10, s83, v0
v_mul_u32_u24 v11, 2731, v10
v_lshrrev_b32 v11, 16, v11
v_mul_u32_u24 v12, 24, v11
v_sub_u32 v12, v10, v12
v_mul_u32_u24 v13, 43, v12
v_lshrrev_b32 v13, 7, v13
v_mul_u32_u24 v10, 3, v13
v_sub_u32 v12, v12, v10
v_lshlrev_b32 v11, 6, v11
v_add_u32 v11, v11, v13
s_lshl_b32 s83, s81, 3
s_add_u32 s83, s83, 128
v_add_u32 v11, s83, v11
v_mul_u32_u24 v11, 3456, v11
v_lshlrev_b32 v12, 7, v12
v_add_u32 v11, v11, v12
s_mul_i32 s83, s{sJ}, 384
buffer_load_dword v247, v11, s[{STA}:{STA+3}], s83 offen""")
    else:
        e(f"""s_cmp_ge_u32 s{sWAVE}, 2
s_cselect_b32 s{STA}, s{P_BIM}, s{P_BRE}
s_cselect_b32 s{STA+1}, s{P_BIM+1}, s{P_BRE+1}
s_mov_b32 s{STA+2}, 819200
s_mov_b32 s{STA+3}, 0x20000
s_and_b32 s83, s{sWAVE}, 1
s_lshl_b32 s83, s83, 6
v_add_u32 v10, s83, v0
v_min_u32 v10, 95, v10
v_mul_u32_u24 v11, 171, v10
v_lshrrev_b32 v11, 11, v11
v_mul_u32_u24 v12, 12, v11
v_sub_u32 v12, v10, v12
s_mul_i32 s83, s{sJ}, 96
s_mul_i32 s82, s81, 12
s_add_u32 s83, s83, s82
v_add_u32 v12, s83, v12
v_min_u32 v12, 639, v12
v_mul_u32_u24 v12, 1280, v12
v_add_u32 v11, 2, v11
v_lshlrev_b32 v11, 7, v11
v_add_u32 v12, v12, v11
buffer_load_dword v247, v12, s[{STA}:{STA+3}], 0 offen""")

def consumer_start_loads(e, nbefore):
    gen_gather_setup(e, sWAVE, 'C', 0)
    ng = 10 if opt.gall else 3
    for _ in range(ng):
        e(f"buffer_load_dword v18, v17, s[{SG}:{SG+3}], s{sGo} offen\ns_add_u32 s{sGo}, s{sGo}, s{sGinc}")
    gen_unit_ids(e, sWAVE)
    if opt.gall or opt.plate == 2:
        gen_prep_gather(e, sWAVE)
    if not opt.plate: gen_prep_issue(e, sWAVE, 16)

def consumer_common_setup(e):
    srd(e, STA, P_DBG, 256)
    e("v_mov_b32 v248, 0")

def gen_consumer_ffn(e):
    e("L_CONS_F:")
    srd(e, STB, P_B1, 3456)
    e(f"""s_mul_i32 s80, s{sJ}, 384
s_and_b32 s81, s{sWAVE}, 1
s_mul_i32 s81, s81, 192
s_add_u32 s80, s80, s81
v_lshrrev_b32 v10, 4, v0
v_lshlrev_b32 v10, 3, v10""")
    for ft in range(6):
        e(f"buffer_load_dwordx2 v[{224+2*ft}:{225+2*ft}], v10, s[{STB}:{STB+3}], s80 offen offset:{32*ft}")

    x_addr_setup(e)
    e(f"""v_lshrrev_b32 v10, 4, v0
v_bfe_u32 v11, v0, 2, 2
v_lshlrev_b32 v12, 3, v10
v_add_u32 v12, v12, v11
v_mul_u32_u24 v12, 384, v12
v_bfe_u32 v13, v0, 3, 1
v_lshlrev_b32 v13, 1, v13
v_and_b32 v14, 1, v10
v_lshlrev_b32 v14, 2, v14
v_or_b32 v13, v13, v14
v_bfe_u32 v14, v0, 1, 1
s_and_b32 s81, s{sWAVE}, 1
s_mul_i32 s81, s81, 12
v_add_u32 v14, s81, v14
v_and_b32 v15, 1, v0
v_lshlrev_b32 v15, 3, v15
v_add_u32 v12, v12, v15
v_add_u32 v12, 16384, v12""")
    for ft in range(6):
        e(f"""v_add_u32 v10, {2*ft}, v14
v_xor_b32 v10, v10, v13
v_lshlrev_b32 v10, 4, v10
v_add_u32 v{4+ft}, v12, v10""")
    if opt.plate:
        e(f"s_waitcnt vmcnt(0)" if False else "s_waitcnt vmcnt(0)")
    else:
        e("s_waitcnt vmcnt(0)")
        gen_prep_finish(e, sWAVE, 16, 'F')
    consumer_common_setup(e)
    for ft in range(6):
        b = 36 + 4 * ft
        e(f"""v_lshlrev_b32 v{b}, 16, v{224+2*ft}
v_and_b32 v{b+1}, 0xffff0000, v{224+2*ft}
v_lshlrev_b32 v{b+2}, 16, v{225+2*ft}
v_and_b32 v{b+3}, 0xffff0000, v{225+2*ft}""")
    stamp(e, 0, 14)
    stamp_clk(e, 14, 14)
    dbgmax(e, 2)
    gen_main_loop(e, 'F')
    dbgmax(e, 3)
    if opt.eprio: e(f"s_setprio {opt.eprio}")
    stamp(e, 1, 14)
    stamp_clk(e, 15, 14)
    e(f"""s_lshr_b32 s80, s{sWAVE}, 1
s_lshl_b32 s81, s{sRB}, 1
s_add_u32 s80, s80, s81
s_mul_i32 s80, s80, 94
s_mul_i32 s81, s{sJ}, 6
s_add_u32 s80, s80, s81
s_and_b32 s81, s{sWAVE}, 1
s_mul_i32 s81, s81, 3
s_add_u32 s80, s80, s81
s_lshl_b32 s32, s80, 12
v_lshlrev_b32 v10, 4, v0""")
    k = 0
    OB = 196 if opt.fsw else SETA
    pend = []
    for u in range(3):
        for tt in range(4):
            o = OB + 4 * k; k += 1
            vals = [acc_ffn(2*u, tt), acc_ffn(2*u+1, tt)]
            tmp = 16 + 8 * (k & 1)
            for h, a in enumerate(vals):
                for r in range(4):
                    e(f"v_max_f32 v{tmp+4*h+r}, 0, v{a+r}")
            for h, a in enumerate(vals):
                for r in range(0, 4, 2):
                    e(f"v_pk_mul_f32 v[{a+r}:{a+r+1}], v[{a+r}:{a+r+1}], v[{tmp+4*h+r}:{tmp+4*h+r+1}]")
            for h, a in enumerate(vals):
                for r in range(0, 4, 2):
                    e(f"v_cvt_pk_bf16_f32 v{o+2*h+(r>>1)}, v{a+r}, v{a+r+1}")
            st_ = f"buffer_store_dwordx4 {R(o)}, v10, s[{SWS}:{SWS+3}], s32 offen offset:{tt*1024} sc1"
            if opt.fsw: pend.append(st_)
            else: e(st_)
        if u < 2:
            if opt.fsw: pend.append("s_add_u32 s32, s32, 4096")
            else: e("s_add_u32 s32, s32, 4096")
    if opt.fsw:
        ssm_w_setup(e, 'F', order=False, defer_lds=(opt.fsw == 2))
        e("v_lshlrev_b32 v10, 4, v0")
        for x in pend: e(x)
    lds_count(e, 16, 12)
    stamp(e, 2, 14)
    tile_flag(e, 'F')
    dbgmax(e, 4)
    stamp(e, 3, 14)
    if opt.fsw == 2:
        w_prefetch(e, 10, NLS, 88, do_lds=False, rng=range(opt.fswn, NW))
        w_lds(e, NLS, 88)
    e("s_branch L_SSM_P2b" if opt.fsw else "s_branch L_SSM_P2")

def gen_code_prefetch(e):
    e(f"""s_cmp_eq_u32 s{sWAVE}, 3
s_cbranch_scc0 L_CPF_done
s_getpc_b64 s[80:81]
L_CPF_pc:
s_sub_u32 s80, s80, L_CPF_pc-{NAME}
s_subb_u32 s81, s81, 0
s_lshr_b32 s82, s2, 3
s_lshl_b32 s82, s82, 11
v_and_b32 v10, 15, v0
v_lshlrev_b32 v10, 7, v10
v_add_u32 v10, s82, v10
v_min_u32 v10, L_CODE_END-{NAME}-4, v10
s_mov_b64 exec, 0xffff
global_load_dword v19, v10, s[80:81]
s_mov_b64 exec, -1
L_CPF_done:""")

def gen_consumer(e):
    dbgmax(e, 1)
    e(f"""v_mov_b32 v10, {LDS_FLAG}
v_mov_b32 v12, 0
v_mov_b32 v13, 0
v_mov_b32 v14, 0
v_mov_b32 v15, 0
ds_write_b128 v10, v[12:15]
ds_write_b128 v10, v[12:15] offset:16
ds_write_b128 v10, v[12:15] offset:32""")
    if opt.cpf: gen_code_prefetch(e)
    consumer_start_loads(e, 0)
    e(f"""s_cmp_eq_u32 s{sISU}, 1
s_cbranch_scc1 L_CONS_U""")
    gen_consumer_ffn(e)
    gen_consumer_u(e)

def pk(op, d, a, b, c=None, bsel=None, neg=False):
    assert bsel == 0, "op_sel hi-broadcast is unsafe next to MFMA (measured)"
    n = 3 if c is not None else 2
    sel = [0, bsel] + ([0] if c is not None else [])
    selh = [1, bsel] + ([1] if c is not None else [])
    s = f"{op} v[{d}:{d+1}], v[{a}:{a+1}], v[{b}:{b+1}]" + (f", v[{c}:{c+1}]" if c is not None else "")
    s += " op_sel:[" + ",".join(map(str, sel)) + "] op_sel_hi:[" + ",".join(map(str, selh)) + "]"
    if neg:
        ng = [0, 1] + ([0] if c is not None else [])
        s += " neg_lo:[" + ",".join(map(str, ng)) + "] neg_hi:[" + ",".join(map(str, ng)) + "]"
    return s

def gen_consumer_u(e):
    e("L_CONS_U:")
    x_addr_setup(e)
    e(f"""s_and_b32 s81, s{sWAVE}, 1
s_mul_i32 s81, s81, {96*128}
s_add_u32 s81, s81, 16384
v_add_u32 v4, s81, v10
v_xor_b32 v5, 64, v4""")
    if not opt.plate:
        e("s_waitcnt vmcnt(0)")
        gen_prep_finish(e, sWAVE, 16, 'U')
    consumer_common_setup(e)
    dbgmax(e, 2)
    stamp(e, 0, 14)
    gen_main_loop(e, 'U')
    dbgmax(e, 3)
    if opt.eprio: e(f"s_setprio {opt.eprio}")
    stamp(e, 1, 14)
    def K(ct, i): return 160 + 18 * ct + 2 * i
    LAM, L8, L16, L16Q, L64, L128, L512, L1024, C2 = range(9)
    ent = {LAM: 0, L8: 1, L16: 3, L64: 6, L128: 7, L512: 8, L1024: 9, C2: 10}
    e(f"""s_and_b32 s81, s{sWAVE}, 1
s_mul_i32 s81, s81, {48*8}
s_add_u32 s81, s81, {LDS_TAB}
v_and_b32 v10, 15, v0
v_lshlrev_b32 v10, 3, v10
v_add_u32 v10, s81, v10
v_lshrrev_b32 v11, 4, v0
v_mul_u32_u24 v11, 768, v11
v_add_u32 v11, v11, v10""")
    for ct in range(3):
        for k, en in ent.items():
            e(f"ds_read_b64 v[{K(ct,k)}:{K(ct,k)+1}], v10 offset:{en*768 + ct*128}")
        e(f"ds_read_b64 v[{K(ct,L16Q)}:{K(ct,L16Q)+1}], v11 offset:{2*768 + ct*128}")
    e("s_waitcnt lgkmcnt(0)")
    LI = [2, 252, 254]
    C2I = [16, 18, 20]
    for ct in range(3):
        e(f"v_mov_b32 v{LI[ct]}, v{K(ct, LAM)+1}")
    def U(n, ct, part):
        return acc_u(n >> 1, 2 * ct + part) + 2 * (n & 1)
    def Er(ct, s): return 16 + 8 * ct + 4 * s
    def Ei(ct, s): return 18 + 8 * ct + 4 * s
    for n in range(1, 8):
        src = (n - 1) & 1; dst = n & 1
        for ct in range(3):
            pr = U(0, ct, 0) if n == 1 else Er(ct, src)
            pi = U(0, ct, 1) if n == 1 else Ei(ct, src)
            e(pk("v_pk_fma_f32", Er(ct, dst), pr, K(ct, LAM), U(n, ct, 0), 0))
            e(pk("v_pk_fma_f32", Ei(ct, dst), pi, K(ct, LAM), U(n, ct, 1), 0))
        for ct in range(3):
            pr = U(0, ct, 0) if n == 1 else Er(ct, src)
            pi = U(0, ct, 1) if n == 1 else Ei(ct, src)
            e(pk("v_pk_fma_f32", Er(ct, dst), pi, LI[ct], Er(ct, dst), 0, neg=True))
            e(pk("v_pk_fma_f32", Ei(ct, dst), pr, LI[ct], Ei(ct, dst), 0))
    def LL(ct): return 16 + 8 * ct
    for ct in range(3):
        er, ei, l8 = Er(ct, 1), Ei(ct, 1), K(ct, L8)
        e(f"""v_fma_f32 v{LL(ct)}, v{l8}, v{er}, v{er+1}
v_fma_f32 v{LL(ct)+1}, v{l8}, v{ei}, v{ei+1}
v_fma_f32 v{LL(ct)}, -v{l8+1}, v{ei}, v{LL(ct)}
v_fma_f32 v{LL(ct)+1}, v{l8+1}, v{er}, v{LL(ct)+1}""")
    def G(ct, q): return 214 + 8 * ct + 2 * q
    for ct in range(3):
        for c in range(2):
            a, b, a2, b2 = G(ct, 0) + c, G(ct, 1) + c, G(ct, 2) + c, G(ct, 3) + c
            e(f"""v_mov_b32 v{a}, v{LL(ct)+c}
v_mov_b32 v{b}, v{LL(ct)+c}
v_permlane16_swap_b32 v{a}, v{b}
v_mov_b32 v{a2}, v{a}
v_mov_b32 v{b2}, v{b}
v_permlane32_swap_b32 v{a}, v{a2}
v_permlane32_swap_b32 v{b}, v{b2}""")
    for ct in range(3):
        cfma(e, G(ct, 1), K(ct, L16), G(ct, 0), G(ct, 1))
    for ct in range(3):
        cfma(e, G(ct, 2), K(ct, L16), G(ct, 1), G(ct, 2))
    for ct in range(3):
        cfma(e, G(ct, 3), K(ct, L16), G(ct, 2), G(ct, 3))
    e(f"""s_mov_b32 s80, 0xffff0000
s_mov_b32 s81, 0
s_mov_b32 s82, 0
s_mov_b32 s83, 0x0000ffff
s_mov_b32 s90, 0
s_mov_b32 s91, 0xffff0000""")
    for ct in range(3):
        for c in range(2):
            e(f"""v_cndmask_b32 v{LL(ct)+c}, 0, v{G(ct,0)+c}, s[80:81]
v_cndmask_b32 v{LL(ct)+c}, v{LL(ct)+c}, v{G(ct,1)+c}, s[82:83]
v_cndmask_b32 v{LL(ct)+c}, v{LL(ct)+c}, v{G(ct,2)+c}, s[90:91]""")
    e(f"""s_and_b32 s84, s{sWAVE}, 1
s_mul_i32 s85, s84, {48*8}
s_add_u32 s85, s85, {LDS_LX}
v_and_b32 v10, 15, v0
v_lshlrev_b32 v10, 3, v10
v_add_u32 v10, s85, v10
s_lshl_b32 s85, s84, 2
s_add_u32 s85, s85, {LDS_FLAG}
v_mov_b32 v11, s85
s_cmp_ge_u32 s{sWAVE}, 2
s_cbranch_scc1 L_U_wt1""")
    for ct in range(3):
        e(f"ds_write_b64 v10, v[{G(ct,3)}:{G(ct,3)+1}] offset:{ct*128}")
    e(f"""v_mov_b32 v12, 1
s_waitcnt lgkmcnt(0)
ds_write_b32 v11, v12
s_branch L_U_lb
L_U_wt1:
s_mov_b32 s85, 0
L_U_pairwait:
ds_read_b32 v12, v11
s_add_u32 s85, s85, 1
s_waitcnt lgkmcnt(0)
v_readfirstlane_b32 s86, v12
s_cmp_ge_u32 s85, {opt.spin_limit}
s_cbranch_scc1 L_U_pairok
s_cmp_eq_u32 s86, 0
s_cbranch_scc1 L_U_pairwait
L_U_pairok:""")
    for ct in range(3):
        e(f"ds_read_b64 v[{G(ct,0)}:{G(ct,0)+1}], v10 offset:{ct*128}")
    e("s_waitcnt lgkmcnt(0)")
    for ct in range(3):
        cfma(e, G(ct, 1), K(ct, L64), G(ct, 0), G(ct, 3))
    e(f"""s_mov_b32 s80, 0xffff0000
s_mov_b32 s81, 0
s_mov_b32 s82, 0
s_mov_b32 s83, 0x0000ffff
v_cndmask_b32 v240, v{G(0,1)}, v{G(1,1)}, s[80:81]
v_cndmask_b32 v241, v{G(0,1)+1}, v{G(1,1)+1}, s[80:81]
v_cndmask_b32 v240, v240, v{G(2,1)}, s[82:83]
v_cndmask_b32 v241, v241, v{G(2,1)+1}, s[82:83]
v_mov_b32 v242, s{sNONCE}
v_mov_b32 v243, s{sNONCE}
s_mul_i32 s85, s{sJ}, 16
s_add_u32 s85, s85, s{sRB}
s_mul_i32 s85, s85, 96
s_mul_i32 s86, s84, 48
s_add_u32 s85, s85, s86
s_lshl_b32 s85, s85, 4
s_add_u32 s85, s85, {AG_OFF}
v_lshlrev_b32 v12, 4, v0
s_mov_b32 exec_lo, -1
s_mov_b32 exec_hi, 0x0000ffff
buffer_store_dwordx4 v[240:243], v12, s[{SWS}:{SWS+3}], s85 offen sc0 sc1
s_mov_b64 exec, -1
L_U_lb:""")
    if not opt.udelay: lds_count(e, 16, 12)
    stamp(e, 2, 14)
    LB = 112 + 0
    lbregs = [40 + 4 * i for i in range(6)] + [240 + 4 * i for i in range(4)] + [32 + 0, 36]
    lbregs = [40 + 4 * i for i in range(6)] + [240, 244, 248] + [216, 224, 232]
    e(f"""s_mul_i32 s85, s{sJ}, {16*96}
s_mul_i32 s86, s84, 48
s_add_u32 s85, s85, s86
s_lshl_b32 s85, s85, 4
s_add_u32 s85, s85, {AG_OFF}
v_lshrrev_b32 v12, 4, v0
v_lshlrev_b32 v12, 2, v12
v_sub_u32 v12, s{sRB}, v12
v_mov_b32 v9, 0x10000000
v_and_b32 v13, 15, v0""")
    for m in range(4):
        e(f"""v_subrev_u32 v14, {1+m}, v12
v_cmp_le_i32 s[{88+2*m}:{89+2*m}], 0, v14
v_mul_u32_u24 v15, 96, v14
v_add_u32 v15, v15, v13
v_lshlrev_b32 v15, 4, v15
v_cndmask_b32 v{4+m}, v9, v15, s[{88+2*m}:{89+2*m}]""")
    C2J = [8, 10, 238]
    for ct in range(3):
        e(f"v_mov_b32 v{C2J[ct]}, v{K(ct, C2)+1}")
    tk = 0
    for n in range(8):
        for ct in range(3):
            ur, ui = U(n, ct, 0), U(n, ct, 1)
            ta, tb = 40 + 4 * (tk % 6), 42 + 4 * (tk % 6); tk += 1
            e(pk("v_pk_mul_f32", ta, ur, K(ct, C2), None, 0))
            e(pk("v_pk_mul_f32", tb, ur, C2J[ct], None, 0))
            e(pk("v_pk_fma_f32", ur, ui, C2J[ct], ta, 0, neg=True))
            e(pk("v_pk_fma_f32", ui, ui, K(ct, C2), tb, 0))
    CR = list(range(38, 52)) + [54]
    for k in range(15):
        e(f"s_mov_b32 s{CR[k]}, s{sNONCE}")
    e(f"""s_add_u32 s87, s85, {47*16 + 8}
s_mov_b32 s86, 0
L_U_cp:""")
    for k in range(15):
        e(f"""s_cmp_gt_u32 s{sRB}, {k}
s_cbranch_scc0 L_U_cpl
s_load_dword s{CR[k]}, s[{P_WS}:{P_WS+1}], s87 offset:{k*1536} glc""")
    e(f"""L_U_cpl:
s_add_u32 s86, s86, 1
s_waitcnt lgkmcnt(0)
s_mov_b32 s81, 0""")
    for k in range(15):
        e(f"s_xor_b32 s82, s{CR[k]}, s{sNONCE}\ns_or_b32 s81, s81, s82")
    e(f"""s_cmp_ge_u32 s86, {opt.spin_limit}
s_cbranch_scc1 L_U_cpok
s_cmp_eq_u32 s81, 0
s_cbranch_scc1 L_U_cpok
s_sleep 1
s_branch L_U_cp
L_U_cpok:""")
    stamp(e, 11, 14)
    e(f"s_mov_b32 s86, 0\nL_U_lbloop:")
    for m in range(4):
        for ct in range(3):
            r = lbregs[m * 3 + ct]
            e(f"buffer_load_dwordx4 {R(r)}, v{4+m}, s[{SWS}:{SWS+3}], s85 offen offset:{ct*256} sc1")
    e("s_add_u32 s86, s86, 1\ns_mov_b64 s[96:97], 0\ns_waitcnt vmcnt(0)")
    for m in range(4):
        for ct in range(3):
            r = lbregs[m * 3 + ct]
            e(f"""v_cmp_ne_u32 vcc, s{sNONCE}, v{r+2}
s_and_b64 vcc, vcc, s[{88+2*m}:{89+2*m}]
s_or_b64 s[96:97], s[96:97], vcc""")
    e(f"""s_cmp_ge_u32 s86, {opt.spin_limit}
s_cbranch_scc1 L_U_lbok
s_cmp_eq_u64 s[96:97], 0
s_cbranch_scc0 L_U_lbloop
L_U_lbok:""")
    if opt.udelay: lds_count(e, 16, 12)
    def S(m, ct): return lbregs[m * 3 + ct]
    for ct in range(3):
        cfma(e, S(2, ct), K(ct, L128), S(3, ct), S(2, ct))
    for ct in range(3):
        cfma(e, S(1, ct), K(ct, L128), S(2, ct), S(1, ct))
    for ct in range(3):
        cfma(e, S(0, ct), K(ct, L128), S(1, ct), S(0, ct))
    for ct in range(3):
        z, b, t, u = S(0, ct), S(1, ct), S(2, ct), S(3, ct)
        e(f"""v_mov_b32 v{b}, v{z}
v_mov_b32 v{b+1}, v{z+1}
v_permlane16_swap_b32 v{z}, v{b}
v_permlane16_swap_b32 v{z+1}, v{b+1}""")
        cfma(e, t, K(ct, L512), b, z)
        e(f"""v_mov_b32 v{u}, v{t}
v_mov_b32 v{u+1}, v{t+1}
v_permlane32_swap_b32 v{t}, v{u}
v_permlane32_swap_b32 v{t+1}, v{u+1}""")
        cfma(e, z, K(ct, L1024), u, t)
    e(f"s_cmp_ge_u32 s{sWAVE}, 2\ns_cbranch_scc0 L_U_hw0")
    for ct in range(3):
        cfma(e, S(1, ct), K(ct, L64), S(0, ct), G(ct, 0))
    e("s_branch L_U_hw1\nL_U_hw0:")
    for ct in range(3):
        e(f"v_mov_b32 v{S(1,ct)}, v{S(0,ct)}\nv_mov_b32 v{S(1,ct)+1}, v{S(0,ct)+1}")
    e("L_U_hw1:\ns_nop 1")
    for ct in range(3):
        cfma(e, S(2, ct), K(ct, L16Q), S(1, ct), LL(ct))
    for ct in range(3):
        hl, l8, er, ei = S(2, ct), K(ct, L8), Er(ct, 1), Ei(ct, 1)
        cr, ci = S(3, ct), S(3, ct) + 2
        e(f"""v_mov_b32 v{cr}, v{hl}
v_mov_b32 v{ci}, v{hl+1}
v_fma_f32 v{cr+1}, v{l8}, v{hl}, v{er}
v_fma_f32 v{ci+1}, v{l8}, v{hl+1}, v{ei}
v_fma_f32 v{cr+1}, -v{l8+1}, v{hl+1}, v{cr+1}
v_fma_f32 v{ci+1}, v{l8+1}, v{hl}, v{ci+1}""")
    for ct in range(3):
        cr, ci = S(3, ct), S(3, ct) + 2
        ta, tb = S(1, ct), S(1, ct) + 2
        e(pk("v_pk_mul_f32", ta, cr, K(ct, C2), None, 0))
        e(pk("v_pk_mul_f32", tb, cr, C2J[ct], None, 0))
    for ct in range(3):
        cr, ci = S(3, ct), S(3, ct) + 2
        ta, tb = S(1, ct), S(1, ct) + 2
        e(pk("v_pk_fma_f32", cr, ci, C2J[ct], ta, 0, neg=True))
        e(pk("v_pk_fma_f32", ci, ci, K(ct, C2), tb, 0))
    for n in range(8):
        for ct in range(3):
            pr = S(3, ct) if n == 0 else U(n - 1, ct, 0)
            pi = S(3, ct) + 2 if n == 0 else U(n - 1, ct, 1)
            e(pk("v_pk_fma_f32", U(n, ct, 0), pr, K(ct, LAM), U(n, ct, 0), 0))
            e(pk("v_pk_fma_f32", U(n, ct, 1), pi, K(ct, LAM), U(n, ct, 1), 0))
        for ct in range(3):
            pr = S(3, ct) if n == 0 else U(n - 1, ct, 0)
            pi = S(3, ct) + 2 if n == 0 else U(n - 1, ct, 1)
            e(pk("v_pk_fma_f32", U(n, ct, 0), pi, LI[ct], U(n, ct, 0), 0, neg=True))
            e(pk("v_pk_fma_f32", U(n, ct, 1), pr, LI[ct], U(n, ct, 1), 0))
    stamp(e, 3, 14)
    e(f"""v_and_b32 v10, 15, v0
v_lshrrev_b32 v11, 4, v0
v_lshlrev_b32 v11, 3, v11
v_sub_u32 v10, v10, v11""")
    e("v_mov_b32 v14, 0x3f80")
    for b in range(2):
        e(f"""v_add_u32 v12, {16*b}, v10
v_and_b32 v13, 1, v12
v_lshlrev_b32 v13, 4, v13
v_lshlrev_b32 v13, v13, v14
v_lshrrev_b32 v12, 1, v12
v_cmp_eq_u32 s[86:87], 0, v12
v_cmp_eq_u32 s[88:89], 1, v12
v_cmp_eq_u32 s[90:91], 2, v12
v_cmp_eq_u32 s[92:93], 3, v12
v_cndmask_b32 v{40+4*b}, 0, v13, s[86:87]
v_cndmask_b32 v{41+4*b}, 0, v13, s[88:89]
v_cndmask_b32 v{42+4*b}, 0, v13, s[90:91]
v_cndmask_b32 v{43+4*b}, 0, v13, s[92:93]""")
    e(f"""s_lshr_b32 s80, s{sWAVE}, 1
s_lshl_b32 s81, s{sRB}, 1
s_add_u32 s80, s80, s81
s_mul_i32 s80, s80, 94
s_mul_i32 s81, s{sJ}, 6
s_mul_i32 s82, s84, 3
s_add_u32 s81, s81, s82
s_add_u32 s80, s80, s81
s_add_u32 s80, s80, 54
s_lshl_b32 s80, s80, 12
v_lshlrev_b32 v10, 4, v0""")
    for ct in range(3):
        c2 = K(ct, C2)
        for i in range(4):
            r0, r1, i0, i1 = U(2*i, ct, 0), U(2*i+1, ct, 0), U(2*i, ct, 1), U(2*i+1, ct, 1)
            e(f"""v_cvt_pk_bf16_f32 v{48+i}, v{r0}, v{r1}
v_cvt_pk_bf16_f32 v{52+i}, v{r0+1}, v{r1+1}
v_cvt_pk_bf16_f32 v{56+i}, -v{i0}, -v{i1}
v_cvt_pk_bf16_f32 v{60+i}, -v{i0+1}, -v{i1+1}""")
        def D(part, tt): return 224 + 16 * part + 4 * tt
        for part in range(2):
            for a in range(2):
                for b in range(2):
                    A = 48 + 8 * part + 4 * a
                    e(f"v_mfma_f32_16x16x32_bf16 {R(D(part, 2*b+a))}, {R(A)}, {R(40+4*b)}, 0")
        if True:
            e(f"s_add_u32 s82, s81, {ct}\ns_cmp_ge_u32 s82, 40\ns_cbranch_scc1 L_U_skip{ct}")
            for tt in range(4):
                o = acc_u(tt, 2 * ct)
                dr, di = D(0, tt), D(1, tt)
                e(f"""v_cvt_pk_bf16_f32 v{o}, v{dr}, v{dr+1}
v_cvt_pk_bf16_f32 v{o+1}, v{dr+2}, v{dr+3}
v_cvt_pk_bf16_f32 v{o+2}, v{di}, v{di+1}
v_cvt_pk_bf16_f32 v{o+3}, v{di+2}, v{di+3}
buffer_store_dwordx4 {R(o)}, v10, s[{SWS}:{SWS+3}], s80 offen offset:{tt*1024} sc1""")
            e(f"L_U_skip{ct}:\ns_nop 7\ns_add_u32 s80, s80, 4096")
    if opt.uhold: lds_count(e, 32, 12)
    stamp(e, 4, 14)
    tile_flag(e, 'U')
    dbgmax(e, 4)
    stamp(e, 5, 14)
    e("s_branch L_SSM_P2")

ACC2 = 16
WSL = 96
ASL = 196
NW, NA = 5, 3
def set_nw(nw, na):
    global NW, NA, ASL
    NW, NA = nw, na
    ASL = WSL + 20 * nw
def acc2(dt, tt): return ACC2 + (dt * 4 + tt) * 4

def wrap_w(e):
    if not opt.rot: return
    e("""s_sub_u32 s91, s91, 1
s_cmp_eq_u32 s91, 0
s_cselect_b32 s95, s93, 0
s_sub_u32 s84, s84, s95""")

def wrap_a(e):
    if not opt.rot: return
    e("""s_sub_u32 s92, s92, 1
s_cmp_eq_u32 s92, 0
s_cselect_b32 s95, s94, 0
s_sub_u32 s85, s85, s95""")

def rot_setup(e, n_sgpr_or_const, is_const):
    if not opt.rot: return
    if opt.map2 == 1:
        e(f"""s_and_b32 s95, s{sCB}, 3
s_lshl_b32 s95, s95, 1
s_add_u32 s95, s95, s{sRB2}
s_and_b32 s95, s95, 7""")
    else:
        e(f"""s_and_b32 s95, s{sRB2}, 3
s_lshl_b32 s95, s95, 1
s_add_u32 s95, s95, s{sCB}
s_and_b32 s95, s95, 7""")
    n = f"{n_sgpr_or_const}" if is_const else f"s{n_sgpr_or_const}"
    e(f"""s_mul_i32 s90, s95, {n}
s_lshr_b32 s90, s90, 3
s_sub_u32 s91, {n}, s90
s_mov_b32 s92, s91
s_mul_i32 s93, {n}, 5120
s_mul_i32 s94, {n}, 4096
s_mul_i32 s95, s90, 5120
s_add_u32 s84, s84, s95""")

def rot_act(e):
    if not opt.rot: return
    e("""s_lshl_b32 s95, s90, 12
s_add_u32 s85, s85, s95""")

def gen_p2_stream(e, tag, nsteps, extra_hook=None):
    queue = []
    SC = '' if opt.nosc1 else 'sc1'
    def ld_w(s):
        b = WSL + 20 * (s % NW)
        for dt in range(5):
            if dt < 4:
                e(f"buffer_load_dwordx4 {R(b+4*dt)}, v1, s[{SWS}:{SWS+3}], s84 offen offset:{dt*1024} {SC}")
            else:
                e(f"s_add_u32 s84, s84, 4096")
                e(f"buffer_load_dwordx4 {R(b+4*dt)}, v1, s[{SWS}:{SWS+3}], s84 offen {SC}")
                e(f"s_add_u32 s84, s84, 1024")
            queue.append(('w', s))
        wrap_w(e)
    def ld_a(s):
        b = ASL + 16 * (s % NA)
        for tt in range(4):
            e(f"buffer_load_dwordx4 {R(b+4*tt)}, v1, s[{SWS}:{SWS+3}], s85 offen offset:{tt*1024} {SC}")
            queue.append(('a', s))
        e(f"s_add_u32 s85, s85, 4096")
        wrap_a(e)
    return ld_w, ld_a, queue

def p2_role(e, tag, nsteps):
    pass

def emit_stream(e, nsteps, ld_w, ld_a, queue, NL, vL, late_lds=None, sig20=False):
    if opt.ststamps:
        e(f"s_memtime s[100:101]\ns_waitcnt lgkmcnt(0)\nv_writelane_b32 v250, s100, 0")
    for s in range(min(NA, nsteps)): ld_a(s)
    if late_lds is not None: w_lds(e, NL, late_lds, queue)
    for s in range(nsteps):
        idx = [i for i, q in enumerate(queue) if q in (('w', s), ('a', s))]
        inlds = NW <= s < NW + NL
        if idx:
            last = max(idx)
            n = len(queue) - 1 - last
            e(f"s_waitcnt vmcnt({n})" + (" lgkmcnt(0)" if inlds else ""))
            del queue[:last + 1]
        elif inlds:
            e("s_waitcnt lgkmcnt(0)")
        if sig20 and s == 0 and opt.sshelp: lds_count(e, 20, 10)
        if opt.ststamps:
            e(f"s_memtime s[100:101]\ns_waitcnt lgkmcnt(0)\nv_writelane_b32 v250, s100, {s+1}")
        wb = WSL + 20 * (s % NW); ab = ASL + 16 * (s % NA)
        for dt in range(5):
            for tt in range(4):
                d = acc2(dt, tt)
                c = R(d)
                e(f"v_mfma_f32_16x16x32_bf16 {R(d)}, {R(wb+4*dt)}, {R(ab+4*tt)}, {c}")
        if s + NA < nsteps: ld_a(s + NA)
        t = s + NW
        if t < nsteps and t >= NW + NL:
            ld_w(t)
        t = s + 2
        if NW <= t < min(NW + NL, nsteps):
            li = [i for i, q in enumerate(queue) if q == ('l', t)]
            if li:
                e(f"s_waitcnt vmcnt({len(queue) - 1 - max(li)})")
                del queue[:max(li) + 1]
            for dt in range(5):
                e(f"ds_read_b128 {R(WSL + 20*(t % NW) + 4*dt)}, v{vL} offset:{(t-NW)*5120 + dt*1024}")

def spoll_tiles(e, tag, kind, sleep=1):
    off = 0 if kind == 'F' else 128
    n = 18 if kind == 'F' else 14
    e(f"""s_lshl_b32 s89, s{sRB2}, 8
s_add_u32 s89, s89, {TFLAG_OFF + off}
s_mov_b32 s80, 0
L_sp_{tag}:""")
    if kind == 'F':
        e(f"s_load_dwordx16 s[40:55], s[{P_WS}:{P_WS+1}], s89 glc")
        e(f"s_load_dwordx2 s[56:57], s[{P_WS}:{P_WS+1}], s89 offset:64 glc")
        regs = list(range(40, 58))
    else:
        e(f"s_load_dwordx8 s[40:47], s[{P_WS}:{P_WS+1}], s89 glc")
        e(f"s_load_dwordx4 s[48:51], s[{P_WS}:{P_WS+1}], s89 offset:32 glc")
        e(f"s_load_dwordx2 s[54:55], s[{P_WS}:{P_WS+1}], s89 offset:48 glc")
        regs = list(range(40, 52)) + [54, 55]
    e("s_add_u32 s80, s80, 1\ns_waitcnt lgkmcnt(0)\ns_mov_b32 s81, 0")
    for r_ in regs:
        e(f"s_xor_b32 s82, s{r_}, s{sNONCE}\ns_or_b32 s81, s81, s82")
    e(f"""s_cmp_ge_u32 s80, {opt.spin_limit}
s_cbranch_scc1 L_sp_done_{tag}
s_cmp_eq_u32 s81, 0
s_cbranch_scc1 L_sp_done_{tag}
s_sleep {sleep}
s_branch L_sp_{tag}
L_sp_done_{tag}:""")

def ffn_acc_loads(e):
    srd(e, STA, P_B2, 1280)
    e(f"""v_lshrrev_b32 v4, 4, v0
v_lshlrev_b32 v4, 3, v4
v_mov_b32 v5, 0x10000000
s_cmp_eq_u32 s86, 0
s_cselect_b32 s80, 0, 1
v_mov_b32 v6, s80
v_cmp_eq_u32 vcc, 1, v6
v_cndmask_b32 v4, v4, v5, vcc
s_mul_i32 s81, s{sCB}, 160""")
    for dt in range(5):
        e(f"buffer_load_dwordx2 v[{244+2*dt}:{245+2*dt}], v4, s[{STA}:{STA+3}], s81 offen offset:{32*dt}")

def ffn_acc_init(e):
    for dt in range(5):
        b = acc2(dt, 0)
        e(f"""v_lshlrev_b32 v{b}, 16, v{244+2*dt}
v_and_b32 v{b+1}, 0xffff0000, v{244+2*dt}
v_lshlrev_b32 v{b+2}, 16, v{245+2*dt}
v_and_b32 v{b+3}, 0xffff0000, v{245+2*dt}""")
        for tt in range(1, 4):
            for r in range(4):
                e(f"v_mov_b32 v{acc2(dt,tt)+r}, v{b+r}")

def ssm_pre(e):
    e(f"""s_lshr_b32 s80, s{sWAVE}, 1
s_lshl_b32 s80, s80, 5
s_and_b32 s81, s{sWAVE}, 1
s_lshl_b32 s81, s81, 3
s_add_u32 s80, s80, s81
s_lshl_b32 s81, s{sRB2}, 6
s_add_u32 s80, s80, s81
v_bfe_u32 v4, v0, 3, 1
v_lshlrev_b32 v4, 4, v4
v_and_b32 v5, 7, v0
v_add_u32 v4, v4, v5
v_add_u32 v4, s80, v4
v_lshrrev_b32 v5, 4, v0
v_lshlrev_b32 v6, 3, v5
s_mul_i32 s81, s{sCB}, 160
v_mul_u32_u24 v7, 1280, v4
v_add_u32 v7, v7, v6
v_lshlrev_b32 v8, 3, v4
v_mul_u32_u24 v248, 2560, v4
v_lshlrev_b32 v5, 4, v5
v_add_u32 v248, v248, v5""")
    XR, DK = 196, 206
    srd(e, STA, P_AX, 2621440)
    for dt in range(5):
        e(f"buffer_load_dwordx2 v[{XR+2*dt}:{XR+2*dt+1}], v7, s[{STA}:{STA+3}], s81 offen offset:{32*dt}")
    srd(e, STB, P_DSK, 1280)
    for dt in range(5):
        e(f"buffer_load_dwordx2 v[{DK+2*dt}:{DK+2*dt+1}], v6, s[{STB}:{STB+3}], s81 offen offset:{32*dt}")
    e(f"""s_mov_b32 s82, {G_OFF}
buffer_load_dwordx2 v[244:245], v8, s[{SWS}:{SWS+3}], s82 offen sc1""")
    for i in range(80):
        e(f"v_mov_b32 v{ACC2+i}, 0")
    e(f"""s_waitcnt vmcnt(0)
s_mov_b32 s80, 0
L_G_chk:
v_cmp_ne_u32 vcc, s{sNONCE}, v245
s_add_u32 s80, s80, 1
s_cmp_ge_u32 s80, {opt.spin_limit}
s_cbranch_scc1 L_G_ok
s_cmp_eq_u64 vcc, 0
s_cbranch_scc1 L_G_ok
s_sleep 2
buffer_load_dwordx2 v[244:245], v8, s[{SWS}:{SWS+3}], s82 offen sc1
s_waitcnt vmcnt(0)
s_branch L_G_chk
L_G_ok:
v_sub_f32 v246, 1.0, v244
v_cvt_pk_bf16_f32 v246, v246, v246
v_and_b32 v246, 0xffff0000, v246""")
    for dt in range(5):
        T = 216 + 4 * dt
        e(f"""v_lshlrev_b32 v10, 16, v{XR+2*dt}
v_and_b32 v11, 0xffff0000, v{XR+2*dt}
v_lshlrev_b32 v12, 16, v{XR+2*dt+1}
v_and_b32 v13, 0xffff0000, v{XR+2*dt+1}
v_lshlrev_b32 v{T}, 16, v{DK+2*dt}
v_and_b32 v{T+1}, 0xffff0000, v{DK+2*dt}
v_lshlrev_b32 v{T+2}, 16, v{DK+2*dt+1}
v_and_b32 v{T+3}, 0xffff0000, v{DK+2*dt+1}
v_mul_f32 v{T}, v{T}, v10
v_mul_f32 v{T+1}, v{T+1}, v11
v_mul_f32 v{T+2}, v{T+2}, v12
v_mul_f32 v{T+3}, v{T+3}, v13""")
    for w in range(4):
        e(f"s_cmp_eq_u32 s{sWAVE}, {w}\ns_cbranch_scc0 L_PRE_{w}")
        for dt in range(5):
            for r in range(4):
                e(f"v_mov_b32 v{acc2(dt,w)+r}, v{216+4*dt+r}")
        e(f"L_PRE_{w}:")

def lds_signal(e, off, vt):
    e(f"""v_mov_b32 v{vt}, {LDS_FLAG + off}
v_mov_b32 v{vt+1}, 1
ds_write_b32 v{vt}, v{vt+1}""")

def lds_count(e, off, vt):
    e(f"""v_mov_b32 v{vt}, {LDS_FLAG + off}
v_mov_b32 v{vt+1}, 1
s_mov_b64 exec, 1
ds_add_u32 v{vt}, v{vt+1}
s_mov_b64 exec, -1""")

def lds_wait_ge(e, tag, off, n, vt):
    e(f"""v_mov_b32 v{vt}, {LDS_FLAG + off}
s_mov_b32 s80, 0
L_lwg_{tag}:
ds_read_b32 v{vt+1}, v{vt}
s_add_u32 s80, s80, 1
s_waitcnt lgkmcnt(0)
v_readfirstlane_b32 s81, v{vt+1}
s_cmp_ge_u32 s80, {opt.spin_limit * 4}
s_cbranch_scc1 L_lwg_done_{tag}
s_cmp_ge_u32 s81, {n}
s_cbranch_scc1 L_lwg_done_{tag}
s_sleep 1
s_branch L_lwg_{tag}
L_lwg_done_{tag}:""")

def lds_wait(e, tag, off, vt):
    e(f"""v_mov_b32 v{vt}, {LDS_FLAG + off}
s_mov_b32 s80, 0
L_lw_{tag}:
ds_read_b32 v{vt+1}, v{vt}
s_add_u32 s80, s80, 1
s_waitcnt lgkmcnt(0)
v_readfirstlane_b32 s81, v{vt+1}
s_cmp_ge_u32 s80, {opt.spin_limit * 4}
s_cbranch_scc1 L_lw_done_{tag}
s_cmp_eq_u32 s81, 0
s_cbranch_scc0 L_lw_done_{tag}
s_sleep 1
s_branch L_lw_{tag}
L_lw_done_{tag}:""")

def gen_p2(e):
    e("L_FFN_P2:")
    e(f"""s_mul_i32 s80, s{sRB2}, 94
s_add_u32 s85, s85, s80
s_lshl_b32 s85, s85, 12
v_add_u32 v3, s87, v1""")
    rot_act(e)
    e(f"""s_mov_b32 s88, s84
s_mov_b32 s84, s86""")
    nsh_ = 8 if opt.map2 == 1 else 4
    ng_ = (-(-(-(-14 * 40 // nsh_)) // 64)) if opt.gw else 0
    e(f"s_waitcnt vmcnt({NLF*5})")
    gen_gate_compute(e)
    e("s_mov_b32 s84, s88")
    ffn_acc_init(e)
    ld_w, ld_a, queue = gen_p2_stream(e, 'F', 14)
    stamp(e, 3, 14)
    e(f"s_cmp_eq_u32 s86, 0\ns_cbranch_scc0 L_FFN_lw")
    spoll_tiles(e, 'FT', 'F')
    lds_signal(e, 8, 10)
    e("s_branch L_FFN_go\nL_FFN_lw:")
    lds_wait(e, 'F', 8, 10)
    e("L_FFN_go:")
    if opt.uhold:
        e(f"s_cmp_eq_u32 s{sISU}, 1\ns_cbranch_scc0 L_FFN_nohold")
        lds_wait_ge(e, 'UH', 32, 4, 10)
        e("L_FFN_nohold:")
    if opt.prio: e(f"s_setprio {opt.prio}")
    stamp(e, 4, 14)
    if opt.l2pf2: l2_prefetch(e, 85, 14 * 32, 4 if opt.map2 == 1 else 8, f"s{sCB}", 3 if opt.map2 == 1 else 7, 2 if opt.map2 == 1 else 1)
    del queue[:]
    e(f"s_cmp_ge_u32 s86, 2\ns_cbranch_scc1 L_FFN_13")
    emit_stream(e, 14, ld_w, ld_a, queue, NLF, 3, 87 if opt.ldslate else None, sig20=True)
    e("s_branch L_FFN_done")
    e("L_FFN_13:")
    del queue[:]
    emit_stream(e, 13, ld_w, ld_a, queue, NLF, 3, 87 if opt.ldslate else None, sig20=True)
    e("L_FFN_done:")
    if opt.ststamps:
        e(f"""s_memtime s[100:101]
s_waitcnt lgkmcnt(0)
v_writelane_b32 v250, s100, 15
s_lshl_b32 s98, s2, 3
s_add_u32 s98, s98, s{sWAVE}
s_lshl_b32 s98, s98, 6
s_add_u32 s98, s98, {STAMP_OFF + 0x40000}
v_lshlrev_b32 v251, 2, v0
s_mov_b64 exec, 0xffff
buffer_store_dword v250, v251, s[{SWS}:{SWS+3}], s98 offen
s_mov_b64 exec, -1""")
    stamp(e, 5, 14)
    e(f"""s_mul_i32 s80, s86, 20480
v_add_u32 v2, s80, v1""")
    for tt in range(4):
        for dt in range(5):
            e(f"ds_write_b128 v2, {R(acc2(dt,tt))} offset:{LDS_F + (tt*5+dt)*1024}")
    e("s_waitcnt lgkmcnt(0)\ns_barrier")
    stamp(e, 6, 14)
    e("s_branch L_END")
    e("L_SSM_P2:")
    if not opt.wearly: ssm_w_setup(e, 'P')
    e("L_SSM_P2b:")
    ssm_pre(e)
    ld_w, ld_a, queue = gen_p2_stream(e, 'S', 10)
    stamp(e, 6, 14)
    e(f"s_cmp_eq_u32 s{sWAVE}, 0\ns_cbranch_scc0 L_SSM_lw")
    spoll_tiles(e, 'ST', 'S')
    e('s_waitcnt vmcnt(0)')
    lds_signal(e, 12, 10)
    e("s_branch L_SSM_go\nL_SSM_lw:\ns_waitcnt vmcnt(0)")
    lds_wait(e, 'S', 12, 10)
    e("L_SSM_go:")
    if opt.sshelp:
        e(f"s_cmp_eq_u32 s{sISU}, 1\ns_cbranch_scc0 L_SSM_nohw")
        lds_wait_ge(e, 'H', 20, 4, 10)
        e("L_SSM_nohw:")
    stamp(e, 7, 14)
    dbgmax(e, 5)
    if opt.l2pf2: l2_prefetch(e, 85, 10 * 32, 4 if opt.map2 == 1 else 8, f"s{sCB}", 3 if opt.map2 == 1 else 7, 2 if opt.map2 == 1 else 1)
    del queue[:]
    emit_stream(e, 10, ld_w, ld_a, queue, NLS, 3)
    if opt.ststamps:
        e(f"""s_memtime s[100:101]
s_waitcnt lgkmcnt(0)
v_writelane_b32 v250, s100, 15
s_lshl_b32 s98, s2, 3
s_add_u32 s98, s98, s{sWAVE}
s_lshl_b32 s98, s98, 6
s_add_u32 s98, s98, {STAMP_OFF + 0x40000}
v_lshlrev_b32 v251, 2, v0
s_mov_b64 exec, 0xffff
buffer_store_dword v250, v251, s[{SWS}:{SWS+3}], s98 offen
s_mov_b64 exec, -1""")
    stamp(e, 8, 14)
    dbgmax(e, 6)
    e(f"""s_mul_i32 s83, s{sWAVE}, 15360
s_add_u32 s83, s83, {LDS_Y}
v_add_u32 v7, s83, v1""")
    OWN = 130
    for w in range(4):
        e(f"s_cmp_eq_u32 s{sWAVE}, {w}\ns_cbranch_scc0 L_YW_{w}")
        sl = 0
        for tt in range(4):
            if tt == w: continue
            for dt in range(5):
                e(f"ds_write_b128 v7, {R(acc2(dt,tt))} offset:{sl * 5120 + dt * 1024}")
            sl += 1
        for dt in range(5):
            for r in range(4):
                e(f"v_mov_b32 v{OWN+4*dt+r}, v{acc2(dt,w)+r}")
        e(f"s_branch L_YW_done\nL_YW_{w}:")
    e("L_YW_done:")
    for k in range(3):
        e(f"""s_cmp_ge_u32 {k}, s{sWAVE}
s_cselect_b32 s80, {k+1}, {k}
s_cselect_b32 s81, 0, 1
s_sub_u32 s81, s{sWAVE}, s81
s_mul_i32 s80, s80, 15360
s_mul_i32 s81, s81, 5120
s_add_u32 s80, s80, s81
s_add_u32 s80, s80, {LDS_Y}
v_add_u32 v{8+k}, s80, v1""")
    e(f"""s_mul_i32 s80, s{sWAVE}, 5120
v_add_u32 v11, s80, v1
v_add_u32 v12, 40960, v11""")
    srd(e, SOUT, P_OUT, 5242880)
    e(f"s_mul_i32 s81, s{sCB}, 320")
    e("s_waitcnt lgkmcnt(0)\ns_barrier")
    stamp(e, 9, 14)
    YR, FR = 16, 150
    for dt in range(5):
        for k in range(3):
            e(f"ds_read_b128 {R(YR+20*k+4*dt)}, v{8+k} offset:{dt*1024}")
        for w2 in range(4):
            e(f"ds_read_b128 {R(FR+20*w2+4*dt)}, v{11+(w2>>1)} offset:{(w2&1)*20480 + dt*1024}")
    for dt in range(5):
        e(f"s_waitcnt lgkmcnt({min(15, 7*(4-dt))})")
        y, f = OWN + 4 * dt, FR + 4 * dt
        t1, t2 = 80 + 0, 84
        A = 96 + 4 * dt
        for r in range(0, 4, 2):
            e(f"v_pk_add_f32 v[{YR+4*dt+r}:{YR+4*dt+r+1}], v[{YR+4*dt+r}:{YR+4*dt+r+1}], v[{YR+20+4*dt+r}:{YR+20+4*dt+r+1}]")
            e(f"v_pk_add_f32 v[{y+r}:{y+r+1}], v[{y+r}:{y+r+1}], v[{YR+40+4*dt+r}:{YR+40+4*dt+r+1}]")
            e(f"v_pk_add_f32 v[{f+r}:{f+r+1}], v[{f+r}:{f+r+1}], v[{f+20+r}:{f+20+r+1}]")
            e(f"v_pk_add_f32 v[{f+40+r}:{f+40+r+1}], v[{f+40+r}:{f+40+r+1}], v[{f+60+r}:{f+60+r+1}]")
        B_ = 76 + 0
        for r in range(0, 4, 2):
            e(f"v_pk_add_f32 v[{YR+20+4*dt+r}:{YR+20+4*dt+r+1}], v[{y+r}:{y+r+1}], v[{YR+4*dt+r}:{YR+4*dt+r+1}]")
            e(f"v_pk_add_f32 v[{f+20+r}:{f+20+r+1}], v[{f+r}:{f+r+1}], v[{f+40+r}:{f+40+r+1}]")
        for r in range(0, 4, 2):
            e(f"v_pk_mul_f32 v[{YR+40+4*dt+r}:{YR+40+4*dt+r+1}], v[{YR+20+4*dt+r}:{YR+20+4*dt+r+1}], v[244:245] op_sel:[0,0] op_sel_hi:[1,0]")
        for r in range(0, 4, 2):
            e(f"v_pk_fma_f32 v[{A+r}:{A+r+1}], v[{f+20+r}:{f+20+r+1}], v[246:247], v[{YR+40+4*dt+r}:{YR+40+4*dt+r+1}] op_sel:[0,0,0] op_sel_hi:[1,0,1]")
        e(f"buffer_store_dwordx4 {R(A)}, v248, s[{SOUT}:{SOUT+3}], s81 offen offset:{dt*64} {['', 'sc1', 'nt', 'sc0 sc1'][opt.osc]}")
    stamp(e, 10, 14)
    if opt.dbgtime: e("s_waitcnt vmcnt(0)")
    dbgmax(e, 7)
    e("s_branch L_END")

def gen_gate_loads(e, W=84):
    srd(e, STA, P_GW, 1280)
    srd(e, STB, P_AX, 2621440)
    e(f"""v_lshlrev_b32 v12, 4, v0
v_lshlrev_b32 v13, 2, v0
s_lshl_b32 s80, s2, 3
s_lshl_b32 s81, s{W}, 1
s_add_u32 s80, s80, s81
s_mul_i32 s81, s80, 1280
s_add_u32 s82, s81, 1280
buffer_load_dwordx4 v[16:19], v12, s[{STA}:{STA+3}], 0 offen
buffer_load_dword v20, v13, s[{STA}:{STA+3}], 0 offen offset:1024
buffer_load_dwordx4 v[22:25], v12, s[{STB}:{STB+3}], s81 offen
buffer_load_dword v26, v13, s[{STB}:{STB+3}], s81 offen offset:1024
buffer_load_dwordx4 v[28:31], v12, s[{STB}:{STB+3}], s82 offen
buffer_load_dword v32, v13, s[{STB}:{STB+3}], s82 offen offset:1024""")

def gen_gate_compute(e):
    e("v_mov_b32 v40, 0\nv_mov_b32 v41, 0")
    for m in range(5):
        e(f"""v_lshlrev_b32 v36, 16, v{16+m}
v_and_b32 v37, 0xffff0000, v{16+m}""")
        for row in range(2):
            x = 22 + 6 * row + m
            e(f"""v_lshlrev_b32 v38, 16, v{x}
v_and_b32 v39, 0xffff0000, v{x}
v_mul_f32 v38, v38, v36
v_mul_f32 v39, v39, v37
v_cvt_pk_bf16_f32 v38, v38, v39
v_lshlrev_b32 v39, 16, v38
v_and_b32 v38, 0xffff0000, v38
v_add_f32 v{40+row}, v{40+row}, v39
v_add_f32 v{40+row}, v{40+row}, v38""")
    for sh in ("row_shr:1", "row_shr:2", "row_shr:4", "row_shr:8", "row_bcast:15 row_mask:0xa", "row_bcast:31 row_mask:0xc"):
        for row in range(2):
            e(f"v_add_f32 v{40+row}, v{40+row}, v{40+row} {sh}")
    e("""v_readlane_b32 s80, v40, 63
v_readlane_b32 s81, v41, 63""")
    e(f"""v_mov_b32 v42, s80
v_mov_b32 v43, s81
v_cmp_eq_u32 vcc, 1, v0
v_cndmask_b32 v42, v42, v43, vcc
v_cvt_pk_bf16_f32 v42, v42, v42
v_and_b32 v42, 0xffff0000, v42
v_mul_f32 v42, 0xbfb8aa3b, v42
v_exp_f32 v42, v42
v_add_f32 v42, 1.0, v42
v_rcp_f32 v42, v42
v_cvt_pk_bf16_f32 v42, v42, v42
v_and_b32 v42, 0xffff0000, v42
v_mov_b32 v43, s{sNONCE}
v_lshlrev_b32 v44, 3, v0
s_lshl_b32 s80, s2, 3
s_lshl_b32 s81, s84, 1
s_add_u32 s80, s80, s81
s_lshl_b32 s80, s80, 3
s_add_u32 s80, s80, {G_OFF}
s_mov_b64 exec, 3
buffer_store_dwordx2 v[42:43], v44, s[{SWS}:{SWS+3}], s80 offen sc0 sc1
s_mov_b64 exec, -1""")

def generate(path):
    e = Emitter()
    hdr = open("gated_mix__ssm_conv_s5__dense_activation_squared_relu__prompt.s.ref").read().split("\n")
    head = [l for l in hdr if l.startswith(";") and "@launch" not in l and "Override" not in l and "grid=ceil" not in l]
    txt = "\n".join(head) + f"\n; @launch grid=(256,1,1) block=(512,1,1) lds={LDS_SIZE}\n"
    txt += '.amdgcn_target "amdgcn-amd-amdhsa--gfx950"\n.text\n'
    txt += f".globl {NAME}\n.p2align 8\n.type {NAME},@function\n{NAME}:\n"
    gen_entry(e)
    gen_consumer(e)
    gen_loader(e)
    gen_p2(e)
    e("L_END:\ns_endpgm\nL_CODE_END:")
    txt += e.text()
    txt += f""".section .rodata,"a"
.p2align 6
.amdhsa_kernel {NAME}
  .amdhsa_next_free_vgpr 256
  .amdhsa_next_free_sgpr 102
  .amdhsa_accum_offset 256
  .amdhsa_group_segment_fixed_size 0
  .amdhsa_kernarg_size 144
  .amdhsa_user_sgpr_count 2
  .amdhsa_user_sgpr_kernarg_segment_ptr 1
  .amdhsa_system_sgpr_workgroup_id_x 1
.end_amdhsa_kernel
"""
    open(path, "w").write(txt)
    print("pads:", e.npad, "lines:", len(e.out))

if __name__ == "__main__":
    opt.check_g = True
    opt.nowait = 0
    opt.nodma = 0
    opt.itstamps = 0
    opt.l2pf = 0
    opt.plate = 0
    opt.pfin = 2
    opt.uhold = 1
    opt.gw2 = 0
    opt.thr = 0
    opt.fswn = 5
    opt.osc = 0
    opt.nosc1 = 0
    opt.nw = 5
    opt.na = 3
    opt.fsw = 2
    opt.gall = 0
    opt.udelay = 0
    opt.dbgtime = 0
    opt.sorder = 1
    opt.sshelp = 1
    opt.ststamps = 0
    opt.rot = 0
    opt.sprio = 2
    opt.eprio = 3
    opt.wearly = 0
    opt.ldslate = 0
    opt.prio = 1
    opt.cpf = 1
    opt.wdelay = 0
    opt.noprep = 0
    opt.nost = 0
    opt.map2 = 1
    opt.gw = 0
    opt.gloop = 1
    opt.ssleep = 8
    opt.l2pf2 = 0
    for a in sys.argv[2:]:
        k, v = a.split("=")
        setattr(opt, k, int(v))
    if opt.nw != 5 or opt.na != 3: set_nw(opt.nw, opt.na)
    generate(sys.argv[1])
```

```python
import sys
from emit import Emitter

NAME = "gated_mix__ssm_conv_s5__dense_activation_squared_relu__prompt_kernel"

ACT_OFF   = 0
WF_OFF    = 0xC00000
G_OFF     = 0x1000000
AG_OFF    = 0x1010000
WFLAG_OFF = 0x1040000
TFLAG_OFF = 0x1050000
STAMP_OFF = 0x1100000
SLOT = 40960
LDS_PREP = 122880
LDS_TAB  = 143360
LDS_LX   = LDS_TAB + 8448
LDS_FLAG = LDS_LX + 768
LDS_DUMMY = LDS_FLAG + 64
LDS_F    = 0
LDS_Y    = 81920
LDS_SIZE = 163840

SX, SWA, SWB, SWS, STA, STB, SOUT = 4, 8, 12, 16, 20, 24, 28
P_AX, P_LRE, P_LIM, P_BRE, P_BIM, P_CRE, P_CIM, P_LDT, P_DSK, P_BX, P_W1, P_B1, P_W2, P_B2, P_GW, P_OUT, P_DBG, P_WS = [36 + 2 * i for i in range(18)]
sWAVE, sRB, sCOL, sJ, sRB2, sCB, sNONCE, sISU = 72, 73, 74, 75, 76, 77, 78, 79
SG, sGo, sGinc = 28, 83, 85

class Opt:
    phase2 = True
    stamps = False
    spin_limit = 200000
opt = Opt()

def srd(e, s, ptr, size):
    e(f"s_mov_b32 s{s}, s{ptr}\ns_mov_b32 s{s+1}, s{ptr+1}\ns_mov_b32 s{s+2}, {size}\ns_mov_b32 s{s+3}, 0x20000")

def R(b, n=4):
    return f"v[{b}:{b+n-1}]"

_stamp_id = [0]
def stamp(e, idx, tmpv=14):
    if not opt.stamps: return
    e(f"""s_memrealtime s[100:101]
s_lshl_b32 s98, s2, 3
s_add_u32 s98, s98, s{sWAVE}
s_lshl_b32 s98, s98, 6
s_add_u32 s98, s98, {STAMP_OFF + 4*idx}
s_waitcnt lgkmcnt(0)
v_mov_b32 v{tmpv}, s100
v_mov_b32 v{tmpv+1}, 0
s_mov_b64 s[96:97], exec
s_mov_b64 exec, 1
buffer_store_dword v{tmpv}, v{tmpv+1}, s[{SWS}:{SWS+3}], s98 offen
s_mov_b64 exec, s[96:97]""")

def stamp_clk(e, idx, tmpv=14):
    if not opt.stamps: return
    e(f"""s_memtime s[100:101]
s_lshl_b32 s98, s2, 3
s_add_u32 s98, s98, s{sWAVE}
s_lshl_b32 s98, s98, 6
s_add_u32 s98, s98, {STAMP_OFF + 4*idx}
s_waitcnt lgkmcnt(0)
v_mov_b32 v{tmpv}, s100
v_mov_b32 v{tmpv+1}, 0
s_mov_b64 s[96:97], exec
s_mov_b64 exec, 1
buffer_store_dword v{tmpv}, v{tmpv+1}, s[{SWS}:{SWS+3}], s98 offen
s_mov_b64 exec, s[96:97]""")

class Cap:
    def __init__(self): self.l = []
    def __call__(self, s):
        for x in s.split("\n"):
            if x.strip(): self.l.append(x.strip())

def merge(e, main_groups, aux):
    n = len(main_groups); k = 0
    per = -(-len(aux) // n) if n else 0
    for g in main_groups:
        for x in g: e(x)
        for x in aux[k:k + per]: e(x)
        k += per
    for x in aux[k:]: e(x)

_dm = [0]
def dbgmax(e, idx, neg=False, tv=14):
    if not opt.dbgtime: return
    _dm[0] += 1; n = _dm[0]
    e(f"""s_and_b32 s100, s{sWAVE}, 3
s_cmp_eq_u32 s100, 0
s_cbranch_scc0 L_dm{n}
s_cmp_eq_u32 s2, 0
s_cselect_b32 s101, {4*idx}, {4*(idx+8)}
s_cbranch_scc1 L_dmg{n}
s_cmp_eq_u32 s2, 255
s_cbranch_scc0 L_dm{n}
L_dmg{n}:
v_mov_b32 v{tv+1}, s101
s_memrealtime s[100:101]
s_mov_b32 s96, s{P_DBG}
s_mov_b32 s97, s{P_DBG+1}
s_mov_b32 s98, 256
s_mov_b32 s99, 0x20000
s_waitcnt lgkmcnt(0)
v_mov_b32 v{tv}, s100
s_mov_b64 exec, 1
buffer_store_dword v{tv}, v{tv+1}, s[96:99], 0 offen
s_mov_b64 exec, -1
L_dm{n}:""")

def interleave(e, A, B, lead=1):
    bi = 0
    for i, a in enumerate(A):
        e(a)
        if i >= lead - 1 and bi < len(B):
            e(B[bi]); bi += 1
    while bi < len(B):
        e(B[bi]); bi += 1

def spin_nonce(e, tag, vtmp):
    srd(e, STA, P_DBG, 256)
    e(f"""v_mov_b32 v{vtmp+1}, 0
s_mov_b32 s80, 0
L_nonce_{tag}:
buffer_load_dword v{vtmp}, v{vtmp+1}, s[{STA}:{STA+3}], 0 offen sc1
s_add_u32 s80, s80, 1
s_waitcnt vmcnt(0)
v_readfirstlane_b32 s{sNONCE}, v{vtmp}
s_cmp_ge_u32 s80, {opt.spin_limit}
s_cbranch_scc1 L_nonce_done_{tag}
s_cmp_eq_u32 s{sNONCE}, 0
s_cbranch_scc0 L_nonce_done_{tag}
s_sleep 1
s_branch L_nonce_{tag}
L_nonce_done_{tag}:""")

def poll_flags(e, tag, vaddr, vtmp, soff_sgpr, nlanes_mask_lo, mask_hi=0, sleep=1):
    e(f"""s_mov_b32 s80, 0
s_mov_b32 s82, {nlanes_mask_lo}
s_mov_b32 s83, {mask_hi}
L_poll_{tag}:
buffer_load_dword v{vtmp}, v{vaddr}, s[{SWS}:{SWS+3}], s{soff_sgpr} offen sc1
s_add_u32 s80, s80, 1
s_waitcnt vmcnt(0)
v_cmp_ne_u32 vcc, s{sNONCE}, v{vtmp}
s_cmp_ge_u32 s80, {opt.spin_limit}
s_cbranch_scc1 L_poll_done_{tag}
s_and_b64 vcc, vcc, s[82:83]
s_cbranch_scc0 L_poll_done_{tag}
s_sleep {sleep}
s_branch L_poll_{tag}
L_poll_done_{tag}:""")

def gen_entry(e):
    if opt.map2 == 1:
        MAP2 = f"""s_lshr_b32 s82, s80, 1
s_lshl_b32 s82, s82, 3
s_lshr_b32 s83, s81, 2
s_add_u32 s{sRB2}, s82, s83
s_and_b32 s82, s80, 1
s_lshl_b32 s82, s82, 2
s_and_b32 s83, s81, 3
s_add_u32 s{sCB}, s82, s83"""
    else:
        MAP2 = f"""s_lshl_b32 s82, s80, 2
s_and_b32 s83, s81, 3
s_add_u32 s{sRB2}, s82, s83
s_lshr_b32 s{sCB}, s81, 2"""
    e(f"""s_cmp_ge_u32 s2, 256
s_cbranch_scc1 L_END
s_load_dwordx16 s[36:51], s[0:1], 0
s_load_dwordx16 s[52:67], s[0:1], 64
s_load_dwordx4 s[68:71], s[0:1], 128
v_lshrrev_b32 v1, 6, v0
v_and_b32 v0, 63, v0
v_readfirstlane_b32 s{sWAVE}, v1
s_and_b32 s80, s2, 7
s_lshr_b32 s81, s2, 3
s_and_b32 s82, s80, 1
s_lshl_b32 s82, s82, 3
s_and_b32 s83, s81, 7
s_add_u32 s{sRB}, s82, s83
s_lshr_b32 s82, s80, 1
s_lshl_b32 s82, s82, 2
s_lshr_b32 s83, s81, 3
s_add_u32 s{sCOL}, s82, s83
{MAP2}
s_sub_u32 s82, s{sCOL}, 9
s_cmp_ge_u32 s{sCOL}, 9
s_cselect_b32 s{sISU}, 1, 0
s_cselect_b32 s{sJ}, s82, s{sCOL}
s_waitcnt lgkmcnt(0)""")
    srd(e, SWS, P_WS, 0x10000000)
    srd(e, SX, P_AX, 2621440)
    stamp(e, 12, 14)
    e(f"""s_cmp_eq_u32 s2, 0
s_cbranch_scc0 L_no_nonce
s_cmp_eq_u32 s{sWAVE}, 4
s_cbranch_scc0 L_no_nonce
s_memrealtime s[80:81]""")
    srd(e, STA, P_DBG, 256)
    e(f"""s_waitcnt lgkmcnt(0)
s_or_b32 s80, s80, 1
v_mov_b32 v2, s80
v_mov_b32 v3, 0
s_mov_b64 exec, 1
buffer_store_dword v2, v3, s[{STA}:{STA+3}], 0 offen sc0 sc1
s_mov_b64 exec, -1
L_no_nonce:
s_cmp_ge_u32 s{sWAVE}, 4
s_cbranch_scc1 L_LOADER""")

def cmul(e, d, a, b, t):
    e(f"""v_mul_f32 v{d}, v{a}, v{b}
v_mul_f32 v{d+1}, v{a}, v{b+1}
v_fma_f32 v{d}, -v{a+1}, v{b+1}, v{d}
v_fma_f32 v{d+1}, v{a+1}, v{b}, v{d+1}""")

def csq(e, d, a):
    cmul(e, d, a, a, None)

def cfma(e, d, a, b, c):
    e(f"""v_fma_f32 v{d}, v{a}, v{b}, v{c}
v_fma_f32 v{d+1}, v{a}, v{b+1}, v{c+1}
v_fma_f32 v{d}, -v{a+1}, v{b+1}, v{d}
v_fma_f32 v{d+1}, v{a+1}, v{b}, v{d+1}""")

def gen_loader(e):
    e("L_LOADER:")
    vXo = 2; vWo = 4
    sXo = 86
    sWo = 90
    sLX, sLW, sWinc = 32, 33, 34
    def issue_x(s):
        slot = (s % 3) * SLOT
        for m in range(4):
            e(f"s_add_u32 m0, s{sLX}, {slot + m*1024}")
            e(f"buffer_load_dwordx4 v{vXo}, s[{SX}:{SX+3}], s{sXo+m} offen lds")
            e(f"s_add_u32 s{sXo+m}, s{sXo+m}, 128")
    def issue_w(s):
        slot = (s % 3) * SLOT
        for m in range(6):
            S = SWB if (m >> 1) == 1 else SWA
            e(f"s_add_u32 m0, s{sLW}, {slot + m*1024}")
            e(f"buffer_load_dwordx4 v{vWo+m}, s[{S}:{S+3}], s{sWo+m} offen lds")
            e(f"s_add_u32 s{sWo+m}, s{sWo+m}, s{sWinc}")
    def issue(s):
        issue_x(s); issue_w(s)
    e(f"""s_sub_u32 s84, s{sWAVE}, 4
v_lshrrev_b32 v10, 3, v0
v_and_b32 v11, 7, v0
v_xor_b32 v11, v11, v10
v_lshlrev_b32 v11, 4, v11
s_lshl_b32 s{sLX}, s84, 12
s_mul_i32 s{sLW}, s84, 6144
s_add_u32 s{sLW}, s{sLW}, 16384
s_lshl_b32 s85, s{sRB}, 7""")
    e(f"""s_mul_i32 s80, s{sJ}, 96
s_lshl_b32 s81, s84, 5
s_add_u32 s80, s80, s81
v_and_b32 v12, 31, v0
v_add_u32 v12, s80, v12
v_min_u32 v12, 639, v12
v_lshlrev_b32 v12, 1, v12""")
    srd(e, STA, P_LRE, 1280)
    e(f"buffer_load_ushort v20, v12, s[{STA}:{STA+3}], 0 offen")
    srd(e, STB, P_LIM, 1280)
    e(f"buffer_load_ushort v21, v12, s[{STB}:{STB+3}], 0 offen")
    srd(e, STA, P_LDT, 1280)
    e(f"buffer_load_ushort v22, v12, s[{STA}:{STA+3}], 0 offen")
    e(f"""s_cmp_eq_u32 s{sISU}, 1
s_cbranch_scc1 L_LD_U""")
    e(f"""v_mul_u32_u24 v{vXo}, 1280, v10
v_add_u32 v{vXo}, v{vXo}, v11
s_lshl_b32 s80, s84, 5
s_add_u32 s80, s80, s85""")
    for m in range(4):
        e(f"s_add_u32 s81, s80, {16*(m&1) + 8*(m>>1)}\ns_mul_i32 s{sXo+m}, s81, 1280")
    issue_x(0)
    srd(e, SWA, P_W1, 2211840)
    srd(e, SWB, P_W1, 2211840)
    e(f"""s_mul_i32 s80, s84, {16*3456}
s_mul_i32 s81, s{sJ}, 384
s_add_u32 s80, s80, s81""")
    for m in range(6):
        e(f"s_mov_b32 s{sWo+m}, s80")
    e(f"s_mov_b32 s{sWinc}, {64*3456}")
    for m in range(6):
        e(f"""v_add_u32 v12, {64*m}, v0
v_mul_u32_u24 v13, 2731, v12
v_lshrrev_b32 v13, 16, v13
v_mul_u32_u24 v14, 24, v13
v_sub_u32 v14, v12, v14
v_bfe_u32 v15, v13, 1, 1
v_lshlrev_b32 v15, 1, v15
v_bfe_u32 v16, v13, 3, 1
v_lshlrev_b32 v16, 2, v16
v_or_b32 v15, v15, v16
v_xor_b32 v14, v14, v15
v_lshlrev_b32 v14, 4, v14
v_mul_u32_u24 v13, 3456, v13
v_add_u32 v{vWo+m}, v13, v14""")
    e("s_branch L_LD_GO")
    e("L_LD_U:")
    e(f"""v_lshrrev_b32 v12, 5, v0
v_lshlrev_b32 v12, 4, v12
v_bfe_u32 v13, v0, 3, 1
v_lshlrev_b32 v13, 3, v13
v_add_u32 v12, v12, v13
v_bfe_u32 v13, v0, 4, 1
v_add_u32 v12, v12, v13
v_mul_u32_u24 v{vXo}, 1280, v12
v_add_u32 v{vXo}, v{vXo}, v11
s_lshr_b32 s80, s84, 1
s_lshl_b32 s80, s80, 6
s_and_b32 s81, s84, 1
s_lshl_b32 s82, s81, 2
s_add_u32 s80, s80, s82
s_add_u32 s80, s80, s85""")
    for m in range(4):
        e(f"s_add_u32 s82, s80, {32*(m&1) + 2*(m>>1)}\ns_mul_i32 s{sXo+m}, s82, 1280")
    issue_x(0)
    e(f"""v_mul_u32_u24 v12, 1280, v10
v_add_u32 v12, v12, v11""")
    for m in range(6):
        e(f"v_mov_b32 v{vWo+m}, v12")
    e(f"""s_mul_i32 s80, s{sJ}, 96
s_lshr_b32 s82, s84, 1
s_mul_i32 s82, s82, 48
s_add_u32 s80, s80, s82
s_mul_i32 s83, s81, 3""")
    for m in range(6):
        e(f"""s_add_u32 s82, s83, {m>>1}
s_lshr_b32 s82, s82, 1
s_lshl_b32 s82, s82, 4
s_add_u32 s82, s82, s80
s_add_u32 s82, s82, {8*(m&1)}
s_min_u32 s82, s82, 632
s_mul_i32 s{sWo+m}, s82, 1280""")
    e(f"s_mov_b32 s{sWinc}, 128")
    e(f"""s_cmp_eq_u32 s81, 0
s_cselect_b32 s{SWA}, s{P_BRE}, s{P_BIM}
s_cselect_b32 s{SWA+1}, s{P_BRE+1}, s{P_BIM+1}
s_cselect_b32 s{SWB}, s{P_BIM}, s{P_BRE}
s_cselect_b32 s{SWB+1}, s{P_BIM+1}, s{P_BRE+1}
s_mov_b32 s{SWA+2}, 819200
s_mov_b32 s{SWA+3}, 0x20000
s_mov_b32 s{SWB+2}, 819200
s_mov_b32 s{SWB+3}, 0x20000""")
    e("L_LD_GO:")
    def groups(s_):
        slot = (s_ % 3) * SLOT
        G = []
        for m in range(4):
            G.append([f"s_add_u32 m0, s{sLX}, {slot + m*1024}",
                      f"buffer_load_dwordx4 v{vXo}, s[{SX}:{SX+3}], s{sXo+m} offen lds",
                      f"s_add_u32 s{sXo+m}, s{sXo+m}, 128"])
        for m in range(6):
            S = SWB if (m >> 1) == 1 else SWA
            G.append([f"s_add_u32 m0, s{sLW}, {slot + m*1024}",
                      f"buffer_load_dwordx4 v{vWo+m}, s[{S}:{S+3}], s{sWo+m} offen lds",
                      f"s_add_u32 s{sWo+m}, s{sWo+m}, s{sWinc}"])
        return G
    def gath():
        if opt.gall:
            e(f"buffer_load_dword v18, v17, s[{SWS}:{SWS+3}], 0 offen")
        else:
            e(f"buffer_load_dword v18, v17, s[{SG}:{SG+3}], s{sGo} offen\ns_add_u32 s{sGo}, s{sGo}, s{sGinc}")
    issue_w(0)
    if opt.gall: e("v_mov_b32 v17, 0x10000000")
    else: gen_gather_setup(e, 84, 'L', 3)
    issue(1)
    e("s_waitcnt vmcnt(10)\ns_barrier")
    issue(2); gath()
    e("s_waitcnt vmcnt(11)\ns_barrier")
    cA = Cap(); gen_lambda_table(cA, 0)
    cB = Cap(); gen_lambda_table(cB, 1)
    lam = cA.l + ['<ADDR>'] + cB.l
    nq = 4
    per_ = -(-len(lam) // nq)
    parts = [lam[i*per_:(i+1)*per_] for i in range(nq)]
    addr_code = [f"v_and_b32 v62, 31, v0", f"v_lshlrev_b32 v62, 3, v62", f"v_add_u32 v62, s96, v62"]
    def expand(L):
        out = []
        for x in L:
            if x == '<ADDR>': out += addr_code
            else: out.append(x)
        return out
    e(f"""s_lshl_b32 s80, s84, 8
s_add_u32 s80, s80, {LDS_TAB}
s_mov_b32 s81, {LDS_DUMMY}
s_cmp_eq_u32 s84, 3
s_cselect_b32 s96, s81, s80""")
    merge(e, groups(3), expand(parts[0])); gath()
    e("s_waitcnt vmcnt(12)\ns_barrier")
    merge(e, groups(4), expand(parts[1])); gath()
    for it, (st_, g_) in enumerate(((5, 1), (6, 1), (7, 1), (8, 1))):
        e("s_waitcnt vmcnt(12)\ns_barrier")
        if it < 2: merge(e, groups(st_), expand(parts[2 + it]))
        else: issue(st_)
        if g_: gath()
        if it == 1:
            srd(e, STA, P_DBG, 256)
            e(f"v_mov_b32 v12, 0\nbuffer_load_dword v99, v12, s[{STA}:{STA+3}], 0 offen")
    e("s_waitcnt vmcnt(12)\ns_barrier")
    e(f"""v_readfirstlane_b32 s{sNONCE}, v99
s_cmp_eq_u32 s{sNONCE}, 0
s_cbranch_scc0 L_LD_nonce_ok""")
    spin_nonce(e, 'L', 10)
    e("L_LD_nonce_ok:")
    e(f"""s_mul_i32 s85, s84, 14
s_cmp_eq_u32 s84, 3
s_cselect_b32 s80, 1, 0
s_sub_u32 s85, s85, s80
v_lshlrev_b32 v12, 2, v0
s_lshl_b32 s81, s{sCB}, 9
s_lshl_b32 s82, s85, 2
s_add_u32 s81, s81, s82
s_add_u32 s35, s81, {WFLAG_OFF}
s_mul_i32 s80, s84, 10
s_add_u32 s80, s80, {54 - 16}
s_sub_u32 s80, s80, s85
s_lshl_b32 s80, s80, 2
v_add_u32 v14, s80, v12
v_cmp_le_u32 vcc, 16, v0
v_cndmask_b32 v12, v12, v14, vcc
v_lshlrev_b32 v1, 4, v0
buffer_load_dword v13, v12, s[{SWS}:{SWS+3}], s35 offen sc1""")
    issue(9)
    e("s_waitcnt vmcnt(10)\ns_barrier")
    e(f"""s_mov_b32 s86, s84
s_mul_i32 s87, s86, 20480
s_mul_i32 s84, s{sCB}, 94
s_add_u32 s84, s84, s85
s_mul_i32 s84, s84, 5120
s_add_u32 s84, s84, {WF_OFF}
s_cmp_ge_u32 s86, 2
s_cselect_b32 s89, 13, 14""")
    rot_setup(e, 89, False)
    ld_w, ld_a, queue = gen_p2_stream(e, 'x', 14)
    e(f"""v_cmp_ne_u32 vcc, s{sNONCE}, v13
s_nop 1
s_and_b32 s80, vcc_lo, 0x03ff3fff
s_cbranch_scc1 L_LD_wlate""")
    if opt.gw2:
        w_gathers(e)
    if opt.gw2 != 2:
        ld_w(0); ld_w(1)
    e(f"s_waitcnt vmcnt({(0 if opt.gw2 == 2 else 10) + (3 if opt.gw2 else 0)})\ns_barrier")
    for s_ in range(0 if opt.gw2 == 2 else 2, NW): ld_w(s_)
    e("s_branch L_LD_wdone\nL_LD_wlate:\ns_waitcnt vmcnt(0)\ns_barrier")
    poll_flags(e, 'FW', 12, 13, 35, 0x03ff3fff)
    for s_ in range(NW): ld_w(s_)
    e("L_LD_wdone:")
    stamp(e, 1, 14)
    gen_gate_loads(e, 86)
    ffn_acc_loads(e)
    lds_wait_ge(e, 'R', 24, 4, 10)
    if opt.wdelay or opt.udelay:
        if not opt.udelay: e(f"s_cmp_eq_u32 s{sISU}, 1\ns_cbranch_scc1 L_LD_nodelay")
        if not opt.wdelay: e(f"s_cmp_eq_u32 s{sISU}, 0\ns_cbranch_scc1 L_LD_nodelay")
        lds_wait_ge(e, 'W', 16, 4, 10)
        e("L_LD_nodelay:")
    stamp(e, 7, 14)
    w_lds(e, NLF, 87, throttle=('A' if opt.thr >= 0 else None))
    lds_count(e, 28, 10)
    if opt.sshelp:
        e(f"s_cmp_eq_u32 s{sISU}, 1\ns_cbranch_scc0 L_NOHELP")
        e(f"""s_mul_i32 s80, s86, 10
s_add_u32 s80, s80, {54 + NW}
s_mul_i32 s81, s{sCB}, 94
s_add_u32 s80, s80, s81
s_mul_i32 s80, s80, 5120
s_add_u32 s80, s80, {WF_OFF}
s_mul_i32 s81, s86, 15360
s_add_u32 s81, s81, {LDS_Y}""")
        for i in range(NLS):
            if opt.thr >= 0: e(f"s_waitcnt vmcnt({opt.thr})")
            for dt in range(5):
                e(f"""s_add_u32 m0, s81, {i*5120 + dt*1024}
buffer_load_dwordx4 v1, s[{SWS}:{SWS+3}], s80 offen sc1 lds
s_add_u32 s80, s80, 1024""")
        e("L_NOHELP:")
    stamp(e, 2, 14)

NLF, NLS = 4, 3
def w_prefetch(e, nsteps, NL, lds_base_sgpr, do_lds=True, rng=None):
    nsh = 8 if opt.map2 == 1 else 4
    per = -(-nsteps * 40 // nsh)
    if opt.gw: l2_prefetch(e, 84, nsteps * 40, nsh, f"s{sRB2}", nsh - 1, -(-per // 64))
    ld_w, ld_a, queue = gen_p2_stream(e, 'x', nsteps)
    for s_ in (range(NW) if rng is None else rng): ld_w(s_)
    if do_lds: w_lds(e, NL, lds_base_sgpr)

def w_gathers(e):
    nsh = 8 if opt.map2 == 1 else 4
    l2_prefetch(e, 84, 14 * 40, nsh, f"s{sRB2}", nsh - 1, 2 if nsh == 8 else 2)
    e(f"""s_mul_i32 s88, s86, 10
s_add_u32 s88, s88, 54
s_mul_i32 s81, s{sCB}, 94
s_add_u32 s88, s88, s81
s_mul_i32 s88, s88, 5120
s_add_u32 s88, s88, {WF_OFF}""")
    l2_prefetch(e, 88, 10 * 40, nsh, f"s{sRB2}", nsh - 1, 1)

def w_lds(e, NL, lds_base_sgpr, queue=None, throttle=None):
    for i in range(NL):
        if throttle is not None:
            e(f"s_cmp_eq_u32 s{sISU}, 1\ns_cbranch_scc0 L_thr_{throttle}{i}\ns_waitcnt vmcnt({opt.thr})\nL_thr_{throttle}{i}:")
        for dt in range(5):
            e(f"""s_add_u32 m0, s{lds_base_sgpr}, {i*5120 + dt*1024}
buffer_load_dwordx4 v1, s[{SWS}:{SWS+3}], s84 offen sc1 lds
s_add_u32 s84, s84, 1024""")
            if queue is not None: queue.append(('l', NW + i))
        wrap_w(e)

def ffn_w_prefetch(e):
    e(f"""s_mov_b32 s86, s84
s_mul_i32 s87, s86, 20480
s_mul_i32 s84, s{sCB}, 94
s_add_u32 s84, s84, s85
s_mul_i32 s84, s84, 5120
s_add_u32 s84, s84, {WF_OFF}
s_cmp_ge_u32 s86, 2
s_cselect_b32 s89, 13, 14""")
    rot_setup(e, 89, False)
    w_prefetch(e, 14, NLF, 87, do_lds=not opt.ldslate)
    if opt.sshelp:
        e(f"""s_cmp_eq_u32 s{sISU}, 1
s_cbranch_scc0 L_NOHELP
s_mul_i32 s80, s86, 10
s_add_u32 s80, s80, 54
s_lshl_b32 s80, s80, 2
s_lshl_b32 s81, s{sCB}, 9
s_add_u32 s80, s80, s81
s_add_u32 s88, s80, {WFLAG_OFF}
v_lshlrev_b32 v12, 2, v0""")
        poll_flags(e, 'HW', 12, 13, 88, 0x3ff)
        e(f"""s_mul_i32 s80, s86, 10
s_add_u32 s80, s80, {54 + NW}
s_mul_i32 s81, s{sCB}, 94
s_add_u32 s80, s80, s81
s_mul_i32 s80, s80, 5120
s_add_u32 s80, s80, {WF_OFF}
s_mul_i32 s81, s86, 15360
s_add_u32 s81, s81, {LDS_Y}""")
        for i in range(NLS):
            for dt in range(5):
                e(f"""s_add_u32 m0, s81, {i*5120 + dt*1024}
buffer_load_dwordx4 v1, s[{SWS}:{SWS+3}], s80 offen sc1 lds
s_add_u32 s80, s80, 1024""")
        e("L_NOHELP:")

def l2_prefetch(e, sbase, nlines, nshare, share_sgpr, share_mask, ninstr, vtmp=12, vdst=15):
    per = -(-nlines // nshare)
    e(f"""s_and_b32 s80, {share_sgpr}, {share_mask}
s_mul_i32 s80, s80, {per*128}
s_add_u32 s80, s80, s{sbase}
v_lshlrev_b32 v{vtmp}, 7, v0""")
    for i in range(ninstr):
        if i * 64 < per and per - i * 64 < 64:
            e(f"v_min_u32 v{vtmp}, {(per - i*64 - 1)*128}, v{vtmp}")
        e(f"buffer_load_dword v{vdst}, v{vtmp}, s[{SWS}:{SWS+3}], s80 offen sc1")
        if i * 64 + 64 < per: e(f"s_add_u32 s80, s80, 8192")

def gen_gather_setup(e, W=84, T='', start=1):
    e(f"""s_lshr_b32 s80, s2, 3
s_and_b32 s81, s80, 7
s_lshr_b32 s80, s80, 3
v_mov_b32 v17, 0x10000000
s_mov_b32 s{sGo}, {128*start}
s_mov_b32 s{sGinc}, 128
s_mov_b32 s{SG}, s{SX}
s_mov_b32 s{SG+1}, s{SX+1}
s_mov_b32 s{SG+2}, 2621440
s_mov_b32 s{SG+3}, 0x20000
s_cmp_eq_u32 s{W}, 0
s_cbranch_scc0 L_GS_1{T}
s_lshl_b32 s80, s80, 5
s_lshl_b32 s82, s{sRB}, 7
s_add_u32 s80, s80, s82
v_add_u32 v16, s80, v0
v_mul_u32_u24 v16, 1280, v16
v_cmp_gt_u32 vcc, 32, v0
v_cndmask_b32 v17, v17, v16, vcc
s_branch L_GS_done{T}
L_GS_1{T}:
s_cmp_ge_u32 s{W}, 3
s_cbranch_scc1 L_GS_done{T}
s_cmp_eq_u32 s{sISU}, 1
s_cbranch_scc1 L_GS_U{T}
s_cmp_eq_u32 s{W}, 1
s_cbranch_scc0 L_GS_done{T}
s_mov_b32 s{SG}, s{P_W1}
s_mov_b32 s{SG+1}, s{P_W1+1}
s_mov_b32 s{SG+2}, 2211840
s_mul_i32 s{sGo}, s{sJ}, 384
s_add_u32 s{sGo}, s{sGo}, {64*3456*start}
s_mov_b32 s{sGinc}, {64*3456}
v_mul_u32_u24 v16, 43, v0
v_lshrrev_b32 v16, 7, v16
v_mul_u32_u24 v15, 3, v16
v_sub_u32 v15, v0, v15
s_lshl_b32 s81, s81, 3
v_add_u32 v16, s81, v16
v_mul_u32_u24 v16, 3456, v16
v_lshlrev_b32 v15, 7, v15
v_add_u32 v16, v16, v15
v_cmp_gt_u32 vcc, 24, v0
v_cndmask_b32 v17, v17, v16, vcc
s_branch L_GS_done{T}
L_GS_U{T}:
s_cmp_eq_u32 s{W}, 1
s_cselect_b32 s{SG}, s{P_BRE}, s{P_BIM}
s_cselect_b32 s{SG+1}, s{P_BRE+1}, s{P_BIM+1}
s_mov_b32 s{SG+2}, 819200
s_mul_i32 s80, s{sJ}, 96
s_mul_i32 s81, s81, 12
s_add_u32 s80, s80, s81
v_add_u32 v16, s80, v0
v_min_u32 v16, 639, v16
v_mul_u32_u24 v16, 1280, v16
v_cmp_gt_u32 vcc, 12, v0
v_cndmask_b32 v17, v17, v16, vcc
L_GS_done{T}:""")
    if not opt.gloop: e("v_mov_b32 v17, 0x10000000")

def gen_unit_ids(e, W):
    e(f"""s_cmp_ge_u32 s2, 108
s_cbranch_scc1 L_UID_C
s_lshr_b32 s3, s2, 1
s_and_b32 s35, s2, 1
s_lshl_b32 s35, s35, 2
s_add_u32 s35, s35, s{W}
s_branch L_UID_done
L_UID_C:
s_sub_u32 s80, s2, 108
s_and_b32 s35, s80, 7
s_lshr_b32 s80, s80, 3
s_lshl_b32 s3, s80, 2
s_add_u32 s3, s3, s{W}
s_add_u32 s3, s3, 54
L_UID_done:""")

def gen_prep_gather(e, W=84):
    e(f"""s_cmp_ge_u32 s3, 54
s_cbranch_scc1 L_PG_C""")
    srd(e, STA, P_W2, 2211840)
    e(f"""v_mul_u32_u24 v10, 52, v0
v_lshrrev_b32 v10, 8, v10
v_mul_u32_u24 v11, 5, v10
v_sub_u32 v11, v0, v11
s_lshl_b32 s80, s{W}, 3
v_add_u32 v10, s80, v10
v_mul_u32_u24 v10, 1280, v10
v_lshlrev_b32 v11, 7, v11
v_add_u32 v10, v10, v11
v_mov_b32 v11, 0x10000000
v_cmp_gt_u32 vcc, 40, v0
v_cndmask_b32 v10, v11, v10, vcc
s_mul_i32 s80, s3, {32*1280}
s_and_b32 s81, s2, 1
s_mul_i32 s81, s81, 640
s_add_u32 s80, s80, s81
buffer_load_dword v18, v10, s[{STA}:{STA+3}], s80 offen
buffer_load_dword v18, v11, s[{STA}:{STA+3}], s80 offen
s_branch L_PG_done
L_PG_C:""")
    srd(e, STA, P_CRE, 819200)
    srd(e, STB, P_CIM, 819200)
    e(f"""s_mul_i32 s81, s35, 80
s_mul_i32 s80, s{W}, 20
s_add_u32 s81, s81, s80
v_add_u32 v10, s81, v0
v_mul_u32_u24 v10, 1280, v10
v_mov_b32 v11, 0x10000000
v_cmp_gt_u32 vcc, 20, v0
v_cndmask_b32 v10, v11, v10, vcc
s_sub_u32 s80, s3, 54
s_lshr_b32 s80, s80, 2
s_min_u32 s80, s80, 9
s_lshl_b32 s80, s80, 7
buffer_load_dword v18, v10, s[{STA}:{STA+3}], s80 offen
buffer_load_dword v18, v10, s[{STB}:{STB+3}], s80 offen
L_PG_done:""")

def gen_lambda_table(e, part):
    L1, L2, L4, L8, L16, L32, L48, L64, L128, L256, L512, L1024, C2 = 30, 32, 34, 36, 38, 40, 42, 44, 46, 48, 50, 52, 54
    if part == 0:
        e(f"""v_lshlrev_b32 v20, 16, v20
v_lshlrev_b32 v21, 16, v21
v_lshlrev_b32 v22, 16, v22
v_mul_f32 v23, 0x3fb8aa3b, v22
v_exp_f32 v23, v23
s_nop 0
v_cvt_pk_bf16_f32 v23, v23, v23
v_and_b32 v23, 0xffff0000, v23
v_mul_f32 v24, v23, v20
v_mul_f32 v25, v23, v21
v_mul_f32 v24, 0x3fb8aa3b, v24
v_exp_f32 v24, v24
v_mul_f32 v25, 0.15915494, v25
v_fract_f32 v25, v25
v_sin_f32 v26, v25
v_cos_f32 v27, v25
s_nop 0
v_mul_f32 v31, v24, v26
v_mul_f32 v30, v24, v27""")
        csq(e, L2, L1); csq(e, L4, L2); csq(e, L8, L4); csq(e, L16, L8); csq(e, L32, L16)
        cmul(e, L48, L32, L16, None)
        csq(e, L64, L32); csq(e, L128, L64)
        return
    csq(e, L256, L128); csq(e, L512, L256); csq(e, L1024, L512)
    e(f"""v_add_f32 v56, -1.0, v30
v_mul_f32 v57, v20, v20
v_fma_f32 v57, v21, v21, v57
v_rcp_f32 v57, v57
v_mul_f32 v58, v56, v20
v_fma_f32 v58, v31, v21, v58
v_mul_f32 v59, v31, v20
v_fma_f32 v59, -v56, v21, v59
v_add_f32 v57, v57, v57
v_mul_f32 v{C2}, v58, v57
v_mul_f32 v{C2+1}, v59, v57
v_mov_b32 v60, 1.0
v_mov_b32 v61, 0""")
    ents = [L1, L8, 60, L16, L32, L48, L64, L128, L512, L1024, C2]
    for i, r in enumerate(ents):
        e(f"ds_write_b64 v62, v[{r}:{r+1}] offset:{i*768}")
    e("s_waitcnt lgkmcnt(0)")

ACC = 64
SETA, SETB = 160, 200
def acc_ffn(ft, tt): return ACC + (ft * 4 + tt) * 4
def acc_u(i, tp): return ACC + (i * 6 + tp) * 4

def reads(kind, st, ks):
    L = []
    vX = 2 + ks
    if kind == 'F':
        xs = [f"ds_read_b128 {R(st + 4*t)}, v{vX} offset:{t*2048}" for t in range(4)]
        ws = []
        for ft in range(6):
            for h in range(2):
                ws.append(f"ds_read_b64_tr_b16 v[{st+16+4*ft+2*h}:{st+16+4*ft+2*h+1}], v{4+ft} offset:{ks*12288 + h*1536}")
        L = ws[:2] + xs + ws[2:]
    else:
        vW = 4 + ks
        xs = [f"ds_read_b128 {R(st + 4*t)}, v{vX} offset:{t*2048}" for t in range(4)]
        ws = [f"ds_read_b128 {R(st + 16 + 4*t)}, v{vW} offset:{t*2048}" for t in range(6)]
        L = [ws[0]] + xs + ws[1:]
    return L

def mfmas(kind, st, first=False):
    L = []
    for n in range(6):
        for t in range(4):
            if kind == 'F':
                d = acc_ffn(n, t)
                c = R(16 + 20 + 4*n) if first else R(d)
                L.append(f"v_mfma_f32_16x16x32_bf16 {R(d)}, {R(st+16+4*n)}, {R(st+4*t)}, {c}")
            else:
                d = acc_u(t, n)
                c = "0" if first else R(d)
                L.append(f"v_mfma_f32_16x16x32_bf16 {R(d)}, {R(st+4*t)}, {R(st+16+4*n)}, {c}")
    return L

def gen_prep_issue(e, W=84, D=116, T=''):
    e(f"""s_cmp_ge_u32 s3, 54
s_cbranch_scc1 L_PREP_C{T}""")
    srd(e, STA, P_W2, 2211840)
    e(f"""s_mul_i32 s80, s3, {32*1280}
s_mul_i32 s81, s35, 160
s_add_u32 s80, s80, s81
s_mul_i32 s81, s{W}, 5120
s_add_u32 s81, s81, {LDS_PREP}""")
    for n in range(5):
        e(f"""v_add_u32 v10, {64*n}, v0
v_mul_u32_u24 v11, 205, v10
v_lshrrev_b32 v11, 11, v11
v_mul_u32_u24 v12, 10, v11
v_sub_u32 v12, v10, v12
v_mul_u32_u24 v11, 1280, v11
v_lshlrev_b32 v12, 4, v12
v_add_u32 v11, v11, v12
s_add_u32 m0, s81, {n*1024}
buffer_load_dwordx4 v11, s[{STA}:{STA+3}], s80 offen lds""")
    e("v_mov_b32 v11, 0x10000000")
    for n in range(5):
        e(f"buffer_load_dword v{D}, v11, s[{STA}:{STA+3}], s80 offen")
    e(f"s_branch L_PREP_issued{T}")
    e(f"L_PREP_C{T}:")
    srd(e, STA, P_CRE, 819200)
    srd(e, STB, P_CIM, 819200)
    e(f"""v_and_b32 v10, 15, v0
v_mul_u32_u24 v10, 1280, v10
v_lshrrev_b32 v11, 4, v0
v_lshlrev_b32 v11, 3, v11
v_add_u32 v10, v10, v11
s_sub_u32 s80, s3, 54
s_min_u32 s80, s80, 39
s_lshl_b32 s80, s80, 5
s_mul_i32 s81, s35, {80*1280}
s_add_u32 s80, s80, s81""")
    for dt in range(5):
        e(f"buffer_load_dwordx2 v[{D+4*dt}:{D+1+4*dt}], v10, s[{STA}:{STA+3}], s80 offen")
        e(f"buffer_load_dwordx2 v[{D+2+4*dt}:{D+3+4*dt}], v10, s[{STB}:{STB+3}], s80 offen")
        if dt < 4: e(f"s_add_u32 s80, s80, {16*1280}")
    e(f"L_PREP_issued{T}:")

def gen_prep_finish(e, W=84, D=116, T=''):
    e(f"""s_cmp_ge_u32 s3, 54
s_cbranch_scc1 L_PF_store{T}
v_lshrrev_b32 v10, 4, v0
v_lshlrev_b32 v10, 2, v10
v_bfe_u32 v11, v0, 2, 2
v_add_u32 v10, v10, v11
v_mul_u32_u24 v10, 160, v10
v_and_b32 v11, 3, v0
v_lshlrev_b32 v11, 3, v11
v_add_u32 v10, v10, v11
s_mul_i32 s81, s{W}, 5120
s_add_u32 s81, s81, {LDS_PREP}
v_add_u32 v10, s81, v10""")
    for dt in range(5):
        for h in range(2):
            e(f"ds_read_b64_tr_b16 v[{D+4*dt+2*h}:{D+1+4*dt+2*h}], v10 offset:{dt*32 + h*16*160}")
    e("s_waitcnt lgkmcnt(0)")
    e(f"L_PF_store{T}:")
    e(f"""s_mul_i32 s80, s35, 94
s_add_u32 s80, s80, s3
s_mul_i32 s80, s80, 5120
s_add_u32 s80, s80, {WF_OFF}
v_lshlrev_b32 v10, 4, v0
v_mov_b32 v11, 0x10000000
s_cmp_ge_u32 s3, 94
s_cselect_b32 s81, 1, 0
v_mov_b32 v12, s81
v_cmp_eq_u32 vcc, 1, v12
v_cndmask_b32 v10, v10, v11, vcc""")
    for dt in range(5):
        if dt < 4:
            e(f"buffer_store_dwordx4 {R(D+4*dt)}, v10, s[{SWS}:{SWS+3}], s80 offen offset:{dt*1024} sc1")
        else:
            e(f"s_add_u32 s80, s80, 4096")
            e(f"buffer_store_dwordx4 {R(D+4*dt)}, v10, s[{SWS}:{SWS+3}], s80 offen sc1")

def gen_prep_flag(e):
    e(f"""s_lshl_b32 s80, s35, 9
s_lshl_b32 s81, s3, 2
s_add_u32 s80, s80, s81
s_add_u32 s80, s80, {WFLAG_OFF}
v_mov_b32 v10, s{sNONCE}
s_cmp_ge_u32 s3, 94
s_cselect_b32 s81, 0x10000000, 0
v_mov_b32 v11, s81
s_mov_b64 exec, 1
buffer_store_dword v10, v11, s[{SWS}:{SWS+3}], s80 offen sc0 sc1
s_mov_b64 exec, -1""")

def interleave2(e, A, B, per):
    bi = 0
    for i, a in enumerate(A):
        e(a)
        for _ in range(per[i] if i < len(per) else 0):
            if bi < len(B): e(B[bi]); bi += 1
    while bi < len(B):
        e(B[bi]); bi += 1

def gen_main_loop(e, kind):
    tag = kind
    naddr = [2, 3] + ([4, 5, 6, 7, 8, 9] if kind == 'F' else [4, 5])
    sIT, sDELTA, sSLOT = 86, 87, 88
    def adv_list():
        L = [f"s_add_u32 s{sSLOT}, s{sSLOT}, 1", f"s_cmp_eq_u32 s{sSLOT}, 3",
             f"s_cselect_b32 s{sDELTA}, s90, s89", f"s_cselect_b32 s{sSLOT}, 0, s{sSLOT}"]
        L += [f"v_add_u32 v{v}, s{sDELTA}, v{v}" for v in naddr]
        return L
    e(f"s_mov_b32 s{sIT}, 1\ns_mov_b32 s{sSLOT}, 0\ns_mov_b32 s89, {SLOT}\ns_mov_b32 s90, {-2*SLOT & 0xffffffff}")
    if opt.itstamps:
        e(f"s_memtime s[100:101]\ns_waitcnt lgkmcnt(0)\nv_writelane_b32 v250, s100, 10")
    e("s_waitcnt lgkmcnt(0)\ns_barrier")
    if opt.itstamps:
        e(f"s_memtime s[100:101]\ns_waitcnt lgkmcnt(0)\nv_writelane_b32 v250, s100, 0")
    for r in reads(kind, SETA, 0): e(r)
    if opt.plate: gen_prep_issue(e, sWAVE, 16, tag)
    e("s_waitcnt lgkmcnt(0)")
    rb = reads(kind, SETB, 1)
    items = rb + adv_list()
    nr = len(rb)
    def perlist(nr, nextra):
        per = [1] * 24
        rem = 24 - nr
        per = [1] * nr + [0] * rem
        k = nextra; i = nr
        while k > 0:
            per[i] += 1; k -= 1; i += 1
            if i == 24: i = max(nr, 8)
        return per
    interleave2(e, mfmas(kind, SETA, first=True), items, perlist(nr, len(items) - nr))
    e("s_waitcnt lgkmcnt(0)")
    e(f"L_ML_{tag}:")
    e("s_barrier")
    if opt.itstamps:
        e(f"s_memtime s[100:101]\ns_waitcnt lgkmcnt(0)\ns_mov_b32 m0, s{sIT}\nv_writelane_b32 v250, s100, m0")
    ra = reads(kind, SETA, 0)
    interleave2(e, mfmas(kind, SETB), ra, [1] * 24)
    if opt.plate:
        e(f"s_cmp_eq_u32 s{sIT}, {opt.pfin}\ns_cbranch_scc0 L_ML_h0_{tag}\ns_waitcnt vmcnt(0)")
        gen_prep_finish(e, sWAVE, 16, 'H' + tag)
        srd(e, STA, P_DBG, 256)
        e(f"buffer_load_dword v249, v248, s[{STA}:{STA+3}], 0 offen\nL_ML_h0_{tag}:")
    e(f"""s_cmp_eq_u32 s{sIT}, 1
s_cbranch_scc0 L_ML_h1_{tag}""")
    if not opt.plate: e(f"buffer_load_dword v249, v248, s[{STA}:{STA+3}], 0 offen")
    e(f"""L_ML_h1_{tag}:
s_cmp_eq_u32 s{sIT}, {opt.pfin + 2 if opt.plate else 4}
s_cbranch_scc0 L_ML_h2_{tag}
s_waitcnt vmcnt(0)
v_readfirstlane_b32 s{sNONCE}, v249
s_cmp_eq_u32 s{sNONCE}, 0
s_cbranch_scc0 L_ML_h2b_{tag}""")
    spin_nonce(e, 'H' + tag, 10)
    e(f"L_ML_h2b_{tag}:")
    gen_prep_flag(e)
    e(f"L_ML_h2_{tag}:")
    e("s_waitcnt lgkmcnt(0)")
    items = rb + adv_list() + [f"s_add_u32 s{sIT}, s{sIT}, 1", f"s_cmp_lt_u32 s{sIT}, 10"]
    interleave2(e, mfmas(kind, SETA), items, perlist(nr, len(items) - nr))
    e(f"""s_waitcnt lgkmcnt(0)
s_cbranch_scc1 L_ML_{tag}""")
    lds_count(e, 24, 10)
    e(f"""s_mul_i32 s87, s{sWAVE}, 10
s_add_u32 s87, s87, 54
s_lshl_b32 s89, s{sCB}, 9
s_lshl_b32 s90, s87, 2
s_add_u32 s89, s89, s90
s_add_u32 s35, s89, {WFLAG_OFF}
v_lshlrev_b32 v8, 2, v0
buffer_load_dword v1, v8, s[{SWS}:{SWS+3}], s35 offen sc1""")
    for m in mfmas(kind, SETB): e(m)
    if opt.itstamps:
        e(f"""s_memtime s[100:101]
s_waitcnt lgkmcnt(0)
v_writelane_b32 v250, s100, 11
s_lshl_b32 s98, s2, 3
s_add_u32 s98, s98, s{sWAVE}
s_lshl_b32 s98, s98, 6
s_add_u32 s98, s98, {STAMP_OFF + 0x40000}
v_lshlrev_b32 v251, 2, v0
s_mov_b64 exec, 0xffff
buffer_store_dword v250, v251, s[{SWS}:{SWS+3}], s98 offen
s_mov_b64 exec, -1""")

def tile_flag(e, tag):
    nyoung = 0
    if opt.wearly:
        ssm_w_setup(e, tag)
        nyoung = SSM_W_OPS()
    e(f"""s_waitcnt vmcnt({nyoung})
s_lshr_b32 s80, s{sWAVE}, 1
s_lshl_b32 s81, s{sRB}, 1
s_add_u32 s80, s80, s81
s_lshl_b32 s80, s80, 8
s_lshl_b32 s81, s{sCOL}, 1
s_and_b32 s82, s{sWAVE}, 1
s_add_u32 s81, s81, s82
s_lshl_b32 s82, s81, 2
s_cmp_ge_u32 s81, 18
s_cselect_b32 s81, 56, 0
s_add_u32 s80, s80, s82
s_add_u32 s80, s80, s81
s_add_u32 s80, s80, {TFLAG_OFF}
v_mov_b32 v10, s{sNONCE}
v_mov_b32 v11, 0
s_mov_b64 exec, 1
buffer_store_dword v10, v11, s[{SWS}:{SWS+3}], s80 offen sc0 sc1
s_mov_b64 exec, -1""")
    if opt.eprio: e("s_setprio 0")

def SSM_W_OPS():
    nsh = 8 if opt.map2 == 1 else 4
    ng = (-(-(-(-10 * 40 // nsh)) // 64)) if opt.gw else 0
    return NW * 5 + NLS * 5 + ng

def ssm_w_setup(e, tag, order=True, defer_lds=False):
    e(f"""s_waitcnt vmcnt({12 if order else 0})
s_mul_i32 s87, s{sWAVE}, 10
s_add_u32 s87, s87, 54
v_cmp_ne_u32 vcc, s{sNONCE}, v1
v_lshlrev_b32 v1, 4, v0
v_lshlrev_b32 v8, 2, v0
s_and_b32 s80, vcc_lo, 0x3ff
s_cbranch_scc0 L_SSM_wok{tag}""")
    poll_flags(e, 'SW' + tag, 8, 10, 35, 0x3ff)
    e(f"""L_SSM_wok{tag}:
s_mul_i32 s84, s{sCB}, 94
s_add_u32 s84, s84, s87
s_mul_i32 s84, s84, 5120
s_add_u32 s84, s84, {WF_OFF}
s_mul_i32 s85, s{sRB2}, 94
s_add_u32 s85, s85, s87
s_lshl_b32 s85, s85, 12
s_mul_i32 s88, s{sWAVE}, 15360
s_add_u32 s88, s88, {LDS_Y}
v_add_u32 v3, s88, v1""")
    rot_setup(e, 10, True)
    rot_act(e)
    if opt.sorder and order:
        e(f"s_cmp_eq_u32 s{sISU}, 1\ns_cbranch_scc1 L_SSM_noord{tag}")
        lds_wait_ge(e, 'O' + tag, 28, 4, 10)
        e(f"L_SSM_noord{tag}:")
    if opt.sprio: e(f"s_setprio {opt.sprio}")
    if opt.sshelp:
        w_prefetch(e, 10, NLS, 88, do_lds=False, rng=(range(opt.fswn) if defer_lds else None))
        if not defer_lds:
            e(f"s_cmp_eq_u32 s{sISU}, 1\ns_cbranch_scc1 L_SSM_skiplds{tag}")
            w_lds(e, NLS, 88)
            e(f"s_branch L_SSM_ldsdone{tag}\nL_SSM_skiplds{tag}:\ns_add_u32 s84, s84, {NLS*5120}\nL_SSM_ldsdone{tag}:")
    else:
        w_prefetch(e, 10, NLS, 88)

def x_addr_setup(e):
    e(f"""s_lshr_b32 s80, s{sWAVE}, 1
s_lshl_b32 s80, s80, 13
v_and_b32 v10, 15, v0
v_lshlrev_b32 v10, 7, v10
v_lshrrev_b32 v11, 4, v0
v_and_b32 v12, 7, v0
v_xor_b32 v11, v11, v12
v_lshlrev_b32 v11, 4, v11
v_add_u32 v10, v10, v11
v_add_u32 v2, s80, v10
v_xor_b32 v3, 64, v2""")

def p1_l2_prefetch(e, kind):
    e(f"""s_lshr_b32 s81, s2, 3
s_lshr_b32 s82, s81, 3
s_lshl_b32 s82, s82, 5
s_lshl_b32 s83, s{sRB}, 7
s_add_u32 s82, s82, s83
v_and_b32 v10, 31, v0
v_add_u32 v10, s82, v10
v_mul_u32_u24 v10, 1280, v10
v_lshrrev_b32 v11, 5, v0
s_lshl_b32 s83, s{sWAVE}, 1
s_add_u32 s83, s83, 2
v_add_u32 v11, s83, v11
v_lshlrev_b32 v11, 7, v11
v_add_u32 v10, v10, v11
buffer_load_dword v247, v10, s[{SX}:{SX+3}], 0 offen
s_and_b32 s81, s81, 7""")
    if kind == 'F':
        srd(e, STA, P_W1, 2211840)
        e(f"""s_lshl_b32 s83, s{sWAVE}, 6
v_add_u32 v10, s83, v0
v_mul_u32_u24 v11, 2731, v10
v_lshrrev_b32 v11, 16, v11
v_mul_u32_u24 v12, 24, v11
v_sub_u32 v12, v10, v12
v_mul_u32_u24 v13, 43, v12
v_lshrrev_b32 v13, 7, v13
v_mul_u32_u24 v10, 3, v13
v_sub_u32 v12, v12, v10
v_lshlrev_b32 v11, 6, v11
v_add_u32 v11, v11, v13
s_lshl_b32 s83, s81, 3
s_add_u32 s83, s83, 128
v_add_u32 v11, s83, v11
v_mul_u32_u24 v11, 3456, v11
v_lshlrev_b32 v12, 7, v12
v_add_u32 v11, v11, v12
s_mul_i32 s83, s{sJ}, 384
buffer_load_dword v247, v11, s[{STA}:{STA+3}], s83 offen""")
    else:
        e(f"""s_cmp_ge_u32 s{sWAVE}, 2
s_cselect_b32 s{STA}, s{P_BIM}, s{P_BRE}
s_cselect_b32 s{STA+1}, s{P_BIM+1}, s{P_BRE+1}
s_mov_b32 s{STA+2}, 819200
s_mov_b32 s{STA+3}, 0x20000
s_and_b32 s83, s{sWAVE}, 1
s_lshl_b32 s83, s83, 6
v_add_u32 v10, s83, v0
v_min_u32 v10, 95, v10
v_mul_u32_u24 v11, 171, v10
v_lshrrev_b32 v11, 11, v11
v_mul_u32_u24 v12, 12, v11
v_sub_u32 v12, v10, v12
s_mul_i32 s83, s{sJ}, 96
s_mul_i32 s82, s81, 12
s_add_u32 s83, s83, s82
v_add_u32 v12, s83, v12
v_min_u32 v12, 639, v12
v_mul_u32_u24 v12, 1280, v12
v_add_u32 v11, 2, v11
v_lshlrev_b32 v11, 7, v11
v_add_u32 v12, v12, v11
buffer_load_dword v247, v12, s[{STA}:{STA+3}], 0 offen""")

def consumer_start_loads(e, nbefore):
    gen_gather_setup(e, sWAVE, 'C', 0)
    ng = 10 if opt.gall else 3
    for _ in range(ng):
        e(f"buffer_load_dword v18, v17, s[{SG}:{SG+3}], s{sGo} offen\ns_add_u32 s{sGo}, s{sGo}, s{sGinc}")
    gen_unit_ids(e, sWAVE)
    if opt.gall or opt.plate == 2:
        gen_prep_gather(e, sWAVE)
    if not opt.plate: gen_prep_issue(e, sWAVE, 16)

def consumer_common_setup(e):
    srd(e, STA, P_DBG, 256)
    e("v_mov_b32 v248, 0")

def gen_consumer_ffn(e):
    e("L_CONS_F:")
    srd(e, STB, P_B1, 3456)
    e(f"""s_mul_i32 s80, s{sJ}, 384
s_and_b32 s81, s{sWAVE}, 1
s_mul_i32 s81, s81, 192
s_add_u32 s80, s80, s81
v_lshrrev_b32 v10, 4, v0
v_lshlrev_b32 v10, 3, v10""")
    for ft in range(6):
        e(f"buffer_load_dwordx2 v[{224+2*ft}:{225+2*ft}], v10, s[{STB}:{STB+3}], s80 offen offset:{32*ft}")

    x_addr_setup(e)
    e(f"""v_lshrrev_b32 v10, 4, v0
v_bfe_u32 v11, v0, 2, 2
v_lshlrev_b32 v12, 3, v10
v_add_u32 v12, v12, v11
v_mul_u32_u24 v12, 384, v12
v_bfe_u32 v13, v0, 3, 1
v_lshlrev_b32 v13, 1, v13
v_and_b32 v14, 1, v10
v_lshlrev_b32 v14, 2, v14
v_or_b32 v13, v13, v14
v_bfe_u32 v14, v0, 1, 1
s_and_b32 s81, s{sWAVE}, 1
s_mul_i32 s81, s81, 12
v_add_u32 v14, s81, v14
v_and_b32 v15, 1, v0
v_lshlrev_b32 v15, 3, v15
v_add_u32 v12, v12, v15
v_add_u32 v12, 16384, v12""")
    for ft in range(6):
        e(f"""v_add_u32 v10, {2*ft}, v14
v_xor_b32 v10, v10, v13
v_lshlrev_b32 v10, 4, v10
v_add_u32 v{4+ft}, v12, v10""")
    if opt.plate:
        e(f"s_waitcnt vmcnt(0)" if False else "s_waitcnt vmcnt(0)")
    else:
        e("s_waitcnt vmcnt(0)")
        gen_prep_finish(e, sWAVE, 16, 'F')
    consumer_common_setup(e)
    for ft in range(6):
        b = 36 + 4 * ft
        e(f"""v_lshlrev_b32 v{b}, 16, v{224+2*ft}
v_and_b32 v{b+1}, 0xffff0000, v{224+2*ft}
v_lshlrev_b32 v{b+2}, 16, v{225+2*ft}
v_and_b32 v{b+3}, 0xffff0000, v{225+2*ft}""")
    stamp(e, 0, 14)
    stamp_clk(e, 14, 14)
    dbgmax(e, 2)
    gen_main_loop(e, 'F')
    dbgmax(e, 3)
    if opt.eprio: e(f"s_setprio {opt.eprio}")
    stamp(e, 1, 14)
    stamp_clk(e, 15, 14)
    e(f"""s_lshr_b32 s80, s{sWAVE}, 1
s_lshl_b32 s81, s{sRB}, 1
s_add_u32 s80, s80, s81
s_mul_i32 s80, s80, 94
s_mul_i32 s81, s{sJ}, 6
s_add_u32 s80, s80, s81
s_and_b32 s81, s{sWAVE}, 1
s_mul_i32 s81, s81, 3
s_add_u32 s80, s80, s81
s_lshl_b32 s32, s80, 12
v_lshlrev_b32 v10, 4, v0""")
    k = 0
    OB = 196 if opt.fsw else SETA
    pend = []
    for u in range(3):
        for tt in range(4):
            o = OB + 4 * k; k += 1
            vals = [acc_ffn(2*u, tt), acc_ffn(2*u+1, tt)]
            tmp = 16 + 8 * (k & 1)
            for h, a in enumerate(vals):
                for r in range(4):
                    e(f"v_max_f32 v{tmp+4*h+r}, 0, v{a+r}")
            for h, a in enumerate(vals):
                for r in range(0, 4, 2):
                    e(f"v_pk_mul_f32 v[{a+r}:{a+r+1}], v[{a+r}:{a+r+1}], v[{tmp+4*h+r}:{tmp+4*h+r+1}]")
            for h, a in enumerate(vals):
                for r in range(0, 4, 2):
                    e(f"v_cvt_pk_bf16_f32 v{o+2*h+(r>>1)}, v{a+r}, v{a+r+1}")
            st_ = f"buffer_store_dwordx4 {R(o)}, v10, s[{SWS}:{SWS+3}], s32 offen offset:{tt*1024} sc1"
            if opt.fsw: pend.append(st_)
            else: e(st_)
        if u < 2:
            if opt.fsw: pend.append("s_add_u32 s32, s32, 4096")
            else: e("s_add_u32 s32, s32, 4096")
    if opt.fsw:
        ssm_w_setup(e, 'F', order=False, defer_lds=(opt.fsw == 2))
        e("v_lshlrev_b32 v10, 4, v0")
        for x in pend: e(x)
    lds_count(e, 16, 12)
    stamp(e, 2, 14)
    tile_flag(e, 'F')
    dbgmax(e, 4)
    stamp(e, 3, 14)
    if opt.fsw == 2:
        w_prefetch(e, 10, NLS, 88, do_lds=False, rng=range(opt.fswn, NW))
        w_lds(e, NLS, 88)
    e("s_branch L_SSM_P2b" if opt.fsw else "s_branch L_SSM_P2")

def gen_code_prefetch(e):
    e(f"""s_cmp_eq_u32 s{sWAVE}, 3
s_cbranch_scc0 L_CPF_done
s_getpc_b64 s[80:81]
L_CPF_pc:
s_sub_u32 s80, s80, L_CPF_pc-{NAME}
s_subb_u32 s81, s81, 0
s_lshr_b32 s82, s2, 3
s_lshl_b32 s82, s82, 11
v_and_b32 v10, 15, v0
v_lshlrev_b32 v10, 7, v10
v_add_u32 v10, s82, v10
v_min_u32 v10, L_CODE_END-{NAME}-4, v10
s_mov_b64 exec, 0xffff
global_load_dword v19, v10, s[80:81]
s_mov_b64 exec, -1
L_CPF_done:""")

def gen_consumer(e):
    dbgmax(e, 1)
    e(f"""v_mov_b32 v10, {LDS_FLAG}
v_mov_b32 v12, 0
v_mov_b32 v13, 0
v_mov_b32 v14, 0
v_mov_b32 v15, 0
ds_write_b128 v10, v[12:15]
ds_write_b128 v10, v[12:15] offset:16
ds_write_b128 v10, v[12:15] offset:32""")
    if opt.cpf: gen_code_prefetch(e)
    consumer_start_loads(e, 0)
    e(f"""s_cmp_eq_u32 s{sISU}, 1
s_cbranch_scc1 L_CONS_U""")
    gen_consumer_ffn(e)
    gen_consumer_u(e)

def pk(op, d, a, b, c=None, bsel=None, neg=False):
    assert bsel == 0, "op_sel hi-broadcast is unsafe next to MFMA (measured)"
    n = 3 if c is not None else 2
    sel = [0, bsel] + ([0] if c is not None else [])
    selh = [1, bsel] + ([1] if c is not None else [])
    s = f"{op} v[{d}:{d+1}], v[{a}:{a+1}], v[{b}:{b+1}]" + (f", v[{c}:{c+1}]" if c is not None else "")
    s += " op_sel:[" + ",".join(map(str, sel)) + "] op_sel_hi:[" + ",".join(map(str, selh)) + "]"
    if neg:
        ng = [0, 1] + ([0] if c is not None else [])
        s += " neg_lo:[" + ",".join(map(str, ng)) + "] neg_hi:[" + ",".join(map(str, ng)) + "]"
    return s

def gen_consumer_u(e):
    e("L_CONS_U:")
    x_addr_setup(e)
    e(f"""s_and_b32 s81, s{sWAVE}, 1
s_mul_i32 s81, s81, {96*128}
s_add_u32 s81, s81, 16384
v_add_u32 v4, s81, v10
v_xor_b32 v5, 64, v4""")
    if not opt.plate:
        e("s_waitcnt vmcnt(0)")
        gen_prep_finish(e, sWAVE, 16, 'U')
    consumer_common_setup(e)
    dbgmax(e, 2)
    stamp(e, 0, 14)
    gen_main_loop(e, 'U')
    dbgmax(e, 3)
    if opt.eprio: e(f"s_setprio {opt.eprio}")
    stamp(e, 1, 14)
    def K(ct, i): return 160 + 18 * ct + 2 * i
    LAM, L8, L16, L16Q, L64, L128, L512, L1024, C2 = range(9)
    ent = {LAM: 0, L8: 1, L16: 3, L64: 6, L128: 7, L512: 8, L1024: 9, C2: 10}
    e(f"""s_and_b32 s81, s{sWAVE}, 1
s_mul_i32 s81, s81, {48*8}
s_add_u32 s81, s81, {LDS_TAB}
v_and_b32 v10, 15, v0
v_lshlrev_b32 v10, 3, v10
v_add_u32 v10, s81, v10
v_lshrrev_b32 v11, 4, v0
v_mul_u32_u24 v11, 768, v11
v_add_u32 v11, v11, v10""")
    for ct in range(3):
        for k, en in ent.items():
            e(f"ds_read_b64 v[{K(ct,k)}:{K(ct,k)+1}], v10 offset:{en*768 + ct*128}")
        e(f"ds_read_b64 v[{K(ct,L16Q)}:{K(ct,L16Q)+1}], v11 offset:{2*768 + ct*128}")
    e("s_waitcnt lgkmcnt(0)")
    LI = [2, 252, 254]
    C2I = [16, 18, 20]
    for ct in range(3):
        e(f"v_mov_b32 v{LI[ct]}, v{K(ct, LAM)+1}")
    def U(n, ct, part):
        return acc_u(n >> 1, 2 * ct + part) + 2 * (n & 1)
    def Er(ct, s): return 16 + 8 * ct + 4 * s
    def Ei(ct, s): return 18 + 8 * ct + 4 * s
    for n in range(1, 8):
        src = (n - 1) & 1; dst = n & 1
        for ct in range(3):
            pr = U(0, ct, 0) if n == 1 else Er(ct, src)
            pi = U(0, ct, 1) if n == 1 else Ei(ct, src)
            e(pk("v_pk_fma_f32", Er(ct, dst), pr, K(ct, LAM), U(n, ct, 0), 0))
            e(pk("v_pk_fma_f32", Ei(ct, dst), pi, K(ct, LAM), U(n, ct, 1), 0))
        for ct in range(3):
            pr = U(0, ct, 0) if n == 1 else Er(ct, src)
            pi = U(0, ct, 1) if n == 1 else Ei(ct, src)
            e(pk("v_pk_fma_f32", Er(ct, dst), pi, LI[ct], Er(ct, dst), 0, neg=True))
            e(pk("v_pk_fma_f32", Ei(ct, dst), pr, LI[ct], Ei(ct, dst), 0))
    def LL(ct): return 16 + 8 * ct
    for ct in range(3):
        er, ei, l8 = Er(ct, 1), Ei(ct, 1), K(ct, L8)
        e(f"""v_fma_f32 v{LL(ct)}, v{l8}, v{er}, v{er+1}
v_fma_f32 v{LL(ct)+1}, v{l8}, v{ei}, v{ei+1}
v_fma_f32 v{LL(ct)}, -v{l8+1}, v{ei}, v{LL(ct)}
v_fma_f32 v{LL(ct)+1}, v{l8+1}, v{er}, v{LL(ct)+1}""")
    def G(ct, q): return 214 + 8 * ct + 2 * q
    for ct in range(3):
        for c in range(2):
            a, b, a2, b2 = G(ct, 0) + c, G(ct, 1) + c, G(ct, 2) + c, G(ct, 3) + c
            e(f"""v_mov_b32 v{a}, v{LL(ct)+c}
v_mov_b32 v{b}, v{LL(ct)+c}
v_permlane16_swap_b32 v{a}, v{b}
v_mov_b32 v{a2}, v{a}
v_mov_b32 v{b2}, v{b}
v_permlane32_swap_b32 v{a}, v{a2}
v_permlane32_swap_b32 v{b}, v{b2}""")
    for ct in range(3):
        cfma(e, G(ct, 1), K(ct, L16), G(ct, 0), G(ct, 1))
    for ct in range(3):
        cfma(e, G(ct, 2), K(ct, L16), G(ct, 1), G(ct, 2))
    for ct in range(3):
        cfma(e, G(ct, 3), K(ct, L16), G(ct, 2), G(ct, 3))
    e(f"""s_mov_b32 s80, 0xffff0000
s_mov_b32 s81, 0
s_mov_b32 s82, 0
s_mov_b32 s83, 0x0000ffff
s_mov_b32 s90, 0
s_mov_b32 s91, 0xffff0000""")
    for ct in range(3):
        for c in range(2):
            e(f"""v_cndmask_b32 v{LL(ct)+c}, 0, v{G(ct,0)+c}, s[80:81]
v_cndmask_b32 v{LL(ct)+c}, v{LL(ct)+c}, v{G(ct,1)+c}, s[82:83]
v_cndmask_b32 v{LL(ct)+c}, v{LL(ct)+c}, v{G(ct,2)+c}, s[90:91]""")
    e(f"""s_and_b32 s84, s{sWAVE}, 1
s_mul_i32 s85, s84, {48*8}
s_add_u32 s85, s85, {LDS_LX}
v_and_b32 v10, 15, v0
v_lshlrev_b32 v10, 3, v10
v_add_u32 v10, s85, v10
s_lshl_b32 s85, s84, 2
s_add_u32 s85, s85, {LDS_FLAG}
v_mov_b32 v11, s85
s_cmp_ge_u32 s{sWAVE}, 2
s_cbranch_scc1 L_U_wt1""")
    for ct in range(3):
        e(f"ds_write_b64 v10, v[{G(ct,3)}:{G(ct,3)+1}] offset:{ct*128}")
    e(f"""v_mov_b32 v12, 1
s_waitcnt lgkmcnt(0)
ds_write_b32 v11, v12
s_branch L_U_lb
L_U_wt1:
s_mov_b32 s85, 0
L_U_pairwait:
ds_read_b32 v12, v11
s_add_u32 s85, s85, 1
s_waitcnt lgkmcnt(0)
v_readfirstlane_b32 s86, v12
s_cmp_ge_u32 s85, {opt.spin_limit}
s_cbranch_scc1 L_U_pairok
s_cmp_eq_u32 s86, 0
s_cbranch_scc1 L_U_pairwait
L_U_pairok:""")
    for ct in range(3):
        e(f"ds_read_b64 v[{G(ct,0)}:{G(ct,0)+1}], v10 offset:{ct*128}")
    e("s_waitcnt lgkmcnt(0)")
    for ct in range(3):
        cfma(e, G(ct, 1), K(ct, L64), G(ct, 0), G(ct, 3))
    e(f"""s_mov_b32 s80, 0xffff0000
s_mov_b32 s81, 0
s_mov_b32 s82, 0
s_mov_b32 s83, 0x0000ffff
v_cndmask_b32 v240, v{G(0,1)}, v{G(1,1)}, s[80:81]
v_cndmask_b32 v241, v{G(0,1)+1}, v{G(1,1)+1}, s[80:81]
v_cndmask_b32 v240, v240, v{G(2,1)}, s[82:83]
v_cndmask_b32 v241, v241, v{G(2,1)+1}, s[82:83]
v_mov_b32 v242, s{sNONCE}
v_mov_b32 v243, s{sNONCE}
s_mul_i32 s85, s{sJ}, 16
s_add_u32 s85, s85, s{sRB}
s_mul_i32 s85, s85, 96
s_mul_i32 s86, s84, 48
s_add_u32 s85, s85, s86
s_lshl_b32 s85, s85, 4
s_add_u32 s85, s85, {AG_OFF}
v_lshlrev_b32 v12, 4, v0
s_mov_b32 exec_lo, -1
s_mov_b32 exec_hi, 0x0000ffff
buffer_store_dwordx4 v[240:243], v12, s[{SWS}:{SWS+3}], s85 offen sc0 sc1
s_mov_b64 exec, -1
L_U_lb:""")
    if not opt.udelay: lds_count(e, 16, 12)
    stamp(e, 2, 14)
    LB = 112 + 0
    lbregs = [40 + 4 * i for i in range(6)] + [240 + 4 * i for i in range(4)] + [32 + 0, 36]
    lbregs = [40 + 4 * i for i in range(6)] + [240, 244, 248] + [216, 224, 232]
    e(f"""s_mul_i32 s85, s{sJ}, {16*96}
s_mul_i32 s86, s84, 48
s_add_u32 s85, s85, s86
s_lshl_b32 s85, s85, 4
s_add_u32 s85, s85, {AG_OFF}
v_lshrrev_b32 v12, 4, v0
v_lshlrev_b32 v12, 2, v12
v_sub_u32 v12, s{sRB}, v12
v_mov_b32 v9, 0x10000000
v_and_b32 v13, 15, v0""")
    for m in range(4):
        e(f"""v_subrev_u32 v14, {1+m}, v12
v_cmp_le_i32 s[{88+2*m}:{89+2*m}], 0, v14
v_mul_u32_u24 v15, 96, v14
v_add_u32 v15, v15, v13
v_lshlrev_b32 v15, 4, v15
v_cndmask_b32 v{4+m}, v9, v15, s[{88+2*m}:{89+2*m}]""")
    C2J = [8, 10, 238]
    for ct in range(3):
        e(f"v_mov_b32 v{C2J[ct]}, v{K(ct, C2)+1}")
    tk = 0
    for n in range(8):
        for ct in range(3):
            ur, ui = U(n, ct, 0), U(n, ct, 1)
            ta, tb = 40 + 4 * (tk % 6), 42 + 4 * (tk % 6); tk += 1
            e(pk("v_pk_mul_f32", ta, ur, K(ct, C2), None, 0))
            e(pk("v_pk_mul_f32", tb, ur, C2J[ct], None, 0))
            e(pk("v_pk_fma_f32", ur, ui, C2J[ct], ta, 0, neg=True))
            e(pk("v_pk_fma_f32", ui, ui, K(ct, C2), tb, 0))
    CR = list(range(38, 52)) + [54]
    for k in range(15):
        e(f"s_mov_b32 s{CR[k]}, s{sNONCE}")
    e(f"""s_add_u32 s87, s85, {47*16 + 8}
s_mov_b32 s86, 0
L_U_cp:""")
    for k in range(15):
        e(f"""s_cmp_gt_u32 s{sRB}, {k}
s_cbranch_scc0 L_U_cpl
s_load_dword s{CR[k]}, s[{P_WS}:{P_WS+1}], s87 offset:{k*1536} glc""")
    e(f"""L_U_cpl:
s_add_u32 s86, s86, 1
s_waitcnt lgkmcnt(0)
s_mov_b32 s81, 0""")
    for k in range(15):
        e(f"s_xor_b32 s82, s{CR[k]}, s{sNONCE}\ns_or_b32 s81, s81, s82")
    e(f"""s_cmp_ge_u32 s86, {opt.spin_limit}
s_cbranch_scc1 L_U_cpok
s_cmp_eq_u32 s81, 0
s_cbranch_scc1 L_U_cpok
s_sleep 1
s_branch L_U_cp
L_U_cpok:""")
    stamp(e, 11, 14)
    e(f"s_mov_b32 s86, 0\nL_U_lbloop:")
    for m in range(4):
        for ct in range(3):
            r = lbregs[m * 3 + ct]
            e(f"buffer_load_dwordx4 {R(r)}, v{4+m}, s[{SWS}:{SWS+3}], s85 offen offset:{ct*256} sc1")
    e("s_add_u32 s86, s86, 1\ns_mov_b64 s[96:97], 0\ns_waitcnt vmcnt(0)")
    for m in range(4):
        for ct in range(3):
            r = lbregs[m * 3 + ct]
            e(f"""v_cmp_ne_u32 vcc, s{sNONCE}, v{r+2}
s_and_b64 vcc, vcc, s[{88+2*m}:{89+2*m}]
s_or_b64 s[96:97], s[96:97], vcc""")
    e(f"""s_cmp_ge_u32 s86, {opt.spin_limit}
s_cbranch_scc1 L_U_lbok
s_cmp_eq_u64 s[96:97], 0
s_cbranch_scc0 L_U_lbloop
L_U_lbok:""")
    if opt.udelay: lds_count(e, 16, 12)
    def S(m, ct): return lbregs[m * 3 + ct]
    for ct in range(3):
        cfma(e, S(2, ct), K(ct, L128), S(3, ct), S(2, ct))
    for ct in range(3):
        cfma(e, S(1, ct), K(ct, L128), S(2, ct), S(1, ct))
    for ct in range(3):
        cfma(e, S(0, ct), K(ct, L128), S(1, ct), S(0, ct))
    for ct in range(3):
        z, b, t, u = S(0, ct), S(1, ct), S(2, ct), S(3, ct)
        e(f"""v_mov_b32 v{b}, v{z}
v_mov_b32 v{b+1}, v{z+1}
v_permlane16_swap_b32 v{z}, v{b}
v_permlane16_swap_b32 v{z+1}, v{b+1}""")
        cfma(e, t, K(ct, L512), b, z)
        e(f"""v_mov_b32 v{u}, v{t}
v_mov_b32 v{u+1}, v{t+1}
v_permlane32_swap_b32 v{t}, v{u}
v_permlane32_swap_b32 v{t+1}, v{u+1}""")
        cfma(e, z, K(ct, L1024), u, t)
    e(f"s_cmp_ge_u32 s{sWAVE}, 2\ns_cbranch_scc0 L_U_hw0")
    for ct in range(3):
        cfma(e, S(1, ct), K(ct, L64), S(0, ct), G(ct, 0))
    e("s_branch L_U_hw1\nL_U_hw0:")
    for ct in range(3):
        e(f"v_mov_b32 v{S(1,ct)}, v{S(0,ct)}\nv_mov_b32 v{S(1,ct)+1}, v{S(0,ct)+1}")
    e("L_U_hw1:\ns_nop 1")
    for ct in range(3):
        cfma(e, S(2, ct), K(ct, L16Q), S(1, ct), LL(ct))
    for ct in range(3):
        hl, l8, er, ei = S(2, ct), K(ct, L8), Er(ct, 1), Ei(ct, 1)
        cr, ci = S(3, ct), S(3, ct) + 2
        e(f"""v_mov_b32 v{cr}, v{hl}
v_mov_b32 v{ci}, v{hl+1}
v_fma_f32 v{cr+1}, v{l8}, v{hl}, v{er}
v_fma_f32 v{ci+1}, v{l8}, v{hl+1}, v{ei}
v_fma_f32 v{cr+1}, -v{l8+1}, v{hl+1}, v{cr+1}
v_fma_f32 v{ci+1}, v{l8+1}, v{hl}, v{ci+1}""")
    for ct in range(3):
        cr, ci = S(3, ct), S(3, ct) + 2
        ta, tb = S(1, ct), S(1, ct) + 2
        e(pk("v_pk_mul_f32", ta, cr, K(ct, C2), None, 0))
        e(pk("v_pk_mul_f32", tb, cr, C2J[ct], None, 0))
    for ct in range(3):
        cr, ci = S(3, ct), S(3, ct) + 2
        ta, tb = S(1, ct), S(1, ct) + 2
        e(pk("v_pk_fma_f32", cr, ci, C2J[ct], ta, 0, neg=True))
        e(pk("v_pk_fma_f32", ci, ci, K(ct, C2), tb, 0))
    for n in range(8):
        for ct in range(3):
            pr = S(3, ct) if n == 0 else U(n - 1, ct, 0)
            pi = S(3, ct) + 2 if n == 0 else U(n - 1, ct, 1)
            e(pk("v_pk_fma_f32", U(n, ct, 0), pr, K(ct, LAM), U(n, ct, 0), 0))
            e(pk("v_pk_fma_f32", U(n, ct, 1), pi, K(ct, LAM), U(n, ct, 1), 0))
        for ct in range(3):
            pr = S(3, ct) if n == 0 else U(n - 1, ct, 0)
            pi = S(3, ct) + 2 if n == 0 else U(n - 1, ct, 1)
            e(pk("v_pk_fma_f32", U(n, ct, 0), pi, LI[ct], U(n, ct, 0), 0, neg=True))
            e(pk("v_pk_fma_f32", U(n, ct, 1), pr, LI[ct], U(n, ct, 1), 0))
    stamp(e, 3, 14)
    e(f"""v_and_b32 v10, 15, v0
v_lshrrev_b32 v11, 4, v0
v_lshlrev_b32 v11, 3, v11
v_sub_u32 v10, v10, v11""")
    e("v_mov_b32 v14, 0x3f80")
    for b in range(2):
        e(f"""v_add_u32 v12, {16*b}, v10
v_and_b32 v13, 1, v12
v_lshlrev_b32 v13, 4, v13
v_lshlrev_b32 v13, v13, v14
v_lshrrev_b32 v12, 1, v12
v_cmp_eq_u32 s[86:87], 0, v12
v_cmp_eq_u32 s[88:89], 1, v12
v_cmp_eq_u32 s[90:91], 2, v12
v_cmp_eq_u32 s[92:93], 3, v12
v_cndmask_b32 v{40+4*b}, 0, v13, s[86:87]
v_cndmask_b32 v{41+4*b}, 0, v13, s[88:89]
v_cndmask_b32 v{42+4*b}, 0, v13, s[90:91]
v_cndmask_b32 v{43+4*b}, 0, v13, s[92:93]""")
    e(f"""s_lshr_b32 s80, s{sWAVE}, 1
s_lshl_b32 s81, s{sRB}, 1
s_add_u32 s80, s80, s81
s_mul_i32 s80, s80, 94
s_mul_i32 s81, s{sJ}, 6
s_mul_i32 s82, s84, 3
s_add_u32 s81, s81, s82
s_add_u32 s80, s80, s81
s_add_u32 s80, s80, 54
s_lshl_b32 s80, s80, 12
v_lshlrev_b32 v10, 4, v0""")
    for ct in range(3):
        c2 = K(ct, C2)
        for i in range(4):
            r0, r1, i0, i1 = U(2*i, ct, 0), U(2*i+1, ct, 0), U(2*i, ct, 1), U(2*i+1, ct, 1)
            e(f"""v_cvt_pk_bf16_f32 v{48+i}, v{r0}, v{r1}
v_cvt_pk_bf16_f32 v{52+i}, v{r0+1}, v{r1+1}
v_cvt_pk_bf16_f32 v{56+i}, -v{i0}, -v{i1}
v_cvt_pk_bf16_f32 v{60+i}, -v{i0+1}, -v{i1+1}""")
        def D(part, tt): return 224 + 16 * part + 4 * tt
        for part in range(2):
            for a in range(2):
                for b in range(2):
                    A = 48 + 8 * part + 4 * a
                    e(f"v_mfma_f32_16x16x32_bf16 {R(D(part, 2*b+a))}, {R(A)}, {R(40+4*b)}, 0")
        if True:
            e(f"s_add_u32 s82, s81, {ct}\ns_cmp_ge_u32 s82, 40\ns_cbranch_scc1 L_U_skip{ct}")
            for tt in range(4):
                o = acc_u(tt, 2 * ct)
                dr, di = D(0, tt), D(1, tt)
                e(f"""v_cvt_pk_bf16_f32 v{o}, v{dr}, v{dr+1}
v_cvt_pk_bf16_f32 v{o+1}, v{dr+2}, v{dr+3}
v_cvt_pk_bf16_f32 v{o+2}, v{di}, v{di+1}
v_cvt_pk_bf16_f32 v{o+3}, v{di+2}, v{di+3}
buffer_store_dwordx4 {R(o)}, v10, s[{SWS}:{SWS+3}], s80 offen offset:{tt*1024} sc1""")
            e(f"L_U_skip{ct}:\ns_nop 7\ns_add_u32 s80, s80, 4096")
    if opt.uhold: lds_count(e, 32, 12)
    stamp(e, 4, 14)
    tile_flag(e, 'U')
    dbgmax(e, 4)
    stamp(e, 5, 14)
    e("s_branch L_SSM_P2")

ACC2 = 16
WSL = 96
ASL = 196
NW, NA = 5, 3
def set_nw(nw, na):
    global NW, NA, ASL
    NW, NA = nw, na
    ASL = WSL + 20 * nw
def acc2(dt, tt): return ACC2 + (dt * 4 + tt) * 4

def wrap_w(e):
    if not opt.rot: return
    e("""s_sub_u32 s91, s91, 1
s_cmp_eq_u32 s91, 0
s_cselect_b32 s95, s93, 0
s_sub_u32 s84, s84, s95""")

def wrap_a(e):
    if not opt.rot: return
    e("""s_sub_u32 s92, s92, 1
s_cmp_eq_u32 s92, 0
s_cselect_b32 s95, s94, 0
s_sub_u32 s85, s85, s95""")

def rot_setup(e, n_sgpr_or_const, is_const):
    if not opt.rot: return
    if opt.map2 == 1:
        e(f"""s_and_b32 s95, s{sCB}, 3
s_lshl_b32 s95, s95, 1
s_add_u32 s95, s95, s{sRB2}
s_and_b32 s95, s95, 7""")
    else:
        e(f"""s_and_b32 s95, s{sRB2}, 3
s_lshl_b32 s95, s95, 1
s_add_u32 s95, s95, s{sCB}
s_and_b32 s95, s95, 7""")
    n = f"{n_sgpr_or_const}" if is_const else f"s{n_sgpr_or_const}"
    e(f"""s_mul_i32 s90, s95, {n}
s_lshr_b32 s90, s90, 3
s_sub_u32 s91, {n}, s90
s_mov_b32 s92, s91
s_mul_i32 s93, {n}, 5120
s_mul_i32 s94, {n}, 4096
s_mul_i32 s95, s90, 5120
s_add_u32 s84, s84, s95""")

def rot_act(e):
    if not opt.rot: return
    e("""s_lshl_b32 s95, s90, 12
s_add_u32 s85, s85, s95""")

def gen_p2_stream(e, tag, nsteps, extra_hook=None):
    queue = []
    SC = '' if opt.nosc1 else 'sc1'
    def ld_w(s):
        b = WSL + 20 * (s % NW)
        for dt in range(5):
            if dt < 4:
                e(f"buffer_load_dwordx4 {R(b+4*dt)}, v1, s[{SWS}:{SWS+3}], s84 offen offset:{dt*1024} {SC}")
            else:
                e(f"s_add_u32 s84, s84, 4096")
                e(f"buffer_load_dwordx4 {R(b+4*dt)}, v1, s[{SWS}:{SWS+3}], s84 offen {SC}")
                e(f"s_add_u32 s84, s84, 1024")
            queue.append(('w', s))
        wrap_w(e)
    def ld_a(s):
        b = ASL + 16 * (s % NA)
        for tt in range(4):
            e(f"buffer_load_dwordx4 {R(b+4*tt)}, v1, s[{SWS}:{SWS+3}], s85 offen offset:{tt*1024} {SC}")
            queue.append(('a', s))
        e(f"s_add_u32 s85, s85, 4096")
        wrap_a(e)
    return ld_w, ld_a, queue

def p2_role(e, tag, nsteps):
    pass

def emit_stream(e, nsteps, ld_w, ld_a, queue, NL, vL, late_lds=None, sig20=False):
    if opt.ststamps:
        e(f"s_memtime s[100:101]\ns_waitcnt lgkmcnt(0)\nv_writelane_b32 v250, s100, 0")
    for s in range(min(NA, nsteps)): ld_a(s)
    if late_lds is not None: w_lds(e, NL, late_lds, queue)
    for s in range(nsteps):
        idx = [i for i, q in enumerate(queue) if q in (('w', s), ('a', s))]
        inlds = NW <= s < NW + NL
        if idx:
            last = max(idx)
            n = len(queue) - 1 - last
            e(f"s_waitcnt vmcnt({n})" + (" lgkmcnt(0)" if inlds else ""))
            del queue[:last + 1]
        elif inlds:
            e("s_waitcnt lgkmcnt(0)")
        if sig20 and s == 0 and opt.sshelp: lds_count(e, 20, 10)
        if opt.ststamps:
            e(f"s_memtime s[100:101]\ns_waitcnt lgkmcnt(0)\nv_writelane_b32 v250, s100, {s+1}")
        wb = WSL + 20 * (s % NW); ab = ASL + 16 * (s % NA)
        for dt in range(5):
            for tt in range(4):
                d = acc2(dt, tt)
                c = R(d)
                e(f"v_mfma_f32_16x16x32_bf16 {R(d)}, {R(wb+4*dt)}, {R(ab+4*tt)}, {c}")
        if s + NA < nsteps: ld_a(s + NA)
        t = s + NW
        if t < nsteps and t >= NW + NL:
            ld_w(t)
        t = s + 2
        if NW <= t < min(NW + NL, nsteps):
            li = [i for i, q in enumerate(queue) if q == ('l', t)]
            if li:
                e(f"s_waitcnt vmcnt({len(queue) - 1 - max(li)})")
                del queue[:max(li) + 1]
            for dt in range(5):
                e(f"ds_read_b128 {R(WSL + 20*(t % NW) + 4*dt)}, v{vL} offset:{(t-NW)*5120 + dt*1024}")

def spoll_tiles(e, tag, kind, sleep=1):
    off = 0 if kind == 'F' else 128
    n = 18 if kind == 'F' else 14
    e(f"""s_lshl_b32 s89, s{sRB2}, 8
s_add_u32 s89, s89, {TFLAG_OFF + off}
s_mov_b32 s80, 0
L_sp_{tag}:""")
    if kind == 'F':
        e(f"s_load_dwordx16 s[40:55], s[{P_WS}:{P_WS+1}], s89 glc")
        e(f"s_load_dwordx2 s[56:57], s[{P_WS}:{P_WS+1}], s89 offset:64 glc")
        regs = list(range(40, 58))
    else:
        e(f"s_load_dwordx8 s[40:47], s[{P_WS}:{P_WS+1}], s89 glc")
        e(f"s_load_dwordx4 s[48:51], s[{P_WS}:{P_WS+1}], s89 offset:32 glc")
        e(f"s_load_dwordx2 s[54:55], s[{P_WS}:{P_WS+1}], s89 offset:48 glc")
        regs = list(range(40, 52)) + [54, 55]
    e("s_add_u32 s80, s80, 1\ns_waitcnt lgkmcnt(0)\ns_mov_b32 s81, 0")
    for r_ in regs:
        e(f"s_xor_b32 s82, s{r_}, s{sNONCE}\ns_or_b32 s81, s81, s82")
    e(f"""s_cmp_ge_u32 s80, {opt.spin_limit}
s_cbranch_scc1 L_sp_done_{tag}
s_cmp_eq_u32 s81, 0
s_cbranch_scc1 L_sp_done_{tag}
s_sleep {sleep}
s_branch L_sp_{tag}
L_sp_done_{tag}:""")

def ffn_acc_loads(e):
    srd(e, STA, P_B2, 1280)
    e(f"""v_lshrrev_b32 v4, 4, v0
v_lshlrev_b32 v4, 3, v4
v_mov_b32 v5, 0x10000000
s_cmp_eq_u32 s86, 0
s_cselect_b32 s80, 0, 1
v_mov_b32 v6, s80
v_cmp_eq_u32 vcc, 1, v6
v_cndmask_b32 v4, v4, v5, vcc
s_mul_i32 s81, s{sCB}, 160""")
    for dt in range(5):
        e(f"buffer_load_dwordx2 v[{244+2*dt}:{245+2*dt}], v4, s[{STA}:{STA+3}], s81 offen offset:{32*dt}")

def ffn_acc_init(e):
    for dt in range(5):
        b = acc2(dt, 0)
        e(f"""v_lshlrev_b32 v{b}, 16, v{244+2*dt}
v_and_b32 v{b+1}, 0xffff0000, v{244+2*dt}
v_lshlrev_b32 v{b+2}, 16, v{245+2*dt}
v_and_b32 v{b+3}, 0xffff0000, v{245+2*dt}""")
        for tt in range(1, 4):
            for r in range(4):
                e(f"v_mov_b32 v{acc2(dt,tt)+r}, v{b+r}")

def ssm_pre(e):
    e(f"""s_lshr_b32 s80, s{sWAVE}, 1
s_lshl_b32 s80, s80, 5
s_and_b32 s81, s{sWAVE}, 1
s_lshl_b32 s81, s81, 3
s_add_u32 s80, s80, s81
s_lshl_b32 s81, s{sRB2}, 6
s_add_u32 s80, s80, s81
v_bfe_u32 v4, v0, 3, 1
v_lshlrev_b32 v4, 4, v4
v_and_b32 v5, 7, v0
v_add_u32 v4, v4, v5
v_add_u32 v4, s80, v4
v_lshrrev_b32 v5, 4, v0
v_lshlrev_b32 v6, 3, v5
s_mul_i32 s81, s{sCB}, 160
v_mul_u32_u24 v7, 1280, v4
v_add_u32 v7, v7, v6
v_lshlrev_b32 v8, 3, v4
v_mul_u32_u24 v248, 2560, v4
v_lshlrev_b32 v5, 4, v5
v_add_u32 v248, v248, v5""")
    XR, DK = 196, 206
    srd(e, STA, P_AX, 2621440)
    for dt in range(5):
        e(f"buffer_load_dwordx2 v[{XR+2*dt}:{XR+2*dt+1}], v7, s[{STA}:{STA+3}], s81 offen offset:{32*dt}")
    srd(e, STB, P_DSK, 1280)
    for dt in range(5):
        e(f"buffer_load_dwordx2 v[{DK+2*dt}:{DK+2*dt+1}], v6, s[{STB}:{STB+3}], s81 offen offset:{32*dt}")
    e(f"""s_mov_b32 s82, {G_OFF}
buffer_load_dwordx2 v[244:245], v8, s[{SWS}:{SWS+3}], s82 offen sc1""")
    for i in range(80):
        e(f"v_mov_b32 v{ACC2+i}, 0")
    e(f"""s_waitcnt vmcnt(0)
s_mov_b32 s80, 0
L_G_chk:
v_cmp_ne_u32 vcc, s{sNONCE}, v245
s_add_u32 s80, s80, 1
s_cmp_ge_u32 s80, {opt.spin_limit}
s_cbranch_scc1 L_G_ok
s_cmp_eq_u64 vcc, 0
s_cbranch_scc1 L_G_ok
s_sleep 2
buffer_load_dwordx2 v[244:245], v8, s[{SWS}:{SWS+3}], s82 offen sc1
s_waitcnt vmcnt(0)
s_branch L_G_chk
L_G_ok:
v_sub_f32 v246, 1.0, v244
v_cvt_pk_bf16_f32 v246, v246, v246
v_and_b32 v246, 0xffff0000, v246""")
    for dt in range(5):
        T = 216 + 4 * dt
        e(f"""v_lshlrev_b32 v10, 16, v{XR+2*dt}
v_and_b32 v11, 0xffff0000, v{XR+2*dt}
v_lshlrev_b32 v12, 16, v{XR+2*dt+1}
v_and_b32 v13, 0xffff0000, v{XR+2*dt+1}
v_lshlrev_b32 v{T}, 16, v{DK+2*dt}
v_and_b32 v{T+1}, 0xffff0000, v{DK+2*dt}
v_lshlrev_b32 v{T+2}, 16, v{DK+2*dt+1}
v_and_b32 v{T+3}, 0xffff0000, v{DK+2*dt+1}
v_mul_f32 v{T}, v{T}, v10
v_mul_f32 v{T+1}, v{T+1}, v11
v_mul_f32 v{T+2}, v{T+2}, v12
v_mul_f32 v{T+3}, v{T+3}, v13""")
    for w in range(4):
        e(f"s_cmp_eq_u32 s{sWAVE}, {w}\ns_cbranch_scc0 L_PRE_{w}")
        for dt in range(5):
            for r in range(4):
                e(f"v_mov_b32 v{acc2(dt,w)+r}, v{216+4*dt+r}")
        e(f"L_PRE_{w}:")

def lds_signal(e, off, vt):
    e(f"""v_mov_b32 v{vt}, {LDS_FLAG + off}
v_mov_b32 v{vt+1}, 1
ds_write_b32 v{vt}, v{vt+1}""")

def lds_count(e, off, vt):
    e(f"""v_mov_b32 v{vt}, {LDS_FLAG + off}
v_mov_b32 v{vt+1}, 1
s_mov_b64 exec, 1
ds_add_u32 v{vt}, v{vt+1}
s_mov_b64 exec, -1""")

def lds_wait_ge(e, tag, off, n, vt):
    e(f"""v_mov_b32 v{vt}, {LDS_FLAG + off}
s_mov_b32 s80, 0
L_lwg_{tag}:
ds_read_b32 v{vt+1}, v{vt}
s_add_u32 s80, s80, 1
s_waitcnt lgkmcnt(0)
v_readfirstlane_b32 s81, v{vt+1}
s_cmp_ge_u32 s80, {opt.spin_limit * 4}
s_cbranch_scc1 L_lwg_done_{tag}
s_cmp_ge_u32 s81, {n}
s_cbranch_scc1 L_lwg_done_{tag}
s_sleep 1
s_branch L_lwg_{tag}
L_lwg_done_{tag}:""")

def lds_wait(e, tag, off, vt):
    e(f"""v_mov_b32 v{vt}, {LDS_FLAG + off}
s_mov_b32 s80, 0
L_lw_{tag}:
ds_read_b32 v{vt+1}, v{vt}
s_add_u32 s80, s80, 1
s_waitcnt lgkmcnt(0)
v_readfirstlane_b32 s81, v{vt+1}
s_cmp_ge_u32 s80, {opt.spin_limit * 4}
s_cbranch_scc1 L_lw_done_{tag}
s_cmp_eq_u32 s81, 0
s_cbranch_scc0 L_lw_done_{tag}
s_sleep 1
s_branch L_lw_{tag}
L_lw_done_{tag}:""")

def gen_p2(e):
    e("L_FFN_P2:")
    e(f"""s_mul_i32 s80, s{sRB2}, 94
s_add_u32 s85, s85, s80
s_lshl_b32 s85, s85, 12
v_add_u32 v3, s87, v1""")
    rot_act(e)
    e(f"""s_mov_b32 s88, s84
s_mov_b32 s84, s86""")
    nsh_ = 8 if opt.map2 == 1 else 4
    ng_ = (-(-(-(-14 * 40 // nsh_)) // 64)) if opt.gw else 0
    e(f"s_waitcnt vmcnt({NLF*5})")
    gen_gate_compute(e)
    e("s_mov_b32 s84, s88")
    ffn_acc_init(e)
    ld_w, ld_a, queue = gen_p2_stream(e, 'F', 14)
    stamp(e, 3, 14)
    e(f"s_cmp_eq_u32 s86, 0\ns_cbranch_scc0 L_FFN_lw")
    spoll_tiles(e, 'FT', 'F')
    lds_signal(e, 8, 10)
    e("s_branch L_FFN_go\nL_FFN_lw:")
    lds_wait(e, 'F', 8, 10)
    e("L_FFN_go:")
    if opt.uhold:
        e(f"s_cmp_eq_u32 s{sISU}, 1\ns_cbranch_scc0 L_FFN_nohold")
        lds_wait_ge(e, 'UH', 32, 4, 10)
        e("L_FFN_nohold:")
    if opt.prio: e(f"s_setprio {opt.prio}")
    stamp(e, 4, 14)
    if opt.l2pf2: l2_prefetch(e, 85, 14 * 32, 4 if opt.map2 == 1 else 8, f"s{sCB}", 3 if opt.map2 == 1 else 7, 2 if opt.map2 == 1 else 1)
    del queue[:]
    e(f"s_cmp_ge_u32 s86, 2\ns_cbranch_scc1 L_FFN_13")
    emit_stream(e, 14, ld_w, ld_a, queue, NLF, 3, 87 if opt.ldslate else None, sig20=True)
    e("s_branch L_FFN_done")
    e("L_FFN_13:")
    del queue[:]
    emit_stream(e, 13, ld_w, ld_a, queue, NLF, 3, 87 if opt.ldslate else None, sig20=True)
    e("L_FFN_done:")
    if opt.ststamps:
        e(f"""s_memtime s[100:101]
s_waitcnt lgkmcnt(0)
v_writelane_b32 v250, s100, 15
s_lshl_b32 s98, s2, 3
s_add_u32 s98, s98, s{sWAVE}
s_lshl_b32 s98, s98, 6
s_add_u32 s98, s98, {STAMP_OFF + 0x40000}
v_lshlrev_b32 v251, 2, v0
s_mov_b64 exec, 0xffff
buffer_store_dword v250, v251, s[{SWS}:{SWS+3}], s98 offen
s_mov_b64 exec, -1""")
    stamp(e, 5, 14)
    e(f"""s_mul_i32 s80, s86, 20480
v_add_u32 v2, s80, v1""")
    for tt in range(4):
        for dt in range(5):
            e(f"ds_write_b128 v2, {R(acc2(dt,tt))} offset:{LDS_F + (tt*5+dt)*1024}")
    e("s_waitcnt lgkmcnt(0)\ns_barrier")
    stamp(e, 6, 14)
    e("s_branch L_END")
    e("L_SSM_P2:")
    if not opt.wearly: ssm_w_setup(e, 'P')
    e("L_SSM_P2b:")
    ssm_pre(e)
    ld_w, ld_a, queue = gen_p2_stream(e, 'S', 10)
    stamp(e, 6, 14)
    e(f"s_cmp_eq_u32 s{sWAVE}, 0\ns_cbranch_scc0 L_SSM_lw")
    spoll_tiles(e, 'ST', 'S')
    e('s_waitcnt vmcnt(0)')
    lds_signal(e, 12, 10)
    e("s_branch L_SSM_go\nL_SSM_lw:\ns_waitcnt vmcnt(0)")
    lds_wait(e, 'S', 12, 10)
    e("L_SSM_go:")
    if opt.sshelp:
        e(f"s_cmp_eq_u32 s{sISU}, 1\ns_cbranch_scc0 L_SSM_nohw")
        lds_wait_ge(e, 'H', 20, 4, 10)
        e("L_SSM_nohw:")
    stamp(e, 7, 14)
    dbgmax(e, 5)
    if opt.l2pf2: l2_prefetch(e, 85, 10 * 32, 4 if opt.map2 == 1 else 8, f"s{sCB}", 3 if opt.map2 == 1 else 7, 2 if opt.map2 == 1 else 1)
    del queue[:]
    emit_stream(e, 10, ld_w, ld_a, queue, NLS, 3)
    if opt.ststamps:
        e(f"""s_memtime s[100:101]
s_waitcnt lgkmcnt(0)
v_writelane_b32 v250, s100, 15
s_lshl_b32 s98, s2, 3
s_add_u32 s98, s98, s{sWAVE}
s_lshl_b32 s98, s98, 6
s_add_u32 s98, s98, {STAMP_OFF + 0x40000}
v_lshlrev_b32 v251, 2, v0
s_mov_b64 exec, 0xffff
buffer_store_dword v250, v251, s[{SWS}:{SWS+3}], s98 offen
s_mov_b64 exec, -1""")
    stamp(e, 8, 14)
    dbgmax(e, 6)
    e(f"""s_mul_i32 s83, s{sWAVE}, 15360
s_add_u32 s83, s83, {LDS_Y}
v_add_u32 v7, s83, v1""")
    OWN = 130
    for w in range(4):
        e(f"s_cmp_eq_u32 s{sWAVE}, {w}\ns_cbranch_scc0 L_YW_{w}")
        sl = 0
        for tt in range(4):
            if tt == w: continue
            for dt in range(5):
                e(f"ds_write_b128 v7, {R(acc2(dt,tt))} offset:{sl * 5120 + dt * 1024}")
            sl += 1
        for dt in range(5):
            for r in range(4):
                e(f"v_mov_b32 v{OWN+4*dt+r}, v{acc2(dt,w)+r}")
        e(f"s_branch L_YW_done\nL_YW_{w}:")
    e("L_YW_done:")
    for k in range(3):
        e(f"""s_cmp_ge_u32 {k}, s{sWAVE}
s_cselect_b32 s80, {k+1}, {k}
s_cselect_b32 s81, 0, 1
s_sub_u32 s81, s{sWAVE}, s81
s_mul_i32 s80, s80, 15360
s_mul_i32 s81, s81, 5120
s_add_u32 s80, s80, s81
s_add_u32 s80, s80, {LDS_Y}
v_add_u32 v{8+k}, s80, v1""")
    e(f"""s_mul_i32 s80, s{sWAVE}, 5120
v_add_u32 v11, s80, v1
v_add_u32 v12, 40960, v11""")
    srd(e, SOUT, P_OUT, 5242880)
    e(f"s_mul_i32 s81, s{sCB}, 320")
    e("s_waitcnt lgkmcnt(0)\ns_barrier")
    stamp(e, 9, 14)
    YR, FR = 16, 150
    for dt in range(5):
        for k in range(3):
            e(f"ds_read_b128 {R(YR+20*k+4*dt)}, v{8+k} offset:{dt*1024}")
        for w2 in range(4):
            e(f"ds_read_b128 {R(FR+20*w2+4*dt)}, v{11+(w2>>1)} offset:{(w2&1)*20480 + dt*1024}")
    for dt in range(5):
        e(f"s_waitcnt lgkmcnt({min(15, 7*(4-dt))})")
        y, f = OWN + 4 * dt, FR + 4 * dt
        t1, t2 = 80 + 0, 84
        A = 96 + 4 * dt
        for r in range(0, 4, 2):
            e(f"v_pk_add_f32 v[{YR+4*dt+r}:{YR+4*dt+r+1}], v[{YR+4*dt+r}:{YR+4*dt+r+1}], v[{YR+20+4*dt+r}:{YR+20+4*dt+r+1}]")
            e(f"v_pk_add_f32 v[{y+r}:{y+r+1}], v[{y+r}:{y+r+1}], v[{YR+40+4*dt+r}:{YR+40+4*dt+r+1}]")
            e(f"v_pk_add_f32 v[{f+r}:{f+r+1}], v[{f+r}:{f+r+1}], v[{f+20+r}:{f+20+r+1}]")
            e(f"v_pk_add_f32 v[{f+40+r}:{f+40+r+1}], v[{f+40+r}:{f+40+r+1}], v[{f+60+r}:{f+60+r+1}]")
        B_ = 76 + 0
        for r in range(0, 4, 2):
            e(f"v_pk_add_f32 v[{YR+20+4*dt+r}:{YR+20+4*dt+r+1}], v[{y+r}:{y+r+1}], v[{YR+4*dt+r}:{YR+4*dt+r+1}]")
            e(f"v_pk_add_f32 v[{f+20+r}:{f+20+r+1}], v[{f+r}:{f+r+1}], v[{f+40+r}:{f+40+r+1}]")
        for r in range(0, 4, 2):
            e(f"v_pk_mul_f32 v[{YR+40+4*dt+r}:{YR+40+4*dt+r+1}], v[{YR+20+4*dt+r}:{YR+20+4*dt+r+1}], v[244:245] op_sel:[0,0] op_sel_hi:[1,0]")
        for r in range(0, 4, 2):
            e(f"v_pk_fma_f32 v[{A+r}:{A+r+1}], v[{f+20+r}:{f+20+r+1}], v[246:247], v[{YR+40+4*dt+r}:{YR+40+4*dt+r+1}] op_sel:[0,0,0] op_sel_hi:[1,0,1]")
        e(f"buffer_store_dwordx4 {R(A)}, v248, s[{SOUT}:{SOUT+3}], s81 offen offset:{dt*64} {['', 'sc1', 'nt', 'sc0 sc1'][opt.osc]}")
    stamp(e, 10, 14)
    if opt.deadline:
        e(f"""L_DL:
s_memrealtime s[100:101]
s_waitcnt lgkmcnt(0)
s_sub_u32 s98, s100, s{sNONCE}
s_cmp_lt_u32 s98, {opt.deadline}
s_cbranch_scc0 L_DL_done
s_sleep 1
s_branch L_DL
L_DL_done:""")
    if opt.dbgtime: e("s_waitcnt vmcnt(0)")
    dbgmax(e, 7)
    e("s_branch L_END")

def gen_gate_loads(e, W=84):
    srd(e, STA, P_GW, 1280)
    srd(e, STB, P_AX, 2621440)
    e(f"""v_lshlrev_b32 v12, 4, v0
v_lshlrev_b32 v13, 2, v0
s_lshl_b32 s80, s2, 3
s_lshl_b32 s81, s{W}, 1
s_add_u32 s80, s80, s81
s_mul_i32 s81, s80, 1280
s_add_u32 s82, s81, 1280
buffer_load_dwordx4 v[16:19], v12, s[{STA}:{STA+3}], 0 offen
buffer_load_dword v20, v13, s[{STA}:{STA+3}], 0 offen offset:1024
buffer_load_dwordx4 v[22:25], v12, s[{STB}:{STB+3}], s81 offen
buffer_load_dword v26, v13, s[{STB}:{STB+3}], s81 offen offset:1024
buffer_load_dwordx4 v[28:31], v12, s[{STB}:{STB+3}], s82 offen
buffer_load_dword v32, v13, s[{STB}:{STB+3}], s82 offen offset:1024""")

def gen_gate_compute(e):
    e("v_mov_b32 v40, 0\nv_mov_b32 v41, 0")
    for m in range(5):
        e(f"""v_lshlrev_b32 v36, 16, v{16+m}
v_and_b32 v37, 0xffff0000, v{16+m}""")
        for row in range(2):
            x = 22 + 6 * row + m
            e(f"""v_lshlrev_b32 v38, 16, v{x}
v_and_b32 v39, 0xffff0000, v{x}
v_mul_f32 v38, v38, v36
v_mul_f32 v39, v39, v37
v_cvt_pk_bf16_f32 v38, v38, v39
v_lshlrev_b32 v39, 16, v38
v_and_b32 v38, 0xffff0000, v38
v_add_f32 v{40+row}, v{40+row}, v39
v_add_f32 v{40+row}, v{40+row}, v38""")
    for sh in ("row_shr:1", "row_shr:2", "row_shr:4", "row_shr:8", "row_bcast:15 row_mask:0xa", "row_bcast:31 row_mask:0xc"):
        for row in range(2):
            e(f"v_add_f32 v{40+row}, v{40+row}, v{40+row} {sh}")
    e("""v_readlane_b32 s80, v40, 63
v_readlane_b32 s81, v41, 63""")
    e(f"""v_mov_b32 v42, s80
v_mov_b32 v43, s81
v_cmp_eq_u32 vcc, 1, v0
v_cndmask_b32 v42, v42, v43, vcc
v_cvt_pk_bf16_f32 v42, v42, v42
v_and_b32 v42, 0xffff0000, v42
v_mul_f32 v42, 0xbfb8aa3b, v42
v_exp_f32 v42, v42
v_add_f32 v42, 1.0, v42
v_rcp_f32 v42, v42
v_cvt_pk_bf16_f32 v42, v42, v42
v_and_b32 v42, 0xffff0000, v42
v_mov_b32 v43, s{sNONCE}
v_lshlrev_b32 v44, 3, v0
s_lshl_b32 s80, s2, 3
s_lshl_b32 s81, s84, 1
s_add_u32 s80, s80, s81
s_lshl_b32 s80, s80, 3
s_add_u32 s80, s80, {G_OFF}
s_mov_b64 exec, 3
buffer_store_dwordx2 v[42:43], v44, s[{SWS}:{SWS+3}], s80 offen sc0 sc1
s_mov_b64 exec, -1""")

def generate(path):
    e = Emitter()
    hdr = open("gated_mix__ssm_conv_s5__dense_activation_squared_relu__prompt.s.ref").read().split("\n")
    head = [l for l in hdr if l.startswith(";") and "@launch" not in l and "Override" not in l and "grid=ceil" not in l]
    txt = "\n".join(head) + f"\n; @launch grid=(256,1,1) block=(512,1,1) lds={LDS_SIZE}\n"
    txt += '.amdgcn_target "amdgcn-amd-amdhsa--gfx950"\n.text\n'
    txt += f".globl {NAME}\n.p2align 8\n.type {NAME},@function\n{NAME}:\n"
    gen_entry(e)
    gen_consumer(e)
    gen_loader(e)
    gen_p2(e)
    e("L_END:\ns_endpgm\nL_CODE_END:")
    txt += e.text()
    txt += f""".section .rodata,"a"
.p2align 6
.amdhsa_kernel {NAME}
  .amdhsa_next_free_vgpr 256
  .amdhsa_next_free_sgpr 102
  .amdhsa_accum_offset 256
  .amdhsa_group_segment_fixed_size 0
  .amdhsa_kernarg_size 144
  .amdhsa_user_sgpr_count 2
  .amdhsa_user_sgpr_kernarg_segment_ptr 1
  .amdhsa_system_sgpr_workgroup_id_x 1
.end_amdhsa_kernel
"""
    open(path, "w").write(txt)
    print("pads:", e.npad, "lines:", len(e.out))

if __name__ == "__main__":
    opt.check_g = True
    opt.nowait = 0
    opt.nodma = 0
    opt.itstamps = 0
    opt.l2pf = 0
    opt.deadline = 0
    opt.plate = 0
    opt.pfin = 2
    opt.uhold = 1
    opt.gw2 = 0
    opt.thr = 0
    opt.fswn = 5
    opt.osc = 0
    opt.nosc1 = 0
    opt.nw = 5
    opt.na = 3
    opt.fsw = 2
    opt.gall = 0
    opt.udelay = 0
    opt.dbgtime = 0
    opt.sorder = 1
    opt.sshelp = 1
    opt.ststamps = 0
    opt.rot = 0
    opt.sprio = 2
    opt.eprio = 3
    opt.wearly = 0
    opt.ldslate = 0
    opt.prio = 1
    opt.cpf = 1
    opt.wdelay = 0
    opt.noprep = 0
    opt.nost = 0
    opt.map2 = 1
    opt.gw = 0
    opt.gloop = 1
    opt.ssleep = 8
    opt.l2pf2 = 0
    for a in sys.argv[2:]:
        k, v = a.split("=")
        setattr(opt, k, int(v))
    if opt.nw != 5 or opt.na != 3: set_nw(opt.nw, opt.na)
    generate(sys.argv[1])
```

```python
import sys
from emit import Emitter

NAME = "gated_mix__ssm_conv_s5__dense_activation_squared_relu__prompt_kernel"

ACT_OFF   = 0
WF_OFF    = 0xC00000
G_OFF     = 0x1000000
AG_OFF    = 0x1010000
WFLAG_OFF = 0x1040000
TFLAG_OFF = 0x1050000
STAMP_OFF = 0x1100000
SLOT = 40960
LDS_PREP = 122880
LDS_TAB  = 143360
LDS_LX   = LDS_TAB + 8448
LDS_FLAG = LDS_LX + 768
LDS_DUMMY = LDS_FLAG + 64
LDS_F    = 0
LDS_Y    = 81920
LDS_SIZE = 163840

SX, SWA, SWB, SWS, STA, STB, SOUT = 4, 8, 12, 16, 20, 24, 28
P_AX, P_LRE, P_LIM, P_BRE, P_BIM, P_CRE, P_CIM, P_LDT, P_DSK, P_BX, P_W1, P_B1, P_W2, P_B2, P_GW, P_OUT, P_DBG, P_WS = [36 + 2 * i for i in range(18)]
sWAVE, sRB, sCOL, sJ, sRB2, sCB, sNONCE, sISU = 72, 73, 74, 75, 76, 77, 78, 79
SG, sGo, sGinc = 28, 83, 85

class Opt:
    phase2 = True
    stamps = False
    spin_limit = 200000
opt = Opt()

def GNT():
    return 'nt' if opt.gnt else ''

def SNT():
    return 'nt' if opt.snt else ''

def srd(e, s, ptr, size):
    e(f"s_mov_b32 s{s}, s{ptr}\ns_mov_b32 s{s+1}, s{ptr+1}\ns_mov_b32 s{s+2}, {size}\ns_mov_b32 s{s+3}, 0x20000")

def R(b, n=4):
    return f"v[{b}:{b+n-1}]"

_stamp_id = [0]
def stamp(e, idx, tmpv=14):
    if not opt.stamps: return
    e(f"""s_memrealtime s[100:101]
s_lshl_b32 s98, s2, 3
s_add_u32 s98, s98, s{sWAVE}
s_lshl_b32 s98, s98, 6
s_add_u32 s98, s98, {STAMP_OFF + 4*idx}
s_waitcnt lgkmcnt(0)
v_mov_b32 v{tmpv}, s100
v_mov_b32 v{tmpv+1}, 0
s_mov_b64 s[96:97], exec
s_mov_b64 exec, 1
buffer_store_dword v{tmpv}, v{tmpv+1}, s[{SWS}:{SWS+3}], s98 offen
s_mov_b64 exec, s[96:97]""")

def stamp_clk(e, idx, tmpv=14):
    if not opt.stamps: return
    e(f"""s_memtime s[100:101]
s_lshl_b32 s98, s2, 3
s_add_u32 s98, s98, s{sWAVE}
s_lshl_b32 s98, s98, 6
s_add_u32 s98, s98, {STAMP_OFF + 4*idx}
s_waitcnt lgkmcnt(0)
v_mov_b32 v{tmpv}, s100
v_mov_b32 v{tmpv+1}, 0
s_mov_b64 s[96:97], exec
s_mov_b64 exec, 1
buffer_store_dword v{tmpv}, v{tmpv+1}, s[{SWS}:{SWS+3}], s98 offen
s_mov_b64 exec, s[96:97]""")

class Cap:
    def __init__(self): self.l = []
    def __call__(self, s):
        for x in s.split("\n"):
            if x.strip(): self.l.append(x.strip())

def merge(e, main_groups, aux):
    n = len(main_groups); k = 0
    per = -(-len(aux) // n) if n else 0
    for g in main_groups:
        for x in g: e(x)
        for x in aux[k:k + per]: e(x)
        k += per
    for x in aux[k:]: e(x)

_dm = [0]
def dbgmax(e, idx, neg=False, tv=14):
    if not opt.dbgtime: return
    _dm[0] += 1; n = _dm[0]
    e(f"""s_and_b32 s100, s{sWAVE}, 3
s_cmp_eq_u32 s100, 0
s_cbranch_scc0 L_dm{n}
s_cmp_eq_u32 s2, 0
s_cselect_b32 s101, {4*idx}, {4*(idx+8)}
s_cbranch_scc1 L_dmg{n}
s_cmp_eq_u32 s2, 255
s_cbranch_scc0 L_dm{n}
L_dmg{n}:
v_mov_b32 v{tv+1}, s101
s_memrealtime s[100:101]
s_mov_b32 s96, s{P_DBG}
s_mov_b32 s97, s{P_DBG+1}
s_mov_b32 s98, 256
s_mov_b32 s99, 0x20000
s_waitcnt lgkmcnt(0)
v_mov_b32 v{tv}, s100
s_mov_b64 exec, 1
buffer_store_dword v{tv}, v{tv+1}, s[96:99], 0 offen
s_mov_b64 exec, -1
L_dm{n}:""")

def interleave(e, A, B, lead=1):
    bi = 0
    for i, a in enumerate(A):
        e(a)
        if i >= lead - 1 and bi < len(B):
            e(B[bi]); bi += 1
    while bi < len(B):
        e(B[bi]); bi += 1

def spin_nonce(e, tag, vtmp):
    srd(e, STA, P_DBG, 256)
    e(f"""v_mov_b32 v{vtmp+1}, 0
s_mov_b32 s80, 0
L_nonce_{tag}:
buffer_load_dword v{vtmp}, v{vtmp+1}, s[{STA}:{STA+3}], 0 offen sc1
s_add_u32 s80, s80, 1
s_waitcnt vmcnt(0)
v_readfirstlane_b32 s{sNONCE}, v{vtmp}
s_cmp_ge_u32 s80, {opt.spin_limit}
s_cbranch_scc1 L_nonce_done_{tag}
s_cmp_eq_u32 s{sNONCE}, 0
s_cbranch_scc0 L_nonce_done_{tag}
s_sleep 1
s_branch L_nonce_{tag}
L_nonce_done_{tag}:""")

def poll_flags(e, tag, vaddr, vtmp, soff_sgpr, nlanes_mask_lo, mask_hi=0, sleep=1):
    e(f"""s_mov_b32 s80, 0
s_mov_b32 s82, {nlanes_mask_lo}
s_mov_b32 s83, {mask_hi}
L_poll_{tag}:
buffer_load_dword v{vtmp}, v{vaddr}, s[{SWS}:{SWS+3}], s{soff_sgpr} offen sc1
s_add_u32 s80, s80, 1
s_waitcnt vmcnt(0)
v_cmp_ne_u32 vcc, s{sNONCE}, v{vtmp}
s_cmp_ge_u32 s80, {opt.spin_limit}
s_cbranch_scc1 L_poll_done_{tag}
s_and_b64 vcc, vcc, s[82:83]
s_cbranch_scc0 L_poll_done_{tag}
s_sleep {sleep}
s_branch L_poll_{tag}
L_poll_done_{tag}:""")

def gen_entry(e):
    if opt.map2 == 1:
        MAP2 = f"""s_lshr_b32 s82, s80, 1
s_lshl_b32 s82, s82, 3
s_lshr_b32 s83, s81, 2
s_add_u32 s{sRB2}, s82, s83
s_and_b32 s82, s80, 1
s_lshl_b32 s82, s82, 2
s_and_b32 s83, s81, 3
s_add_u32 s{sCB}, s82, s83"""
    else:
        MAP2 = f"""s_lshl_b32 s82, s80, 2
s_and_b32 s83, s81, 3
s_add_u32 s{sRB2}, s82, s83
s_lshr_b32 s{sCB}, s81, 2"""
    e(f"""s_cmp_ge_u32 s2, 256
s_cbranch_scc1 L_END
s_load_dwordx16 s[36:51], s[0:1], 0
s_load_dwordx16 s[52:67], s[0:1], 64
s_load_dwordx4 s[68:71], s[0:1], 128
v_lshrrev_b32 v1, 6, v0
v_and_b32 v0, 63, v0
v_readfirstlane_b32 s{sWAVE}, v1
s_and_b32 s80, s2, 7
s_lshr_b32 s81, s2, 3
s_and_b32 s82, s80, 1
s_lshl_b32 s82, s82, 3
s_and_b32 s83, s81, 7
s_add_u32 s{sRB}, s82, s83
s_lshr_b32 s82, s80, 1
s_lshl_b32 s82, s82, 2
s_lshr_b32 s83, s81, 3
s_add_u32 s{sCOL}, s82, s83
{MAP2}
s_sub_u32 s82, s{sCOL}, 9
s_cmp_ge_u32 s{sCOL}, 9
s_cselect_b32 s{sISU}, 1, 0
s_cselect_b32 s{sJ}, s82, s{sCOL}
s_waitcnt lgkmcnt(0)""")
    srd(e, SWS, P_WS, 0x10000000)
    srd(e, SX, P_AX, 2621440)
    stamp(e, 12, 14)
    e(f"""s_cmp_eq_u32 s2, 0
s_cbranch_scc0 L_no_nonce
s_cmp_eq_u32 s{sWAVE}, 4
s_cbranch_scc0 L_no_nonce
s_memrealtime s[80:81]""")
    srd(e, STA, P_DBG, 256)
    e(f"""s_waitcnt lgkmcnt(0)
s_or_b32 s80, s80, 1
v_mov_b32 v2, s80
v_mov_b32 v3, 0
s_mov_b64 exec, 1
buffer_store_dword v2, v3, s[{STA}:{STA+3}], 0 offen sc0 sc1
s_mov_b64 exec, -1
L_no_nonce:
s_cmp_ge_u32 s{sWAVE}, 4
s_cbranch_scc1 L_LOADER""")

def cmul(e, d, a, b, t):
    e(f"""v_mul_f32 v{d}, v{a}, v{b}
v_mul_f32 v{d+1}, v{a}, v{b+1}
v_fma_f32 v{d}, -v{a+1}, v{b+1}, v{d}
v_fma_f32 v{d+1}, v{a+1}, v{b}, v{d+1}""")

def csq(e, d, a):
    cmul(e, d, a, a, None)

def cfma(e, d, a, b, c):
    e(f"""v_fma_f32 v{d}, v{a}, v{b}, v{c}
v_fma_f32 v{d+1}, v{a}, v{b+1}, v{c+1}
v_fma_f32 v{d}, -v{a+1}, v{b+1}, v{d}
v_fma_f32 v{d+1}, v{a+1}, v{b}, v{d+1}""")

def gen_loader(e):
    e("L_LOADER:")
    vXo = 2; vWo = 4
    sXo = 86
    sWo = 90
    sLX, sLW, sWinc = 32, 33, 34
    def issue_x(s):
        slot = (s % 3) * SLOT
        for m in range(4):
            e(f"s_add_u32 m0, s{sLX}, {slot + m*1024}")
            e(f"buffer_load_dwordx4 v{vXo}, s[{SX}:{SX+3}], s{sXo+m} offen {SNT()} lds")
            e(f"s_add_u32 s{sXo+m}, s{sXo+m}, 128")
    def issue_w(s):
        slot = (s % 3) * SLOT
        for m in range(6):
            S = SWB if (m >> 1) == 1 else SWA
            e(f"s_add_u32 m0, s{sLW}, {slot + m*1024}")
            e(f"buffer_load_dwordx4 v{vWo+m}, s[{S}:{S+3}], s{sWo+m} offen {SNT()} lds")
            e(f"s_add_u32 s{sWo+m}, s{sWo+m}, s{sWinc}")
    def issue(s):
        issue_x(s); issue_w(s)
    e(f"""s_sub_u32 s84, s{sWAVE}, 4
v_lshrrev_b32 v10, 3, v0
v_and_b32 v11, 7, v0
v_xor_b32 v11, v11, v10
v_lshlrev_b32 v11, 4, v11
s_lshl_b32 s{sLX}, s84, 12
s_mul_i32 s{sLW}, s84, 6144
s_add_u32 s{sLW}, s{sLW}, 16384
s_lshl_b32 s85, s{sRB}, 7""")
    e(f"""s_mul_i32 s80, s{sJ}, 96
s_lshl_b32 s81, s84, 5
s_add_u32 s80, s80, s81
v_and_b32 v12, 31, v0
v_add_u32 v12, s80, v12
v_min_u32 v12, 639, v12
v_lshlrev_b32 v12, 1, v12""")
    srd(e, STA, P_LRE, 1280)
    e(f"buffer_load_ushort v20, v12, s[{STA}:{STA+3}], 0 offen")
    srd(e, STB, P_LIM, 1280)
    e(f"buffer_load_ushort v21, v12, s[{STB}:{STB+3}], 0 offen")
    srd(e, STA, P_LDT, 1280)
    e(f"buffer_load_ushort v22, v12, s[{STA}:{STA+3}], 0 offen")
    e(f"""s_cmp_eq_u32 s{sISU}, 1
s_cbranch_scc1 L_LD_U""")
    e(f"""v_mul_u32_u24 v{vXo}, 1280, v10
v_add_u32 v{vXo}, v{vXo}, v11
s_lshl_b32 s80, s84, 5
s_add_u32 s80, s80, s85""")
    for m in range(4):
        e(f"s_add_u32 s81, s80, {16*(m&1) + 8*(m>>1)}\ns_mul_i32 s{sXo+m}, s81, 1280")
    issue_x(0)
    srd(e, SWA, P_W1, 2211840)
    srd(e, SWB, P_W1, 2211840)
    e(f"""s_mul_i32 s80, s84, {16*3456}
s_mul_i32 s81, s{sJ}, 384
s_add_u32 s80, s80, s81""")
    for m in range(6):
        e(f"s_mov_b32 s{sWo+m}, s80")
    e(f"s_mov_b32 s{sWinc}, {64*3456}")
    for m in range(6):
        e(f"""v_add_u32 v12, {64*m}, v0
v_mul_u32_u24 v13, 2731, v12
v_lshrrev_b32 v13, 16, v13
v_mul_u32_u24 v14, 24, v13
v_sub_u32 v14, v12, v14
v_bfe_u32 v15, v13, 1, 1
v_lshlrev_b32 v15, 1, v15
v_bfe_u32 v16, v13, 3, 1
v_lshlrev_b32 v16, 2, v16
v_or_b32 v15, v15, v16
v_xor_b32 v14, v14, v15
v_lshlrev_b32 v14, 4, v14
v_mul_u32_u24 v13, 3456, v13
v_add_u32 v{vWo+m}, v13, v14""")
    e("s_branch L_LD_GO")
    e("L_LD_U:")
    e(f"""v_lshrrev_b32 v12, 5, v0
v_lshlrev_b32 v12, 4, v12
v_bfe_u32 v13, v0, 3, 1
v_lshlrev_b32 v13, 3, v13
v_add_u32 v12, v12, v13
v_bfe_u32 v13, v0, 4, 1
v_add_u32 v12, v12, v13
v_mul_u32_u24 v{vXo}, 1280, v12
v_add_u32 v{vXo}, v{vXo}, v11
s_lshr_b32 s80, s84, 1
s_lshl_b32 s80, s80, 6
s_and_b32 s81, s84, 1
s_lshl_b32 s82, s81, 2
s_add_u32 s80, s80, s82
s_add_u32 s80, s80, s85""")
    for m in range(4):
        e(f"s_add_u32 s82, s80, {32*(m&1) + 2*(m>>1)}\ns_mul_i32 s{sXo+m}, s82, 1280")
    issue_x(0)
    e(f"""v_mul_u32_u24 v12, 1280, v10
v_add_u32 v12, v12, v11""")
    for m in range(6):
        e(f"v_mov_b32 v{vWo+m}, v12")
    e(f"""s_mul_i32 s80, s{sJ}, 96
s_lshr_b32 s82, s84, 1
s_mul_i32 s82, s82, 48
s_add_u32 s80, s80, s82
s_mul_i32 s83, s81, 3""")
    for m in range(6):
        e(f"""s_add_u32 s82, s83, {m>>1}
s_lshr_b32 s82, s82, 1
s_lshl_b32 s82, s82, 4
s_add_u32 s82, s82, s80
s_add_u32 s82, s82, {8*(m&1)}
s_min_u32 s82, s82, 632
s_mul_i32 s{sWo+m}, s82, 1280""")
    e(f"s_mov_b32 s{sWinc}, 128")
    e(f"""s_cmp_eq_u32 s81, 0
s_cselect_b32 s{SWA}, s{P_BRE}, s{P_BIM}
s_cselect_b32 s{SWA+1}, s{P_BRE+1}, s{P_BIM+1}
s_cselect_b32 s{SWB}, s{P_BIM}, s{P_BRE}
s_cselect_b32 s{SWB+1}, s{P_BIM+1}, s{P_BRE+1}
s_mov_b32 s{SWA+2}, 819200
s_mov_b32 s{SWA+3}, 0x20000
s_mov_b32 s{SWB+2}, 819200
s_mov_b32 s{SWB+3}, 0x20000""")
    e("L_LD_GO:")
    def groups(s_):
        slot = (s_ % 3) * SLOT
        G = []
        for m in range(4):
            G.append([f"s_add_u32 m0, s{sLX}, {slot + m*1024}",
                      f"buffer_load_dwordx4 v{vXo}, s[{SX}:{SX+3}], s{sXo+m} offen {SNT()} lds",
                      f"s_add_u32 s{sXo+m}, s{sXo+m}, 128"])
        for m in range(6):
            S = SWB if (m >> 1) == 1 else SWA
            G.append([f"s_add_u32 m0, s{sLW}, {slot + m*1024}",
                      f"buffer_load_dwordx4 v{vWo+m}, s[{S}:{S+3}], s{sWo+m} offen {SNT()} lds",
                      f"s_add_u32 s{sWo+m}, s{sWo+m}, s{sWinc}"])
        return G
    def gath():
        if opt.gall:
            e(f"buffer_load_dword v18, v17, s[{SWS}:{SWS+3}], 0 offen")
        else:
            e(f"buffer_load_dword v18, v17, s[{SG}:{SG+3}], s{sGo} offen {GNT()}\ns_add_u32 s{sGo}, s{sGo}, s{sGinc}")
    issue_w(0)
    if opt.gall: e("v_mov_b32 v17, 0x10000000")
    else: gen_gather_setup(e, 84, 'L', 3)
    issue(1)
    e("s_waitcnt vmcnt(10)\ns_barrier")
    issue(2); gath()
    e("s_waitcnt vmcnt(11)\ns_barrier")
    cA = Cap(); gen_lambda_table(cA, 0)
    cB = Cap(); gen_lambda_table(cB, 1)
    lam = cA.l + ['<ADDR>'] + cB.l
    nq = 4
    per_ = -(-len(lam) // nq)
    parts = [lam[i*per_:(i+1)*per_] for i in range(nq)]
    addr_code = [f"v_and_b32 v62, 31, v0", f"v_lshlrev_b32 v62, 3, v62", f"v_add_u32 v62, s96, v62"]
    def expand(L):
        out = []
        for x in L:
            if x == '<ADDR>': out += addr_code
            else: out.append(x)
        return out
    e(f"""s_lshl_b32 s80, s84, 8
s_add_u32 s80, s80, {LDS_TAB}
s_mov_b32 s81, {LDS_DUMMY}
s_cmp_eq_u32 s84, 3
s_cselect_b32 s96, s81, s80""")
    merge(e, groups(3), expand(parts[0])); gath()
    e("s_waitcnt vmcnt(12)\ns_barrier")
    merge(e, groups(4), expand(parts[1])); gath()
    for it, (st_, g_) in enumerate(((5, 1), (6, 1), (7, 1), (8, 1))):
        e("s_waitcnt vmcnt(12)\ns_barrier")
        if it < 2: merge(e, groups(st_), expand(parts[2 + it]))
        else: issue(st_)
        if g_: gath()
        if it == 1:
            srd(e, STA, P_DBG, 256)
            e(f"v_mov_b32 v12, 0\nbuffer_load_dword v99, v12, s[{STA}:{STA+3}], 0 offen")
    e("s_waitcnt vmcnt(12)\ns_barrier")
    e(f"""v_readfirstlane_b32 s{sNONCE}, v99
s_cmp_eq_u32 s{sNONCE}, 0
s_cbranch_scc0 L_LD_nonce_ok""")
    spin_nonce(e, 'L', 10)
    e("L_LD_nonce_ok:")
    e(f"""s_mul_i32 s85, s84, 14
s_cmp_eq_u32 s84, 3
s_cselect_b32 s80, 1, 0
s_sub_u32 s85, s85, s80
v_lshlrev_b32 v12, 2, v0
s_lshl_b32 s81, s{sCB}, 9
s_lshl_b32 s82, s85, 2
s_add_u32 s81, s81, s82
s_add_u32 s35, s81, {WFLAG_OFF}
s_mul_i32 s80, s84, 10
s_add_u32 s80, s80, {54 - 16}
s_sub_u32 s80, s80, s85
s_lshl_b32 s80, s80, 2
v_add_u32 v14, s80, v12
v_cmp_le_u32 vcc, 16, v0
v_cndmask_b32 v12, v12, v14, vcc
v_lshlrev_b32 v1, 4, v0
buffer_load_dword v13, v12, s[{SWS}:{SWS+3}], s35 offen sc1""")
    issue(9)
    e("s_waitcnt vmcnt(10)\ns_barrier")
    e(f"""s_mov_b32 s86, s84
s_mul_i32 s87, s86, 20480
s_mul_i32 s84, s{sCB}, 94
s_add_u32 s84, s84, s85
s_mul_i32 s84, s84, 5120
s_add_u32 s84, s84, {WF_OFF}
s_cmp_ge_u32 s86, 2
s_cselect_b32 s89, 13, 14""")
    rot_setup(e, 89, False)
    ld_w, ld_a, queue = gen_p2_stream(e, 'x', 14)
    e(f"""v_cmp_ne_u32 vcc, s{sNONCE}, v13
s_nop 1
s_and_b32 s80, vcc_lo, 0x03ff3fff
s_cbranch_scc1 L_LD_wlate""")
    if opt.gw2:
        w_gathers(e)
    if opt.gw2 != 2:
        ld_w(0); ld_w(1)
    e(f"s_waitcnt vmcnt({(0 if opt.gw2 == 2 else 10) + (3 if opt.gw2 else 0)})\ns_barrier")
    for s_ in range(0 if opt.gw2 == 2 else 2, NW): ld_w(s_)
    e("s_branch L_LD_wdone\nL_LD_wlate:\ns_waitcnt vmcnt(0)\ns_barrier")
    poll_flags(e, 'FW', 12, 13, 35, 0x03ff3fff)
    for s_ in range(NW): ld_w(s_)
    e("L_LD_wdone:")
    stamp(e, 1, 14)
    gen_gate_loads(e, 86)
    ffn_acc_loads(e)
    if opt.gearly:
        e("s_mov_b32 s88, s84\ns_mov_b32 s84, s86\ns_waitcnt vmcnt(0)")
        gen_gate_compute(e)
        e("s_mov_b32 s84, s88")
        ffn_acc_init(e)
    lds_wait_ge(e, 'R', 24, 4, 10)
    if opt.wdelay or opt.udelay:
        if not opt.udelay: e(f"s_cmp_eq_u32 s{sISU}, 1\ns_cbranch_scc1 L_LD_nodelay")
        if not opt.wdelay: e(f"s_cmp_eq_u32 s{sISU}, 0\ns_cbranch_scc1 L_LD_nodelay")
        lds_wait_ge(e, 'W', 16, 4, 10)
        e("L_LD_nodelay:")
    stamp(e, 7, 14)
    w_lds(e, NLF, 87, throttle=('A' if opt.thr >= 0 else None))
    lds_count(e, 28, 10)
    if opt.sshelp:
        e(f"s_cmp_eq_u32 s{sISU}, 1\ns_cbranch_scc0 L_NOHELP")
        e(f"""s_mul_i32 s80, s86, 10
s_add_u32 s80, s80, {54 + NW}
s_mul_i32 s81, s{sCB}, 94
s_add_u32 s80, s80, s81
s_mul_i32 s80, s80, 5120
s_add_u32 s80, s80, {WF_OFF}
s_mul_i32 s81, s86, 15360
s_add_u32 s81, s81, {LDS_Y}""")
        for i in range(NLS):
            if opt.thr >= 0: e(f"s_waitcnt vmcnt({opt.thr})")
            for dt in range(5):
                e(f"""s_add_u32 m0, s81, {i*5120 + dt*1024}
buffer_load_dwordx4 v1, s[{SWS}:{SWS+3}], s80 offen sc1 lds
s_add_u32 s80, s80, 1024""")
        e("L_NOHELP:")
    stamp(e, 2, 14)

NLF, NLS = 4, 3
def w_prefetch(e, nsteps, NL, lds_base_sgpr, do_lds=True, rng=None):
    nsh = 8 if opt.map2 == 1 else 4
    per = -(-nsteps * 40 // nsh)
    if opt.gw: l2_prefetch(e, 84, nsteps * 40, nsh, f"s{sRB2}", nsh - 1, -(-per // 64))
    ld_w, ld_a, queue = gen_p2_stream(e, 'x', nsteps)
    for s_ in (range(NW) if rng is None else rng): ld_w(s_)
    if do_lds: w_lds(e, NL, lds_base_sgpr)

def w_gathers(e):
    nsh = 8 if opt.map2 == 1 else 4
    l2_prefetch(e, 84, 14 * 40, nsh, f"s{sRB2}", nsh - 1, 2 if nsh == 8 else 2)
    e(f"""s_mul_i32 s88, s86, 10
s_add_u32 s88, s88, 54
s_mul_i32 s81, s{sCB}, 94
s_add_u32 s88, s88, s81
s_mul_i32 s88, s88, 5120
s_add_u32 s88, s88, {WF_OFF}""")
    l2_prefetch(e, 88, 10 * 40, nsh, f"s{sRB2}", nsh - 1, 1)

def w_lds(e, NL, lds_base_sgpr, queue=None, throttle=None):
    for i in range(NL):
        if throttle is not None:
            e(f"s_cmp_eq_u32 s{sISU}, 1\ns_cbranch_scc0 L_thr_{throttle}{i}\ns_waitcnt vmcnt({opt.thr})\nL_thr_{throttle}{i}:")
        for dt in range(5):
            e(f"""s_add_u32 m0, s{lds_base_sgpr}, {i*5120 + dt*1024}
buffer_load_dwordx4 v1, s[{SWS}:{SWS+3}], s84 offen sc1 lds
s_add_u32 s84, s84, 1024""")
            if queue is not None: queue.append(('l', NW + i))
        wrap_w(e)

def ffn_w_prefetch(e):
    e(f"""s_mov_b32 s86, s84
s_mul_i32 s87, s86, 20480
s_mul_i32 s84, s{sCB}, 94
s_add_u32 s84, s84, s85
s_mul_i32 s84, s84, 5120
s_add_u32 s84, s84, {WF_OFF}
s_cmp_ge_u32 s86, 2
s_cselect_b32 s89, 13, 14""")
    rot_setup(e, 89, False)
    w_prefetch(e, 14, NLF, 87, do_lds=not opt.ldslate)
    if opt.sshelp:
        e(f"""s_cmp_eq_u32 s{sISU}, 1
s_cbranch_scc0 L_NOHELP
s_mul_i32 s80, s86, 10
s_add_u32 s80, s80, 54
s_lshl_b32 s80, s80, 2
s_lshl_b32 s81, s{sCB}, 9
s_add_u32 s80, s80, s81
s_add_u32 s88, s80, {WFLAG_OFF}
v_lshlrev_b32 v12, 2, v0""")
        poll_flags(e, 'HW', 12, 13, 88, 0x3ff)
        e(f"""s_mul_i32 s80, s86, 10
s_add_u32 s80, s80, {54 + NW}
s_mul_i32 s81, s{sCB}, 94
s_add_u32 s80, s80, s81
s_mul_i32 s80, s80, 5120
s_add_u32 s80, s80, {WF_OFF}
s_mul_i32 s81, s86, 15360
s_add_u32 s81, s81, {LDS_Y}""")
        for i in range(NLS):
            for dt in range(5):
                e(f"""s_add_u32 m0, s81, {i*5120 + dt*1024}
buffer_load_dwordx4 v1, s[{SWS}:{SWS+3}], s80 offen sc1 lds
s_add_u32 s80, s80, 1024""")
        e("L_NOHELP:")

def l2_prefetch(e, sbase, nlines, nshare, share_sgpr, share_mask, ninstr, vtmp=12, vdst=15):
    per = -(-nlines // nshare)
    e(f"""s_and_b32 s80, {share_sgpr}, {share_mask}
s_mul_i32 s80, s80, {per*128}
s_add_u32 s80, s80, s{sbase}
v_lshlrev_b32 v{vtmp}, 7, v0""")
    for i in range(ninstr):
        if i * 64 < per and per - i * 64 < 64:
            e(f"v_min_u32 v{vtmp}, {(per - i*64 - 1)*128}, v{vtmp}")
        e(f"buffer_load_dword v{vdst}, v{vtmp}, s[{SWS}:{SWS+3}], s80 offen sc1")
        if i * 64 + 64 < per: e(f"s_add_u32 s80, s80, 8192")

def gen_gather_setup(e, W=84, T='', start=1):
    e(f"""s_lshr_b32 s80, s2, 3
s_and_b32 s81, s80, 7
s_lshr_b32 s80, s80, 3
v_mov_b32 v17, 0x10000000
s_mov_b32 s{sGo}, {128*start}
s_mov_b32 s{sGinc}, 128
s_mov_b32 s{SG}, s{SX}
s_mov_b32 s{SG+1}, s{SX+1}
s_mov_b32 s{SG+2}, 2621440
s_mov_b32 s{SG+3}, 0x20000
s_cmp_eq_u32 s{W}, 0
s_cbranch_scc0 L_GS_1{T}
s_lshl_b32 s80, s80, 5
s_lshl_b32 s82, s{sRB}, 7
s_add_u32 s80, s80, s82
v_add_u32 v16, s80, v0
v_mul_u32_u24 v16, 1280, v16
v_cmp_gt_u32 vcc, 32, v0
v_cndmask_b32 v17, v17, v16, vcc
s_branch L_GS_done{T}
L_GS_1{T}:
s_cmp_ge_u32 s{W}, 3
s_cbranch_scc1 L_GS_done{T}
s_cmp_eq_u32 s{sISU}, 1
s_cbranch_scc1 L_GS_U{T}
s_cmp_eq_u32 s{W}, 1
s_cbranch_scc0 L_GS_done{T}
s_mov_b32 s{SG}, s{P_W1}
s_mov_b32 s{SG+1}, s{P_W1+1}
s_mov_b32 s{SG+2}, 2211840
s_mul_i32 s{sGo}, s{sJ}, 384
s_add_u32 s{sGo}, s{sGo}, {64*3456*start}
s_mov_b32 s{sGinc}, {64*3456}
v_mul_u32_u24 v16, 43, v0
v_lshrrev_b32 v16, 7, v16
v_mul_u32_u24 v15, 3, v16
v_sub_u32 v15, v0, v15
s_lshl_b32 s81, s81, 3
v_add_u32 v16, s81, v16
v_mul_u32_u24 v16, 3456, v16
v_lshlrev_b32 v15, 7, v15
v_add_u32 v16, v16, v15
v_cmp_gt_u32 vcc, 24, v0
v_cndmask_b32 v17, v17, v16, vcc
s_branch L_GS_done{T}
L_GS_U{T}:
s_cmp_eq_u32 s{W}, 1
s_cselect_b32 s{SG}, s{P_BRE}, s{P_BIM}
s_cselect_b32 s{SG+1}, s{P_BRE+1}, s{P_BIM+1}
s_mov_b32 s{SG+2}, 819200
s_mul_i32 s80, s{sJ}, 96
s_mul_i32 s81, s81, 12
s_add_u32 s80, s80, s81
v_add_u32 v16, s80, v0
v_min_u32 v16, 639, v16
v_mul_u32_u24 v16, 1280, v16
v_cmp_gt_u32 vcc, 12, v0
v_cndmask_b32 v17, v17, v16, vcc
L_GS_done{T}:""")
    if not opt.gloop: e("v_mov_b32 v17, 0x10000000")

def gen_unit_ids(e, W):
    e(f"""s_cmp_ge_u32 s2, 108
s_cbranch_scc1 L_UID_C
s_lshr_b32 s3, s2, 1
s_and_b32 s35, s2, 1
s_lshl_b32 s35, s35, 2
s_add_u32 s35, s35, s{W}
s_branch L_UID_done
L_UID_C:
s_sub_u32 s80, s2, 108
s_and_b32 s35, s80, 7
s_lshr_b32 s80, s80, 3
s_lshl_b32 s3, s80, 2
s_add_u32 s3, s3, s{W}
s_add_u32 s3, s3, 54
L_UID_done:""")

def gen_prep_gather(e, W=84):
    e(f"""s_cmp_ge_u32 s3, 54
s_cbranch_scc1 L_PG_C""")
    srd(e, STA, P_W2, 2211840)
    e(f"""v_mul_u32_u24 v10, 52, v0
v_lshrrev_b32 v10, 8, v10
v_mul_u32_u24 v11, 5, v10
v_sub_u32 v11, v0, v11
s_lshl_b32 s80, s{W}, 3
v_add_u32 v10, s80, v10
v_mul_u32_u24 v10, 1280, v10
v_lshlrev_b32 v11, 7, v11
v_add_u32 v10, v10, v11
v_mov_b32 v11, 0x10000000
v_cmp_gt_u32 vcc, 40, v0
v_cndmask_b32 v10, v11, v10, vcc
s_mul_i32 s80, s3, {32*1280}
s_and_b32 s81, s2, 1
s_mul_i32 s81, s81, 640
s_add_u32 s80, s80, s81
buffer_load_dword v18, v10, s[{STA}:{STA+3}], s80 offen
buffer_load_dword v18, v11, s[{STA}:{STA+3}], s80 offen
s_branch L_PG_done
L_PG_C:""")
    srd(e, STA, P_CRE, 819200)
    srd(e, STB, P_CIM, 819200)
    e(f"""s_mul_i32 s81, s35, 80
s_mul_i32 s80, s{W}, 20
s_add_u32 s81, s81, s80
v_add_u32 v10, s81, v0
v_mul_u32_u24 v10, 1280, v10
v_mov_b32 v11, 0x10000000
v_cmp_gt_u32 vcc, 20, v0
v_cndmask_b32 v10, v11, v10, vcc
s_sub_u32 s80, s3, 54
s_lshr_b32 s80, s80, 2
s_min_u32 s80, s80, 9
s_lshl_b32 s80, s80, 7
buffer_load_dword v18, v10, s[{STA}:{STA+3}], s80 offen
buffer_load_dword v18, v10, s[{STB}:{STB+3}], s80 offen
L_PG_done:""")

def gen_lambda_table(e, part):
    L1, L2, L4, L8, L16, L32, L48, L64, L128, L256, L512, L1024, C2 = 30, 32, 34, 36, 38, 40, 42, 44, 46, 48, 50, 52, 54
    if part == 0:
        e(f"""v_lshlrev_b32 v20, 16, v20
v_lshlrev_b32 v21, 16, v21
v_lshlrev_b32 v22, 16, v22
v_mul_f32 v23, 0x3fb8aa3b, v22
v_exp_f32 v23, v23
s_nop 0
v_cvt_pk_bf16_f32 v23, v23, v23
v_and_b32 v23, 0xffff0000, v23
v_mul_f32 v24, v23, v20
v_mul_f32 v25, v23, v21
v_mul_f32 v24, 0x3fb8aa3b, v24
v_exp_f32 v24, v24
v_mul_f32 v25, 0.15915494, v25
v_fract_f32 v25, v25
v_sin_f32 v26, v25
v_cos_f32 v27, v25
s_nop 0
v_mul_f32 v31, v24, v26
v_mul_f32 v30, v24, v27""")
        csq(e, L2, L1); csq(e, L4, L2); csq(e, L8, L4); csq(e, L16, L8); csq(e, L32, L16)
        cmul(e, L48, L32, L16, None)
        csq(e, L64, L32); csq(e, L128, L64)
        return
    csq(e, L256, L128); csq(e, L512, L256); csq(e, L1024, L512)
    e(f"""v_add_f32 v56, -1.0, v30
v_mul_f32 v57, v20, v20
v_fma_f32 v57, v21, v21, v57
v_rcp_f32 v57, v57
v_mul_f32 v58, v56, v20
v_fma_f32 v58, v31, v21, v58
v_mul_f32 v59, v31, v20
v_fma_f32 v59, -v56, v21, v59
v_add_f32 v57, v57, v57
v_mul_f32 v{C2}, v58, v57
v_mul_f32 v{C2+1}, v59, v57
v_mov_b32 v60, 1.0
v_mov_b32 v61, 0""")
    ents = [L1, L8, 60, L16, L32, L48, L64, L128, L512, L1024, C2]
    for i, r in enumerate(ents):
        e(f"ds_write_b64 v62, v[{r}:{r+1}] offset:{i*768}")
    e("s_waitcnt lgkmcnt(0)")

ACC = 64
SETA, SETB = 160, 200
def acc_ffn(ft, tt): return ACC + (ft * 4 + tt) * 4
def acc_u(i, tp): return ACC + (i * 6 + tp) * 4

def reads(kind, st, ks):
    L = []
    vX = 2 + ks
    if kind == 'F':
        xs = [f"ds_read_b128 {R(st + 4*t)}, v{vX} offset:{t*2048}" for t in range(4)]
        ws = []
        for ft in range(6):
            for h in range(2):
                ws.append(f"ds_read_b64_tr_b16 v[{st+16+4*ft+2*h}:{st+16+4*ft+2*h+1}], v{4+ft} offset:{ks*12288 + h*1536}")
        L = ws[:2] + xs + ws[2:]
    else:
        vW = 4 + ks
        xs = [f"ds_read_b128 {R(st + 4*t)}, v{vX} offset:{t*2048}" for t in range(4)]
        ws = [f"ds_read_b128 {R(st + 16 + 4*t)}, v{vW} offset:{t*2048}" for t in range(6)]
        L = [ws[0]] + xs + ws[1:]
    return L

def mfmas(kind, st, first=False):
    L = []
    for n in range(6):
        for t in range(4):
            if kind == 'F':
                d = acc_ffn(n, t)
                c = R(16 + 20 + 4*n) if first else R(d)
                L.append(f"v_mfma_f32_16x16x32_bf16 {R(d)}, {R(st+16+4*n)}, {R(st+4*t)}, {c}")
            else:
                d = acc_u(t, n)
                c = "0" if first else R(d)
                L.append(f"v_mfma_f32_16x16x32_bf16 {R(d)}, {R(st+4*t)}, {R(st+16+4*n)}, {c}")
    return L

def gen_prep_issue(e, W=84, D=116, T=''):
    NT = 'nt' if opt.pnt else ''
    e(f"""s_cmp_ge_u32 s3, 54
s_cbranch_scc1 L_PREP_C{T}""")
    srd(e, STA, P_W2, 2211840)
    e(f"""s_mul_i32 s80, s3, {32*1280}
s_mul_i32 s81, s35, 160
s_add_u32 s80, s80, s81
s_mul_i32 s81, s{W}, 5120
s_add_u32 s81, s81, {LDS_PREP}""")
    for n in range(5):
        e(f"""v_add_u32 v10, {64*n}, v0
v_mul_u32_u24 v11, 205, v10
v_lshrrev_b32 v11, 11, v11
v_mul_u32_u24 v12, 10, v11
v_sub_u32 v12, v10, v12
v_mul_u32_u24 v11, 1280, v11
v_lshlrev_b32 v12, 4, v12
v_add_u32 v11, v11, v12
s_add_u32 m0, s81, {n*1024}
buffer_load_dwordx4 v11, s[{STA}:{STA+3}], s80 offen {NT} lds""")
    e("v_mov_b32 v11, 0x10000000")
    for n in range(5):
        e(f"buffer_load_dword v{D}, v11, s[{STA}:{STA+3}], s80 offen")
    e(f"s_branch L_PREP_issued{T}")
    e(f"L_PREP_C{T}:")
    srd(e, STA, P_CRE, 819200)
    srd(e, STB, P_CIM, 819200)
    e(f"""v_and_b32 v10, 15, v0
v_mul_u32_u24 v10, 1280, v10
v_lshrrev_b32 v11, 4, v0
v_lshlrev_b32 v11, 3, v11
v_add_u32 v10, v10, v11
s_sub_u32 s80, s3, 54
s_min_u32 s80, s80, 39
s_lshl_b32 s80, s80, 5
s_mul_i32 s81, s35, {80*1280}
s_add_u32 s80, s80, s81""")
    for dt in range(5):
        e(f"buffer_load_dwordx2 v[{D+4*dt}:{D+1+4*dt}], v10, s[{STA}:{STA+3}], s80 offen {NT}")
        e(f"buffer_load_dwordx2 v[{D+2+4*dt}:{D+3+4*dt}], v10, s[{STB}:{STB+3}], s80 offen {NT}")
        if dt < 4: e(f"s_add_u32 s80, s80, {16*1280}")
    e(f"L_PREP_issued{T}:")

def gen_prep_finish(e, W=84, D=116, T=''):
    e(f"""s_cmp_ge_u32 s3, 54
s_cbranch_scc1 L_PF_store{T}
v_lshrrev_b32 v10, 4, v0
v_lshlrev_b32 v10, 2, v10
v_bfe_u32 v11, v0, 2, 2
v_add_u32 v10, v10, v11
v_mul_u32_u24 v10, 160, v10
v_and_b32 v11, 3, v0
v_lshlrev_b32 v11, 3, v11
v_add_u32 v10, v10, v11
s_mul_i32 s81, s{W}, 5120
s_add_u32 s81, s81, {LDS_PREP}
v_add_u32 v10, s81, v10""")
    for dt in range(5):
        for h in range(2):
            e(f"ds_read_b64_tr_b16 v[{D+4*dt+2*h}:{D+1+4*dt+2*h}], v10 offset:{dt*32 + h*16*160}")
    e("s_waitcnt lgkmcnt(0)")
    e(f"L_PF_store{T}:")
    e(f"""s_mul_i32 s80, s35, 94
s_add_u32 s80, s80, s3
s_mul_i32 s80, s80, 5120
s_add_u32 s80, s80, {WF_OFF}
v_lshlrev_b32 v10, 4, v0
v_mov_b32 v11, 0x10000000
s_cmp_ge_u32 s3, 94
s_cselect_b32 s81, 1, 0
v_mov_b32 v12, s81
v_cmp_eq_u32 vcc, 1, v12
v_cndmask_b32 v10, v10, v11, vcc""")
    for dt in range(5):
        if dt < 4:
            e(f"buffer_store_dwordx4 {R(D+4*dt)}, v10, s[{SWS}:{SWS+3}], s80 offen offset:{dt*1024} sc1")
        else:
            e(f"s_add_u32 s80, s80, 4096")
            e(f"buffer_store_dwordx4 {R(D+4*dt)}, v10, s[{SWS}:{SWS+3}], s80 offen sc1")

def gen_prep_flag(e):
    e(f"""s_lshl_b32 s80, s35, 9
s_lshl_b32 s81, s3, 2
s_add_u32 s80, s80, s81
s_add_u32 s80, s80, {WFLAG_OFF}
v_mov_b32 v10, s{sNONCE}
s_cmp_ge_u32 s3, 94
s_cselect_b32 s81, 0x10000000, 0
v_mov_b32 v11, s81
s_mov_b64 exec, 1
buffer_store_dword v10, v11, s[{SWS}:{SWS+3}], s80 offen sc0 sc1
s_mov_b64 exec, -1""")

def interleave2(e, A, B, per):
    bi = 0
    for i, a in enumerate(A):
        e(a)
        for _ in range(per[i] if i < len(per) else 0):
            if bi < len(B): e(B[bi]); bi += 1
    while bi < len(B):
        e(B[bi]); bi += 1

def gen_main_loop(e, kind):
    tag = kind
    naddr = [2, 3] + ([4, 5, 6, 7, 8, 9] if kind == 'F' else [4, 5])
    sIT, sDELTA, sSLOT = 86, 87, 88
    def adv_list():
        L = [f"s_add_u32 s{sSLOT}, s{sSLOT}, 1", f"s_cmp_eq_u32 s{sSLOT}, 3",
             f"s_cselect_b32 s{sDELTA}, s90, s89", f"s_cselect_b32 s{sSLOT}, 0, s{sSLOT}"]
        L += [f"v_add_u32 v{v}, s{sDELTA}, v{v}" for v in naddr]
        return L
    e(f"s_mov_b32 s{sIT}, 1\ns_mov_b32 s{sSLOT}, 0\ns_mov_b32 s89, {SLOT}\ns_mov_b32 s90, {-2*SLOT & 0xffffffff}")
    if opt.itstamps:
        e(f"s_memtime s[100:101]\ns_waitcnt lgkmcnt(0)\nv_writelane_b32 v250, s100, 10")
    e("s_waitcnt lgkmcnt(0)\ns_barrier")
    if opt.itstamps:
        e(f"s_memtime s[100:101]\ns_waitcnt lgkmcnt(0)\nv_writelane_b32 v250, s100, 0")
    for r in reads(kind, SETA, 0): e(r)
    if opt.plate: gen_prep_issue(e, sWAVE, 16, tag)
    e("s_waitcnt lgkmcnt(0)")
    rb = reads(kind, SETB, 1)
    items = rb + adv_list()
    nr = len(rb)
    def perlist(nr, nextra):
        per = [1] * 24
        rem = 24 - nr
        per = [1] * nr + [0] * rem
        k = nextra; i = nr
        while k > 0:
            per[i] += 1; k -= 1; i += 1
            if i == 24: i = max(nr, 8)
        return per
    interleave2(e, mfmas(kind, SETA, first=True), items, perlist(nr, len(items) - nr))
    e("s_waitcnt lgkmcnt(0)")
    e(f"L_ML_{tag}:")
    e("s_barrier")
    if opt.itstamps:
        e(f"s_memtime s[100:101]\ns_waitcnt lgkmcnt(0)\ns_mov_b32 m0, s{sIT}\nv_writelane_b32 v250, s100, m0")
    ra = reads(kind, SETA, 0)
    interleave2(e, mfmas(kind, SETB), ra, [1] * 24)
    if opt.plate:
        e(f"s_cmp_eq_u32 s{sIT}, {opt.pfin}\ns_cbranch_scc0 L_ML_h0_{tag}\ns_waitcnt vmcnt(0)")
        gen_prep_finish(e, sWAVE, 16, 'H' + tag)
        srd(e, STA, P_DBG, 256)
        e(f"buffer_load_dword v249, v248, s[{STA}:{STA+3}], 0 offen\nL_ML_h0_{tag}:")
    e(f"""s_cmp_eq_u32 s{sIT}, 1
s_cbranch_scc0 L_ML_h1_{tag}""")
    if not opt.plate: e(f"buffer_load_dword v249, v248, s[{STA}:{STA+3}], 0 offen")
    e(f"""L_ML_h1_{tag}:
s_cmp_eq_u32 s{sIT}, {opt.pfin + 2 if opt.plate else 4}
s_cbranch_scc0 L_ML_h2_{tag}
s_waitcnt vmcnt(0)
v_readfirstlane_b32 s{sNONCE}, v249
s_cmp_eq_u32 s{sNONCE}, 0
s_cbranch_scc0 L_ML_h2b_{tag}""")
    spin_nonce(e, 'H' + tag, 10)
    e(f"L_ML_h2b_{tag}:")
    gen_prep_flag(e)
    e(f"L_ML_h2_{tag}:")
    e("s_waitcnt lgkmcnt(0)")
    items = rb + adv_list() + [f"s_add_u32 s{sIT}, s{sIT}, 1", f"s_cmp_lt_u32 s{sIT}, 10"]
    interleave2(e, mfmas(kind, SETA), items, perlist(nr, len(items) - nr))
    e(f"""s_waitcnt lgkmcnt(0)
s_cbranch_scc1 L_ML_{tag}""")
    lds_count(e, 24, 10)
    e(f"""s_mul_i32 s87, s{sWAVE}, 10
s_add_u32 s87, s87, 54
s_lshl_b32 s89, s{sCB}, 9
s_lshl_b32 s90, s87, 2
s_add_u32 s89, s89, s90
s_add_u32 s35, s89, {WFLAG_OFF}
v_lshlrev_b32 v8, 2, v0
buffer_load_dword v1, v8, s[{SWS}:{SWS+3}], s35 offen sc1""")
    for m in mfmas(kind, SETB): e(m)
    if opt.itstamps:
        e(f"""s_memtime s[100:101]
s_waitcnt lgkmcnt(0)
v_writelane_b32 v250, s100, 11
s_lshl_b32 s98, s2, 3
s_add_u32 s98, s98, s{sWAVE}
s_lshl_b32 s98, s98, 6
s_add_u32 s98, s98, {STAMP_OFF + 0x40000}
v_lshlrev_b32 v251, 2, v0
s_mov_b64 exec, 0xffff
buffer_store_dword v250, v251, s[{SWS}:{SWS+3}], s98 offen
s_mov_b64 exec, -1""")

def tile_flag(e, tag):
    nyoung = 0
    if opt.wearly:
        ssm_w_setup(e, tag)
        nyoung = SSM_W_OPS()
    e(f"""s_waitcnt vmcnt({nyoung})
s_lshr_b32 s80, s{sWAVE}, 1
s_lshl_b32 s81, s{sRB}, 1
s_add_u32 s80, s80, s81
s_lshl_b32 s80, s80, 8
s_lshl_b32 s81, s{sCOL}, 1
s_and_b32 s82, s{sWAVE}, 1
s_add_u32 s81, s81, s82
s_lshl_b32 s82, s81, 2
s_cmp_ge_u32 s81, 18
s_cselect_b32 s81, 56, 0
s_add_u32 s80, s80, s82
s_add_u32 s80, s80, s81
s_add_u32 s80, s80, {TFLAG_OFF}
v_mov_b32 v10, s{sNONCE}
v_mov_b32 v11, 0
s_mov_b64 exec, 1
buffer_store_dword v10, v11, s[{SWS}:{SWS+3}], s80 offen sc0 sc1
s_mov_b64 exec, -1""")
    if opt.eprio: e("s_setprio 0")

def SSM_W_OPS():
    nsh = 8 if opt.map2 == 1 else 4
    ng = (-(-(-(-10 * 40 // nsh)) // 64)) if opt.gw else 0
    return NW * 5 + NLS * 5 + ng

def ssm_w_setup(e, tag, order=True, defer_lds=False):
    e(f"""s_waitcnt vmcnt({12 if order else 0})
s_mul_i32 s87, s{sWAVE}, 10
s_add_u32 s87, s87, 54
v_cmp_ne_u32 vcc, s{sNONCE}, v1
v_lshlrev_b32 v1, 4, v0
v_lshlrev_b32 v8, 2, v0
s_and_b32 s80, vcc_lo, 0x3ff
s_cbranch_scc0 L_SSM_wok{tag}""")
    poll_flags(e, 'SW' + tag, 8, 10, 35, 0x3ff)
    e(f"""L_SSM_wok{tag}:
s_mul_i32 s84, s{sCB}, 94
s_add_u32 s84, s84, s87
s_mul_i32 s84, s84, 5120
s_add_u32 s84, s84, {WF_OFF}
s_mul_i32 s85, s{sRB2}, 94
s_add_u32 s85, s85, s87
s_lshl_b32 s85, s85, 12
s_mul_i32 s88, s{sWAVE}, 15360
s_add_u32 s88, s88, {LDS_Y}
v_add_u32 v3, s88, v1""")
    rot_setup(e, 10, True)
    rot_act(e)
    if opt.sorder and order:
        e(f"s_cmp_eq_u32 s{sISU}, 1\ns_cbranch_scc1 L_SSM_noord{tag}")
        lds_wait_ge(e, 'O' + tag, 28, 4, 10)
        e(f"L_SSM_noord{tag}:")
    if opt.sprio: e(f"s_setprio {opt.sprio}")
    if opt.sshelp:
        w_prefetch(e, 10, NLS, 88, do_lds=False, rng=(range(opt.fswn) if defer_lds else None))
        if not defer_lds:
            e(f"s_cmp_eq_u32 s{sISU}, 1\ns_cbranch_scc1 L_SSM_skiplds{tag}")
            w_lds(e, NLS, 88)
            e(f"s_branch L_SSM_ldsdone{tag}\nL_SSM_skiplds{tag}:\ns_add_u32 s84, s84, {NLS*5120}\nL_SSM_ldsdone{tag}:")
    else:
        w_prefetch(e, 10, NLS, 88)

def x_addr_setup(e):
    e(f"""s_lshr_b32 s80, s{sWAVE}, 1
s_lshl_b32 s80, s80, 13
v_and_b32 v10, 15, v0
v_lshlrev_b32 v10, 7, v10
v_lshrrev_b32 v11, 4, v0
v_and_b32 v12, 7, v0
v_xor_b32 v11, v11, v12
v_lshlrev_b32 v11, 4, v11
v_add_u32 v10, v10, v11
v_add_u32 v2, s80, v10
v_xor_b32 v3, 64, v2""")

def p1_l2_prefetch(e, kind):
    e(f"""s_lshr_b32 s81, s2, 3
s_lshr_b32 s82, s81, 3
s_lshl_b32 s82, s82, 5
s_lshl_b32 s83, s{sRB}, 7
s_add_u32 s82, s82, s83
v_and_b32 v10, 31, v0
v_add_u32 v10, s82, v10
v_mul_u32_u24 v10, 1280, v10
v_lshrrev_b32 v11, 5, v0
s_lshl_b32 s83, s{sWAVE}, 1
s_add_u32 s83, s83, 2
v_add_u32 v11, s83, v11
v_lshlrev_b32 v11, 7, v11
v_add_u32 v10, v10, v11
buffer_load_dword v247, v10, s[{SX}:{SX+3}], 0 offen
s_and_b32 s81, s81, 7""")
    if kind == 'F':
        srd(e, STA, P_W1, 2211840)
        e(f"""s_lshl_b32 s83, s{sWAVE}, 6
v_add_u32 v10, s83, v0
v_mul_u32_u24 v11, 2731, v10
v_lshrrev_b32 v11, 16, v11
v_mul_u32_u24 v12, 24, v11
v_sub_u32 v12, v10, v12
v_mul_u32_u24 v13, 43, v12
v_lshrrev_b32 v13, 7, v13
v_mul_u32_u24 v10, 3, v13
v_sub_u32 v12, v12, v10
v_lshlrev_b32 v11, 6, v11
v_add_u32 v11, v11, v13
s_lshl_b32 s83, s81, 3
s_add_u32 s83, s83, 128
v_add_u32 v11, s83, v11
v_mul_u32_u24 v11, 3456, v11
v_lshlrev_b32 v12, 7, v12
v_add_u32 v11, v11, v12
s_mul_i32 s83, s{sJ}, 384
buffer_load_dword v247, v11, s[{STA}:{STA+3}], s83 offen""")
    else:
        e(f"""s_cmp_ge_u32 s{sWAVE}, 2
s_cselect_b32 s{STA}, s{P_BIM}, s{P_BRE}
s_cselect_b32 s{STA+1}, s{P_BIM+1}, s{P_BRE+1}
s_mov_b32 s{STA+2}, 819200
s_mov_b32 s{STA+3}, 0x20000
s_and_b32 s83, s{sWAVE}, 1
s_lshl_b32 s83, s83, 6
v_add_u32 v10, s83, v0
v_min_u32 v10, 95, v10
v_mul_u32_u24 v11, 171, v10
v_lshrrev_b32 v11, 11, v11
v_mul_u32_u24 v12, 12, v11
v_sub_u32 v12, v10, v12
s_mul_i32 s83, s{sJ}, 96
s_mul_i32 s82, s81, 12
s_add_u32 s83, s83, s82
v_add_u32 v12, s83, v12
v_min_u32 v12, 639, v12
v_mul_u32_u24 v12, 1280, v12
v_add_u32 v11, 2, v11
v_lshlrev_b32 v11, 7, v11
v_add_u32 v12, v12, v11
buffer_load_dword v247, v12, s[{STA}:{STA+3}], 0 offen""")

def consumer_start_loads(e, nbefore):
    gen_gather_setup(e, sWAVE, 'C', 0)
    ng = 10 if opt.gall else 3
    for _ in range(ng):
        e(f"buffer_load_dword v18, v17, s[{SG}:{SG+3}], s{sGo} offen {GNT()}\ns_add_u32 s{sGo}, s{sGo}, s{sGinc}")
    gen_unit_ids(e, sWAVE)
    if opt.gall or opt.plate == 2:
        gen_prep_gather(e, sWAVE)
    if not opt.plate: gen_prep_issue(e, sWAVE, 16)

def consumer_common_setup(e):
    srd(e, STA, P_DBG, 256)
    e("v_mov_b32 v248, 0")

def gen_consumer_ffn(e):
    e("L_CONS_F:")
    srd(e, STB, P_B1, 3456)
    e(f"""s_mul_i32 s80, s{sJ}, 384
s_and_b32 s81, s{sWAVE}, 1
s_mul_i32 s81, s81, 192
s_add_u32 s80, s80, s81
v_lshrrev_b32 v10, 4, v0
v_lshlrev_b32 v10, 3, v10""")
    for ft in range(6):
        e(f"buffer_load_dwordx2 v[{224+2*ft}:{225+2*ft}], v10, s[{STB}:{STB+3}], s80 offen offset:{32*ft}")

    x_addr_setup(e)
    e(f"""v_lshrrev_b32 v10, 4, v0
v_bfe_u32 v11, v0, 2, 2
v_lshlrev_b32 v12, 3, v10
v_add_u32 v12, v12, v11
v_mul_u32_u24 v12, 384, v12
v_bfe_u32 v13, v0, 3, 1
v_lshlrev_b32 v13, 1, v13
v_and_b32 v14, 1, v10
v_lshlrev_b32 v14, 2, v14
v_or_b32 v13, v13, v14
v_bfe_u32 v14, v0, 1, 1
s_and_b32 s81, s{sWAVE}, 1
s_mul_i32 s81, s81, 12
v_add_u32 v14, s81, v14
v_and_b32 v15, 1, v0
v_lshlrev_b32 v15, 3, v15
v_add_u32 v12, v12, v15
v_add_u32 v12, 16384, v12""")
    for ft in range(6):
        e(f"""v_add_u32 v10, {2*ft}, v14
v_xor_b32 v10, v10, v13
v_lshlrev_b32 v10, 4, v10
v_add_u32 v{4+ft}, v12, v10""")
    if opt.plate:
        e(f"s_waitcnt vmcnt(0)" if False else "s_waitcnt vmcnt(0)")
    else:
        e("s_waitcnt vmcnt(0)")
        gen_prep_finish(e, sWAVE, 16, 'F')
    consumer_common_setup(e)
    for ft in range(6):
        b = 36 + 4 * ft
        e(f"""v_lshlrev_b32 v{b}, 16, v{224+2*ft}
v_and_b32 v{b+1}, 0xffff0000, v{224+2*ft}
v_lshlrev_b32 v{b+2}, 16, v{225+2*ft}
v_and_b32 v{b+3}, 0xffff0000, v{225+2*ft}""")
    stamp(e, 0, 14)
    stamp_clk(e, 14, 14)
    dbgmax(e, 2)
    gen_main_loop(e, 'F')
    dbgmax(e, 3)
    if opt.eprio: e(f"s_setprio {opt.eprio}")
    stamp(e, 1, 14)
    stamp_clk(e, 15, 14)
    e(f"""s_lshr_b32 s80, s{sWAVE}, 1
s_lshl_b32 s81, s{sRB}, 1
s_add_u32 s80, s80, s81
s_mul_i32 s80, s80, 94
s_mul_i32 s81, s{sJ}, 6
s_add_u32 s80, s80, s81
s_and_b32 s81, s{sWAVE}, 1
s_mul_i32 s81, s81, 3
s_add_u32 s80, s80, s81
s_lshl_b32 s32, s80, 12
v_lshlrev_b32 v10, 4, v0""")
    k = 0
    OB = 196 if opt.fsw else SETA
    pend = []
    for u in range(3):
        for tt in range(4):
            o = OB + 4 * k; k += 1
            vals = [acc_ffn(2*u, tt), acc_ffn(2*u+1, tt)]
            tmp = 16 + 8 * (k & 1)
            for h, a in enumerate(vals):
                for r in range(4):
                    e(f"v_max_f32 v{tmp+4*h+r}, 0, v{a+r}")
            for h, a in enumerate(vals):
                for r in range(0, 4, 2):
                    e(f"v_pk_mul_f32 v[{a+r}:{a+r+1}], v[{a+r}:{a+r+1}], v[{tmp+4*h+r}:{tmp+4*h+r+1}]")
            for h, a in enumerate(vals):
                for r in range(0, 4, 2):
                    e(f"v_cvt_pk_bf16_f32 v{o+2*h+(r>>1)}, v{a+r}, v{a+r+1}")
            st_ = f"buffer_store_dwordx4 {R(o)}, v10, s[{SWS}:{SWS+3}], s32 offen offset:{tt*1024} sc1"
            if opt.fsw: pend.append(st_)
            else: e(st_)
        if u < 2:
            if opt.fsw: pend.append("s_add_u32 s32, s32, 4096")
            else: e("s_add_u32 s32, s32, 4096")
    if opt.fsw:
        ssm_w_setup(e, 'F', order=False, defer_lds=(opt.fsw == 2))
        e("v_lshlrev_b32 v10, 4, v0")
        for x in pend: e(x)
    lds_count(e, 16, 12)
    stamp(e, 2, 14)
    tile_flag(e, 'F')
    dbgmax(e, 4)
    stamp(e, 3, 14)
    if opt.fsw == 2:
        w_prefetch(e, 10, NLS, 88, do_lds=False, rng=range(opt.fswn, NW))
        w_lds(e, NLS, 88)
    e("s_branch L_SSM_P2b" if opt.fsw else "s_branch L_SSM_P2")

def gen_code_prefetch(e):
    e(f"""s_cmp_eq_u32 s{sWAVE}, 3
s_cbranch_scc0 L_CPF_done
s_getpc_b64 s[80:81]
L_CPF_pc:
s_sub_u32 s80, s80, L_CPF_pc-{NAME}
s_subb_u32 s81, s81, 0
s_lshr_b32 s82, s2, 3
s_lshl_b32 s82, s82, 11
v_and_b32 v10, 15, v0
v_lshlrev_b32 v10, 7, v10
v_add_u32 v10, s82, v10
v_min_u32 v10, L_CODE_END-{NAME}-4, v10
s_mov_b64 exec, 0xffff
global_load_dword v19, v10, s[80:81]
s_mov_b64 exec, -1
L_CPF_done:""")

def gen_consumer(e):
    dbgmax(e, 1)
    e(f"""v_mov_b32 v10, {LDS_FLAG}
v_mov_b32 v12, 0
v_mov_b32 v13, 0
v_mov_b32 v14, 0
v_mov_b32 v15, 0
ds_write_b128 v10, v[12:15]
ds_write_b128 v10, v[12:15] offset:16
ds_write_b128 v10, v[12:15] offset:32""")
    if opt.cpf: gen_code_prefetch(e)
    consumer_start_loads(e, 0)
    e(f"""s_cmp_eq_u32 s{sISU}, 1
s_cbranch_scc1 L_CONS_U""")
    gen_consumer_ffn(e)
    gen_consumer_u(e)

def pk(op, d, a, b, c=None, bsel=None, neg=False):
    assert bsel == 0, "op_sel hi-broadcast is unsafe next to MFMA (measured)"
    n = 3 if c is not None else 2
    sel = [0, bsel] + ([0] if c is not None else [])
    selh = [1, bsel] + ([1] if c is not None else [])
    s = f"{op} v[{d}:{d+1}], v[{a}:{a+1}], v[{b}:{b+1}]" + (f", v[{c}:{c+1}]" if c is not None else "")
    s += " op_sel:[" + ",".join(map(str, sel)) + "] op_sel_hi:[" + ",".join(map(str, selh)) + "]"
    if neg:
        ng = [0, 1] + ([0] if c is not None else [])
        s += " neg_lo:[" + ",".join(map(str, ng)) + "] neg_hi:[" + ",".join(map(str, ng)) + "]"
    return s

def gen_consumer_u(e):
    e("L_CONS_U:")
    x_addr_setup(e)
    e(f"""s_and_b32 s81, s{sWAVE}, 1
s_mul_i32 s81, s81, {96*128}
s_add_u32 s81, s81, 16384
v_add_u32 v4, s81, v10
v_xor_b32 v5, 64, v4""")
    if not opt.plate:
        e("s_waitcnt vmcnt(0)")
        gen_prep_finish(e, sWAVE, 16, 'U')
    consumer_common_setup(e)
    dbgmax(e, 2)
    stamp(e, 0, 14)
    gen_main_loop(e, 'U')
    dbgmax(e, 3)
    if opt.eprio: e(f"s_setprio {opt.eprio}")
    stamp(e, 1, 14)
    def K(ct, i): return 160 + 18 * ct + 2 * i
    LAM, L8, L16, L16Q, L64, L128, L512, L1024, C2 = range(9)
    ent = {LAM: 0, L8: 1, L16: 3, L64: 6, L128: 7, L512: 8, L1024: 9, C2: 10}
    e(f"""s_and_b32 s81, s{sWAVE}, 1
s_mul_i32 s81, s81, {48*8}
s_add_u32 s81, s81, {LDS_TAB}
v_and_b32 v10, 15, v0
v_lshlrev_b32 v10, 3, v10
v_add_u32 v10, s81, v10
v_lshrrev_b32 v11, 4, v0
v_mul_u32_u24 v11, 768, v11
v_add_u32 v11, v11, v10""")
    for ct in range(3):
        for k, en in ent.items():
            e(f"ds_read_b64 v[{K(ct,k)}:{K(ct,k)+1}], v10 offset:{en*768 + ct*128}")
        e(f"ds_read_b64 v[{K(ct,L16Q)}:{K(ct,L16Q)+1}], v11 offset:{2*768 + ct*128}")
    e("s_waitcnt lgkmcnt(0)")
    LI = [2, 252, 254]
    C2I = [16, 18, 20]
    for ct in range(3):
        e(f"v_mov_b32 v{LI[ct]}, v{K(ct, LAM)+1}")
    def U(n, ct, part):
        return acc_u(n >> 1, 2 * ct + part) + 2 * (n & 1)
    def Er(ct, s): return 16 + 8 * ct + 4 * s
    def Ei(ct, s): return 18 + 8 * ct + 4 * s
    for n in range(1, 8):
        src = (n - 1) & 1; dst = n & 1
        for ct in range(3):
            pr = U(0, ct, 0) if n == 1 else Er(ct, src)
            pi = U(0, ct, 1) if n == 1 else Ei(ct, src)
            e(pk("v_pk_fma_f32", Er(ct, dst), pr, K(ct, LAM), U(n, ct, 0), 0))
            e(pk("v_pk_fma_f32", Ei(ct, dst), pi, K(ct, LAM), U(n, ct, 1), 0))
        for ct in range(3):
            pr = U(0, ct, 0) if n == 1 else Er(ct, src)
            pi = U(0, ct, 1) if n == 1 else Ei(ct, src)
            e(pk("v_pk_fma_f32", Er(ct, dst), pi, LI[ct], Er(ct, dst), 0, neg=True))
            e(pk("v_pk_fma_f32", Ei(ct, dst), pr, LI[ct], Ei(ct, dst), 0))
    def LL(ct): return 16 + 8 * ct
    for ct in range(3):
        er, ei, l8 = Er(ct, 1), Ei(ct, 1), K(ct, L8)
        e(f"""v_fma_f32 v{LL(ct)}, v{l8}, v{er}, v{er+1}
v_fma_f32 v{LL(ct)+1}, v{l8}, v{ei}, v{ei+1}
v_fma_f32 v{LL(ct)}, -v{l8+1}, v{ei}, v{LL(ct)}
v_fma_f32 v{LL(ct)+1}, v{l8+1}, v{er}, v{LL(ct)+1}""")
    def G(ct, q): return 214 + 8 * ct + 2 * q
    for ct in range(3):
        for c in range(2):
            a, b, a2, b2 = G(ct, 0) + c, G(ct, 1) + c, G(ct, 2) + c, G(ct, 3) + c
            e(f"""v_mov_b32 v{a}, v{LL(ct)+c}
v_mov_b32 v{b}, v{LL(ct)+c}
v_permlane16_swap_b32 v{a}, v{b}
v_mov_b32 v{a2}, v{a}
v_mov_b32 v{b2}, v{b}
v_permlane32_swap_b32 v{a}, v{a2}
v_permlane32_swap_b32 v{b}, v{b2}""")
    for ct in range(3):
        cfma(e, G(ct, 1), K(ct, L16), G(ct, 0), G(ct, 1))
    for ct in range(3):
        cfma(e, G(ct, 2), K(ct, L16), G(ct, 1), G(ct, 2))
    for ct in range(3):
        cfma(e, G(ct, 3), K(ct, L16), G(ct, 2), G(ct, 3))
    e(f"""s_mov_b32 s80, 0xffff0000
s_mov_b32 s81, 0
s_mov_b32 s82, 0
s_mov_b32 s83, 0x0000ffff
s_mov_b32 s90, 0
s_mov_b32 s91, 0xffff0000""")
    for ct in range(3):
        for c in range(2):
            e(f"""v_cndmask_b32 v{LL(ct)+c}, 0, v{G(ct,0)+c}, s[80:81]
v_cndmask_b32 v{LL(ct)+c}, v{LL(ct)+c}, v{G(ct,1)+c}, s[82:83]
v_cndmask_b32 v{LL(ct)+c}, v{LL(ct)+c}, v{G(ct,2)+c}, s[90:91]""")
    e(f"""s_and_b32 s84, s{sWAVE}, 1
s_mul_i32 s85, s84, {48*8}
s_add_u32 s85, s85, {LDS_LX}
v_and_b32 v10, 15, v0
v_lshlrev_b32 v10, 3, v10
v_add_u32 v10, s85, v10
s_lshl_b32 s85, s84, 2
s_add_u32 s85, s85, {LDS_FLAG}
v_mov_b32 v11, s85
s_cmp_ge_u32 s{sWAVE}, 2
s_cbranch_scc1 L_U_wt1""")
    for ct in range(3):
        e(f"ds_write_b64 v10, v[{G(ct,3)}:{G(ct,3)+1}] offset:{ct*128}")
    e(f"""v_mov_b32 v12, 1
s_waitcnt lgkmcnt(0)
ds_write_b32 v11, v12
s_branch L_U_lb
L_U_wt1:
s_mov_b32 s85, 0
L_U_pairwait:
ds_read_b32 v12, v11
s_add_u32 s85, s85, 1
s_waitcnt lgkmcnt(0)
v_readfirstlane_b32 s86, v12
s_cmp_ge_u32 s85, {opt.spin_limit}
s_cbranch_scc1 L_U_pairok
s_cmp_eq_u32 s86, 0
s_cbranch_scc1 L_U_pairwait
L_U_pairok:""")
    for ct in range(3):
        e(f"ds_read_b64 v[{G(ct,0)}:{G(ct,0)+1}], v10 offset:{ct*128}")
    e("s_waitcnt lgkmcnt(0)")
    for ct in range(3):
        cfma(e, G(ct, 1), K(ct, L64), G(ct, 0), G(ct, 3))
    e(f"""s_mov_b32 s80, 0xffff0000
s_mov_b32 s81, 0
s_mov_b32 s82, 0
s_mov_b32 s83, 0x0000ffff
v_cndmask_b32 v240, v{G(0,1)}, v{G(1,1)}, s[80:81]
v_cndmask_b32 v241, v{G(0,1)+1}, v{G(1,1)+1}, s[80:81]
v_cndmask_b32 v240, v240, v{G(2,1)}, s[82:83]
v_cndmask_b32 v241, v241, v{G(2,1)+1}, s[82:83]
v_mov_b32 v242, s{sNONCE}
v_mov_b32 v243, s{sNONCE}
s_mul_i32 s85, s{sJ}, 16
s_add_u32 s85, s85, s{sRB}
s_mul_i32 s85, s85, 96
s_mul_i32 s86, s84, 48
s_add_u32 s85, s85, s86
s_lshl_b32 s85, s85, 4
s_add_u32 s85, s85, {AG_OFF}
v_lshlrev_b32 v12, 4, v0
s_mov_b32 exec_lo, -1
s_mov_b32 exec_hi, 0x0000ffff
buffer_store_dwordx4 v[240:243], v12, s[{SWS}:{SWS+3}], s85 offen sc0 sc1
s_mov_b64 exec, -1
L_U_lb:""")
    if not opt.udelay: lds_count(e, 16, 12)
    stamp(e, 2, 14)
    LB = 112 + 0
    lbregs = [40 + 4 * i for i in range(6)] + [240 + 4 * i for i in range(4)] + [32 + 0, 36]
    lbregs = [40 + 4 * i for i in range(6)] + [240, 244, 248] + [216, 224, 232]
    e(f"""s_mul_i32 s85, s{sJ}, {16*96}
s_mul_i32 s86, s84, 48
s_add_u32 s85, s85, s86
s_lshl_b32 s85, s85, 4
s_add_u32 s85, s85, {AG_OFF}
v_lshrrev_b32 v12, 4, v0
v_lshlrev_b32 v12, 2, v12
v_sub_u32 v12, s{sRB}, v12
v_mov_b32 v9, 0x10000000
v_and_b32 v13, 15, v0""")
    for m in range(4):
        e(f"""v_subrev_u32 v14, {1+m}, v12
v_cmp_le_i32 s[{88+2*m}:{89+2*m}], 0, v14
v_mul_u32_u24 v15, 96, v14
v_add_u32 v15, v15, v13
v_lshlrev_b32 v15, 4, v15
v_cndmask_b32 v{4+m}, v9, v15, s[{88+2*m}:{89+2*m}]""")
    C2J = [8, 10, 238]
    for ct in range(3):
        e(f"v_mov_b32 v{C2J[ct]}, v{K(ct, C2)+1}")
    tk = 0
    for n in range(8):
        for ct in range(3):
            ur, ui = U(n, ct, 0), U(n, ct, 1)
            ta, tb = 40 + 4 * (tk % 6), 42 + 4 * (tk % 6); tk += 1
            e(pk("v_pk_mul_f32", ta, ur, K(ct, C2), None, 0))
            e(pk("v_pk_mul_f32", tb, ur, C2J[ct], None, 0))
            e(pk("v_pk_fma_f32", ur, ui, C2J[ct], ta, 0, neg=True))
            e(pk("v_pk_fma_f32", ui, ui, K(ct, C2), tb, 0))
    CR = list(range(38, 52)) + [54]
    for k in range(15):
        e(f"s_mov_b32 s{CR[k]}, s{sNONCE}")
    e(f"""s_add_u32 s87, s85, {47*16 + 8}
s_mov_b32 s86, 0
L_U_cp:""")
    for k in range(15):
        e(f"""s_cmp_gt_u32 s{sRB}, {k}
s_cbranch_scc0 L_U_cpl
s_load_dword s{CR[k]}, s[{P_WS}:{P_WS+1}], s87 offset:{k*1536} glc""")
    e(f"""L_U_cpl:
s_add_u32 s86, s86, 1
s_waitcnt lgkmcnt(0)
s_mov_b32 s81, 0""")
    for k in range(15):
        e(f"s_xor_b32 s82, s{CR[k]}, s{sNONCE}\ns_or_b32 s81, s81, s82")
    e(f"""s_cmp_ge_u32 s86, {opt.spin_limit}
s_cbranch_scc1 L_U_cpok
s_cmp_eq_u32 s81, 0
s_cbranch_scc1 L_U_cpok
s_sleep 1
s_branch L_U_cp
L_U_cpok:""")
    stamp(e, 11, 14)
    e(f"s_mov_b32 s86, 0\nL_U_lbloop:")
    for m in range(4):
        for ct in range(3):
            r = lbregs[m * 3 + ct]
            e(f"buffer_load_dwordx4 {R(r)}, v{4+m}, s[{SWS}:{SWS+3}], s85 offen offset:{ct*256} sc1")
    e("s_add_u32 s86, s86, 1\ns_mov_b64 s[96:97], 0\ns_waitcnt vmcnt(0)")
    for m in range(4):
        for ct in range(3):
            r = lbregs[m * 3 + ct]
            e(f"""v_cmp_ne_u32 vcc, s{sNONCE}, v{r+2}
s_and_b64 vcc, vcc, s[{88+2*m}:{89+2*m}]
s_or_b64 s[96:97], s[96:97], vcc""")
    e(f"""s_cmp_ge_u32 s86, {opt.spin_limit}
s_cbranch_scc1 L_U_lbok
s_cmp_eq_u64 s[96:97], 0
s_cbranch_scc0 L_U_lbloop
L_U_lbok:""")
    if opt.udelay: lds_count(e, 16, 12)
    def S(m, ct): return lbregs[m * 3 + ct]
    for ct in range(3):
        cfma(e, S(2, ct), K(ct, L128), S(3, ct), S(2, ct))
    for ct in range(3):
        cfma(e, S(1, ct), K(ct, L128), S(2, ct), S(1, ct))
    for ct in range(3):
        cfma(e, S(0, ct), K(ct, L128), S(1, ct), S(0, ct))
    for ct in range(3):
        z, b, t, u = S(0, ct), S(1, ct), S(2, ct), S(3, ct)
        e(f"""v_mov_b32 v{b}, v{z}
v_mov_b32 v{b+1}, v{z+1}
v_permlane16_swap_b32 v{z}, v{b}
v_permlane16_swap_b32 v{z+1}, v{b+1}""")
        cfma(e, t, K(ct, L512), b, z)
        e(f"""v_mov_b32 v{u}, v{t}
v_mov_b32 v{u+1}, v{t+1}
v_permlane32_swap_b32 v{t}, v{u}
v_permlane32_swap_b32 v{t+1}, v{u+1}""")
        cfma(e, z, K(ct, L1024), u, t)
    e(f"s_cmp_ge_u32 s{sWAVE}, 2\ns_cbranch_scc0 L_U_hw0")
    for ct in range(3):
        cfma(e, S(1, ct), K(ct, L64), S(0, ct), G(ct, 0))
    e("s_branch L_U_hw1\nL_U_hw0:")
    for ct in range(3):
        e(f"v_mov_b32 v{S(1,ct)}, v{S(0,ct)}\nv_mov_b32 v{S(1,ct)+1}, v{S(0,ct)+1}")
    e("L_U_hw1:\ns_nop 1")
    for ct in range(3):
        cfma(e, S(2, ct), K(ct, L16Q), S(1, ct), LL(ct))
    for ct in range(3):
        hl, l8, er, ei = S(2, ct), K(ct, L8), Er(ct, 1), Ei(ct, 1)
        cr, ci = S(3, ct), S(3, ct) + 2
        e(f"""v_mov_b32 v{cr}, v{hl}
v_mov_b32 v{ci}, v{hl+1}
v_fma_f32 v{cr+1}, v{l8}, v{hl}, v{er}
v_fma_f32 v{ci+1}, v{l8}, v{hl+1}, v{ei}
v_fma_f32 v{cr+1}, -v{l8+1}, v{hl+1}, v{cr+1}
v_fma_f32 v{ci+1}, v{l8+1}, v{hl}, v{ci+1}""")
    for ct in range(3):
        cr, ci = S(3, ct), S(3, ct) + 2
        ta, tb = S(1, ct), S(1, ct) + 2
        e(pk("v_pk_mul_f32", ta, cr, K(ct, C2), None, 0))
        e(pk("v_pk_mul_f32", tb, cr, C2J[ct], None, 0))
    for ct in range(3):
        cr, ci = S(3, ct), S(3, ct) + 2
        ta, tb = S(1, ct), S(1, ct) + 2
        e(pk("v_pk_fma_f32", cr, ci, C2J[ct], ta, 0, neg=True))
        e(pk("v_pk_fma_f32", ci, ci, K(ct, C2), tb, 0))
    for n in range(8):
        for ct in range(3):
            pr = S(3, ct) if n == 0 else U(n - 1, ct, 0)
            pi = S(3, ct) + 2 if n == 0 else U(n - 1, ct, 1)
            e(pk("v_pk_fma_f32", U(n, ct, 0), pr, K(ct, LAM), U(n, ct, 0), 0))
            e(pk("v_pk_fma_f32", U(n, ct, 1), pi, K(ct, LAM), U(n, ct, 1), 0))
        for ct in range(3):
            pr = S(3, ct) if n == 0 else U(n - 1, ct, 0)
            pi = S(3, ct) + 2 if n == 0 else U(n - 1, ct, 1)
            e(pk("v_pk_fma_f32", U(n, ct, 0), pi, LI[ct], U(n, ct, 0), 0, neg=True))
            e(pk("v_pk_fma_f32", U(n, ct, 1), pr, LI[ct], U(n, ct, 1), 0))
    stamp(e, 3, 14)
    e(f"""v_and_b32 v10, 15, v0
v_lshrrev_b32 v11, 4, v0
v_lshlrev_b32 v11, 3, v11
v_sub_u32 v10, v10, v11""")
    e("v_mov_b32 v14, 0x3f80")
    for b in range(2):
        e(f"""v_add_u32 v12, {16*b}, v10
v_and_b32 v13, 1, v12
v_lshlrev_b32 v13, 4, v13
v_lshlrev_b32 v13, v13, v14
v_lshrrev_b32 v12, 1, v12
v_cmp_eq_u32 s[86:87], 0, v12
v_cmp_eq_u32 s[88:89], 1, v12
v_cmp_eq_u32 s[90:91], 2, v12
v_cmp_eq_u32 s[92:93], 3, v12
v_cndmask_b32 v{40+4*b}, 0, v13, s[86:87]
v_cndmask_b32 v{41+4*b}, 0, v13, s[88:89]
v_cndmask_b32 v{42+4*b}, 0, v13, s[90:91]
v_cndmask_b32 v{43+4*b}, 0, v13, s[92:93]""")
    e(f"""s_lshr_b32 s80, s{sWAVE}, 1
s_lshl_b32 s81, s{sRB}, 1
s_add_u32 s80, s80, s81
s_mul_i32 s80, s80, 94
s_mul_i32 s81, s{sJ}, 6
s_mul_i32 s82, s84, 3
s_add_u32 s81, s81, s82
s_add_u32 s80, s80, s81
s_add_u32 s80, s80, 54
s_lshl_b32 s80, s80, 12
v_lshlrev_b32 v10, 4, v0""")
    for ct in range(3):
        c2 = K(ct, C2)
        for i in range(4):
            r0, r1, i0, i1 = U(2*i, ct, 0), U(2*i+1, ct, 0), U(2*i, ct, 1), U(2*i+1, ct, 1)
            e(f"""v_cvt_pk_bf16_f32 v{48+i}, v{r0}, v{r1}
v_cvt_pk_bf16_f32 v{52+i}, v{r0+1}, v{r1+1}
v_cvt_pk_bf16_f32 v{56+i}, -v{i0}, -v{i1}
v_cvt_pk_bf16_f32 v{60+i}, -v{i0+1}, -v{i1+1}""")
        def D(part, tt): return 224 + 16 * part + 4 * tt
        for part in range(2):
            for a in range(2):
                for b in range(2):
                    A = 48 + 8 * part + 4 * a
                    e(f"v_mfma_f32_16x16x32_bf16 {R(D(part, 2*b+a))}, {R(A)}, {R(40+4*b)}, 0")
        if True:
            e(f"s_add_u32 s82, s81, {ct}\ns_cmp_ge_u32 s82, 40\ns_cbranch_scc1 L_U_skip{ct}")
            for tt in range(4):
                o = acc_u(tt, 2 * ct)
                dr, di = D(0, tt), D(1, tt)
                e(f"""v_cvt_pk_bf16_f32 v{o}, v{dr}, v{dr+1}
v_cvt_pk_bf16_f32 v{o+1}, v{dr+2}, v{dr+3}
v_cvt_pk_bf16_f32 v{o+2}, v{di}, v{di+1}
v_cvt_pk_bf16_f32 v{o+3}, v{di+2}, v{di+3}
buffer_store_dwordx4 {R(o)}, v10, s[{SWS}:{SWS+3}], s80 offen offset:{tt*1024} sc1""")
            e(f"L_U_skip{ct}:\ns_nop 7\ns_add_u32 s80, s80, 4096")
    if opt.uhold: lds_count(e, 32, 12)
    stamp(e, 4, 14)
    tile_flag(e, 'U')
    dbgmax(e, 4)
    stamp(e, 5, 14)
    e("s_branch L_SSM_P2")

ACC2 = 16
WSL = 96
ASL = 196
NW, NA = 5, 3
def set_nw(nw, na):
    global NW, NA, ASL
    NW, NA = nw, na
    ASL = WSL + 20 * nw
def acc2(dt, tt): return ACC2 + (dt * 4 + tt) * 4

def wrap_w(e):
    if not opt.rot: return
    e("""s_sub_u32 s91, s91, 1
s_cmp_eq_u32 s91, 0
s_cselect_b32 s95, s93, 0
s_sub_u32 s84, s84, s95""")

def wrap_a(e):
    if not opt.rot: return
    e("""s_sub_u32 s92, s92, 1
s_cmp_eq_u32 s92, 0
s_cselect_b32 s95, s94, 0
s_sub_u32 s85, s85, s95""")

def rot_setup(e, n_sgpr_or_const, is_const):
    if not opt.rot: return
    if opt.map2 == 1:
        e(f"""s_and_b32 s95, s{sCB}, 3
s_lshl_b32 s95, s95, 1
s_add_u32 s95, s95, s{sRB2}
s_and_b32 s95, s95, 7""")
    else:
        e(f"""s_and_b32 s95, s{sRB2}, 3
s_lshl_b32 s95, s95, 1
s_add_u32 s95, s95, s{sCB}
s_and_b32 s95, s95, 7""")
    n = f"{n_sgpr_or_const}" if is_const else f"s{n_sgpr_or_const}"
    e(f"""s_mul_i32 s90, s95, {n}
s_lshr_b32 s90, s90, 3
s_sub_u32 s91, {n}, s90
s_mov_b32 s92, s91
s_mul_i32 s93, {n}, 5120
s_mul_i32 s94, {n}, 4096
s_mul_i32 s95, s90, 5120
s_add_u32 s84, s84, s95""")

def rot_act(e):
    if not opt.rot: return
    e("""s_lshl_b32 s95, s90, 12
s_add_u32 s85, s85, s95""")

def gen_p2_stream(e, tag, nsteps, extra_hook=None):
    queue = []
    SC = '' if opt.nosc1 else 'sc1'
    def ld_w(s):
        b = WSL + 20 * (s % NW)
        for dt in range(5):
            if dt < 4:
                e(f"buffer_load_dwordx4 {R(b+4*dt)}, v1, s[{SWS}:{SWS+3}], s84 offen offset:{dt*1024} {SC}")
            else:
                e(f"s_add_u32 s84, s84, 4096")
                e(f"buffer_load_dwordx4 {R(b+4*dt)}, v1, s[{SWS}:{SWS+3}], s84 offen {SC}")
                e(f"s_add_u32 s84, s84, 1024")
            queue.append(('w', s))
        wrap_w(e)
    def ld_a(s):
        b = ASL + 16 * (s % NA)
        for tt in range(4):
            e(f"buffer_load_dwordx4 {R(b+4*tt)}, v1, s[{SWS}:{SWS+3}], s85 offen offset:{tt*1024} {SC}")
            queue.append(('a', s))
        e(f"s_add_u32 s85, s85, 4096")
        wrap_a(e)
    return ld_w, ld_a, queue

def p2_role(e, tag, nsteps):
    pass

def emit_stream(e, nsteps, ld_w, ld_a, queue, NL, vL, late_lds=None, sig20=False):
    if opt.ststamps:
        e(f"s_memtime s[100:101]\ns_waitcnt lgkmcnt(0)\nv_writelane_b32 v250, s100, 0")
    for s in range(min(NA, nsteps)): ld_a(s)
    if late_lds is not None: w_lds(e, NL, late_lds, queue)
    for s in range(nsteps):
        idx = [i for i, q in enumerate(queue) if q in (('w', s), ('a', s))]
        inlds = NW <= s < NW + NL
        if idx:
            last = max(idx)
            n = len(queue) - 1 - last
            e(f"s_waitcnt vmcnt({n})" + (" lgkmcnt(0)" if inlds else ""))
            del queue[:last + 1]
        elif inlds:
            e("s_waitcnt lgkmcnt(0)")
        if sig20 and s == 0 and opt.sshelp: lds_count(e, 20, 10)
        if opt.ststamps:
            e(f"s_memtime s[100:101]\ns_waitcnt lgkmcnt(0)\nv_writelane_b32 v250, s100, {s+1}")
        wb = WSL + 20 * (s % NW); ab = ASL + 16 * (s % NA)
        for dt in range(5):
            for tt in range(4):
                d = acc2(dt, tt)
                c = R(d)
                e(f"v_mfma_f32_16x16x32_bf16 {R(d)}, {R(wb+4*dt)}, {R(ab+4*tt)}, {c}")
        if s + NA < nsteps: ld_a(s + NA)
        t = s + NW
        if t < nsteps and t >= NW + NL:
            ld_w(t)
        t = s + 2
        if NW <= t < min(NW + NL, nsteps):
            li = [i for i, q in enumerate(queue) if q == ('l', t)]
            if li:
                e(f"s_waitcnt vmcnt({len(queue) - 1 - max(li)})")
                del queue[:max(li) + 1]
            for dt in range(5):
                e(f"ds_read_b128 {R(WSL + 20*(t % NW) + 4*dt)}, v{vL} offset:{(t-NW)*5120 + dt*1024}")

def spoll_tiles(e, tag, kind, sleep=1):
    off = 0 if kind == 'F' else 128
    n = 18 if kind == 'F' else 14
    e(f"""s_lshl_b32 s89, s{sRB2}, 8
s_add_u32 s89, s89, {TFLAG_OFF + off}
s_mov_b32 s80, 0
L_sp_{tag}:""")
    if kind == 'F':
        e(f"s_load_dwordx16 s[40:55], s[{P_WS}:{P_WS+1}], s89 glc")
        e(f"s_load_dwordx2 s[56:57], s[{P_WS}:{P_WS+1}], s89 offset:64 glc")
        regs = list(range(40, 58))
    else:
        e(f"s_load_dwordx8 s[40:47], s[{P_WS}:{P_WS+1}], s89 glc")
        e(f"s_load_dwordx4 s[48:51], s[{P_WS}:{P_WS+1}], s89 offset:32 glc")
        e(f"s_load_dwordx2 s[54:55], s[{P_WS}:{P_WS+1}], s89 offset:48 glc")
        regs = list(range(40, 52)) + [54, 55]
    e("s_add_u32 s80, s80, 1\ns_waitcnt lgkmcnt(0)\ns_mov_b32 s81, 0")
    for r_ in regs:
        e(f"s_xor_b32 s82, s{r_}, s{sNONCE}\ns_or_b32 s81, s81, s82")
    e(f"""s_cmp_ge_u32 s80, {opt.spin_limit}
s_cbranch_scc1 L_sp_done_{tag}
s_cmp_eq_u32 s81, 0
s_cbranch_scc1 L_sp_done_{tag}
s_sleep {sleep}
s_branch L_sp_{tag}
L_sp_done_{tag}:""")

def ffn_acc_loads(e):
    srd(e, STA, P_B2, 1280)
    e(f"""v_lshrrev_b32 v4, 4, v0
v_lshlrev_b32 v4, 3, v4
v_mov_b32 v5, 0x10000000
s_cmp_eq_u32 s86, 0
s_cselect_b32 s80, 0, 1
v_mov_b32 v6, s80
v_cmp_eq_u32 vcc, 1, v6
v_cndmask_b32 v4, v4, v5, vcc
s_mul_i32 s81, s{sCB}, 160""")
    for dt in range(5):
        e(f"buffer_load_dwordx2 v[{244+2*dt}:{245+2*dt}], v4, s[{STA}:{STA+3}], s81 offen offset:{32*dt}")

def ffn_acc_init(e):
    for dt in range(5):
        b = acc2(dt, 0)
        e(f"""v_lshlrev_b32 v{b}, 16, v{244+2*dt}
v_and_b32 v{b+1}, 0xffff0000, v{244+2*dt}
v_lshlrev_b32 v{b+2}, 16, v{245+2*dt}
v_and_b32 v{b+3}, 0xffff0000, v{245+2*dt}""")
        for tt in range(1, 4):
            for r in range(4):
                e(f"v_mov_b32 v{acc2(dt,tt)+r}, v{b+r}")

def ssm_pre(e):
    e(f"""s_lshr_b32 s80, s{sWAVE}, 1
s_lshl_b32 s80, s80, 5
s_and_b32 s81, s{sWAVE}, 1
s_lshl_b32 s81, s81, 3
s_add_u32 s80, s80, s81
s_lshl_b32 s81, s{sRB2}, 6
s_add_u32 s80, s80, s81
v_bfe_u32 v4, v0, 3, 1
v_lshlrev_b32 v4, 4, v4
v_and_b32 v5, 7, v0
v_add_u32 v4, v4, v5
v_add_u32 v4, s80, v4
v_lshrrev_b32 v5, 4, v0
v_lshlrev_b32 v6, 3, v5
s_mul_i32 s81, s{sCB}, 160
v_mul_u32_u24 v7, 1280, v4
v_add_u32 v7, v7, v6
v_lshlrev_b32 v8, 3, v4
v_mul_u32_u24 v248, 2560, v4
v_lshlrev_b32 v5, 4, v5
v_add_u32 v248, v248, v5""")
    XR, DK = 196, 206
    srd(e, STA, P_AX, 2621440)
    for dt in range(5):
        e(f"buffer_load_dwordx2 v[{XR+2*dt}:{XR+2*dt+1}], v7, s[{STA}:{STA+3}], s81 offen offset:{32*dt}")
    srd(e, STB, P_DSK, 1280)
    for dt in range(5):
        e(f"buffer_load_dwordx2 v[{DK+2*dt}:{DK+2*dt+1}], v6, s[{STB}:{STB+3}], s81 offen offset:{32*dt}")
    e(f"""s_mov_b32 s82, {G_OFF}
buffer_load_dwordx2 v[244:245], v8, s[{SWS}:{SWS+3}], s82 offen sc1""")
    for i in range(80):
        e(f"v_mov_b32 v{ACC2+i}, 0")
    e(f"""s_waitcnt vmcnt(0)
s_mov_b32 s80, 0
L_G_chk:
v_cmp_ne_u32 vcc, s{sNONCE}, v245
s_add_u32 s80, s80, 1
s_cmp_ge_u32 s80, {opt.spin_limit}
s_cbranch_scc1 L_G_ok
s_cmp_eq_u64 vcc, 0
s_cbranch_scc1 L_G_ok
s_sleep 2
buffer_load_dwordx2 v[244:245], v8, s[{SWS}:{SWS+3}], s82 offen sc1
s_waitcnt vmcnt(0)
s_branch L_G_chk
L_G_ok:
v_sub_f32 v246, 1.0, v244
v_cvt_pk_bf16_f32 v246, v246, v246
v_and_b32 v246, 0xffff0000, v246""")
    for dt in range(5):
        T = 216 + 4 * dt
        e(f"""v_lshlrev_b32 v10, 16, v{XR+2*dt}
v_and_b32 v11, 0xffff0000, v{XR+2*dt}
v_lshlrev_b32 v12, 16, v{XR+2*dt+1}
v_and_b32 v13, 0xffff0000, v{XR+2*dt+1}
v_lshlrev_b32 v{T}, 16, v{DK+2*dt}
v_and_b32 v{T+1}, 0xffff0000, v{DK+2*dt}
v_lshlrev_b32 v{T+2}, 16, v{DK+2*dt+1}
v_and_b32 v{T+3}, 0xffff0000, v{DK+2*dt+1}
v_mul_f32 v{T}, v{T}, v10
v_mul_f32 v{T+1}, v{T+1}, v11
v_mul_f32 v{T+2}, v{T+2}, v12
v_mul_f32 v{T+3}, v{T+3}, v13""")
    for w in range(4):
        e(f"s_cmp_eq_u32 s{sWAVE}, {w}\ns_cbranch_scc0 L_PRE_{w}")
        for dt in range(5):
            for r in range(4):
                e(f"v_mov_b32 v{acc2(dt,w)+r}, v{216+4*dt+r}")
        e(f"L_PRE_{w}:")

def lds_signal(e, off, vt):
    e(f"""v_mov_b32 v{vt}, {LDS_FLAG + off}
v_mov_b32 v{vt+1}, 1
ds_write_b32 v{vt}, v{vt+1}""")

def lds_count(e, off, vt):
    e(f"""v_mov_b32 v{vt}, {LDS_FLAG + off}
v_mov_b32 v{vt+1}, 1
s_mov_b64 exec, 1
ds_add_u32 v{vt}, v{vt+1}
s_mov_b64 exec, -1""")

def lds_wait_ge(e, tag, off, n, vt):
    e(f"""v_mov_b32 v{vt}, {LDS_FLAG + off}
s_mov_b32 s80, 0
L_lwg_{tag}:
ds_read_b32 v{vt+1}, v{vt}
s_add_u32 s80, s80, 1
s_waitcnt lgkmcnt(0)
v_readfirstlane_b32 s81, v{vt+1}
s_cmp_ge_u32 s80, {opt.spin_limit * 4}
s_cbranch_scc1 L_lwg_done_{tag}
s_cmp_ge_u32 s81, {n}
s_cbranch_scc1 L_lwg_done_{tag}
s_sleep 1
s_branch L_lwg_{tag}
L_lwg_done_{tag}:""")

def lds_wait(e, tag, off, vt):
    e(f"""v_mov_b32 v{vt}, {LDS_FLAG + off}
s_mov_b32 s80, 0
L_lw_{tag}:
ds_read_b32 v{vt+1}, v{vt}
s_add_u32 s80, s80, 1
s_waitcnt lgkmcnt(0)
v_readfirstlane_b32 s81, v{vt+1}
s_cmp_ge_u32 s80, {opt.spin_limit * 4}
s_cbranch_scc1 L_lw_done_{tag}
s_cmp_eq_u32 s81, 0
s_cbranch_scc0 L_lw_done_{tag}
s_sleep 1
s_branch L_lw_{tag}
L_lw_done_{tag}:""")

def gen_p2(e):
    e("L_FFN_P2:")
    e(f"""s_mul_i32 s80, s{sRB2}, 94
s_add_u32 s85, s85, s80
s_lshl_b32 s85, s85, 12
v_add_u32 v3, s87, v1""")
    rot_act(e)
    if not opt.gearly:
        e(f"""s_mov_b32 s88, s84
s_mov_b32 s84, s86""")
        e(f"s_waitcnt vmcnt({NLF*5})")
        gen_gate_compute(e)
        e("s_mov_b32 s84, s88")
        ffn_acc_init(e)
    ld_w, ld_a, queue = gen_p2_stream(e, 'F', 14)
    stamp(e, 3, 14)
    e(f"s_cmp_eq_u32 s86, 0\ns_cbranch_scc0 L_FFN_lw")
    spoll_tiles(e, 'FT', 'F')
    lds_signal(e, 8, 10)
    e("s_branch L_FFN_go\nL_FFN_lw:")
    lds_wait(e, 'F', 8, 10)
    e("L_FFN_go:")
    if opt.uhold:
        e(f"s_cmp_eq_u32 s{sISU}, 1\ns_cbranch_scc0 L_FFN_nohold")
        lds_wait_ge(e, 'UH', 32, 4, 10)
        e("L_FFN_nohold:")
    if opt.prio: e(f"s_setprio {opt.prio}")
    stamp(e, 4, 14)
    if opt.l2pf2: l2_prefetch(e, 85, 14 * 32, 4 if opt.map2 == 1 else 8, f"s{sCB}", 3 if opt.map2 == 1 else 7, 2 if opt.map2 == 1 else 1)
    del queue[:]
    e(f"s_cmp_ge_u32 s86, 2\ns_cbranch_scc1 L_FFN_13")
    emit_stream(e, 14, ld_w, ld_a, queue, NLF, 3, 87 if opt.ldslate else None, sig20=True)
    e("s_branch L_FFN_done")
    e("L_FFN_13:")
    del queue[:]
    emit_stream(e, 13, ld_w, ld_a, queue, NLF, 3, 87 if opt.ldslate else None, sig20=True)
    e("L_FFN_done:")
    if opt.ststamps:
        e(f"""s_memtime s[100:101]
s_waitcnt lgkmcnt(0)
v_writelane_b32 v250, s100, 15
s_lshl_b32 s98, s2, 3
s_add_u32 s98, s98, s{sWAVE}
s_lshl_b32 s98, s98, 6
s_add_u32 s98, s98, {STAMP_OFF + 0x40000}
v_lshlrev_b32 v251, 2, v0
s_mov_b64 exec, 0xffff
buffer_store_dword v250, v251, s[{SWS}:{SWS+3}], s98 offen
s_mov_b64 exec, -1""")
    stamp(e, 5, 14)
    e(f"""s_mul_i32 s80, s86, 20480
v_add_u32 v2, s80, v1""")
    for tt in range(4):
        for dt in range(5):
            e(f"ds_write_b128 v2, {R(acc2(dt,tt))} offset:{LDS_F + (tt*5+dt)*1024}")
    e("s_waitcnt lgkmcnt(0)\ns_barrier")
    stamp(e, 6, 14)
    e("s_branch L_END")
    e("L_SSM_P2:")
    if not opt.wearly: ssm_w_setup(e, 'P')
    e("L_SSM_P2b:")
    ssm_pre(e)
    ld_w, ld_a, queue = gen_p2_stream(e, 'S', 10)
    stamp(e, 6, 14)
    e(f"s_cmp_eq_u32 s{sWAVE}, 0\ns_cbranch_scc0 L_SSM_lw")
    spoll_tiles(e, 'ST', 'S')
    e('s_waitcnt vmcnt(0)')
    lds_signal(e, 12, 10)
    e("s_branch L_SSM_go\nL_SSM_lw:\ns_waitcnt vmcnt(0)")
    lds_wait(e, 'S', 12, 10)
    e("L_SSM_go:")
    if opt.sshelp:
        e(f"s_cmp_eq_u32 s{sISU}, 1\ns_cbranch_scc0 L_SSM_nohw")
        lds_wait_ge(e, 'H', 20, 4, 10)
        e("L_SSM_nohw:")
    stamp(e, 7, 14)
    dbgmax(e, 5)
    if opt.l2pf2: l2_prefetch(e, 85, 10 * 32, 4 if opt.map2 == 1 else 8, f"s{sCB}", 3 if opt.map2 == 1 else 7, 2 if opt.map2 == 1 else 1)
    del queue[:]
    emit_stream(e, 10, ld_w, ld_a, queue, NLS, 3)
    if opt.ststamps:
        e(f"""s_memtime s[100:101]
s_waitcnt lgkmcnt(0)
v_writelane_b32 v250, s100, 15
s_lshl_b32 s98, s2, 3
s_add_u32 s98, s98, s{sWAVE}
s_lshl_b32 s98, s98, 6
s_add_u32 s98, s98, {STAMP_OFF + 0x40000}
v_lshlrev_b32 v251, 2, v0
s_mov_b64 exec, 0xffff
buffer_store_dword v250, v251, s[{SWS}:{SWS+3}], s98 offen
s_mov_b64 exec, -1""")
    stamp(e, 8, 14)
    dbgmax(e, 6)
    e(f"""s_mul_i32 s83, s{sWAVE}, 15360
s_add_u32 s83, s83, {LDS_Y}
v_add_u32 v7, s83, v1""")
    OWN = 130
    for w in range(4):
        e(f"s_cmp_eq_u32 s{sWAVE}, {w}\ns_cbranch_scc0 L_YW_{w}")
        sl = 0
        for tt in range(4):
            if tt == w: continue
            for dt in range(5):
                e(f"ds_write_b128 v7, {R(acc2(dt,tt))} offset:{sl * 5120 + dt * 1024}")
            sl += 1
        for dt in range(5):
            for r in range(4):
                e(f"v_mov_b32 v{OWN+4*dt+r}, v{acc2(dt,w)+r}")
        e(f"s_branch L_YW_done\nL_YW_{w}:")
    e("L_YW_done:")
    for k in range(3):
        e(f"""s_cmp_ge_u32 {k}, s{sWAVE}
s_cselect_b32 s80, {k+1}, {k}
s_cselect_b32 s81, 0, 1
s_sub_u32 s81, s{sWAVE}, s81
s_mul_i32 s80, s80, 15360
s_mul_i32 s81, s81, 5120
s_add_u32 s80, s80, s81
s_add_u32 s80, s80, {LDS_Y}
v_add_u32 v{8+k}, s80, v1""")
    e(f"""s_mul_i32 s80, s{sWAVE}, 5120
v_add_u32 v11, s80, v1
v_add_u32 v12, 40960, v11""")
    srd(e, SOUT, P_OUT, 5242880)
    e(f"s_mul_i32 s81, s{sCB}, 320")
    e("s_waitcnt lgkmcnt(0)\ns_barrier")
    stamp(e, 9, 14)
    YR, FR = 16, 150
    for dt in range(5):
        for k in range(3):
            e(f"ds_read_b128 {R(YR+20*k+4*dt)}, v{8+k} offset:{dt*1024}")
        for w2 in range(4):
            e(f"ds_read_b128 {R(FR+20*w2+4*dt)}, v{11+(w2>>1)} offset:{(w2&1)*20480 + dt*1024}")
    for dt in range(5):
        e(f"s_waitcnt lgkmcnt({min(15, 7*(4-dt))})")
        y, f = OWN + 4 * dt, FR + 4 * dt
        t1, t2 = 80 + 0, 84
        A = 96 + 4 * dt
        for r in range(0, 4, 2):
            e(f"v_pk_add_f32 v[{YR+4*dt+r}:{YR+4*dt+r+1}], v[{YR+4*dt+r}:{YR+4*dt+r+1}], v[{YR+20+4*dt+r}:{YR+20+4*dt+r+1}]")
            e(f"v_pk_add_f32 v[{y+r}:{y+r+1}], v[{y+r}:{y+r+1}], v[{YR+40+4*dt+r}:{YR+40+4*dt+r+1}]")
            e(f"v_pk_add_f32 v[{f+r}:{f+r+1}], v[{f+r}:{f+r+1}], v[{f+20+r}:{f+20+r+1}]")
            e(f"v_pk_add_f32 v[{f+40+r}:{f+40+r+1}], v[{f+40+r}:{f+40+r+1}], v[{f+60+r}:{f+60+r+1}]")
        B_ = 76 + 0
        for r in range(0, 4, 2):
            e(f"v_pk_add_f32 v[{YR+20+4*dt+r}:{YR+20+4*dt+r+1}], v[{y+r}:{y+r+1}], v[{YR+4*dt+r}:{YR+4*dt+r+1}]")
            e(f"v_pk_add_f32 v[{f+20+r}:{f+20+r+1}], v[{f+r}:{f+r+1}], v[{f+40+r}:{f+40+r+1}]")
        for r in range(0, 4, 2):
            e(f"v_pk_mul_f32 v[{YR+40+4*dt+r}:{YR+40+4*dt+r+1}], v[{YR+20+4*dt+r}:{YR+20+4*dt+r+1}], v[244:245] op_sel:[0,0] op_sel_hi:[1,0]")
        for r in range(0, 4, 2):
            e(f"v_pk_fma_f32 v[{A+r}:{A+r+1}], v[{f+20+r}:{f+20+r+1}], v[246:247], v[{YR+40+4*dt+r}:{YR+40+4*dt+r+1}] op_sel:[0,0,0] op_sel_hi:[1,0,1]")
        e(f"buffer_store_dwordx4 {R(A)}, v248, s[{SOUT}:{SOUT+3}], s81 offen offset:{dt*64} {['', 'sc1', 'nt', 'sc0 sc1'][opt.osc]}")
    stamp(e, 10, 14)
    if opt.deadline:
        e(f"""L_DL:
s_memrealtime s[100:101]
s_waitcnt lgkmcnt(0)
s_sub_u32 s98, s100, s{sNONCE}
s_cmp_lt_u32 s98, {opt.deadline}
s_cbranch_scc0 L_DL_done
s_sleep 1
s_branch L_DL
L_DL_done:""")
    if opt.dbgtime: e("s_waitcnt vmcnt(0)")
    dbgmax(e, 7)
    e("s_branch L_END")

def gen_gate_loads(e, W=84):
    srd(e, STA, P_GW, 1280)
    srd(e, STB, P_AX, 2621440)
    e(f"""v_lshlrev_b32 v12, 4, v0
v_lshlrev_b32 v13, 2, v0
s_lshl_b32 s80, s2, 3
s_lshl_b32 s81, s{W}, 1
s_add_u32 s80, s80, s81
s_mul_i32 s81, s80, 1280
s_add_u32 s82, s81, 1280
buffer_load_dwordx4 v[16:19], v12, s[{STA}:{STA+3}], 0 offen
buffer_load_dword v20, v13, s[{STA}:{STA+3}], 0 offen offset:1024
buffer_load_dwordx4 v[22:25], v12, s[{STB}:{STB+3}], s81 offen
buffer_load_dword v26, v13, s[{STB}:{STB+3}], s81 offen offset:1024
buffer_load_dwordx4 v[28:31], v12, s[{STB}:{STB+3}], s82 offen
buffer_load_dword v32, v13, s[{STB}:{STB+3}], s82 offen offset:1024""")

def gen_gate_compute(e):
    e("v_mov_b32 v40, 0\nv_mov_b32 v41, 0")
    for m in range(5):
        e(f"""v_lshlrev_b32 v36, 16, v{16+m}
v_and_b32 v37, 0xffff0000, v{16+m}""")
        for row in range(2):
            x = 22 + 6 * row + m
            e(f"""v_lshlrev_b32 v38, 16, v{x}
v_and_b32 v39, 0xffff0000, v{x}
v_mul_f32 v38, v38, v36
v_mul_f32 v39, v39, v37
v_cvt_pk_bf16_f32 v38, v38, v39
v_lshlrev_b32 v39, 16, v38
v_and_b32 v38, 0xffff0000, v38
v_add_f32 v{40+row}, v{40+row}, v39
v_add_f32 v{40+row}, v{40+row}, v38""")
    for sh in ("row_shr:1", "row_shr:2", "row_shr:4", "row_shr:8", "row_bcast:15 row_mask:0xa", "row_bcast:31 row_mask:0xc"):
        for row in range(2):
            e(f"v_add_f32 v{40+row}, v{40+row}, v{40+row} {sh}")
    e("""v_readlane_b32 s80, v40, 63
v_readlane_b32 s81, v41, 63""")
    e(f"""v_mov_b32 v42, s80
v_mov_b32 v43, s81
v_cmp_eq_u32 vcc, 1, v0
v_cndmask_b32 v42, v42, v43, vcc
v_cvt_pk_bf16_f32 v42, v42, v42
v_and_b32 v42, 0xffff0000, v42
v_mul_f32 v42, 0xbfb8aa3b, v42
v_exp_f32 v42, v42
v_add_f32 v42, 1.0, v42
v_rcp_f32 v42, v42
v_cvt_pk_bf16_f32 v42, v42, v42
v_and_b32 v42, 0xffff0000, v42
v_mov_b32 v43, s{sNONCE}
v_lshlrev_b32 v44, 3, v0
s_lshl_b32 s80, s2, 3
s_lshl_b32 s81, s84, 1
s_add_u32 s80, s80, s81
s_lshl_b32 s80, s80, 3
s_add_u32 s80, s80, {G_OFF}
s_mov_b64 exec, 3
buffer_store_dwordx2 v[42:43], v44, s[{SWS}:{SWS+3}], s80 offen sc0 sc1
s_mov_b64 exec, -1""")

def generate(path):
    e = Emitter()
    hdr = open("gated_mix__ssm_conv_s5__dense_activation_squared_relu__prompt.s.ref").read().split("\n")
    head = [l for l in hdr if l.startswith(";") and "@launch" not in l and "Override" not in l and "grid=ceil" not in l]
    txt = "\n".join(head) + f"\n; @launch grid=(256,1,1) block=(512,1,1) lds={LDS_SIZE}\n"
    txt += '.amdgcn_target "amdgcn-amd-amdhsa--gfx950"\n.text\n'
    txt += f".globl {NAME}\n.p2align 8\n.type {NAME},@function\n{NAME}:\n"
    gen_entry(e)
    gen_consumer(e)
    gen_loader(e)
    gen_p2(e)
    e("L_END:\ns_endpgm\nL_CODE_END:")
    txt += e.text()
    txt += f""".section .rodata,"a"
.p2align 6
.amdhsa_kernel {NAME}
  .amdhsa_next_free_vgpr 256
  .amdhsa_next_free_sgpr 102
  .amdhsa_accum_offset 256
  .amdhsa_group_segment_fixed_size 0
  .amdhsa_kernarg_size 144
  .amdhsa_user_sgpr_count 2
  .amdhsa_user_sgpr_kernarg_segment_ptr 1
  .amdhsa_system_sgpr_workgroup_id_x 1
.end_amdhsa_kernel
"""
    open(path, "w").write(txt)
    print("pads:", e.npad, "lines:", len(e.out))

if __name__ == "__main__":
    opt.check_g = True
    opt.nowait = 0
    opt.nodma = 0
    opt.itstamps = 0
    opt.l2pf = 0
    opt.gearly = 1
    opt.pnt = 1
    opt.gnt = 0
    opt.snt = 0
    opt.deadline = 0
    opt.plate = 0
    opt.pfin = 2
    opt.uhold = 1
    opt.gw2 = 0
    opt.thr = 0
    opt.fswn = 5
    opt.osc = 0
    opt.nosc1 = 0
    opt.nw = 5
    opt.na = 3
    opt.fsw = 2
    opt.gall = 0
    opt.udelay = 0
    opt.dbgtime = 0
    opt.sorder = 1
    opt.sshelp = 1
    opt.ststamps = 0
    opt.rot = 0
    opt.sprio = 2
    opt.eprio = 3
    opt.wearly = 0
    opt.ldslate = 0
    opt.prio = 1
    opt.cpf = 1
    opt.wdelay = 0
    opt.noprep = 0
    opt.nost = 0
    opt.map2 = 1
    opt.gw = 0
    opt.gloop = 1
    opt.ssleep = 8
    opt.l2pf2 = 0
    for a in sys.argv[2:]:
        k, v = a.split("=")
        setattr(opt, k, int(v))
    if opt.nw != 5 or opt.na != 3: set_nw(opt.nw, opt.na)
    generate(sys.argv[1])
```

```python
import sys
from emit import Emitter

NAME = "gated_mix__ssm_conv_s5__dense_activation_squared_relu__prompt_kernel"

ACT_OFF   = 0
WF_OFF    = 0xC00000
G_OFF     = 0x1000000
AG_OFF    = 0x1010000
WFLAG_OFF = 0x1040000
TFLAG_OFF = 0x1050000
STAMP_OFF = 0x1100000
SLOT = 40960
LDS_PREP = 122880
LDS_TAB  = 143360
LDS_LX   = LDS_TAB + 8448
LDS_FLAG = LDS_LX + 768
LDS_DUMMY = LDS_FLAG + 64
LDS_F    = 0
LDS_Y    = 81920
LDS_SIZE = 163840

SX, SWA, SWB, SWS, STA, STB, SOUT = 4, 8, 12, 16, 20, 24, 28
P_AX, P_LRE, P_LIM, P_BRE, P_BIM, P_CRE, P_CIM, P_LDT, P_DSK, P_BX, P_W1, P_B1, P_W2, P_B2, P_GW, P_OUT, P_DBG, P_WS = [36 + 2 * i for i in range(18)]
sWAVE, sRB, sCOL, sJ, sRB2, sCB, sNONCE, sISU = 72, 73, 74, 75, 76, 77, 78, 79
SG, sGo, sGinc = 28, 83, 85

class Opt:
    phase2 = True
    stamps = False
    spin_limit = 200000
opt = Opt()

def GNT():
    return 'nt' if opt.gnt else ''

def SNT():
    return 'nt' if opt.snt else ''

def srd(e, s, ptr, size):
    e(f"s_mov_b32 s{s}, s{ptr}\ns_mov_b32 s{s+1}, s{ptr+1}\ns_mov_b32 s{s+2}, {size}\ns_mov_b32 s{s+3}, 0x20000")

def R(b, n=4):
    return f"v[{b}:{b+n-1}]"

_stamp_id = [0]
def stamp(e, idx, tmpv=14):
    if not opt.stamps: return
    e(f"""s_memrealtime s[100:101]
s_lshl_b32 s98, s2, 3
s_add_u32 s98, s98, s{sWAVE}
s_lshl_b32 s98, s98, 6
s_add_u32 s98, s98, {STAMP_OFF + 4*idx}
s_waitcnt lgkmcnt(0)
v_mov_b32 v{tmpv}, s100
v_mov_b32 v{tmpv+1}, 0
s_mov_b64 s[96:97], exec
s_mov_b64 exec, 1
buffer_store_dword v{tmpv}, v{tmpv+1}, s[{SWS}:{SWS+3}], s98 offen
s_mov_b64 exec, s[96:97]""")

def stamp_clk(e, idx, tmpv=14):
    if not opt.stamps: return
    e(f"""s_memtime s[100:101]
s_lshl_b32 s98, s2, 3
s_add_u32 s98, s98, s{sWAVE}
s_lshl_b32 s98, s98, 6
s_add_u32 s98, s98, {STAMP_OFF + 4*idx}
s_waitcnt lgkmcnt(0)
v_mov_b32 v{tmpv}, s100
v_mov_b32 v{tmpv+1}, 0
s_mov_b64 s[96:97], exec
s_mov_b64 exec, 1
buffer_store_dword v{tmpv}, v{tmpv+1}, s[{SWS}:{SWS+3}], s98 offen
s_mov_b64 exec, s[96:97]""")

class Cap:
    def __init__(self): self.l = []
    def __call__(self, s):
        for x in s.split("\n"):
            if x.strip(): self.l.append(x.strip())

def merge(e, main_groups, aux):
    n = len(main_groups); k = 0
    per = -(-len(aux) // n) if n else 0
    for g in main_groups:
        for x in g: e(x)
        for x in aux[k:k + per]: e(x)
        k += per
    for x in aux[k:]: e(x)

_dm = [0]
def dbgmax(e, idx, neg=False, tv=14):
    if not opt.dbgtime: return
    _dm[0] += 1; n = _dm[0]
    e(f"""s_and_b32 s100, s{sWAVE}, 3
s_cmp_eq_u32 s100, 0
s_cbranch_scc0 L_dm{n}
s_cmp_eq_u32 s2, 0
s_cselect_b32 s101, {4*idx}, {4*(idx+8)}
s_cbranch_scc1 L_dmg{n}
s_cmp_eq_u32 s2, 255
s_cbranch_scc0 L_dm{n}
L_dmg{n}:
v_mov_b32 v{tv+1}, s101
s_memrealtime s[100:101]
s_mov_b32 s96, s{P_DBG}
s_mov_b32 s97, s{P_DBG+1}
s_mov_b32 s98, 256
s_mov_b32 s99, 0x20000
s_waitcnt lgkmcnt(0)
v_mov_b32 v{tv}, s100
s_mov_b64 exec, 1
buffer_store_dword v{tv}, v{tv+1}, s[96:99], 0 offen
s_mov_b64 exec, -1
L_dm{n}:""")

def interleave(e, A, B, lead=1):
    bi = 0
    for i, a in enumerate(A):
        e(a)
        if i >= lead - 1 and bi < len(B):
            e(B[bi]); bi += 1
    while bi < len(B):
        e(B[bi]); bi += 1

def spin_nonce(e, tag, vtmp):
    srd(e, STA, P_DBG, 256)
    e(f"""v_mov_b32 v{vtmp+1}, 0
s_mov_b32 s80, 0
L_nonce_{tag}:
buffer_load_dword v{vtmp}, v{vtmp+1}, s[{STA}:{STA+3}], 0 offen sc1
s_add_u32 s80, s80, 1
s_waitcnt vmcnt(0)
v_readfirstlane_b32 s{sNONCE}, v{vtmp}
s_cmp_ge_u32 s80, {opt.spin_limit}
s_cbranch_scc1 L_nonce_done_{tag}
s_cmp_eq_u32 s{sNONCE}, 0
s_cbranch_scc0 L_nonce_done_{tag}
s_sleep 1
s_branch L_nonce_{tag}
L_nonce_done_{tag}:""")

def poll_flags(e, tag, vaddr, vtmp, soff_sgpr, nlanes_mask_lo, mask_hi=0, sleep=1):
    e(f"""s_mov_b32 s80, 0
s_mov_b32 s82, {nlanes_mask_lo}
s_mov_b32 s83, {mask_hi}
L_poll_{tag}:
buffer_load_dword v{vtmp}, v{vaddr}, s[{SWS}:{SWS+3}], s{soff_sgpr} offen sc1
s_add_u32 s80, s80, 1
s_waitcnt vmcnt(0)
v_cmp_ne_u32 vcc, s{sNONCE}, v{vtmp}
s_cmp_ge_u32 s80, {opt.spin_limit}
s_cbranch_scc1 L_poll_done_{tag}
s_and_b64 vcc, vcc, s[82:83]
s_cbranch_scc0 L_poll_done_{tag}
s_sleep {sleep}
s_branch L_poll_{tag}
L_poll_done_{tag}:""")

def gen_entry(e):
    if opt.map2 == 1:
        MAP2 = f"""s_lshr_b32 s82, s80, 1
s_lshl_b32 s82, s82, 3
s_lshr_b32 s83, s81, 2
s_add_u32 s{sRB2}, s82, s83
s_and_b32 s82, s80, 1
s_lshl_b32 s82, s82, 2
s_and_b32 s83, s81, 3
s_add_u32 s{sCB}, s82, s83"""
    else:
        MAP2 = f"""s_lshl_b32 s82, s80, 2
s_and_b32 s83, s81, 3
s_add_u32 s{sRB2}, s82, s83
s_lshr_b32 s{sCB}, s81, 2"""
    e(f"""s_cmp_ge_u32 s2, 256
s_cbranch_scc1 L_END
s_load_dwordx16 s[36:51], s[0:1], 0
s_load_dwordx16 s[52:67], s[0:1], 64
s_load_dwordx4 s[68:71], s[0:1], 128
v_lshrrev_b32 v1, 6, v0
v_and_b32 v0, 63, v0
v_readfirstlane_b32 s{sWAVE}, v1
s_and_b32 s80, s2, 7
s_lshr_b32 s81, s2, 3
s_and_b32 s82, s80, 1
s_lshl_b32 s82, s82, 3
s_and_b32 s83, s81, 7
s_add_u32 s{sRB}, s82, s83
s_lshr_b32 s82, s80, 1
s_lshl_b32 s82, s82, 2
s_lshr_b32 s83, s81, 3
s_add_u32 s{sCOL}, s82, s83
{MAP2}
s_sub_u32 s82, s{sCOL}, 9
s_cmp_ge_u32 s{sCOL}, 9
s_cselect_b32 s{sISU}, 1, 0
s_cselect_b32 s{sJ}, s82, s{sCOL}
s_waitcnt lgkmcnt(0)""")
    srd(e, SWS, P_WS, 0x10000000)
    srd(e, SX, P_AX, 2621440)
    stamp(e, 12, 14)
    e(f"""s_cmp_eq_u32 s2, 0
s_cbranch_scc0 L_no_nonce
s_cmp_eq_u32 s{sWAVE}, 4
s_cbranch_scc0 L_no_nonce
s_memrealtime s[80:81]""")
    srd(e, STA, P_DBG, 256)
    e(f"""s_waitcnt lgkmcnt(0)
s_or_b32 s80, s80, 1
v_mov_b32 v2, s80
v_mov_b32 v3, 0
s_mov_b64 exec, 1
buffer_store_dword v2, v3, s[{STA}:{STA+3}], 0 offen sc0 sc1
s_mov_b64 exec, -1
L_no_nonce:
s_cmp_ge_u32 s{sWAVE}, 4
s_cbranch_scc1 L_LOADER""")

def cmul(e, d, a, b, t):
    e(f"""v_mul_f32 v{d}, v{a}, v{b}
v_mul_f32 v{d+1}, v{a}, v{b+1}
v_fma_f32 v{d}, -v{a+1}, v{b+1}, v{d}
v_fma_f32 v{d+1}, v{a+1}, v{b}, v{d+1}""")

def csq(e, d, a):
    cmul(e, d, a, a, None)

def cfma(e, d, a, b, c):
    e(f"""v_fma_f32 v{d}, v{a}, v{b}, v{c}
v_fma_f32 v{d+1}, v{a}, v{b+1}, v{c+1}
v_fma_f32 v{d}, -v{a+1}, v{b+1}, v{d}
v_fma_f32 v{d+1}, v{a+1}, v{b}, v{d+1}""")

def gen_loader(e):
    e("L_LOADER:")
    vXo = 2; vWo = 4
    sXo = 86
    sWo = 90
    sLX, sLW, sWinc = 32, 33, 34
    def issue_x(s):
        slot = (s % 3) * SLOT
        for m in range(4):
            e(f"s_add_u32 m0, s{sLX}, {slot + m*1024}")
            e(f"buffer_load_dwordx4 v{vXo}, s[{SX}:{SX+3}], s{sXo+m} offen {SNT()} lds")
            e(f"s_add_u32 s{sXo+m}, s{sXo+m}, 128")
    def issue_w(s):
        slot = (s % 3) * SLOT
        for m in range(6):
            S = SWB if (m >> 1) == 1 else SWA
            e(f"s_add_u32 m0, s{sLW}, {slot + m*1024}")
            e(f"buffer_load_dwordx4 v{vWo+m}, s[{S}:{S+3}], s{sWo+m} offen {SNT()} lds")
            e(f"s_add_u32 s{sWo+m}, s{sWo+m}, s{sWinc}")
    def issue(s):
        issue_x(s); issue_w(s)
    e(f"""s_sub_u32 s84, s{sWAVE}, 4
v_lshrrev_b32 v10, 3, v0
v_and_b32 v11, 7, v0
v_xor_b32 v11, v11, v10
v_lshlrev_b32 v11, 4, v11
s_lshl_b32 s{sLX}, s84, 12
s_mul_i32 s{sLW}, s84, 6144
s_add_u32 s{sLW}, s{sLW}, 16384
s_lshl_b32 s85, s{sRB}, 7""")
    e(f"""s_mul_i32 s80, s{sJ}, 96
s_lshl_b32 s81, s84, 5
s_add_u32 s80, s80, s81
v_and_b32 v12, 31, v0
v_add_u32 v12, s80, v12
v_min_u32 v12, 639, v12
v_lshlrev_b32 v12, 1, v12""")
    srd(e, STA, P_LRE, 1280)
    e(f"buffer_load_ushort v20, v12, s[{STA}:{STA+3}], 0 offen")
    srd(e, STB, P_LIM, 1280)
    e(f"buffer_load_ushort v21, v12, s[{STB}:{STB+3}], 0 offen")
    srd(e, STA, P_LDT, 1280)
    e(f"buffer_load_ushort v22, v12, s[{STA}:{STA+3}], 0 offen")
    e(f"""s_cmp_eq_u32 s{sISU}, 1
s_cbranch_scc1 L_LD_U""")
    e(f"""v_mul_u32_u24 v{vXo}, 1280, v10
v_add_u32 v{vXo}, v{vXo}, v11
s_lshl_b32 s80, s84, 5
s_add_u32 s80, s80, s85""")
    for m in range(4):
        e(f"s_add_u32 s81, s80, {16*(m&1) + 8*(m>>1)}\ns_mul_i32 s{sXo+m}, s81, 1280")
    issue_x(0)
    srd(e, SWA, P_W1, 2211840)
    srd(e, SWB, P_W1, 2211840)
    e(f"""s_mul_i32 s80, s84, {16*3456}
s_mul_i32 s81, s{sJ}, 384
s_add_u32 s80, s80, s81""")
    for m in range(6):
        e(f"s_mov_b32 s{sWo+m}, s80")
    e(f"s_mov_b32 s{sWinc}, {64*3456}")
    for m in range(6):
        e(f"""v_add_u32 v12, {64*m}, v0
v_mul_u32_u24 v13, 2731, v12
v_lshrrev_b32 v13, 16, v13
v_mul_u32_u24 v14, 24, v13
v_sub_u32 v14, v12, v14
v_bfe_u32 v15, v13, 1, 1
v_lshlrev_b32 v15, 1, v15
v_bfe_u32 v16, v13, 3, 1
v_lshlrev_b32 v16, 2, v16
v_or_b32 v15, v15, v16
v_xor_b32 v14, v14, v15
v_lshlrev_b32 v14, 4, v14
v_mul_u32_u24 v13, 3456, v13
v_add_u32 v{vWo+m}, v13, v14""")
    e("s_branch L_LD_GO")
    e("L_LD_U:")
    e(f"""v_lshrrev_b32 v12, 5, v0
v_lshlrev_b32 v12, 4, v12
v_bfe_u32 v13, v0, 3, 1
v_lshlrev_b32 v13, 3, v13
v_add_u32 v12, v12, v13
v_bfe_u32 v13, v0, 4, 1
v_add_u32 v12, v12, v13
v_mul_u32_u24 v{vXo}, 1280, v12
v_add_u32 v{vXo}, v{vXo}, v11
s_lshr_b32 s80, s84, 1
s_lshl_b32 s80, s80, 6
s_and_b32 s81, s84, 1
s_lshl_b32 s82, s81, 2
s_add_u32 s80, s80, s82
s_add_u32 s80, s80, s85""")
    for m in range(4):
        e(f"s_add_u32 s82, s80, {32*(m&1) + 2*(m>>1)}\ns_mul_i32 s{sXo+m}, s82, 1280")
    issue_x(0)
    e(f"""v_mul_u32_u24 v12, 1280, v10
v_add_u32 v12, v12, v11""")
    for m in range(6):
        e(f"v_mov_b32 v{vWo+m}, v12")
    e(f"""s_mul_i32 s80, s{sJ}, 96
s_lshr_b32 s82, s84, 1
s_mul_i32 s82, s82, 48
s_add_u32 s80, s80, s82
s_mul_i32 s83, s81, 3""")
    for m in range(6):
        e(f"""s_add_u32 s82, s83, {m>>1}
s_lshr_b32 s82, s82, 1
s_lshl_b32 s82, s82, 4
s_add_u32 s82, s82, s80
s_add_u32 s82, s82, {8*(m&1)}
s_min_u32 s82, s82, 632
s_mul_i32 s{sWo+m}, s82, 1280""")
    e(f"s_mov_b32 s{sWinc}, 128")
    e(f"""s_cmp_eq_u32 s81, 0
s_cselect_b32 s{SWA}, s{P_BRE}, s{P_BIM}
s_cselect_b32 s{SWA+1}, s{P_BRE+1}, s{P_BIM+1}
s_cselect_b32 s{SWB}, s{P_BIM}, s{P_BRE}
s_cselect_b32 s{SWB+1}, s{P_BIM+1}, s{P_BRE+1}
s_mov_b32 s{SWA+2}, 819200
s_mov_b32 s{SWA+3}, 0x20000
s_mov_b32 s{SWB+2}, 819200
s_mov_b32 s{SWB+3}, 0x20000""")
    e("L_LD_GO:")
    def groups(s_):
        slot = (s_ % 3) * SLOT
        G = []
        for m in range(4):
            G.append([f"s_add_u32 m0, s{sLX}, {slot + m*1024}",
                      f"buffer_load_dwordx4 v{vXo}, s[{SX}:{SX+3}], s{sXo+m} offen {SNT()} lds",
                      f"s_add_u32 s{sXo+m}, s{sXo+m}, 128"])
        for m in range(6):
            S = SWB if (m >> 1) == 1 else SWA
            G.append([f"s_add_u32 m0, s{sLW}, {slot + m*1024}",
                      f"buffer_load_dwordx4 v{vWo+m}, s[{S}:{S+3}], s{sWo+m} offen {SNT()} lds",
                      f"s_add_u32 s{sWo+m}, s{sWo+m}, s{sWinc}"])
        return G
    def gath():
        if opt.gall:
            e(f"buffer_load_dword v18, v17, s[{SWS}:{SWS+3}], 0 offen")
        else:
            e(f"buffer_load_dword v18, v17, s[{SG}:{SG+3}], s{sGo} offen {GNT()}\ns_add_u32 s{sGo}, s{sGo}, s{sGinc}")
    issue_w(0)
    if opt.gall: e("v_mov_b32 v17, 0x10000000")
    else: gen_gather_setup(e, 84, 'L', 3)
    issue(1)
    e("s_waitcnt vmcnt(10)\ns_barrier")
    issue(2); gath()
    e("s_waitcnt vmcnt(11)\ns_barrier")
    cA = Cap(); gen_lambda_table(cA, 0)
    cB = Cap(); gen_lambda_table(cB, 1)
    lam = cA.l + ['<ADDR>'] + cB.l
    nq = 4
    per_ = -(-len(lam) // nq)
    parts = [lam[i*per_:(i+1)*per_] for i in range(nq)]
    addr_code = [f"v_and_b32 v62, 31, v0", f"v_lshlrev_b32 v62, 3, v62", f"v_add_u32 v62, s96, v62"]
    def expand(L):
        out = []
        for x in L:
            if x == '<ADDR>': out += addr_code
            else: out.append(x)
        return out
    e(f"""s_lshl_b32 s80, s84, 8
s_add_u32 s80, s80, {LDS_TAB}
s_mov_b32 s81, {LDS_DUMMY}
s_cmp_eq_u32 s84, 3
s_cselect_b32 s96, s81, s80""")
    merge(e, groups(3), expand(parts[0])); gath()
    e("s_waitcnt vmcnt(12)\ns_barrier")
    merge(e, groups(4), expand(parts[1])); gath()
    for it, (st_, g_) in enumerate(((5, 1), (6, 1), (7, 1), (8, 1))):
        e("s_waitcnt vmcnt(12)\ns_barrier")
        if it < 2: merge(e, groups(st_), expand(parts[2 + it]))
        else: issue(st_)
        if g_: gath()
        if it == 1:
            srd(e, STA, P_DBG, 256)
            e(f"v_mov_b32 v12, 0\nbuffer_load_dword v99, v12, s[{STA}:{STA+3}], 0 offen")
    e("s_waitcnt vmcnt(12)\ns_barrier")
    e(f"""v_readfirstlane_b32 s{sNONCE}, v99
s_cmp_eq_u32 s{sNONCE}, 0
s_cbranch_scc0 L_LD_nonce_ok""")
    spin_nonce(e, 'L', 10)
    e("L_LD_nonce_ok:")
    e(f"""s_mul_i32 s85, s84, 14
s_cmp_eq_u32 s84, 3
s_cselect_b32 s80, 1, 0
s_sub_u32 s85, s85, s80
v_lshlrev_b32 v12, 2, v0
s_lshl_b32 s81, s{sCB}, 9
s_lshl_b32 s82, s85, 2
s_add_u32 s81, s81, s82
s_add_u32 s35, s81, {WFLAG_OFF}
s_mul_i32 s80, s84, 10
s_add_u32 s80, s80, {54 - 16}
s_sub_u32 s80, s80, s85
s_lshl_b32 s80, s80, 2
v_add_u32 v14, s80, v12
v_cmp_le_u32 vcc, 16, v0
v_cndmask_b32 v12, v12, v14, vcc
v_lshlrev_b32 v1, 4, v0
buffer_load_dword v13, v12, s[{SWS}:{SWS+3}], s35 offen sc1""")
    issue(9)
    e("s_waitcnt vmcnt(10)\ns_barrier")
    e(f"""s_mov_b32 s86, s84
s_mul_i32 s87, s86, 20480
s_mul_i32 s84, s{sCB}, 94
s_add_u32 s84, s84, s85
s_mul_i32 s84, s84, 5120
s_add_u32 s84, s84, {WF_OFF}
s_cmp_ge_u32 s86, 2
s_cselect_b32 s89, 13, 14""")
    rot_setup(e, 89, False)
    ld_w, ld_a, queue = gen_p2_stream(e, 'x', 14)
    e(f"""v_cmp_ne_u32 vcc, s{sNONCE}, v13
s_nop 1
s_and_b32 s80, vcc_lo, 0x03ff3fff
s_cbranch_scc1 L_LD_wlate""")
    if opt.gw2:
        w_gathers(e)
    if opt.gw2 != 2:
        ld_w(0); ld_w(1)
    e(f"s_waitcnt vmcnt({(0 if opt.gw2 == 2 else 10) + (3 if opt.gw2 else 0)})\ns_barrier")
    for s_ in range(0 if opt.gw2 == 2 else 2, NW): ld_w(s_)
    e("s_branch L_LD_wdone\nL_LD_wlate:\ns_waitcnt vmcnt(0)\ns_barrier")
    poll_flags(e, 'FW', 12, 13, 35, 0x03ff3fff)
    for s_ in range(NW): ld_w(s_)
    e("L_LD_wdone:")
    stamp(e, 1, 14)
    gen_gate_loads(e, 86)
    ffn_acc_loads(e)
    if opt.gearly:
        e("s_mov_b32 s88, s84\ns_mov_b32 s84, s86\ns_waitcnt vmcnt(0)")
        gen_gate_compute(e)
        e("s_mov_b32 s84, s88")
        ffn_acc_init(e)
    lds_wait_ge(e, 'R', 24, 4, 10)
    if opt.wdelay or opt.udelay:
        if not opt.udelay: e(f"s_cmp_eq_u32 s{sISU}, 1\ns_cbranch_scc1 L_LD_nodelay")
        if not opt.wdelay: e(f"s_cmp_eq_u32 s{sISU}, 0\ns_cbranch_scc1 L_LD_nodelay")
        lds_wait_ge(e, 'W', 16, 4, 10)
        e("L_LD_nodelay:")
    stamp(e, 7, 14)
    w_lds(e, NLF, 87, throttle=('A' if opt.thr >= 0 else None))
    lds_count(e, 28, 10)
    if opt.sshelp:
        e(f"s_cmp_eq_u32 s{sISU}, 1\ns_cbranch_scc0 L_NOHELP")
        e(f"""s_mul_i32 s80, s86, 10
s_add_u32 s80, s80, {54 + NW}
s_mul_i32 s81, s{sCB}, 94
s_add_u32 s80, s80, s81
s_mul_i32 s80, s80, 5120
s_add_u32 s80, s80, {WF_OFF}
s_mul_i32 s81, s86, 15360
s_add_u32 s81, s81, {LDS_Y}""")
        for i in range(NLS):
            if opt.thr >= 0: e(f"s_waitcnt vmcnt({opt.thr})")
            for dt in range(5):
                e(f"""s_add_u32 m0, s81, {i*5120 + dt*1024}
buffer_load_dwordx4 v1, s[{SWS}:{SWS+3}], s80 offen sc1 lds
s_add_u32 s80, s80, 1024""")
        e("L_NOHELP:")
    stamp(e, 2, 14)

NLF, NLS = 4, 3
def w_prefetch(e, nsteps, NL, lds_base_sgpr, do_lds=True, rng=None):
    nsh = 8 if opt.map2 == 1 else 4
    per = -(-nsteps * 40 // nsh)
    if opt.gw: l2_prefetch(e, 84, nsteps * 40, nsh, f"s{sRB2}", nsh - 1, -(-per // 64))
    ld_w, ld_a, queue = gen_p2_stream(e, 'x', nsteps)
    for s_ in (range(NW) if rng is None else rng): ld_w(s_)
    if do_lds: w_lds(e, NL, lds_base_sgpr)

def w_gathers(e):
    nsh = 8 if opt.map2 == 1 else 4
    l2_prefetch(e, 84, 14 * 40, nsh, f"s{sRB2}", nsh - 1, 2 if nsh == 8 else 2)
    e(f"""s_mul_i32 s88, s86, 10
s_add_u32 s88, s88, 54
s_mul_i32 s81, s{sCB}, 94
s_add_u32 s88, s88, s81
s_mul_i32 s88, s88, 5120
s_add_u32 s88, s88, {WF_OFF}""")
    l2_prefetch(e, 88, 10 * 40, nsh, f"s{sRB2}", nsh - 1, 1)

def w_lds(e, NL, lds_base_sgpr, queue=None, throttle=None):
    for i in range(NL):
        if throttle is not None:
            e(f"s_cmp_eq_u32 s{sISU}, 1\ns_cbranch_scc0 L_thr_{throttle}{i}\ns_waitcnt vmcnt({opt.thr})\nL_thr_{throttle}{i}:")
        for dt in range(5):
            e(f"""s_add_u32 m0, s{lds_base_sgpr}, {i*5120 + dt*1024}
buffer_load_dwordx4 v1, s[{SWS}:{SWS+3}], s84 offen sc1 lds
s_add_u32 s84, s84, 1024""")
            if queue is not None: queue.append(('l', NW + i))
        wrap_w(e)

def ffn_w_prefetch(e):
    e(f"""s_mov_b32 s86, s84
s_mul_i32 s87, s86, 20480
s_mul_i32 s84, s{sCB}, 94
s_add_u32 s84, s84, s85
s_mul_i32 s84, s84, 5120
s_add_u32 s84, s84, {WF_OFF}
s_cmp_ge_u32 s86, 2
s_cselect_b32 s89, 13, 14""")
    rot_setup(e, 89, False)
    w_prefetch(e, 14, NLF, 87, do_lds=not opt.ldslate)
    if opt.sshelp:
        e(f"""s_cmp_eq_u32 s{sISU}, 1
s_cbranch_scc0 L_NOHELP
s_mul_i32 s80, s86, 10
s_add_u32 s80, s80, 54
s_lshl_b32 s80, s80, 2
s_lshl_b32 s81, s{sCB}, 9
s_add_u32 s80, s80, s81
s_add_u32 s88, s80, {WFLAG_OFF}
v_lshlrev_b32 v12, 2, v0""")
        poll_flags(e, 'HW', 12, 13, 88, 0x3ff)
        e(f"""s_mul_i32 s80, s86, 10
s_add_u32 s80, s80, {54 + NW}
s_mul_i32 s81, s{sCB}, 94
s_add_u32 s80, s80, s81
s_mul_i32 s80, s80, 5120
s_add_u32 s80, s80, {WF_OFF}
s_mul_i32 s81, s86, 15360
s_add_u32 s81, s81, {LDS_Y}""")
        for i in range(NLS):
            for dt in range(5):
                e(f"""s_add_u32 m0, s81, {i*5120 + dt*1024}
buffer_load_dwordx4 v1, s[{SWS}:{SWS+3}], s80 offen sc1 lds
s_add_u32 s80, s80, 1024""")
        e("L_NOHELP:")

def l2_prefetch(e, sbase, nlines, nshare, share_sgpr, share_mask, ninstr, vtmp=12, vdst=15):
    per = -(-nlines // nshare)
    e(f"""s_and_b32 s80, {share_sgpr}, {share_mask}
s_mul_i32 s80, s80, {per*128}
s_add_u32 s80, s80, s{sbase}
v_lshlrev_b32 v{vtmp}, 7, v0""")
    for i in range(ninstr):
        if i * 64 < per and per - i * 64 < 64:
            e(f"v_min_u32 v{vtmp}, {(per - i*64 - 1)*128}, v{vtmp}")
        e(f"buffer_load_dword v{vdst}, v{vtmp}, s[{SWS}:{SWS+3}], s80 offen sc1")
        if i * 64 + 64 < per: e(f"s_add_u32 s80, s80, 8192")

def gen_gather_setup(e, W=84, T='', start=1):
    e(f"""s_lshr_b32 s80, s2, 3
s_and_b32 s81, s80, 7
s_lshr_b32 s80, s80, 3
v_mov_b32 v17, 0x10000000
s_mov_b32 s{sGo}, {128*start}
s_mov_b32 s{sGinc}, 128
s_mov_b32 s{SG}, s{SX}
s_mov_b32 s{SG+1}, s{SX+1}
s_mov_b32 s{SG+2}, 2621440
s_mov_b32 s{SG+3}, 0x20000
s_cmp_eq_u32 s{W}, 0
s_cbranch_scc0 L_GS_1{T}
s_lshl_b32 s80, s80, 5
s_lshl_b32 s82, s{sRB}, 7
s_add_u32 s80, s80, s82
v_add_u32 v16, s80, v0
v_mul_u32_u24 v16, 1280, v16
v_cmp_gt_u32 vcc, 32, v0
v_cndmask_b32 v17, v17, v16, vcc
s_branch L_GS_done{T}
L_GS_1{T}:
s_cmp_ge_u32 s{W}, 3
s_cbranch_scc1 L_GS_done{T}
s_cmp_eq_u32 s{sISU}, 1
s_cbranch_scc1 L_GS_U{T}
s_cmp_eq_u32 s{W}, 1
s_cbranch_scc0 L_GS_done{T}
s_mov_b32 s{SG}, s{P_W1}
s_mov_b32 s{SG+1}, s{P_W1+1}
s_mov_b32 s{SG+2}, 2211840
s_mul_i32 s{sGo}, s{sJ}, 384
s_add_u32 s{sGo}, s{sGo}, {64*3456*start}
s_mov_b32 s{sGinc}, {64*3456}
v_mul_u32_u24 v16, 43, v0
v_lshrrev_b32 v16, 7, v16
v_mul_u32_u24 v15, 3, v16
v_sub_u32 v15, v0, v15
s_lshl_b32 s81, s81, 3
v_add_u32 v16, s81, v16
v_mul_u32_u24 v16, 3456, v16
v_lshlrev_b32 v15, 7, v15
v_add_u32 v16, v16, v15
v_cmp_gt_u32 vcc, 24, v0
v_cndmask_b32 v17, v17, v16, vcc
s_branch L_GS_done{T}
L_GS_U{T}:
s_cmp_eq_u32 s{W}, 1
s_cselect_b32 s{SG}, s{P_BRE}, s{P_BIM}
s_cselect_b32 s{SG+1}, s{P_BRE+1}, s{P_BIM+1}
s_mov_b32 s{SG+2}, 819200
s_mul_i32 s80, s{sJ}, 96
s_mul_i32 s81, s81, 12
s_add_u32 s80, s80, s81
v_add_u32 v16, s80, v0
v_min_u32 v16, 639, v16
v_mul_u32_u24 v16, 1280, v16
v_cmp_gt_u32 vcc, 12, v0
v_cndmask_b32 v17, v17, v16, vcc
L_GS_done{T}:""")
    if not opt.gloop: e("v_mov_b32 v17, 0x10000000")

def gen_unit_ids(e, W, V=2, K=3, C=35, T=''):
    e(f"""s_cmp_ge_u32 s{V}, 108
s_cbranch_scc1 L_UID_C{T}
s_lshr_b32 s{K}, s{V}, 1
s_and_b32 s{C}, s{V}, 1
s_lshl_b32 s{C}, s{C}, 2
s_add_u32 s{C}, s{C}, s{W}
s_branch L_UID_done{T}
L_UID_C{T}:
s_sub_u32 s80, s{V}, 108
s_and_b32 s{C}, s80, 7
s_lshr_b32 s80, s80, 3
s_lshl_b32 s{K}, s80, 2
s_add_u32 s{K}, s{K}, s{W}
s_add_u32 s{K}, s{K}, 54
L_UID_done{T}:""")

def gen_prep_gather(e, W=84):
    e(f"""s_cmp_ge_u32 s3, 54
s_cbranch_scc1 L_PG_C""")
    srd(e, STA, P_W2, 2211840)
    e(f"""v_mul_u32_u24 v10, 52, v0
v_lshrrev_b32 v10, 8, v10
v_mul_u32_u24 v11, 5, v10
v_sub_u32 v11, v0, v11
s_lshl_b32 s80, s{W}, 3
v_add_u32 v10, s80, v10
v_mul_u32_u24 v10, 1280, v10
v_lshlrev_b32 v11, 7, v11
v_add_u32 v10, v10, v11
v_mov_b32 v11, 0x10000000
v_cmp_gt_u32 vcc, 40, v0
v_cndmask_b32 v10, v11, v10, vcc
s_mul_i32 s80, s3, {32*1280}
s_and_b32 s81, s2, 1
s_mul_i32 s81, s81, 640
s_add_u32 s80, s80, s81
buffer_load_dword v18, v10, s[{STA}:{STA+3}], s80 offen
buffer_load_dword v18, v11, s[{STA}:{STA+3}], s80 offen
s_branch L_PG_done
L_PG_C:""")
    srd(e, STA, P_CRE, 819200)
    srd(e, STB, P_CIM, 819200)
    e(f"""s_mul_i32 s81, s35, 80
s_mul_i32 s80, s{W}, 20
s_add_u32 s81, s81, s80
v_add_u32 v10, s81, v0
v_mul_u32_u24 v10, 1280, v10
v_mov_b32 v11, 0x10000000
v_cmp_gt_u32 vcc, 20, v0
v_cndmask_b32 v10, v11, v10, vcc
s_sub_u32 s80, s3, 54
s_lshr_b32 s80, s80, 2
s_min_u32 s80, s80, 9
s_lshl_b32 s80, s80, 7
buffer_load_dword v18, v10, s[{STA}:{STA+3}], s80 offen
buffer_load_dword v18, v10, s[{STB}:{STB+3}], s80 offen
L_PG_done:""")

def gen_lambda_table(e, part):
    L1, L2, L4, L8, L16, L32, L48, L64, L128, L256, L512, L1024, C2 = 30, 32, 34, 36, 38, 40, 42, 44, 46, 48, 50, 52, 54
    if part == 0:
        e(f"""v_lshlrev_b32 v20, 16, v20
v_lshlrev_b32 v21, 16, v21
v_lshlrev_b32 v22, 16, v22
v_mul_f32 v23, 0x3fb8aa3b, v22
v_exp_f32 v23, v23
s_nop 0
v_cvt_pk_bf16_f32 v23, v23, v23
v_and_b32 v23, 0xffff0000, v23
v_mul_f32 v24, v23, v20
v_mul_f32 v25, v23, v21
v_mul_f32 v24, 0x3fb8aa3b, v24
v_exp_f32 v24, v24
v_mul_f32 v25, 0.15915494, v25
v_fract_f32 v25, v25
v_sin_f32 v26, v25
v_cos_f32 v27, v25
s_nop 0
v_mul_f32 v31, v24, v26
v_mul_f32 v30, v24, v27""")
        csq(e, L2, L1); csq(e, L4, L2); csq(e, L8, L4); csq(e, L16, L8); csq(e, L32, L16)
        cmul(e, L48, L32, L16, None)
        csq(e, L64, L32); csq(e, L128, L64)
        return
    csq(e, L256, L128); csq(e, L512, L256); csq(e, L1024, L512)
    e(f"""v_add_f32 v56, -1.0, v30
v_mul_f32 v57, v20, v20
v_fma_f32 v57, v21, v21, v57
v_rcp_f32 v57, v57
v_mul_f32 v58, v56, v20
v_fma_f32 v58, v31, v21, v58
v_mul_f32 v59, v31, v20
v_fma_f32 v59, -v56, v21, v59
v_add_f32 v57, v57, v57
v_mul_f32 v{C2}, v58, v57
v_mul_f32 v{C2+1}, v59, v57
v_mov_b32 v60, 1.0
v_mov_b32 v61, 0""")
    ents = [L1, L8, 60, L16, L32, L48, L64, L128, L512, L1024, C2]
    for i, r in enumerate(ents):
        e(f"ds_write_b64 v62, v[{r}:{r+1}] offset:{i*768}")
    e("s_waitcnt lgkmcnt(0)")

ACC = 64
SETA, SETB = 160, 200
def acc_ffn(ft, tt): return ACC + (ft * 4 + tt) * 4
def acc_u(i, tp): return ACC + (i * 6 + tp) * 4

def reads(kind, st, ks):
    L = []
    vX = 2 + ks
    if kind == 'F':
        xs = [f"ds_read_b128 {R(st + 4*t)}, v{vX} offset:{t*2048}" for t in range(4)]
        ws = []
        for ft in range(6):
            for h in range(2):
                ws.append(f"ds_read_b64_tr_b16 v[{st+16+4*ft+2*h}:{st+16+4*ft+2*h+1}], v{4+ft} offset:{ks*12288 + h*1536}")
        L = ws[:2] + xs + ws[2:]
    else:
        vW = 4 + ks
        xs = [f"ds_read_b128 {R(st + 4*t)}, v{vX} offset:{t*2048}" for t in range(4)]
        ws = [f"ds_read_b128 {R(st + 16 + 4*t)}, v{vW} offset:{t*2048}" for t in range(6)]
        L = [ws[0]] + xs + ws[1:]
    return L

def mfmas(kind, st, first=False):
    L = []
    for n in range(6):
        for t in range(4):
            if kind == 'F':
                d = acc_ffn(n, t)
                c = R(16 + 20 + 4*n) if first else R(d)
                L.append(f"v_mfma_f32_16x16x32_bf16 {R(d)}, {R(st+16+4*n)}, {R(st+4*t)}, {c}")
            else:
                d = acc_u(t, n)
                c = "0" if first else R(d)
                L.append(f"v_mfma_f32_16x16x32_bf16 {R(d)}, {R(st+4*t)}, {R(st+16+4*n)}, {c}")
    return L

def gen_prep_issue(e, W=84, D=116, T=''):
    NT = 'nt' if opt.pnt else ''
    e(f"""s_cmp_ge_u32 s3, 54
s_cbranch_scc1 L_PREP_C{T}""")
    srd(e, STA, P_W2, 2211840)
    e(f"""s_mul_i32 s80, s3, {32*1280}
s_mul_i32 s81, s35, 160
s_add_u32 s80, s80, s81
s_mul_i32 s81, s{W}, 5120
s_add_u32 s81, s81, {LDS_PREP}""")
    for n in range(5):
        e(f"""v_add_u32 v10, {64*n}, v0
v_mul_u32_u24 v11, 205, v10
v_lshrrev_b32 v11, 11, v11
v_mul_u32_u24 v12, 10, v11
v_sub_u32 v12, v10, v12
v_mul_u32_u24 v11, 1280, v11
v_lshlrev_b32 v12, 4, v12
v_add_u32 v11, v11, v12
s_add_u32 m0, s81, {n*1024}
buffer_load_dwordx4 v11, s[{STA}:{STA+3}], s80 offen {NT} lds""")
    e("v_mov_b32 v11, 0x10000000")
    for n in range(5):
        e(f"buffer_load_dword v{D}, v11, s[{STA}:{STA+3}], s80 offen")
    e(f"s_branch L_PREP_issued{T}")
    e(f"L_PREP_C{T}:")
    srd(e, STA, P_CRE, 819200)
    srd(e, STB, P_CIM, 819200)
    e(f"""v_and_b32 v10, 15, v0
v_mul_u32_u24 v10, 1280, v10
v_lshrrev_b32 v11, 4, v0
v_lshlrev_b32 v11, 3, v11
v_add_u32 v10, v10, v11
s_sub_u32 s80, s3, 54
s_min_u32 s80, s80, 39
s_lshl_b32 s80, s80, 5
s_mul_i32 s81, s35, {80*1280}
s_add_u32 s80, s80, s81""")
    for dt in range(5):
        e(f"buffer_load_dwordx2 v[{D+4*dt}:{D+1+4*dt}], v10, s[{STA}:{STA+3}], s80 offen {NT}")
        e(f"buffer_load_dwordx2 v[{D+2+4*dt}:{D+3+4*dt}], v10, s[{STB}:{STB+3}], s80 offen {NT}")
        if dt < 4: e(f"s_add_u32 s80, s80, {16*1280}")
    e(f"L_PREP_issued{T}:")

def prep_issue_c(e, K, C, D):
    srd(e, STA, P_CRE, 819200)
    srd(e, STB, P_CIM, 819200)
    NT = 'nt' if opt.pnt else ''
    e(f"""v_and_b32 v10, 15, v0
v_mul_u32_u24 v10, 1280, v10
v_lshrrev_b32 v11, 4, v0
v_lshlrev_b32 v11, 3, v11
v_add_u32 v10, v10, v11
s_sub_u32 s80, s{K}, 54
s_min_u32 s80, s80, 39
s_lshl_b32 s80, s80, 5
s_mul_i32 s81, s{C}, {80*1280}
s_add_u32 s80, s80, s81""")
    for dt in range(5):
        e(f"buffer_load_dwordx2 v[{D+4*dt}:{D+1+4*dt}], v10, s[{STA}:{STA+3}], s80 offen {NT}")
        e(f"buffer_load_dwordx2 v[{D+2+4*dt}:{D+3+4*dt}], v10, s[{STB}:{STB+3}], s80 offen {NT}")
        if dt < 4: e(f"s_add_u32 s80, s80, {16*1280}")

def prep_store2(e, T):
    e(f"""s_cmp_ge_u32 s34, 94
s_cbranch_scc1 L_PS2_done{T}
s_mul_i32 s80, s33, 94
s_add_u32 s80, s80, s34
s_mul_i32 s80, s80, 5120
s_add_u32 s80, s80, {WF_OFF}
v_lshlrev_b32 v10, 4, v0""")
    for dt in range(5):
        if dt < 4:
            e(f"buffer_store_dwordx4 {R(160+4*dt)}, v10, s[{SWS}:{SWS+3}], s80 offen offset:{dt*1024} sc1")
        else:
            e(f"s_add_u32 s80, s80, 4096")
            e(f"buffer_store_dwordx4 {R(160+4*dt)}, v10, s[{SWS}:{SWS+3}], s80 offen sc1")
    e(f"L_PS2_done{T}:")

def gen_prep_finish(e, W=84, D=116, T=''):
    e(f"""s_cmp_ge_u32 s3, 54
s_cbranch_scc1 L_PF_store{T}
v_lshrrev_b32 v10, 4, v0
v_lshlrev_b32 v10, 2, v10
v_bfe_u32 v11, v0, 2, 2
v_add_u32 v10, v10, v11
v_mul_u32_u24 v10, 160, v10
v_and_b32 v11, 3, v0
v_lshlrev_b32 v11, 3, v11
v_add_u32 v10, v10, v11
s_mul_i32 s81, s{W}, 5120
s_add_u32 s81, s81, {LDS_PREP}
v_add_u32 v10, s81, v10""")
    for dt in range(5):
        for h in range(2):
            e(f"ds_read_b64_tr_b16 v[{D+4*dt+2*h}:{D+1+4*dt+2*h}], v10 offset:{dt*32 + h*16*160}")
    e("s_waitcnt lgkmcnt(0)")
    e(f"L_PF_store{T}:")
    e(f"""s_mul_i32 s80, s35, 94
s_add_u32 s80, s80, s3
s_mul_i32 s80, s80, 5120
s_add_u32 s80, s80, {WF_OFF}
v_lshlrev_b32 v10, 4, v0
v_mov_b32 v11, 0x10000000
s_cmp_ge_u32 s3, 94
s_cselect_b32 s81, 1, 0
v_mov_b32 v12, s81
v_cmp_eq_u32 vcc, 1, v12
v_cndmask_b32 v10, v10, v11, vcc""")
    for dt in range(5):
        if dt < 4:
            e(f"buffer_store_dwordx4 {R(D+4*dt)}, v10, s[{SWS}:{SWS+3}], s80 offen offset:{dt*1024} sc1")
        else:
            e(f"s_add_u32 s80, s80, 4096")
            e(f"buffer_store_dwordx4 {R(D+4*dt)}, v10, s[{SWS}:{SWS+3}], s80 offen sc1")

def gen_prep_flag(e, K=3, C=35):
    e(f"""s_lshl_b32 s80, s{C}, 9
s_lshl_b32 s81, s{K}, 2
s_add_u32 s80, s80, s81
s_add_u32 s80, s80, {WFLAG_OFF}
v_mov_b32 v10, s{sNONCE}
s_cmp_ge_u32 s{K}, 94
s_cselect_b32 s81, 0x10000000, 0
v_mov_b32 v11, s81
s_mov_b64 exec, 1
buffer_store_dword v10, v11, s[{SWS}:{SWS+3}], s80 offen sc0 sc1
s_mov_b64 exec, -1""")

def interleave2(e, A, B, per):
    bi = 0
    for i, a in enumerate(A):
        e(a)
        for _ in range(per[i] if i < len(per) else 0):
            if bi < len(B): e(B[bi]); bi += 1
    while bi < len(B):
        e(B[bi]); bi += 1

def gen_main_loop(e, kind):
    tag = kind
    naddr = [2, 3] + ([4, 5, 6, 7, 8, 9] if kind == 'F' else [4, 5])
    sIT, sDELTA, sSLOT = 86, 87, 88
    def adv_list():
        L = [f"s_add_u32 s{sSLOT}, s{sSLOT}, 1", f"s_cmp_eq_u32 s{sSLOT}, 3",
             f"s_cselect_b32 s{sDELTA}, s90, s89", f"s_cselect_b32 s{sSLOT}, 0, s{sSLOT}"]
        L += [f"v_add_u32 v{v}, s{sDELTA}, v{v}" for v in naddr]
        return L
    e(f"s_mov_b32 s{sIT}, 1\ns_mov_b32 s{sSLOT}, 0\ns_mov_b32 s89, {SLOT}\ns_mov_b32 s90, {-2*SLOT & 0xffffffff}")
    if opt.itstamps:
        e(f"s_memtime s[100:101]\ns_waitcnt lgkmcnt(0)\nv_writelane_b32 v250, s100, 10")
    e("s_waitcnt lgkmcnt(0)\ns_barrier")
    if opt.itstamps:
        e(f"s_memtime s[100:101]\ns_waitcnt lgkmcnt(0)\nv_writelane_b32 v250, s100, 0")
    for r in reads(kind, SETA, 0): e(r)
    if opt.plate: gen_prep_issue(e, sWAVE, 16, tag)
    e("s_waitcnt lgkmcnt(0)")
    rb = reads(kind, SETB, 1)
    items = rb + adv_list()
    nr = len(rb)
    def perlist(nr, nextra):
        per = [1] * 24
        rem = 24 - nr
        per = [1] * nr + [0] * rem
        k = nextra; i = nr
        while k > 0:
            per[i] += 1; k -= 1; i += 1
            if i == 24: i = max(nr, 8)
        return per
    interleave2(e, mfmas(kind, SETA, first=True), items, perlist(nr, len(items) - nr))
    e("s_waitcnt lgkmcnt(0)")
    e(f"L_ML_{tag}:")
    e("s_barrier")
    if opt.itstamps:
        e(f"s_memtime s[100:101]\ns_waitcnt lgkmcnt(0)\ns_mov_b32 m0, s{sIT}\nv_writelane_b32 v250, s100, m0")
    ra = reads(kind, SETA, 0)
    interleave2(e, mfmas(kind, SETB), ra, [1] * 24)
    if opt.plate:
        e(f"s_cmp_eq_u32 s{sIT}, {opt.pfin}\ns_cbranch_scc0 L_ML_h0_{tag}\ns_waitcnt vmcnt(0)")
        gen_prep_finish(e, sWAVE, 16, 'H' + tag)
        srd(e, STA, P_DBG, 256)
        e(f"buffer_load_dword v249, v248, s[{STA}:{STA+3}], 0 offen\nL_ML_h0_{tag}:")
    e(f"""s_cmp_eq_u32 s{sIT}, 1
s_cbranch_scc0 L_ML_h1_{tag}""")
    if not opt.plate: e(f"buffer_load_dword v249, v248, s[{STA}:{STA+3}], 0 offen")
    e(f"""L_ML_h1_{tag}:
s_cmp_eq_u32 s{sIT}, {opt.pfin + 2 if opt.plate else 4}
s_cbranch_scc0 L_ML_h2_{tag}
s_waitcnt vmcnt(0)
v_readfirstlane_b32 s{sNONCE}, v249
s_cmp_eq_u32 s{sNONCE}, 0
s_cbranch_scc0 L_ML_h2b_{tag}""")
    spin_nonce(e, 'H' + tag, 10)
    e(f"L_ML_h2b_{tag}:")
    gen_prep_flag(e)
    if opt.fprep and kind == 'F': gen_prep_flag(e, 34, 33)
    e(f"L_ML_h2_{tag}:")
    e("s_waitcnt lgkmcnt(0)")
    items = rb + adv_list() + [f"s_add_u32 s{sIT}, s{sIT}, 1", f"s_cmp_lt_u32 s{sIT}, 10"]
    interleave2(e, mfmas(kind, SETA), items, perlist(nr, len(items) - nr))
    e(f"""s_waitcnt lgkmcnt(0)
s_cbranch_scc1 L_ML_{tag}""")
    lds_count(e, 24, 10)
    e(f"""s_mul_i32 s87, s{sWAVE}, 10
s_add_u32 s87, s87, 54
s_lshl_b32 s89, s{sCB}, 9
s_lshl_b32 s90, s87, 2
s_add_u32 s89, s89, s90
s_add_u32 s35, s89, {WFLAG_OFF}
v_lshlrev_b32 v8, 2, v0
buffer_load_dword v1, v8, s[{SWS}:{SWS+3}], s35 offen sc1""")
    for m in mfmas(kind, SETB): e(m)
    if opt.itstamps:
        e(f"""s_memtime s[100:101]
s_waitcnt lgkmcnt(0)
v_writelane_b32 v250, s100, 11
s_lshl_b32 s98, s2, 3
s_add_u32 s98, s98, s{sWAVE}
s_lshl_b32 s98, s98, 6
s_add_u32 s98, s98, {STAMP_OFF + 0x40000}
v_lshlrev_b32 v251, 2, v0
s_mov_b64 exec, 0xffff
buffer_store_dword v250, v251, s[{SWS}:{SWS+3}], s98 offen
s_mov_b64 exec, -1""")

def tile_flag(e, tag):
    nyoung = 0
    if opt.wearly:
        ssm_w_setup(e, tag)
        nyoung = SSM_W_OPS()
    e(f"""s_waitcnt vmcnt({nyoung})
s_lshr_b32 s80, s{sWAVE}, 1
s_lshl_b32 s81, s{sRB}, 1
s_add_u32 s80, s80, s81
s_lshl_b32 s80, s80, 8
s_lshl_b32 s81, s{sCOL}, 1
s_and_b32 s82, s{sWAVE}, 1
s_add_u32 s81, s81, s82
s_lshl_b32 s82, s81, 2
s_cmp_ge_u32 s81, 18
s_cselect_b32 s81, 56, 0
s_add_u32 s80, s80, s82
s_add_u32 s80, s80, s81
s_add_u32 s80, s80, {TFLAG_OFF}
v_mov_b32 v10, s{sNONCE}
v_mov_b32 v11, 0
s_mov_b64 exec, 1
buffer_store_dword v10, v11, s[{SWS}:{SWS+3}], s80 offen sc0 sc1
s_mov_b64 exec, -1""")
    if opt.eprio: e("s_setprio 0")

def SSM_W_OPS():
    nsh = 8 if opt.map2 == 1 else 4
    ng = (-(-(-(-10 * 40 // nsh)) // 64)) if opt.gw else 0
    return NW * 5 + NLS * 5 + ng

def ssm_w_setup(e, tag, order=True, defer_lds=False):
    e(f"""s_waitcnt vmcnt({12 if order else 0})
s_mul_i32 s87, s{sWAVE}, 10
s_add_u32 s87, s87, 54
v_cmp_ne_u32 vcc, s{sNONCE}, v1
v_lshlrev_b32 v1, 4, v0
v_lshlrev_b32 v8, 2, v0
s_and_b32 s80, vcc_lo, 0x3ff
s_cbranch_scc0 L_SSM_wok{tag}""")
    poll_flags(e, 'SW' + tag, 8, 10, 35, 0x3ff)
    e(f"""L_SSM_wok{tag}:
s_mul_i32 s84, s{sCB}, 94
s_add_u32 s84, s84, s87
s_mul_i32 s84, s84, 5120
s_add_u32 s84, s84, {WF_OFF}
s_mul_i32 s85, s{sRB2}, 94
s_add_u32 s85, s85, s87
s_lshl_b32 s85, s85, 12
s_mul_i32 s88, s{sWAVE}, 15360
s_add_u32 s88, s88, {LDS_Y}
v_add_u32 v3, s88, v1""")
    rot_setup(e, 10, True)
    rot_act(e)
    if opt.sorder and order:
        e(f"s_cmp_eq_u32 s{sISU}, 1\ns_cbranch_scc1 L_SSM_noord{tag}")
        lds_wait_ge(e, 'O' + tag, 28, 4, 10)
        e(f"L_SSM_noord{tag}:")
    if opt.sprio: e(f"s_setprio {opt.sprio}")
    if opt.sshelp:
        w_prefetch(e, 10, NLS, 88, do_lds=False, rng=(range(opt.fswn) if defer_lds else None))
        if not defer_lds:
            e(f"s_cmp_eq_u32 s{sISU}, 1\ns_cbranch_scc1 L_SSM_skiplds{tag}")
            w_lds(e, NLS, 88)
            e(f"s_branch L_SSM_ldsdone{tag}\nL_SSM_skiplds{tag}:\ns_add_u32 s84, s84, {NLS*5120}\nL_SSM_ldsdone{tag}:")
    else:
        w_prefetch(e, 10, NLS, 88)

def x_addr_setup(e):
    e(f"""s_lshr_b32 s80, s{sWAVE}, 1
s_lshl_b32 s80, s80, 13
v_and_b32 v10, 15, v0
v_lshlrev_b32 v10, 7, v10
v_lshrrev_b32 v11, 4, v0
v_and_b32 v12, 7, v0
v_xor_b32 v11, v11, v12
v_lshlrev_b32 v11, 4, v11
v_add_u32 v10, v10, v11
v_add_u32 v2, s80, v10
v_xor_b32 v3, 64, v2""")

def p1_l2_prefetch(e, kind):
    e(f"""s_lshr_b32 s81, s2, 3
s_lshr_b32 s82, s81, 3
s_lshl_b32 s82, s82, 5
s_lshl_b32 s83, s{sRB}, 7
s_add_u32 s82, s82, s83
v_and_b32 v10, 31, v0
v_add_u32 v10, s82, v10
v_mul_u32_u24 v10, 1280, v10
v_lshrrev_b32 v11, 5, v0
s_lshl_b32 s83, s{sWAVE}, 1
s_add_u32 s83, s83, 2
v_add_u32 v11, s83, v11
v_lshlrev_b32 v11, 7, v11
v_add_u32 v10, v10, v11
buffer_load_dword v247, v10, s[{SX}:{SX+3}], 0 offen
s_and_b32 s81, s81, 7""")
    if kind == 'F':
        srd(e, STA, P_W1, 2211840)
        e(f"""s_lshl_b32 s83, s{sWAVE}, 6
v_add_u32 v10, s83, v0
v_mul_u32_u24 v11, 2731, v10
v_lshrrev_b32 v11, 16, v11
v_mul_u32_u24 v12, 24, v11
v_sub_u32 v12, v10, v12
v_mul_u32_u24 v13, 43, v12
v_lshrrev_b32 v13, 7, v13
v_mul_u32_u24 v10, 3, v13
v_sub_u32 v12, v12, v10
v_lshlrev_b32 v11, 6, v11
v_add_u32 v11, v11, v13
s_lshl_b32 s83, s81, 3
s_add_u32 s83, s83, 128
v_add_u32 v11, s83, v11
v_mul_u32_u24 v11, 3456, v11
v_lshlrev_b32 v12, 7, v12
v_add_u32 v11, v11, v12
s_mul_i32 s83, s{sJ}, 384
buffer_load_dword v247, v11, s[{STA}:{STA+3}], s83 offen""")
    else:
        e(f"""s_cmp_ge_u32 s{sWAVE}, 2
s_cselect_b32 s{STA}, s{P_BIM}, s{P_BRE}
s_cselect_b32 s{STA+1}, s{P_BIM+1}, s{P_BRE+1}
s_mov_b32 s{STA+2}, 819200
s_mov_b32 s{STA+3}, 0x20000
s_and_b32 s83, s{sWAVE}, 1
s_lshl_b32 s83, s83, 6
v_add_u32 v10, s83, v0
v_min_u32 v10, 95, v10
v_mul_u32_u24 v11, 171, v10
v_lshrrev_b32 v11, 11, v11
v_mul_u32_u24 v12, 12, v11
v_sub_u32 v12, v10, v12
s_mul_i32 s83, s{sJ}, 96
s_mul_i32 s82, s81, 12
s_add_u32 s83, s83, s82
v_add_u32 v12, s83, v12
v_min_u32 v12, 639, v12
v_mul_u32_u24 v12, 1280, v12
v_add_u32 v11, 2, v11
v_lshlrev_b32 v11, 7, v11
v_add_u32 v12, v12, v11
buffer_load_dword v247, v12, s[{STA}:{STA+3}], 0 offen""")

def consumer_start_loads(e, nbefore):
    gen_gather_setup(e, sWAVE, 'C', 0)
    ng = 10 if opt.gall else 3
    for _ in range(ng):
        e(f"buffer_load_dword v18, v17, s[{SG}:{SG+3}], s{sGo} offen {GNT()}\ns_add_u32 s{sGo}, s{sGo}, s{sGinc}")
    if opt.fprep:
        e(f"""s_lshl_b32 s81, s{sCOL}, 4
s_add_u32 s81, s81, s{sRB}
s_add_u32 s82, s81, 144
s_cmp_lt_u32 s81, 44
s_cselect_b32 s82, s82, 255
s_cmp_eq_u32 s{sISU}, 1
s_cselect_b32 s81, 255, s81
s_cselect_b32 s82, 255, s82
s_mov_b32 s33, s82""")
        gen_unit_ids(e, sWAVE, 81, 3, 35, 'A')
        gen_unit_ids(e, sWAVE, 33, 34, 33, 'B')
        e(f"s_cmp_eq_u32 s{sISU}, 1\ns_cbranch_scc1 L_NOPREP")
        gen_prep_issue(e, sWAVE, 16)
        e("s_cmp_ge_u32 s34, 94\ns_cbranch_scc1 L_NOPREP")
        prep_issue_c(e, 34, 33, 160)
        e("L_NOPREP:")
        return
    gen_unit_ids(e, sWAVE)
    if opt.gall or opt.plate == 2:
        gen_prep_gather(e, sWAVE)
    if opt.uq == 1: gen_unique_warm(e)
    if not opt.plate: gen_prep_issue(e, sWAVE, 16)
    if opt.uq == 2: gen_unique_warm(e)

def gen_unique_warm(e):
    e(f"""s_cmp_eq_u32 s{sWAVE}, 0
s_cbranch_scc0 L_UQ_1
v_mul_u32_u24 v12, 37, v0
v_lshrrev_b32 v12, 8, v12
v_mul_u32_u24 v13, 7, v12
v_sub_u32 v13, v0, v13
s_lshl_b32 s80, s2, 3
v_add_u32 v12, s80, v12
v_mul_u32_u24 v12, 1280, v12
v_add_u32 v13, 3, v13
v_lshlrev_b32 v13, 7, v13
v_add_u32 v12, v12, v13
v_mov_b32 v13, 0x10000000
v_cmp_gt_u32 vcc, 56, v0
v_cndmask_b32 v12, v13, v12, vcc
buffer_load_dword v19, v12, s[{SX}:{SX+3}], 0 offen
s_branch L_UQ_done
L_UQ_1:
s_cmp_eq_u32 s{sWAVE}, 1
s_cbranch_scc0 L_UQ_2""")
    srd(e, STB, P_W1, 2211840)
    e(f"""s_mul_i32 s80, s2, 48
v_add_u32 v12, s80, v0
v_mul_u32_u24 v13, 77673, v12
v_lshrrev_b32 v13, 21, v13
v_mul_u32_u24 v14, 27, v13
v_sub_u32 v14, v12, v14
v_add_u32 v13, 192, v13
v_mul_u32_u24 v13, 3456, v13
v_lshlrev_b32 v14, 7, v14
v_add_u32 v12, v13, v14
v_mov_b32 v13, 0x10000000
v_cmp_gt_u32 vcc, 48, v0
v_cndmask_b32 v12, v13, v12, vcc
buffer_load_dword v19, v12, s[{STB}:{STB+3}], 0 offen
s_branch L_UQ_done
L_UQ_2:
s_cmp_eq_u32 s{sWAVE}, 2
s_cselect_b32 s{STB}, s{P_BRE}, s{P_BIM}
s_cselect_b32 s{STB+1}, s{P_BRE+1}, s{P_BIM+1}
s_mov_b32 s{STB+2}, 819200
s_mov_b32 s{STB+3}, 0x20000
s_mul_i32 s80, s2, 18
v_add_u32 v12, s80, v0
v_mul_u32_u24 v13, 9363, v12
v_lshrrev_b32 v13, 16, v13
v_mul_u32_u24 v14, 7, v13
v_sub_u32 v14, v12, v14
v_mul_u32_u24 v13, 1280, v13
v_add_u32 v14, 3, v14
v_lshlrev_b32 v14, 7, v14
v_add_u32 v12, v13, v14
v_mov_b32 v13, 0x10000000
v_cmp_gt_u32 vcc, 18, v0
v_cndmask_b32 v12, v13, v12, vcc
buffer_load_dword v19, v12, s[{STB}:{STB+3}], 0 offen
L_UQ_done:""")

def consumer_common_setup(e):
    srd(e, STA, P_DBG, 256)
    e("v_mov_b32 v248, 0")

def gen_consumer_ffn(e):
    e("L_CONS_F:")
    srd(e, STB, P_B1, 3456)
    e(f"""s_mul_i32 s80, s{sJ}, 384
s_and_b32 s81, s{sWAVE}, 1
s_mul_i32 s81, s81, 192
s_add_u32 s80, s80, s81
v_lshrrev_b32 v10, 4, v0
v_lshlrev_b32 v10, 3, v10""")
    for ft in range(6):
        e(f"buffer_load_dwordx2 v[{224+2*ft}:{225+2*ft}], v10, s[{STB}:{STB+3}], s80 offen offset:{32*ft}")

    x_addr_setup(e)
    e(f"""v_lshrrev_b32 v10, 4, v0
v_bfe_u32 v11, v0, 2, 2
v_lshlrev_b32 v12, 3, v10
v_add_u32 v12, v12, v11
v_mul_u32_u24 v12, 384, v12
v_bfe_u32 v13, v0, 3, 1
v_lshlrev_b32 v13, 1, v13
v_and_b32 v14, 1, v10
v_lshlrev_b32 v14, 2, v14
v_or_b32 v13, v13, v14
v_bfe_u32 v14, v0, 1, 1
s_and_b32 s81, s{sWAVE}, 1
s_mul_i32 s81, s81, 12
v_add_u32 v14, s81, v14
v_and_b32 v15, 1, v0
v_lshlrev_b32 v15, 3, v15
v_add_u32 v12, v12, v15
v_add_u32 v12, 16384, v12""")
    for ft in range(6):
        e(f"""v_add_u32 v10, {2*ft}, v14
v_xor_b32 v10, v10, v13
v_lshlrev_b32 v10, 4, v10
v_add_u32 v{4+ft}, v12, v10""")
    if opt.plate:
        e(f"s_waitcnt vmcnt(0)" if False else "s_waitcnt vmcnt(0)")
    else:
        e("s_waitcnt vmcnt(0)")
        gen_prep_finish(e, sWAVE, 16, 'F')
        if opt.fprep: prep_store2(e, 'F')
    consumer_common_setup(e)
    for ft in range(6):
        b = 36 + 4 * ft
        e(f"""v_lshlrev_b32 v{b}, 16, v{224+2*ft}
v_and_b32 v{b+1}, 0xffff0000, v{224+2*ft}
v_lshlrev_b32 v{b+2}, 16, v{225+2*ft}
v_and_b32 v{b+3}, 0xffff0000, v{225+2*ft}""")
    stamp(e, 0, 14)
    stamp_clk(e, 14, 14)
    dbgmax(e, 2)
    gen_main_loop(e, 'F')
    dbgmax(e, 3)
    if opt.eprio: e(f"s_setprio {opt.eprio}")
    stamp(e, 1, 14)
    stamp_clk(e, 15, 14)
    e(f"""s_lshr_b32 s80, s{sWAVE}, 1
s_lshl_b32 s81, s{sRB}, 1
s_add_u32 s80, s80, s81
s_mul_i32 s80, s80, 94
s_mul_i32 s81, s{sJ}, 6
s_add_u32 s80, s80, s81
s_and_b32 s81, s{sWAVE}, 1
s_mul_i32 s81, s81, 3
s_add_u32 s80, s80, s81
s_lshl_b32 s32, s80, 12
v_lshlrev_b32 v10, 4, v0""")
    k = 0
    OB = 196 if opt.fsw else SETA
    pend = []
    for u in range(3):
        for tt in range(4):
            o = OB + 4 * k; k += 1
            vals = [acc_ffn(2*u, tt), acc_ffn(2*u+1, tt)]
            tmp = 16 + 8 * (k & 1)
            for h, a in enumerate(vals):
                for r in range(4):
                    e(f"v_max_f32 v{tmp+4*h+r}, 0, v{a+r}")
            for h, a in enumerate(vals):
                for r in range(0, 4, 2):
                    e(f"v_pk_mul_f32 v[{a+r}:{a+r+1}], v[{a+r}:{a+r+1}], v[{tmp+4*h+r}:{tmp+4*h+r+1}]")
            for h, a in enumerate(vals):
                for r in range(0, 4, 2):
                    e(f"v_cvt_pk_bf16_f32 v{o+2*h+(r>>1)}, v{a+r}, v{a+r+1}")
            st_ = f"buffer_store_dwordx4 {R(o)}, v10, s[{SWS}:{SWS+3}], s32 offen offset:{tt*1024} sc1"
            if opt.fsw: pend.append(st_)
            else: e(st_)
        if u < 2:
            if opt.fsw: pend.append("s_add_u32 s32, s32, 4096")
            else: e("s_add_u32 s32, s32, 4096")
    if opt.fsw:
        ssm_w_setup(e, 'F', order=False, defer_lds=(opt.fsw == 2))
        e("v_lshlrev_b32 v10, 4, v0")
        for x in pend: e(x)
    lds_count(e, 16, 12)
    stamp(e, 2, 14)
    tile_flag(e, 'F')
    dbgmax(e, 4)
    stamp(e, 3, 14)
    if opt.fsw == 2:
        w_prefetch(e, 10, NLS, 88, do_lds=False, rng=range(opt.fswn, NW))
        w_lds(e, NLS, 88)
    e("s_branch L_SSM_P2b" if opt.fsw else "s_branch L_SSM_P2")

def gen_code_prefetch(e):
    e(f"""s_cmp_eq_u32 s{sWAVE}, 3
s_cbranch_scc0 L_CPF_done
s_getpc_b64 s[80:81]
L_CPF_pc:
s_sub_u32 s80, s80, L_CPF_pc-{NAME}
s_subb_u32 s81, s81, 0
s_lshr_b32 s82, s2, 3
s_lshl_b32 s82, s82, 11
v_and_b32 v10, 15, v0
v_lshlrev_b32 v10, 7, v10
v_add_u32 v10, s82, v10
v_min_u32 v10, L_CODE_END-{NAME}-4, v10
s_mov_b64 exec, 0xffff
global_load_dword v19, v10, s[80:81]
s_mov_b64 exec, -1
L_CPF_done:""")

def gen_consumer(e):
    dbgmax(e, 1)
    e(f"""v_mov_b32 v10, {LDS_FLAG}
v_mov_b32 v12, 0
v_mov_b32 v13, 0
v_mov_b32 v14, 0
v_mov_b32 v15, 0
ds_write_b128 v10, v[12:15]
ds_write_b128 v10, v[12:15] offset:16
ds_write_b128 v10, v[12:15] offset:32""")
    if opt.cpf: gen_code_prefetch(e)
    consumer_start_loads(e, 0)
    e(f"""s_cmp_eq_u32 s{sISU}, 1
s_cbranch_scc1 L_CONS_U""")
    gen_consumer_ffn(e)
    gen_consumer_u(e)

def pk(op, d, a, b, c=None, bsel=None, neg=False):
    assert bsel == 0, "op_sel hi-broadcast is unsafe next to MFMA (measured)"
    n = 3 if c is not None else 2
    sel = [0, bsel] + ([0] if c is not None else [])
    selh = [1, bsel] + ([1] if c is not None else [])
    s = f"{op} v[{d}:{d+1}], v[{a}:{a+1}], v[{b}:{b+1}]" + (f", v[{c}:{c+1}]" if c is not None else "")
    s += " op_sel:[" + ",".join(map(str, sel)) + "] op_sel_hi:[" + ",".join(map(str, selh)) + "]"
    if neg:
        ng = [0, 1] + ([0] if c is not None else [])
        s += " neg_lo:[" + ",".join(map(str, ng)) + "] neg_hi:[" + ",".join(map(str, ng)) + "]"
    return s

def gen_consumer_u(e):
    e("L_CONS_U:")
    x_addr_setup(e)
    e(f"""s_and_b32 s81, s{sWAVE}, 1
s_mul_i32 s81, s81, {96*128}
s_add_u32 s81, s81, 16384
v_add_u32 v4, s81, v10
v_xor_b32 v5, 64, v4""")
    if not opt.plate and not opt.fprep:
        e("s_waitcnt vmcnt(0)")
        gen_prep_finish(e, sWAVE, 16, 'U')
    consumer_common_setup(e)
    dbgmax(e, 2)
    stamp(e, 0, 14)
    gen_main_loop(e, 'U')
    dbgmax(e, 3)
    if opt.eprio: e(f"s_setprio {opt.eprio}")
    stamp(e, 1, 14)
    def K(ct, i): return 160 + 18 * ct + 2 * i
    LAM, L8, L16, L16Q, L64, L128, L512, L1024, C2 = range(9)
    ent = {LAM: 0, L8: 1, L16: 3, L64: 6, L128: 7, L512: 8, L1024: 9, C2: 10}
    e(f"""s_and_b32 s81, s{sWAVE}, 1
s_mul_i32 s81, s81, {48*8}
s_add_u32 s81, s81, {LDS_TAB}
v_and_b32 v10, 15, v0
v_lshlrev_b32 v10, 3, v10
v_add_u32 v10, s81, v10
v_lshrrev_b32 v11, 4, v0
v_mul_u32_u24 v11, 768, v11
v_add_u32 v11, v11, v10""")
    for ct in range(3):
        for k, en in ent.items():
            e(f"ds_read_b64 v[{K(ct,k)}:{K(ct,k)+1}], v10 offset:{en*768 + ct*128}")
        e(f"ds_read_b64 v[{K(ct,L16Q)}:{K(ct,L16Q)+1}], v11 offset:{2*768 + ct*128}")
    e("s_waitcnt lgkmcnt(0)")
    LI = [2, 252, 254]
    C2I = [16, 18, 20]
    for ct in range(3):
        e(f"v_mov_b32 v{LI[ct]}, v{K(ct, LAM)+1}")
    def U(n, ct, part):
        return acc_u(n >> 1, 2 * ct + part) + 2 * (n & 1)
    def Er(ct, s): return 16 + 8 * ct + 4 * s
    def Ei(ct, s): return 18 + 8 * ct + 4 * s
    for n in range(1, 8):
        src = (n - 1) & 1; dst = n & 1
        for ct in range(3):
            pr = U(0, ct, 0) if n == 1 else Er(ct, src)
            pi = U(0, ct, 1) if n == 1 else Ei(ct, src)
            e(pk("v_pk_fma_f32", Er(ct, dst), pr, K(ct, LAM), U(n, ct, 0), 0))
            e(pk("v_pk_fma_f32", Ei(ct, dst), pi, K(ct, LAM), U(n, ct, 1), 0))
        for ct in range(3):
            pr = U(0, ct, 0) if n == 1 else Er(ct, src)
            pi = U(0, ct, 1) if n == 1 else Ei(ct, src)
            e(pk("v_pk_fma_f32", Er(ct, dst), pi, LI[ct], Er(ct, dst), 0, neg=True))
            e(pk("v_pk_fma_f32", Ei(ct, dst), pr, LI[ct], Ei(ct, dst), 0))
    def LL(ct): return 16 + 8 * ct
    for ct in range(3):
        er, ei, l8 = Er(ct, 1), Ei(ct, 1), K(ct, L8)
        e(f"""v_fma_f32 v{LL(ct)}, v{l8}, v{er}, v{er+1}
v_fma_f32 v{LL(ct)+1}, v{l8}, v{ei}, v{ei+1}
v_fma_f32 v{LL(ct)}, -v{l8+1}, v{ei}, v{LL(ct)}
v_fma_f32 v{LL(ct)+1}, v{l8+1}, v{er}, v{LL(ct)+1}""")
    def G(ct, q): return 214 + 8 * ct + 2 * q
    for ct in range(3):
        for c in range(2):
            a, b, a2, b2 = G(ct, 0) + c, G(ct, 1) + c, G(ct, 2) + c, G(ct, 3) + c
            e(f"""v_mov_b32 v{a}, v{LL(ct)+c}
v_mov_b32 v{b}, v{LL(ct)+c}
v_permlane16_swap_b32 v{a}, v{b}
v_mov_b32 v{a2}, v{a}
v_mov_b32 v{b2}, v{b}
v_permlane32_swap_b32 v{a}, v{a2}
v_permlane32_swap_b32 v{b}, v{b2}""")
    for ct in range(3):
        cfma(e, G(ct, 1), K(ct, L16), G(ct, 0), G(ct, 1))
    for ct in range(3):
        cfma(e, G(ct, 2), K(ct, L16), G(ct, 1), G(ct, 2))
    for ct in range(3):
        cfma(e, G(ct, 3), K(ct, L16), G(ct, 2), G(ct, 3))
    e(f"""s_mov_b32 s80, 0xffff0000
s_mov_b32 s81, 0
s_mov_b32 s82, 0
s_mov_b32 s83, 0x0000ffff
s_mov_b32 s90, 0
s_mov_b32 s91, 0xffff0000""")
    for ct in range(3):
        for c in range(2):
            e(f"""v_cndmask_b32 v{LL(ct)+c}, 0, v{G(ct,0)+c}, s[80:81]
v_cndmask_b32 v{LL(ct)+c}, v{LL(ct)+c}, v{G(ct,1)+c}, s[82:83]
v_cndmask_b32 v{LL(ct)+c}, v{LL(ct)+c}, v{G(ct,2)+c}, s[90:91]""")
    e(f"""s_and_b32 s84, s{sWAVE}, 1
s_mul_i32 s85, s84, {48*8}
s_add_u32 s85, s85, {LDS_LX}
v_and_b32 v10, 15, v0
v_lshlrev_b32 v10, 3, v10
v_add_u32 v10, s85, v10
s_lshl_b32 s85, s84, 2
s_add_u32 s85, s85, {LDS_FLAG}
v_mov_b32 v11, s85
s_cmp_ge_u32 s{sWAVE}, 2
s_cbranch_scc1 L_U_wt1""")
    for ct in range(3):
        e(f"ds_write_b64 v10, v[{G(ct,3)}:{G(ct,3)+1}] offset:{ct*128}")
    e(f"""v_mov_b32 v12, 1
s_waitcnt lgkmcnt(0)
ds_write_b32 v11, v12
s_branch L_U_lb
L_U_wt1:
s_mov_b32 s85, 0
L_U_pairwait:
ds_read_b32 v12, v11
s_add_u32 s85, s85, 1
s_waitcnt lgkmcnt(0)
v_readfirstlane_b32 s86, v12
s_cmp_ge_u32 s85, {opt.spin_limit}
s_cbranch_scc1 L_U_pairok
s_cmp_eq_u32 s86, 0
s_cbranch_scc1 L_U_pairwait
L_U_pairok:""")
    for ct in range(3):
        e(f"ds_read_b64 v[{G(ct,0)}:{G(ct,0)+1}], v10 offset:{ct*128}")
    e("s_waitcnt lgkmcnt(0)")
    for ct in range(3):
        cfma(e, G(ct, 1), K(ct, L64), G(ct, 0), G(ct, 3))
    e(f"""s_mov_b32 s80, 0xffff0000
s_mov_b32 s81, 0
s_mov_b32 s82, 0
s_mov_b32 s83, 0x0000ffff
v_cndmask_b32 v240, v{G(0,1)}, v{G(1,1)}, s[80:81]
v_cndmask_b32 v241, v{G(0,1)+1}, v{G(1,1)+1}, s[80:81]
v_cndmask_b32 v240, v240, v{G(2,1)}, s[82:83]
v_cndmask_b32 v241, v241, v{G(2,1)+1}, s[82:83]
v_mov_b32 v242, s{sNONCE}
v_mov_b32 v243, s{sNONCE}
s_mul_i32 s85, s{sJ}, 16
s_add_u32 s85, s85, s{sRB}
s_mul_i32 s85, s85, 96
s_mul_i32 s86, s84, 48
s_add_u32 s85, s85, s86
s_lshl_b32 s85, s85, 4
s_add_u32 s85, s85, {AG_OFF}
v_lshlrev_b32 v12, 4, v0
s_mov_b32 exec_lo, -1
s_mov_b32 exec_hi, 0x0000ffff
buffer_store_dwordx4 v[240:243], v12, s[{SWS}:{SWS+3}], s85 offen sc0 sc1
s_mov_b64 exec, -1
L_U_lb:""")
    if not opt.udelay: lds_count(e, 16, 12)
    stamp(e, 2, 14)
    LB = 112 + 0
    lbregs = [40 + 4 * i for i in range(6)] + [240 + 4 * i for i in range(4)] + [32 + 0, 36]
    lbregs = [40 + 4 * i for i in range(6)] + [240, 244, 248] + [216, 224, 232]
    e(f"""s_mul_i32 s85, s{sJ}, {16*96}
s_mul_i32 s86, s84, 48
s_add_u32 s85, s85, s86
s_lshl_b32 s85, s85, 4
s_add_u32 s85, s85, {AG_OFF}
v_lshrrev_b32 v12, 4, v0
v_lshlrev_b32 v12, 2, v12
v_sub_u32 v12, s{sRB}, v12
v_mov_b32 v9, 0x10000000
v_and_b32 v13, 15, v0""")
    for m in range(4):
        e(f"""v_subrev_u32 v14, {1+m}, v12
v_cmp_le_i32 s[{88+2*m}:{89+2*m}], 0, v14
v_mul_u32_u24 v15, 96, v14
v_add_u32 v15, v15, v13
v_lshlrev_b32 v15, 4, v15
v_cndmask_b32 v{4+m}, v9, v15, s[{88+2*m}:{89+2*m}]""")
    C2J = [8, 10, 238]
    for ct in range(3):
        e(f"v_mov_b32 v{C2J[ct]}, v{K(ct, C2)+1}")
    tk = 0
    for n in range(8):
        for ct in range(3):
            ur, ui = U(n, ct, 0), U(n, ct, 1)
            ta, tb = 40 + 4 * (tk % 6), 42 + 4 * (tk % 6); tk += 1
            e(pk("v_pk_mul_f32", ta, ur, K(ct, C2), None, 0))
            e(pk("v_pk_mul_f32", tb, ur, C2J[ct], None, 0))
            e(pk("v_pk_fma_f32", ur, ui, C2J[ct], ta, 0, neg=True))
            e(pk("v_pk_fma_f32", ui, ui, K(ct, C2), tb, 0))
    CR = list(range(38, 52)) + [54]
    for k in range(15):
        e(f"s_mov_b32 s{CR[k]}, s{sNONCE}")
    e(f"""s_add_u32 s87, s85, {47*16 + 8}
s_mov_b32 s86, 0
L_U_cp:""")
    for k in range(15):
        e(f"""s_cmp_gt_u32 s{sRB}, {k}
s_cbranch_scc0 L_U_cpl
s_load_dword s{CR[k]}, s[{P_WS}:{P_WS+1}], s87 offset:{k*1536} glc""")
    e(f"""L_U_cpl:
s_add_u32 s86, s86, 1
s_waitcnt lgkmcnt(0)
s_mov_b32 s81, 0""")
    for k in range(15):
        e(f"s_xor_b32 s82, s{CR[k]}, s{sNONCE}\ns_or_b32 s81, s81, s82")
    e(f"""s_cmp_ge_u32 s86, {opt.spin_limit}
s_cbranch_scc1 L_U_cpok
s_cmp_eq_u32 s81, 0
s_cbranch_scc1 L_U_cpok
s_sleep 1
s_branch L_U_cp
L_U_cpok:""")
    stamp(e, 11, 14)
    e(f"s_mov_b32 s86, 0\nL_U_lbloop:")
    for m in range(4):
        for ct in range(3):
            r = lbregs[m * 3 + ct]
            e(f"buffer_load_dwordx4 {R(r)}, v{4+m}, s[{SWS}:{SWS+3}], s85 offen offset:{ct*256} sc1")
    e("s_add_u32 s86, s86, 1\ns_mov_b64 s[96:97], 0\ns_waitcnt vmcnt(0)")
    for m in range(4):
        for ct in range(3):
            r = lbregs[m * 3 + ct]
            e(f"""v_cmp_ne_u32 vcc, s{sNONCE}, v{r+2}
s_and_b64 vcc, vcc, s[{88+2*m}:{89+2*m}]
s_or_b64 s[96:97], s[96:97], vcc""")
    e(f"""s_cmp_ge_u32 s86, {opt.spin_limit}
s_cbranch_scc1 L_U_lbok
s_cmp_eq_u64 s[96:97], 0
s_cbranch_scc0 L_U_lbloop
L_U_lbok:""")
    if opt.udelay: lds_count(e, 16, 12)
    def S(m, ct): return lbregs[m * 3 + ct]
    for ct in range(3):
        cfma(e, S(2, ct), K(ct, L128), S(3, ct), S(2, ct))
    for ct in range(3):
        cfma(e, S(1, ct), K(ct, L128), S(2, ct), S(1, ct))
    for ct in range(3):
        cfma(e, S(0, ct), K(ct, L128), S(1, ct), S(0, ct))
    for ct in range(3):
        z, b, t, u = S(0, ct), S(1, ct), S(2, ct), S(3, ct)
        e(f"""v_mov_b32 v{b}, v{z}
v_mov_b32 v{b+1}, v{z+1}
v_permlane16_swap_b32 v{z}, v{b}
v_permlane16_swap_b32 v{z+1}, v{b+1}""")
        cfma(e, t, K(ct, L512), b, z)
        e(f"""v_mov_b32 v{u}, v{t}
v_mov_b32 v{u+1}, v{t+1}
v_permlane32_swap_b32 v{t}, v{u}
v_permlane32_swap_b32 v{t+1}, v{u+1}""")
        cfma(e, z, K(ct, L1024), u, t)
    e(f"s_cmp_ge_u32 s{sWAVE}, 2\ns_cbranch_scc0 L_U_hw0")
    for ct in range(3):
        cfma(e, S(1, ct), K(ct, L64), S(0, ct), G(ct, 0))
    e("s_branch L_U_hw1\nL_U_hw0:")
    for ct in range(3):
        e(f"v_mov_b32 v{S(1,ct)}, v{S(0,ct)}\nv_mov_b32 v{S(1,ct)+1}, v{S(0,ct)+1}")
    e("L_U_hw1:\ns_nop 1")
    for ct in range(3):
        cfma(e, S(2, ct), K(ct, L16Q), S(1, ct), LL(ct))
    for ct in range(3):
        hl, l8, er, ei = S(2, ct), K(ct, L8), Er(ct, 1), Ei(ct, 1)
        cr, ci = S(3, ct), S(3, ct) + 2
        e(f"""v_mov_b32 v{cr}, v{hl}
v_mov_b32 v{ci}, v{hl+1}
v_fma_f32 v{cr+1}, v{l8}, v{hl}, v{er}
v_fma_f32 v{ci+1}, v{l8}, v{hl+1}, v{ei}
v_fma_f32 v{cr+1}, -v{l8+1}, v{hl+1}, v{cr+1}
v_fma_f32 v{ci+1}, v{l8+1}, v{hl}, v{ci+1}""")
    for ct in range(3):
        cr, ci = S(3, ct), S(3, ct) + 2
        ta, tb = S(1, ct), S(1, ct) + 2
        e(pk("v_pk_mul_f32", ta, cr, K(ct, C2), None, 0))
        e(pk("v_pk_mul_f32", tb, cr, C2J[ct], None, 0))
    for ct in range(3):
        cr, ci = S(3, ct), S(3, ct) + 2
        ta, tb = S(1, ct), S(1, ct) + 2
        e(pk("v_pk_fma_f32", cr, ci, C2J[ct], ta, 0, neg=True))
        e(pk("v_pk_fma_f32", ci, ci, K(ct, C2), tb, 0))
    for n in range(8):
        for ct in range(3):
            pr = S(3, ct) if n == 0 else U(n - 1, ct, 0)
            pi = S(3, ct) + 2 if n == 0 else U(n - 1, ct, 1)
            e(pk("v_pk_fma_f32", U(n, ct, 0), pr, K(ct, LAM), U(n, ct, 0), 0))
            e(pk("v_pk_fma_f32", U(n, ct, 1), pi, K(ct, LAM), U(n, ct, 1), 0))
        for ct in range(3):
            pr = S(3, ct) if n == 0 else U(n - 1, ct, 0)
            pi = S(3, ct) + 2 if n == 0 else U(n - 1, ct, 1)
            e(pk("v_pk_fma_f32", U(n, ct, 0), pi, LI[ct], U(n, ct, 0), 0, neg=True))
            e(pk("v_pk_fma_f32", U(n, ct, 1), pr, LI[ct], U(n, ct, 1), 0))
    stamp(e, 3, 14)
    e(f"""v_and_b32 v10, 15, v0
v_lshrrev_b32 v11, 4, v0
v_lshlrev_b32 v11, 3, v11
v_sub_u32 v10, v10, v11""")
    e("v_mov_b32 v14, 0x3f80")
    for b in range(2):
        e(f"""v_add_u32 v12, {16*b}, v10
v_and_b32 v13, 1, v12
v_lshlrev_b32 v13, 4, v13
v_lshlrev_b32 v13, v13, v14
v_lshrrev_b32 v12, 1, v12
v_cmp_eq_u32 s[86:87], 0, v12
v_cmp_eq_u32 s[88:89], 1, v12
v_cmp_eq_u32 s[90:91], 2, v12
v_cmp_eq_u32 s[92:93], 3, v12
v_cndmask_b32 v{40+4*b}, 0, v13, s[86:87]
v_cndmask_b32 v{41+4*b}, 0, v13, s[88:89]
v_cndmask_b32 v{42+4*b}, 0, v13, s[90:91]
v_cndmask_b32 v{43+4*b}, 0, v13, s[92:93]""")
    e(f"""s_lshr_b32 s80, s{sWAVE}, 1
s_lshl_b32 s81, s{sRB}, 1
s_add_u32 s80, s80, s81
s_mul_i32 s80, s80, 94
s_mul_i32 s81, s{sJ}, 6
s_mul_i32 s82, s84, 3
s_add_u32 s81, s81, s82
s_add_u32 s80, s80, s81
s_add_u32 s80, s80, 54
s_lshl_b32 s80, s80, 12
v_lshlrev_b32 v10, 4, v0""")
    for ct in range(3):
        c2 = K(ct, C2)
        for i in range(4):
            r0, r1, i0, i1 = U(2*i, ct, 0), U(2*i+1, ct, 0), U(2*i, ct, 1), U(2*i+1, ct, 1)
            e(f"""v_cvt_pk_bf16_f32 v{48+i}, v{r0}, v{r1}
v_cvt_pk_bf16_f32 v{52+i}, v{r0+1}, v{r1+1}
v_cvt_pk_bf16_f32 v{56+i}, -v{i0}, -v{i1}
v_cvt_pk_bf16_f32 v{60+i}, -v{i0+1}, -v{i1+1}""")
        def D(part, tt): return 224 + 16 * part + 4 * tt
        for part in range(2):
            for a in range(2):
                for b in range(2):
                    A = 48 + 8 * part + 4 * a
                    e(f"v_mfma_f32_16x16x32_bf16 {R(D(part, 2*b+a))}, {R(A)}, {R(40+4*b)}, 0")
        if True:
            e(f"s_add_u32 s82, s81, {ct}\ns_cmp_ge_u32 s82, 40\ns_cbranch_scc1 L_U_skip{ct}")
            for tt in range(4):
                o = acc_u(tt, 2 * ct)
                dr, di = D(0, tt), D(1, tt)
                e(f"""v_cvt_pk_bf16_f32 v{o}, v{dr}, v{dr+1}
v_cvt_pk_bf16_f32 v{o+1}, v{dr+2}, v{dr+3}
v_cvt_pk_bf16_f32 v{o+2}, v{di}, v{di+1}
v_cvt_pk_bf16_f32 v{o+3}, v{di+2}, v{di+3}
buffer_store_dwordx4 {R(o)}, v10, s[{SWS}:{SWS+3}], s80 offen offset:{tt*1024} sc1""")
            e(f"L_U_skip{ct}:\ns_nop 7\ns_add_u32 s80, s80, 4096")
    if opt.uhold: lds_count(e, 32, 12)
    stamp(e, 4, 14)
    tile_flag(e, 'U')
    dbgmax(e, 4)
    stamp(e, 5, 14)
    e("s_branch L_SSM_P2")

ACC2 = 16
WSL = 96
ASL = 196
NW, NA = 5, 3
def set_nw(nw, na):
    global NW, NA, ASL
    NW, NA = nw, na
    ASL = WSL + 20 * nw
def acc2(dt, tt): return ACC2 + (dt * 4 + tt) * 4

def wrap_w(e):
    if not opt.rot: return
    e("""s_sub_u32 s91, s91, 1
s_cmp_eq_u32 s91, 0
s_cselect_b32 s95, s93, 0
s_sub_u32 s84, s84, s95""")

def wrap_a(e):
    if not opt.rot: return
    e("""s_sub_u32 s92, s92, 1
s_cmp_eq_u32 s92, 0
s_cselect_b32 s95, s94, 0
s_sub_u32 s85, s85, s95""")

def rot_setup(e, n_sgpr_or_const, is_const):
    if not opt.rot: return
    if opt.map2 == 1:
        e(f"""s_and_b32 s95, s{sCB}, 3
s_lshl_b32 s95, s95, 1
s_add_u32 s95, s95, s{sRB2}
s_and_b32 s95, s95, 7""")
    else:
        e(f"""s_and_b32 s95, s{sRB2}, 3
s_lshl_b32 s95, s95, 1
s_add_u32 s95, s95, s{sCB}
s_and_b32 s95, s95, 7""")
    n = f"{n_sgpr_or_const}" if is_const else f"s{n_sgpr_or_const}"
    e(f"""s_mul_i32 s90, s95, {n}
s_lshr_b32 s90, s90, 3
s_sub_u32 s91, {n}, s90
s_mov_b32 s92, s91
s_mul_i32 s93, {n}, 5120
s_mul_i32 s94, {n}, 4096
s_mul_i32 s95, s90, 5120
s_add_u32 s84, s84, s95""")

def rot_act(e):
    if not opt.rot: return
    e("""s_lshl_b32 s95, s90, 12
s_add_u32 s85, s85, s95""")

def gen_p2_stream(e, tag, nsteps, extra_hook=None):
    queue = []
    SC = '' if opt.nosc1 else 'sc1'
    def ld_w(s):
        b = WSL + 20 * (s % NW)
        for dt in range(5):
            if dt < 4:
                e(f"buffer_load_dwordx4 {R(b+4*dt)}, v1, s[{SWS}:{SWS+3}], s84 offen offset:{dt*1024} {SC}")
            else:
                e(f"s_add_u32 s84, s84, 4096")
                e(f"buffer_load_dwordx4 {R(b+4*dt)}, v1, s[{SWS}:{SWS+3}], s84 offen {SC}")
                e(f"s_add_u32 s84, s84, 1024")
            queue.append(('w', s))
        wrap_w(e)
    def ld_a(s):
        b = ASL + 16 * (s % NA)
        for tt in range(4):
            e(f"buffer_load_dwordx4 {R(b+4*tt)}, v1, s[{SWS}:{SWS+3}], s85 offen offset:{tt*1024} {SC}")
            queue.append(('a', s))
        e(f"s_add_u32 s85, s85, 4096")
        wrap_a(e)
    return ld_w, ld_a, queue

def p2_role(e, tag, nsteps):
    pass

def emit_stream(e, nsteps, ld_w, ld_a, queue, NL, vL, late_lds=None, sig20=False):
    if opt.ststamps:
        e(f"s_memtime s[100:101]\ns_waitcnt lgkmcnt(0)\nv_writelane_b32 v250, s100, 0")
    for s in range(min(NA, nsteps)): ld_a(s)
    if late_lds is not None: w_lds(e, NL, late_lds, queue)
    for s in range(nsteps):
        idx = [i for i, q in enumerate(queue) if q in (('w', s), ('a', s))]
        inlds = NW <= s < NW + NL
        if idx:
            last = max(idx)
            n = len(queue) - 1 - last
            e(f"s_waitcnt vmcnt({n})" + (" lgkmcnt(0)" if inlds else ""))
            del queue[:last + 1]
        elif inlds:
            e("s_waitcnt lgkmcnt(0)")
        if sig20 and s == 0 and opt.sshelp: lds_count(e, 20, 10)
        if opt.ststamps:
            e(f"s_memtime s[100:101]\ns_waitcnt lgkmcnt(0)\nv_writelane_b32 v250, s100, {s+1}")
        wb = WSL + 20 * (s % NW); ab = ASL + 16 * (s % NA)
        for dt in range(5):
            for tt in range(4):
                d = acc2(dt, tt)
                c = R(d)
                e(f"v_mfma_f32_16x16x32_bf16 {R(d)}, {R(wb+4*dt)}, {R(ab+4*tt)}, {c}")
        if s + NA < nsteps: ld_a(s + NA)
        t = s + NW
        if t < nsteps and t >= NW + NL:
            ld_w(t)
        t = s + 2
        if NW <= t < min(NW + NL, nsteps):
            li = [i for i, q in enumerate(queue) if q == ('l', t)]
            if li:
                e(f"s_waitcnt vmcnt({len(queue) - 1 - max(li)})")
                del queue[:max(li) + 1]
            for dt in range(5):
                e(f"ds_read_b128 {R(WSL + 20*(t % NW) + 4*dt)}, v{vL} offset:{(t-NW)*5120 + dt*1024}")

def spoll_tiles(e, tag, kind, sleep=1):
    off = 0 if kind == 'F' else 128
    n = 18 if kind == 'F' else 14
    e(f"""s_lshl_b32 s89, s{sRB2}, 8
s_add_u32 s89, s89, {TFLAG_OFF + off}
s_mov_b32 s80, 0
L_sp_{tag}:""")
    if kind == 'F':
        e(f"s_load_dwordx16 s[40:55], s[{P_WS}:{P_WS+1}], s89 glc")
        e(f"s_load_dwordx2 s[56:57], s[{P_WS}:{P_WS+1}], s89 offset:64 glc")
        regs = list(range(40, 58))
    else:
        e(f"s_load_dwordx8 s[40:47], s[{P_WS}:{P_WS+1}], s89 glc")
        e(f"s_load_dwordx4 s[48:51], s[{P_WS}:{P_WS+1}], s89 offset:32 glc")
        e(f"s_load_dwordx2 s[54:55], s[{P_WS}:{P_WS+1}], s89 offset:48 glc")
        regs = list(range(40, 52)) + [54, 55]
    e("s_add_u32 s80, s80, 1\ns_waitcnt lgkmcnt(0)\ns_mov_b32 s81, 0")
    for r_ in regs:
        e(f"s_xor_b32 s82, s{r_}, s{sNONCE}\ns_or_b32 s81, s81, s82")
    e(f"""s_cmp_ge_u32 s80, {opt.spin_limit}
s_cbranch_scc1 L_sp_done_{tag}
s_cmp_eq_u32 s81, 0
s_cbranch_scc1 L_sp_done_{tag}
s_sleep {sleep}
s_branch L_sp_{tag}
L_sp_done_{tag}:""")

def ffn_acc_loads(e):
    srd(e, STA, P_B2, 1280)
    e(f"""v_lshrrev_b32 v4, 4, v0
v_lshlrev_b32 v4, 3, v4
v_mov_b32 v5, 0x10000000
s_cmp_eq_u32 s86, 0
s_cselect_b32 s80, 0, 1
v_mov_b32 v6, s80
v_cmp_eq_u32 vcc, 1, v6
v_cndmask_b32 v4, v4, v5, vcc
s_mul_i32 s81, s{sCB}, 160""")
    for dt in range(5):
        e(f"buffer_load_dwordx2 v[{244+2*dt}:{245+2*dt}], v4, s[{STA}:{STA+3}], s81 offen offset:{32*dt}")

def ffn_acc_init(e):
    for dt in range(5):
        b = acc2(dt, 0)
        e(f"""v_lshlrev_b32 v{b}, 16, v{244+2*dt}
v_and_b32 v{b+1}, 0xffff0000, v{244+2*dt}
v_lshlrev_b32 v{b+2}, 16, v{245+2*dt}
v_and_b32 v{b+3}, 0xffff0000, v{245+2*dt}""")
        for tt in range(1, 4):
            for r in range(4):
                e(f"v_mov_b32 v{acc2(dt,tt)+r}, v{b+r}")

def ssm_pre(e):
    e(f"""s_lshr_b32 s80, s{sWAVE}, 1
s_lshl_b32 s80, s80, 5
s_and_b32 s81, s{sWAVE}, 1
s_lshl_b32 s81, s81, 3
s_add_u32 s80, s80, s81
s_lshl_b32 s81, s{sRB2}, 6
s_add_u32 s80, s80, s81
v_bfe_u32 v4, v0, 3, 1
v_lshlrev_b32 v4, 4, v4
v_and_b32 v5, 7, v0
v_add_u32 v4, v4, v5
v_add_u32 v4, s80, v4
v_lshrrev_b32 v5, 4, v0
v_lshlrev_b32 v6, 3, v5
s_mul_i32 s81, s{sCB}, 160
v_mul_u32_u24 v7, 1280, v4
v_add_u32 v7, v7, v6
v_lshlrev_b32 v8, 3, v4
v_mul_u32_u24 v248, 2560, v4
v_lshlrev_b32 v5, 4, v5
v_add_u32 v248, v248, v5""")
    XR, DK = 196, 206
    srd(e, STA, P_AX, 2621440)
    for dt in range(5):
        e(f"buffer_load_dwordx2 v[{XR+2*dt}:{XR+2*dt+1}], v7, s[{STA}:{STA+3}], s81 offen offset:{32*dt}")
    srd(e, STB, P_DSK, 1280)
    for dt in range(5):
        e(f"buffer_load_dwordx2 v[{DK+2*dt}:{DK+2*dt+1}], v6, s[{STB}:{STB+3}], s81 offen offset:{32*dt}")
    e(f"""s_mov_b32 s82, {G_OFF}
buffer_load_dwordx2 v[244:245], v8, s[{SWS}:{SWS+3}], s82 offen sc1""")
    for i in range(80):
        e(f"v_mov_b32 v{ACC2+i}, 0")
    e(f"""s_waitcnt vmcnt(0)
s_mov_b32 s80, 0
L_G_chk:
v_cmp_ne_u32 vcc, s{sNONCE}, v245
s_add_u32 s80, s80, 1
s_cmp_ge_u32 s80, {opt.spin_limit}
s_cbranch_scc1 L_G_ok
s_cmp_eq_u64 vcc, 0
s_cbranch_scc1 L_G_ok
s_sleep 2
buffer_load_dwordx2 v[244:245], v8, s[{SWS}:{SWS+3}], s82 offen sc1
s_waitcnt vmcnt(0)
s_branch L_G_chk
L_G_ok:
v_sub_f32 v246, 1.0, v244
v_cvt_pk_bf16_f32 v246, v246, v246
v_and_b32 v246, 0xffff0000, v246""")
    for dt in range(5):
        T = 216 + 4 * dt
        e(f"""v_lshlrev_b32 v10, 16, v{XR+2*dt}
v_and_b32 v11, 0xffff0000, v{XR+2*dt}
v_lshlrev_b32 v12, 16, v{XR+2*dt+1}
v_and_b32 v13, 0xffff0000, v{XR+2*dt+1}
v_lshlrev_b32 v{T}, 16, v{DK+2*dt}
v_and_b32 v{T+1}, 0xffff0000, v{DK+2*dt}
v_lshlrev_b32 v{T+2}, 16, v{DK+2*dt+1}
v_and_b32 v{T+3}, 0xffff0000, v{DK+2*dt+1}
v_mul_f32 v{T}, v{T}, v10
v_mul_f32 v{T+1}, v{T+1}, v11
v_mul_f32 v{T+2}, v{T+2}, v12
v_mul_f32 v{T+3}, v{T+3}, v13""")
    for w in range(4):
        e(f"s_cmp_eq_u32 s{sWAVE}, {w}\ns_cbranch_scc0 L_PRE_{w}")
        for dt in range(5):
            for r in range(4):
                e(f"v_mov_b32 v{acc2(dt,w)+r}, v{216+4*dt+r}")
        e(f"L_PRE_{w}:")

def lds_signal(e, off, vt):
    e(f"""v_mov_b32 v{vt}, {LDS_FLAG + off}
v_mov_b32 v{vt+1}, 1
ds_write_b32 v{vt}, v{vt+1}""")

def lds_count(e, off, vt):
    e(f"""v_mov_b32 v{vt}, {LDS_FLAG + off}
v_mov_b32 v{vt+1}, 1
s_mov_b64 exec, 1
ds_add_u32 v{vt}, v{vt+1}
s_mov_b64 exec, -1""")

def lds_wait_ge(e, tag, off, n, vt):
    e(f"""v_mov_b32 v{vt}, {LDS_FLAG + off}
s_mov_b32 s80, 0
L_lwg_{tag}:
ds_read_b32 v{vt+1}, v{vt}
s_add_u32 s80, s80, 1
s_waitcnt lgkmcnt(0)
v_readfirstlane_b32 s81, v{vt+1}
s_cmp_ge_u32 s80, {opt.spin_limit * 4}
s_cbranch_scc1 L_lwg_done_{tag}
s_cmp_ge_u32 s81, {n}
s_cbranch_scc1 L_lwg_done_{tag}
s_sleep 1
s_branch L_lwg_{tag}
L_lwg_done_{tag}:""")

def lds_wait(e, tag, off, vt):
    e(f"""v_mov_b32 v{vt}, {LDS_FLAG + off}
s_mov_b32 s80, 0
L_lw_{tag}:
ds_read_b32 v{vt+1}, v{vt}
s_add_u32 s80, s80, 1
s_waitcnt lgkmcnt(0)
v_readfirstlane_b32 s81, v{vt+1}
s_cmp_ge_u32 s80, {opt.spin_limit * 4}
s_cbranch_scc1 L_lw_done_{tag}
s_cmp_eq_u32 s81, 0
s_cbranch_scc0 L_lw_done_{tag}
s_sleep 1
s_branch L_lw_{tag}
L_lw_done_{tag}:""")

def gen_p2(e):
    e("L_FFN_P2:")
    e(f"""s_mul_i32 s80, s{sRB2}, 94
s_add_u32 s85, s85, s80
s_lshl_b32 s85, s85, 12
v_add_u32 v3, s87, v1""")
    rot_act(e)
    if not opt.gearly:
        e(f"""s_mov_b32 s88, s84
s_mov_b32 s84, s86""")
        e(f"s_waitcnt vmcnt({NLF*5})")
        gen_gate_compute(e)
        e("s_mov_b32 s84, s88")
        ffn_acc_init(e)
    ld_w, ld_a, queue = gen_p2_stream(e, 'F', 14)
    stamp(e, 3, 14)
    e(f"s_cmp_eq_u32 s86, 0\ns_cbranch_scc0 L_FFN_lw")
    spoll_tiles(e, 'FT', 'F')
    lds_signal(e, 8, 10)
    e("s_branch L_FFN_go\nL_FFN_lw:")
    lds_wait(e, 'F', 8, 10)
    e("L_FFN_go:")
    if opt.uhold:
        e(f"s_cmp_eq_u32 s{sISU}, 1\ns_cbranch_scc0 L_FFN_nohold")
        lds_wait_ge(e, 'UH', 32, 4, 10)
        e("L_FFN_nohold:")
    if opt.prio: e(f"s_setprio {opt.prio}")
    stamp(e, 4, 14)
    if opt.l2pf2: l2_prefetch(e, 85, 14 * 32, 4 if opt.map2 == 1 else 8, f"s{sCB}", 3 if opt.map2 == 1 else 7, 2 if opt.map2 == 1 else 1)
    del queue[:]
    e(f"s_cmp_ge_u32 s86, 2\ns_cbranch_scc1 L_FFN_13")
    emit_stream(e, 14, ld_w, ld_a, queue, NLF, 3, 87 if opt.ldslate else None, sig20=True)
    e("s_branch L_FFN_done")
    e("L_FFN_13:")
    del queue[:]
    emit_stream(e, 13, ld_w, ld_a, queue, NLF, 3, 87 if opt.ldslate else None, sig20=True)
    e("L_FFN_done:")
    if opt.ststamps:
        e(f"""s_memtime s[100:101]
s_waitcnt lgkmcnt(0)
v_writelane_b32 v250, s100, 15
s_lshl_b32 s98, s2, 3
s_add_u32 s98, s98, s{sWAVE}
s_lshl_b32 s98, s98, 6
s_add_u32 s98, s98, {STAMP_OFF + 0x40000}
v_lshlrev_b32 v251, 2, v0
s_mov_b64 exec, 0xffff
buffer_store_dword v250, v251, s[{SWS}:{SWS+3}], s98 offen
s_mov_b64 exec, -1""")
    stamp(e, 5, 14)
    e(f"""s_mul_i32 s80, s86, 20480
v_add_u32 v2, s80, v1""")
    for tt in range(4):
        for dt in range(5):
            e(f"ds_write_b128 v2, {R(acc2(dt,tt))} offset:{LDS_F + (tt*5+dt)*1024}")
    e("s_waitcnt lgkmcnt(0)\ns_barrier")
    stamp(e, 6, 14)
    e("s_branch L_END")
    e("L_SSM_P2:")
    if not opt.wearly: ssm_w_setup(e, 'P')
    e("L_SSM_P2b:")
    ssm_pre(e)
    ld_w, ld_a, queue = gen_p2_stream(e, 'S', 10)
    stamp(e, 6, 14)
    e(f"s_cmp_eq_u32 s{sWAVE}, 0\ns_cbranch_scc0 L_SSM_lw")
    spoll_tiles(e, 'ST', 'S')
    e('s_waitcnt vmcnt(0)')
    lds_signal(e, 12, 10)
    e("s_branch L_SSM_go\nL_SSM_lw:\ns_waitcnt vmcnt(0)")
    lds_wait(e, 'S', 12, 10)
    e("L_SSM_go:")
    if opt.sshelp:
        e(f"s_cmp_eq_u32 s{sISU}, 1\ns_cbranch_scc0 L_SSM_nohw")
        lds_wait_ge(e, 'H', 20, 4, 10)
        e("L_SSM_nohw:")
    stamp(e, 7, 14)
    dbgmax(e, 5)
    if opt.l2pf2: l2_prefetch(e, 85, 10 * 32, 4 if opt.map2 == 1 else 8, f"s{sCB}", 3 if opt.map2 == 1 else 7, 2 if opt.map2 == 1 else 1)
    del queue[:]
    emit_stream(e, 10, ld_w, ld_a, queue, NLS, 3)
    if opt.ststamps:
        e(f"""s_memtime s[100:101]
s_waitcnt lgkmcnt(0)
v_writelane_b32 v250, s100, 15
s_lshl_b32 s98, s2, 3
s_add_u32 s98, s98, s{sWAVE}
s_lshl_b32 s98, s98, 6
s_add_u32 s98, s98, {STAMP_OFF + 0x40000}
v_lshlrev_b32 v251, 2, v0
s_mov_b64 exec, 0xffff
buffer_store_dword v250, v251, s[{SWS}:{SWS+3}], s98 offen
s_mov_b64 exec, -1""")
    stamp(e, 8, 14)
    dbgmax(e, 6)
    e(f"""s_mul_i32 s83, s{sWAVE}, 15360
s_add_u32 s83, s83, {LDS_Y}
v_add_u32 v7, s83, v1""")
    OWN = 130
    for w in range(4):
        e(f"s_cmp_eq_u32 s{sWAVE}, {w}\ns_cbranch_scc0 L_YW_{w}")
        sl = 0
        for tt in range(4):
            if tt == w: continue
            for dt in range(5):
                e(f"ds_write_b128 v7, {R(acc2(dt,tt))} offset:{sl * 5120 + dt * 1024}")
            sl += 1
        for dt in range(5):
            for r in range(4):
                e(f"v_mov_b32 v{OWN+4*dt+r}, v{acc2(dt,w)+r}")
        e(f"s_branch L_YW_done\nL_YW_{w}:")
    e("L_YW_done:")
    for k in range(3):
        e(f"""s_cmp_ge_u32 {k}, s{sWAVE}
s_cselect_b32 s80, {k+1}, {k}
s_cselect_b32 s81, 0, 1
s_sub_u32 s81, s{sWAVE}, s81
s_mul_i32 s80, s80, 15360
s_mul_i32 s81, s81, 5120
s_add_u32 s80, s80, s81
s_add_u32 s80, s80, {LDS_Y}
v_add_u32 v{8+k}, s80, v1""")
    e(f"""s_mul_i32 s80, s{sWAVE}, 5120
v_add_u32 v11, s80, v1
v_add_u32 v12, 40960, v11""")
    srd(e, SOUT, P_OUT, 5242880)
    e(f"s_mul_i32 s81, s{sCB}, 320")
    e("s_waitcnt lgkmcnt(0)\ns_barrier")
    stamp(e, 9, 14)
    YR, FR = 16, 150
    for dt in range(5):
        for k in range(3):
            e(f"ds_read_b128 {R(YR+20*k+4*dt)}, v{8+k} offset:{dt*1024}")
        for w2 in range(4):
            e(f"ds_read_b128 {R(FR+20*w2+4*dt)}, v{11+(w2>>1)} offset:{(w2&1)*20480 + dt*1024}")
    for dt in range(5):
        e(f"s_waitcnt lgkmcnt({min(15, 7*(4-dt))})")
        y, f = OWN + 4 * dt, FR + 4 * dt
        t1, t2 = 80 + 0, 84
        A = 96 + 4 * dt
        for r in range(0, 4, 2):
            e(f"v_pk_add_f32 v[{YR+4*dt+r}:{YR+4*dt+r+1}], v[{YR+4*dt+r}:{YR+4*dt+r+1}], v[{YR+20+4*dt+r}:{YR+20+4*dt+r+1}]")
            e(f"v_pk_add_f32 v[{y+r}:{y+r+1}], v[{y+r}:{y+r+1}], v[{YR+40+4*dt+r}:{YR+40+4*dt+r+1}]")
            e(f"v_pk_add_f32 v[{f+r}:{f+r+1}], v[{f+r}:{f+r+1}], v[{f+20+r}:{f+20+r+1}]")
            e(f"v_pk_add_f32 v[{f+40+r}:{f+40+r+1}], v[{f+40+r}:{f+40+r+1}], v[{f+60+r}:{f+60+r+1}]")
        B_ = 76 + 0
        for r in range(0, 4, 2):
            e(f"v_pk_add_f32 v[{YR+20+4*dt+r}:{YR+20+4*dt+r+1}], v[{y+r}:{y+r+1}], v[{YR+4*dt+r}:{YR+4*dt+r+1}]")
            e(f"v_pk_add_f32 v[{f+20+r}:{f+20+r+1}], v[{f+r}:{f+r+1}], v[{f+40+r}:{f+40+r+1}]")
        for r in range(0, 4, 2):
            e(f"v_pk_mul_f32 v[{YR+40+4*dt+r}:{YR+40+4*dt+r+1}], v[{YR+20+4*dt+r}:{YR+20+4*dt+r+1}], v[244:245] op_sel:[0,0] op_sel_hi:[1,0]")
        for r in range(0, 4, 2):
            e(f"v_pk_fma_f32 v[{A+r}:{A+r+1}], v[{f+20+r}:{f+20+r+1}], v[246:247], v[{YR+40+4*dt+r}:{YR+40+4*dt+r+1}] op_sel:[0,0,0] op_sel_hi:[1,0,1]")
        e(f"buffer_store_dwordx4 {R(A)}, v248, s[{SOUT}:{SOUT+3}], s81 offen offset:{dt*64} {['', 'sc1', 'nt', 'sc0 sc1'][opt.osc]}")
    stamp(e, 10, 14)
    if opt.deadline:
        e(f"""L_DL:
s_memrealtime s[100:101]
s_waitcnt lgkmcnt(0)
s_sub_u32 s98, s100, s{sNONCE}
s_cmp_lt_u32 s98, {opt.deadline}
s_cbranch_scc0 L_DL_done
s_sleep 1
s_branch L_DL
L_DL_done:""")
    if opt.dbgtime: e("s_waitcnt vmcnt(0)")
    dbgmax(e, 7)
    e("s_branch L_END")

def gen_gate_loads(e, W=84):
    srd(e, STA, P_GW, 1280)
    srd(e, STB, P_AX, 2621440)
    e(f"""v_lshlrev_b32 v12, 4, v0
v_lshlrev_b32 v13, 2, v0
s_lshl_b32 s80, s2, 3
s_lshl_b32 s81, s{W}, 1
s_add_u32 s80, s80, s81
s_mul_i32 s81, s80, 1280
s_add_u32 s82, s81, 1280
buffer_load_dwordx4 v[16:19], v12, s[{STA}:{STA+3}], 0 offen
buffer_load_dword v20, v13, s[{STA}:{STA+3}], 0 offen offset:1024
buffer_load_dwordx4 v[22:25], v12, s[{STB}:{STB+3}], s81 offen
buffer_load_dword v26, v13, s[{STB}:{STB+3}], s81 offen offset:1024
buffer_load_dwordx4 v[28:31], v12, s[{STB}:{STB+3}], s82 offen
buffer_load_dword v32, v13, s[{STB}:{STB+3}], s82 offen offset:1024""")

def gen_gate_compute(e):
    e("v_mov_b32 v40, 0\nv_mov_b32 v41, 0")
    for m in range(5):
        e(f"""v_lshlrev_b32 v36, 16, v{16+m}
v_and_b32 v37, 0xffff0000, v{16+m}""")
        for row in range(2):
            x = 22 + 6 * row + m
            e(f"""v_lshlrev_b32 v38, 16, v{x}
v_and_b32 v39, 0xffff0000, v{x}
v_mul_f32 v38, v38, v36
v_mul_f32 v39, v39, v37
v_cvt_pk_bf16_f32 v38, v38, v39
v_lshlrev_b32 v39, 16, v38
v_and_b32 v38, 0xffff0000, v38
v_add_f32 v{40+row}, v{40+row}, v39
v_add_f32 v{40+row}, v{40+row}, v38""")
    for sh in ("row_shr:1", "row_shr:2", "row_shr:4", "row_shr:8", "row_bcast:15 row_mask:0xa", "row_bcast:31 row_mask:0xc"):
        for row in range(2):
            e(f"v_add_f32 v{40+row}, v{40+row}, v{40+row} {sh}")
    e("""v_readlane_b32 s80, v40, 63
v_readlane_b32 s81, v41, 63""")
    e(f"""v_mov_b32 v42, s80
v_mov_b32 v43, s81
v_cmp_eq_u32 vcc, 1, v0
v_cndmask_b32 v42, v42, v43, vcc
v_cvt_pk_bf16_f32 v42, v42, v42
v_and_b32 v42, 0xffff0000, v42
v_mul_f32 v42, 0xbfb8aa3b, v42
v_exp_f32 v42, v42
v_add_f32 v42, 1.0, v42
v_rcp_f32 v42, v42
v_cvt_pk_bf16_f32 v42, v42, v42
v_and_b32 v42, 0xffff0000, v42
v_mov_b32 v43, s{sNONCE}
v_lshlrev_b32 v44, 3, v0
s_lshl_b32 s80, s2, 3
s_lshl_b32 s81, s84, 1
s_add_u32 s80, s80, s81
s_lshl_b32 s80, s80, 3
s_add_u32 s80, s80, {G_OFF}
s_mov_b64 exec, 3
buffer_store_dwordx2 v[42:43], v44, s[{SWS}:{SWS+3}], s80 offen sc0 sc1
s_mov_b64 exec, -1""")

def generate(path):
    e = Emitter()
    hdr = open("gated_mix__ssm_conv_s5__dense_activation_squared_relu__prompt.s.ref").read().split("\n")
    head = [l for l in hdr if l.startswith(";") and "@launch" not in l and "Override" not in l and "grid=ceil" not in l]
    txt = "\n".join(head) + f"\n; @launch grid=(256,1,1) block=(512,1,1) lds={LDS_SIZE}\n"
    txt += '.amdgcn_target "amdgcn-amd-amdhsa--gfx950"\n.text\n'
    txt += f".globl {NAME}\n.p2align 8\n.type {NAME},@function\n{NAME}:\n"
    gen_entry(e)
    gen_consumer(e)
    gen_loader(e)
    gen_p2(e)
    e("L_END:\ns_endpgm\nL_CODE_END:")
    txt += e.text()
    txt += f""".section .rodata,"a"
.p2align 6
.amdhsa_kernel {NAME}
  .amdhsa_next_free_vgpr 256
  .amdhsa_next_free_sgpr 102
  .amdhsa_accum_offset 256
  .amdhsa_group_segment_fixed_size 0
  .amdhsa_kernarg_size 144
  .amdhsa_user_sgpr_count 2
  .amdhsa_user_sgpr_kernarg_segment_ptr 1
  .amdhsa_system_sgpr_workgroup_id_x 1
.end_amdhsa_kernel
"""
    open(path, "w").write(txt)
    print("pads:", e.npad, "lines:", len(e.out))

if __name__ == "__main__":
    opt.check_g = True
    opt.nowait = 0
    opt.nodma = 0
    opt.itstamps = 0
    opt.l2pf = 0
    opt.uq = 0
    opt.fprep = 0
    opt.gearly = 1
    opt.pnt = 1
    opt.gnt = 0
    opt.snt = 0
    opt.deadline = 0
    opt.plate = 0
    opt.pfin = 2
    opt.uhold = 1
    opt.gw2 = 0
    opt.thr = 0
    opt.fswn = 5
    opt.osc = 0
    opt.nosc1 = 0
    opt.nw = 5
    opt.na = 3
    opt.fsw = 2
    opt.gall = 0
    opt.udelay = 0
    opt.dbgtime = 0
    opt.sorder = 1
    opt.sshelp = 1
    opt.ststamps = 0
    opt.rot = 0
    opt.sprio = 2
    opt.eprio = 3
    opt.wearly = 0
    opt.ldslate = 0
    opt.prio = 1
    opt.cpf = 1
    opt.wdelay = 0
    opt.noprep = 0
    opt.nost = 0
    opt.map2 = 1
    opt.gw = 0
    opt.gloop = 1
    opt.ssleep = 8
    opt.l2pf2 = 0
    for a in sys.argv[2:]:
        k, v = a.split("=")
        setattr(opt, k, int(v))
    if opt.nw != 5 or opt.na != 3: set_nw(opt.nw, opt.na)
    generate(sys.argv[1])
```
